```python
import torch

def _softmax(x, axis=-1):
    return torch.softmax(x, dim=axis)
def _gelu(x):
    return torch.nn.functional.gelu(x, approximate="tanh")
def _silu(x):
    return torch.nn.functional.silu(x)
def _sigmoid(x):
    return torch.sigmoid(x)
def _layernorm(x, axis=-1, eps=1e-5):
    m = x.mean(dim=axis, keepdim=True)
    v = x.var(dim=axis, keepdim=True, unbiased=False)
    return (x - m) / torch.sqrt(v + eps)
def _scatter_add(tgt, idx, src, axis=0):
    return tgt.clone().index_add_(axis, idx, src)
def _segment_sum(src, seg, n):
    out = torch.zeros((n,) + src.shape[1:], dtype=src.dtype)
    return out.index_add_(0, seg, src)
def _pad(x, pw):
    flat = tuple(v for pair in reversed(pw) for v in pair)
    return torch.nn.functional.pad(x, flat)

kernel_name = 'gated_mix__spectral_fnet__glu_gated_glu__prompt'

def setup_inputs():

    _w = (lambda a: (lambda t: t.to(torch.bfloat16) if t.is_floating_point() else t)(torch.as_tensor(a)))
    def _A_setup():
        B, S, D = 1, 2048, 448
        ns = torch.arange(S)[:, None] * torch.arange(S)[None, :]
        nd = torch.arange(D)[:, None] * torch.arange(D)[None, :]
        Ws_re = torch.cos(-2.0 * torch.pi * ns / S).to(float)
        Ws_im = torch.sin(-2.0 * torch.pi * ns / S).to(float)
        Wd_re = torch.cos(-2.0 * torch.pi * nd / D).to(float)
        Wd_im = torch.sin(-2.0 * torch.pi * nd / D).to(float)
        return {
            "x": _w((lambda *s: torch.randn(*s, dtype=torch.bfloat16) * 0.05)(B, S, D)),
            "dft_seq_re": _w(Ws_re),
            "dft_seq_im": _w(Ws_im),
            "dft_hid_re": _w(Wd_re),
            "dft_hid_im": _w(Wd_im),
        }
    _A_in = _A_setup()

    def _B_setup():
        B, S, D, F = 1, 2048, 448, 1792
        return {
            "x": _w((lambda *s: torch.randn(*s, dtype=torch.bfloat16) * 0.05)(B, S, D)),
            "w_gate": _w((lambda *s: torch.randn(*s, dtype=torch.bfloat16) * 1.6)(D, F)),
            "w_up": _w((lambda *s: torch.randn(*s, dtype=torch.bfloat16) * 0.8)(D, F)),
            "w_down": _w((lambda *s: torch.randn(*s, dtype=torch.bfloat16) * 0.8)(F, D)),
        }
    _B_in = _B_setup()

    return {
        "A_x": _A_in["x"],
        "A_dft_seq_re": _A_in["dft_seq_re"],
        "A_dft_seq_im": _A_in["dft_seq_im"],
        "A_dft_hid_re": _A_in["dft_hid_re"],
        "A_dft_hid_im": _A_in["dft_hid_im"],
        "B_x": _B_in["x"],
        "B_w_gate": _B_in["w_gate"],
        "B_w_up": _B_in["w_up"],
        "B_w_down": _B_in["w_down"],
        "gate_w": _w((lambda *s: torch.randn(*s, dtype=torch.bfloat16) * 0.05)(448) * 16.0),
    }

def reference(A_x, A_dft_seq_re, A_dft_seq_im, A_dft_hid_re, A_dft_hid_im, B_x, B_w_gate, B_w_up, B_w_down, gate_w):
    def _A_ref(x, dft_seq_re, dft_seq_im, dft_hid_re, dft_hid_im):
        a = torch.einsum("bsd,ed->bse", x, dft_hid_re)
        b = torch.einsum("bsd,ed->bse", x, dft_hid_im)
        y = torch.einsum("ts,bse->bte", dft_seq_re, a) - torch.einsum("ts,bse->bte", dft_seq_im, b)
        return y

    def _B_ref(x, w_gate, w_up, w_down):
        g = torch.einsum("bsd,df->bsf", x, w_gate)
        u = torch.einsum("bsd,df->bsf", x, w_up)
        h = _sigmoid(g) * u
        return torch.einsum("bsf,fd->bsd", h, w_down)

    x = A_x
    g = _sigmoid((x * gate_w).sum(-1, keepdims=True))
    a = _A_ref(x, A_dft_seq_re, A_dft_seq_im, A_dft_hid_re, A_dft_hid_im)
    b = _B_ref(x, B_w_gate, B_w_up, B_w_down)
    return g * a + (1 - g) * b
```

```python
import sys, math

NAME = "gated_mix__spectral_fnet__glu_gated_glu__prompt"

class Em:
    def __init__(self):
        self.lines = []
        self.vm = []
        self.nlab = 0
    def __call__(self, s):
        self.lines.append("    " + s)
    def raw(self, s):
        self.lines.append(s)
    def label(self, s):
        self.lines.append(s + ":")
    def comment(self, s):
        self.lines.append("    ; " + s)
    def vm_issue(self, tag):
        self.vm.append(tag)
    def vm_wait(self, tags):
        last = -1
        for i, t in enumerate(self.vm):
            if t in tags: last = i
        if last < 0:
            return
        n = len(self.vm) - 1 - last
        assert n <= 63, n
        self("s_waitcnt vmcnt(%d)" % n)
        self.vm = self.vm[last + 1:]
    def vm_wait_all(self):
        self("s_waitcnt vmcnt(0)")
        self.vm = []
    def text(self):
        return "\n".join(self.lines) + "\n"

def vr(a, n=1):
    return "v%d" % a if n == 1 else "v[%d:%d]" % (a, a + n - 1)
def sr(a, n=1):
    return "s%d" % a if n == 1 else "s[%d:%d]" % (a, a + n - 1)

HBUF = 0
UBUF = 0x700000
GBUF = 0x900000
DIAG = 0xA00000
WS_BYTES = 0x1000000

LOG2E = 1.4426950408889634

S_WG = 2
S_X = 8; S_WA = 12; S_WB = 16; S_WS = 20; S_GW = 24; S_OUT = 28; S_WD = 32; S_DBG = 36
S_WAVE = 40
S_T0 = 41
S_R = 60; S_FB = 61; S_QG = 62; S_EH = 63
S_WF = 64; S_WT = 65
S_LX = 66
S_LW = 67
S_OFF = 68
S_OFF2 = 69
S_T1 = 70; S_C = 71
S_STAMP = 80

class Cfg:
    fused = False
    diag = False

def kernarg_loads(e, need):
    e("s_load_dwordx2 s[44:45], s[0:1], 0")
    e("s_load_dwordx4 s[48:51], s[0:1], 24")
    e("s_load_dwordx4 s[52:55], s[0:1], 48")
    e("s_load_dwordx4 s[56:59], s[0:1], 64")
    e("s_load_dwordx2 s[46:47], s[0:1], 80")
    e("s_load_dwordx4 s[72:75], s[0:1], 88")

def srd(e, dst, lo, nbytes):
    e("s_mov_b32 s%d, s%d" % (dst, lo))
    e("s_and_b32 s%d, s%d, 0xffff" % (dst + 1, lo + 1))
    e("s_mov_b32 s%d, 0x%x" % (dst + 2, nbytes))
    e("s_mov_b32 s%d, 0x20000" % (dst + 3))

def stamp(e, cfg, k):
    if cfg.diag:
        e("s_memrealtime s[%d:%d]" % (S_STAMP + 2 * k, S_STAMP + 2 * k + 1))
        e("s_waitcnt lgkmcnt(0)")

def stamp_store(e, cfg, nst, slot_base):
    if not cfg.diag: return
    e("s_lshl_b32 s41, s2, 3")
    e("s_add_u32 s41, s41, s%d" % S_WAVE)
    e("s_lshl_b32 s41, s41, 6")
    e("s_add_u32 s41, s41, 0x%x" % (DIAG + slot_base))
    e("v_mov_b32 v1, s41")
    for k in range(nst):
        e("v_mov_b32 v2, s%d" % (S_STAMP + 2 * k))
        e("buffer_store_dword v2, v1, s[%d:%d], 0 offen offset:%d" % (S_WS, S_WS + 3, 4 * k))
        e("s_nop 1")
    e("s_waitcnt vmcnt(0)")

XSLOT = 16384; NX = 4
WBASE = 65536; NW = 6; WSLOT = 16384

V_LANE = 1
V_XA = 10
V_WA = 14
V_XG = 22
V_WG = 24
V_T = 26
ACC = 64
FR = 128

def accA(i): return ACC + 16 * i
def accB(i): return ACC + 32 + 16 * i

def phase1_common_addr(e, is_h):
    L = V_LANE
    T = V_T
    e("v_and_b32 v%d, 31, v%d" % (T, L))
    e("v_lshrrev_b32 v%d, 5, v%d" % (T + 1, L))
    e("v_lshrrev_b32 v%d, 1, v%d" % (T + 2, T))
    e("v_and_b32 v%d, 7, v%d" % (T + 2, T + 2))
    e("s_lshl_b32 s41, s%d, 6" % S_WT)
    e("v_add_u32 v%d, s41, v%d" % (T + 3, T))
    e("v_lshlrev_b32 v%d, 7, v%d" % (T + 3, T + 3))
    if not is_h:
        e("s_lshl_b32 s41, s%d, 5" % S_WF)
        e("v_add_u32 v%d, s41, v%d" % (T + 5, T))
        e("v_lshlrev_b32 v%d, 7, v%d" % (T + 5, T + 5))
        e("v_add_u32 v%d, 0x%x, v%d" % (T + 5, WBASE, T + 5))
    for k in range(4):
        e("v_add_u32 v%d, %d, v%d" % (T + 4, 2 * k, T + 1))
        e("v_xor_b32 v%d, v%d, v%d" % (T + 4, T + 4, T + 2))
        e("v_lshlrev_b32 v%d, 4, v%d" % (T + 4, T + 4))
        e("v_add_u32 v%d, v%d, v%d" % (V_XA + k, T + 3, T + 4))
        if not is_h:
            e("v_add_u32 v%d, v%d, v%d" % (V_WA + k, T + 5, T + 4))
            e("v_add_u32 v%d, 0x10000, v%d" % (V_WA + 4 + k, V_WA + k))
    if is_h:
        e("v_and_b32 v%d, 15, v%d" % (T + 4, L))
        e("v_lshrrev_b32 v%d, 2, v%d" % (T + 5, T + 4))
        e("v_lshlrev_b32 v%d, 3, v%d" % (T + 6, T + 1))
        e("v_add_u32 v%d, v%d, v%d" % (T + 6, T + 6, T + 5))
        e("v_lshlrev_b32 v%d, 8, v%d" % (T + 6, T + 6))
        e("v_xor_b32 v%d, s%d, v%d" % (T + 7, S_WF, T + 5))
        e("v_lshlrev_b32 v%d, 6, v%d" % (T + 7, T + 7))
        e("v_add_u32 v%d, v%d, v%d" % (T + 6, T + 6, T + 7))
        e("v_bfe_u32 v%d, v%d, 4, 1" % (T + 7, L))
        e("v_lshlrev_b32 v%d, 5, v%d" % (T + 7, T + 7))
        e("v_add_u32 v%d, v%d, v%d" % (T + 6, T + 6, T + 7))
        e("v_and_b32 v%d, 3, v%d" % (T + 7, T + 4))
        e("v_lshlrev_b32 v%d, 3, v%d" % (T + 7, T + 7))
        e("v_add_u32 v%d, v%d, v%d" % (T + 6, T + 6, T + 7))
        e("v_add_u32 v%d, 0x%x, v%d" % (V_WA, WBASE, T + 6))
        e("v_add_u32 v%d, 0x%x, v%d" % (V_WA + 1, WBASE + 0x10000, T + 6))
    e("v_lshrrev_b32 v%d, 3, v%d" % (T, L))
    e("s_lshl_b32 s41, s%d, 4" % S_WAVE)
    e("v_add_u32 v%d, s41, v%d" % (T, T))
    e("v_and_b32 v%d, 7, v%d" % (T + 1, L))
    e("v_lshrrev_b32 v%d, 4, v%d" % (T + 2, L))
    e("s_movk_i32 s42, 896")
    for i in range(2):
        if i == 1:
            e("v_add_u32 v%d, 8, v%d" % (T, T))
        e("v_add_u32 v%d, %d, v%d" % (T + 3, 4 * i, T + 2))
        e("v_xor_b32 v%d, v%d, v%d" % (T + 3, T + 3, T + 1))
        e("v_lshlrev_b32 v%d, 4, v%d" % (T + 3, T + 3))
        if is_h:
            e("v_lshrrev_b32 v%d, 6, v%d" % (T + 4, T))
            e("v_and_b32 v%d, 63, v%d" % (T + 5, T))
            e("v_lshlrev_b32 v%d, 5, v%d" % (T + 5, T + 5))
            e("s_lshl_b32 s41, s%d, 1" % S_R)
            e("v_add3_u32 v%d, v%d, v%d, s41" % (T + 4, T + 4, T + 5))
        else:
            e("v_and_b32 v%d, 31, v%d" % (T + 4, T))
            e("v_lshlrev_b32 v%d, 6, v%d" % (T + 4, T + 4))
            e("v_lshrrev_b32 v%d, 5, v%d" % (T + 5, T))
            e("s_lshl_b32 s41, s%d, 2" % S_QG)
            e("v_add3_u32 v%d, v%d, v%d, s41" % (T + 4, T + 4, T + 5))
        e("v_mul_lo_u32 v%d, v%d, s42" % (T + 4, T + 4))
        e("v_add_u32 v%d, v%d, v%d" % (V_XG + i, T + 4, T + 3))
        if not is_h:
            e("s_lshl_b32 s41, s%d, 7" % S_EH)
            e("v_add_u32 v%d, s41, v%d" % (T + 4, T))
            e("v_mul_lo_u32 v%d, v%d, s42" % (T + 4, T + 4))
            e("v_add_u32 v%d, v%d, v%d" % (V_WG + i, T + 4, T + 3))
    if is_h:
        e("s_lshl_b32 s41, s%d, 2" % S_WAVE)
        e("v_add_u32 v%d, s41, v%d" % (T + 3, T + 2))
        e("s_movk_i32 s42, 3584")
        e("v_mul_lo_u32 v%d, v%d, s42" % (T + 3, T + 3))
        e("v_bfe_u32 v%d, v%d, 2, 2" % (T + 4, L))
        e("v_xor_b32 v%d, v%d, v%d" % (T + 4, T + 4, T + 2))
        e("v_lshlrev_b32 v%d, 6, v%d" % (T + 4, T + 4))
        e("v_and_b32 v%d, 3, v%d" % (T + 5, L))
        e("v_lshlrev_b32 v%d, 4, v%d" % (T + 5, T + 5))
        e("v_add3_u32 v%d, v%d, v%d, v%d" % (T + 3, T + 3, T + 4, T + 5))
        e("s_lshl_b32 s41, s%d, 8" % S_FB)
        e("v_add_u32 v%d, s41, v%d" % (V_WG, T + 3))
        e("s_lshl_b32 s%d, s%d, 10" % (S_LW, S_WAVE))
    else:
        e("s_lshl_b32 s%d, s%d, 11" % (S_LW, S_WAVE))
    e("s_lshl_b32 s%d, s%d, 11" % (S_LX, S_WAVE))

def dma(e, srdreg, vaddr, ldsconst, sldswave, soff, tag, sc=""):
    e("s_add_u32 m0, s%d, 0x%x" % (sldswave, ldsconst))
    e("s_mov_b32 s%d, 0x%x" % (S_OFF, soff))
    e("buffer_load_dwordx4 v%d, s[%d:%d], s%d offen%s lds" % (vaddr, srdreg, srdreg + 3, S_OFF, sc))
    e.vm_issue(tag)

def dma_x(e, c):
    for i in range(2):
        dma(e, S_X, V_XG + i, (c % NX) * XSLOT + i * 1024, S_LX, c * 128, ("x", c))
def dma_w_h(e, j):
    for m in range(2):
        dma(e, S_WA if m == 0 else S_WB, V_WG, WBASE + (j % NW) * WSLOT + m * 8192, S_LW, j * 32 * 3584, ("w", j))
def dma_d(e, c, part=None):
    for m in range(2):
        for i in range(2):
            if part is not None and m != part: continue
            dma(e, S_WA if m == 0 else S_WB, V_WG + i, WBASE + (c % 3) * 32768 + m * 16384 + i * 1024, S_LW, c * 128, ("w", c))

def frag_reads(e, is_h, kap):
    p = kap & 1
    base = FR + 16 * p
    c = kap >> 2; kk4 = kap & 3
    for nb in range(2):
        e("ds_read_b128 %s, v%d offset:%d" % (vr(base + 4 * nb, 4), V_XA + kk4, (c % NX) * XSLOT + nb * 4096))
    if is_h:
        j = kap >> 1; kk = kap & 1
        slot = (j % NW) * WSLOT
        va = V_WA + (1 if slot >= 0x10000 else 0)
        so = slot & 0xffff
        for m in range(2):
            for ip in range(2):
                e("ds_read_b64_tr_b16 %s, v%d offset:%d" % (vr(base + 8 + 4 * m + 2 * ip, 2), va, so + m * 8192 + (16 * kk + 4 * ip) * 256))
        return 6
    else:
        slot = (c % 3) * 32768
        va = V_WA + kk4 + (4 if slot >= 0x10000 else 0)
        so = slot & 0xffff
        for m in range(2):
            e("ds_read_b128 %s, v%d offset:%d" % (vr(base + 8 + 4 * m, 4), va, so + m * 16384))
        return 4

def mfma(e, d, a, b, c=None):
    cs = vr(d, 16) if c is None else c
    e("v_mfma_f32_32x32x16_bf16 %s, %s, %s, %s" % (vr(d, 16), vr(a, 4), vr(b, 4), cs))

def gate_issue(e, cfg):
    e("s_mul_i32 s44, s43, 896")
    e("v_lshlrev_b32 v46, 4, v%d" % V_LANE)
    e("v_add_u32 v47, s44, v46")
    e("v_cmp_gt_u32 vcc, 56, v%d" % V_LANE)
    e("v_mov_b32 v45, 0x7fffffff")
    e("s_nop 0")
    e("v_cndmask_b32 v47, v45, v47, vcc")
    e("buffer_load_dwordx4 v[48:51], v47, s[%d:%d], 0 offen" % (S_X, S_X + 3))
    e.vm_issue("gate")
    e("buffer_load_dwordx4 v[52:55], v46, s[%d:%d], 0 offen" % (S_GW, S_GW + 3))
    e.vm_issue("gate")

def gate_finish(e, cfg):
    e.vm_wait(["gate"])
    e("v_mov_b32 v56, 0")
    for i in range(4):
        e("v_dot2_f32_bf16 v56, v%d, v%d, v56" % (48 + i, 52 + i))
    e("s_nop 2")
    for sh in ("row_shr:1", "row_shr:2", "row_shr:4", "row_shr:8"):
        e("v_add_f32_dpp v56, v56, v56 %s row_mask:0xf bank_mask:0xf bound_ctrl:0" % sh)
        e("s_nop 1")
    e("v_add_f32_dpp v56, v56, v56 row_bcast:15 row_mask:0xa bank_mask:0xf")
    e("s_nop 1")
    e("v_add_f32_dpp v56, v56, v56 row_bcast:31 row_mask:0xc bank_mask:0xf")
    e("s_nop 1")
    e("v_mul_f32 v56, 0x%08x, v56" % f2u(-LOG2E))
    e("v_exp_f32 v56, v56")
    e("s_nop 0")
    e("v_add_f32 v56, 1.0, v56")
    e("v_rcp_f32 v56, v56")
    e("s_lshl_b32 s44, s76, 2")
    e("s_add_u32 s44, s44, 0x%x" % GBUF)
    e("v_mov_b32 v57, s44")
    e("v_cmp_eq_u32 vcc, 63, v%d" % V_LANE)
    e("v_mov_b32 v45, 0x7fffffff")
    e("s_nop 0")
    e("v_cndmask_b32 v57, v45, v57, vcc")
    e("buffer_store_dword v56, v57, s[%d:%d], 0 offen%s" % (S_WS, S_WS + 3, " sc1" if cfg.fused else ""))
    e.vm_issue("gst")

import struct
def f2u(f): return struct.unpack("<I", struct.pack("<f", f))[0]

def phase1_body(e, cfg, is_h):
    tagp = "h" if is_h else "d"
    sc = " sc1" if cfg.fused else ""
    phase1_common_addr(e, is_h)
    e("s_waitcnt lgkmcnt(0)")
    srd(e, S_X, 44, 1835008)
    if is_h:
        srd(e, S_WA, 52, 1605632); srd(e, S_WB, 54, 1605632)
    else:
        srd(e, S_WA, 48, 401408); srd(e, S_WB, 50, 401408)
    srd(e, S_WS, 74, WS_BYTES)
    srd(e, S_GW, 58, 896)
    srd(e, S_OUT, 46, 1835008)
    srd(e, S_WD, 56, 1605632)
    srd(e, S_DBG, 72, 256)
    stamp(e, cfg, 0)
    if is_h:
        e("s_lshl_b32 s41, s%d, 3" % S_FB)
        e("s_add_u32 s41, s41, s%d" % S_WAVE)
        e("s_mov_b32 s77, s%d" % S_R)
    else:
        e("s_lshl_b32 s41, s%d, 3" % S_EH)
        e("s_add_u32 s41, s41, s%d" % S_WAVE)
        e("s_add_u32 s41, s41, 112")
        e("s_mov_b32 s77, s%d" % S_QG)
    e("s_lshl_b32 s76, s77, 7")
    e("s_add_u32 s76, s76, s41")
    e("s_lshr_b32 s43, s41, 6")
    e("s_lshl_b32 s78, s77, 1")
    e("s_add_u32 s43, s43, s78")
    e("s_and_b32 s41, s41, 63")
    e("s_lshl_b32 s41, s41, 5")
    e("s_add_u32 s43, s43, s41")
    gate_issue(e, cfg)
    if is_h:
        dma_x(e, 0); dma_w_h(e, 0); dma_w_h(e, 1); dma_x(e, 1); dma_w_h(e, 2); dma_w_h(e, 3)
        dma_x(e, 2); dma_w_h(e, 4); dma_w_h(e, 5); dma_x(e, 3)
    else:
        dma_x(e, 0); dma_d(e, 0); dma_x(e, 1); dma_d(e, 1); dma_x(e, 2); dma_d(e, 2); dma_x(e, 3)
    for i in range(64):
        e("v_mov_b32 v%d, 0" % (ACC + i))
    gate_finish(e, cfg)
    def need(j):
        t = []
        for jj in (j, j + 1):
            if jj <= 13:
                t.append(("x", jj >> 1))
                t.append(("w", jj if is_h else jj >> 1))
        return t
    e.vm_wait(need(0))
    e("s_barrier")
    stamp(e, cfg, 1)
    nrd = frag_reads(e, is_h, 0)
    for j in range(14):
        pend = []
        if j >= 1:
            if is_h:
                if j + 5 <= 13: pend.append(lambda j=j: dma_w_h(e, j + 5))
                if j % 2 == 0 and j // 2 + 3 <= 6: pend.append(lambda j=j: dma_x(e, j // 2 + 3))
            else:
                if j % 2 == 0:
                    c = j // 2
                    if c + 2 <= 6: pend.append(lambda c=c: dma_d(e, c + 2, 0)); pend.append(lambda c=c: dma_d(e, c + 2, 1))
                    if c + 3 <= 6: pend.append(lambda c=c: dma_x(e, c + 3))
        for kk in range(2):
            kap = 2 * j + kk
            if kap + 1 < 28:
                nrd = frag_reads(e, is_h, kap + 1)
                e("s_waitcnt lgkmcnt(%d)" % nrd)
            else:
                e("s_waitcnt lgkmcnt(0)")
            base = FR + 16 * (kap & 1)
            X0, X1, Wa, Wb = base, base + 4, base + 8, base + 12
            seq = []
            if is_h:
                seq = [(accA(0), Wa, X0), (accB(0), Wb, X0), (accA(1), Wa, X1), (accB(1), Wb, X1)]
            else:
                seq = [(accA(0), X0, Wa), (accB(0), X0, Wb), (accA(1), X1, Wa), (accB(1), X1, Wb)]
            for n, (d, a, b) in enumerate(seq):
                mfma(e, d, a, b)
                if pend and n < 3:
                    pend.pop(0)()
        assert not pend
        if j < 13:
            e.vm_wait(need(j + 1))
            e("s_barrier")
    stamp(e, cfg, 2)
    e("s_nop 7"); e("s_nop 7")
    if is_h:
        epilogue_h(e, cfg)
    else:
        epilogue_d(e, cfg)
    stamp(e, cfg, 3)

def epilogue_h(e, cfg):
    sc = " sc1" if cfg.fused else ""
    e("s_lshl_b32 s41, s%d, 1" % S_R)
    e("s_add_u32 s41, s41, s%d" % S_WT)
    e("s_mul_i32 s41, s41, 112")
    e("s_lshl_b32 s42, s%d, 2" % S_FB)
    e("s_add_u32 s42, s42, s%d" % S_WF)
    e("s_lshl_b32 s42, s42, 1")
    e("s_add_u32 s41, s41, s42")
    e("s_lshl_b32 s41, s41, 11")
    e("v_lshlrev_b32 v26, 4, v%d" % V_LANE)
    e("v_add_u32 v26, s41, v26")
    e("s_mov_b32 s42, 0x%08x" % f2u(-LOG2E))
    T = 28
    for nb in range(2):
        for hf in range(2):
            outb = 128 + 4 * (2 * nb + hf)
            regs = [8 * hf + q for q in range(8)]
            for q in regs:
                e("v_mul_f32 v%d, s42, v%d" % (accA(nb) + q, accA(nb) + q))
            for q in regs:
                e("v_exp_f32 v%d, v%d" % (accA(nb) + q, accA(nb) + q))
            for q in regs:
                e("v_add_f32 v%d, 1.0, v%d" % (accA(nb) + q, accA(nb) + q))
            for q in regs:
                e("v_rcp_f32 v%d, v%d" % (accA(nb) + q, accA(nb) + q))
            for q in regs:
                e("v_mul_f32 v%d, v%d, v%d" % (accA(nb) + q, accA(nb) + q, accB(nb) + q))
            for q2 in range(4):
                e("v_cvt_pk_bf16_f32 v%d, v%d, v%d" % (outb + q2, accA(nb) + regs[2 * q2], accA(nb) + regs[2 * q2 + 1]))
            e("buffer_store_dwordx4 %s, v26, s[%d:%d], 0 offen offset:%d%s" % (vr(outb, 4), S_WS, S_WS + 3, hf * 2048 + nb * 1024, sc))
            e.vm_issue("hst")

def epilogue_d(e, cfg):
    sc = " sc1" if cfg.fused else ""
    L = V_LANE
    def ZR(sb, hf): return 128 + 16 * sb + 4 * hf
    def ZI(sb, hf): return 128 + 16 * sb + 8 + 4 * hf
    def CF(hf): return 160 + 4 * hf
    def SF(hf): return 168 + 4 * hf
    def NF(hf): return 176 + 4 * hf
    e("v_and_b32 v26, 31, v%d" % L)
    e("v_lshrrev_b32 v27, 5, v%d" % L)
    e("v_lshlrev_b32 v27, 2, v27")
    e("s_mov_b32 s41, 0x%08x" % f2u(1.0 / 32))
    for hf in range(2):
        for pr in range(4):
            for u in range(2):
                idx = 2 * pr + u
                s1c = 16 * hf + 8 * (idx >> 2) + (idx & 3)
                e("v_add_u32 v28, %d, v27" % s1c)
                e("v_mul_u32_u24 v28, v28, v26")
                e("v_and_b32 v28, 31, v28")
                e("v_cvt_f32_u32 v28, v28")
                e("v_mul_f32 v28, s41, v28")
                e("v_cos_f32 v%d, v28" % (30 + u))
                e("v_sin_f32 v%d, v28" % (32 + u))
            e("s_nop 0")
            e("v_cvt_pk_bf16_f32 v%d, v30, v31" % (CF(hf) + pr))
            e("v_cvt_pk_bf16_f32 v%d, v32, v33" % (SF(hf) + pr))
            e("v_xor_b32 v%d, 0x80008000, v%d" % (NF(hf) + pr, SF(hf) + pr))
    for sb in range(2):
        for hf in range(2):
            for pr in range(4):
                q = 8 * hf + 2 * pr
                e("v_cvt_pk_bf16_f32 v%d, v%d, v%d" % (ZR(sb, hf) + pr, accA(sb) + q, accA(sb) + q + 1))
                e("v_cvt_pk_bf16_f32 v%d, v%d, v%d" % (ZI(sb, hf) + pr, accB(sb) + q, accB(sb) + q + 1))
    e("s_nop 1")
    for sb in range(2):
        mfma(e, accA(sb), CF(0), ZR(sb, 0), "0")
        mfma(e, accB(sb), CF(0), ZI(sb, 0), "0")
        mfma(e, accA(sb), CF(1), ZR(sb, 1))
        mfma(e, accB(sb), CF(1), ZI(sb, 1))
        mfma(e, accA(sb), SF(0), ZI(sb, 0))
        mfma(e, accB(sb), NF(0), ZR(sb, 0))
        mfma(e, accA(sb), SF(1), ZI(sb, 1))
        mfma(e, accB(sb), NF(1), ZR(sb, 1))
    def CS(sb, q): return 184 + 32 * sb + q
    def SN(sb, q): return 184 + 32 * sb + 16 + q
    e("s_lshl_b32 s41, s%d, 2" % S_QG)
    e("s_lshl_b32 s42, s%d, 1" % S_WT)
    e("s_add_u32 s41, s41, s42")
    e("s_mov_b32 s42, 0x%08x" % f2u(1.0 / 2048))
    for sb in range(2):
        if sb == 1:
            e("s_add_u32 s41, s41, 1")
        for q in range(16):
            i, jj = q >> 2, q & 3
            e("v_add_u32 v28, %d, v27" % (8 * i + jj))
            e("v_mul_u32_u24 v28, s41, v28")
            e("v_cvt_f32_u32 v28, v28")
            e("v_mul_f32 v28, s42, v28")
            e("v_cos_f32 v%d, v28" % CS(sb, q))
            e("v_sin_f32 v%d, v28" % SN(sb, q))
    e("s_nop 7"); e("s_nop 7")
    e("s_lshl_b32 s41, s%d, 1" % S_QG)
    e("s_add_u32 s41, s41, s%d" % S_WT)
    e("s_lshl_b32 s41, s41, 8")
    e("s_lshl_b32 s42, s%d, 7" % S_EH)
    e("s_add_u32 s41, s41, s42")
    e("s_lshl_b32 s42, s%d, 5" % S_WF)
    e("s_add_u32 s41, s41, s42")
    e("s_lshl_b32 s41, s41, 3")
    e("s_add_u32 s41, s41, 0x%x" % UBUF)
    e("v_lshlrev_b32 v29, 3, v26")
    e("v_lshlrev_b32 v30, 16, v27")
    e("v_add3_u32 v29, v29, v30, s41")
    for q in range(16):
        i, jj = q >> 2, q & 3
        pk = 128 + 2 * (q % 8)
        for sb in range(2):
            ur, ui = accA(sb) + q, accB(sb) + q
            e("v_mul_f32 v36, v%d, v%d" % (ur, CS(sb, q)))
            e("v_mul_f32 v37, v%d, v%d" % (ui, CS(sb, q)))
            e("v_fma_f32 v36, v%d, v%d, v36" % (ui, SN(sb, q)))
            e("v_fma_f32 v37, -v%d, v%d, v37" % (ur, SN(sb, q)))
            e("v_cvt_pk_bf16_f32 v%d, v36, v37" % (pk + sb))
        e("s_mov_b32 s%d, 0x%x" % (S_OFF, (8 * i + jj) * 65536))
        e("buffer_store_dwordx2 %s, v29, s[%d:%d], s%d offen%s" % (vr(pk, 2), S_WS, S_WS + 3, S_OFF, sc))
        e.vm_issue("ust")

def entry_common(e):
    e("v_and_b32 v%d, 63, v0" % V_LANE)
    e("v_lshrrev_b32 v2, 6, v0")
    e("s_nop 0")
    e("v_readfirstlane_b32 s%d, v2" % S_WAVE)
    e("s_nop 3")

def kernel1(e, cfg):
    e.raw(".text"); e.raw(".globl k1_kernel"); e.raw(".p2align 8"); e.raw(".type k1_kernel,@function"); e.label("k1_kernel")
    e("s_cmp_ge_u32 s2, 256")
    e("s_cbranch_scc1 K1_END")
    kernarg_loads(e, None)
    entry_common(e)
    e("s_and_b32 s%d, s%d, 3" % (S_WF, S_WAVE))
    e("s_lshr_b32 s%d, s%d, 2" % (S_WT, S_WAVE))
    e("s_and_b32 s41, s2, 7")
    e("s_lshr_b32 s42, s2, 3")
    e("s_cmp_ge_u32 s42, 28")
    e("s_cbranch_scc1 K1_DFT")
    e("s_mul_i32 s43, s42, 37")
    e("s_lshr_b32 s43, s43, 8")
    e("s_mul_i32 s76, s43, 7")
    e("s_sub_u32 s76, s42, s76")
    e("s_lshr_b32 s77, s41, 1")
    e("s_lshl_b32 s77, s77, 2")
    e("s_add_u32 s%d, s77, s43" % S_R)
    e("s_and_b32 s77, s41, 1")
    e("s_mul_i32 s77, s77, 7")
    e("s_add_u32 s%d, s77, s76" % S_FB)
    sv = list(e.vm);
    phase1_body(e, cfg, True)
    stamp_store(e, cfg, 4, 0)
    e("s_endpgm")
    e.vm = []
    e.label("K1_DFT")
    e("s_sub_u32 s42, s42, 28")
    e("s_and_b32 s%d, s41, 1" % S_EH)
    e("s_lshr_b32 s77, s41, 1")
    e("s_lshl_b32 s77, s77, 2")
    e("s_add_u32 s%d, s77, s42" % S_QG)
    phase1_body(e, cfg, False)
    stamp_store(e, cfg, 4, 0)
    e.label("K1_END")
    e("s_endpgm")

P2_ACC = 64
P2_H = 96
P2_A = 208
P2_U = 224
P2_T = 240
SLICE = 40960
def phase2_body(e, cfg):
    sc = " sc1" if cfg.fused else ""
    L = V_LANE
    e("s_and_b32 s60, s%d, 3" % S_WAVE)
    e("s_lshr_b32 s61, s%d, 2" % S_WAVE)
    KSL, NB = 60, 61
    e("v_lshrrev_b32 v2, 3, v%d" % L)
    e("v_bfe_u32 v3, v%d, 4, 1" % L)
    e("v_lshlrev_b32 v3, 2, v3")
    e("v_and_b32 v4, 7, v%d" % L)
    e("v_xor_b32 v3, v3, v4")
    e("v_lshlrev_b32 v3, 4, v3")
    e("s_mul_i32 s41, s%d, 448" % KSL)
    e("s_lshl_b32 s42, s%d, 3" % NB)
    e("s_add_u32 s41, s41, s42")
    e("v_add_u32 v2, s41, v2")
    e("s_movk_i32 s42, 896")
    e("v_mul_lo_u32 v2, v2, s42")
    e("s_lshl_b32 s41, s%d, 7" % S_C)
    e("v_add3_u32 v10, v2, v3, s41")
    e("s_mul_i32 s62, s%d, %d" % (KSL, SLICE))
    e("s_lshl_b32 s41, s%d, 10" % NB)
    e("s_add_u32 s62, s62, s41")
    def dma_wd(kk, pos):
        dma(e, S_WD, 10, pos * 2048, 62, kk * 16 * 896, ("wd", kk))
    e("v_and_b32 v2, 15, v%d" % L)
    e("v_lshrrev_b32 v3, 2, v2")
    e("v_lshrrev_b32 v4, 5, v%d" % L)
    e("v_lshlrev_b32 v5, 2, v4")
    e("v_add_u32 v5, v5, v3")
    e("v_lshlrev_b32 v5, 7, v5")
    e("v_bfe_u32 v6, v2, 3, 1")
    e("v_lshlrev_b32 v6, 6, v6")
    e("v_bfe_u32 v7, v%d, 4, 1" % L)
    e("v_lshlrev_b32 v7, 5, v7")
    e("v_and_b32 v8, 3, v2")
    e("v_lshlrev_b32 v8, 3, v8")
    e("v_add3_u32 v5, v5, v6, v7")
    e("v_add_u32 v5, v5, v8")
    e("s_mul_i32 s41, s%d, %d" % (KSL, SLICE))
    e("v_add_u32 v11, s41, v5")
    e("v_xor_b32 v12, 64, v11")
    e("s_mul_i32 s41, s%d, 112" % S_T1)
    e("s_mul_i32 s42, s%d, 28" % KSL)
    e("s_add_u32 s41, s41, s42")
    e("s_lshl_b32 s41, s41, 1")
    e("s_add_u32 s41, s41, s%d" % NB)
    e("s_lshl_b32 s41, s41, 10")
    e("v_lshlrev_b32 v13, 4, v%d" % L)
    e("v_add_u32 v13, s41, v13")
    def load_h(kk):
        e("s_mov_b32 s%d, 0x%x" % (S_OFF, kk * 2048))
        e("buffer_load_dwordx4 %s, v13, s[%d:%d], s%d offen%s" % (vr(P2_H + 4 * kk, 4), S_WS, S_WS + 3, S_OFF, sc))
        e.vm_issue(("h", kk))
    for kk in range(10): dma_wd(kk, kk)
    return dict(KSL=KSL, NB=NB, dma_wd=dma_wd, load_h=load_h, sc=sc)

def phase2_main(e, cfg, P):
    KSL, NB, dma_wd, load_h, sc = P["KSL"], P["NB"], P["dma_wd"], P["load_h"], P["sc"]
    L = V_LANE
    e("v_and_b32 v14, 31, v%d" % L)
    e("s_lshl_b32 s41, s%d, 6" % S_T1)
    e("s_lshl_b32 s42, s%d, 5" % NB)
    e("s_add_u32 s41, s41, s42")
    e("v_add_u32 v2, s41, v14")
    e("v_lshlrev_b32 v2, 2, v2")
    e("v_add_u32 v2, 0x%x, v2" % GBUF)
    e("buffer_load_dword v15, v2, s[%d:%d], 0 offen%s" % (S_WS, S_WS + 3, sc))
    e.vm_issue("g")
    for kk in range(10): load_h(kk)
    for kk in range(10, 20): dma_wd(kk, kk)
    for kk in range(10, 28): load_h(kk)
    e("s_cmp_ge_u32 s%d, 4" % S_C)
    e("s_cselect_b32 s63, 1, 0")
    e("s_sub_u32 s64, 32, s%d" % S_T1)
    e("s_and_b32 s64, s64, 31")
    e("s_cmp_eq_u32 s63, 1")
    e("s_cselect_b32 s64, s64, s%d" % S_T1)
    e("v_lshrrev_b32 v4, 5, v%d" % L)
    e("s_lshl_b32 s41, s%d, 6" % S_C)
    for mb in range(2):
        e("v_add_u32 v2, s41, v14")
        if mb: e("v_add_u32 v2, 32, v2")
        e("v_sub_u32 v3, 448, v2")
        e("s_cmp_eq_u32 s63, 1")
        e("s_cselect_b64 vcc, -1, 0")
        e("s_nop 1")
        e("v_cndmask_b32 v2, v2, v3, vcc")
        e("v_lshlrev_b32 v2, 3, v2")
        e("v_lshlrev_b32 v3, 12, v4")
        e("v_add_u32 v%d, v2, v3" % (16 + mb))
    e("s_lshl_b32 s41, s64, 5")
    e("s_lshl_b32 s42, s%d, 3" % KSL)
    e("s_add_u32 s41, s41, s42")
    e("s_lshl_b32 s41, s41, 11")
    e("s_add_u32 s65, s41, 0x%x" % UBUF)
    for u in range(2):
        if u == 1: e("s_add_u32 s65, s65, %d" % (4 * 2048))
        for mb in range(2):
            for hq in range(2):
                e("buffer_load_dwordx2 %s, v%d, s[%d:%d], s65 offen offset:%d%s" % (vr(P2_U + 8 * u + 4 * mb + 2 * hq, 2), 16 + mb, S_WS, S_WS + 3, hq * 2048, sc))
                e.vm_issue("u")
    for i in range(32):
        e("v_mov_b32 v%d, 0" % (P2_ACC + i))
    def reads(kk, pos):
        b = P2_A + 8 * (kk & 1)
        for mb in range(2):
            for ip in range(2):
                e("ds_read_b64_tr_b16 %s, v%d offset:%d" % (vr(b + 4 * mb + 2 * ip, 2), 11 + mb, pos * 2048 + ip * 1024))
    def pos_of(kk): return kk if kk < 20 else kk - 20
    e.vm_wait([("wd", k) for k in range(10)])
    e("s_barrier")
    stamp(e, cfg, 1)
    reads(0, 0)
    for kk in range(28):
        if kk == 10 - 1:
            pass
        nxt = kk + 1
        boundary = nxt in (10, 20)
        if nxt < 28 and not boundary:
            reads(nxt, pos_of(nxt))
            e("s_waitcnt lgkmcnt(4)")
        else:
            e("s_waitcnt lgkmcnt(0)")
        e.vm_wait([("h", kk)])
        b = P2_A + 8 * (kk & 1)
        for mb in range(2):
            mfma(e, P2_ACC + 16 * mb, b + 4 * mb, P2_H + 4 * kk)
        if boundary:
            if nxt == 10:
                e.vm_wait([("wd", k) for k in range(10, 20)])
                e("s_barrier")
                for k in range(20, 28): dma_wd(k, k - 20)
            else:
                e.vm_wait([("wd", k) for k in range(20, 28)])
                e("s_barrier")
            reads(nxt, pos_of(nxt))
    stamp(e, cfg, 2)
    e.vm_wait(["g", "u"])
    e("s_cmp_lg_u32 s%d, 0" % S_T1)
    e("s_cselect_b32 s41, s63, 0")
    e("s_lshl_b32 s42, s%d, 5" % NB)
    e("s_add_u32 s41, s41, s42")
    e("v_add_u32 v2, s41, v14")
    e("v_lshrrev_b32 v4, 5, v%d" % L)
    e("v_lshlrev_b32 v4, 2, v4")
    e("s_lshl_b32 s41, s63, 31")
    e("v_xor_b32 v18, s41, v15")
    e("s_mov_b32 s42, 0x%08x" % f2u(1.0 / 64))
    e("s_lshl_b32 s43, s%d, 4" % KSL)
    for u in range(2):
        for q in range(4):
            e("v_add_u32 v3, s43, v4")
            e("v_add_u32 v3, %d, v3" % (8 * u + q))
            e("v_mul_u32_u24 v3, v3, v2")
            e("v_and_b32 v3, 63, v3")
            e("v_cvt_f32_u32 v3, v3")
            e("v_mul_f32 v3, s42, v3")
            e("v_cos_f32 v5, v3")
            e("v_sin_f32 v6, v3")
            e("s_nop 0")
            e("v_mul_f32 v5, v5, v15")
            e("v_mul_f32 v6, v6, v18")
            e("v_cvt_pk_bf16_f32 v%d, v5, v6" % (P2_T + 4 * u + q))
    e("v_sub_f32 v19, 1.0, v15")
    e("s_nop 7"); e("s_nop 3")
    for i in range(32):
        e("v_mul_f32 v%d, v19, v%d" % (P2_ACC + i, P2_ACC + i))
    e("s_nop 1")
    for u in range(2):
        for mb in range(2):
            mfma(e, P2_ACC + 16 * mb, P2_U + 8 * u + 4 * mb, P2_T + 4 * u)
    e("s_barrier")
    e("v_lshlrev_b32 v2, 4, v%d" % L)
    e("s_lshl_b32 s41, s%d, 13" % S_WAVE)
    e("v_add_u32 v3, s41, v2")
    e("s_nop 7"); e("s_nop 3")
    for qd in range(4):
        for hf in range(2):
            e("ds_write_b128 v3, %s offset:%d" % (vr(P2_ACC + 8 * qd + 4 * hf, 4), qd * 2048 + hf * 1024))
    e("s_waitcnt lgkmcnt(0)")
    e("s_barrier")
    e("s_lshl_b32 s41, s%d, 15" % NB)
    e("s_lshl_b32 s42, s%d, 11" % KSL)
    e("s_add_u32 s41, s41, s42")
    e("v_add_u32 v3, s41, v2")
    for k in range(4):
        for hf in range(2):
            e("ds_read_b128 %s, v3 offset:%d" % (vr(96 + 8 * k + 4 * hf, 4), k * 8192 + hf * 1024))
    e("s_waitcnt lgkmcnt(0)")
    for q in range(8):
        e("v_add_f32 v%d, v%d, v%d" % (96 + q, 96 + q, 104 + q))
        e("v_add_f32 v%d, v%d, v%d" % (112 + q, 112 + q, 120 + q))
    for q in range(8):
        e("v_add_f32 v%d, v%d, v%d" % (96 + q, 96 + q, 112 + q))
    for q in range(4):
        e("v_cvt_pk_bf16_f32 v%d, v%d, v%d" % (128 + q, 96 + 2 * q, 96 + 2 * q + 1))
    e("s_nop 1")
    e("v_permlane32_swap_b32 v128, v130")
    e("v_permlane32_swap_b32 v129, v131")
    e("s_lshl_b32 s41, s%d, 5" % NB)
    e("v_add_u32 v2, s41, v14")
    e("v_lshlrev_b32 v2, 5, v2")
    e("v_add_u32 v2, s%d, v2" % S_T1)
    e("s_movk_i32 s42, 896")
    e("v_mul_lo_u32 v2, v2, s42")
    e("s_lshl_b32 s41, s%d, 7" % S_C)
    e("s_lshl_b32 s42, s%d, 5" % KSL)
    e("s_add_u32 s41, s41, s42")
    e("v_lshrrev_b32 v4, 5, v%d" % L)
    e("v_lshlrev_b32 v4, 4, v4")
    e("v_add3_u32 v2, v2, v4, s41")
    e("buffer_store_dwordx4 v[128:131], v2, s[%d:%d], 0 offen" % (S_OUT, S_OUT + 3))
    stamp(e, cfg, 3)

def kernel2(e, cfg):
    e.raw(".text"); e.raw(".globl k2_kernel"); e.raw(".p2align 8"); e.raw(".type k2_kernel,@function"); e.label("k2_kernel")
    e.vm = []
    e("s_cmp_ge_u32 s2, 256")
    e("s_cbranch_scc1 K2_END")
    e("s_lshr_b32 s42, s2, 3")
    e("s_cmp_ge_u32 s42, 28")
    e("s_cbranch_scc1 K2_END")
    kernarg_loads(e, None)
    entry_common(e)
    e("s_and_b32 s41, s2, 7")
    e("s_mul_i32 s43, s42, 37")
    e("s_lshr_b32 s43, s43, 8")
    e("s_mul_i32 s76, s43, 7")
    e("s_sub_u32 s%d, s42, s76" % S_C)
    e("s_lshl_b32 s41, s41, 2")
    e("s_add_u32 s%d, s41, s43" % S_T1)
    e("s_waitcnt lgkmcnt(0)")
    srd(e, S_WS, 74, WS_BYTES)
    srd(e, S_OUT, 46, 1835008)
    srd(e, S_WD, 56, 1605632)
    stamp(e, cfg, 0)
    P = phase2_body(e, cfg)
    phase2_main(e, cfg, P)
    stamp_store(e, cfg, 4, 0x40000)
    e.label("K2_END")
    e("s_endpgm")

def descriptor(name, lds=0):
    return """.section .rodata,"a"
.p2align 6
.amdhsa_kernel %s
  .amdhsa_next_free_vgpr 256
  .amdhsa_next_free_sgpr 102
  .amdhsa_accum_offset 256
  .amdhsa_group_segment_fixed_size 0
  .amdhsa_kernarg_size 104
  .amdhsa_user_sgpr_count 2
  .amdhsa_user_sgpr_kernarg_segment_ptr 1
  .amdhsa_system_sgpr_workgroup_id_x 1
.end_amdhsa_kernel
""" % name

def main():
    cfg = Cfg()
    out = sys.argv[1]
    for a in sys.argv[2:]:
        if a == "diag": cfg.diag = True
        if a == "fused": cfg.fused = True
    e = Em()
    hdr = "; generated by gen.py\n"
    hdr += "; @launch kernel=k1_kernel grid=(256,1,1) block=(512,1,1) lds=163840\n"
    hdr += "; @launch kernel=k2_kernel grid=(256,1,1) block=(512,1,1) lds=163840\n"
    hdr += '.amdgcn_target "amdgcn-amd-amdhsa--gfx950"\n'
    kernel1(e, cfg)
    kernel2(e, cfg)
    txt = hdr + e.text() + descriptor("k1_kernel") + descriptor("k2_kernel")
    open(out, "w").write(txt)
if __name__ == "__main__":
    main()
```

```python
import sys, math

NAME = "gated_mix__spectral_fnet__glu_gated_glu__prompt"

class Em:
    def __init__(self):
        self.lines = []
        self.vm = []
        self.nlab = 0
    def __call__(self, s):
        self.lines.append("    " + s)
    def raw(self, s):
        self.lines.append(s)
    def label(self, s):
        self.lines.append(s + ":")
    def comment(self, s):
        self.lines.append("    ; " + s)
    def vm_issue(self, tag):
        self.vm.append(tag)
    def vm_wait(self, tags):
        last = -1
        for i, t in enumerate(self.vm):
            if t in tags: last = i
        if last < 0:
            return
        n = len(self.vm) - 1 - last
        assert n <= 63, n
        self("s_waitcnt vmcnt(%d)" % n)
        self.vm = self.vm[last + 1:]
    def vm_wait_all(self):
        self("s_waitcnt vmcnt(0)")
        self.vm = []
    def text(self):
        return "\n".join(self.lines) + "\n"

def vr(a, n=1):
    return "v%d" % a if n == 1 else "v[%d:%d]" % (a, a + n - 1)
def sr(a, n=1):
    return "s%d" % a if n == 1 else "s[%d:%d]" % (a, a + n - 1)

HBUF = 0
UBUF = 0x700000
GBUF = 0x900000
DIAG = 0xA00000
WS_BYTES = 0x1000000

LOG2E = 1.4426950408889634

S_WG = 2
S_X = 8; S_WA = 12; S_WB = 16; S_WS = 20; S_GW = 24; S_OUT = 28; S_WD = 32; S_DBG = 36
S_WAVE = 40
S_T0 = 41
S_R = 60; S_FB = 61; S_QG = 62; S_EH = 63
S_WF = 64; S_WT = 65
S_LX = 66
S_LW = 67
S_OFF = 68
S_OFF2 = 69
S_T1 = 70; S_C = 71
S_STAMP = 80

class Cfg:
    fused = False
    diag = False
    x = set()

def kernarg_loads(e, need):
    e("s_load_dwordx2 s[44:45], s[0:1], 0")
    e("s_load_dwordx4 s[48:51], s[0:1], 24")
    e("s_load_dwordx4 s[52:55], s[0:1], 48")
    e("s_load_dwordx4 s[56:59], s[0:1], 64")
    e("s_load_dwordx2 s[46:47], s[0:1], 80")
    e("s_load_dwordx4 s[72:75], s[0:1], 88")

def srd(e, dst, lo, nbytes):
    e("s_mov_b32 s%d, s%d" % (dst, lo))
    e("s_and_b32 s%d, s%d, 0xffff" % (dst + 1, lo + 1))
    e("s_mov_b32 s%d, 0x%x" % (dst + 2, nbytes))
    e("s_mov_b32 s%d, 0x20000" % (dst + 3))

def stamp(e, cfg, k):
    if cfg.diag:
        e("s_memrealtime s[%d:%d]" % (S_STAMP + 2 * k, S_STAMP + 2 * k + 1))
        e("s_memtime s[%d:%d]" % (S_STAMP + 8 + 2 * k, S_STAMP + 8 + 2 * k + 1))
        e("s_waitcnt lgkmcnt(0)")

def stamp_dbg(e, cfg, nst, wg, slot, back):
    lab = "DBGSKIP%d" % e.nlab; e.nlab += 1
    e("s_cmp_lg_u32 s2, %d" % wg)
    e("s_cbranch_scc1 %s" % lab)
    e("s_cmp_lg_u32 s%d, 0" % S_WAVE)
    e("s_cbranch_scc1 %s" % lab)
    e("s_sub_u32 s44, s72, %d" % back)
    e("s_subb_u32 s45, s73, 0")
    e("s_mov_b32 s46, 256")
    e("s_mov_b32 s47, 0x20000")
    e("s_and_b32 s45, s45, 0xffff")
    e("v_mov_b32 v1, %d" % (slot * 4))
    for k in range(nst):
        e("v_mov_b32 v2, s%d" % (S_STAMP + 2 * k))
        e("buffer_store_dword v2, v1, s[44:47], 0 offen offset:%d" % (4 * k))
        e("s_nop 1")
    e("s_waitcnt vmcnt(0)")
    e.label(lab)

def stamp_store(e, cfg, nst, slot_base):
    if not cfg.diag: return
    if "dbg" in cfg.x:
        if slot_base == 0:
            stamp_dbg(e, cfg, nst, 0, 0, 0); stamp_dbg(e, cfg, nst, 248, 4, 0)
        else:
            stamp_dbg(e, cfg, nst, 0, 8, 512); stamp_dbg(e, cfg, nst, 100, 12, 512)
        return
    e("s_lshl_b32 s41, s2, 3")
    e("s_add_u32 s41, s41, s%d" % S_WAVE)
    e("s_lshl_b32 s41, s41, 6")
    e("s_add_u32 s41, s41, 0x%x" % (DIAG + slot_base))
    e("v_mov_b32 v1, s41")
    for k in range(2 * nst):
        e("v_mov_b32 v2, s%d" % (S_STAMP + 2 * k))
        e("buffer_store_dword v2, v1, s[%d:%d], 0 offen offset:%d" % (S_WS, S_WS + 3, 4 * k))
        e("s_nop 1")
    e("s_waitcnt vmcnt(0)")

XSLOT = 16384; NX = 4
WBASE = 65536; NW = 6; WSLOT = 16384

V_LANE = 1
V_XA = 10
V_WA = 14
V_XG = 22
V_WG = 24
V_T = 26
ACC = 64
FR = 128

def accA(i): return ACC + 16 * i
def accB(i): return ACC + 32 + 16 * i

def phase1_common_addr(e, is_h):
    L = V_LANE
    T = V_T
    e("v_and_b32 v%d, 31, v%d" % (T, L))
    e("v_lshrrev_b32 v%d, 5, v%d" % (T + 1, L))
    e("v_lshrrev_b32 v%d, 1, v%d" % (T + 2, T))
    e("v_and_b32 v%d, 7, v%d" % (T + 2, T + 2))
    e("s_lshl_b32 s41, s%d, 6" % S_WT)
    e("v_add_u32 v%d, s41, v%d" % (T + 3, T))
    e("v_lshlrev_b32 v%d, 7, v%d" % (T + 3, T + 3))
    if not is_h:
        e("s_lshl_b32 s41, s%d, 5" % S_WF)
        e("v_add_u32 v%d, s41, v%d" % (T + 5, T))
        e("v_lshlrev_b32 v%d, 7, v%d" % (T + 5, T + 5))
        e("v_add_u32 v%d, 0x%x, v%d" % (T + 5, WBASE, T + 5))
    for k in range(4):
        e("v_add_u32 v%d, %d, v%d" % (T + 4, 2 * k, T + 1))
        e("v_xor_b32 v%d, v%d, v%d" % (T + 4, T + 4, T + 2))
        e("v_lshlrev_b32 v%d, 4, v%d" % (T + 4, T + 4))
        e("v_add_u32 v%d, v%d, v%d" % (V_XA + k, T + 3, T + 4))
        if not is_h:
            e("v_add_u32 v%d, v%d, v%d" % (V_WA + k, T + 5, T + 4))
            e("v_add_u32 v%d, 0x10000, v%d" % (V_WA + 4 + k, V_WA + k))
    if is_h:
        e("v_and_b32 v%d, 15, v%d" % (T + 4, L))
        e("v_lshrrev_b32 v%d, 2, v%d" % (T + 5, T + 4))
        e("v_lshlrev_b32 v%d, 3, v%d" % (T + 6, T + 1))
        e("v_add_u32 v%d, v%d, v%d" % (T + 6, T + 6, T + 5))
        e("v_lshlrev_b32 v%d, 8, v%d" % (T + 6, T + 6))
        e("v_xor_b32 v%d, s%d, v%d" % (T + 7, S_WF, T + 5))
        e("v_lshlrev_b32 v%d, 6, v%d" % (T + 7, T + 7))
        e("v_add_u32 v%d, v%d, v%d" % (T + 6, T + 6, T + 7))
        e("v_bfe_u32 v%d, v%d, 4, 1" % (T + 7, L))
        e("v_lshlrev_b32 v%d, 5, v%d" % (T + 7, T + 7))
        e("v_add_u32 v%d, v%d, v%d" % (T + 6, T + 6, T + 7))
        e("v_and_b32 v%d, 3, v%d" % (T + 7, T + 4))
        e("v_lshlrev_b32 v%d, 3, v%d" % (T + 7, T + 7))
        e("v_add_u32 v%d, v%d, v%d" % (T + 6, T + 6, T + 7))
        e("v_add_u32 v%d, 0x%x, v%d" % (V_WA, WBASE, T + 6))
        e("v_add_u32 v%d, 0x%x, v%d" % (V_WA + 1, WBASE + 0x10000, T + 6))
    e("v_lshrrev_b32 v%d, 3, v%d" % (T, L))
    e("s_lshl_b32 s41, s%d, 4" % S_WAVE)
    e("v_add_u32 v%d, s41, v%d" % (T, T))
    e("v_and_b32 v%d, 7, v%d" % (T + 1, L))
    e("v_lshrrev_b32 v%d, 4, v%d" % (T + 2, L))
    e("s_movk_i32 s42, 896")
    for i in range(2):
        if i == 1:
            e("v_add_u32 v%d, 8, v%d" % (T, T))
        e("v_add_u32 v%d, %d, v%d" % (T + 3, 4 * i, T + 2))
        e("v_xor_b32 v%d, v%d, v%d" % (T + 3, T + 3, T + 1))
        e("v_lshlrev_b32 v%d, 4, v%d" % (T + 3, T + 3))
        if is_h:
            e("v_lshrrev_b32 v%d, 6, v%d" % (T + 4, T))
            e("v_and_b32 v%d, 63, v%d" % (T + 5, T))
            e("v_lshlrev_b32 v%d, 5, v%d" % (T + 5, T + 5))
            e("s_lshl_b32 s41, s%d, 1" % S_R)
            e("v_add3_u32 v%d, v%d, v%d, s41" % (T + 4, T + 4, T + 5))
        else:
            e("v_and_b32 v%d, 31, v%d" % (T + 4, T))
            e("v_lshlrev_b32 v%d, 6, v%d" % (T + 4, T + 4))
            e("v_lshrrev_b32 v%d, 5, v%d" % (T + 5, T))
            e("s_lshl_b32 s41, s%d, 2" % S_QG)
            e("v_add3_u32 v%d, v%d, v%d, s41" % (T + 4, T + 4, T + 5))
        e("v_mul_lo_u32 v%d, v%d, s42" % (T + 4, T + 4))
        e("v_add_u32 v%d, v%d, v%d" % (V_XG + i, T + 4, T + 3))
        if not is_h:
            e("s_lshl_b32 s41, s%d, 7" % S_EH)
            e("v_add_u32 v%d, s41, v%d" % (T + 4, T))
            e("v_mul_lo_u32 v%d, v%d, s42" % (T + 4, T + 4))
            e("v_add_u32 v%d, v%d, v%d" % (V_WG + i, T + 4, T + 3))
    if is_h:
        e("s_lshl_b32 s41, s%d, 2" % S_WAVE)
        e("v_add_u32 v%d, s41, v%d" % (T + 3, T + 2))
        e("s_movk_i32 s42, 3584")
        e("v_mul_lo_u32 v%d, v%d, s42" % (T + 3, T + 3))
        e("v_bfe_u32 v%d, v%d, 2, 2" % (T + 4, L))
        e("v_xor_b32 v%d, v%d, v%d" % (T + 4, T + 4, T + 2))
        e("v_lshlrev_b32 v%d, 6, v%d" % (T + 4, T + 4))
        e("v_and_b32 v%d, 3, v%d" % (T + 5, L))
        e("v_lshlrev_b32 v%d, 4, v%d" % (T + 5, T + 5))
        e("v_add3_u32 v%d, v%d, v%d, v%d" % (T + 3, T + 3, T + 4, T + 5))
        e("s_lshl_b32 s41, s%d, 8" % S_FB)
        e("v_add_u32 v%d, s41, v%d" % (V_WG, T + 3))
        e("s_lshl_b32 s%d, s%d, 10" % (S_LW, S_WAVE))
    else:
        e("s_lshl_b32 s%d, s%d, 11" % (S_LW, S_WAVE))
    e("s_lshl_b32 s%d, s%d, 11" % (S_LX, S_WAVE))

def dma(e, srdreg, vaddr, ldsconst, sldswave, soff, tag, sc=""):
    e("s_add_u32 m0, s%d, 0x%x" % (sldswave, ldsconst))
    e("s_mov_b32 s%d, 0x%x" % (S_OFF, soff))
    e("buffer_load_dwordx4 v%d, s[%d:%d], s%d offen%s lds" % (vaddr, srdreg, srdreg + 3, S_OFF, sc))
    e.vm_issue(tag)

def dma_x(e, c):
    for i in range(2):
        dma(e, S_X, V_XG + i, (c % NX) * XSLOT + i * 1024, S_LX, c * 128, ("x", c))
def dma_w_h(e, j):
    for m in range(2):
        dma(e, S_WA if m == 0 else S_WB, V_WG, WBASE + (j % NW) * WSLOT + m * 8192, S_LW, j * 32 * 3584, ("w", j))
def dma_d(e, c, part=None):
    for m in range(2):
        for i in range(2):
            if part is not None and m != part: continue
            dma(e, S_WA if m == 0 else S_WB, V_WG + i, WBASE + (c % 3) * 32768 + m * 16384 + i * 1024, S_LW, c * 128, ("w", c))

def frag_reads(e, is_h, kap):
    p = kap & 1
    base = FR + 16 * p
    c = kap >> 2; kk4 = kap & 3
    for nb in range(2):
        e("ds_read_b128 %s, v%d offset:%d" % (vr(base + 4 * nb, 4), V_XA + kk4, (c % NX) * XSLOT + nb * 4096))
    if is_h:
        j = kap >> 1; kk = kap & 1
        slot = (j % NW) * WSLOT
        va = V_WA + (1 if slot >= 0x10000 else 0)
        so = slot & 0xffff
        for m in range(2):
            for ip in range(2):
                e("ds_read_b64_tr_b16 %s, v%d offset:%d" % (vr(base + 8 + 4 * m + 2 * ip, 2), va, so + m * 8192 + (16 * kk + 4 * ip) * 256))
        return 6
    else:
        slot = (c % 3) * 32768
        va = V_WA + kk4 + (4 if slot >= 0x10000 else 0)
        so = slot & 0xffff
        for m in range(2):
            e("ds_read_b128 %s, v%d offset:%d" % (vr(base + 8 + 4 * m, 4), va, so + m * 16384))
        return 4

def mfma(e, d, a, b, c=None):
    cs = vr(d, 16) if c is None else c
    e("v_mfma_f32_32x32x16_bf16 %s, %s, %s, %s" % (vr(d, 16), vr(a, 4), vr(b, 4), cs))

def gate_issue(e, cfg):
    e("s_mul_i32 s44, s43, 896")
    e("v_lshlrev_b32 v46, 4, v%d" % V_LANE)
    e("v_add_u32 v47, s44, v46")
    e("v_cmp_gt_u32 vcc, 56, v%d" % V_LANE)
    e("v_mov_b32 v45, 0x7fffffff")
    e("s_nop 0")
    e("v_cndmask_b32 v47, v45, v47, vcc")
    e("buffer_load_dwordx4 v[48:51], v47, s[%d:%d], 0 offen" % (S_X, S_X + 3))
    e.vm_issue("gate")
    e("buffer_load_dwordx4 v[52:55], v46, s[%d:%d], 0 offen" % (S_GW, S_GW + 3))
    e.vm_issue("gate")

def gate_finish(e, cfg):
    e.vm_wait(["gate"])
    e("v_mov_b32 v56, 0")
    for i in range(4):
        e("v_dot2_f32_bf16 v56, v%d, v%d, v56" % (48 + i, 52 + i))
    e("s_nop 2")
    for sh in ("row_shr:1", "row_shr:2", "row_shr:4", "row_shr:8"):
        e("v_add_f32_dpp v56, v56, v56 %s row_mask:0xf bank_mask:0xf bound_ctrl:0" % sh)
        e("s_nop 1")
    e("v_add_f32_dpp v56, v56, v56 row_bcast:15 row_mask:0xa bank_mask:0xf")
    e("s_nop 1")
    e("v_add_f32_dpp v56, v56, v56 row_bcast:31 row_mask:0xc bank_mask:0xf")
    e("s_nop 1")
    e("v_mul_f32 v56, 0x%08x, v56" % f2u(-LOG2E))
    e("v_exp_f32 v56, v56")
    e("s_nop 0")
    e("v_add_f32 v56, 1.0, v56")
    e("v_rcp_f32 v56, v56")
    e("s_lshl_b32 s44, s76, 2")
    e("s_add_u32 s44, s44, 0x%x" % GBUF)
    e("v_mov_b32 v57, s44")
    e("v_cmp_eq_u32 vcc, 63, v%d" % V_LANE)
    e("v_mov_b32 v45, 0x7fffffff")
    e("s_nop 0")
    e("v_cndmask_b32 v57, v45, v57, vcc")
    e("buffer_store_dword v56, v57, s[%d:%d], 0 offen%s" % (S_WS, S_WS + 3, " sc1" if cfg.fused else ""))
    e.vm_issue("gst")

import struct
def f2u(f): return struct.unpack("<I", struct.pack("<f", f))[0]

def phase1_body(e, cfg, is_h):
    tagp = "h" if is_h else "d"
    sc = " sc1" if cfg.fused else ""
    phase1_common_addr(e, is_h)
    e("s_waitcnt lgkmcnt(0)")
    srd(e, S_X, 44, 1835008)
    if is_h:
        srd(e, S_WA, 52, 1605632); srd(e, S_WB, 54, 1605632)
    else:
        srd(e, S_WA, 48, 401408); srd(e, S_WB, 50, 401408)
    srd(e, S_WS, 74, WS_BYTES)
    srd(e, S_GW, 58, 896)
    srd(e, S_OUT, 46, 1835008)
    srd(e, S_WD, 56, 1605632)
    srd(e, S_DBG, 72, 256)
    stamp(e, cfg, 0)
    if is_h:
        e("s_lshl_b32 s41, s%d, 3" % S_FB)
        e("s_add_u32 s41, s41, s%d" % S_WAVE)
        e("s_mov_b32 s77, s%d" % S_R)
    else:
        e("s_lshl_b32 s41, s%d, 3" % S_EH)
        e("s_add_u32 s41, s41, s%d" % S_WAVE)
        e("s_add_u32 s41, s41, 112")
        e("s_mov_b32 s77, s%d" % S_QG)
    e("s_lshl_b32 s76, s77, 7")
    e("s_add_u32 s76, s76, s41")
    e("s_lshr_b32 s43, s41, 6")
    e("s_lshl_b32 s78, s77, 1")
    e("s_add_u32 s43, s43, s78")
    e("s_and_b32 s41, s41, 63")
    e("s_lshl_b32 s41, s41, 5")
    e("s_add_u32 s43, s43, s41")
    gate_issue(e, cfg)
    if is_h:
        dma_x(e, 0); dma_w_h(e, 0); dma_w_h(e, 1); dma_x(e, 1); dma_w_h(e, 2); dma_w_h(e, 3)
        dma_x(e, 2); dma_w_h(e, 4); dma_w_h(e, 5); dma_x(e, 3)
    else:
        dma_x(e, 0); dma_d(e, 0); dma_x(e, 1); dma_d(e, 1); dma_x(e, 2); dma_d(e, 2); dma_x(e, 3)
    for i in range(64):
        e("v_mov_b32 v%d, 0" % (ACC + i))
    gate_finish(e, cfg)
    def need(j):
        t = []
        for jj in (j, j + 1):
            if jj <= 13:
                t.append(("x", jj >> 1))
                t.append(("w", jj if is_h else jj >> 1))
        return t
    e.vm_wait(need(0))
    e("s_barrier")
    stamp(e, cfg, 1)
    nrd = frag_reads(e, is_h, 0)
    for j in range(14):
        pend = []
        if j >= 1:
            if is_h:
                if j + 5 <= 13: pend.append(lambda j=j: dma_w_h(e, j + 5))
                if j % 2 == 0 and j // 2 + 3 <= 6: pend.append(lambda j=j: dma_x(e, j // 2 + 3))
            else:
                if j % 2 == 0:
                    c = j // 2
                    if c + 2 <= 6: pend.append(lambda c=c: dma_d(e, c + 2, 0)); pend.append(lambda c=c: dma_d(e, c + 2, 1))
                    if c + 3 <= 6: pend.append(lambda c=c: dma_x(e, c + 3))
        for kk in range(2):
            kap = 2 * j + kk
            if "nolds" in cfg.x:
                pass
            elif kap + 1 < 28:
                nrd = frag_reads(e, is_h, kap + 1)
                e("s_waitcnt lgkmcnt(%d)" % nrd)
            else:
                e("s_waitcnt lgkmcnt(0)")
            base = FR + 16 * (kap & 1)
            X0, X1, Wa, Wb = base, base + 4, base + 8, base + 12
            seq = []
            if is_h:
                seq = [(accA(0), Wa, X0), (accB(0), Wb, X0), (accA(1), Wa, X1), (accB(1), Wb, X1)]
            else:
                seq = [(accA(0), X0, Wa), (accB(0), X0, Wb), (accA(1), X1, Wa), (accB(1), X1, Wb)]
            for n, (d, a, b) in enumerate(seq):
                if "nomfma" not in cfg.x: mfma(e, d, a, b)
                if pend and n < 3:
                    f = pend.pop(0)
                    if "nodma" not in cfg.x: f()
        assert not pend
        if j < 13:
            if "nodma" not in cfg.x: e.vm_wait(need(j + 1))
            if "nobar" not in cfg.x: e("s_barrier")
    stamp(e, cfg, 2)
    e("s_nop 7"); e("s_nop 7")
    if is_h:
        epilogue_h(e, cfg)
    else:
        epilogue_d(e, cfg)
    stamp(e, cfg, 3)

def epilogue_h(e, cfg):
    sc = " sc1" if cfg.fused else ""
    e("s_lshl_b32 s41, s%d, 1" % S_R)
    e("s_add_u32 s41, s41, s%d" % S_WT)
    e("s_mul_i32 s41, s41, 112")
    e("s_lshl_b32 s42, s%d, 2" % S_FB)
    e("s_add_u32 s42, s42, s%d" % S_WF)
    e("s_lshl_b32 s42, s42, 1")
    e("s_add_u32 s41, s41, s42")
    e("s_lshl_b32 s41, s41, 11")
    e("v_lshlrev_b32 v26, 4, v%d" % V_LANE)
    e("v_add_u32 v26, s41, v26")
    e("s_mov_b32 s42, 0x%08x" % f2u(-LOG2E))
    T = 28
    for nb in range(2):
        for hf in range(2):
            outb = 128 + 4 * (2 * nb + hf)
            regs = [8 * hf + q for q in range(8)]
            for q in regs:
                e("v_mul_f32 v%d, s42, v%d" % (accA(nb) + q, accA(nb) + q))
            for q in regs:
                e("v_exp_f32 v%d, v%d" % (accA(nb) + q, accA(nb) + q))
            for q in regs:
                e("v_add_f32 v%d, 1.0, v%d" % (accA(nb) + q, accA(nb) + q))
            for q in regs:
                e("v_rcp_f32 v%d, v%d" % (accA(nb) + q, accA(nb) + q))
            for q in regs:
                e("v_mul_f32 v%d, v%d, v%d" % (accA(nb) + q, accA(nb) + q, accB(nb) + q))
            for q2 in range(4):
                e("v_cvt_pk_bf16_f32 v%d, v%d, v%d" % (outb + q2, accA(nb) + regs[2 * q2], accA(nb) + regs[2 * q2 + 1]))
            e("buffer_store_dwordx4 %s, v26, s[%d:%d], 0 offen offset:%d%s" % (vr(outb, 4), S_WS, S_WS + 3, hf * 2048 + nb * 1024, sc))
            e.vm_issue("hst")

def epilogue_d(e, cfg):
    sc = " sc1" if cfg.fused else ""
    L = V_LANE
    def ZR(sb, hf): return 128 + 16 * sb + 4 * hf
    def ZI(sb, hf): return 128 + 16 * sb + 8 + 4 * hf
    def CF(hf): return 160 + 4 * hf
    def SF(hf): return 168 + 4 * hf
    def NF(hf): return 176 + 4 * hf
    e("v_and_b32 v26, 31, v%d" % L)
    e("v_lshrrev_b32 v27, 5, v%d" % L)
    e("v_lshlrev_b32 v27, 2, v27")
    e("s_mov_b32 s41, 0x%08x" % f2u(1.0 / 32))
    for hf in range(2):
        for pr in range(4):
            for u in range(2):
                idx = 2 * pr + u
                s1c = 16 * hf + 8 * (idx >> 2) + (idx & 3)
                e("v_add_u32 v28, %d, v27" % s1c)
                e("v_mul_u32_u24 v28, v28, v26")
                e("v_and_b32 v28, 31, v28")
                e("v_cvt_f32_u32 v28, v28")
                e("v_mul_f32 v28, s41, v28")
                e("v_cos_f32 v%d, v28" % (30 + u))
                e("v_sin_f32 v%d, v28" % (32 + u))
            e("s_nop 0")
            e("v_cvt_pk_bf16_f32 v%d, v30, v31" % (CF(hf) + pr))
            e("v_cvt_pk_bf16_f32 v%d, v32, v33" % (SF(hf) + pr))
            e("v_xor_b32 v%d, 0x80008000, v%d" % (NF(hf) + pr, SF(hf) + pr))
    for sb in range(2):
        for hf in range(2):
            for pr in range(4):
                q = 8 * hf + 2 * pr
                e("v_cvt_pk_bf16_f32 v%d, v%d, v%d" % (ZR(sb, hf) + pr, accA(sb) + q, accA(sb) + q + 1))
                e("v_cvt_pk_bf16_f32 v%d, v%d, v%d" % (ZI(sb, hf) + pr, accB(sb) + q, accB(sb) + q + 1))
    e("s_nop 1")
    for sb in range(2):
        mfma(e, accA(sb), CF(0), ZR(sb, 0), "0")
        mfma(e, accB(sb), CF(0), ZI(sb, 0), "0")
        mfma(e, accA(sb), CF(1), ZR(sb, 1))
        mfma(e, accB(sb), CF(1), ZI(sb, 1))
        mfma(e, accA(sb), SF(0), ZI(sb, 0))
        mfma(e, accB(sb), NF(0), ZR(sb, 0))
        mfma(e, accA(sb), SF(1), ZI(sb, 1))
        mfma(e, accB(sb), NF(1), ZR(sb, 1))
    def CS(sb, q): return 184 + 32 * sb + q
    def SN(sb, q): return 184 + 32 * sb + 16 + q
    e("s_lshl_b32 s41, s%d, 2" % S_QG)
    e("s_lshl_b32 s42, s%d, 1" % S_WT)
    e("s_add_u32 s41, s41, s42")
    e("s_mov_b32 s42, 0x%08x" % f2u(1.0 / 2048))
    for sb in range(2):
        if sb == 1:
            e("s_add_u32 s41, s41, 1")
        for q in range(16):
            i, jj = q >> 2, q & 3
            e("v_add_u32 v28, %d, v27" % (8 * i + jj))
            e("v_mul_u32_u24 v28, s41, v28")
            e("v_cvt_f32_u32 v28, v28")
            e("v_mul_f32 v28, s42, v28")
            e("v_cos_f32 v%d, v28" % CS(sb, q))
            e("v_sin_f32 v%d, v28" % SN(sb, q))
    e("s_nop 7"); e("s_nop 7")
    e("s_lshl_b32 s41, s%d, 1" % S_QG)
    e("s_add_u32 s41, s41, s%d" % S_WT)
    e("s_lshl_b32 s41, s41, 8")
    e("s_lshl_b32 s42, s%d, 7" % S_EH)
    e("s_add_u32 s41, s41, s42")
    e("s_lshl_b32 s42, s%d, 5" % S_WF)
    e("s_add_u32 s41, s41, s42")
    e("s_lshl_b32 s41, s41, 3")
    e("s_add_u32 s41, s41, 0x%x" % UBUF)
    e("v_lshlrev_b32 v29, 3, v26")
    e("v_lshlrev_b32 v30, 16, v27")
    e("v_add3_u32 v29, v29, v30, s41")
    for q in range(16):
        i, jj = q >> 2, q & 3
        pk = 128 + 2 * (q % 8)
        for sb in range(2):
            ur, ui = accA(sb) + q, accB(sb) + q
            e("v_mul_f32 v36, v%d, v%d" % (ur, CS(sb, q)))
            e("v_mul_f32 v37, v%d, v%d" % (ui, CS(sb, q)))
            e("v_fma_f32 v36, v%d, v%d, v36" % (ui, SN(sb, q)))
            e("v_fma_f32 v37, -v%d, v%d, v37" % (ur, SN(sb, q)))
            e("v_cvt_pk_bf16_f32 v%d, v36, v37" % (pk + sb))
        e("s_mov_b32 s%d, 0x%x" % (S_OFF, (8 * i + jj) * 65536))
        e("buffer_store_dwordx2 %s, v29, s[%d:%d], s%d offen%s" % (vr(pk, 2), S_WS, S_WS + 3, S_OFF, sc))
        e.vm_issue("ust")

def entry_common(e):
    e("v_and_b32 v%d, 63, v0" % V_LANE)
    e("v_lshrrev_b32 v2, 6, v0")
    e("s_nop 0")
    e("v_readfirstlane_b32 s%d, v2" % S_WAVE)
    e("s_nop 3")

def kernel1(e, cfg):
    e.raw(".text"); e.raw(".globl k1_kernel"); e.raw(".p2align 8"); e.raw(".type k1_kernel,@function"); e.label("k1_kernel")
    e("s_cmp_ge_u32 s2, 256")
    e("s_cbranch_scc1 K1_END")
    kernarg_loads(e, None)
    entry_common(e)
    e("s_and_b32 s%d, s%d, 3" % (S_WF, S_WAVE))
    e("s_lshr_b32 s%d, s%d, 2" % (S_WT, S_WAVE))
    e("s_and_b32 s41, s2, 7")
    e("s_lshr_b32 s42, s2, 3")
    e("s_cmp_ge_u32 s42, 28")
    e("s_cbranch_scc1 K1_DFT")
    e("s_mul_i32 s43, s42, 37")
    e("s_lshr_b32 s43, s43, 8")
    e("s_mul_i32 s76, s43, 7")
    e("s_sub_u32 s76, s42, s76")
    e("s_lshr_b32 s77, s41, 1")
    e("s_lshl_b32 s77, s77, 2")
    e("s_add_u32 s%d, s77, s43" % S_R)
    e("s_and_b32 s77, s41, 1")
    e("s_mul_i32 s77, s77, 7")
    e("s_add_u32 s%d, s77, s76" % S_FB)
    sv = list(e.vm);
    phase1_body(e, cfg, True)
    stamp_store(e, cfg, 4, 0)
    e("s_endpgm")
    e.vm = []
    e.label("K1_DFT")
    e("s_sub_u32 s42, s42, 28")
    e("s_and_b32 s%d, s41, 1" % S_EH)
    e("s_lshr_b32 s77, s41, 1")
    e("s_lshl_b32 s77, s77, 2")
    e("s_add_u32 s%d, s77, s42" % S_QG)
    phase1_body(e, cfg, False)
    stamp_store(e, cfg, 4, 0)
    e.label("K1_END")
    e("s_endpgm")

P2_ACC = 64
P2_H = 96
P2_A = 208
P2_U = 224
P2_T = 240
SLICE = 40960
def phase2_body(e, cfg):
    sc = " sc1" if cfg.fused else ""
    L = V_LANE
    e("s_and_b32 s60, s%d, 3" % S_WAVE)
    e("s_lshr_b32 s61, s%d, 2" % S_WAVE)
    KSL, NB = 60, 61
    e("v_lshrrev_b32 v2, 3, v%d" % L)
    e("v_bfe_u32 v3, v%d, 4, 1" % L)
    e("v_lshlrev_b32 v3, 2, v3")
    e("v_and_b32 v4, 7, v%d" % L)
    e("v_xor_b32 v3, v3, v4")
    e("v_lshlrev_b32 v3, 4, v3")
    e("s_mul_i32 s41, s%d, 448" % KSL)
    e("s_lshl_b32 s42, s%d, 3" % NB)
    e("s_add_u32 s41, s41, s42")
    e("v_add_u32 v2, s41, v2")
    e("s_movk_i32 s42, 896")
    e("v_mul_lo_u32 v2, v2, s42")
    e("s_lshl_b32 s41, s%d, 7" % S_C)
    e("v_add3_u32 v10, v2, v3, s41")
    e("s_mul_i32 s62, s%d, %d" % (KSL, SLICE))
    e("s_lshl_b32 s41, s%d, 10" % NB)
    e("s_add_u32 s62, s62, s41")
    def dma_wd(kk, pos):
        dma(e, S_WD, 10, pos * 2048, 62, kk * 16 * 896, ("wd", kk))
    e("v_and_b32 v2, 15, v%d" % L)
    e("v_lshrrev_b32 v3, 2, v2")
    e("v_lshrrev_b32 v4, 5, v%d" % L)
    e("v_lshlrev_b32 v5, 2, v4")
    e("v_add_u32 v5, v5, v3")
    e("v_lshlrev_b32 v5, 7, v5")
    e("v_bfe_u32 v6, v2, 3, 1")
    e("v_lshlrev_b32 v6, 6, v6")
    e("v_bfe_u32 v7, v%d, 4, 1" % L)
    e("v_lshlrev_b32 v7, 5, v7")
    e("v_and_b32 v8, 3, v2")
    e("v_lshlrev_b32 v8, 3, v8")
    e("v_add3_u32 v5, v5, v6, v7")
    e("v_add_u32 v5, v5, v8")
    e("s_mul_i32 s41, s%d, %d" % (KSL, SLICE))
    e("v_add_u32 v11, s41, v5")
    e("v_xor_b32 v12, 64, v11")
    e("s_mul_i32 s41, s%d, 112" % S_T1)
    e("s_mul_i32 s42, s%d, 28" % KSL)
    e("s_add_u32 s41, s41, s42")
    e("s_lshl_b32 s41, s41, 1")
    e("s_add_u32 s41, s41, s%d" % NB)
    e("s_lshl_b32 s41, s41, 10")
    e("v_lshlrev_b32 v13, 4, v%d" % L)
    e("v_add_u32 v13, s41, v13")
    def load_h(kk):
        e("s_mov_b32 s%d, 0x%x" % (S_OFF, kk * 2048))
        e("buffer_load_dwordx4 %s, v13, s[%d:%d], s%d offen%s" % (vr(P2_H + 4 * kk, 4), S_WS, S_WS + 3, S_OFF, sc))
        e.vm_issue(("h", kk))
    for kk in range(10): dma_wd(kk, kk)
    return dict(KSL=KSL, NB=NB, dma_wd=dma_wd, load_h=load_h, sc=sc)

def phase2_main(e, cfg, P):
    KSL, NB, dma_wd, load_h, sc = P["KSL"], P["NB"], P["dma_wd"], P["load_h"], P["sc"]
    L = V_LANE
    e("v_and_b32 v14, 31, v%d" % L)
    e("s_lshl_b32 s41, s%d, 6" % S_T1)
    e("s_lshl_b32 s42, s%d, 5" % NB)
    e("s_add_u32 s41, s41, s42")
    e("v_add_u32 v2, s41, v14")
    e("v_lshlrev_b32 v2, 2, v2")
    e("v_add_u32 v2, 0x%x, v2" % GBUF)
    e("buffer_load_dword v15, v2, s[%d:%d], 0 offen%s" % (S_WS, S_WS + 3, sc))
    e.vm_issue("g")
    for kk in range(10): load_h(kk)
    for kk in range(10, 20): dma_wd(kk, kk)
    for kk in range(10, 28): load_h(kk)
    e("s_cmp_ge_u32 s%d, 4" % S_C)
    e("s_cselect_b32 s63, 1, 0")
    e("s_sub_u32 s64, 32, s%d" % S_T1)
    e("s_and_b32 s64, s64, 31")
    e("s_cmp_eq_u32 s63, 1")
    e("s_cselect_b32 s64, s64, s%d" % S_T1)
    e("v_lshrrev_b32 v4, 5, v%d" % L)
    e("s_lshl_b32 s41, s%d, 6" % S_C)
    for mb in range(2):
        e("v_add_u32 v2, s41, v14")
        if mb: e("v_add_u32 v2, 32, v2")
        e("v_sub_u32 v3, 448, v2")
        e("s_cmp_eq_u32 s63, 1")
        e("s_cselect_b64 vcc, -1, 0")
        e("s_nop 1")
        e("v_cndmask_b32 v2, v2, v3, vcc")
        e("v_lshlrev_b32 v2, 3, v2")
        e("v_lshlrev_b32 v3, 12, v4")
        e("v_add_u32 v%d, v2, v3" % (16 + mb))
    e("s_lshl_b32 s41, s64, 5")
    e("s_lshl_b32 s42, s%d, 3" % KSL)
    e("s_add_u32 s41, s41, s42")
    e("s_lshl_b32 s41, s41, 11")
    e("s_add_u32 s65, s41, 0x%x" % UBUF)
    for u in range(2):
        if u == 1: e("s_add_u32 s65, s65, %d" % (4 * 2048))
        for mb in range(2):
            for hq in range(2):
                e("buffer_load_dwordx2 %s, v%d, s[%d:%d], s65 offen offset:%d%s" % (vr(P2_U + 8 * u + 4 * mb + 2 * hq, 2), 16 + mb, S_WS, S_WS + 3, hq * 2048, sc))
                e.vm_issue("u")
    for i in range(32):
        e("v_mov_b32 v%d, 0" % (P2_ACC + i))
    def reads(kk, pos):
        b = P2_A + 8 * (kk & 1)
        for mb in range(2):
            for ip in range(2):
                e("ds_read_b64_tr_b16 %s, v%d offset:%d" % (vr(b + 4 * mb + 2 * ip, 2), 11 + mb, pos * 2048 + ip * 1024))
    def pos_of(kk): return kk if kk < 20 else kk - 20
    e.vm_wait([("wd", k) for k in range(10)])
    e("s_barrier")
    stamp(e, cfg, 1)
    reads(0, 0)
    for kk in range(28):
        if kk == 10 - 1:
            pass
        nxt = kk + 1
        boundary = nxt in (10, 20)
        if nxt < 28 and not boundary:
            reads(nxt, pos_of(nxt))
            e("s_waitcnt lgkmcnt(4)")
        else:
            e("s_waitcnt lgkmcnt(0)")
        e.vm_wait([("h", kk)])
        b = P2_A + 8 * (kk & 1)
        for mb in range(2):
            mfma(e, P2_ACC + 16 * mb, b + 4 * mb, P2_H + 4 * kk)
        if boundary:
            if nxt == 10:
                e.vm_wait([("wd", k) for k in range(10, 20)])
                e("s_barrier")
                for k in range(20, 28): dma_wd(k, k - 20)
            else:
                e.vm_wait([("wd", k) for k in range(20, 28)])
                e("s_barrier")
            reads(nxt, pos_of(nxt))
    stamp(e, cfg, 2)
    e.vm_wait(["g", "u"])
    e("s_cmp_lg_u32 s%d, 0" % S_T1)
    e("s_cselect_b32 s41, s63, 0")
    e("s_lshl_b32 s42, s%d, 5" % NB)
    e("s_add_u32 s41, s41, s42")
    e("v_add_u32 v2, s41, v14")
    e("v_lshrrev_b32 v4, 5, v%d" % L)
    e("v_lshlrev_b32 v4, 2, v4")
    e("s_lshl_b32 s41, s63, 31")
    e("v_xor_b32 v18, s41, v15")
    e("s_mov_b32 s42, 0x%08x" % f2u(1.0 / 64))
    e("s_lshl_b32 s43, s%d, 4" % KSL)
    for u in range(2):
        for q in range(4):
            e("v_add_u32 v3, s43, v4")
            e("v_add_u32 v3, %d, v3" % (8 * u + q))
            e("v_mul_u32_u24 v3, v3, v2")
            e("v_and_b32 v3, 63, v3")
            e("v_cvt_f32_u32 v3, v3")
            e("v_mul_f32 v3, s42, v3")
            e("v_cos_f32 v5, v3")
            e("v_sin_f32 v6, v3")
            e("s_nop 0")
            e("v_mul_f32 v5, v5, v15")
            e("v_mul_f32 v6, v6, v18")
            e("v_cvt_pk_bf16_f32 v%d, v5, v6" % (P2_T + 4 * u + q))
    e("v_sub_f32 v19, 1.0, v15")
    e("s_nop 7"); e("s_nop 3")
    for i in range(32):
        e("v_mul_f32 v%d, v19, v%d" % (P2_ACC + i, P2_ACC + i))
    e("s_nop 1")
    for u in range(2):
        for mb in range(2):
            mfma(e, P2_ACC + 16 * mb, P2_U + 8 * u + 4 * mb, P2_T + 4 * u)
    e("s_barrier")
    e("v_lshlrev_b32 v2, 4, v%d" % L)
    e("s_lshl_b32 s41, s%d, 13" % S_WAVE)
    e("v_add_u32 v3, s41, v2")
    e("s_nop 7"); e("s_nop 3")
    for qd in range(4):
        for hf in range(2):
            e("ds_write_b128 v3, %s offset:%d" % (vr(P2_ACC + 8 * qd + 4 * hf, 4), qd * 2048 + hf * 1024))
    e("s_waitcnt lgkmcnt(0)")
    e("s_barrier")
    e("s_lshl_b32 s41, s%d, 15" % NB)
    e("s_lshl_b32 s42, s%d, 11" % KSL)
    e("s_add_u32 s41, s41, s42")
    e("v_add_u32 v3, s41, v2")
    for k in range(4):
        for hf in range(2):
            e("ds_read_b128 %s, v3 offset:%d" % (vr(96 + 8 * k + 4 * hf, 4), k * 8192 + hf * 1024))
    e("s_waitcnt lgkmcnt(0)")
    for q in range(8):
        e("v_add_f32 v%d, v%d, v%d" % (96 + q, 96 + q, 104 + q))
        e("v_add_f32 v%d, v%d, v%d" % (112 + q, 112 + q, 120 + q))
    for q in range(8):
        e("v_add_f32 v%d, v%d, v%d" % (96 + q, 96 + q, 112 + q))
    for q in range(4):
        e("v_cvt_pk_bf16_f32 v%d, v%d, v%d" % (128 + q, 96 + 2 * q, 96 + 2 * q + 1))
    e("s_nop 1")
    e("v_permlane32_swap_b32 v128, v130")
    e("v_permlane32_swap_b32 v129, v131")
    e("s_lshl_b32 s41, s%d, 5" % NB)
    e("v_add_u32 v2, s41, v14")
    e("v_lshlrev_b32 v2, 5, v2")
    e("v_add_u32 v2, s%d, v2" % S_T1)
    e("s_movk_i32 s42, 896")
    e("v_mul_lo_u32 v2, v2, s42")
    e("s_lshl_b32 s41, s%d, 7" % S_C)
    e("s_lshl_b32 s42, s%d, 5" % KSL)
    e("s_add_u32 s41, s41, s42")
    e("v_lshrrev_b32 v4, 5, v%d" % L)
    e("v_lshlrev_b32 v4, 4, v4")
    e("v_add3_u32 v2, v2, v4, s41")
    e("buffer_store_dwordx4 v[128:131], v2, s[%d:%d], 0 offen" % (S_OUT, S_OUT + 3))
    stamp(e, cfg, 3)

def kernel2(e, cfg):
    e.raw(".text"); e.raw(".globl k2_kernel"); e.raw(".p2align 8"); e.raw(".type k2_kernel,@function"); e.label("k2_kernel")
    e.vm = []
    e("s_cmp_ge_u32 s2, 256")
    e("s_cbranch_scc1 K2_END")
    e("s_lshr_b32 s42, s2, 3")
    e("s_cmp_ge_u32 s42, 28")
    e("s_cbranch_scc1 K2_END")
    kernarg_loads(e, None)
    entry_common(e)
    e("s_and_b32 s41, s2, 7")
    e("s_mul_i32 s43, s42, 37")
    e("s_lshr_b32 s43, s43, 8")
    e("s_mul_i32 s76, s43, 7")
    e("s_sub_u32 s%d, s42, s76" % S_C)
    e("s_lshl_b32 s41, s41, 2")
    e("s_add_u32 s%d, s41, s43" % S_T1)
    e("s_waitcnt lgkmcnt(0)")
    srd(e, S_WS, 74, WS_BYTES)
    srd(e, S_OUT, 46, 1835008)
    srd(e, S_WD, 56, 1605632)
    stamp(e, cfg, 0)
    P = phase2_body(e, cfg)
    phase2_main(e, cfg, P)
    stamp_store(e, cfg, 4, 0x40000)
    e.label("K2_END")
    e("s_endpgm")

def descriptor(name, lds=0):
    return """.section .rodata,"a"
.p2align 6
.amdhsa_kernel %s
  .amdhsa_next_free_vgpr 256
  .amdhsa_next_free_sgpr 102
  .amdhsa_accum_offset 256
  .amdhsa_group_segment_fixed_size 0
  .amdhsa_kernarg_size 104
  .amdhsa_user_sgpr_count 2
  .amdhsa_user_sgpr_kernarg_segment_ptr 1
  .amdhsa_system_sgpr_workgroup_id_x 1
.end_amdhsa_kernel
""" % name

def main():
    cfg = Cfg()
    out = sys.argv[1]
    for a in sys.argv[2:]:
        if a == "diag": cfg.diag = True
        if a == "fused": cfg.fused = True
        if a.startswith("no") or a in ("dbg",): cfg.x = cfg.x | {a}
    e = Em()
    hdr = "; generated by gen.py\n"
    hdr += "; @launch kernel=k1_kernel grid=(256,1,1) block=(512,1,1) lds=163840\n"
    hdr += "; @launch kernel=k2_kernel grid=(256,1,1) block=(512,1,1) lds=163840\n"
    hdr += '.amdgcn_target "amdgcn-amd-amdhsa--gfx950"\n'
    kernel1(e, cfg)
    kernel2(e, cfg)
    txt = hdr + e.text() + descriptor("k1_kernel") + descriptor("k2_kernel")
    open(out, "w").write(txt)
if __name__ == "__main__":
    main()
```

```python
import sys, math

NAME = "gated_mix__spectral_fnet__glu_gated_glu__prompt"

class Em:
    def __init__(self):
        self.lines = []
        self.vm = []
        self.nlab = 0
    def __call__(self, s):
        self.lines.append("    " + s)
    def raw(self, s):
        self.lines.append(s)
    def label(self, s):
        self.lines.append(s + ":")
    def comment(self, s):
        self.lines.append("    ; " + s)
    def vm_issue(self, tag):
        self.vm.append(tag)
    def vm_wait(self, tags):
        last = -1
        for i, t in enumerate(self.vm):
            if t in tags: last = i
        if last < 0:
            return
        n = len(self.vm) - 1 - last
        assert n <= 63, n
        self("s_waitcnt vmcnt(%d)" % n)
        self.vm = self.vm[last + 1:]
    def vm_wait_all(self):
        self("s_waitcnt vmcnt(0)")
        self.vm = []
    def text(self):
        return "\n".join(self.lines) + "\n"

def vr(a, n=1):
    return "v%d" % a if n == 1 else "v[%d:%d]" % (a, a + n - 1)
def sr(a, n=1):
    return "s%d" % a if n == 1 else "s[%d:%d]" % (a, a + n - 1)

HBUF = 0
UBUF = 0x700000
GBUF = 0x900000
DIAG = 0xA00000
WS_BYTES = 0x1000000

LOG2E = 1.4426950408889634

S_WG = 2
S_X = 8; S_WA = 12; S_WB = 16; S_WS = 20; S_GW = 24; S_OUT = 28; S_WD = 32; S_DBG = 36
S_WAVE = 40
S_T0 = 41
S_R = 60; S_FB = 61; S_QG = 62; S_EH = 63
S_WF = 64; S_WT = 65
S_LX = 66
S_LW = 67
S_OFF = 68
S_OFF2 = 69
S_T1 = 70; S_C = 71
S_STAMP = 80

class Cfg:
    fused = False
    diag = False
    x = set()

def kernarg_loads(e, need):
    e("s_load_dwordx2 s[44:45], s[0:1], 0")
    e("s_load_dwordx4 s[48:51], s[0:1], 24")
    e("s_load_dwordx4 s[52:55], s[0:1], 48")
    e("s_load_dwordx4 s[56:59], s[0:1], 64")
    e("s_load_dwordx2 s[46:47], s[0:1], 80")
    e("s_load_dwordx4 s[72:75], s[0:1], 88")

def srd(e, dst, lo, nbytes):
    e("s_mov_b32 s%d, s%d" % (dst, lo))
    e("s_and_b32 s%d, s%d, 0xffff" % (dst + 1, lo + 1))
    e("s_mov_b32 s%d, 0x%x" % (dst + 2, nbytes))
    e("s_mov_b32 s%d, 0x20000" % (dst + 3))

def stamp(e, cfg, k):
    if cfg.diag:
        e("s_memrealtime s[%d:%d]" % (S_STAMP + 2 * k, S_STAMP + 2 * k + 1))
        e("s_memtime s[%d:%d]" % (S_STAMP + 8 + 2 * k, S_STAMP + 8 + 2 * k + 1))
        e("s_waitcnt lgkmcnt(0)")

def stamp_dbg(e, cfg, nst, wg, slot, back):
    lab = "DBGSKIP%d" % e.nlab; e.nlab += 1
    e("s_cmp_lg_u32 s2, %d" % wg)
    e("s_cbranch_scc1 %s" % lab)
    e("s_cmp_lg_u32 s%d, 0" % S_WAVE)
    e("s_cbranch_scc1 %s" % lab)
    if back >= 0:
        e("s_add_u32 s44, s72, %d" % back)
        e("s_addc_u32 s45, s73, 0")
    else:
        e("s_sub_u32 s44, s72, %d" % (-back))
        e("s_subb_u32 s45, s73, 0")
    e("s_mov_b32 s46, 256")
    e("s_mov_b32 s47, 0x20000")
    e("s_and_b32 s45, s45, 0xffff")
    e("v_mov_b32 v1, %d" % (slot * 4))
    for k in range(nst):
        e("v_mov_b32 v2, s%d" % (S_STAMP + 2 * k))
        e("buffer_store_dword v2, v1, s[44:47], 0 offen offset:%d" % (4 * k))
        e("s_nop 1")
    e("s_waitcnt vmcnt(0)")
    e.label(lab)

def stamp_store(e, cfg, nst, slot_base):
    if not cfg.diag: return
    if "dbg" in cfg.x:
        if slot_base == 0:
            stamp_dbg(e, cfg, nst, 0, 0, 512); stamp_dbg(e, cfg, nst, 248, 4, 512); stamp_dbg(e, cfg, nst, 0, 0, 0); stamp_dbg(e, cfg, nst, 248, 4, 0)
        else:
            stamp_dbg(e, cfg, nst, 0, 8, 0); stamp_dbg(e, cfg, nst, 100, 12, 0); stamp_dbg(e, cfg, nst, 0, 8, -512); stamp_dbg(e, cfg, nst, 100, 12, -512)
        return
    e("s_lshl_b32 s41, s2, 3")
    e("s_add_u32 s41, s41, s%d" % S_WAVE)
    e("s_lshl_b32 s41, s41, 6")
    e("s_add_u32 s41, s41, 0x%x" % (DIAG + slot_base))
    e("v_mov_b32 v1, s41")
    for k in range(2 * nst):
        e("v_mov_b32 v2, s%d" % (S_STAMP + 2 * k))
        e("buffer_store_dword v2, v1, s[%d:%d], 0 offen offset:%d" % (S_WS, S_WS + 3, 4 * k))
        e("s_nop 1")
    e("s_waitcnt vmcnt(0)")

XSLOT = 16384; NX = 4
WBASE = 65536; NW = 6; WSLOT = 16384

V_LANE = 1
V_XA = 10
V_WA = 14
V_XG = 22
V_WG = 24
V_T = 26
ACC = 64
FR = 128

def accA(i): return ACC + 16 * i
def accB(i): return ACC + 32 + 16 * i

def phase1_common_addr(e, is_h):
    L = V_LANE
    T = V_T
    e("v_and_b32 v%d, 31, v%d" % (T, L))
    e("v_lshrrev_b32 v%d, 5, v%d" % (T + 1, L))
    e("v_lshrrev_b32 v%d, 1, v%d" % (T + 2, T))
    e("v_and_b32 v%d, 7, v%d" % (T + 2, T + 2))
    e("s_lshl_b32 s41, s%d, 6" % S_WT)
    e("v_add_u32 v%d, s41, v%d" % (T + 3, T))
    e("v_lshlrev_b32 v%d, 7, v%d" % (T + 3, T + 3))
    if not is_h:
        e("s_lshl_b32 s41, s%d, 5" % S_WF)
        e("v_add_u32 v%d, s41, v%d" % (T + 5, T))
        e("v_lshlrev_b32 v%d, 7, v%d" % (T + 5, T + 5))
        e("v_add_u32 v%d, 0x%x, v%d" % (T + 5, WBASE, T + 5))
    for k in range(4):
        e("v_add_u32 v%d, %d, v%d" % (T + 4, 2 * k, T + 1))
        e("v_xor_b32 v%d, v%d, v%d" % (T + 4, T + 4, T + 2))
        e("v_lshlrev_b32 v%d, 4, v%d" % (T + 4, T + 4))
        e("v_add_u32 v%d, v%d, v%d" % (V_XA + k, T + 3, T + 4))
        if not is_h:
            e("v_add_u32 v%d, v%d, v%d" % (V_WA + k, T + 5, T + 4))
            e("v_add_u32 v%d, 0x10000, v%d" % (V_WA + 4 + k, V_WA + k))
    if is_h:
        e("v_and_b32 v%d, 15, v%d" % (T + 4, L))
        e("v_lshrrev_b32 v%d, 2, v%d" % (T + 5, T + 4))
        e("v_lshlrev_b32 v%d, 3, v%d" % (T + 6, T + 1))
        e("v_add_u32 v%d, v%d, v%d" % (T + 6, T + 6, T + 5))
        e("v_lshlrev_b32 v%d, 8, v%d" % (T + 6, T + 6))
        e("v_xor_b32 v%d, s%d, v%d" % (T + 7, S_WF, T + 5))
        e("v_lshlrev_b32 v%d, 6, v%d" % (T + 7, T + 7))
        e("v_add_u32 v%d, v%d, v%d" % (T + 6, T + 6, T + 7))
        e("v_bfe_u32 v%d, v%d, 4, 1" % (T + 7, L))
        e("v_lshlrev_b32 v%d, 5, v%d" % (T + 7, T + 7))
        e("v_add_u32 v%d, v%d, v%d" % (T + 6, T + 6, T + 7))
        e("v_and_b32 v%d, 3, v%d" % (T + 7, T + 4))
        e("v_lshlrev_b32 v%d, 3, v%d" % (T + 7, T + 7))
        e("v_add_u32 v%d, v%d, v%d" % (T + 6, T + 6, T + 7))
        e("v_add_u32 v%d, 0x%x, v%d" % (V_WA, WBASE, T + 6))
        e("v_add_u32 v%d, 0x%x, v%d" % (V_WA + 1, WBASE + 0x10000, T + 6))
    e("v_lshrrev_b32 v%d, 3, v%d" % (T, L))
    e("s_lshl_b32 s41, s%d, 4" % S_WAVE)
    e("v_add_u32 v%d, s41, v%d" % (T, T))
    e("v_and_b32 v%d, 7, v%d" % (T + 1, L))
    e("v_lshrrev_b32 v%d, 4, v%d" % (T + 2, L))
    e("s_movk_i32 s42, 896")
    for i in range(2):
        if i == 1:
            e("v_add_u32 v%d, 8, v%d" % (T, T))
        e("v_add_u32 v%d, %d, v%d" % (T + 3, 4 * i, T + 2))
        e("v_xor_b32 v%d, v%d, v%d" % (T + 3, T + 3, T + 1))
        e("v_lshlrev_b32 v%d, 4, v%d" % (T + 3, T + 3))
        if is_h:
            e("v_lshrrev_b32 v%d, 6, v%d" % (T + 4, T))
            e("v_and_b32 v%d, 63, v%d" % (T + 5, T))
            e("v_lshlrev_b32 v%d, 5, v%d" % (T + 5, T + 5))
            e("s_lshl_b32 s41, s%d, 1" % S_R)
            e("v_add3_u32 v%d, v%d, v%d, s41" % (T + 4, T + 4, T + 5))
        else:
            e("v_and_b32 v%d, 31, v%d" % (T + 4, T))
            e("v_lshlrev_b32 v%d, 6, v%d" % (T + 4, T + 4))
            e("v_lshrrev_b32 v%d, 5, v%d" % (T + 5, T))
            e("s_lshl_b32 s41, s%d, 2" % S_QG)
            e("v_add3_u32 v%d, v%d, v%d, s41" % (T + 4, T + 4, T + 5))
        e("v_mul_lo_u32 v%d, v%d, s42" % (T + 4, T + 4))
        e("v_add_u32 v%d, v%d, v%d" % (V_XG + i, T + 4, T + 3))
        if not is_h:
            e("s_lshl_b32 s41, s%d, 7" % S_EH)
            e("v_add_u32 v%d, s41, v%d" % (T + 4, T))
            e("v_mul_lo_u32 v%d, v%d, s42" % (T + 4, T + 4))
            e("v_add_u32 v%d, v%d, v%d" % (V_WG + i, T + 4, T + 3))
    if is_h:
        e("s_lshl_b32 s41, s%d, 2" % S_WAVE)
        e("v_add_u32 v%d, s41, v%d" % (T + 3, T + 2))
        e("s_movk_i32 s42, 3584")
        e("v_mul_lo_u32 v%d, v%d, s42" % (T + 3, T + 3))
        e("v_bfe_u32 v%d, v%d, 2, 2" % (T + 4, L))
        e("v_xor_b32 v%d, v%d, v%d" % (T + 4, T + 4, T + 2))
        e("v_lshlrev_b32 v%d, 6, v%d" % (T + 4, T + 4))
        e("v_and_b32 v%d, 3, v%d" % (T + 5, L))
        e("v_lshlrev_b32 v%d, 4, v%d" % (T + 5, T + 5))
        e("v_add3_u32 v%d, v%d, v%d, v%d" % (T + 3, T + 3, T + 4, T + 5))
        e("s_lshl_b32 s41, s%d, 8" % S_FB)
        e("v_add_u32 v%d, s41, v%d" % (V_WG, T + 3))
        e("s_lshl_b32 s%d, s%d, 10" % (S_LW, S_WAVE))
    else:
        e("s_lshl_b32 s%d, s%d, 11" % (S_LW, S_WAVE))
    e("s_lshl_b32 s%d, s%d, 11" % (S_LX, S_WAVE))

def dma(e, srdreg, vaddr, ldsconst, sldswave, soff, tag, sc=""):
    e("s_add_u32 m0, s%d, 0x%x" % (sldswave, ldsconst))
    e("s_mov_b32 s%d, 0x%x" % (S_OFF, soff))
    e("buffer_load_dwordx4 v%d, s[%d:%d], s%d offen%s lds" % (vaddr, srdreg, srdreg + 3, S_OFF, sc))
    e.vm_issue(tag)

def dma_x(e, c):
    for i in range(2):
        dma(e, S_X, V_XG + i, (c % NX) * XSLOT + i * 1024, S_LX, c * 128, ("x", c))
def dma_w_h(e, j):
    for m in range(2):
        dma(e, S_WA if m == 0 else S_WB, V_WG, WBASE + (j % NW) * WSLOT + m * 8192, S_LW, j * 32 * 3584, ("w", j))
def dma_d(e, c, part=None):
    for m in range(2):
        for i in range(2):
            if part is not None and m != part: continue
            dma(e, S_WA if m == 0 else S_WB, V_WG + i, WBASE + (c % 3) * 32768 + m * 16384 + i * 1024, S_LW, c * 128, ("w", c))

def frag_reads(e, is_h, kap):
    p = kap & 1
    base = FR + 16 * p
    c = kap >> 2; kk4 = kap & 3
    for nb in range(2):
        e("ds_read_b128 %s, v%d offset:%d" % (vr(base + 4 * nb, 4), V_XA + kk4, (c % NX) * XSLOT + nb * 4096))
    if is_h:
        j = kap >> 1; kk = kap & 1
        slot = (j % NW) * WSLOT
        va = V_WA + (1 if slot >= 0x10000 else 0)
        so = slot & 0xffff
        for m in range(2):
            for ip in range(2):
                e("ds_read_b64_tr_b16 %s, v%d offset:%d" % (vr(base + 8 + 4 * m + 2 * ip, 2), va, so + m * 8192 + (16 * kk + 4 * ip) * 256))
        return 6
    else:
        slot = (c % 3) * 32768
        va = V_WA + kk4 + (4 if slot >= 0x10000 else 0)
        so = slot & 0xffff
        for m in range(2):
            e("ds_read_b128 %s, v%d offset:%d" % (vr(base + 8 + 4 * m, 4), va, so + m * 16384))
        return 4

def mfma(e, d, a, b, c=None):
    cs = vr(d, 16) if c is None else c
    e("v_mfma_f32_32x32x16_bf16 %s, %s, %s, %s" % (vr(d, 16), vr(a, 4), vr(b, 4), cs))

def gate_issue(e, cfg):
    e("s_mul_i32 s44, s43, 896")
    e("v_lshlrev_b32 v46, 4, v%d" % V_LANE)
    e("v_add_u32 v47, s44, v46")
    e("v_cmp_gt_u32 vcc, 56, v%d" % V_LANE)
    e("v_mov_b32 v45, 0x7fffffff")
    e("s_nop 0")
    e("v_cndmask_b32 v47, v45, v47, vcc")
    e("buffer_load_dwordx4 v[48:51], v47, s[%d:%d], 0 offen" % (S_X, S_X + 3))
    e.vm_issue("gate")
    e("buffer_load_dwordx4 v[52:55], v46, s[%d:%d], 0 offen" % (S_GW, S_GW + 3))
    e.vm_issue("gate")

def gate_finish(e, cfg):
    e.vm_wait(["gate"])
    e("v_mov_b32 v56, 0")
    for i in range(4):
        e("v_dot2_f32_bf16 v56, v%d, v%d, v56" % (48 + i, 52 + i))
    e("s_nop 2")
    for sh in ("row_shr:1", "row_shr:2", "row_shr:4", "row_shr:8"):
        e("v_add_f32_dpp v56, v56, v56 %s row_mask:0xf bank_mask:0xf bound_ctrl:0" % sh)
        e("s_nop 1")
    e("v_add_f32_dpp v56, v56, v56 row_bcast:15 row_mask:0xa bank_mask:0xf")
    e("s_nop 1")
    e("v_add_f32_dpp v56, v56, v56 row_bcast:31 row_mask:0xc bank_mask:0xf")
    e("s_nop 1")
    e("v_mul_f32 v56, 0x%08x, v56" % f2u(-LOG2E))
    e("v_exp_f32 v56, v56")
    e("s_nop 0")
    e("v_add_f32 v56, 1.0, v56")
    e("v_rcp_f32 v56, v56")
    e("s_lshl_b32 s44, s76, 2")
    e("s_add_u32 s44, s44, 0x%x" % GBUF)
    e("v_mov_b32 v57, s44")
    e("v_cmp_eq_u32 vcc, 63, v%d" % V_LANE)
    e("v_mov_b32 v45, 0x7fffffff")
    e("s_nop 0")
    e("v_cndmask_b32 v57, v45, v57, vcc")
    e("buffer_store_dword v56, v57, s[%d:%d], 0 offen%s" % (S_WS, S_WS + 3, " sc1" if cfg.fused else ""))
    e.vm_issue("gst")

import struct
def f2u(f): return struct.unpack("<I", struct.pack("<f", f))[0]

def phase1_body(e, cfg, is_h):
    tagp = "h" if is_h else "d"
    sc = " sc1" if cfg.fused else ""
    phase1_common_addr(e, is_h)
    e("s_waitcnt lgkmcnt(0)")
    srd(e, S_X, 44, 1835008)
    if is_h:
        srd(e, S_WA, 52, 1605632); srd(e, S_WB, 54, 1605632)
    else:
        srd(e, S_WA, 48, 401408); srd(e, S_WB, 50, 401408)
    srd(e, S_WS, 74, WS_BYTES)
    srd(e, S_GW, 58, 896)
    srd(e, S_OUT, 46, 1835008)
    srd(e, S_WD, 56, 1605632)
    srd(e, S_DBG, 72, 256)
    stamp(e, cfg, 0)
    if is_h:
        e("s_lshl_b32 s41, s%d, 3" % S_FB)
        e("s_add_u32 s41, s41, s%d" % S_WAVE)
        e("s_mov_b32 s77, s%d" % S_R)
    else:
        e("s_lshl_b32 s41, s%d, 3" % S_EH)
        e("s_add_u32 s41, s41, s%d" % S_WAVE)
        e("s_add_u32 s41, s41, 112")
        e("s_mov_b32 s77, s%d" % S_QG)
    e("s_lshl_b32 s76, s77, 7")
    e("s_add_u32 s76, s76, s41")
    e("s_lshr_b32 s43, s41, 6")
    e("s_lshl_b32 s78, s77, 1")
    e("s_add_u32 s43, s43, s78")
    e("s_and_b32 s41, s41, 63")
    e("s_lshl_b32 s41, s41, 5")
    e("s_add_u32 s43, s43, s41")
    gate_issue(e, cfg)
    if is_h:
        dma_x(e, 0); dma_w_h(e, 0); dma_w_h(e, 1); dma_x(e, 1); dma_w_h(e, 2); dma_w_h(e, 3)
        dma_x(e, 2); dma_w_h(e, 4); dma_w_h(e, 5); dma_x(e, 3)
    else:
        dma_x(e, 0); dma_d(e, 0); dma_x(e, 1); dma_d(e, 1); dma_x(e, 2); dma_d(e, 2); dma_x(e, 3)
    for i in range(64):
        e("v_mov_b32 v%d, 0" % (ACC + i))
    gate_finish(e, cfg)
    def need(j):
        t = []
        for jj in (j, j + 1):
            if jj <= 13:
                t.append(("x", jj >> 1))
                t.append(("w", jj if is_h else jj >> 1))
        return t
    e.vm_wait(need(0))
    e("s_barrier")
    stamp(e, cfg, 1)
    nrd = frag_reads(e, is_h, 0)
    for j in range(14):
        pend = []
        if j >= 1:
            if is_h:
                if j + 5 <= 13: pend.append(lambda j=j: dma_w_h(e, j + 5))
                if j % 2 == 0 and j // 2 + 3 <= 6: pend.append(lambda j=j: dma_x(e, j // 2 + 3))
            else:
                if j % 2 == 0:
                    c = j // 2
                    if c + 2 <= 6: pend.append(lambda c=c: dma_d(e, c + 2, 0)); pend.append(lambda c=c: dma_d(e, c + 2, 1))
                    if c + 3 <= 6: pend.append(lambda c=c: dma_x(e, c + 3))
        for kk in range(2):
            kap = 2 * j + kk
            if "nolds" in cfg.x:
                pass
            elif kap + 1 < 28:
                nrd = frag_reads(e, is_h, kap + 1)
                e("s_waitcnt lgkmcnt(%d)" % nrd)
            else:
                e("s_waitcnt lgkmcnt(0)")
            base = FR + 16 * (kap & 1)
            X0, X1, Wa, Wb = base, base + 4, base + 8, base + 12
            seq = []
            if is_h:
                seq = [(accA(0), Wa, X0), (accB(0), Wb, X0), (accA(1), Wa, X1), (accB(1), Wb, X1)]
            else:
                seq = [(accA(0), X0, Wa), (accB(0), X0, Wb), (accA(1), X1, Wa), (accB(1), X1, Wb)]
            for n, (d, a, b) in enumerate(seq):
                if "nomfma" not in cfg.x: mfma(e, d, a, b)
                if pend and n < 3:
                    f = pend.pop(0)
                    if "nodma" not in cfg.x: f()
        assert not pend
        if j < 13:
            if "nodma" not in cfg.x: e.vm_wait(need(j + 1))
            if "nobar" not in cfg.x: e("s_barrier")
    stamp(e, cfg, 2)
    e("s_nop 7"); e("s_nop 7")
    if is_h:
        epilogue_h(e, cfg)
    else:
        epilogue_d(e, cfg)
    stamp(e, cfg, 3)

def epilogue_h(e, cfg):
    sc = " sc1" if cfg.fused else ""
    e("s_lshl_b32 s41, s%d, 1" % S_R)
    e("s_add_u32 s41, s41, s%d" % S_WT)
    e("s_mul_i32 s41, s41, 112")
    e("s_lshl_b32 s42, s%d, 2" % S_FB)
    e("s_add_u32 s42, s42, s%d" % S_WF)
    e("s_lshl_b32 s42, s42, 1")
    e("s_add_u32 s41, s41, s42")
    e("s_lshl_b32 s41, s41, 11")
    e("v_lshlrev_b32 v26, 4, v%d" % V_LANE)
    e("v_add_u32 v26, s41, v26")
    e("s_mov_b32 s42, 0x%08x" % f2u(-LOG2E))
    T = 28
    for nb in range(2):
        for hf in range(2):
            outb = 128 + 4 * (2 * nb + hf)
            regs = [8 * hf + q for q in range(8)]
            for q in regs:
                e("v_mul_f32 v%d, s42, v%d" % (accA(nb) + q, accA(nb) + q))
            for q in regs:
                e("v_exp_f32 v%d, v%d" % (accA(nb) + q, accA(nb) + q))
            for q in regs:
                e("v_add_f32 v%d, 1.0, v%d" % (accA(nb) + q, accA(nb) + q))
            for q in regs:
                e("v_rcp_f32 v%d, v%d" % (accA(nb) + q, accA(nb) + q))
            for q in regs:
                e("v_mul_f32 v%d, v%d, v%d" % (accA(nb) + q, accA(nb) + q, accB(nb) + q))
            for q2 in range(4):
                e("v_cvt_pk_bf16_f32 v%d, v%d, v%d" % (outb + q2, accA(nb) + regs[2 * q2], accA(nb) + regs[2 * q2 + 1]))
            e("buffer_store_dwordx4 %s, v26, s[%d:%d], 0 offen offset:%d%s" % (vr(outb, 4), S_WS, S_WS + 3, hf * 2048 + nb * 1024, sc))
            e.vm_issue("hst")

def epilogue_d(e, cfg):
    sc = " sc1" if cfg.fused else ""
    L = V_LANE
    def ZR(sb, hf): return 128 + 16 * sb + 4 * hf
    def ZI(sb, hf): return 128 + 16 * sb + 8 + 4 * hf
    def CF(hf): return 160 + 4 * hf
    def SF(hf): return 168 + 4 * hf
    def NF(hf): return 176 + 4 * hf
    e("v_and_b32 v26, 31, v%d" % L)
    e("v_lshrrev_b32 v27, 5, v%d" % L)
    e("v_lshlrev_b32 v27, 2, v27")
    e("s_mov_b32 s41, 0x%08x" % f2u(1.0 / 32))
    for hf in range(2):
        for pr in range(4):
            for u in range(2):
                idx = 2 * pr + u
                s1c = 16 * hf + 8 * (idx >> 2) + (idx & 3)
                e("v_add_u32 v28, %d, v27" % s1c)
                e("v_mul_u32_u24 v28, v28, v26")
                e("v_and_b32 v28, 31, v28")
                e("v_cvt_f32_u32 v28, v28")
                e("v_mul_f32 v28, s41, v28")
                e("v_cos_f32 v%d, v28" % (30 + u))
                e("v_sin_f32 v%d, v28" % (32 + u))
            e("s_nop 0")
            e("v_cvt_pk_bf16_f32 v%d, v30, v31" % (CF(hf) + pr))
            e("v_cvt_pk_bf16_f32 v%d, v32, v33" % (SF(hf) + pr))
            e("v_xor_b32 v%d, 0x80008000, v%d" % (NF(hf) + pr, SF(hf) + pr))
    for sb in range(2):
        for hf in range(2):
            for pr in range(4):
                q = 8 * hf + 2 * pr
                e("v_cvt_pk_bf16_f32 v%d, v%d, v%d" % (ZR(sb, hf) + pr, accA(sb) + q, accA(sb) + q + 1))
                e("v_cvt_pk_bf16_f32 v%d, v%d, v%d" % (ZI(sb, hf) + pr, accB(sb) + q, accB(sb) + q + 1))
    e("s_nop 1")
    for sb in range(2):
        mfma(e, accA(sb), CF(0), ZR(sb, 0), "0")
        mfma(e, accB(sb), CF(0), ZI(sb, 0), "0")
        mfma(e, accA(sb), CF(1), ZR(sb, 1))
        mfma(e, accB(sb), CF(1), ZI(sb, 1))
        mfma(e, accA(sb), SF(0), ZI(sb, 0))
        mfma(e, accB(sb), NF(0), ZR(sb, 0))
        mfma(e, accA(sb), SF(1), ZI(sb, 1))
        mfma(e, accB(sb), NF(1), ZR(sb, 1))
    def CS(sb, q): return 184 + 32 * sb + q
    def SN(sb, q): return 184 + 32 * sb + 16 + q
    e("s_lshl_b32 s41, s%d, 2" % S_QG)
    e("s_lshl_b32 s42, s%d, 1" % S_WT)
    e("s_add_u32 s41, s41, s42")
    e("s_mov_b32 s42, 0x%08x" % f2u(1.0 / 2048))
    for sb in range(2):
        if sb == 1:
            e("s_add_u32 s41, s41, 1")
        for q in range(16):
            i, jj = q >> 2, q & 3
            e("v_add_u32 v28, %d, v27" % (8 * i + jj))
            e("v_mul_u32_u24 v28, s41, v28")
            e("v_cvt_f32_u32 v28, v28")
            e("v_mul_f32 v28, s42, v28")
            e("v_cos_f32 v%d, v28" % CS(sb, q))
            e("v_sin_f32 v%d, v28" % SN(sb, q))
    e("s_nop 7"); e("s_nop 7")
    e("s_lshl_b32 s41, s%d, 1" % S_QG)
    e("s_add_u32 s41, s41, s%d" % S_WT)
    e("s_lshl_b32 s41, s41, 8")
    e("s_lshl_b32 s42, s%d, 7" % S_EH)
    e("s_add_u32 s41, s41, s42")
    e("s_lshl_b32 s42, s%d, 5" % S_WF)
    e("s_add_u32 s41, s41, s42")
    e("s_lshl_b32 s41, s41, 3")
    e("s_add_u32 s41, s41, 0x%x" % UBUF)
    e("v_lshlrev_b32 v29, 3, v26")
    e("v_lshlrev_b32 v30, 16, v27")
    e("v_add3_u32 v29, v29, v30, s41")
    for q in range(16):
        i, jj = q >> 2, q & 3
        pk = 128 + 2 * (q % 8)
        for sb in range(2):
            ur, ui = accA(sb) + q, accB(sb) + q
            e("v_mul_f32 v36, v%d, v%d" % (ur, CS(sb, q)))
            e("v_mul_f32 v37, v%d, v%d" % (ui, CS(sb, q)))
            e("v_fma_f32 v36, v%d, v%d, v36" % (ui, SN(sb, q)))
            e("v_fma_f32 v37, -v%d, v%d, v37" % (ur, SN(sb, q)))
            e("v_cvt_pk_bf16_f32 v%d, v36, v37" % (pk + sb))
        e("s_mov_b32 s%d, 0x%x" % (S_OFF, (8 * i + jj) * 65536))
        e("buffer_store_dwordx2 %s, v29, s[%d:%d], s%d offen%s" % (vr(pk, 2), S_WS, S_WS + 3, S_OFF, sc))
        e.vm_issue("ust")

def entry_common(e):
    e("v_and_b32 v%d, 63, v0" % V_LANE)
    e("v_lshrrev_b32 v2, 6, v0")
    e("s_nop 0")
    e("v_readfirstlane_b32 s%d, v2" % S_WAVE)
    e("s_nop 3")

def kernel1(e, cfg):
    e.raw(".text"); e.raw(".globl k1_kernel"); e.raw(".p2align 8"); e.raw(".type k1_kernel,@function"); e.label("k1_kernel")
    e("s_cmp_ge_u32 s2, 256")
    e("s_cbranch_scc1 K1_END")
    kernarg_loads(e, None)
    entry_common(e)
    e("s_and_b32 s%d, s%d, 3" % (S_WF, S_WAVE))
    e("s_lshr_b32 s%d, s%d, 2" % (S_WT, S_WAVE))
    e("s_and_b32 s41, s2, 7")
    e("s_lshr_b32 s42, s2, 3")
    e("s_cmp_ge_u32 s42, 28")
    e("s_cbranch_scc1 K1_DFT")
    e("s_mul_i32 s43, s42, 37")
    e("s_lshr_b32 s43, s43, 8")
    e("s_mul_i32 s76, s43, 7")
    e("s_sub_u32 s76, s42, s76")
    e("s_lshr_b32 s77, s41, 1")
    e("s_lshl_b32 s77, s77, 2")
    e("s_add_u32 s%d, s77, s43" % S_R)
    e("s_and_b32 s77, s41, 1")
    e("s_mul_i32 s77, s77, 7")
    e("s_add_u32 s%d, s77, s76" % S_FB)
    sv = list(e.vm);
    phase1_body(e, cfg, True)
    stamp_store(e, cfg, 4, 0)
    e("s_endpgm")
    e.vm = []
    e.label("K1_DFT")
    e("s_sub_u32 s42, s42, 28")
    e("s_and_b32 s%d, s41, 1" % S_EH)
    e("s_lshr_b32 s77, s41, 1")
    e("s_lshl_b32 s77, s77, 2")
    e("s_add_u32 s%d, s77, s42" % S_QG)
    phase1_body(e, cfg, False)
    stamp_store(e, cfg, 4, 0)
    e.label("K1_END")
    e("s_endpgm")

P2_ACC = 64
P2_H = 96
P2_A = 208
P2_U = 224
P2_T = 240
SLICE = 40960
def phase2_body(e, cfg):
    sc = " sc1" if cfg.fused else ""
    L = V_LANE
    e("s_and_b32 s60, s%d, 3" % S_WAVE)
    e("s_lshr_b32 s61, s%d, 2" % S_WAVE)
    KSL, NB = 60, 61
    e("v_lshrrev_b32 v2, 3, v%d" % L)
    e("v_bfe_u32 v3, v%d, 4, 1" % L)
    e("v_lshlrev_b32 v3, 2, v3")
    e("v_and_b32 v4, 7, v%d" % L)
    e("v_xor_b32 v3, v3, v4")
    e("v_lshlrev_b32 v3, 4, v3")
    e("s_mul_i32 s41, s%d, 448" % KSL)
    e("s_lshl_b32 s42, s%d, 3" % NB)
    e("s_add_u32 s41, s41, s42")
    e("v_add_u32 v2, s41, v2")
    e("s_movk_i32 s42, 896")
    e("v_mul_lo_u32 v2, v2, s42")
    e("s_lshl_b32 s41, s%d, 7" % S_C)
    e("v_add3_u32 v10, v2, v3, s41")
    e("s_mul_i32 s62, s%d, %d" % (KSL, SLICE))
    e("s_lshl_b32 s41, s%d, 10" % NB)
    e("s_add_u32 s62, s62, s41")
    def dma_wd(kk, pos):
        dma(e, S_WD, 10, pos * 2048, 62, kk * 16 * 896, ("wd", kk))
    e("v_and_b32 v2, 15, v%d" % L)
    e("v_lshrrev_b32 v3, 2, v2")
    e("v_lshrrev_b32 v4, 5, v%d" % L)
    e("v_lshlrev_b32 v5, 2, v4")
    e("v_add_u32 v5, v5, v3")
    e("v_lshlrev_b32 v5, 7, v5")
    e("v_bfe_u32 v6, v2, 3, 1")
    e("v_lshlrev_b32 v6, 6, v6")
    e("v_bfe_u32 v7, v%d, 4, 1" % L)
    e("v_lshlrev_b32 v7, 5, v7")
    e("v_and_b32 v8, 3, v2")
    e("v_lshlrev_b32 v8, 3, v8")
    e("v_add3_u32 v5, v5, v6, v7")
    e("v_add_u32 v5, v5, v8")
    e("s_mul_i32 s41, s%d, %d" % (KSL, SLICE))
    e("v_add_u32 v11, s41, v5")
    e("v_xor_b32 v12, 64, v11")
    e("s_mul_i32 s41, s%d, 112" % S_T1)
    e("s_mul_i32 s42, s%d, 28" % KSL)
    e("s_add_u32 s41, s41, s42")
    e("s_lshl_b32 s41, s41, 1")
    e("s_add_u32 s41, s41, s%d" % NB)
    e("s_lshl_b32 s41, s41, 10")
    e("v_lshlrev_b32 v13, 4, v%d" % L)
    e("v_add_u32 v13, s41, v13")
    def load_h(kk):
        e("s_mov_b32 s%d, 0x%x" % (S_OFF, kk * 2048))
        e("buffer_load_dwordx4 %s, v13, s[%d:%d], s%d offen%s" % (vr(P2_H + 4 * kk, 4), S_WS, S_WS + 3, S_OFF, sc))
        e.vm_issue(("h", kk))
    for kk in range(10): dma_wd(kk, kk)
    return dict(KSL=KSL, NB=NB, dma_wd=dma_wd, load_h=load_h, sc=sc)

def phase2_main(e, cfg, P):
    KSL, NB, dma_wd, load_h, sc = P["KSL"], P["NB"], P["dma_wd"], P["load_h"], P["sc"]
    L = V_LANE
    e("v_and_b32 v14, 31, v%d" % L)
    e("s_lshl_b32 s41, s%d, 6" % S_T1)
    e("s_lshl_b32 s42, s%d, 5" % NB)
    e("s_add_u32 s41, s41, s42")
    e("v_add_u32 v2, s41, v14")
    e("v_lshlrev_b32 v2, 2, v2")
    e("v_add_u32 v2, 0x%x, v2" % GBUF)
    e("buffer_load_dword v15, v2, s[%d:%d], 0 offen%s" % (S_WS, S_WS + 3, sc))
    e.vm_issue("g")
    for kk in range(10): load_h(kk)
    for kk in range(10, 20): dma_wd(kk, kk)
    for kk in range(10, 28): load_h(kk)
    e("s_cmp_ge_u32 s%d, 4" % S_C)
    e("s_cselect_b32 s63, 1, 0")
    e("s_sub_u32 s64, 32, s%d" % S_T1)
    e("s_and_b32 s64, s64, 31")
    e("s_cmp_eq_u32 s63, 1")
    e("s_cselect_b32 s64, s64, s%d" % S_T1)
    e("v_lshrrev_b32 v4, 5, v%d" % L)
    e("s_lshl_b32 s41, s%d, 6" % S_C)
    for mb in range(2):
        e("v_add_u32 v2, s41, v14")
        if mb: e("v_add_u32 v2, 32, v2")
        e("v_sub_u32 v3, 448, v2")
        e("s_cmp_eq_u32 s63, 1")
        e("s_cselect_b64 vcc, -1, 0")
        e("s_nop 1")
        e("v_cndmask_b32 v2, v2, v3, vcc")
        e("v_lshlrev_b32 v2, 3, v2")
        e("v_lshlrev_b32 v3, 12, v4")
        e("v_add_u32 v%d, v2, v3" % (16 + mb))
    e("s_lshl_b32 s41, s64, 5")
    e("s_lshl_b32 s42, s%d, 3" % KSL)
    e("s_add_u32 s41, s41, s42")
    e("s_lshl_b32 s41, s41, 11")
    e("s_add_u32 s65, s41, 0x%x" % UBUF)
    for u in range(2):
        if u == 1: e("s_add_u32 s65, s65, %d" % (4 * 2048))
        for mb in range(2):
            for hq in range(2):
                e("buffer_load_dwordx2 %s, v%d, s[%d:%d], s65 offen offset:%d%s" % (vr(P2_U + 8 * u + 4 * mb + 2 * hq, 2), 16 + mb, S_WS, S_WS + 3, hq * 2048, sc))
                e.vm_issue("u")
    for i in range(32):
        e("v_mov_b32 v%d, 0" % (P2_ACC + i))
    def reads(kk, pos):
        b = P2_A + 8 * (kk & 1)
        for mb in range(2):
            for ip in range(2):
                e("ds_read_b64_tr_b16 %s, v%d offset:%d" % (vr(b + 4 * mb + 2 * ip, 2), 11 + mb, pos * 2048 + ip * 1024))
    def pos_of(kk): return kk if kk < 20 else kk - 20
    e.vm_wait([("wd", k) for k in range(10)])
    e("s_barrier")
    stamp(e, cfg, 1)
    reads(0, 0)
    for kk in range(28):
        if kk == 10 - 1:
            pass
        nxt = kk + 1
        boundary = nxt in (10, 20)
        if nxt < 28 and not boundary:
            reads(nxt, pos_of(nxt))
            e("s_waitcnt lgkmcnt(4)")
        else:
            e("s_waitcnt lgkmcnt(0)")
        e.vm_wait([("h", kk)])
        b = P2_A + 8 * (kk & 1)
        for mb in range(2):
            mfma(e, P2_ACC + 16 * mb, b + 4 * mb, P2_H + 4 * kk)
        if boundary:
            if nxt == 10:
                e.vm_wait([("wd", k) for k in range(10, 20)])
                e("s_barrier")
                for k in range(20, 28): dma_wd(k, k - 20)
            else:
                e.vm_wait([("wd", k) for k in range(20, 28)])
                e("s_barrier")
            reads(nxt, pos_of(nxt))
    stamp(e, cfg, 2)
    e.vm_wait(["g", "u"])
    e("s_cmp_lg_u32 s%d, 0" % S_T1)
    e("s_cselect_b32 s41, s63, 0")
    e("s_lshl_b32 s42, s%d, 5" % NB)
    e("s_add_u32 s41, s41, s42")
    e("v_add_u32 v2, s41, v14")
    e("v_lshrrev_b32 v4, 5, v%d" % L)
    e("v_lshlrev_b32 v4, 2, v4")
    e("s_lshl_b32 s41, s63, 31")
    e("v_xor_b32 v18, s41, v15")
    e("s_mov_b32 s42, 0x%08x" % f2u(1.0 / 64))
    e("s_lshl_b32 s43, s%d, 4" % KSL)
    for u in range(2):
        for q in range(4):
            e("v_add_u32 v3, s43, v4")
            e("v_add_u32 v3, %d, v3" % (8 * u + q))
            e("v_mul_u32_u24 v3, v3, v2")
            e("v_and_b32 v3, 63, v3")
            e("v_cvt_f32_u32 v3, v3")
            e("v_mul_f32 v3, s42, v3")
            e("v_cos_f32 v5, v3")
            e("v_sin_f32 v6, v3")
            e("s_nop 0")
            e("v_mul_f32 v5, v5, v15")
            e("v_mul_f32 v6, v6, v18")
            e("v_cvt_pk_bf16_f32 v%d, v5, v6" % (P2_T + 4 * u + q))
    e("v_sub_f32 v19, 1.0, v15")
    e("s_nop 7"); e("s_nop 3")
    for i in range(32):
        e("v_mul_f32 v%d, v19, v%d" % (P2_ACC + i, P2_ACC + i))
    e("s_nop 1")
    for u in range(2):
        for mb in range(2):
            mfma(e, P2_ACC + 16 * mb, P2_U + 8 * u + 4 * mb, P2_T + 4 * u)
    e("s_barrier")
    e("v_lshlrev_b32 v2, 4, v%d" % L)
    e("s_lshl_b32 s41, s%d, 13" % S_WAVE)
    e("v_add_u32 v3, s41, v2")
    e("s_nop 7"); e("s_nop 3")
    for qd in range(4):
        for hf in range(2):
            e("ds_write_b128 v3, %s offset:%d" % (vr(P2_ACC + 8 * qd + 4 * hf, 4), qd * 2048 + hf * 1024))
    e("s_waitcnt lgkmcnt(0)")
    e("s_barrier")
    e("s_lshl_b32 s41, s%d, 15" % NB)
    e("s_lshl_b32 s42, s%d, 11" % KSL)
    e("s_add_u32 s41, s41, s42")
    e("v_add_u32 v3, s41, v2")
    for k in range(4):
        for hf in range(2):
            e("ds_read_b128 %s, v3 offset:%d" % (vr(96 + 8 * k + 4 * hf, 4), k * 8192 + hf * 1024))
    e("s_waitcnt lgkmcnt(0)")
    for q in range(8):
        e("v_add_f32 v%d, v%d, v%d" % (96 + q, 96 + q, 104 + q))
        e("v_add_f32 v%d, v%d, v%d" % (112 + q, 112 + q, 120 + q))
    for q in range(8):
        e("v_add_f32 v%d, v%d, v%d" % (96 + q, 96 + q, 112 + q))
    for q in range(4):
        e("v_cvt_pk_bf16_f32 v%d, v%d, v%d" % (128 + q, 96 + 2 * q, 96 + 2 * q + 1))
    e("s_nop 1")
    e("v_permlane32_swap_b32 v128, v130")
    e("v_permlane32_swap_b32 v129, v131")
    e("s_lshl_b32 s41, s%d, 5" % NB)
    e("v_add_u32 v2, s41, v14")
    e("v_lshlrev_b32 v2, 5, v2")
    e("v_add_u32 v2, s%d, v2" % S_T1)
    e("s_movk_i32 s42, 896")
    e("v_mul_lo_u32 v2, v2, s42")
    e("s_lshl_b32 s41, s%d, 7" % S_C)
    e("s_lshl_b32 s42, s%d, 5" % KSL)
    e("s_add_u32 s41, s41, s42")
    e("v_lshrrev_b32 v4, 5, v%d" % L)
    e("v_lshlrev_b32 v4, 4, v4")
    e("v_add3_u32 v2, v2, v4, s41")
    e("buffer_store_dwordx4 v[128:131], v2, s[%d:%d], 0 offen" % (S_OUT, S_OUT + 3))
    stamp(e, cfg, 3)

def kernel2(e, cfg):
    e.raw(".text"); e.raw(".globl k2_kernel"); e.raw(".p2align 8"); e.raw(".type k2_kernel,@function"); e.label("k2_kernel")
    e.vm = []
    e("s_cmp_ge_u32 s2, 256")
    e("s_cbranch_scc1 K2_END")
    e("s_lshr_b32 s42, s2, 3")
    e("s_cmp_ge_u32 s42, 28")
    e("s_cbranch_scc1 K2_END")
    kernarg_loads(e, None)
    entry_common(e)
    e("s_and_b32 s41, s2, 7")
    e("s_mul_i32 s43, s42, 37")
    e("s_lshr_b32 s43, s43, 8")
    e("s_mul_i32 s76, s43, 7")
    e("s_sub_u32 s%d, s42, s76" % S_C)
    e("s_lshl_b32 s41, s41, 2")
    e("s_add_u32 s%d, s41, s43" % S_T1)
    e("s_waitcnt lgkmcnt(0)")
    srd(e, S_WS, 74, WS_BYTES)
    srd(e, S_OUT, 46, 1835008)
    srd(e, S_WD, 56, 1605632)
    stamp(e, cfg, 0)
    P = phase2_body(e, cfg)
    phase2_main(e, cfg, P)
    stamp_store(e, cfg, 4, 0x40000)
    e.label("K2_END")
    e("s_endpgm")

def descriptor(name, lds=0):
    return """.section .rodata,"a"
.p2align 6
.amdhsa_kernel %s
  .amdhsa_next_free_vgpr 256
  .amdhsa_next_free_sgpr 102
  .amdhsa_accum_offset 256
  .amdhsa_group_segment_fixed_size 0
  .amdhsa_kernarg_size 104
  .amdhsa_user_sgpr_count 2
  .amdhsa_user_sgpr_kernarg_segment_ptr 1
  .amdhsa_system_sgpr_workgroup_id_x 1
.end_amdhsa_kernel
""" % name

def main():
    cfg = Cfg()
    out = sys.argv[1]
    for a in sys.argv[2:]:
        if a == "diag": cfg.diag = True
        if a == "fused": cfg.fused = True
        if a.startswith("no") or a in ("dbg",): cfg.x = cfg.x | {a}
    e = Em()
    hdr = "; generated by gen.py\n"
    hdr += "; @launch kernel=k1_kernel grid=(256,1,1) block=(512,1,1) lds=163840\n"
    hdr += "; @launch kernel=k2_kernel grid=(256,1,1) block=(512,1,1) lds=163840\n"
    hdr += '.amdgcn_target "amdgcn-amd-amdhsa--gfx950"\n'
    kernel1(e, cfg)
    kernel2(e, cfg)
    txt = hdr + e.text() + descriptor("k1_kernel") + descriptor("k2_kernel")
    open(out, "w").write(txt)
if __name__ == "__main__":
    main()
```

```python
import sys, math, struct

def f2u(f): return struct.unpack("<I", struct.pack("<f", f))[0]

class Em:
    def __init__(self):
        self.lines = []
        self.vm = []
        self.lg = []
        self.nlab = 0
    def __call__(self, s): self.lines.append("    " + s)
    def raw(self, s): self.lines.append(s)
    def label(self, s): self.lines.append(s + ":")
    def newlabel(self, p):
        self.nlab += 1
        return "%s_%d" % (p, self.nlab)
    def vm_issue(self, tag): self.vm.append(tag)
    def vm_wait(self, tags):
        last = -1
        for i, t in enumerate(self.vm):
            if t in tags: last = i
        if last < 0: return
        n = len(self.vm) - 1 - last
        assert n <= 63, n
        self("s_waitcnt vmcnt(%d)" % n)
        self.vm = self.vm[last + 1:]
    def vm_wait_all(self):
        self("s_waitcnt vmcnt(0)"); self.vm = []
    def lg_issue(self, tag): self.lg.append(tag)
    def lg_wait(self, tags):
        last = -1
        for i, t in enumerate(self.lg):
            if t in tags: last = i
        if last < 0: return
        n = len(self.lg) - 1 - last
        assert n <= 15, n
        self("s_waitcnt lgkmcnt(%d)" % n)
        self.lg = self.lg[last + 1:]
    def lg_wait_all(self):
        self("s_waitcnt lgkmcnt(0)"); self.lg = []
    def text(self): return "\n".join(self.lines) + "\n"

def vr(a, n=1): return "v%d" % a if n == 1 else "v[%d:%d]" % (a, a + n - 1)

HBUF = 0
UBUF = 0x700000
GBUF = 0x900000
DIAG = 0xA00000
WS_BYTES = 0x1000000
LOG2E = 1.4426950408889634

S_X = 8; S_WA = 12; S_WB = 16; S_WS = 20; S_GW = 24; S_OUT = 28; S_WD = 32; S_DBG = 36
S_WAVE = 40
S_R = 60; S_FB = 61; S_QG = 62; S_EH = 63
S_WF = 64; S_LW = 65
S_LDSW = 66; S_LDSX = 67
S_OFF = 68
S_T1 = 70; S_C = 71
S_STAMP = 80
V_LANE = 1

class Cfg:
    fused = False
    diag = False
    x = set()

def kernarg_loads(e):
    e("s_load_dwordx2 s[44:45], s[0:1], 0")
    e("s_load_dwordx4 s[48:51], s[0:1], 24")
    e("s_load_dwordx4 s[52:55], s[0:1], 48")
    e("s_load_dwordx4 s[56:59], s[0:1], 64")
    e("s_load_dwordx2 s[46:47], s[0:1], 80")
    e("s_load_dwordx4 s[72:75], s[0:1], 88")

def srd(e, dst, lo, nbytes):
    e("s_mov_b32 s%d, s%d" % (dst, lo))
    e("s_and_b32 s%d, s%d, 0xffff" % (dst + 1, lo + 1))
    e("s_mov_b32 s%d, 0x%x" % (dst + 2, nbytes))
    e("s_mov_b32 s%d, 0x20000" % (dst + 3))

NSTAMP = 6
def stamp(e, cfg, k):
    if cfg.diag:
        assert not e.lg
        e("s_memrealtime s[%d:%d]" % (S_STAMP + 2 * k, S_STAMP + 2 * k + 1))
        if k in (1, 2):
            e("s_memtime s[%d:%d]" % (S_STAMP + 12 + 2 * (k - 1), S_STAMP + 13 + 2 * (k - 1)))
        e("s_waitcnt lgkmcnt(0)")

def stamp_store(e, cfg, slot_base):
    if not cfg.diag: return
    e("s_lshl_b32 s41, s2, 3")
    e("s_add_u32 s41, s41, s%d" % S_WAVE)
    e("s_lshl_b32 s41, s41, 6")
    e("s_add_u32 s41, s41, 0x%x" % (DIAG + slot_base))
    e("v_mov_b32 v1, s41")
    for k in range(NSTAMP + 2):
        e("v_mov_b32 v2, s%d" % (S_STAMP + 2 * k))
        e("buffer_store_dword v2, v1, s[%d:%d], 0 offen offset:%d" % (S_WS, S_WS + 3, 4 * k))
        e("s_nop 1")
    e("s_waitcnt vmcnt(0)")

def mfma(e, d, a, b, c=None):
    cs = vr(d, 16) if c is None else c
    e("v_mfma_f32_32x32x16_bf16 %s, %s, %s, %s" % (vr(d, 16), vr(a, 4), vr(b, 4), cs))

def dma(e, srdreg, vaddr, ldsconst, sldswave, soff, tag):
    e("s_add_u32 m0, s%d, 0x%x" % (sldswave, ldsconst))
    e("s_mov_b32 s%d, 0x%x" % (S_OFF, soff))
    e("buffer_load_dwordx4 v%d, s[%d:%d], s%d offen lds" % (vaddr, srdreg, srdreg + 3, S_OFF))
    e.vm_issue(tag)

XSLOT = 16384; NX = 4
WBASE = 65536; NW = 6; WSLOT = 16384
ACC = 64
def accA(i): return ACC + 16 * i
def accB(i): return ACC + 64 + 16 * i
FR = 192
V_XA = 10
V_WA = 14
CONST_LDS = 0

def p1_consumer_addr(e, is_h):
    L = V_LANE; T = 26
    e("v_and_b32 v%d, 31, v%d" % (T, L))
    e("v_lshrrev_b32 v%d, 5, v%d" % (T + 1, L))
    e("v_lshrrev_b32 v%d, 1, v%d" % (T + 2, T))
    e("v_and_b32 v%d, 7, v%d" % (T + 2, T + 2))
    e("v_lshlrev_b32 v%d, 7, v%d" % (T + 3, T))
    if not is_h:
        e("s_lshl_b32 s41, s%d, 5" % S_WF)
        e("v_add_u32 v%d, s41, v%d" % (T + 5, T))
        e("v_lshlrev_b32 v%d, 7, v%d" % (T + 5, T + 5))
        e("v_add_u32 v%d, 0x%x, v%d" % (T + 5, WBASE, T + 5))
    for k in range(4):
        e("v_add_u32 v%d, %d, v%d" % (T + 4, 2 * k, T + 1))
        e("v_xor_b32 v%d, v%d, v%d" % (T + 4, T + 4, T + 2))
        e("v_lshlrev_b32 v%d, 4, v%d" % (T + 4, T + 4))
        e("v_add_u32 v%d, v%d, v%d" % (V_XA + k, T + 3, T + 4))
        if not is_h:
            e("v_add_u32 v%d, v%d, v%d" % (V_WA + k, T + 5, T + 4))
            e("v_add_u32 v%d, 0x10000, v%d" % (V_WA + 4 + k, V_WA + k))
    if is_h:
        e("v_and_b32 v%d, 15, v%d" % (T + 4, L))
        e("v_lshrrev_b32 v%d, 2, v%d" % (T + 5, T + 4))
        e("v_lshlrev_b32 v%d, 3, v%d" % (T + 6, T + 1))
        e("v_add_u32 v%d, v%d, v%d" % (T + 6, T + 6, T + 5))
        e("v_lshlrev_b32 v%d, 8, v%d" % (T + 6, T + 6))
        e("v_xor_b32 v%d, s%d, v%d" % (T + 7, S_WF, T + 5))
        e("v_lshlrev_b32 v%d, 6, v%d" % (T + 7, T + 7))
        e("v_add_u32 v%d, v%d, v%d" % (T + 6, T + 6, T + 7))
        e("v_bfe_u32 v%d, v%d, 4, 1" % (T + 7, L))
        e("v_lshlrev_b32 v%d, 5, v%d" % (T + 7, T + 7))
        e("v_add_u32 v%d, v%d, v%d" % (T + 6, T + 6, T + 7))
        e("v_and_b32 v%d, 3, v%d" % (T + 7, T + 4))
        e("v_lshlrev_b32 v%d, 3, v%d" % (T + 7, T + 7))
        e("v_add_u32 v%d, v%d, v%d" % (T + 6, T + 6, T + 7))
        e("v_add_u32 v%d, 0x%x, v%d" % (V_WA, WBASE, T + 6))
        e("v_add_u32 v%d, 0x%x, v%d" % (V_WA + 1, WBASE + 0x10000, T + 6))

def p1_reads(kap, is_h):
    base = FR + 24 * (kap & 1)
    c = kap >> 2; kk4 = kap & 3
    def xr(nb): return (("X", kap, nb), "ds_read_b128 %s, v%d offset:%d" % (vr(base + 4 * nb, 4), V_XA + kk4, (c % NX) * XSLOT + nb * 4096))
    if is_h:
        j = kap >> 1; kk = kap & 1
        slot = (j % NW) * WSLOT
        va = V_WA + (1 if slot >= 0x10000 else 0); so = slot & 0xffff
        def wr(m, ip): return (("W", kap, m), "ds_read_b64_tr_b16 %s, v%d offset:%d" % (vr(base + 16 + 4 * m + 2 * ip, 2), va, so + m * 8192 + (16 * kk + 4 * ip) * 256))
        return [wr(0, 0), wr(0, 1), xr(0), wr(1, 0), wr(1, 1), xr(1), xr(2), xr(3)]
    else:
        slot = (c % 3) * 32768
        va = V_WA + kk4 + (4 if slot >= 0x10000 else 0); so = slot & 0xffff
        def wr(m): return (("W", kap, m), "ds_read_b128 %s, v%d offset:%d" % (vr(base + 16 + 4 * m, 4), va, so + m * 16384))
        return [wr(0), xr(0), wr(1), xr(1), xr(2), xr(3)]

def p1_consumer(e, cfg, is_h):
    p1_consumer_addr(e, is_h)
    e("s_waitcnt lgkmcnt(0)")
    srd(e, S_WS, 74, WS_BYTES)
    stamp(e, cfg, 0)
    e("s_barrier")
    stamp(e, cfg, 1)
    for tag, txt in p1_reads(0, is_h):
        e(txt); e.lg_issue(tag)
    for kap in range(28):
        base = FR + 24 * (kap & 1)
        nxt = p1_reads(kap + 1, is_h) if kap + 1 < 28 else []
        for n in range(8):
            nb = n >> 1; m = n & 1
            e.lg_wait([("W", kap, m), ("X", kap, nb)])
            d = accA(nb) if m == 0 else accB(nb)
            W = base + 16 + 4 * m; X = base + 4 * nb
            c = "0" if kap == 0 else None
            if "nomfma" not in cfg.x:
                if is_h: mfma(e, d, W, X, c)
                else: mfma(e, d, X, W, c)
            if nxt and n < len(nxt) + (0 if is_h else 0):
                if n < len(nxt):
                    tag, txt = nxt[n]
                    e(txt); e.lg_issue(tag)
        if (kap & 1) and kap < 27:
            e("s_barrier")
    assert not e.lg
    stamp(e, cfg, 2)

def h_epilogue(e, cfg):
    sc = " sc1" if cfg.fused else ""
    e("s_lshl_b32 s41, s%d, 1" % S_R)
    e("s_mul_i32 s41, s41, 112")
    e("s_lshl_b32 s42, s%d, 2" % S_FB)
    e("s_add_u32 s42, s42, s%d" % S_WF)
    e("s_lshl_b32 s42, s42, 1")
    e("s_add_u32 s41, s41, s42")
    e("s_lshl_b32 s41, s41, 11")
    e("v_lshlrev_b32 v26, 4, v%d" % V_LANE)
    e("v_add_u32 v26, s41, v26")
    e("v_add_u32 v27, 0x%x, v26" % (112 * 2048))
    e("s_mov_b32 s42, 0x%08x" % f2u(-LOG2E))
    e("s_mov_b32 s43, s42")
    e("s_mov_b32 s44, 1.0")
    e("s_mov_b32 s45, 1.0")
    e("s_nop 7")
    grp = 0
    for nb in range(4):
        for hf in range(2):
            outb = FR + 4 * (grp % 8); grp += 1
            A = accA(nb) + 8 * hf; B = accB(nb) + 8 * hf
            for q in range(0, 8, 2):
                e("v_pk_mul_f32 %s, %s, s[42:43]" % (vr(A + q, 2), vr(A + q, 2)))
            for q in range(8):
                e("v_exp_f32 v%d, v%d" % (A + q, A + q))
            for q in range(0, 8, 2):
                e("v_pk_add_f32 %s, %s, s[44:45]" % (vr(A + q, 2), vr(A + q, 2)))
            for q in range(8):
                e("v_rcp_f32 v%d, v%d" % (A + q, A + q))
            for q in range(0, 8, 2):
                e("v_pk_mul_f32 %s, %s, %s" % (vr(A + q, 2), vr(A + q, 2), vr(B + q, 2)))
            for q2 in range(4):
                e("v_cvt_pk_bf16_f32 v%d, v%d, v%d" % (outb + q2, A + 2 * q2, A + 2 * q2 + 1))
            e("buffer_store_dwordx4 %s, v%d, s[%d:%d], 0 offen offset:%d%s" % (vr(outb, 4), 26 + (nb >> 1), S_WS, S_WS + 3, hf * 2048 + (nb & 1) * 1024, sc))
            e.vm_issue("hst")

def d_epilogue(e, cfg):
    sc = " sc1" if cfg.fused else ""
    L = V_LANE
    ZB = [192, 208, 224, 240]
    e("s_nop 7"); e("s_nop 3")
    for sb in range(4):
        for hf in range(2):
            for pr in range(4):
                q = 8 * hf + 2 * pr
                e("v_cvt_pk_bf16_f32 v%d, v%d, v%d" % (ZB[sb] + 4 * hf + pr, accA(sb) + q, accA(sb) + q + 1))
                e("v_cvt_pk_bf16_f32 v%d, v%d, v%d" % (ZB[sb] + 8 + 4 * hf + pr, accB(sb) + q, accB(sb) + q + 1))
    e("s_barrier")
    e("v_lshlrev_b32 v2, 4, v%d" % L)
    def cread(sb):
        b = 10 + 24 * (sb & 1)
        for k in range(6):
            e("ds_read_b128 %s, v2 offset:%d" % (vr(b + 4 * k, 4), CONST_LDS + (sb * 6 + k) * 1024))
            e.lg_issue(("c", sb, k))
    cread(0); cread(1)
    for sb in range(4):
        b = 10 + 24 * (sb & 1)
        C0, C1, S0, S1, N0, N1 = [b + 4 * k for k in range(6)]
        ZR0, ZR1, ZI0, ZI1 = ZB[sb], ZB[sb] + 4, ZB[sb] + 8, ZB[sb] + 12
        e.lg_wait([("c", sb, k) for k in range(6)])
        mfma(e, accA(sb), C0, ZR0, "0")
        mfma(e, accB(sb), C0, ZI0, "0")
        mfma(e, accA(sb), C1, ZR1)
        mfma(e, accB(sb), C1, ZI1)
        mfma(e, accA(sb), S0, ZI0)
        mfma(e, accB(sb), N0, ZR0)
        mfma(e, accA(sb), S1, ZI1)
        mfma(e, accB(sb), N1, ZR1)
        if sb + 2 < 4:
            cread(sb + 2)
    e("s_lshl_b32 s41, s%d, 8" % S_QG)
    e("s_lshl_b32 s42, s%d, 7" % S_EH)
    e("s_add_u32 s41, s41, s42")
    e("s_lshl_b32 s42, s%d, 5" % S_WF)
    e("s_add_u32 s41, s41, s42")
    e("s_lshl_b32 s41, s41, 4")
    e("s_add_u32 s41, s41, 0x%x" % UBUF)
    e("v_and_b32 v3, 31, v%d" % L)
    e("v_lshlrev_b32 v3, 4, v3")
    e("v_lshrrev_b32 v4, 5, v%d" % L)
    e("v_lshlrev_b32 v4, 18, v4")
    e("v_add3_u32 v3, v3, v4, s41")
    e("s_nop 7"); e("s_nop 3")
    for q in range(16):
        i, jj = q >> 2, q & 3
        pk = 192 + 4 * (q % 8)
        for sb in range(4):
            e("v_cvt_pk_bf16_f32 v%d, v%d, v%d" % (pk + sb, accA(sb) + q, accB(sb) + q))
        e("s_mov_b32 s%d, 0x%x" % (S_OFF, (8 * i + jj) * 65536))
        e("buffer_store_dwordx4 %s, v3, s[%d:%d], s%d offen%s" % (vr(pk, 4), S_WS, S_WS + 3, S_OFF, sc))
        e.vm_issue("ust")

def p1_loader(e, cfg, is_h):
    L = V_LANE; T = 26
    VX = 10
    VW = 14
    e("v_lshrrev_b32 v%d, 3, v%d" % (T, L))
    e("s_lshl_b32 s41, s%d, 5" % S_LW)
    e("v_add_u32 v%d, s41, v%d" % (T, T))
    e("v_and_b32 v%d, 7, v%d" % (T + 1, L))
    e("v_lshrrev_b32 v%d, 4, v%d" % (T + 2, L))
    e("s_movk_i32 s42, 896")
    for i in range(4):
        if i: e("v_add_u32 v%d, 8, v%d" % (T, T))
        e("v_add_u32 v%d, %d, v%d" % (T + 3, (4 * i) & 7, T + 2))
        e("v_and_b32 v%d, 7, v%d" % (T + 3, T + 3))
        e("v_xor_b32 v%d, v%d, v%d" % (T + 3, T + 3, T + 1))
        e("v_lshlrev_b32 v%d, 4, v%d" % (T + 3, T + 3))
        if is_h:
            e("v_lshrrev_b32 v%d, 6, v%d" % (T + 4, T))
            e("v_and_b32 v%d, 63, v%d" % (T + 5, T))
            e("v_lshlrev_b32 v%d, 5, v%d" % (T + 5, T + 5))
            e("s_lshl_b32 s41, s%d, 1" % S_R)
            e("v_add3_u32 v%d, v%d, v%d, s41" % (T + 4, T + 4, T + 5))
        else:
            e("v_and_b32 v%d, 31, v%d" % (T + 4, T))
            e("v_lshlrev_b32 v%d, 6, v%d" % (T + 4, T + 4))
            e("v_lshrrev_b32 v%d, 5, v%d" % (T + 5, T))
            e("s_lshl_b32 s41, s%d, 2" % S_QG)
            e("v_add3_u32 v%d, v%d, v%d, s41" % (T + 4, T + 4, T + 5))
        e("v_mul_lo_u32 v%d, v%d, s42" % (T + 4, T + 4))
        e("v_add_u32 v%d, v%d, v%d" % (VX + i, T + 4, T + 3))
        if not is_h:
            e("s_lshl_b32 s41, s%d, 7" % S_EH)
            e("v_add_u32 v%d, s41, v%d" % (T + 4, T))
            e("v_mul_lo_u32 v%d, v%d, s42" % (T + 4, T + 4))
            e("v_add_u32 v%d, v%d, v%d" % (VW + i, T + 4, T + 3))
    if is_h:
        e("s_lshl_b32 s41, s%d, 3" % S_LW)
        e("v_add_u32 v%d, s41, v%d" % (T + 3, T + 2))
        e("s_movk_i32 s42, 3584")
        e("v_mul_lo_u32 v%d, v%d, s42" % (T + 3, T + 3))
        e("v_bfe_u32 v%d, v%d, 2, 2" % (T + 4, L))
        e("v_xor_b32 v%d, v%d, v%d" % (T + 4, T + 4, T + 2))
        e("v_lshlrev_b32 v%d, 6, v%d" % (T + 4, T + 4))
        e("v_and_b32 v%d, 3, v%d" % (T + 5, L))
        e("v_lshlrev_b32 v%d, 4, v%d" % (T + 5, T + 5))
        e("v_add3_u32 v%d, v%d, v%d, v%d" % (T + 3, T + 3, T + 4, T + 5))
        e("s_lshl_b32 s41, s%d, 8" % S_FB)
        e("v_add_u32 v%d, s41, v%d" % (VW, T + 3))
        e("v_add_u32 v%d, %d, v%d" % (VW + 1, 4 * 3584, VW))
        e("s_lshl_b32 s%d, s%d, 11" % (S_LDSW, S_LW))
    else:
        e("s_lshl_b32 s%d, s%d, 12" % (S_LDSW, S_LW))
    e("s_lshl_b32 s%d, s%d, 12" % (S_LDSX, S_LW))
    e("s_waitcnt lgkmcnt(0)")
    srd(e, S_X, 44, 1835008)
    if is_h:
        srd(e, S_WA, 52, 1605632); srd(e, S_WB, 54, 1605632)
    else:
        srd(e, S_WA, 48, 401408); srd(e, S_WB, 50, 401408)
    srd(e, S_WS, 74, WS_BYTES)
    srd(e, S_GW, 58, 896)
    srd(e, S_WD, 56, 1605632)
    stamp(e, cfg, 0)
    def dx(c):
        for i in range(4): dma(e, S_X, VX + i, (c % NX) * XSLOT + i * 1024, S_LDSX, c * 128, ("x", c))
    def dw(j):
        if is_h:
            for m in range(2):
                for i in range(2):
                    dma(e, S_WA if m == 0 else S_WB, VW + i, WBASE + (j % NW) * WSLOT + m * 8192 + i * 1024, S_LDSW, j * 32 * 3584, ("w", j))
        else:
            c = j
            for m in range(2):
                for i in range(4):
                    dma(e, S_WA if m == 0 else S_WB, VW + i, WBASE + (c % 3) * 32768 + m * 16384 + i * 1024, S_LDSW, c * 128, ("w", c))
    q = []
    if is_h:
        for j in range(14):
            if j % 2 == 0:
                c = j // 2
                q.append(("x", c, -1 if c < NX else 2 * (c - NX + 1)))
            q.append(("w", j, -1 if j < NW else j - NW + 1))
    else:
        for c in range(7):
            q.append(("x", c, -1 if c < NX else 2 * (c - NX + 1)))
            q.append(("w", c, -1 if c < 3 else 2 * (c - 3 + 1)))
    def cost(it): return 4 if (it[0] == "x" or is_h) else 8
    def issue(it):
        (dx if it[0] == "x" else dw)(it[1])
    def need(j):
        t = []
        for jj in (j, j + 1):
            if jj <= 13:
                t.append(("x", jj >> 1)); t.append(("w", jj if is_h else jj >> 1))
        return t
    issued = set()
    def ensure(tags):
        while q and any(t not in issued for t in tags):
            it = q.pop(0); assert it[2] <= curbar[0], (it, curbar)
            issue(it); issued.add((it[0], it[1]))
    curbar = [-1]
    gate_issue(e, cfg, is_h)
    ensure(need(0))
    budget0 = cfg.pro_extra
    while q and budget0 > 0 and q[0][2] <= -1:
        it = q.pop(0); issue(it); issued.add((it[0], it[1])); budget0 -= cost(it)
    e.vm_wait(need(0))
    e("s_barrier")
    stamp(e, cfg, 1)
    for j in range(13):
        curbar[0] = j
        ensure(need(j + 1))
        budget = cfg.stage_budget
        while q and budget > 0 and q[0][2] <= j:
            it = q.pop(0); issue(it); issued.add((it[0], it[1])); budget -= cost(it)
        if j == 9 and not is_h: dft_consts(e, cfg)
        if j == 10: gate_finish(e, cfg)
        e.vm_wait(need(j + 1))
        e("s_barrier")
    assert not q
    stamp(e, cfg, 2)
    if not is_h:
        e("v_lshlrev_b32 v2, 4, v%d" % L)
        e("s_mul_i32 s41, s%d, 6144" % S_LW)
        e("v_add_u32 v2, s41, v2")
        for k in range(6):
            e("ds_write_b128 v2, %s offset:%d" % (vr(64 + 4 * k, 4), CONST_LDS + k * 1024))
        e("s_waitcnt lgkmcnt(0)")
        e("s_barrier")

def gate_issue(e, cfg, is_h):
    if is_h:
        e("s_lshl_b32 s41, s%d, 3" % S_FB)
        e("s_mov_b32 s77, s%d" % S_R)
    else:
        e("s_lshl_b32 s41, s%d, 3" % S_EH)
        e("s_add_u32 s41, s41, 112")
        e("s_mov_b32 s77, s%d" % S_QG)
    e("s_lshl_b32 s42, s%d, 1" % S_LW)
    e("s_add_u32 s41, s41, s42")
    e("s_lshl_b32 s76, s77, 7")
    e("s_add_u32 s76, s76, s41")
    e("v_lshlrev_b32 v46, 4, v%d" % V_LANE)
    e("v_cmp_gt_u32 vcc, 56, v%d" % V_LANE)
    e("v_mov_b32 v45, 0x7fffffff")
    for u in range(2):
        e("s_add_u32 s78, s41, %d" % u)
        e("s_lshr_b32 s43, s78, 6")
        e("s_lshl_b32 s79, s77, 1")
        e("s_add_u32 s43, s43, s79")
        e("s_and_b32 s78, s78, 63")
        e("s_lshl_b32 s78, s78, 5")
        e("s_add_u32 s43, s43, s78")
        e("s_mul_i32 s43, s43, 896")
        e("v_add_u32 v47, s43, v46")
        e("v_cndmask_b32 v47, v45, v47, vcc")
        e("buffer_load_dwordx4 %s, v47, s[%d:%d], 0 offen" % (vr(48 + 4 * u, 4), S_X, S_X + 3))
        e.vm_issue("gate")
    e("buffer_load_dwordx4 v[56:59], v46, s[%d:%d], 0 offen" % (S_GW, S_GW + 3))
    e.vm_issue("gate")

def gate_finish(e, cfg):
    e.vm_wait(["gate"])
    for u in range(2):
        e("v_mov_b32 v%d, 0" % (60 + u))
    for i in range(4):
        for u in range(2):
            e("v_dot2_f32_bf16 v%d, v%d, v%d, v%d" % (60 + u, 48 + 4 * u + i, 56 + i, 60 + u))
    e("s_nop 2")
    for sh in ("row_shr:1", "row_shr:2", "row_shr:4", "row_shr:8"):
        for u in range(2):
            e("v_add_f32_dpp v%d, v%d, v%d %s row_mask:0xf bank_mask:0xf bound_ctrl:0" % (60 + u, 60 + u, 60 + u, sh))
        e("s_nop 0")
    for u in range(2):
        e("v_add_f32_dpp v%d, v%d, v%d row_bcast:15 row_mask:0xa bank_mask:0xf" % (60 + u, 60 + u, 60 + u))
    e("s_nop 0")
    for u in range(2):
        e("v_add_f32_dpp v%d, v%d, v%d row_bcast:31 row_mask:0xc bank_mask:0xf" % (60 + u, 60 + u, 60 + u))
    e("s_nop 0")
    e("v_readlane_b32 s41, v60, 63")
    e("v_readlane_b32 s42, v61, 63")
    e("s_nop 1")
    e("v_mov_b32 v60, s41")
    e("v_mov_b32 v61, s42")
    e("v_cmp_eq_u32 vcc, 1, v%d" % V_LANE)
    e("s_nop 1")
    e("v_cndmask_b32 v60, v60, v61, vcc")
    e("v_mul_f32 v60, 0x%08x, v60" % f2u(-LOG2E))
    e("v_exp_f32 v60, v60")
    e("s_nop 0")
    e("v_add_f32 v60, 1.0, v60")
    e("v_rcp_f32 v60, v60")
    e("s_lshl_b32 s44, s76, 2")
    e("s_add_u32 s44, s44, 0x%x" % GBUF)
    e("v_lshlrev_b32 v57, 2, v%d" % V_LANE)
    e("v_add_u32 v57, s44, v57")
    e("v_cmp_gt_u32 vcc, 2, v%d" % V_LANE)
    e("v_mov_b32 v45, 0x7fffffff")
    e("s_nop 0")
    e("v_cndmask_b32 v57, v45, v57, vcc")
    e("buffer_store_dword v60, v57, s[%d:%d], 0 offen%s" % (S_WS, S_WS + 3, " sc1" if cfg.fused else ""))
    e.vm_issue("gst")

def dft_consts(e, cfg):
    L = V_LANE
    e("v_and_b32 v26, 31, v%d" % L)
    e("v_lshrrev_b32 v27, 5, v%d" % L)
    e("v_lshlrev_b32 v27, 8, v27")
    e("s_lshl_b32 s41, s%d, 2" % S_QG)
    e("s_add_u32 s41, s41, s%d" % S_LW)
    e("v_add_u32 v27, s41, v27")
    e("s_mov_b32 s42, 0x%08x" % f2u(1.0 / 2048))
    for hf in range(2):
        for pr in range(4):
            for u in range(2):
                idx = 2 * pr + u
                s1c = 16 * hf + 8 * (idx >> 2) + (idx & 3)
                e("v_add_u32 v28, %d, v27" % (64 * s1c))
                e("v_mul_u32_u24 v28, v28, v26")
                e("v_and_b32 v28, 0x7ff, v28")
                e("v_cvt_f32_u32 v28, v28")
                e("v_mul_f32 v28, s42, v28")
                e("v_cos_f32 v%d, v28" % (30 + u))
                e("v_sin_f32 v%d, v28" % (32 + u))
            e("s_nop 0")
            e("v_cvt_pk_bf16_f32 v%d, v30, v31" % (64 + 4 * hf + pr))
            e("v_cvt_pk_bf16_f32 v%d, v32, v33" % (72 + 4 * hf + pr))
            e("v_xor_b32 v%d, 0x80008000, v%d" % (80 + 4 * hf + pr, 72 + 4 * hf + pr))

def entry_common(e):
    e("v_and_b32 v%d, 63, v0" % V_LANE)
    e("v_lshrrev_b32 v2, 6, v0")
    e("s_nop 0")
    e("v_readfirstlane_b32 s%d, v2" % S_WAVE)
    e("s_nop 3")

def phase1(e, cfg, after_h_consumer, after_h_loader, after_d):
    e("s_and_b32 s%d, s%d, 3" % (S_WF, S_WAVE))
    e("s_and_b32 s%d, s%d, 3" % (S_LW, S_WAVE))
    e("s_and_b32 s41, s2, 7")
    e("s_lshr_b32 s42, s2, 3")
    e("s_cmp_ge_u32 s42, 28")
    e("s_cbranch_scc1 P1_DFT")
    e("s_mul_i32 s43, s42, 37")
    e("s_lshr_b32 s43, s43, 8")
    e("s_mul_i32 s76, s43, 7")
    e("s_sub_u32 s76, s42, s76")
    e("s_lshr_b32 s77, s41, 1")
    e("s_lshl_b32 s77, s77, 2")
    e("s_add_u32 s%d, s77, s43" % S_R)
    e("s_and_b32 s77, s41, 1")
    e("s_mul_i32 s77, s77, 7")
    e("s_add_u32 s%d, s77, s76" % S_FB)
    e("s_cmp_ge_u32 s%d, 4" % S_WAVE)
    e("s_cbranch_scc1 P1_H_LOADER")
    e.vm = []; e.lg = []
    p1_consumer(e, cfg, True)
    h_epilogue(e, cfg)
    stamp(e, cfg, 3)
    after_h_consumer()
    e.label("P1_H_LOADER")
    e.vm = []; e.lg = []
    p1_loader(e, cfg, True)
    stamp(e, cfg, 3)
    after_h_loader()
    e.label("P1_DFT")
    e("s_sub_u32 s42, s42, 28")
    e("s_and_b32 s%d, s41, 1" % S_EH)
    e("s_lshr_b32 s77, s41, 1")
    e("s_lshl_b32 s77, s77, 2")
    e("s_add_u32 s%d, s77, s42" % S_QG)
    e("s_cmp_ge_u32 s%d, 4" % S_WAVE)
    e("s_cbranch_scc1 P1_D_LOADER")
    e.vm = []; e.lg = []
    p1_consumer(e, cfg, False)
    d_epilogue(e, cfg)
    stamp(e, cfg, 3)
    after_d(True)
    e.label("P1_D_LOADER")
    e.vm = []; e.lg = []
    p1_loader(e, cfg, False)
    stamp(e, cfg, 3)
    after_d(False)

P2_ACC = 64
P2_H = 96
P2_A = 208
P2_U = 224
P2_T = 240
SLICE = 40960
KSL, NB = 60, 61

def p2_setup(e, cfg):
    L = V_LANE
    e("s_and_b32 s%d, s%d, 3" % (KSL, S_WAVE))
    e("s_lshr_b32 s%d, s%d, 2" % (NB, S_WAVE))
    e("v_lshrrev_b32 v2, 3, v%d" % L)
    e("v_bfe_u32 v3, v%d, 4, 1" % L)
    e("v_lshlrev_b32 v3, 2, v3")
    e("v_and_b32 v4, 7, v%d" % L)
    e("v_xor_b32 v3, v3, v4")
    e("v_lshlrev_b32 v3, 4, v3")
    e("s_mul_i32 s41, s%d, 448" % KSL)
    e("s_lshl_b32 s42, s%d, 3" % NB)
    e("s_add_u32 s41, s41, s42")
    e("v_add_u32 v2, s41, v2")
    e("s_movk_i32 s42, 896")
    e("v_mul_lo_u32 v2, v2, s42")
    e("s_lshl_b32 s41, s%d, 7" % S_C)
    e("v_add3_u32 v10, v2, v3, s41")
    e("s_mul_i32 s62, s%d, %d" % (KSL, SLICE))
    e("s_lshl_b32 s41, s%d, 10" % NB)
    e("s_add_u32 s62, s62, s41")
    e("v_and_b32 v2, 15, v%d" % L)
    e("v_lshrrev_b32 v3, 2, v2")
    e("v_lshrrev_b32 v4, 5, v%d" % L)
    e("v_lshlrev_b32 v5, 2, v4")
    e("v_add_u32 v5, v5, v3")
    e("v_lshlrev_b32 v5, 7, v5")
    e("v_bfe_u32 v6, v2, 3, 1")
    e("v_lshlrev_b32 v6, 6, v6")
    e("v_bfe_u32 v7, v%d, 4, 1" % L)
    e("v_lshlrev_b32 v7, 5, v7")
    e("v_and_b32 v8, 3, v2")
    e("v_lshlrev_b32 v8, 3, v8")
    e("v_add3_u32 v5, v5, v6, v7")
    e("v_add_u32 v5, v5, v8")
    e("s_mul_i32 s41, s%d, %d" % (KSL, SLICE))
    e("v_add_u32 v11, s41, v5")
    e("v_xor_b32 v12, 64, v11")
    e("s_mul_i32 s41, s%d, 112" % S_T1)
    e("s_mul_i32 s42, s%d, 28" % KSL)
    e("s_add_u32 s41, s41, s42")
    e("s_lshl_b32 s41, s41, 1")
    e("s_add_u32 s41, s41, s%d" % NB)
    e("s_lshl_b32 s41, s41, 10")
    e("v_lshlrev_b32 v13, 4, v%d" % L)
    e("v_add_u32 v13, s41, v13")
    e("v_and_b32 v14, 31, v%d" % L)
    e("s_cmp_ge_u32 s%d, 4" % S_C)
    e("s_cselect_b32 s63, 1, 0")
    e("s_sub_u32 s64, 32, s%d" % S_T1)
    e("s_and_b32 s64, s64, 31")
    e("s_cmp_eq_u32 s63, 1")
    e("s_cselect_b32 s64, s64, s%d" % S_T1)
    e("v_lshrrev_b32 v4, 5, v%d" % L)
    e("s_lshl_b32 s41, s%d, 6" % S_C)
    e("s_cmp_eq_u32 s63, 1")
    e("s_cselect_b64 vcc, -1, 0")
    for mb in range(2):
        e("v_add_u32 v2, s41, v14")
        if mb: e("v_add_u32 v2, 32, v2")
        e("v_sub_u32 v3, 448, v2")
        e("v_cndmask_b32 v2, v2, v3, vcc")
        e("v_lshlrev_b32 v2, 4, v2")
        e("v_lshlrev_b32 v3, 12, v4")
        e("v_add_u32 v%d, v2, v3" % (16 + mb))
    e("s_lshl_b32 s41, s64, 4")
    e("s_lshl_b32 s42, s%d, 2" % KSL)
    e("s_add_u32 s41, s41, s42")
    e("s_lshl_b32 s41, s41, 12")
    e("s_add_u32 s65, s41, 0x%x" % UBUF)
    e("s_lshl_b32 s41, s%d, 6" % S_T1)
    e("s_lshl_b32 s42, s%d, 5" % NB)
    e("s_add_u32 s41, s41, s42")
    e("v_add_u32 v2, s41, v14")
    e("v_lshlrev_b32 v2, 2, v2")
    e("v_add_u32 v20, 0x%x, v2" % GBUF)

def p2_dma_wd(e, kk):
    st = kk >> 2
    pos = (st % 5) * 4 + (kk & 3)
    dma(e, S_WD, 10, pos * 2048, 62, kk * 16 * 896, ("wd", st))
def p2_load_h(e, cfg, kk):
    sc = " sc1" if cfg.fused else ""
    e("s_mov_b32 s%d, 0x%x" % (S_OFF, kk * 2048))
    e("buffer_load_dwordx4 %s, v13, s[%d:%d], s%d offen%s" % (vr(P2_H + 4 * kk, 4), S_WS, S_WS + 3, S_OFF, sc))
    e.vm_issue(("h", kk))
def p2_load_ug(e, cfg):
    sc = " sc1" if cfg.fused else ""
    e("buffer_load_dword v15, v20, s[%d:%d], 0 offen%s" % (S_WS, S_WS + 3, sc))
    e.vm_issue("g")
    for u in range(2):
        for mb in range(2):
            e("s_add_u32 s%d, s65, %d" % (S_OFF, u * 2 * 4096))
            e("buffer_load_dwordx4 %s, v%d, s[%d:%d], s%d offen%s" % (vr(P2_U + 8 * u + 4 * mb, 4), 16 + mb, S_WS, S_WS + 3, S_OFF, sc))
            e.vm_issue("u")

def p2_main(e, cfg, wd_pre=0):
    L = V_LANE
    def reads(kk):
        b = P2_A + 8 * (kk & 1)
        st = kk >> 2
        pos = (st % 5) * 4 + (kk & 3)
        for mb in range(2):
            for ip in range(2):
                e("ds_read_b64_tr_b16 %s, v%d offset:%d" % (vr(b + 4 * mb + 2 * ip, 2), 11 + mb, pos * 2048 + ip * 1024))
                e.lg_issue(("A", kk, mb))
    wd_next = [wd_pre]; h_next = [0]
    def issue_stage(st, what):
        if st > 6: return
        for kk in range(4 * st, 4 * st + 4):
            if "w" in what: p2_dma_wd(e, kk)
            if "h" in what: p2_load_h(e, cfg, kk)
    LA = cfg.p2_la
    for st in range(LA):
        w = "h" + ("w" if st >= wd_pre else "")
        issue_stage(st, w)
    e.vm_wait([("wd", 0), ("wd", 1)])
    e("s_barrier")
    stamp(e, cfg, 1)
    reads(0)
    for kk in range(28):
        st = kk >> 2
        if (kk & 3) == 0:
            s2 = st + LA
            if s2 <= 6:
                w = "h"
                if s2 >= wd_pre:
                    assert s2 - 5 <= st - 1
                    w += "w"
                issue_stage(s2, w)
            if st + LA == 7:
                p2_load_ug(e, cfg)
        if kk + 1 < 28: reads(kk + 1)
        e.vm_wait([("h", kk)])
        b = P2_A + 8 * (kk & 1)
        for mb in range(2):
            e.lg_wait([("A", kk, mb)])
            mfma(e, P2_ACC + 16 * mb, b + 4 * mb, P2_H + 4 * kk, "0" if kk == 0 else None)
        if (kk & 3) == 3 and st < 6:
            e.vm_wait([("wd", st + 2)])
            e("s_barrier")
    assert not e.lg
    stamp(e, cfg, 2)
    e.vm_wait(["g", "u"])
    e("s_cmp_lg_u32 s%d, 0" % S_T1)
    e("s_cselect_b32 s41, s63, 0")
    e("s_lshl_b32 s42, s%d, 5" % NB)
    e("s_add_u32 s41, s41, s42")
    e("v_add_u32 v2, s41, v14")
    e("v_lshrrev_b32 v4, 5, v%d" % L)
    e("v_lshlrev_b32 v4, 2, v4")
    e("s_lshl_b32 s41, s63, 31")
    e("v_xor_b32 v18, s41, v15")
    e("s_mov_b32 s42, 0x%08x" % f2u(1.0 / 64))
    e("s_lshl_b32 s43, s%d, 4" % KSL)
    e("v_add_u32 v4, s43, v4")
    for u in range(2):
        for q in range(4):
            e("v_add_u32 v3, %d, v4" % (8 * u + q))
            e("v_mul_u32_u24 v3, v3, v2")
            e("v_and_b32 v3, 63, v3")
            e("v_cvt_f32_u32 v3, v3")
            e("v_mul_f32 v3, s42, v3")
            e("v_cos_f32 v5, v3")
            e("v_sin_f32 v6, v3")
            e("s_nop 0")
            e("v_mul_f32 v5, v5, v15")
            e("v_mul_f32 v6, v6, v18")
            e("v_cvt_pk_bf16_f32 v%d, v5, v6" % (P2_T + 4 * u + q))
    e("v_sub_f32 v18, 1.0, v15")
    e("v_mov_b32 v19, v18")
    for i in range(0, 32, 2):
        e("v_pk_mul_f32 %s, %s, v[18:19]" % (vr(P2_ACC + i, 2), vr(P2_ACC + i, 2)))
    e("s_nop 1")
    for u in range(2):
        for mb in range(2):
            mfma(e, P2_ACC + 16 * mb, P2_U + 8 * u + 4 * mb, P2_T + 4 * u)
    e("s_barrier")
    e("v_lshlrev_b32 v2, 4, v%d" % L)
    e("s_lshl_b32 s41, s%d, 13" % S_WAVE)
    e("v_add_u32 v3, s41, v2")
    e("s_nop 7"); e("s_nop 1")
    for qd in range(4):
        for hf in range(2):
            e("ds_write_b128 v3, %s offset:%d" % (vr(P2_ACC + 8 * qd + 4 * hf, 4), qd * 2048 + hf * 1024))
    e("s_waitcnt lgkmcnt(0)")
    e("s_barrier")
    e("s_lshl_b32 s41, s%d, 15" % NB)
    e("s_lshl_b32 s42, s%d, 11" % KSL)
    e("s_add_u32 s41, s41, s42")
    e("v_add_u32 v3, s41, v2")
    for k in range(4):
        for hf in range(2):
            e("ds_read_b128 %s, v3 offset:%d" % (vr(96 + 8 * k + 4 * hf, 4), k * 8192 + hf * 1024))
    e("s_lshl_b32 s41, s%d, 5" % NB)
    e("v_add_u32 v2, s41, v14")
    e("v_lshlrev_b32 v2, 5, v2")
    e("v_add_u32 v2, s%d, v2" % S_T1)
    e("s_movk_i32 s42, 896")
    e("v_mul_lo_u32 v2, v2, s42")
    e("s_lshl_b32 s41, s%d, 7" % S_C)
    e("s_lshl_b32 s42, s%d, 5" % KSL)
    e("s_add_u32 s41, s41, s42")
    e("v_lshrrev_b32 v4, 5, v%d" % L)
    e("v_lshlrev_b32 v4, 4, v4")
    e("v_add3_u32 v2, v2, v4, s41")
    e("s_waitcnt lgkmcnt(0)")
    for q in range(0, 8, 2):
        e("v_pk_add_f32 %s, %s, %s" % (vr(96 + q, 2), vr(96 + q, 2), vr(104 + q, 2)))
        e("v_pk_add_f32 %s, %s, %s" % (vr(112 + q, 2), vr(112 + q, 2), vr(120 + q, 2)))
    for q in range(0, 8, 2):
        e("v_pk_add_f32 %s, %s, %s" % (vr(96 + q, 2), vr(96 + q, 2), vr(112 + q, 2)))
    for q in range(4):
        e("v_cvt_pk_bf16_f32 v%d, v%d, v%d" % (128 + q, 96 + 2 * q, 96 + 2 * q + 1))
    e("s_nop 1")
    e("v_permlane32_swap_b32 v128, v130")
    e("v_permlane32_swap_b32 v129, v131")
    e("buffer_store_dwordx4 v[128:131], v2, s[%d:%d], 0 offen" % (S_OUT, S_OUT + 3))
    stamp(e, cfg, 3)

def p2_role(e):
    e("s_and_b32 s41, s2, 7")
    e("s_lshr_b32 s42, s2, 3")
    e("s_mul_i32 s43, s42, 37")
    e("s_lshr_b32 s43, s43, 8")
    e("s_mul_i32 s76, s43, 7")
    e("s_sub_u32 s%d, s42, s76" % S_C)
    e("s_lshl_b32 s41, s41, 2")
    e("s_add_u32 s%d, s41, s43" % S_T1)

def header(e, name):
    e.raw(".text"); e.raw(".globl %s" % name); e.raw(".p2align 8"); e.raw(".type %s,@function" % name); e.label(name)

def kernel1(e, cfg):
    header(e, "k1_kernel")
    e("s_cmp_ge_u32 s2, 256")
    e("s_cbranch_scc1 K1_END")
    kernarg_loads(e)
    entry_common(e)
    def fin():
        stamp_store(e, cfg, 0)
        e("s_endpgm")
    phase1(e, cfg, fin, fin, lambda c: fin())
    e.label("K1_END")
    e("s_endpgm")

def kernel2(e, cfg):
    header(e, "k2_kernel")
    e.vm = []; e.lg = []
    e("s_cmp_ge_u32 s2, 256")
    e("s_cbranch_scc1 K2_END")
    e("s_lshr_b32 s42, s2, 3")
    e("s_cmp_ge_u32 s42, 28")
    e("s_cbranch_scc1 K2_END")
    kernarg_loads(e)
    entry_common(e)
    p2_role(e)
    p2_setup(e, cfg)
    e("s_waitcnt lgkmcnt(0)")
    srd(e, S_WS, 74, WS_BYTES)
    srd(e, S_OUT, 46, 1835008)
    srd(e, S_WD, 56, 1605632)
    stamp(e, cfg, 0)
    p2_main(e, cfg, 0)
    stamp_store(e, cfg, 0x40000)
    e.label("K2_END")
    e("s_endpgm")

def descriptor(name):
    return """.section .rodata,"a"
.p2align 6
.amdhsa_kernel %s
  .amdhsa_next_free_vgpr 256
  .amdhsa_next_free_sgpr 102
  .amdhsa_accum_offset 256
  .amdhsa_group_segment_fixed_size 0
  .amdhsa_kernarg_size 104
  .amdhsa_user_sgpr_count 2
  .amdhsa_user_sgpr_kernarg_segment_ptr 1
  .amdhsa_system_sgpr_workgroup_id_x 1
.end_amdhsa_kernel
""" % name

def main():
    cfg = Cfg()
    cfg.pro_extra = 8; cfg.stage_budget = 8; cfg.p2_la = 3
    out = sys.argv[1]
    for a in sys.argv[2:]:
        if a == "diag": cfg.diag = True
        elif a == "fused": cfg.fused = True
        elif "=" in a:
            k, v = a.split("="); setattr(cfg, k, int(v))
        else: cfg.x = cfg.x | {a}
    e = Em()
    hdr = "; generated by gen2.py\n"
    hdr += "; @launch kernel=k1_kernel grid=(256,1,1) block=(512,1,1) lds=163840\n"
    hdr += "; @launch kernel=k2_kernel grid=(256,1,1) block=(512,1,1) lds=163840\n"
    hdr += '.amdgcn_target "amdgcn-amd-amdhsa--gfx950"\n'
    kernel1(e, cfg)
    kernel2(e, cfg)
    txt = hdr + e.text() + descriptor("k1_kernel") + descriptor("k2_kernel")
    open(out, "w").write(txt)
if __name__ == "__main__":
    main()
```

```python
import sys, math, struct

def f2u(f): return struct.unpack("<I", struct.pack("<f", f))[0]

class Em:
    def __init__(self):
        self.lines = []
        self.vm = []
        self.lg = []
        self.nlab = 0
    def __call__(self, s): self.lines.append("    " + s)
    def raw(self, s): self.lines.append(s)
    def label(self, s): self.lines.append(s + ":")
    def newlabel(self, p):
        self.nlab += 1
        return "%s_%d" % (p, self.nlab)
    def vm_issue(self, tag): self.vm.append(tag)
    def vm_wait(self, tags):
        last = -1
        for i, t in enumerate(self.vm):
            if t in tags: last = i
        if last < 0: return
        n = len(self.vm) - 1 - last
        assert n <= 63, n
        self("s_waitcnt vmcnt(%d)" % n)
        self.vm = self.vm[last + 1:]
    def vm_wait_all(self):
        self("s_waitcnt vmcnt(0)"); self.vm = []
    def lg_issue(self, tag): self.lg.append(tag)
    def lg_wait(self, tags):
        last = -1
        for i, t in enumerate(self.lg):
            if t in tags: last = i
        if last < 0: return
        n = len(self.lg) - 1 - last
        assert n <= 15, n
        self("s_waitcnt lgkmcnt(%d)" % n)
        self.lg = self.lg[last + 1:]
    def lg_wait_all(self):
        self("s_waitcnt lgkmcnt(0)"); self.lg = []
    def text(self): return "\n".join(self.lines) + "\n"

def vr(a, n=1): return "v%d" % a if n == 1 else "v[%d:%d]" % (a, a + n - 1)

HBUF = 0
UBUF = 0x700000
GBUF = 0x900000
FLAGS = 0x910000
DIAG = 0xA00000
WS_BYTES = 0x1000000
LOG2E = 1.4426950408889634

S_X = 8; S_WA = 12; S_WB = 16; S_WS = 20; S_GW = 24; S_OUT = 28; S_WD = 32; S_DBG = 36
S_WAVE = 40
S_R = 60; S_FB = 61; S_QG = 62; S_EH = 63
S_WF = 64; S_LW = 65
S_LDSW = 66; S_LDSX = 67
S_OFF = 68
S_T1 = 70; S_C = 71
S_STAMP = 80
S_NONCE = 98; S_FLAG = 99; S_PF = 100
V_LANE = 1

class Cfg:
    fused = False
    diag = False
    x = set()

def kernarg_loads(e):
    e("s_load_dwordx2 s[44:45], s[0:1], 0")
    e("s_load_dwordx4 s[48:51], s[0:1], 24")
    e("s_load_dwordx4 s[52:55], s[0:1], 48")
    e("s_load_dwordx4 s[56:59], s[0:1], 64")
    e("s_load_dwordx2 s[46:47], s[0:1], 80")
    e("s_load_dwordx4 s[72:75], s[0:1], 88")

def srd(e, dst, lo, nbytes):
    e("s_mov_b32 s%d, s%d" % (dst, lo))
    e("s_and_b32 s%d, s%d, 0xffff" % (dst + 1, lo + 1))
    e("s_mov_b32 s%d, 0x%x" % (dst + 2, nbytes))
    e("s_mov_b32 s%d, 0x20000" % (dst + 3))

NSTAMP = 6
def stamp(e, cfg, k):
    if cfg.diag:
        assert not e.lg
        e("s_memrealtime s[%d:%d]" % (S_STAMP + 2 * k, S_STAMP + 2 * k + 1))
        if k in (1, 2) and not cfg.fused:
            e("s_memtime s[%d:%d]" % (S_STAMP + 12 + 2 * (k - 1), S_STAMP + 13 + 2 * (k - 1)))
        e("s_waitcnt lgkmcnt(0)")

def stamp_store(e, cfg, slot_base):
    if not cfg.diag: return
    e("s_lshl_b32 s41, s2, 3")
    e("s_add_u32 s41, s41, s%d" % S_WAVE)
    e("s_lshl_b32 s41, s41, 6")
    e("s_add_u32 s41, s41, 0x%x" % (DIAG + slot_base))
    e("v_mov_b32 v1, s41")
    for k in range(9 if cfg.fused else NSTAMP + 2):
        e("v_mov_b32 v2, s%d" % (S_STAMP + 2 * k))
        e("buffer_store_dword v2, v1, s[%d:%d], 0 offen offset:%d" % (S_WS, S_WS + 3, 4 * k))
        e("s_nop 1")
    e("s_waitcnt vmcnt(0)")

def mfma(e, d, a, b, c=None):
    cs = vr(d, 16) if c is None else c
    e("v_mfma_f32_32x32x16_bf16 %s, %s, %s, %s" % (vr(d, 16), vr(a, 4), vr(b, 4), cs))

NODMA = [False]
def dma(e, srdreg, vaddr, ldsconst, sldswave, soff, tag):
    if NODMA[0]:
        e.vm_issue(tag); e.vm.pop(); return
    e("s_add_u32 m0, s%d, 0x%x" % (sldswave, ldsconst))
    e("s_mov_b32 s%d, 0x%x" % (S_OFF, soff))
    e("buffer_load_dwordx4 v%d, s[%d:%d], s%d offen lds" % (vaddr, srdreg, srdreg + 3, S_OFF))
    e.vm_issue(tag)

XSLOT = 16384; NX = 4
WBASE = 65536; NW = 6; WSLOT = 16384
ACC = 64
def accA(i): return ACC + 16 * i
def accB(i): return ACC + 64 + 16 * i
FR = 192
V_XA = 10
V_WA = 14
CONST_LDS = 0

def p1_consumer_addr(e, is_h):
    L = V_LANE; T = 26
    e("v_and_b32 v%d, 31, v%d" % (T, L))
    e("v_lshrrev_b32 v%d, 5, v%d" % (T + 1, L))
    e("v_lshrrev_b32 v%d, 1, v%d" % (T + 2, T))
    e("v_and_b32 v%d, 7, v%d" % (T + 2, T + 2))
    e("v_lshlrev_b32 v%d, 7, v%d" % (T + 3, T))
    if not is_h:
        e("s_lshl_b32 s41, s%d, 5" % S_WF)
        e("v_add_u32 v%d, s41, v%d" % (T + 5, T))
        e("v_lshlrev_b32 v%d, 7, v%d" % (T + 5, T + 5))
        e("v_add_u32 v%d, 0x%x, v%d" % (T + 5, WBASE, T + 5))
    for k in range(4):
        e("v_add_u32 v%d, %d, v%d" % (T + 4, 2 * k, T + 1))
        e("v_xor_b32 v%d, v%d, v%d" % (T + 4, T + 4, T + 2))
        e("v_lshlrev_b32 v%d, 4, v%d" % (T + 4, T + 4))
        e("v_add_u32 v%d, v%d, v%d" % (V_XA + k, T + 3, T + 4))
        if not is_h:
            e("v_add_u32 v%d, v%d, v%d" % (V_WA + k, T + 5, T + 4))
            e("v_add_u32 v%d, 0x10000, v%d" % (V_WA + 4 + k, V_WA + k))
    if is_h:
        e("v_and_b32 v%d, 15, v%d" % (T + 4, L))
        e("v_lshrrev_b32 v%d, 2, v%d" % (T + 5, T + 4))
        e("v_lshlrev_b32 v%d, 3, v%d" % (T + 6, T + 1))
        e("v_add_u32 v%d, v%d, v%d" % (T + 6, T + 6, T + 5))
        e("v_lshlrev_b32 v%d, 8, v%d" % (T + 6, T + 6))
        e("v_xor_b32 v%d, s%d, v%d" % (T + 7, S_WF, T + 5))
        e("v_lshlrev_b32 v%d, 6, v%d" % (T + 7, T + 7))
        e("v_add_u32 v%d, v%d, v%d" % (T + 6, T + 6, T + 7))
        e("v_bfe_u32 v%d, v%d, 4, 1" % (T + 7, L))
        e("v_lshlrev_b32 v%d, 5, v%d" % (T + 7, T + 7))
        e("v_add_u32 v%d, v%d, v%d" % (T + 6, T + 6, T + 7))
        e("v_and_b32 v%d, 3, v%d" % (T + 7, T + 4))
        e("v_lshlrev_b32 v%d, 3, v%d" % (T + 7, T + 7))
        e("v_add_u32 v%d, v%d, v%d" % (T + 6, T + 6, T + 7))
        e("v_add_u32 v%d, 0x%x, v%d" % (V_WA, WBASE, T + 6))
        e("v_add_u32 v%d, 0x%x, v%d" % (V_WA + 1, WBASE + 0x10000, T + 6))

def p1_reads(kap, is_h):
    base = FR + 24 * (kap & 1)
    c = kap >> 2; kk4 = kap & 3
    def xr(nb): return (("X", kap, nb), "ds_read_b128 %s, v%d offset:%d" % (vr(base + 4 * nb, 4), V_XA + kk4, (c % NX) * XSLOT + nb * 4096))
    if is_h:
        j = kap >> 1; kk = kap & 1
        slot = (j % NW) * WSLOT
        va = V_WA + (1 if slot >= 0x10000 else 0); so = slot & 0xffff
        def wr(m, ip): return (("W", kap, m), "ds_read_b64_tr_b16 %s, v%d offset:%d" % (vr(base + 16 + 4 * m + 2 * ip, 2), va, so + m * 8192 + (16 * kk + 4 * ip) * 256))
        return [wr(0, 0), wr(0, 1), xr(0), wr(1, 0), wr(1, 1), xr(1), xr(2), xr(3)]
    else:
        slot = (c % 3) * 32768
        va = V_WA + kk4 + (4 if slot >= 0x10000 else 0); so = slot & 0xffff
        def wr(m): return (("W", kap, m), "ds_read_b128 %s, v%d offset:%d" % (vr(base + 16 + 4 * m, 4), va, so + m * 16384))
        return [wr(0), xr(0), wr(1), xr(1), xr(2), xr(3)]

def p1_consumer(e, cfg, is_h):
    p1_consumer_addr(e, is_h)
    e("s_waitcnt lgkmcnt(0)")
    srd(e, S_WS, 74, WS_BYTES)
    if cfg.fused:
        flag_addr(e, is_h)
        nonce_issue(e)
    stamp(e, cfg, 0)
    e("s_barrier")
    stamp(e, cfg, 1)
    for tag, txt in p1_reads(0, is_h):
        e(txt); e.lg_issue(tag)
    for kap in range(28):
        base = FR + 24 * (kap & 1)
        nxt = p1_reads(kap + 1, is_h) if kap + 1 < 28 else []
        for n in range(8):
            nb = n >> 1; m = n & 1
            e.lg_wait([("W", kap, m), ("X", kap, nb)])
            d = accA(nb) if m == 0 else accB(nb)
            W = base + 16 + 4 * m; X = base + 4 * nb
            c = "0" if kap == 0 else None
            if "no32" in cfg.x:
                for hh in range(2):
                    e("v_mfma_f32_16x16x32_bf16 %s, %s, %s, %s" % (vr(d + 8 * hh, 4), vr(W, 4), vr(X, 4), vr(d + 8 * hh, 4)))
            elif "nomfma" not in cfg.x:
                if is_h: mfma(e, d, W, X, c)
                else: mfma(e, d, X, W, c)
            if nxt and n < len(nxt):
                tag, txt = nxt[n]
                if "nolds" in cfg.x: e.lg_issue(tag); e.lg.pop()
                else:
                    e(txt); e.lg_issue(tag)
        if (kap & 1) and kap < 27:
            e("s_barrier")
        if cfg.fused and kap == 21:
            nonce_load(e)
    assert not e.lg
    if cfg.fused and is_h:
        e("s_barrier")
    if cfg.fused:
        nonce_finish(e)
    stamp(e, cfg, 2)

def h_epilogue(e, cfg):
    sc = " sc1" if cfg.fused else ""
    e("s_lshl_b32 s41, s%d, 1" % S_R)
    e("s_mul_i32 s41, s41, 112")
    e("s_lshl_b32 s42, s%d, 2" % S_FB)
    e("s_add_u32 s42, s42, s%d" % S_WF)
    e("s_lshl_b32 s42, s42, 1")
    e("s_add_u32 s41, s41, s42")
    e("s_lshl_b32 s41, s41, 11")
    e("v_lshlrev_b32 v26, 4, v%d" % V_LANE)
    e("v_add_u32 v26, s41, v26")
    e("v_add_u32 v27, 0x%x, v26" % (112 * 2048))
    e("s_mov_b32 s42, 0x%08x" % f2u(-LOG2E))
    e("s_mov_b32 s43, s42")
    e("s_mov_b32 s44, 1.0")
    e("s_mov_b32 s45, 1.0")
    e("s_nop 7")
    grp = 0
    for nb in range(4):
        for hf in range(2):
            outb = FR + 4 * (grp % 8); grp += 1
            A = accA(nb) + 8 * hf; B = accB(nb) + 8 * hf
            for q in range(0, 8, 2):
                e("v_pk_mul_f32 %s, %s, s[42:43]" % (vr(A + q, 2), vr(A + q, 2)))
            for q in range(8):
                e("v_exp_f32 v%d, v%d" % (A + q, A + q))
            for q in range(0, 8, 2):
                e("v_pk_add_f32 %s, %s, s[44:45]" % (vr(A + q, 2), vr(A + q, 2)))
            for q in range(8):
                e("v_rcp_f32 v%d, v%d" % (A + q, A + q))
            for q in range(0, 8, 2):
                e("v_pk_mul_f32 %s, %s, %s" % (vr(A + q, 2), vr(A + q, 2), vr(B + q, 2)))
            for q2 in range(4):
                e("v_cvt_pk_bf16_f32 v%d, v%d, v%d" % (outb + q2, A + 2 * q2, A + 2 * q2 + 1))
            e("buffer_store_dwordx4 %s, v%d, s[%d:%d], 0 offen offset:%d%s" % (vr(outb, 4), 26 + (nb >> 1), S_WS, S_WS + 3, hf * 2048 + (nb & 1) * 1024, sc))
            e.vm_issue("hst")

def d_epilogue(e, cfg):
    sc = " sc1" if cfg.fused else ""
    L = V_LANE
    ZB = [192, 208, 224, 240]
    e("s_nop 7"); e("s_nop 3")
    for sb in range(4):
        for hf in range(2):
            for pr in range(4):
                q = 8 * hf + 2 * pr
                e("v_cvt_pk_bf16_f32 v%d, v%d, v%d" % (ZB[sb] + 4 * hf + pr, accA(sb) + q, accA(sb) + q + 1))
                e("v_cvt_pk_bf16_f32 v%d, v%d, v%d" % (ZB[sb] + 8 + 4 * hf + pr, accB(sb) + q, accB(sb) + q + 1))
    e("s_barrier")
    e("v_lshlrev_b32 v2, 4, v%d" % L)
    def cread(sb):
        b = 10 + 24 * (sb & 1)
        for k in range(6):
            e("ds_read_b128 %s, v2 offset:%d" % (vr(b + 4 * k, 4), CONST_LDS + (sb * 6 + k) * 1024))
            e.lg_issue(("c", sb, k))
    cread(0); cread(1)
    for sb in range(4):
        b = 10 + 24 * (sb & 1)
        C0, C1, S0, S1, N0, N1 = [b + 4 * k for k in range(6)]
        ZR0, ZR1, ZI0, ZI1 = ZB[sb], ZB[sb] + 4, ZB[sb] + 8, ZB[sb] + 12
        e.lg_wait([("c", sb, k) for k in range(6)])
        mfma(e, accA(sb), C0, ZR0, "0")
        mfma(e, accB(sb), C0, ZI0, "0")
        mfma(e, accA(sb), C1, ZR1)
        mfma(e, accB(sb), C1, ZI1)
        mfma(e, accA(sb), S0, ZI0)
        mfma(e, accB(sb), N0, ZR0)
        mfma(e, accA(sb), S1, ZI1)
        mfma(e, accB(sb), N1, ZR1)
        if sb + 2 < 4:
            cread(sb + 2)
    e("s_lshl_b32 s41, s%d, 8" % S_QG)
    e("s_lshl_b32 s42, s%d, 7" % S_EH)
    e("s_add_u32 s41, s41, s42")
    e("s_lshl_b32 s42, s%d, 5" % S_WF)
    e("s_add_u32 s41, s41, s42")
    e("s_lshl_b32 s41, s41, 4")
    e("s_add_u32 s41, s41, 0x%x" % UBUF)
    e("v_and_b32 v3, 31, v%d" % L)
    e("v_lshlrev_b32 v3, 4, v3")
    e("v_lshrrev_b32 v4, 5, v%d" % L)
    e("v_lshlrev_b32 v4, 18, v4")
    e("v_add3_u32 v3, v3, v4, s41")
    e("s_nop 7"); e("s_nop 3")
    for q in range(16):
        i, jj = q >> 2, q & 3
        pk = 192 + 4 * (q % 8)
        for sb in range(4):
            e("v_cvt_pk_bf16_f32 v%d, v%d, v%d" % (pk + sb, accA(sb) + q, accB(sb) + q))
        e("s_mov_b32 s%d, 0x%x" % (S_OFF, (8 * i + jj) * 65536))
        e("buffer_store_dwordx4 %s, v3, s[%d:%d], s%d offen%s" % (vr(pk, 4), S_WS, S_WS + 3, S_OFF, sc))
        e.vm_issue("ust")

def p1_loader(e, cfg, is_h):
    L = V_LANE; T = 26
    VX = 10
    VW = 14
    e("v_lshrrev_b32 v%d, 3, v%d" % (T, L))
    e("s_lshl_b32 s41, s%d, 5" % S_LW)
    e("v_add_u32 v%d, s41, v%d" % (T, T))
    e("v_and_b32 v%d, 7, v%d" % (T + 1, L))
    e("v_lshrrev_b32 v%d, 4, v%d" % (T + 2, L))
    e("s_movk_i32 s42, 896")
    for i in range(4):
        if i: e("v_add_u32 v%d, 8, v%d" % (T, T))
        e("v_add_u32 v%d, %d, v%d" % (T + 3, (4 * i) & 7, T + 2))
        e("v_and_b32 v%d, 7, v%d" % (T + 3, T + 3))
        e("v_xor_b32 v%d, v%d, v%d" % (T + 3, T + 3, T + 1))
        e("v_lshlrev_b32 v%d, 4, v%d" % (T + 3, T + 3))
        if is_h:
            e("v_lshrrev_b32 v%d, 6, v%d" % (T + 4, T))
            e("v_and_b32 v%d, 63, v%d" % (T + 5, T))
            e("v_lshlrev_b32 v%d, 5, v%d" % (T + 5, T + 5))
            e("s_lshl_b32 s41, s%d, 1" % S_R)
            e("v_add3_u32 v%d, v%d, v%d, s41" % (T + 4, T + 4, T + 5))
        else:
            e("v_and_b32 v%d, 31, v%d" % (T + 4, T))
            e("v_lshlrev_b32 v%d, 6, v%d" % (T + 4, T + 4))
            e("v_lshrrev_b32 v%d, 5, v%d" % (T + 5, T))
            e("s_lshl_b32 s41, s%d, 2" % S_QG)
            e("v_add3_u32 v%d, v%d, v%d, s41" % (T + 4, T + 4, T + 5))
        e("v_mul_lo_u32 v%d, v%d, s42" % (T + 4, T + 4))
        e("v_add_u32 v%d, v%d, v%d" % (VX + i, T + 4, T + 3))
        if not is_h:
            e("s_lshl_b32 s41, s%d, 7" % S_EH)
            e("v_add_u32 v%d, s41, v%d" % (T + 4, T))
            e("v_mul_lo_u32 v%d, v%d, s42" % (T + 4, T + 4))
            e("v_add_u32 v%d, v%d, v%d" % (VW + i, T + 4, T + 3))
    if is_h:
        e("s_lshl_b32 s41, s%d, 3" % S_LW)
        e("v_add_u32 v%d, s41, v%d" % (T + 3, T + 2))
        e("s_movk_i32 s42, 3584")
        e("v_mul_lo_u32 v%d, v%d, s42" % (T + 3, T + 3))
        e("v_bfe_u32 v%d, v%d, 2, 2" % (T + 4, L))
        e("v_xor_b32 v%d, v%d, v%d" % (T + 4, T + 4, T + 2))
        e("v_lshlrev_b32 v%d, 6, v%d" % (T + 4, T + 4))
        e("v_and_b32 v%d, 3, v%d" % (T + 5, L))
        e("v_lshlrev_b32 v%d, 4, v%d" % (T + 5, T + 5))
        e("v_add3_u32 v%d, v%d, v%d, v%d" % (T + 3, T + 3, T + 4, T + 5))
        e("s_lshl_b32 s41, s%d, 8" % S_FB)
        e("v_add_u32 v%d, s41, v%d" % (VW, T + 3))
        e("v_add_u32 v%d, %d, v%d" % (VW + 1, 4 * 3584, VW))
        e("s_lshl_b32 s%d, s%d, 11" % (S_LDSW, S_LW))
    else:
        e("s_lshl_b32 s%d, s%d, 12" % (S_LDSW, S_LW))
    e("s_lshl_b32 s%d, s%d, 12" % (S_LDSX, S_LW))
    e("s_waitcnt lgkmcnt(0)")
    srd(e, S_X, 44, 1835008)
    if is_h:
        srd(e, S_WA, 52, 1605632); srd(e, S_WB, 54, 1605632)
    else:
        srd(e, S_WA, 48, 401408); srd(e, S_WB, 50, 401408)
    srd(e, S_WS, 74, WS_BYTES)
    srd(e, S_GW, 58, 896)
    srd(e, S_WD, 56, 1605632)
    stamp(e, cfg, 0)
    def dx(c):
        for i in range(4): dma(e, S_X, VX + i, (c % NX) * XSLOT + i * 1024, S_LDSX, c * 128, ("x", c))
    def dw(j):
        if is_h:
            for m in range(2):
                for i in range(2):
                    dma(e, S_WA if m == 0 else S_WB, VW + i, WBASE + (j % NW) * WSLOT + m * 8192 + i * 1024, S_LDSW, j * 32 * 3584, ("w", j))
        else:
            c = j
            for m in range(2):
                for i in range(4):
                    dma(e, S_WA if m == 0 else S_WB, VW + i, WBASE + (c % 3) * 32768 + m * 16384 + i * 1024, S_LDSW, c * 128, ("w", c))
    q = []
    if is_h:
        for j in range(14):
            if j % 2 == 0:
                c = j // 2
                q.append(("x", c, -1 if c < NX else 2 * (c - NX + 1)))
            q.append(("w", j, -1 if j < NW else j - NW + 1))
    else:
        for c in range(7):
            q.append(("x", c, -1 if c < NX else 2 * (c - NX + 1)))
            q.append(("w", c, -1 if c < 3 else 2 * (c - 3 + 1)))
    def cost(it): return 4 if (it[0] == "x" or is_h) else 8
    def issue(it):
        (dx if it[0] == "x" else dw)(it[1])
    def need(j):
        t = []
        for jj in (j, j + 1):
            if jj <= 13:
                t.append(("x", jj >> 1)); t.append(("w", jj if is_h else jj >> 1))
        return t
    issued = set()
    def ensure(tags):
        while q and any(t not in issued for t in tags):
            it = q.pop(0); assert it[2] <= curbar[0], (it, curbar)
            issue(it); issued.add((it[0], it[1]))
    curbar = [-1]
    ensure(need(0))
    budget0 = cfg.pro_extra
    while q and budget0 > 0 and q[0][2] <= -1:
        it = q.pop(0); issue(it); issued.add((it[0], it[1])); budget0 -= cost(it)
    e.vm_wait(need(0))
    e("s_barrier")
    stamp(e, cfg, 1)
    if "nodma" in cfg.x: NODMA[0] = True
    for j in range(13):
        curbar[0] = j
        ensure(need(j + 1))
        budget = cfg.stage_budget
        while q and budget > 0 and q[0][2] <= j:
            it = q.pop(0); issue(it); issued.add((it[0], it[1])); budget -= cost(it)
        if j == 9 and not is_h: dft_consts(e, cfg)
        if j == 7 and is_h:
            gate_issue(e, cfg, True)
            lab = e.newlabel("GX")
            e("s_cmp_ge_u32 s%d, 2" % S_FB)
            e("s_cbranch_scc1 %s" % lab)
            sv = list(e.vm)
            gate_issue(e, cfg, True, True)
            e.vm = sv
            e.label(lab)
        if j == 10 and is_h:
            e("s_waitcnt vmcnt(0)"); e.vm = []
            gate_finish(e, cfg)
            lab = e.newlabel("GY")
            e("s_cmp_ge_u32 s%d, 2" % S_FB)
            e("s_cbranch_scc1 %s" % lab)
            gate_finish(e, cfg, True)
            e.label(lab)
        if j == 11 and cfg.fused:
            e("s_waitcnt vmcnt(0)"); e.vm = []
        e.vm_wait(need(j + 1))
        e("s_barrier")
    assert not q
    NODMA[0] = False
    stamp(e, cfg, 2)
    if not is_h:
        e("v_lshlrev_b32 v2, 4, v%d" % L)
        e("s_mul_i32 s41, s%d, 6144" % S_LW)
        e("v_add_u32 v2, s41, v2")
        for k in range(6):
            e("ds_write_b128 v2, %s offset:%d" % (vr(64 + 4 * k, 4), CONST_LDS + k * 1024))
        e("s_waitcnt lgkmcnt(0)")
        e("s_barrier")

def gate_issue(e, cfg, is_h, extra=False):
    B = 40 if extra else 48
    e("s_lshl_b32 s41, s%d, 3" % S_FB)
    if extra: e("s_add_u32 s41, s41, 112")
    e("s_lshl_b32 s42, s%d, 1" % S_LW)
    e("s_add_u32 s41, s41, s42")
    e("s_lshl_b32 s78, s%d, 7" % S_R)
    e("s_add_u32 s%d, s78, s41" % (77 if extra else 76))
    e("v_lshlrev_b32 v38, 4, v%d" % V_LANE)
    e("v_cmp_gt_u32 vcc, 56, v%d" % V_LANE)
    e("v_mov_b32 v37, 0x7fffffff")
    for u in range(2):
        e("s_add_u32 s78, s41, %d" % u)
        e("s_lshr_b32 s43, s78, 6")
        e("s_lshl_b32 s79, s%d, 1" % S_R)
        e("s_add_u32 s43, s43, s79")
        e("s_and_b32 s78, s78, 63")
        e("s_lshl_b32 s78, s78, 5")
        e("s_add_u32 s43, s43, s78")
        e("s_mul_i32 s43, s43, 896")
        e("v_add_u32 v39, s43, v38")
        e("v_cndmask_b32 v39, v37, v39, vcc")
        e("buffer_load_dwordx4 %s, v39, s[%d:%d], 0 offen" % (vr(B + 4 * u, 4), S_X, S_X + 3))
        e.vm_issue("gate")
    if not extra:
        e("buffer_load_dwordx4 v[56:59], v38, s[%d:%d], 0 offen" % (S_GW, S_GW + 3))
        e.vm_issue("gate")

def gate_finish(e, cfg, extra=False):
    B = 40 if extra else 48
    e.vm_wait(["gate"])
    for u in range(2):
        e("v_mov_b32 v%d, 0" % (60 + u))
    for i in range(4):
        for u in range(2):
            e("v_dot2_f32_bf16 v%d, v%d, v%d, v%d" % (60 + u, B + 4 * u + i, 56 + i, 60 + u))
    e("s_nop 2")
    for sh in ("row_shr:1", "row_shr:2", "row_shr:4", "row_shr:8"):
        for u in range(2):
            e("v_add_f32_dpp v%d, v%d, v%d %s row_mask:0xf bank_mask:0xf bound_ctrl:0" % (60 + u, 60 + u, 60 + u, sh))
        e("s_nop 0")
    for u in range(2):
        e("v_add_f32_dpp v%d, v%d, v%d row_bcast:15 row_mask:0xa bank_mask:0xf" % (60 + u, 60 + u, 60 + u))
    e("s_nop 0")
    for u in range(2):
        e("v_add_f32_dpp v%d, v%d, v%d row_bcast:31 row_mask:0xc bank_mask:0xf" % (60 + u, 60 + u, 60 + u))
    e("s_nop 0")
    e("v_readlane_b32 s41, v60, 63")
    e("v_readlane_b32 s42, v61, 63")
    e("s_nop 1")
    e("v_mov_b32 v60, s41")
    e("v_mov_b32 v61, s42")
    e("v_cmp_eq_u32 vcc, 1, v%d" % V_LANE)
    e("s_nop 1")
    e("v_cndmask_b32 v60, v60, v61, vcc")
    e("v_mul_f32 v60, 0x%08x, v60" % f2u(-LOG2E))
    e("v_exp_f32 v60, v60")
    e("s_nop 0")
    e("v_add_f32 v60, 1.0, v60")
    e("v_rcp_f32 v60, v60")
    e("s_lshl_b32 s44, s%d, 2" % (77 if extra else 76))
    e("s_add_u32 s44, s44, 0x%x" % GBUF)
    e("v_lshlrev_b32 v62, 2, v%d" % V_LANE)
    e("v_add_u32 v62, s44, v62")
    e("v_cmp_gt_u32 vcc, 2, v%d" % V_LANE)
    e("v_mov_b32 v37, 0x7fffffff")
    e("s_nop 0")
    e("v_cndmask_b32 v62, v37, v62, vcc")
    e("buffer_store_dword v60, v62, s[%d:%d], 0 offen%s" % (S_WS, S_WS + 3, " sc1" if cfg.fused else ""))
    e.vm_issue("gst")

def dft_consts(e, cfg):
    L = V_LANE
    e("v_and_b32 v26, 31, v%d" % L)
    e("v_lshrrev_b32 v27, 5, v%d" % L)
    e("v_lshlrev_b32 v27, 8, v27")
    e("s_lshl_b32 s41, s%d, 2" % S_QG)
    e("s_add_u32 s41, s41, s%d" % S_LW)
    e("v_add_u32 v27, s41, v27")
    e("s_mov_b32 s42, 0x%08x" % f2u(1.0 / 2048))
    for hf in range(2):
        for pr in range(4):
            for u in range(2):
                idx = 2 * pr + u
                s1c = 16 * hf + 8 * (idx >> 2) + (idx & 3)
                e("v_add_u32 v28, %d, v27" % (64 * s1c))
                e("v_mul_u32_u24 v28, v28, v26")
                e("v_and_b32 v28, 0x7ff, v28")
                e("v_cvt_f32_u32 v28, v28")
                e("v_mul_f32 v28, s42, v28")
                e("v_cos_f32 v%d, v28" % (30 + u))
                e("v_sin_f32 v%d, v28" % (32 + u))
            e("s_nop 0")
            e("v_cvt_pk_bf16_f32 v%d, v30, v31" % (64 + 4 * hf + pr))
            e("v_cvt_pk_bf16_f32 v%d, v32, v33" % (72 + 4 * hf + pr))
            e("v_xor_b32 v%d, 0x80008000, v%d" % (80 + 4 * hf + pr, 72 + 4 * hf + pr))

def entry_common(e):
    e("v_and_b32 v%d, 63, v0" % V_LANE)
    e("v_lshrrev_b32 v2, 6, v0")
    e("s_nop 0")
    e("v_readfirstlane_b32 s%d, v2" % S_WAVE)
    e("s_nop 3")

def phase1(e, cfg, after_h_consumer, after_h_loader, after_d):
    e("s_and_b32 s%d, s%d, 3" % (S_WF, S_WAVE))
    e("s_and_b32 s%d, s%d, 3" % (S_LW, S_WAVE))
    e("s_and_b32 s41, s2, 7")
    e("s_lshr_b32 s42, s2, 3")
    e("s_cmp_ge_u32 s42, 28")
    e("s_cbranch_scc1 P1_DFT")
    e("s_mul_i32 s43, s42, 37")
    e("s_lshr_b32 s43, s43, 8")
    e("s_mul_i32 s76, s43, 7")
    e("s_sub_u32 s76, s42, s76")
    e("s_lshr_b32 s77, s41, 1")
    e("s_lshl_b32 s77, s77, 2")
    e("s_add_u32 s%d, s77, s43" % S_R)
    e("s_and_b32 s77, s41, 1")
    e("s_mul_i32 s77, s77, 7")
    e("s_add_u32 s%d, s77, s76" % S_FB)
    e("s_cmp_ge_u32 s%d, 4" % S_WAVE)
    e("s_cbranch_scc1 P1_H_LOADER")
    e.vm = []; e.lg = []
    p1_consumer(e, cfg, True)
    h_epilogue(e, cfg)
    stamp(e, cfg, 3)
    after_h_consumer()
    e.label("P1_H_LOADER")
    e.vm = []; e.lg = []
    p1_loader(e, cfg, True)
    stamp(e, cfg, 3)
    after_h_loader()
    e.label("P1_DFT")
    e("s_sub_u32 s42, s42, 28")
    e("s_and_b32 s%d, s41, 1" % S_EH)
    e("s_lshr_b32 s77, s41, 1")
    e("s_lshl_b32 s77, s77, 2")
    e("s_add_u32 s%d, s77, s42" % S_QG)
    e("s_cmp_ge_u32 s%d, 4" % S_WAVE)
    e("s_cbranch_scc1 P1_D_LOADER")
    e.vm = []; e.lg = []
    p1_consumer(e, cfg, False)
    d_epilogue(e, cfg)
    stamp(e, cfg, 3)
    after_d(True)
    e.label("P1_D_LOADER")
    e.vm = []; e.lg = []
    p1_loader(e, cfg, False)
    stamp(e, cfg, 3)
    after_d(False)

P2_ACC = 64
P2_H = 96
P2_A = 208
P2_U = 224
P2_T = 240
SLICE = 40960
KSL, NB = 60, 61

def p2_setup(e, cfg):
    L = V_LANE
    e("s_and_b32 s%d, s%d, 3" % (KSL, S_WAVE))
    e("s_lshr_b32 s%d, s%d, 2" % (NB, S_WAVE))
    e("v_lshrrev_b32 v2, 3, v%d" % L)
    e("v_bfe_u32 v3, v%d, 4, 1" % L)
    e("v_lshlrev_b32 v3, 2, v3")
    e("v_and_b32 v4, 7, v%d" % L)
    e("v_xor_b32 v3, v3, v4")
    e("v_lshlrev_b32 v3, 4, v3")
    e("s_mul_i32 s41, s%d, 448" % KSL)
    e("s_lshl_b32 s42, s%d, 3" % NB)
    e("s_add_u32 s41, s41, s42")
    e("v_add_u32 v2, s41, v2")
    e("s_movk_i32 s42, 896")
    e("v_mul_lo_u32 v2, v2, s42")
    e("s_lshl_b32 s41, s%d, 7" % S_C)
    e("v_add3_u32 v10, v2, v3, s41")
    e("s_mul_i32 s62, s%d, %d" % (KSL, SLICE))
    e("s_lshl_b32 s41, s%d, 10" % NB)
    e("s_add_u32 s62, s62, s41")
    e("v_and_b32 v2, 15, v%d" % L)
    e("v_lshrrev_b32 v3, 2, v2")
    e("v_lshrrev_b32 v4, 5, v%d" % L)
    e("v_lshlrev_b32 v5, 2, v4")
    e("v_add_u32 v5, v5, v3")
    e("v_lshlrev_b32 v5, 7, v5")
    e("v_bfe_u32 v6, v2, 3, 1")
    e("v_lshlrev_b32 v6, 6, v6")
    e("v_bfe_u32 v7, v%d, 4, 1" % L)
    e("v_lshlrev_b32 v7, 5, v7")
    e("v_and_b32 v8, 3, v2")
    e("v_lshlrev_b32 v8, 3, v8")
    e("v_add3_u32 v5, v5, v6, v7")
    e("v_add_u32 v5, v5, v8")
    e("s_mul_i32 s41, s%d, %d" % (KSL, SLICE))
    e("v_add_u32 v11, s41, v5")
    e("v_xor_b32 v12, 64, v11")
    e("s_mul_i32 s41, s%d, 112" % S_T1)
    e("s_mul_i32 s42, s%d, 28" % KSL)
    e("s_add_u32 s41, s41, s42")
    e("s_lshl_b32 s41, s41, 1")
    e("s_add_u32 s41, s41, s%d" % NB)
    e("s_lshl_b32 s41, s41, 10")
    e("v_lshlrev_b32 v13, 4, v%d" % L)
    e("v_add_u32 v13, s41, v13")
    e("v_and_b32 v14, 31, v%d" % L)
    e("s_cmp_ge_u32 s%d, 4" % S_C)
    e("s_cselect_b32 s63, 1, 0")
    e("s_sub_u32 s64, 32, s%d" % S_T1)
    e("s_and_b32 s64, s64, 31")
    e("s_cmp_eq_u32 s63, 1")
    e("s_cselect_b32 s64, s64, s%d" % S_T1)
    e("v_lshrrev_b32 v4, 5, v%d" % L)
    e("s_lshl_b32 s41, s%d, 6" % S_C)
    e("s_cmp_eq_u32 s63, 1")
    e("s_cselect_b64 vcc, -1, 0")
    for mb in range(2):
        e("v_add_u32 v2, s41, v14")
        if mb: e("v_add_u32 v2, 32, v2")
        e("v_sub_u32 v3, 448, v2")
        e("v_cndmask_b32 v2, v2, v3, vcc")
        e("v_lshlrev_b32 v2, 4, v2")
        e("v_lshlrev_b32 v3, 12, v4")
        e("v_add_u32 v%d, v2, v3" % (16 + mb))
    e("s_lshl_b32 s41, s64, 4")
    e("s_lshl_b32 s42, s%d, 2" % KSL)
    e("s_add_u32 s41, s41, s42")
    e("s_lshl_b32 s41, s41, 12")
    e("s_add_u32 s65, s41, 0x%x" % UBUF)
    e("s_lshl_b32 s41, s%d, 6" % S_T1)
    e("s_lshl_b32 s42, s%d, 5" % NB)
    e("s_add_u32 s41, s41, s42")
    e("v_add_u32 v2, s41, v14")
    e("v_lshlrev_b32 v2, 2, v2")
    e("v_add_u32 v20, 0x%x, v2" % GBUF)

def p2_dma_wd(e, kk):
    st = kk >> 2
    pos = (st % 5) * 4 + (kk & 3)
    dma(e, S_WD, 10, pos * 2048, 62, kk * 16 * 896, ("wd", st))
def p2_load_h(e, cfg, kk):
    sc = " sc1" if cfg.fused else ""
    e("s_mov_b32 s%d, 0x%x" % (S_OFF, kk * 2048))
    e("buffer_load_dwordx4 %s, v13, s[%d:%d], s%d offen%s" % (vr(P2_H + 4 * kk, 4), S_WS, S_WS + 3, S_OFF, sc))
    e.vm_issue(("h", kk))
def p2_load_g(e, cfg):
    sc = " sc1" if cfg.fused else ""
    e("buffer_load_dword v15, v20, s[%d:%d], 0 offen%s" % (S_WS, S_WS + 3, sc))
    e.vm_issue("g")
def p2_load_u(e, cfg):
    sc = " sc1" if cfg.fused else ""
    for u in range(2):
        for mb in range(2):
            e("s_add_u32 s%d, s65, %d" % (S_OFF, u * 2 * 4096))
            e("buffer_load_dwordx4 %s, v%d, s[%d:%d], s%d offen%s" % (vr(P2_U + 8 * u + 4 * mb, 4), 16 + mb, S_WS, S_WS + 3, S_OFF, sc))
            e.vm_issue("u")
def p2_tfrags(e, cfg):
    L = V_LANE
    e.vm_wait(["g"])
    e("s_cmp_lg_u32 s%d, 0" % S_T1)
    e("s_cselect_b32 s41, s63, 0")
    e("s_lshl_b32 s42, s%d, 5" % NB)
    e("s_add_u32 s41, s41, s42")
    e("v_add_u32 v2, s41, v14")
    e("v_lshrrev_b32 v4, 5, v%d" % L)
    e("v_lshlrev_b32 v4, 2, v4")
    e("s_lshl_b32 s41, s63, 31")
    e("v_xor_b32 v21, s41, v15")
    e("s_mov_b32 s42, 0x%08x" % f2u(1.0 / 64))
    e("s_lshl_b32 s43, s%d, 4" % KSL)
    e("v_add_u32 v4, s43, v4")
    for u in range(2):
        for q in range(4):
            e("v_add_u32 v3, %d, v4" % (8 * u + q))
            e("v_mul_u32_u24 v3, v3, v2")
            e("v_and_b32 v3, 63, v3")
            e("v_cvt_f32_u32 v3, v3")
            e("v_mul_f32 v3, s42, v3")
            e("v_cos_f32 v5, v3")
            e("v_sin_f32 v6, v3")
            e("s_nop 0")
            e("v_mul_f32 v5, v5, v15")
            e("v_mul_f32 v6, v6, v21")
            e("v_cvt_pk_bf16_f32 v%d, v5, v6" % (P2_T + 4 * u + q))
    e("v_sub_f32 v18, 1.0, v15")
    e("v_mov_b32 v19, v18")

def p2_main(e, cfg, wd_pre=0):
    L = V_LANE
    def reads(kk):
        b = P2_A + 8 * (kk & 1)
        st = kk >> 2
        pos = (st % 5) * 4 + (kk & 3)
        for mb in range(2):
            for ip in range(2):
                e("ds_read_b64_tr_b16 %s, v%d offset:%d" % (vr(b + 4 * mb + 2 * ip, 2), 11 + mb, pos * 2048 + ip * 1024))
                e.lg_issue(("A", kk, mb))
    def issue_h(st):
        if st > 6: return
        for kk in range(4 * st, 4 * st + 4): p2_load_h(e, cfg, kk)
    def issue_w(st):
        if st > 6 or st < wd_pre: return
        for kk in range(4 * st, 4 * st + 4): p2_dma_wd(e, kk)
    def issue_both(st):
        if st > 6: return
        for kk in range(4 * st, 4 * st + 4):
            if st >= wd_pre: p2_dma_wd(e, kk)
            p2_load_h(e, cfg, kk)
    LA = cfg.p2_la
    p2_load_g(e, cfg)
    if cfg.fused:
        for st in range(LA): issue_h(st)
        p2_tfrags(e, cfg)
    else:
        for st in range(LA): issue_both(st)
        p2_tfrags(e, cfg)
        e.vm_wait([("wd", 0), ("wd", 1)])
        e("s_barrier")
    stamp(e, cfg, 1 if not cfg.fused else 6)
    reads(0)
    for kk in range(28):
        st = kk >> 2
        if (kk & 3) == 0:
            if cfg.fused:
                if st >= 1: issue_w(st + 4)
                issue_h(st + LA)
            else:
                issue_both(st + LA)
                if st + LA == 7:
                    p2_load_u(e, cfg)
        if kk + 1 < 28: reads(kk + 1)
        e.vm_wait([("h", kk)])
        b = P2_A + 8 * (kk & 1)
        for mb in range(2):
            e.lg_wait([("A", kk, mb)])
            mfma(e, P2_ACC + 16 * mb, b + 4 * mb, P2_H + 4 * kk, "0" if kk == 0 else None)
        if (kk & 3) == 3 and st < 6:
            e.vm_wait([("wd", st + 2)])
            if cfg.fused and st == cfg.p2_dpoll:
                lab = e.newlabel("DP")
                e("s_cmp_lg_u32 s%d, 0" % S_WAVE)
                e("s_cbranch_scc1 %s" % lab)
                e("s_mov_b32 s%d, 0x%x" % (S_PF, FLAGS + 16 * 128))
                poll(e, S_PF, 32)
                e.label(lab)
            e("s_barrier")
            if cfg.fused and st == cfg.p2_dpoll:
                p2_load_u(e, cfg)
    assert not e.lg
    stamp(e, cfg, 2 if not cfg.fused else 7)
    e.vm_wait(["u"])
    e("s_nop 7"); e("s_nop 3")
    for i in range(0, 32, 2):
        e("v_pk_mul_f32 %s, %s, v[18:19]" % (vr(P2_ACC + i, 2), vr(P2_ACC + i, 2)))
    e("s_nop 1")
    for u in range(2):
        for mb in range(2):
            mfma(e, P2_ACC + 16 * mb, P2_U + 8 * u + 4 * mb, P2_T + 4 * u)
    e("s_barrier")
    e("v_lshlrev_b32 v2, 4, v%d" % L)
    e("s_lshl_b32 s41, s%d, 13" % S_WAVE)
    e("v_add_u32 v3, s41, v2")
    e("s_nop 7"); e("s_nop 1")
    for qd in range(4):
        for hf in range(2):
            e("ds_write_b128 v3, %s offset:%d" % (vr(P2_ACC + 8 * qd + 4 * hf, 4), qd * 2048 + hf * 1024))
    e("s_waitcnt lgkmcnt(0)")
    e("s_barrier")
    e("s_lshl_b32 s41, s%d, 15" % NB)
    e("s_lshl_b32 s42, s%d, 11" % KSL)
    e("s_add_u32 s41, s41, s42")
    e("v_add_u32 v3, s41, v2")
    for k in range(4):
        for hf in range(2):
            e("ds_read_b128 %s, v3 offset:%d" % (vr(96 + 8 * k + 4 * hf, 4), k * 8192 + hf * 1024))
    e("s_lshl_b32 s41, s%d, 5" % NB)
    e("v_add_u32 v2, s41, v14")
    e("v_lshlrev_b32 v2, 5, v2")
    e("v_add_u32 v2, s%d, v2" % S_T1)
    e("s_movk_i32 s42, 896")
    e("v_mul_lo_u32 v2, v2, s42")
    e("s_lshl_b32 s41, s%d, 7" % S_C)
    e("s_lshl_b32 s42, s%d, 5" % KSL)
    e("s_add_u32 s41, s41, s42")
    e("v_lshrrev_b32 v4, 5, v%d" % L)
    e("v_lshlrev_b32 v4, 4, v4")
    e("v_add3_u32 v2, v2, v4, s41")
    e("s_waitcnt lgkmcnt(0)")
    for q in range(0, 8, 2):
        e("v_pk_add_f32 %s, %s, %s" % (vr(96 + q, 2), vr(96 + q, 2), vr(104 + q, 2)))
        e("v_pk_add_f32 %s, %s, %s" % (vr(112 + q, 2), vr(112 + q, 2), vr(120 + q, 2)))
    for q in range(0, 8, 2):
        e("v_pk_add_f32 %s, %s, %s" % (vr(96 + q, 2), vr(96 + q, 2), vr(112 + q, 2)))
    for q in range(4):
        e("v_cvt_pk_bf16_f32 v%d, v%d, v%d" % (128 + q, 96 + 2 * q, 96 + 2 * q + 1))
    e("s_nop 1")
    e("v_permlane32_swap_b32 v128, v130")
    e("v_permlane32_swap_b32 v129, v131")
    e("buffer_store_dwordx4 v[128:131], v2, s[%d:%d], 0 offen" % (S_OUT, S_OUT + 3))
    stamp(e, cfg, 3 if not cfg.fused else 8)

def p2_role(e):
    e("s_and_b32 s41, s2, 7")
    e("s_lshr_b32 s42, s2, 3")
    e("s_mul_i32 s43, s42, 37")
    e("s_lshr_b32 s43, s43, 8")
    e("s_mul_i32 s76, s43, 7")
    e("s_sub_u32 s%d, s42, s76" % S_C)
    e("s_lshl_b32 s41, s41, 2")
    e("s_add_u32 s%d, s41, s43" % S_T1)

def header(e, name):
    e.raw(".text"); e.raw(".globl %s" % name); e.raw(".p2align 8"); e.raw(".type %s,@function" % name); e.label(name)

def kernel1(e, cfg):
    header(e, "k1_kernel")
    e("s_cmp_ge_u32 s2, 256")
    e("s_cbranch_scc1 K1_END")
    kernarg_loads(e)
    entry_common(e)
    def fin():
        stamp_store(e, cfg, 0)
        e("s_endpgm")
    phase1(e, cfg, fin, fin, lambda c: fin())
    e.label("K1_END")
    e("s_endpgm")

def kernel2(e, cfg):
    header(e, "k2_kernel")
    e.vm = []; e.lg = []
    e("s_cmp_ge_u32 s2, 256")
    e("s_cbranch_scc1 K2_END")
    e("s_lshr_b32 s42, s2, 3")
    e("s_cmp_ge_u32 s42, 28")
    e("s_cbranch_scc1 K2_END")
    kernarg_loads(e)
    entry_common(e)
    p2_role(e)
    p2_setup(e, cfg)
    e("s_waitcnt lgkmcnt(0)")
    srd(e, S_WS, 74, WS_BYTES)
    srd(e, S_OUT, 46, 1835008)
    srd(e, S_WD, 56, 1605632)
    stamp(e, cfg, 0)
    p2_main(e, cfg, 0)
    stamp_store(e, cfg, 0x40000)
    e.label("K2_END")
    e("s_endpgm")


def nonce_issue(e):
    lab = e.newlabel("NONCE")
    srd(e, S_DBG, 72, 256)
    e("s_or_b32 s41, s2, s%d" % S_WAVE)
    e("s_cmp_lg_u32 s41, 0")
    e("s_cbranch_scc1 %s" % lab)
    e("s_memrealtime s[42:43]")
    e("s_waitcnt lgkmcnt(0)")
    e("s_or_b32 s42, s42, 1")
    e("v_mov_b32 v4, s42")
    e("v_lshlrev_b32 v5, 20, v%d" % V_LANE)
    e("buffer_store_dword v4, v5, s[%d:%d], 0 offen sc1" % (S_DBG, S_DBG + 3))
    e.label(lab)
    e("v_mov_b32 v7, 0")

def nonce_load(e):
    lab = e.newlabel("NLD")
    e("s_cmp_lg_u32 s%d, 0" % S_WAVE)
    e("s_cbranch_scc1 %s" % lab)
    e("buffer_load_dword v4, v7, s[%d:%d], 0 offen sc1" % (S_DBG, S_DBG + 3))
    e.label(lab)

def nonce_finish(e):
    lab = e.newlabel("NFIN"); top = e.newlabel("NTOP")
    e("s_cmp_lg_u32 s%d, 0" % S_WAVE)
    e("s_cbranch_scc1 %s" % lab)
    e("s_mov_b32 s42, 0")
    e.label(top)
    e("s_waitcnt vmcnt(0)")
    e("v_readfirstlane_b32 s%d, v4" % S_NONCE)
    e("s_nop 3")
    e("s_cmp_lg_u32 s%d, 0" % S_NONCE)
    e("s_cbranch_scc1 %s" % lab)
    e("s_add_u32 s42, s42, 1")
    e("s_cmp_ge_u32 s42, 0x40000")
    e("s_cbranch_scc1 %s" % lab)
    e("s_sleep 1")
    e("buffer_load_dword v4, v7, s[%d:%d], 0 offen sc1" % (S_DBG, S_DBG + 3))
    e("s_branch %s" % top)
    e.label(lab)

def flag_addr(e, is_h):
    if is_h:
        e("s_lshl_b32 s41, s%d, 7" % S_R)
        e("s_lshl_b32 s42, s%d, 2" % S_FB)
    else:
        e("s_lshl_b32 s41, s%d, 1" % S_QG)
        e("s_add_u32 s41, s41, s%d" % S_EH)
        e("s_lshl_b32 s42, s41, 2")
        e("s_movk_i32 s41, %d" % (16 * 128))
    e("s_add_u32 s41, s41, s42")
    e("s_add_u32 s%d, s41, 0x%x" % (S_FLAG, FLAGS))

def flag_store(e):
    e("v_mov_b32 v30, s%d" % S_NONCE)
    e("v_lshlrev_b32 v31, 24, v%d" % V_LANE)
    e("v_add_u32 v31, s%d, v31" % S_FLAG)
    e("buffer_store_dword v30, v31, s[%d:%d], 0 offen sc1" % (S_WS, S_WS + 3))

def poll(e, sbase, nflags):
    top = e.newlabel("POLL"); done = e.newlabel("POLLD")
    e("v_lshlrev_b32 v31, 2, v%d" % V_LANE)
    e("v_add_u32 v31, s%d, v31" % sbase)
    e("v_cmp_gt_u32 vcc, %d, v%d" % (nflags, V_LANE))
    e("v_mov_b32 v30, 0x7fffffff")
    e("s_nop 0")
    e("v_cndmask_b32 v31, v30, v31, vcc")
    e("s_mov_b32 s41, 0")
    e.label(top)
    e("buffer_load_dword v30, v31, s[%d:%d], 0 offen sc1" % (S_WS, S_WS + 3))
    e("s_waitcnt vmcnt(0)")
    e("v_cmp_eq_u32 vcc, s%d, v30" % S_NONCE)
    e("s_nop 1")
    mask = (1 << nflags) - 1
    e("s_and_b32 s42, vcc_lo, 0x%x" % (mask & 0xffffffff))
    e("s_cmp_eq_u32 s42, 0x%x" % (mask & 0xffffffff))
    e("s_cbranch_scc1 %s" % done)
    e("s_add_u32 s41, s41, 1")
    e("s_cmp_ge_u32 s41, 0x40000")
    e("s_cbranch_scc1 %s" % done)
    e("s_sleep 1")
    e("s_branch %s" % top)
    e.label(done)

def kernel_fused(e, cfg):
    name = "gated_mix__spectral_fnet__glu_gated_glu__prompt_kernel"
    header(e, name)
    e("s_cmp_ge_u32 s2, 256")
    e("s_cbranch_scc1 KF_END")
    kernarg_loads(e)
    entry_common(e)
    def after_h_consumer():
        e.vm_wait_all()
        e("s_barrier")
        lab = e.newlabel("NOTW0")
        e("s_cmp_lg_u32 s%d, 0" % S_WAVE)
        e("s_cbranch_scc1 %s" % lab)
        flag_store(e)
        e.label(lab)
        stamp(e, cfg, 4)
        p2_role(e)
        p2_setup(e, cfg)
        srd(e, S_OUT, 46, 1835008)
        srd(e, S_WD, 56, 1605632)
        e("s_cmp_lg_u32 s%d, 0" % S_WAVE)
        e("s_cbranch_scc1 P2_START")
        e("s_lshr_b32 s43, s%d, 1" % S_T1)
        e("s_lshl_b32 s43, s43, 7")
        e("s_add_u32 s%d, s43, 0x%x" % (S_PF, FLAGS))
        poll(e, S_PF, 14)
        e("s_branch P2_START")
    def after_h_loader():
        e("s_barrier")
        p2_role(e)
        p2_setup(e, cfg)
        srd(e, S_OUT, 46, 1835008)
        e("v_subrev_u32 v9, %d, v10" % (8 * 896))
        e("s_sub_u32 s69, s62, 1024")
        for kk in range(20):
            pos = kk
            dma(e, S_WD, 9, pos * 2048, 69, kk * 16 * 896, ("wdp", kk))
            dma(e, S_WD, 10, pos * 2048, 62, kk * 16 * 896, ("wdp", kk))
        e("s_barrier")
        stamp(e, cfg, 4)
        e.vm = []
        e.label("P2_START")
        e("s_waitcnt vmcnt(0)")
        e("s_barrier")
        stamp(e, cfg, 5)
        e.vm = []; e.lg = []
        p2_main(e, cfg, 5)
        stamp_store(e, cfg, 0)
        e("s_endpgm")
    def after_d(is_cons):
        if is_cons:
            e.vm_wait_all()
            e("s_barrier")
            lab = e.newlabel("DNOTW0")
            e("s_cmp_lg_u32 s%d, 0" % S_WAVE)
            e("s_cbranch_scc1 %s" % lab)
            flag_store(e)
            e("s_waitcnt vmcnt(0)")
            e.label(lab)
            stamp_store(e, cfg, 0)
            e("s_endpgm")
        else:
            e("s_waitcnt vmcnt(0)")
            e("s_barrier")
            stamp_store(e, cfg, 0)
            e("s_endpgm")
    phase1(e, cfg, after_h_consumer, after_h_loader, after_d)
    e.label("KF_END")
    e("s_endpgm")

def descriptor(name):
    return """.section .rodata,"a"
.p2align 6
.amdhsa_kernel %s
  .amdhsa_next_free_vgpr 256
  .amdhsa_next_free_sgpr 102
  .amdhsa_accum_offset 256
  .amdhsa_group_segment_fixed_size 0
  .amdhsa_kernarg_size 104
  .amdhsa_user_sgpr_count 2
  .amdhsa_user_sgpr_kernarg_segment_ptr 1
  .amdhsa_system_sgpr_workgroup_id_x 1
.end_amdhsa_kernel
""" % name

def main():
    cfg = Cfg()
    cfg.pro_extra = 8; cfg.stage_budget = 8; cfg.p2_la = 3; cfg.p2_dpoll = 4
    out = sys.argv[1]
    for a in sys.argv[2:]:
        if a == "diag": cfg.diag = True
        elif a == "fused": cfg.fused = True
        elif "=" in a:
            k, v = a.split("="); setattr(cfg, k, int(v))
        else: cfg.x = cfg.x | {a}
    e = Em()
    if cfg.fused:
        name = "gated_mix__spectral_fnet__glu_gated_glu__prompt_kernel"
        hdr = "; generated by gen2.py (fused)\n; @launch grid=(256,1,1) block=(512,1,1) lds=163840\n"
        hdr += '.amdgcn_target "amdgcn-amd-amdhsa--gfx950"\n'
        kernel_fused(e, cfg)
        open(out, "w").write(hdr + e.text() + descriptor(name))
        return
    hdr = "; generated by gen2.py\n"
    hdr += "; @launch kernel=k1_kernel grid=(256,1,1) block=(512,1,1) lds=163840\n"
    hdr += "; @launch kernel=k2_kernel grid=(256,1,1) block=(512,1,1) lds=163840\n"
    hdr += '.amdgcn_target "amdgcn-amd-amdhsa--gfx950"\n'
    kernel1(e, cfg)
    kernel2(e, cfg)
    txt = hdr + e.text() + descriptor("k1_kernel") + descriptor("k2_kernel")
    open(out, "w").write(txt)
if __name__ == "__main__":
    main()
```

```python
import sys, math, struct

def f2u(f): return struct.unpack("<I", struct.pack("<f", f))[0]

class Em:
    def __init__(self):
        self.lines = []
        self.vm = []
        self.lg = []
        self.nlab = 0
    def __call__(self, s): self.lines.append("    " + s)
    def raw(self, s): self.lines.append(s)
    def label(self, s): self.lines.append(s + ":")
    def newlabel(self, p):
        self.nlab += 1
        return "%s_%d" % (p, self.nlab)
    def vm_issue(self, tag): self.vm.append(tag)
    def vm_wait(self, tags):
        last = -1
        for i, t in enumerate(self.vm):
            if t in tags: last = i
        if last < 0: return
        n = len(self.vm) - 1 - last
        assert n <= 63, n
        self("s_waitcnt vmcnt(%d)" % n)
        self.vm = self.vm[last + 1:]
    def vm_wait_all(self):
        self("s_waitcnt vmcnt(0)"); self.vm = []
    def lg_issue(self, tag): self.lg.append(tag)
    def lg_wait(self, tags):
        last = -1
        for i, t in enumerate(self.lg):
            if t in tags: last = i
        if last < 0: return
        n = len(self.lg) - 1 - last
        assert n <= 15, n
        self("s_waitcnt lgkmcnt(%d)" % n)
        self.lg = self.lg[last + 1:]
    def lg_wait_all(self):
        self("s_waitcnt lgkmcnt(0)"); self.lg = []
    def text(self): return "\n".join(self.lines) + "\n"

def vr(a, n=1): return "v%d" % a if n == 1 else "v[%d:%d]" % (a, a + n - 1)

HBUF = 0
UBUF = 0x700000
GBUF = 0x900000
FLAGS = 0x910000
DIAG = 0xA00000
WS_BYTES = 0x1000000
LOG2E = 1.4426950408889634

S_X = 8; S_WA = 12; S_WB = 16; S_WS = 20; S_GW = 24; S_OUT = 28; S_WD = 32; S_DBG = 36
S_WAVE = 40
S_R = 60; S_FB = 61; S_QG = 62; S_EH = 63
S_WF = 64; S_LW = 65
S_LDSW = 66; S_LDSX = 67
S_OFF = 68
S_T1 = 70; S_C = 71
S_STAMP = 80
S_NONCE = 98; S_FLAG = 99; S_PF = 100
V_LANE = 1

class Cfg:
    fused = False
    diag = False
    x = set()

def kernarg_loads(e):
    e("s_load_dwordx2 s[44:45], s[0:1], 0")
    e("s_load_dwordx4 s[48:51], s[0:1], 24")
    e("s_load_dwordx4 s[52:55], s[0:1], 48")
    e("s_load_dwordx4 s[56:59], s[0:1], 64")
    e("s_load_dwordx2 s[46:47], s[0:1], 80")
    e("s_load_dwordx4 s[72:75], s[0:1], 88")

def srd(e, dst, lo, nbytes):
    e("s_mov_b32 s%d, s%d" % (dst, lo))
    e("s_and_b32 s%d, s%d, 0xffff" % (dst + 1, lo + 1))
    e("s_mov_b32 s%d, 0x%x" % (dst + 2, nbytes))
    e("s_mov_b32 s%d, 0x20000" % (dst + 3))

NSTAMP = 6
def stamp(e, cfg, k):
    if cfg.diag:
        assert not e.lg
        e("s_memrealtime s[%d:%d]" % (S_STAMP + 2 * k, S_STAMP + 2 * k + 1))
        if k in (1, 2) and not cfg.fused:
            e("s_memtime s[%d:%d]" % (S_STAMP + 12 + 2 * (k - 1), S_STAMP + 13 + 2 * (k - 1)))
        e("s_waitcnt lgkmcnt(0)")

def stamp_store(e, cfg, slot_base):
    if not cfg.diag: return
    e("s_lshl_b32 s41, s2, 3")
    e("s_add_u32 s41, s41, s%d" % S_WAVE)
    e("s_lshl_b32 s41, s41, 6")
    e("s_add_u32 s41, s41, 0x%x" % (DIAG + slot_base))
    e("v_mov_b32 v1, s41")
    for k in range(9 if cfg.fused else NSTAMP + 2):
        e("v_mov_b32 v2, s%d" % (S_STAMP + 2 * k))
        e("buffer_store_dword v2, v1, s[%d:%d], 0 offen offset:%d" % (S_WS, S_WS + 3, 4 * k))
        e("s_nop 1")
    e("s_waitcnt vmcnt(0)")

def mfma(e, d, a, b, c=None):
    cs = vr(d, 16) if c is None else c
    e("v_mfma_f32_32x32x16_bf16 %s, %s, %s, %s" % (vr(d, 16), vr(a, 4), vr(b, 4), cs))

NODMA = [False]
def rot_next(e, sreg, n):
    e("s_add_u32 s%d, s%d, 1" % (sreg, sreg))
    e("s_cmp_eq_u32 s%d, %d" % (sreg, n))
    e("s_cselect_b32 s%d, 0, s%d" % (sreg, sreg))
def dma(e, srdreg, vaddr, ldsconst, sldswave, soff, tag):
    if NODMA[0]:
        e.vm_issue(tag); e.vm.pop(); return
    e("s_add_u32 m0, s%d, 0x%x" % (sldswave, ldsconst))
    if soff is None:
        e("s_nop 0")
    else:
        e("s_mov_b32 s%d, 0x%x" % (S_OFF, soff))
    e("buffer_load_dwordx4 v%d, s[%d:%d], s%d offen lds" % (vaddr, srdreg, srdreg + 3, S_OFF))
    e.vm_issue(tag)

XSLOT = 16384; NX = 4
WBASE = 65536; NW = 6; WSLOT = 16384
ACC = 64
def accA(i): return ACC + 16 * i
def accB(i): return ACC + 64 + 16 * i
FR = 192
V_XA = 10
V_WA = 14
CONST_LDS = 0

def p1_consumer_addr(e, is_h):
    L = V_LANE; T = 26
    e("v_and_b32 v%d, 31, v%d" % (T, L))
    e("v_lshrrev_b32 v%d, 5, v%d" % (T + 1, L))
    e("v_lshrrev_b32 v%d, 1, v%d" % (T + 2, T))
    e("v_and_b32 v%d, 7, v%d" % (T + 2, T + 2))
    e("v_lshlrev_b32 v%d, 7, v%d" % (T + 3, T))
    if not is_h:
        e("s_lshl_b32 s41, s%d, 5" % S_WF)
        e("v_add_u32 v%d, s41, v%d" % (T + 5, T))
        e("v_lshlrev_b32 v%d, 7, v%d" % (T + 5, T + 5))
        e("v_add_u32 v%d, 0x%x, v%d" % (T + 5, WBASE, T + 5))
    for k in range(4):
        e("v_add_u32 v%d, %d, v%d" % (T + 4, 2 * k, T + 1))
        e("v_xor_b32 v%d, v%d, v%d" % (T + 4, T + 4, T + 2))
        e("v_lshlrev_b32 v%d, 4, v%d" % (T + 4, T + 4))
        e("v_add_u32 v%d, v%d, v%d" % (V_XA + k, T + 3, T + 4))
        if not is_h:
            e("v_add_u32 v%d, v%d, v%d" % (V_WA + k, T + 5, T + 4))
            e("v_add_u32 v%d, 0x10000, v%d" % (V_WA + 4 + k, V_WA + k))
    if is_h:
        e("v_and_b32 v%d, 15, v%d" % (T + 4, L))
        e("v_lshrrev_b32 v%d, 2, v%d" % (T + 5, T + 4))
        e("v_lshlrev_b32 v%d, 3, v%d" % (T + 6, T + 1))
        e("v_add_u32 v%d, v%d, v%d" % (T + 6, T + 6, T + 5))
        e("v_lshlrev_b32 v%d, 8, v%d" % (T + 6, T + 6))
        e("v_xor_b32 v%d, s%d, v%d" % (T + 7, S_WF, T + 5))
        e("v_lshlrev_b32 v%d, 6, v%d" % (T + 7, T + 7))
        e("v_add_u32 v%d, v%d, v%d" % (T + 6, T + 6, T + 7))
        e("v_bfe_u32 v%d, v%d, 4, 1" % (T + 7, L))
        e("v_lshlrev_b32 v%d, 5, v%d" % (T + 7, T + 7))
        e("v_add_u32 v%d, v%d, v%d" % (T + 6, T + 6, T + 7))
        e("v_and_b32 v%d, 3, v%d" % (T + 7, T + 4))
        e("v_lshlrev_b32 v%d, 3, v%d" % (T + 7, T + 7))
        e("v_add_u32 v%d, v%d, v%d" % (T + 6, T + 6, T + 7))
        e("v_add_u32 v%d, 0x%x, v%d" % (V_WA, WBASE, T + 6))
        e("v_add_u32 v%d, 0x%x, v%d" % (V_WA + 1, WBASE + 0x10000, T + 6))

def p1_reads(kap, is_h):
    base = FR + 24 * (kap & 1)
    c = kap >> 2; kk4 = kap & 3
    def xr(nb): return (("X", kap, nb), "ds_read_b128 %s, v%d offset:%d" % (vr(base + 4 * nb, 4), V_XA + kk4, (c % NX) * XSLOT + nb * 4096))
    if is_h:
        j = kap >> 1; kk = kap & 1
        slot = (j % NW) * WSLOT
        va = V_WA + (1 if slot >= 0x10000 else 0); so = slot & 0xffff
        def wr(m, ip): return (("W", kap, m), "ds_read_b64_tr_b16 %s, v%d offset:%d" % (vr(base + 16 + 4 * m + 2 * ip, 2), va, so + m * 8192 + (16 * kk + 4 * ip) * 256))
        return [wr(0, 0), wr(0, 1), xr(0), wr(1, 0), wr(1, 1), xr(1), xr(2), xr(3)]
    else:
        slot = (c % 3) * 32768
        va = V_WA + kk4 + (4 if slot >= 0x10000 else 0); so = slot & 0xffff
        def wr(m): return (("W", kap, m), "ds_read_b128 %s, v%d offset:%d" % (vr(base + 16 + 4 * m, 4), va, so + m * 16384))
        return [wr(0), xr(0), wr(1), xr(1), xr(2), xr(3)]

def p1_consumer(e, cfg, is_h):
    p1_consumer_addr(e, is_h)
    e("s_waitcnt lgkmcnt(0)")
    srd(e, S_WS, 74, WS_BYTES)
    if cfg.fused:
        flag_addr(e, is_h)
        nonce_issue(e)
    stamp(e, cfg, 0)
    e("s_barrier")
    stamp(e, cfg, 1)
    for tag, txt in p1_reads(0, is_h):
        e(txt); e.lg_issue(tag)
    for kap in range(28):
        base = FR + 24 * (kap & 1)
        nxt = p1_reads(kap + 1, is_h) if kap + 1 < 28 else []
        for n in range(8):
            nb = n >> 1; m = n & 1
            e.lg_wait([("W", kap, m), ("X", kap, nb)])
            d = accA(nb) if m == 0 else accB(nb)
            W = base + 16 + 4 * m; X = base + 4 * nb
            c = "0" if kap == 0 else None
            if "no32" in cfg.x:
                for hh in range(2):
                    e("v_mfma_f32_16x16x32_bf16 %s, %s, %s, %s" % (vr(d + 8 * hh, 4), vr(W, 4), vr(X, 4), vr(d + 8 * hh, 4)))
            elif "nomfma" not in cfg.x:
                if is_h: mfma(e, d, W, X, c)
                else: mfma(e, d, X, W, c)
            if nxt and n < len(nxt):
                tag, txt = nxt[n]
                if "nolds" in cfg.x: e.lg_issue(tag); e.lg.pop()
                else:
                    e(txt); e.lg_issue(tag)
        if (kap & 1) and kap < 27:
            e("s_barrier")
        if cfg.fused and kap == 21:
            nonce_load(e)
    assert not e.lg
    if cfg.fused and is_h:
        e("s_barrier")
    if cfg.fused:
        nonce_finish(e)
    stamp(e, cfg, 2)

def h_epilogue(e, cfg):
    sc = " sc1" if cfg.fused else ""
    e("s_lshl_b32 s41, s%d, 1" % S_R)
    e("s_mul_i32 s41, s41, 112")
    e("s_lshl_b32 s42, s%d, 2" % S_FB)
    e("s_add_u32 s42, s42, s%d" % S_WF)
    e("s_lshl_b32 s42, s42, 1")
    e("s_add_u32 s41, s41, s42")
    e("s_lshl_b32 s41, s41, 11")
    e("v_lshlrev_b32 v26, 4, v%d" % V_LANE)
    e("v_add_u32 v26, s41, v26")
    e("v_add_u32 v27, 0x%x, v26" % (112 * 2048))
    e("s_mov_b32 s42, 0x%08x" % f2u(-LOG2E))
    e("s_mov_b32 s43, s42")
    e("s_mov_b32 s44, 1.0")
    e("s_mov_b32 s45, 1.0")
    e("s_nop 7")
    grp = 0
    for nb in range(4):
        for hf in range(2):
            outb = FR + 4 * (grp % 8); grp += 1
            A = accA(nb) + 8 * hf; B = accB(nb) + 8 * hf
            for q in range(0, 8, 2):
                e("v_pk_mul_f32 %s, %s, s[42:43]" % (vr(A + q, 2), vr(A + q, 2)))
            for q in range(8):
                e("v_exp_f32 v%d, v%d" % (A + q, A + q))
            for q in range(0, 8, 2):
                e("v_pk_add_f32 %s, %s, s[44:45]" % (vr(A + q, 2), vr(A + q, 2)))
            for q in range(8):
                e("v_rcp_f32 v%d, v%d" % (A + q, A + q))
            for q in range(0, 8, 2):
                e("v_pk_mul_f32 %s, %s, %s" % (vr(A + q, 2), vr(A + q, 2), vr(B + q, 2)))
            for q2 in range(4):
                e("v_cvt_pk_bf16_f32 v%d, v%d, v%d" % (outb + q2, A + 2 * q2, A + 2 * q2 + 1))
            e("buffer_store_dwordx4 %s, v%d, s[%d:%d], 0 offen offset:%d%s" % (vr(outb, 4), 26 + (nb >> 1), S_WS, S_WS + 3, hf * 2048 + (nb & 1) * 1024, sc))
            e.vm_issue("hst")

def d_epilogue(e, cfg):
    sc = " sc1" if cfg.fused else ""
    L = V_LANE
    ZB = [192, 208, 224, 240]
    e("s_nop 7"); e("s_nop 3")
    for sb in range(4):
        for hf in range(2):
            for pr in range(4):
                q = 8 * hf + 2 * pr
                e("v_cvt_pk_bf16_f32 v%d, v%d, v%d" % (ZB[sb] + 4 * hf + pr, accA(sb) + q, accA(sb) + q + 1))
                e("v_cvt_pk_bf16_f32 v%d, v%d, v%d" % (ZB[sb] + 8 + 4 * hf + pr, accB(sb) + q, accB(sb) + q + 1))
    e("s_barrier")
    e("v_lshlrev_b32 v2, 4, v%d" % L)
    def cread(sb):
        b = 10 + 24 * (sb & 1)
        for k in range(6):
            e("ds_read_b128 %s, v2 offset:%d" % (vr(b + 4 * k, 4), CONST_LDS + (sb * 6 + k) * 1024))
            e.lg_issue(("c", sb, k))
    cread(0); cread(1)
    for sb in range(4):
        b = 10 + 24 * (sb & 1)
        C0, C1, S0, S1, N0, N1 = [b + 4 * k for k in range(6)]
        ZR0, ZR1, ZI0, ZI1 = ZB[sb], ZB[sb] + 4, ZB[sb] + 8, ZB[sb] + 12
        e.lg_wait([("c", sb, k) for k in range(6)])
        mfma(e, accA(sb), C0, ZR0, "0")
        mfma(e, accB(sb), C0, ZI0, "0")
        mfma(e, accA(sb), C1, ZR1)
        mfma(e, accB(sb), C1, ZI1)
        mfma(e, accA(sb), S0, ZI0)
        mfma(e, accB(sb), N0, ZR0)
        mfma(e, accA(sb), S1, ZI1)
        mfma(e, accB(sb), N1, ZR1)
        if sb + 2 < 4:
            cread(sb + 2)
    e("s_lshl_b32 s41, s%d, 8" % S_QG)
    e("s_lshl_b32 s42, s%d, 7" % S_EH)
    e("s_add_u32 s41, s41, s42")
    e("s_lshl_b32 s42, s%d, 5" % S_WF)
    e("s_add_u32 s41, s41, s42")
    e("s_lshl_b32 s41, s41, 4")
    e("s_add_u32 s41, s41, 0x%x" % UBUF)
    e("v_and_b32 v3, 31, v%d" % L)
    e("v_lshlrev_b32 v3, 4, v3")
    e("v_lshrrev_b32 v4, 5, v%d" % L)
    e("v_lshlrev_b32 v4, 18, v4")
    e("v_add3_u32 v3, v3, v4, s41")
    e("s_nop 7"); e("s_nop 3")
    for q in range(16):
        i, jj = q >> 2, q & 3
        pk = 192 + 4 * (q % 8)
        for sb in range(4):
            e("v_cvt_pk_bf16_f32 v%d, v%d, v%d" % (pk + sb, accA(sb) + q, accB(sb) + q))
        e("s_mov_b32 s%d, 0x%x" % (S_OFF, (8 * i + jj) * 65536))
        e("buffer_store_dwordx4 %s, v3, s[%d:%d], s%d offen%s" % (vr(pk, 4), S_WS, S_WS + 3, S_OFF, sc))
        e.vm_issue("ust")

def p1_loader(e, cfg, is_h):
    L = V_LANE; T = 26
    VX = 10
    VW = 14
    e("v_lshrrev_b32 v%d, 3, v%d" % (T, L))
    e("s_lshl_b32 s41, s%d, 5" % S_LW)
    e("v_add_u32 v%d, s41, v%d" % (T, T))
    e("v_and_b32 v%d, 7, v%d" % (T + 1, L))
    e("v_lshrrev_b32 v%d, 4, v%d" % (T + 2, L))
    e("s_movk_i32 s42, 896")
    for i in range(4):
        if i: e("v_add_u32 v%d, 8, v%d" % (T, T))
        e("v_add_u32 v%d, %d, v%d" % (T + 3, (4 * i) & 7, T + 2))
        e("v_and_b32 v%d, 7, v%d" % (T + 3, T + 3))
        e("v_xor_b32 v%d, v%d, v%d" % (T + 3, T + 3, T + 1))
        e("v_lshlrev_b32 v%d, 4, v%d" % (T + 3, T + 3))
        if is_h:
            e("v_lshrrev_b32 v%d, 6, v%d" % (T + 4, T))
            e("v_and_b32 v%d, 63, v%d" % (T + 5, T))
            e("v_lshlrev_b32 v%d, 5, v%d" % (T + 5, T + 5))
            e("s_lshl_b32 s41, s%d, 1" % S_R)
            e("v_add3_u32 v%d, v%d, v%d, s41" % (T + 4, T + 4, T + 5))
        else:
            e("v_and_b32 v%d, 31, v%d" % (T + 4, T))
            e("v_lshlrev_b32 v%d, 6, v%d" % (T + 4, T + 4))
            e("v_lshrrev_b32 v%d, 5, v%d" % (T + 5, T))
            e("s_lshl_b32 s41, s%d, 2" % S_QG)
            e("v_add3_u32 v%d, v%d, v%d, s41" % (T + 4, T + 4, T + 5))
        e("v_mul_lo_u32 v%d, v%d, s42" % (T + 4, T + 4))
        e("v_add_u32 v%d, v%d, v%d" % (VX + i, T + 4, T + 3))
        if not is_h:
            e("s_lshl_b32 s41, s%d, 7" % S_EH)
            e("v_add_u32 v%d, s41, v%d" % (T + 4, T))
            e("v_mul_lo_u32 v%d, v%d, s42" % (T + 4, T + 4))
            e("v_add_u32 v%d, v%d, v%d" % (VW + i, T + 4, T + 3))
    if is_h:
        e("s_lshl_b32 s41, s%d, 3" % S_LW)
        e("v_add_u32 v%d, s41, v%d" % (T + 3, T + 2))
        e("s_movk_i32 s42, 3584")
        e("v_mul_lo_u32 v%d, v%d, s42" % (T + 3, T + 3))
        e("v_bfe_u32 v%d, v%d, 2, 2" % (T + 4, L))
        e("v_xor_b32 v%d, v%d, v%d" % (T + 4, T + 4, T + 2))
        e("v_lshlrev_b32 v%d, 6, v%d" % (T + 4, T + 4))
        e("v_and_b32 v%d, 3, v%d" % (T + 5, L))
        e("v_lshlrev_b32 v%d, 4, v%d" % (T + 5, T + 5))
        e("v_add3_u32 v%d, v%d, v%d, v%d" % (T + 3, T + 3, T + 4, T + 5))
        e("s_lshl_b32 s41, s%d, 8" % S_FB)
        e("v_add_u32 v%d, s41, v%d" % (VW, T + 3))
        e("v_add_u32 v%d, %d, v%d" % (VW + 1, 4 * 3584, VW))
        e("s_lshl_b32 s%d, s%d, 11" % (S_LDSW, S_LW))
    else:
        e("s_lshl_b32 s%d, s%d, 12" % (S_LDSW, S_LW))
    e("s_lshl_b32 s%d, s%d, 12" % (S_LDSX, S_LW))
    e("s_waitcnt lgkmcnt(0)")
    srd(e, S_X, 44, 1835008)
    if is_h:
        srd(e, S_WA, 52, 1605632); srd(e, S_WB, 54, 1605632)
    else:
        srd(e, S_WA, 48, 401408); srd(e, S_WB, 50, 401408)
    srd(e, S_WS, 74, WS_BYTES)
    srd(e, S_GW, 58, 896)
    srd(e, S_WD, 56, 1605632)
    stamp(e, cfg, 0)
    def dx(c):
        for i in range(4): dma(e, S_X, VX + i, (c % NX) * XSLOT + i * 1024, S_LDSX, c * 128, ("x", c))
    def dw(j):
        if is_h:
            for m in range(2):
                for i in range(2):
                    dma(e, S_WA if m == 0 else S_WB, VW + i, WBASE + (j % NW) * WSLOT + m * 8192 + i * 1024, S_LDSW, j * 32 * 3584, ("w", j))
        else:
            c = j
            for m in range(2):
                for i in range(4):
                    dma(e, S_WA if m == 0 else S_WB, VW + i, WBASE + (c % 3) * 32768 + m * 16384 + i * 1024, S_LDSW, c * 128, ("w", c))
    q = []
    if is_h:
        for j in range(14):
            if j % 2 == 0:
                c = j // 2
                q.append(("x", c, -1 if c < NX else 2 * (c - NX + 1)))
            q.append(("w", j, -1 if j < NW else j - NW + 1))
    else:
        for c in range(7):
            q.append(("x", c, -1 if c < NX else 2 * (c - NX + 1)))
            q.append(("w", c, -1 if c < 3 else 2 * (c - 3 + 1)))
    def cost(it): return 4 if (it[0] == "x" or is_h) else 8
    def issue(it):
        (dx if it[0] == "x" else dw)(it[1])
    def need(j):
        t = []
        for jj in (j, j + 1):
            if jj <= 13:
                t.append(("x", jj >> 1)); t.append(("w", jj if is_h else jj >> 1))
        return t
    issued = set()
    def ensure(tags):
        while q and any(t not in issued for t in tags):
            it = q.pop(0); assert it[2] <= curbar[0], (it, curbar)
            issue(it); issued.add((it[0], it[1]))
    curbar = [-1]
    ensure(need(0))
    budget0 = cfg.pro_extra
    while q and budget0 > 0 and q[0][2] <= -1:
        it = q.pop(0); issue(it); issued.add((it[0], it[1])); budget0 -= cost(it)
    e.vm_wait(need(0))
    e("s_barrier")
    stamp(e, cfg, 1)
    if "nodma" in cfg.x: NODMA[0] = True
    for j in range(13):
        curbar[0] = j
        ensure(need(j + 1))
        budget = cfg.stage_budget
        while q and budget > 0 and q[0][2] <= j:
            it = q.pop(0); issue(it); issued.add((it[0], it[1])); budget -= cost(it)
        if j == 9 and not is_h: dft_consts(e, cfg)
        if j == 7 and is_h:
            gate_issue(e, cfg, True)
            lab = e.newlabel("GX")
            e("s_cmp_ge_u32 s%d, 2" % S_FB)
            e("s_cbranch_scc1 %s" % lab)
            sv = list(e.vm)
            gate_issue(e, cfg, True, True)
            e.vm = sv
            e.label(lab)
        if j == 10 and is_h:
            e("s_waitcnt vmcnt(0)"); e.vm = []
            gate_finish(e, cfg)
            lab = e.newlabel("GY")
            e("s_cmp_ge_u32 s%d, 2" % S_FB)
            e("s_cbranch_scc1 %s" % lab)
            gate_finish(e, cfg, True)
            e.label(lab)
        if j == 11 and cfg.fused:
            e("s_waitcnt vmcnt(0)"); e.vm = []
        e.vm_wait(need(j + 1))
        e("s_barrier")
    assert not q
    NODMA[0] = False
    stamp(e, cfg, 2)
    if not is_h:
        e("v_lshlrev_b32 v2, 4, v%d" % L)
        e("s_mul_i32 s41, s%d, 6144" % S_LW)
        e("v_add_u32 v2, s41, v2")
        for k in range(6):
            e("ds_write_b128 v2, %s offset:%d" % (vr(64 + 4 * k, 4), CONST_LDS + k * 1024))
        e("s_waitcnt lgkmcnt(0)")
        e("s_barrier")

def gate_issue(e, cfg, is_h, extra=False):
    B = 40 if extra else 48
    e("s_lshl_b32 s41, s%d, 3" % S_FB)
    if extra: e("s_add_u32 s41, s41, 112")
    e("s_lshl_b32 s42, s%d, 1" % S_LW)
    e("s_add_u32 s41, s41, s42")
    e("s_lshl_b32 s78, s%d, 7" % S_R)
    e("s_add_u32 s%d, s78, s41" % (77 if extra else 76))
    e("v_lshlrev_b32 v38, 4, v%d" % V_LANE)
    e("v_cmp_gt_u32 vcc, 56, v%d" % V_LANE)
    e("v_mov_b32 v37, 0x7fffffff")
    for u in range(2):
        e("s_add_u32 s78, s41, %d" % u)
        e("s_lshr_b32 s43, s78, 6")
        e("s_lshl_b32 s79, s%d, 1" % S_R)
        e("s_add_u32 s43, s43, s79")
        e("s_and_b32 s78, s78, 63")
        e("s_lshl_b32 s78, s78, 5")
        e("s_add_u32 s43, s43, s78")
        e("s_mul_i32 s43, s43, 896")
        e("v_add_u32 v39, s43, v38")
        e("v_cndmask_b32 v39, v37, v39, vcc")
        e("buffer_load_dwordx4 %s, v39, s[%d:%d], 0 offen" % (vr(B + 4 * u, 4), S_X, S_X + 3))
        e.vm_issue("gate")
    if not extra:
        e("buffer_load_dwordx4 v[56:59], v38, s[%d:%d], 0 offen" % (S_GW, S_GW + 3))
        e.vm_issue("gate")

def gate_finish(e, cfg, extra=False):
    B = 40 if extra else 48
    e.vm_wait(["gate"])
    for u in range(2):
        e("v_mov_b32 v%d, 0" % (60 + u))
    for i in range(4):
        for u in range(2):
            e("v_dot2_f32_bf16 v%d, v%d, v%d, v%d" % (60 + u, B + 4 * u + i, 56 + i, 60 + u))
    e("s_nop 2")
    for sh in ("row_shr:1", "row_shr:2", "row_shr:4", "row_shr:8"):
        for u in range(2):
            e("v_add_f32_dpp v%d, v%d, v%d %s row_mask:0xf bank_mask:0xf bound_ctrl:0" % (60 + u, 60 + u, 60 + u, sh))
        e("s_nop 0")
    for u in range(2):
        e("v_add_f32_dpp v%d, v%d, v%d row_bcast:15 row_mask:0xa bank_mask:0xf" % (60 + u, 60 + u, 60 + u))
    e("s_nop 0")
    for u in range(2):
        e("v_add_f32_dpp v%d, v%d, v%d row_bcast:31 row_mask:0xc bank_mask:0xf" % (60 + u, 60 + u, 60 + u))
    e("s_nop 0")
    e("v_readlane_b32 s41, v60, 63")
    e("v_readlane_b32 s42, v61, 63")
    e("s_nop 1")
    e("v_mov_b32 v60, s41")
    e("v_mov_b32 v61, s42")
    e("v_cmp_eq_u32 vcc, 1, v%d" % V_LANE)
    e("s_nop 1")
    e("v_cndmask_b32 v60, v60, v61, vcc")
    e("v_mul_f32 v60, 0x%08x, v60" % f2u(-LOG2E))
    e("v_exp_f32 v60, v60")
    e("s_nop 0")
    e("v_add_f32 v60, 1.0, v60")
    e("v_rcp_f32 v60, v60")
    e("s_lshl_b32 s44, s%d, 2" % (77 if extra else 76))
    e("s_add_u32 s44, s44, 0x%x" % GBUF)
    e("v_lshlrev_b32 v62, 2, v%d" % V_LANE)
    e("v_add_u32 v62, s44, v62")
    e("v_cmp_gt_u32 vcc, 2, v%d" % V_LANE)
    e("v_mov_b32 v37, 0x7fffffff")
    e("s_nop 0")
    e("v_cndmask_b32 v62, v37, v62, vcc")
    e("buffer_store_dword v60, v62, s[%d:%d], 0 offen%s" % (S_WS, S_WS + 3, " sc1" if cfg.fused else ""))
    e.vm_issue("gst")

def dft_consts(e, cfg):
    L = V_LANE
    e("v_and_b32 v26, 31, v%d" % L)
    e("v_lshrrev_b32 v27, 5, v%d" % L)
    e("v_lshlrev_b32 v27, 8, v27")
    e("s_lshl_b32 s41, s%d, 2" % S_QG)
    e("s_add_u32 s41, s41, s%d" % S_LW)
    e("v_add_u32 v27, s41, v27")
    e("s_mov_b32 s42, 0x%08x" % f2u(1.0 / 2048))
    for hf in range(2):
        for pr in range(4):
            for u in range(2):
                idx = 2 * pr + u
                s1c = 16 * hf + 8 * (idx >> 2) + (idx & 3)
                e("v_add_u32 v28, %d, v27" % (64 * s1c))
                e("v_mul_u32_u24 v28, v28, v26")
                e("v_and_b32 v28, 0x7ff, v28")
                e("v_cvt_f32_u32 v28, v28")
                e("v_mul_f32 v28, s42, v28")
                e("v_cos_f32 v%d, v28" % (30 + u))
                e("v_sin_f32 v%d, v28" % (32 + u))
            e("s_nop 0")
            e("v_cvt_pk_bf16_f32 v%d, v30, v31" % (64 + 4 * hf + pr))
            e("v_cvt_pk_bf16_f32 v%d, v32, v33" % (72 + 4 * hf + pr))
            e("v_xor_b32 v%d, 0x80008000, v%d" % (80 + 4 * hf + pr, 72 + 4 * hf + pr))

def entry_common(e):
    e("v_and_b32 v%d, 63, v0" % V_LANE)
    e("v_lshrrev_b32 v2, 6, v0")
    e("s_nop 0")
    e("v_readfirstlane_b32 s%d, v2" % S_WAVE)
    e("s_nop 3")

def phase1(e, cfg, after_h_consumer, after_h_loader, after_d):
    e("s_and_b32 s%d, s%d, 3" % (S_WF, S_WAVE))
    e("s_and_b32 s%d, s%d, 3" % (S_LW, S_WAVE))
    e("s_and_b32 s41, s2, 7")
    e("s_lshr_b32 s42, s2, 3")
    e("s_cmp_ge_u32 s42, 28")
    e("s_cbranch_scc1 P1_DFT")
    e("s_mul_i32 s43, s42, 37")
    e("s_lshr_b32 s43, s43, 8")
    e("s_mul_i32 s76, s43, 7")
    e("s_sub_u32 s76, s42, s76")
    e("s_lshr_b32 s77, s41, 1")
    e("s_lshl_b32 s77, s77, 2")
    e("s_add_u32 s%d, s77, s43" % S_R)
    e("s_and_b32 s77, s41, 1")
    e("s_mul_i32 s77, s77, 7")
    e("s_add_u32 s%d, s77, s76" % S_FB)
    e("s_cmp_ge_u32 s%d, 4" % S_WAVE)
    e("s_cbranch_scc1 P1_H_LOADER")
    e.vm = []; e.lg = []
    p1_consumer(e, cfg, True)
    h_epilogue(e, cfg)
    stamp(e, cfg, 3)
    after_h_consumer()
    e.label("P1_H_LOADER")
    e.vm = []; e.lg = []
    p1_loader(e, cfg, True)
    stamp(e, cfg, 3)
    after_h_loader()
    e.label("P1_DFT")
    e("s_sub_u32 s42, s42, 28")
    e("s_and_b32 s%d, s41, 1" % S_EH)
    e("s_lshr_b32 s77, s41, 1")
    e("s_lshl_b32 s77, s77, 2")
    e("s_add_u32 s%d, s77, s42" % S_QG)
    e("s_cmp_ge_u32 s%d, 4" % S_WAVE)
    e("s_cbranch_scc1 P1_D_LOADER")
    e.vm = []; e.lg = []
    p1_consumer(e, cfg, False)
    d_epilogue(e, cfg)
    stamp(e, cfg, 3)
    after_d(True)
    e.label("P1_D_LOADER")
    e.vm = []; e.lg = []
    p1_loader(e, cfg, False)
    stamp(e, cfg, 3)
    after_d(False)

P2_ACC = 64
P2_H = 96
P2_A = 208
P2_U = 224
P2_T = 240
SLICE = 40960
KSL, NB = 60, 61

def p2_setup(e, cfg):
    L = V_LANE
    e("s_and_b32 s%d, s%d, 3" % (KSL, S_WAVE))
    e("s_lshr_b32 s%d, s%d, 2" % (NB, S_WAVE))
    e("v_lshrrev_b32 v2, 3, v%d" % L)
    e("v_bfe_u32 v3, v%d, 4, 1" % L)
    e("v_lshlrev_b32 v3, 2, v3")
    e("v_and_b32 v4, 7, v%d" % L)
    e("v_xor_b32 v3, v3, v4")
    e("v_lshlrev_b32 v3, 4, v3")
    e("s_mul_i32 s41, s%d, 448" % KSL)
    e("s_lshl_b32 s42, s%d, 3" % NB)
    e("s_add_u32 s41, s41, s42")
    e("v_add_u32 v2, s41, v2")
    e("s_movk_i32 s42, 896")
    e("v_mul_lo_u32 v2, v2, s42")
    e("s_lshl_b32 s41, s%d, 7" % S_C)
    e("v_add3_u32 v10, v2, v3, s41")
    e("s_mul_i32 s62, s%d, %d" % (KSL, SLICE))
    e("s_lshl_b32 s41, s%d, 10" % NB)
    e("s_add_u32 s62, s62, s41")
    e("v_and_b32 v2, 15, v%d" % L)
    e("v_lshrrev_b32 v3, 2, v2")
    e("v_lshrrev_b32 v4, 5, v%d" % L)
    e("v_lshlrev_b32 v5, 2, v4")
    e("v_add_u32 v5, v5, v3")
    e("v_lshlrev_b32 v5, 7, v5")
    e("v_bfe_u32 v6, v2, 3, 1")
    e("v_lshlrev_b32 v6, 6, v6")
    e("v_bfe_u32 v7, v%d, 4, 1" % L)
    e("v_lshlrev_b32 v7, 5, v7")
    e("v_and_b32 v8, 3, v2")
    e("v_lshlrev_b32 v8, 3, v8")
    e("v_add3_u32 v5, v5, v6, v7")
    e("v_add_u32 v5, v5, v8")
    e("s_mul_i32 s41, s%d, %d" % (KSL, SLICE))
    e("v_add_u32 v11, s41, v5")
    e("v_xor_b32 v12, 64, v11")
    e("s_mul_i32 s41, s%d, 112" % S_T1)
    e("s_mul_i32 s42, s%d, 28" % KSL)
    e("s_add_u32 s41, s41, s42")
    e("s_lshl_b32 s41, s41, 1")
    e("s_add_u32 s41, s41, s%d" % NB)
    e("s_lshl_b32 s41, s41, 10")
    e("v_lshlrev_b32 v13, 4, v%d" % L)
    e("v_add_u32 v13, s41, v13")
    e("v_and_b32 v14, 31, v%d" % L)
    e("s_cmp_ge_u32 s%d, 4" % S_C)
    e("s_cselect_b32 s63, 1, 0")
    e("s_sub_u32 s64, 32, s%d" % S_T1)
    e("s_and_b32 s64, s64, 31")
    e("s_cmp_eq_u32 s63, 1")
    e("s_cselect_b32 s64, s64, s%d" % S_T1)
    e("v_lshrrev_b32 v4, 5, v%d" % L)
    e("s_lshl_b32 s41, s%d, 6" % S_C)
    e("s_cmp_eq_u32 s63, 1")
    e("s_cselect_b64 vcc, -1, 0")
    for mb in range(2):
        e("v_add_u32 v2, s41, v14")
        if mb: e("v_add_u32 v2, 32, v2")
        e("v_sub_u32 v3, 448, v2")
        e("v_cndmask_b32 v2, v2, v3, vcc")
        e("v_lshlrev_b32 v2, 4, v2")
        e("v_lshlrev_b32 v3, 12, v4")
        e("v_add_u32 v%d, v2, v3" % (16 + mb))
    e("s_lshl_b32 s41, s64, 4")
    e("s_lshl_b32 s42, s%d, 2" % KSL)
    e("s_add_u32 s41, s41, s42")
    e("s_lshl_b32 s41, s41, 12")
    e("s_add_u32 s65, s41, 0x%x" % UBUF)
    e("s_lshl_b32 s41, s%d, 6" % S_T1)
    e("s_lshl_b32 s42, s%d, 5" % NB)
    e("s_add_u32 s41, s41, s42")
    e("v_add_u32 v2, s41, v14")
    e("v_lshlrev_b32 v2, 2, v2")
    e("v_add_u32 v20, 0x%x, v2" % GBUF)

def p2_dma_wd(e, kk):
    st = kk >> 2
    pos = (st % 5) * 4 + (kk & 3)
    dma(e, S_WD, 10, pos * 2048, 62, kk * 16 * 896, ("wd", st))
def p2_load_h(e, cfg, kk):
    sc = " sc1" if cfg.fused else ""
    e("s_mov_b32 s%d, 0x%x" % (S_OFF, kk * 2048))
    e("buffer_load_dwordx4 %s, v13, s[%d:%d], s%d offen%s" % (vr(P2_H + 4 * kk, 4), S_WS, S_WS + 3, S_OFF, sc))
    e.vm_issue(("h", kk))
def p2_load_g(e, cfg):
    sc = " sc1" if cfg.fused else ""
    e("buffer_load_dword v15, v20, s[%d:%d], 0 offen%s" % (S_WS, S_WS + 3, sc))
    e.vm_issue("g")
def p2_load_u(e, cfg):
    sc = " sc1" if cfg.fused else ""
    for u in range(2):
        for mb in range(2):
            e("s_add_u32 s%d, s65, %d" % (S_OFF, u * 2 * 4096))
            e("buffer_load_dwordx4 %s, v%d, s[%d:%d], s%d offen%s" % (vr(P2_U + 8 * u + 4 * mb, 4), 16 + mb, S_WS, S_WS + 3, S_OFF, sc))
            e.vm_issue("u")
def p2_tfrags(e, cfg):
    L = V_LANE
    e.vm_wait(["g"])
    e("s_cmp_lg_u32 s%d, 0" % S_T1)
    e("s_cselect_b32 s41, s63, 0")
    e("s_lshl_b32 s42, s%d, 5" % NB)
    e("s_add_u32 s41, s41, s42")
    e("v_add_u32 v2, s41, v14")
    e("v_lshrrev_b32 v4, 5, v%d" % L)
    e("v_lshlrev_b32 v4, 2, v4")
    e("s_lshl_b32 s41, s63, 31")
    e("v_xor_b32 v21, s41, v15")
    e("s_mov_b32 s42, 0x%08x" % f2u(1.0 / 64))
    e("s_lshl_b32 s43, s%d, 4" % KSL)
    e("v_add_u32 v4, s43, v4")
    for u in range(2):
        for q in range(4):
            e("v_add_u32 v3, %d, v4" % (8 * u + q))
            e("v_mul_u32_u24 v3, v3, v2")
            e("v_and_b32 v3, 63, v3")
            e("v_cvt_f32_u32 v3, v3")
            e("v_mul_f32 v3, s42, v3")
            e("v_cos_f32 v5, v3")
            e("v_sin_f32 v6, v3")
            e("s_nop 0")
            e("v_mul_f32 v5, v5, v15")
            e("v_mul_f32 v6, v6, v21")
            e("v_cvt_pk_bf16_f32 v%d, v5, v6" % (P2_T + 4 * u + q))
    e("v_sub_f32 v18, 1.0, v15")
    e("v_mov_b32 v19, v18")

def p2_main(e, cfg, wd_pre=0):
    L = V_LANE
    def reads(kk):
        b = P2_A + 8 * (kk & 1)
        st = kk >> 2
        pos = (st % 5) * 4 + (kk & 3)
        for mb in range(2):
            for ip in range(2):
                e("ds_read_b64_tr_b16 %s, v%d offset:%d" % (vr(b + 4 * mb + 2 * ip, 2), 11 + mb, pos * 2048 + ip * 1024))
                e.lg_issue(("A", kk, mb))
    def issue_h(st):
        if st > 6: return
        for kk in range(4 * st, 4 * st + 4): p2_load_h(e, cfg, kk)
    def issue_w(st):
        if st > 6 or st < wd_pre: return
        for kk in range(4 * st, 4 * st + 4): p2_dma_wd(e, kk)
    def issue_both(st):
        if st > 6: return
        for kk in range(4 * st, 4 * st + 4):
            if st >= wd_pre: p2_dma_wd(e, kk)
            p2_load_h(e, cfg, kk)
    LA = cfg.p2_la
    p2_load_g(e, cfg)
    if cfg.fused:
        for st in range(LA): issue_h(st)
        p2_tfrags(e, cfg)
    else:
        for st in range(LA): issue_both(st)
        p2_tfrags(e, cfg)
        e.vm_wait([("wd", 0), ("wd", 1)])
        e("s_barrier")
    stamp(e, cfg, 1 if not cfg.fused else 6)
    reads(0)
    for kk in range(28):
        st = kk >> 2
        if (kk & 3) == 0:
            if cfg.fused:
                if st >= 1: issue_w(st + 4)
                issue_h(st + LA)
            else:
                issue_both(st + LA)
                if st + LA == 7:
                    p2_load_u(e, cfg)
        if kk + 1 < 28: reads(kk + 1)
        e.vm_wait([("h", kk)])
        b = P2_A + 8 * (kk & 1)
        for mb in range(2):
            e.lg_wait([("A", kk, mb)])
            mfma(e, P2_ACC + 16 * mb, b + 4 * mb, P2_H + 4 * kk, "0" if kk == 0 else None)
        if (kk & 3) == 3 and st < 6:
            e.vm_wait([("wd", st + 2)])
            if cfg.fused and st == cfg.p2_dpoll:
                lab = e.newlabel("DP")
                e("s_cmp_lg_u32 s%d, 0" % S_WAVE)
                e("s_cbranch_scc1 %s" % lab)
                e("s_mov_b32 s%d, 0x%x" % (S_PF, FLAGS + 16 * 128))
                poll(e, S_PF, 32)
                e.label(lab)
            e("s_barrier")
            if cfg.fused and st == cfg.p2_dpoll:
                p2_load_u(e, cfg)
    assert not e.lg
    stamp(e, cfg, 2 if not cfg.fused else 7)
    e.vm_wait(["u"])
    e("s_nop 7"); e("s_nop 3")
    for i in range(0, 32, 2):
        e("v_pk_mul_f32 %s, %s, v[18:19]" % (vr(P2_ACC + i, 2), vr(P2_ACC + i, 2)))
    e("s_nop 1")
    for u in range(2):
        for mb in range(2):
            mfma(e, P2_ACC + 16 * mb, P2_U + 8 * u + 4 * mb, P2_T + 4 * u)
    e("s_barrier")
    e("v_lshlrev_b32 v2, 4, v%d" % L)
    e("s_lshl_b32 s41, s%d, 13" % S_WAVE)
    e("v_add_u32 v3, s41, v2")
    e("s_nop 7"); e("s_nop 1")
    for qd in range(4):
        for hf in range(2):
            e("ds_write_b128 v3, %s offset:%d" % (vr(P2_ACC + 8 * qd + 4 * hf, 4), qd * 2048 + hf * 1024))
    e("s_waitcnt lgkmcnt(0)")
    e("s_barrier")
    e("s_lshl_b32 s41, s%d, 15" % NB)
    e("s_lshl_b32 s42, s%d, 11" % KSL)
    e("s_add_u32 s41, s41, s42")
    e("v_add_u32 v3, s41, v2")
    for k in range(4):
        for hf in range(2):
            e("ds_read_b128 %s, v3 offset:%d" % (vr(96 + 8 * k + 4 * hf, 4), k * 8192 + hf * 1024))
    e("s_lshl_b32 s41, s%d, 5" % NB)
    e("v_add_u32 v2, s41, v14")
    e("v_lshlrev_b32 v2, 5, v2")
    e("v_add_u32 v2, s%d, v2" % S_T1)
    e("s_movk_i32 s42, 896")
    e("v_mul_lo_u32 v2, v2, s42")
    e("s_lshl_b32 s41, s%d, 7" % S_C)
    e("s_lshl_b32 s42, s%d, 5" % KSL)
    e("s_add_u32 s41, s41, s42")
    e("v_lshrrev_b32 v4, 5, v%d" % L)
    e("v_lshlrev_b32 v4, 4, v4")
    e("v_add3_u32 v2, v2, v4, s41")
    e("s_waitcnt lgkmcnt(0)")
    for q in range(0, 8, 2):
        e("v_pk_add_f32 %s, %s, %s" % (vr(96 + q, 2), vr(96 + q, 2), vr(104 + q, 2)))
        e("v_pk_add_f32 %s, %s, %s" % (vr(112 + q, 2), vr(112 + q, 2), vr(120 + q, 2)))
    for q in range(0, 8, 2):
        e("v_pk_add_f32 %s, %s, %s" % (vr(96 + q, 2), vr(96 + q, 2), vr(112 + q, 2)))
    for q in range(4):
        e("v_cvt_pk_bf16_f32 v%d, v%d, v%d" % (128 + q, 96 + 2 * q, 96 + 2 * q + 1))
    e("s_nop 1")
    e("v_permlane32_swap_b32 v128, v130")
    e("v_permlane32_swap_b32 v129, v131")
    e("buffer_store_dwordx4 v[128:131], v2, s[%d:%d], 0 offen" % (S_OUT, S_OUT + 3))
    stamp(e, cfg, 3 if not cfg.fused else 8)

def p2_role(e):
    e("s_and_b32 s41, s2, 7")
    e("s_lshr_b32 s42, s2, 3")
    e("s_mul_i32 s43, s42, 37")
    e("s_lshr_b32 s43, s43, 8")
    e("s_mul_i32 s76, s43, 7")
    e("s_sub_u32 s%d, s42, s76" % S_C)
    e("s_lshl_b32 s41, s41, 2")
    e("s_add_u32 s%d, s41, s43" % S_T1)

def header(e, name):
    e.raw(".text"); e.raw(".globl %s" % name); e.raw(".p2align 8"); e.raw(".type %s,@function" % name); e.label(name)

def kernel1(e, cfg):
    header(e, "k1_kernel")
    e("s_cmp_ge_u32 s2, 256")
    e("s_cbranch_scc1 K1_END")
    kernarg_loads(e)
    entry_common(e)
    def fin():
        stamp_store(e, cfg, 0)
        e("s_endpgm")
    phase1(e, cfg, fin, fin, lambda c: fin())
    e.label("K1_END")
    e("s_endpgm")

def kernel2(e, cfg):
    header(e, "k2_kernel")
    e.vm = []; e.lg = []
    e("s_cmp_ge_u32 s2, 256")
    e("s_cbranch_scc1 K2_END")
    e("s_lshr_b32 s42, s2, 3")
    e("s_cmp_ge_u32 s42, 28")
    e("s_cbranch_scc1 K2_END")
    kernarg_loads(e)
    entry_common(e)
    p2_role(e)
    p2_setup(e, cfg)
    e("s_waitcnt lgkmcnt(0)")
    srd(e, S_WS, 74, WS_BYTES)
    srd(e, S_OUT, 46, 1835008)
    srd(e, S_WD, 56, 1605632)
    stamp(e, cfg, 0)
    p2_main(e, cfg, 0)
    stamp_store(e, cfg, 0x40000)
    e.label("K2_END")
    e("s_endpgm")


def nonce_issue(e):
    lab = e.newlabel("NONCE")
    srd(e, S_DBG, 72, 256)
    e("s_or_b32 s41, s2, s%d" % S_WAVE)
    e("s_cmp_lg_u32 s41, 0")
    e("s_cbranch_scc1 %s" % lab)
    e("s_memrealtime s[42:43]")
    e("s_waitcnt lgkmcnt(0)")
    e("s_or_b32 s42, s42, 1")
    e("v_mov_b32 v4, s42")
    e("v_lshlrev_b32 v5, 20, v%d" % V_LANE)
    e("buffer_store_dword v4, v5, s[%d:%d], 0 offen sc1" % (S_DBG, S_DBG + 3))
    e.label(lab)
    e("v_mov_b32 v7, 0")

def nonce_load(e):
    e("buffer_load_dword v4, v7, s[%d:%d], 0 offen sc1" % (S_DBG, S_DBG + 3))

def nonce_finish(e):
    nonce_finish_any(e)

def flag_addr(e, is_h):
    if is_h:
        e("s_lshl_b32 s41, s%d, 8" % S_R)
        e("s_lshl_b32 s42, s%d, 2" % S_FB)
    else:
        e("s_lshl_b32 s41, s%d, 1" % S_QG)
        e("s_add_u32 s41, s41, s%d" % S_EH)
        e("s_lshl_b32 s42, s41, 2")
        e("s_movk_i32 s41, %d" % (16 * 256))
    e("s_add_u32 s41, s41, s42")
    e("s_add_u32 s%d, s41, 0x%x" % (S_FLAG, FLAGS))

def flag_store(e):
    e("v_mov_b32 v60, s%d" % S_NONCE)
    e("v_lshlrev_b32 v61, 24, v%d" % V_LANE)
    e("v_add_u32 v61, s%d, v61" % S_FLAG)
    e("buffer_store_dword v60, v61, s[%d:%d], 0 offen sc1" % (S_WS, S_WS + 3))

def poll_prep(e, sbase, nflags):
    e("v_lshlrev_b32 v61, 2, v%d" % V_LANE)
    e("v_add_u32 v61, s%d, v61" % sbase)
    e("v_cmp_gt_u32 vcc, %d, v%d" % (nflags, V_LANE))
    e("v_mov_b32 v60, 0x7fffffff")
    e("s_nop 0")
    e("v_cndmask_b32 v61, v60, v61, vcc")
def poll_issue(e):
    e("buffer_load_dword v60, v61, s[%d:%d], 0 offen sc1" % (S_WS, S_WS + 3))
def poll_loop(e, nflags, first_issued):
    top = e.newlabel("POLL"); done = e.newlabel("POLLD"); chk = e.newlabel("POLLC")
    e("s_mov_b32 s41, 0")
    if first_issued: e("s_branch %s" % chk)
    e.label(top)
    poll_issue(e)
    e.label(chk)
    e("s_waitcnt vmcnt(0)")
    e("v_cmp_eq_u32 vcc, s%d, v60" % S_NONCE)
    e("s_nop 1")
    mask = (1 << nflags) - 1
    e("s_and_b32 s42, vcc_lo, 0x%x" % (mask & 0xffffffff))
    e("s_cmp_eq_u32 s42, 0x%x" % (mask & 0xffffffff))
    e("s_cbranch_scc1 %s" % done)
    e("s_add_u32 s41, s41, 1")
    e("s_cmp_ge_u32 s41, 0x40000")
    e("s_cbranch_scc1 %s" % done)
    e("s_branch %s" % top)
    e.label(done)
def poll(e, sbase, nflags, drain=True):
    poll_prep(e, sbase, nflags)
    poll_loop(e, nflags, False)

def poll2(e, sline1, line2):
    top = e.newlabel("POLL"); done = e.newlabel("POLLD")
    e("v_lshlrev_b32 v61, 2, v%d" % V_LANE)
    e("v_add_u32 v62, 0x%x, v61" % (line2 - 128))
    e("v_add_u32 v61, s%d, v61" % sline1)
    e("v_cmp_gt_u32 vcc, 14, v%d" % V_LANE)
    e("v_mov_b32 v60, 0x7fffffff")
    e("s_nop 0")
    e("v_cndmask_b32 v61, v60, v61, vcc")
    e("v_cmp_lt_u32 vcc, 31, v%d" % V_LANE)
    e("s_nop 1")
    e("v_cndmask_b32 v61, v61, v62, vcc")
    e("s_mov_b32 s41, 0")
    e.label(top)
    e("buffer_load_dword v60, v61, s[%d:%d], 0 offen sc1" % (S_WS, S_WS + 3))
    e("s_waitcnt vmcnt(0)")
    e("v_cmp_eq_u32 vcc, s%d, v60" % S_NONCE)
    e("s_nop 1")
    e("s_and_b32 s42, vcc_lo, 0x3fff")
    e("s_cmp_eq_u32 s42, 0x3fff")
    e("s_cselect_b32 s42, vcc_hi, 0")
    e("s_cmp_eq_u32 s42, -1")
    e("s_cbranch_scc1 %s" % done)
    e("s_add_u32 s41, s41, 1")
    e("s_cmp_ge_u32 s41, 0x40000")
    e("s_cbranch_scc1 %s" % done)
    e("s_branch %s" % top)
    e.label(done)

def kernel_fused(e, cfg):
    name = "gated_mix__spectral_fnet__glu_gated_glu__prompt_kernel"
    header(e, name)
    e("s_cmp_ge_u32 s2, 256")
    e("s_cbranch_scc1 KF_END")
    kernarg_loads(e)
    entry_common(e)
    def after_h_consumer():
        e.vm_wait_all()
        e("s_barrier")
        lab = e.newlabel("NOTW0")
        e("s_cmp_lg_u32 s%d, 0" % S_WAVE)
        e("s_cbranch_scc1 %s" % lab)
        flag_store(e)
        e.label(lab)
        stamp(e, cfg, 4)
        p2_role(e)
        p2_setup(e, cfg)
        srd(e, S_OUT, 46, 1835008)
        srd(e, S_WD, 56, 1605632)
        e("s_cmp_lg_u32 s%d, 0" % S_WAVE)
        e("s_cbranch_scc1 P2_START")
        e("s_lshr_b32 s43, s%d, 1" % S_T1)
        e("s_lshl_b32 s43, s43, 7")
        e("s_add_u32 s%d, s43, 0x%x" % (S_PF, FLAGS))
        poll(e, S_PF, 14)
        e("s_branch P2_START")
    def after_h_loader():
        e("s_barrier")
        p2_role(e)
        p2_setup(e, cfg)
        srd(e, S_OUT, 46, 1835008)
        e("v_subrev_u32 v9, %d, v10" % (8 * 896))
        e("s_sub_u32 s69, s62, 1024")
        for kk in range(20):
            pos = kk
            dma(e, S_WD, 9, pos * 2048, 69, kk * 16 * 896, ("wdp", kk))
            dma(e, S_WD, 10, pos * 2048, 62, kk * 16 * 896, ("wdp", kk))
        e("s_barrier")
        stamp(e, cfg, 4)
        e.vm = []
        e.label("P2_START")
        e("s_waitcnt vmcnt(0)")
        e("s_barrier")
        stamp(e, cfg, 5)
        e.vm = []; e.lg = []
        p2_main(e, cfg, 5)
        stamp_store(e, cfg, 0)
        e("s_endpgm")
    def after_d(is_cons):
        if is_cons:
            e.vm_wait_all()
            e("s_barrier")
            lab = e.newlabel("DNOTW0")
            e("s_cmp_lg_u32 s%d, 0" % S_WAVE)
            e("s_cbranch_scc1 %s" % lab)
            flag_store(e)
            e("s_waitcnt vmcnt(0)")
            e.label(lab)
            stamp_store(e, cfg, 0)
            e("s_endpgm")
        else:
            e("s_waitcnt vmcnt(0)")
            e("s_barrier")
            stamp_store(e, cfg, 0)
            e("s_endpgm")
    phase1(e, cfg, after_h_consumer, after_h_loader, after_d)
    e.label("KF_END")
    e("s_endpgm")


WB2 = 114688; NW2 = 6; WS2 = 8192
H_ACC = 64
H_FR = 192
V_XA2 = 10
V_WA2 = 18
S_WT = 69

def h2_consumer(e, cfg):
    L = V_LANE; T = 26
    e("s_lshr_b32 s%d, s%d, 1" % (S_WT, S_WAVE))
    e("s_and_b32 s%d, s%d, 1" % (S_WF, S_WAVE))
    e("v_and_b32 v%d, 31, v%d" % (T, L))
    e("v_lshrrev_b32 v%d, 5, v%d" % (T + 1, L))
    e("v_lshrrev_b32 v%d, 1, v%d" % (T + 2, T))
    e("v_and_b32 v%d, 7, v%d" % (T + 2, T + 2))
    e("s_lshl_b32 s41, s%d, 6" % S_WT)
    e("v_add_u32 v%d, s41, v%d" % (T + 3, T))
    e("v_lshlrev_b32 v%d, 7, v%d" % (T + 3, T + 3))
    for k in range(4):
        e("v_add_u32 v%d, %d, v%d" % (T + 4, 2 * k, T + 1))
        e("v_xor_b32 v%d, v%d, v%d" % (T + 4, T + 4, T + 2))
        e("v_lshlrev_b32 v%d, 4, v%d" % (T + 4, T + 4))
        e("v_add_u32 v%d, v%d, v%d" % (V_XA2 + k, T + 3, T + 4))
        e("v_add_u32 v%d, 0x10000, v%d" % (V_XA2 + 4 + k, V_XA2 + k))
    e("v_and_b32 v%d, 15, v%d" % (T + 4, L))
    e("v_lshrrev_b32 v%d, 2, v%d" % (T + 5, T + 4))
    e("v_lshlrev_b32 v%d, 3, v%d" % (T + 6, T + 1))
    e("v_add_u32 v%d, v%d, v%d" % (T + 6, T + 6, T + 5))
    e("v_lshlrev_b32 v%d, 7, v%d" % (T + 6, T + 6))
    e("v_bfe_u32 v%d, v%d, 3, 1" % (T + 7, T + 4))
    e("v_xor_b32 v%d, s%d, v%d" % (T + 7, S_WF, T + 7))
    e("v_lshlrev_b32 v%d, 6, v%d" % (T + 7, T + 7))
    e("v_add_u32 v%d, v%d, v%d" % (T + 6, T + 6, T + 7))
    e("v_bfe_u32 v%d, v%d, 4, 1" % (T + 7, L))
    e("v_lshlrev_b32 v%d, 5, v%d" % (T + 7, T + 7))
    e("v_add_u32 v%d, v%d, v%d" % (T + 6, T + 6, T + 7))
    e("v_and_b32 v%d, 3, v%d" % (T + 7, T + 4))
    e("v_lshlrev_b32 v%d, 3, v%d" % (T + 7, T + 7))
    e("v_add_u32 v%d, v%d, v%d" % (T + 6, T + 6, T + 7))
    e("v_add_u32 v%d, 0x%x, v%d" % (V_WA2, WB2, T + 6))
    e("s_lshl_b32 s41, s%d, 1" % S_R)
    e("s_add_u32 s41, s41, s%d" % S_WT)
    e("s_mul_i32 s41, s41, 112")
    e("s_lshl_b32 s42, s%d, 1" % S_FB)
    e("s_add_u32 s42, s42, s%d" % S_WF)
    e("s_lshl_b32 s42, s42, 1")
    e("s_add_u32 s41, s41, s42")
    e("s_lshl_b32 s41, s41, 11")
    e("v_lshlrev_b32 v20, 4, v%d" % L)
    e("v_add_u32 v20, s41, v20")
    e("v_add_u32 v21, 0x%x, v20" % (56 * 2048))
    e("s_waitcnt lgkmcnt(0)")
    srd(e, S_WS, 74, WS_BYTES)
    flag_addr(e, True)
    nonce_issue(e)
    stamp(e, cfg, 0)
    if "notouch" not in cfg.x:
        srd(e, S_WD, 56, 1605632)
        e("s_lshr_b32 s41, s2, 3")
        e("s_mul_i32 s41, s41, 448")
        e("s_lshl_b32 s42, s%d, 6" % S_WAVE)
        e("s_add_u32 s41, s41, s42")
        e("v_add_u32 v8, s41, v%d" % L)
        e("v_lshlrev_b32 v8, 7, v8")
        e("buffer_load_dword v2, v8, s[%d:%d], 0 offen" % (S_WD, S_WD + 3))
        e("s_cmp_eq_u32 s%d, 3" % S_WAVE)
        lab = e.newlabel("TCH")
        e("s_cbranch_scc1 %s" % lab)
        e("v_add_u32 v8, 0x%x, v8" % (256 * 128))
        e("buffer_load_dword v3, v8, s[%d:%d], 0 offen" % (S_WD, S_WD + 3))
        e.label(lab)
    e("s_barrier")
    stamp(e, cfg, 1)
    def reads(g):
        p = g // 28; kap = g % 28
        base = H_FR + 16 * (g & 1)
        c = kap >> 2; kk4 = kap & 3
        xo = c * 16384
        xv = V_XA2 + kk4 + (4 if xo >= 0x10000 else 0); xo &= 0xffff
        j = g >> 1; kk = g & 1
        so = (j % NW2) * WS2
        def xr(nb): return (("X", g, nb), "ds_read_b128 %s, v%d offset:%d" % (vr(base + 4 * nb, 4), xv, xo + nb * 4096))
        def wr(m, ip): return (("W", g, m), "ds_read_b64_tr_b16 %s, v%d offset:%d" % (vr(base + 8 + 4 * m + 2 * ip, 2), V_WA2, so + m * 4096 + (16 * kk + 4 * ip) * 128))
        return [wr(0, 0), wr(0, 1), xr(0), wr(1, 0), wr(1, 1), xr(1)]
    def epilogue(p):
        e("s_mov_b32 s42, 0x%08x" % f2u(-LOG2E))
        e("s_mov_b32 s43, s42")
        e("s_mov_b32 s44, 1.0")
        e("s_mov_b32 s45, 1.0")
        e("s_nop 7")
        grp = 0
        for nb in range(2):
            for hf in range(2):
                outb = 224 + 4 * grp; grp += 1
                A = H_ACC + 16 * nb + 8 * hf; B = H_ACC + 32 + 16 * nb + 8 * hf
                for q in range(0, 8, 2):
                    e("v_pk_mul_f32 %s, %s, s[42:43]" % (vr(A + q, 2), vr(A + q, 2)))
                for q in range(8):
                    e("v_exp_f32 v%d, v%d" % (A + q, A + q))
                for q in range(0, 8, 2):
                    e("v_pk_add_f32 %s, %s, s[44:45]" % (vr(A + q, 2), vr(A + q, 2)))
                for q in range(8):
                    e("v_rcp_f32 v%d, v%d" % (A + q, A + q))
                for q in range(0, 8, 2):
                    e("v_pk_mul_f32 %s, %s, %s" % (vr(A + q, 2), vr(A + q, 2), vr(B + q, 2)))
                for q2 in range(4):
                    e("v_cvt_pk_bf16_f32 v%d, v%d, v%d" % (outb + q2, A + 2 * q2, A + 2 * q2 + 1))
                if not ("nostoreB" in cfg.x and p == 1):
                    e("buffer_store_dwordx4 %s, v%d, s[%d:%d], 0 offen offset:%d%s" % (vr(outb, 4), 20 + p, S_WS, S_WS + 3, hf * 2048 + nb * 1024, "" if "plainst" in cfg.x else " sc1"))
                e.vm_issue("hst")
    for tag, txt in reads(0):
        e(txt); e.lg_issue(tag)
    for g in range(56):
        base = H_FR + 16 * (g & 1)
        nxt = reads(g + 1) if g + 1 < 56 else []
        first = (g % 28 == 0)
        k = 0
        for n in range(4):
            nb = n >> 1; m = n & 1
            e.lg_wait([("W", g, m), ("X", g, nb)])
            d = H_ACC + 32 * m + 16 * nb
            mfma(e, d, base + 8 + 4 * m, base + 4 * nb, "0" if first else None)
            cnt = 2 if n < 2 else 1
            for _ in range(cnt):
                if k < len(nxt):
                    tag, txt = nxt[k]; k += 1
                    e(txt); e.lg_issue(tag)
        if g == 27:
            epilogue(0)
        if g == 36:
            nonce_load(e)
        if g == 2 * cfg.flagA_bar - 1:
            e("s_waitcnt vmcnt(0)")
        if (g & 1) and g < 55:
            e("s_barrier")
    assert not e.lg
    e.vm = []
    e("s_barrier")
    nonce_finish(e)
    stamp(e, cfg, 2)
    epilogue(1)
    stamp(e, cfg, 3)

def h2_loader(e, cfg):
    L = V_LANE; T = 26
    VX = 10; VW = 14
    e("v_lshrrev_b32 v%d, 3, v%d" % (T, L))
    e("s_lshl_b32 s41, s%d, 5" % S_LW)
    e("v_add_u32 v%d, s41, v%d" % (T, T))
    e("v_and_b32 v%d, 7, v%d" % (T + 1, L))
    e("v_lshrrev_b32 v%d, 4, v%d" % (T + 2, L))
    e("s_movk_i32 s42, 896")
    for i in range(4):
        if i: e("v_add_u32 v%d, 8, v%d" % (T, T))
        e("v_add_u32 v%d, %d, v%d" % (T + 3, (4 * i) & 7, T + 2))
        e("v_and_b32 v%d, 7, v%d" % (T + 3, T + 3))
        e("v_xor_b32 v%d, v%d, v%d" % (T + 3, T + 3, T + 1))
        e("v_lshlrev_b32 v%d, 4, v%d" % (T + 3, T + 3))
        e("v_lshrrev_b32 v%d, 6, v%d" % (T + 4, T))
        e("v_and_b32 v%d, 63, v%d" % (T + 5, T))
        e("v_lshlrev_b32 v%d, 5, v%d" % (T + 5, T + 5))
        e("s_lshl_b32 s41, s%d, 1" % S_R)
        e("v_add3_u32 v%d, v%d, v%d, s41" % (T + 4, T + 4, T + 5))
        e("v_mul_lo_u32 v%d, v%d, s42" % (T + 4, T + 4))
        e("v_add_u32 v%d, v%d, v%d" % (VX + i, T + 4, T + 3))
    e("v_lshrrev_b32 v%d, 3, v%d" % (T + 3, L))
    e("s_lshl_b32 s41, s%d, 3" % S_LW)
    e("v_add_u32 v%d, s41, v%d" % (T + 3, T + 3))
    e("s_movk_i32 s42, 3584")
    e("v_mul_lo_u32 v%d, v%d, s42" % (T + 3, T + 3))
    e("v_bfe_u32 v%d, v%d, 4, 1" % (T + 4, L))
    e("v_lshlrev_b32 v%d, 2, v%d" % (T + 4, T + 4))
    e("v_xor_b32 v%d, v%d, v%d" % (T + 4, T + 4, T + 1))
    e("v_lshlrev_b32 v%d, 4, v%d" % (T + 4, T + 4))
    e("s_lshl_b32 s41, s%d, 7" % S_FB)
    e("v_add3_u32 v%d, v%d, v%d, s41" % (VW, T + 3, T + 4))
    e("s_lshl_b32 s%d, s%d, 10" % (S_LDSW, S_LW))
    e("s_lshl_b32 s%d, s%d, 12" % (S_LDSX, S_LW))
    e("s_waitcnt lgkmcnt(0)")
    srd(e, S_X, 44, 1835008)
    srd(e, S_WA, 52, 1605632); srd(e, S_WB, 54, 1605632)
    srd(e, S_WS, 74, WS_BYTES)
    srd(e, S_GW, 58, 896)
    srd(e, S_WD, 56, 1605632)
    srd(e, S_DBG, 72, 256)
    flag_addr(e, True)
    e("v_mov_b32 v7, 0")
    stamp(e, cfg, 0)
    ROT = "norot" not in cfg.x
    if ROT:
        e("s_add_u32 s6, s%d, s%d" % (S_R, S_FB))
        e("s_mul_i32 s7, s6, 37")
        e("s_lshr_b32 s7, s7, 8")
        e("s_mul_i32 s7, s7, 7")
        e("s_sub_u32 s6, s6, s7")
        e("s_mov_b32 s7, s6")
    def dx(c):
        if ROT:
            e("s_lshl_b32 s%d, s6, 7" % S_OFF)
            for i in range(4): dma(e, S_X, VX + i, c * 16384 + i * 1024, S_LDSX, None, ("x", c))
            rot_next(e, 6, 7)
        else:
            for i in range(4): dma(e, S_X, VX + i, c * 16384 + i * 1024, S_LDSX, c * 128, ("x", c))
    def dw(j):
        p = j // 14; jj = j % 14
        if ROT:
            e("s_mul_i32 s%d, s7, %d" % (S_OFF, 64 * 3584))
            e("s_add_u32 s%d, s%d, %d" % (S_OFF, S_OFF, (jj & 1) * 32 * 3584 + p * 1792))
            for m in range(2):
                dma(e, S_WA if m == 0 else S_WB, VW, WB2 + (j % NW2) * WS2 + m * 4096, S_LDSW, None, ("w", j))
            if jj & 1: rot_next(e, 7, 7)
        else:
            for m in range(2):
                dma(e, S_WA if m == 0 else S_WB, VW, WB2 + (j % NW2) * WS2 + m * 4096, S_LDSW, jj * 32 * 3584 + p * 1792, ("w", j))
    q = []
    for j in range(28):
        if j < 14 and j % 2 == 0: q.append(("x", j // 2, -1))
        q.append(("w", j, -1 if j < NW2 else j - NW2 + 1))
    def cost(it): return 4 if it[0] == "x" else 2
    def issue(it): (dx if it[0] == "x" else dw)(it[1])
    def need(j):
        t = []
        for jj in (j, j + 1):
            if jj <= 27:
                if jj < 14: t.append(("x", jj >> 1))
                t.append(("w", jj))
        return t
    issued = set(); curbar = [-1]
    def ensure(tags):
        while q and any(t not in issued for t in tags):
            it = q.pop(0); assert it[2] <= curbar[0], (it, curbar)
            issue(it); issued.add((it[0], it[1]))
    ensure(need(0))
    budget0 = cfg.pro_extra
    while q and budget0 > 0 and q[0][2] <= -1:
        it = q.pop(0); issue(it); issued.add((it[0], it[1])); budget0 -= cost(it)
    e.vm_wait(need(0))
    e("s_barrier")
    stamp(e, cfg, 1)
    for j in range(27):
        curbar[0] = j
        if j == 0:
            p2_role(e)
            q_setup(e, 0, 16)
            if "spf_disabled" in cfg.x:
                e("s_mul_i32 s4, s43, 448")
                e("s_mul_i32 s5, s%d, 112" % S_LW)
                e("s_add_u32 s4, s4, s5")
                e("s_mul_i32 s4, s4, 896")
                e("s_lshl_b32 s5, s%d, 7" % S_C)
                e("s_add_u32 s4, s4, s5")
        if "spf_disabled" in cfg.x and 1 <= j <= 14:
            for _ in range(8):
                e("s_load_dword s101, s[56:57], s4")
                e("s_add_u32 s4, s4, 896")
        if j >= 16 and j % 2 == 0:
            c = (j - 16) // 2
            q_dma_wd(e, 0, 2 * c, 16); q_dma_wd(e, 0, 2 * c + 1, 16)
        ensure(need(j + 1))
        budget = cfg.stage_budget2
        while q and budget > 0 and q[0][2] <= j:
            it = q.pop(0); issue(it); issued.add((it[0], it[1])); budget -= cost(it)
        if j == 13:
            gate_issue(e, cfg, True)
            lab = e.newlabel("GX")
            e("s_cmp_ge_u32 s%d, 2" % S_FB)
            e("s_cbranch_scc1 %s" % lab)
            sv = list(e.vm)
            gate_issue(e, cfg, True, True)
            e.vm = sv
            e.label(lab)
        if j == 17:
            e("s_waitcnt vmcnt(0)"); e.vm = []
            gate_finish(e, cfg)
            lab = e.newlabel("GY")
            e("s_cmp_ge_u32 s%d, 2" % S_FB)
            e("s_cbranch_scc1 %s" % lab)
            gate_finish(e, cfg, True)
            e.label(lab)
            e("buffer_load_dword v4, v7, s[%d:%d], 0 offen sc1" % (S_DBG, S_DBG + 3))
            e.vm_issue("nonce")
        if j == cfg.flagA_bar - 1:
            e.vm_wait(["nonce"])
            sv = list(e.vm)
            nonce_finish_any(e, keepvm=True)
            e.vm = sv
        if j == cfg.flagA_bar:
            lab = e.newlabel("FA")
            e("s_cmp_lg_u32 s%d, 4" % S_WAVE)
            e("s_cbranch_scc1 %s" % lab)
            flag_store(e)
            e.label(lab)
        if j == cfg.epoll:
            flags_line(e, 0)
            poll_prep(e, S_PF, 14)
            poll_issue(e); e.vm_issue("poll")
        e.vm_wait(need(j + 1))
        e("s_barrier")
    assert not q
    q_setup2(e, 0)
    e("s_waitcnt lgkmcnt(0)")
    e("s_barrier")
    stamp(e, cfg, 2)
    poll_loop(e, 14, True)
    if cfg.diag: e("s_mov_b32 s%d, s41" % (S_STAMP + 16))
    stamp(e, cfg, 4)
    e.vm = []
    for kk in range(cfg.hpre): q_load_h(e, kk)
    q_dma_wd(e, 0, 12, 16); q_dma_wd(e, 0, 13, 16)

def nonce_finish_any(e, keepvm=False):
    lab = e.newlabel("NFA"); top = e.newlabel("NTA"); chk = e.newlabel("NCK")
    e("s_mov_b32 s42, 0")
    if keepvm: e("s_branch %s" % chk)
    e.label(top)
    e("s_waitcnt vmcnt(0)")
    e.label(chk)
    e("v_readfirstlane_b32 s%d, v4" % S_NONCE)
    e("s_nop 3")
    e("s_cmp_lg_u32 s%d, 0" % S_NONCE)
    e("s_cbranch_scc1 %s" % lab)
    e("s_add_u32 s42, s42, 1")
    e("s_cmp_ge_u32 s42, 0x40000")
    e("s_cbranch_scc1 %s" % lab)
    e("s_sleep 1")
    e("buffer_load_dword v4, v7, s[%d:%d], 0 offen sc1" % (S_DBG, S_DBG + 3))
    e("s_branch %s" % top)
    e.label(lab)

Q_ACC = 64
Q_H = 128
Q_A = 240
SL2 = 40960
SI = 3

def q_setup(e, part, vw=9):
    L = V_LANE
    e("s_and_b32 s%d, s%d, 3" % (SI, S_WAVE))
    e("v_lshrrev_b32 v2, 3, v%d" % L)
    e("v_bfe_u32 v3, v%d, 4, 1" % L)
    e("v_lshlrev_b32 v3, 2, v3")
    e("v_and_b32 v8, 7, v%d" % L)
    e("v_xor_b32 v3, v3, v8")
    e("v_lshlrev_b32 v3, 4, v3")
    e("s_mul_i32 s41, s%d, 224" % SI)
    if part: e("s_add_u32 s41, s41, 896")
    e("v_add_u32 v2, s41, v2")
    e("s_movk_i32 s42, 896")
    e("v_mul_lo_u32 v2, v2, s42")
    e("s_lshl_b32 s41, s%d, 7" % S_C)
    e("v_add3_u32 v%d, v2, v3, s41" % vw)
    e("v_add_u32 v%d, %d, v%d" % (vw + 1, 8 * 896, vw))
    e("s_lshl_b32 s62, s%d, 12" % SI)
    e("s_and_b32 s4, s%d, 3" % S_T1)
    e("s_mul_i32 s4, s4, 3")
    e("s_lshl_b32 s5, s%d, 1" % S_C)
    e("s_add_u32 s4, s4, s5")
    e("s_cmp_ge_u32 s4, 14")
    e("s_cselect_b32 s5, 14, 0")
    e("s_sub_u32 s4, s4, s5")
    if P2ROT[0] == 0: e("s_mov_b32 s4, 0")
    e("s_mov_b32 s5, s4")

P2ROT = [1]
HSC = [" sc1"]
def q_setup2(e, part):
    L = V_LANE
    e("v_and_b32 v2, 15, v%d" % L)
    e("v_lshrrev_b32 v3, 2, v2")
    e("v_lshrrev_b32 v8, 5, v%d" % L)
    e("v_lshlrev_b32 v5, 2, v8")
    e("v_add_u32 v5, v5, v3")
    e("v_lshlrev_b32 v5, 7, v5")
    e("v_bfe_u32 v6, v2, 3, 1")
    e("v_lshlrev_b32 v6, 6, v6")
    e("v_bfe_u32 v3, v%d, 4, 1" % L)
    e("v_lshlrev_b32 v3, 5, v3")
    e("v_and_b32 v8, 3, v2")
    e("v_lshlrev_b32 v8, 3, v8")
    e("v_add3_u32 v5, v5, v6, v3")
    e("v_add_u32 v5, v5, v8")
    e("v_add_u32 v11, s62, v5")
    e("v_xor_b32 v12, 64, v11")
    e("v_add_u32 v18, 0x10000, v11")
    e("v_add_u32 v19, 0x10000, v12")
    e("v_add_u32 v15, 0x20000, v11")
    e("v_add_u32 v63, 0x20000, v12")
    e("s_mul_i32 s41, s%d, 112" % S_T1)
    e("s_mul_i32 s42, s%d, 14" % SI)
    e("s_add_u32 s41, s41, s42")
    if part: e("s_add_u32 s41, s41, 56")
    e("s_lshl_b32 s41, s41, 11")
    e("v_lshlrev_b32 v13, 4, v%d" % L)
    e("v_add_u32 v13, s41, v13")
    e("v_and_b32 v14, 31, v%d" % L)

def q_pos(part, kk):
    if part == 0: return (kk >> 1) * 16384 + (kk & 1) * 2048
    if kk < 6: return WB2 + (kk >> 1) * 16384 + (kk & 1) * 2048
    k2 = kk - 6
    return (k2 >> 1) * 16384 + (k2 & 1) * 2048

def q_dma_wd(e, part, kk, vw=9):
    pos = q_pos(part, kk)
    e("s_mul_i32 s%d, s4, %d" % (S_OFF, 16 * 896))
    dma(e, S_WD, vw, pos, 62, None, ("wd", kk))
    dma(e, S_WD, vw + 1, pos + 1024, 62, None, ("wd", kk))
    rot_next(e, 4, 14)

def q_load_h(e, kk):
    e("s_lshl_b32 s%d, s5, 11" % S_OFF)
    for nb in range(2):
        e("buffer_load_dwordx4 %s, v13, s[%d:%d], s%d offen offset:%d%s" % (vr(Q_H + 8 * kk + 4 * nb, 4), S_WS, S_WS + 3, S_OFF, nb * 1024, HSC[0]))
        e.vm_issue(("h", kk))
    rot_next(e, 5, 14)

def q_mainloop(e, cfg, part, init_zero, pre, extra=None):
    def reads(kk):
        b = Q_A + 8 * (kk & 1)
        pos = q_pos(part, kk)
        for mb in range(2):
            for ip in range(2):
                va = (11 + mb) if pos < 0x10000 else (18 + mb)
                po = pos if pos < 0x10000 else pos - 0x10000
                if pos >= 0x20000:
                    va = (15, 63)[mb]; po = pos - 0x20000
                e("ds_read_b64_tr_b16 %s, v%d offset:%d" % (vr(b + 4 * mb + 2 * ip, 2), va, po + ip * 1024))
                e.lg_issue(("A", kk, mb))
    nxt = pre
    e.vm_wait([("wd", 0)])
    reads(0)
    for kk in range(14):
        if nxt < 14:
            q_load_h(e, nxt); nxt += 1
            if nxt == 14 and extra: extra()
        if kk + 1 < 14:
            e.vm_wait([("wd", kk + 1)])
            reads(kk + 1)
        e.vm_wait([("h", kk)])
        b = Q_A + 8 * (kk & 1)
        for mb in range(2):
            e.lg_wait([("A", kk, mb)])
            for nb in range(2):
                mfma(e, Q_ACC + 16 * (2 * mb + nb), b + 4 * mb, Q_H + 8 * kk + 4 * nb, "0" if (kk == 0 and init_zero) else None)
    assert not e.lg and nxt == 14

def flags_line(e, part):
    e("s_lshr_b32 s43, s%d, 1" % S_T1)
    e("s_lshl_b32 s43, s43, 8")
    e("s_add_u32 s%d, s43, 0x%x" % (S_PF, FLAGS + 128 * part))

def q_loader_A(e, cfg):
    stamp(e, cfg, 5)
    q_mainloop(e, cfg, 0, True, cfg.hpre)
    stamp(e, cfg, 6)
    e("v_lshlrev_b32 v2, 4, v%d" % V_LANE)
    e("v_add_u32 v2, s62, v2")
    e("s_nop 7"); e("s_nop 3")
    for qd in range(16):
        e("ds_write_b128 v2, %s offset:%d" % (vr(Q_ACC + 4 * qd, 4), (qd >> 2) * 16384 + (qd & 3) * 1024))
        if qd == 9: e("s_waitcnt lgkmcnt(4)")
    e("s_waitcnt lgkmcnt(0)")
    e("s_barrier")
    stamp(e, cfg, 7)

def q_consumer_B(e, cfg):
    L = V_LANE
    p2_role(e)
    q_setup(e, 1)
    q_setup2(e, 1)
    srd(e, S_OUT, 46, 1835008)
    srd(e, S_WD, 56, 1605632)
    e("s_cmp_ge_u32 s%d, 4" % S_C)
    e("s_cselect_b32 s63, 1, 0")
    e("s_sub_u32 s64, 32, s%d" % S_T1)
    e("s_and_b32 s64, s64, 31")
    e("s_cmp_eq_u32 s63, 1")
    e("s_cselect_b32 s64, s64, s%d" % S_T1)
    e("v_lshrrev_b32 v8, 5, v%d" % L)
    e("s_lshl_b32 s41, s%d, 6" % S_C)
    e("s_cmp_eq_u32 s63, 1")
    e("s_cselect_b64 vcc, -1, 0")
    for mb in range(2):
        e("v_add_u32 v2, s41, v14")
        if mb: e("v_add_u32 v2, 32, v2")
        e("v_sub_u32 v3, 448, v2")
        e("v_cndmask_b32 v2, v2, v3, vcc")
        e("v_lshlrev_b32 v2, 4, v2")
        e("v_lshlrev_b32 v3, 12, v8")
        e("v_add_u32 v%d, v2, v3" % (16 + mb))
    e("s_lshl_b32 s41, s64, 4")
    e("s_lshl_b32 s42, s%d, 2" % SI)
    e("s_add_u32 s41, s41, s42")
    e("s_lshl_b32 s41, s41, 12")
    e("s_add_u32 s65, s41, 0x%x" % UBUF)
    e("s_lshl_b32 s41, s%d, 6" % S_T1)
    e("v_add_u32 v2, s41, v14")
    e("v_lshlrev_b32 v2, 2, v2")
    e("v_add_u32 v20, 0x%x, v2" % GBUF)
    e.vm_wait(["hst"])
    e("s_barrier")
    stamp(e, cfg, 4)
    lab = e.newlabel("FB")
    e("s_cmp_lg_u32 s%d, 0" % S_WAVE)
    e("s_cbranch_scc1 %s" % lab)
    e("s_add_u32 s%d, s%d, 128" % (S_FLAG, S_FLAG))
    flag_store(e)
    e.label(lab)
    e.vm = []
    for nb in range(2):
        e("buffer_load_dword v%d, v20, s[%d:%d], 0 offen offset:%d sc1" % (22 + nb, S_WS, S_WS + 3, nb * 128))
        e.vm_issue("g")
    for kk in range(6): q_dma_wd(e, 1, kk)
    e("v_lshlrev_b32 v2, 4, v%d" % L)
    e("v_add_u32 v2, s62, v2")
    for qd in range(16):
        e("ds_read_b128 %s, v2 offset:%d" % (vr(Q_ACC + 4 * qd, 4), (qd >> 2) * 16384 + (qd & 3) * 1024))
        if qd == 9: e("s_waitcnt lgkmcnt(4)")
    e("s_waitcnt lgkmcnt(0)")
    for kk in range(6, 14): q_dma_wd(e, 1, kk)
    e.vm_wait(["g"])
    e("s_cmp_lg_u32 s%d, 0" % S_T1)
    e("s_cselect_b32 s41, s63, 0")
    e("v_add_u32 v2, s41, v14")
    e("v_lshrrev_b32 v8, 5, v%d" % L)
    e("v_lshlrev_b32 v8, 2, v8")
    e("s_lshl_b32 s43, s%d, 4" % SI)
    e("v_add_u32 v8, s43, v8")
    e("s_lshl_b32 s41, s63, 31")
    e("s_mov_b32 s42, 0x%08x" % f2u(1.0 / 64))
    for nb in range(2):
        if nb: e("v_add_u32 v2, 32, v2")
        e("v_xor_b32 v21, s41, v%d" % (22 + nb))
        for u in range(2):
            for q in range(4):
                e("v_add_u32 v3, %d, v8" % (8 * u + q))
                e("v_mul_u32_u24 v3, v3, v2")
                e("v_and_b32 v3, 63, v3")
                e("v_cvt_f32_u32 v3, v3")
                e("v_mul_f32 v3, s42, v3")
                e("v_cos_f32 v5, v3")
                e("v_sin_f32 v6, v3")
                e("s_nop 0")
                e("v_mul_f32 v5, v5, v%d" % (22 + nb))
                e("v_mul_f32 v6, v6, v21")
                e("v_cvt_pk_bf16_f32 v%d, v5, v6" % (24 + 8 * nb + 4 * u + q))
    for nb in range(2):
        e("v_sub_f32 v%d, 1.0, v%d" % (40 + 2 * nb, 22 + nb))
        e("v_mov_b32 v%d, v%d" % (41 + 2 * nb, 40 + 2 * nb))
    flags_line(e, 1)
    poll2(e, S_PF, FLAGS + 16 * 256)
    stamp(e, cfg, 5)
    e.vm = []
    def uloads():
        for u in range(2):
            for mb in range(2):
                e("s_add_u32 s%d, s65, %d" % (S_OFF, u * 2 * 4096))
                e("buffer_load_dwordx4 %s, v%d, s[%d:%d], s%d offen sc1" % (vr(44 + 8 * u + 4 * mb, 4), 16 + mb, S_WS, S_WS + 3, S_OFF))
                e.vm_issue("u")
    for kk in range(cfg.hpreB): q_load_h(e, kk)
    stamp(e, cfg, 6)
    q_mainloop(e, cfg, 1, False, cfg.hpreB, uloads)
    stamp(e, cfg, 7)
    e("s_nop 7"); e("s_nop 3")
    for mb in range(2):
        for nb in range(2):
            D = Q_ACC + 16 * (2 * mb + nb)
            for i in range(0, 16, 2):
                e("v_pk_mul_f32 %s, %s, %s" % (vr(D + i, 2), vr(D + i, 2), vr(40 + 2 * nb, 2)))
    e.vm_wait(["u"])
    e("s_nop 1")
    for u in range(2):
        for mb in range(2):
            for nb in range(2):
                mfma(e, Q_ACC + 16 * (2 * mb + nb), 44 + 8 * u + 4 * mb, 24 + 8 * nb + 4 * u)
    e("s_barrier")
    e("v_lshlrev_b32 v2, 4, v%d" % L)
    e("s_lshl_b32 s41, s%d, 14" % SI)
    e("v_add_u32 v3, s41, v2")
    e("s_nop 7"); e("s_nop 1")
    for tl in range(4):
        for qq in range(4):
            e("ds_write_b128 v3, %s offset:%d" % (vr(Q_ACC + 16 * tl + 4 * qq, 4), tl * 4096 + qq * 1024))
        if tl == 2: e("s_waitcnt lgkmcnt(4)")
    e("s_waitcnt lgkmcnt(0)")
    e("s_barrier")
    e("s_lshl_b32 s41, s%d, 12" % SI)
    e("v_add_u32 v3, s41, v2")
    for k in range(4):
        for qq in range(4):
            e("ds_read_b128 %s, v3 offset:%d" % (vr(128 + 16 * k + 4 * qq, 4), k * 16384 + qq * 1024))
        if k == 2: e("s_waitcnt lgkmcnt(8)")
    e("s_and_b32 s41, s%d, 1" % SI)
    e("s_lshl_b32 s41, s41, 5")
    e("v_add_u32 v2, s41, v14")
    e("v_lshlrev_b32 v2, 5, v2")
    e("v_add_u32 v2, s%d, v2" % S_T1)
    e("s_movk_i32 s42, 896")
    e("v_mul_lo_u32 v2, v2, s42")
    e("s_lshl_b32 s41, s%d, 7" % S_C)
    e("s_lshr_b32 s42, s%d, 1" % SI)
    e("s_lshl_b32 s42, s42, 6")
    e("s_add_u32 s41, s41, s42")
    e("v_lshrrev_b32 v8, 5, v%d" % L)
    e("v_lshlrev_b32 v8, 4, v8")
    e("v_add3_u32 v2, v2, v8, s41")
    e("s_waitcnt lgkmcnt(0)")
    for q in range(0, 16, 2):
        e("v_pk_add_f32 %s, %s, %s" % (vr(128 + q, 2), vr(128 + q, 2), vr(144 + q, 2)))
        e("v_pk_add_f32 %s, %s, %s" % (vr(160 + q, 2), vr(160 + q, 2), vr(176 + q, 2)))
    for q in range(0, 16, 2):
        e("v_pk_add_f32 %s, %s, %s" % (vr(128 + q, 2), vr(128 + q, 2), vr(160 + q, 2)))
    for q in range(8):
        e("v_cvt_pk_bf16_f32 v%d, v%d, v%d" % (192 + q, 128 + 2 * q, 128 + 2 * q + 1))
    e("s_nop 1")
    for ih in range(2):
        e("v_permlane32_swap_b32 v%d, v%d" % (192 + 4 * ih, 194 + 4 * ih))
        e("v_permlane32_swap_b32 v%d, v%d" % (193 + 4 * ih, 195 + 4 * ih))
    for ih in range(2):
        e("buffer_store_dwordx4 %s, v2, s[%d:%d], 0 offen offset:%d" % (vr(192 + 4 * ih, 4), S_OUT, S_OUT + 3, ih * 32))
    stamp(e, cfg, 8)

def kernel_fused2(e, cfg):
    name = "gated_mix__spectral_fnet__glu_gated_glu__prompt_kernel"
    header(e, name)
    e("s_cmp_ge_u32 s2, 256")
    e("s_cbranch_scc1 KF_END")
    kernarg_loads(e)
    entry_common(e)
    e("s_and_b32 s%d, s%d, 3" % (S_WF, S_WAVE))
    e("s_and_b32 s%d, s%d, 3" % (S_LW, S_WAVE))
    e("s_and_b32 s41, s2, 7")
    e("s_lshr_b32 s42, s2, 3")
    e("s_cmp_ge_u32 s42, 28")
    e("s_cbranch_scc1 P1_DFT")
    e("s_mul_i32 s43, s42, 37")
    e("s_lshr_b32 s43, s43, 8")
    e("s_mul_i32 s76, s43, 7")
    e("s_sub_u32 s76, s42, s76")
    e("s_lshr_b32 s77, s41, 1")
    e("s_lshl_b32 s77, s77, 2")
    e("s_add_u32 s%d, s77, s43" % S_R)
    e("s_and_b32 s77, s41, 1")
    e("s_mul_i32 s77, s77, 7")
    e("s_add_u32 s%d, s77, s76" % S_FB)
    e("s_cmp_ge_u32 s%d, 4" % S_WAVE)
    e("s_cbranch_scc1 P1_H_LOADER")
    e.vm = []; e.lg = []
    h2_consumer(e, cfg)
    q_consumer_B(e, cfg)
    stamp_store(e, cfg, 0)
    e("s_endpgm")
    e.label("P1_H_LOADER")
    e.vm = []; e.lg = []
    h2_loader(e, cfg)
    q_loader_A(e, cfg)
    stamp_store(e, cfg, 0)
    e("s_endpgm")
    e.label("P1_DFT")
    e("s_sub_u32 s42, s42, 28")
    e("s_and_b32 s%d, s41, 1" % S_EH)
    e("s_lshr_b32 s77, s41, 1")
    e("s_lshl_b32 s77, s77, 2")
    e("s_add_u32 s%d, s77, s42" % S_QG)
    e("s_cmp_ge_u32 s%d, 4" % S_WAVE)
    e("s_cbranch_scc1 P1_D_LOADER")
    e.vm = []; e.lg = []
    p1_consumer(e, cfg, False)
    d_epilogue(e, cfg)
    stamp(e, cfg, 3)
    e.vm_wait_all()
    e("s_barrier")
    lab = e.newlabel("DNOTW0")
    e("s_cmp_lg_u32 s%d, 0" % S_WAVE)
    e("s_cbranch_scc1 %s" % lab)
    flag_store(e)
    e("s_waitcnt vmcnt(0)")
    e.label(lab)
    stamp_store(e, cfg, 0)
    e("s_endpgm")
    e.label("P1_D_LOADER")
    e.vm = []; e.lg = []
    p1_loader(e, cfg, False)
    stamp(e, cfg, 3)
    e("s_waitcnt vmcnt(0)")
    e("s_barrier")
    stamp_store(e, cfg, 0)
    e("s_endpgm")
    e.label("KF_END")
    e("s_endpgm")

def descriptor(name):
    return """.section .rodata,"a"
.p2align 6
.amdhsa_kernel %s
  .amdhsa_next_free_vgpr 256
  .amdhsa_next_free_sgpr 102
  .amdhsa_accum_offset 256
  .amdhsa_group_segment_fixed_size 0
  .amdhsa_kernarg_size 104
  .amdhsa_user_sgpr_count 2
  .amdhsa_user_sgpr_kernarg_segment_ptr 1
  .amdhsa_system_sgpr_workgroup_id_x 1
.end_amdhsa_kernel
""" % name

def main():
    cfg = Cfg()
    cfg.pro_extra = 8; cfg.stage_budget = 8; cfg.p2_la = 3; cfg.p2_dpoll = 4; cfg.stage_budget2 = 6; cfg.flagA_bar = 22; cfg.epoll = 26; cfg.hpre = 6; cfg.hpreB = 5
    out = sys.argv[1]
    for a in sys.argv[2:]:
        if a == "nop2rot": P2ROT[0] = 0
        if a == "hplain": HSC[0] = ""
        if a == "hnt": HSC[0] = " nt"
        if a == "hsc01": HSC[0] = " sc0 sc1"
        if a == "diag": cfg.diag = True
        elif a == "fused": cfg.fused = True
        elif "=" in a:
            k, v = a.split("="); setattr(cfg, k, int(v))
        else: cfg.x = cfg.x | {a}
    e = Em()
    if cfg.fused:
        name = "gated_mix__spectral_fnet__glu_gated_glu__prompt_kernel"
        hdr = "; generated by gen2.py (fused)\n; @launch grid=(256,1,1) block=(512,1,1) lds=163840\n"
        hdr += '.amdgcn_target "amdgcn-amd-amdhsa--gfx950"\n'
        kernel_fused2(e, cfg)
        open(out, "w").write(hdr + e.text() + descriptor(name))
        return
    hdr = "; generated by gen2.py\n"
    hdr += "; @launch kernel=k1_kernel grid=(256,1,1) block=(512,1,1) lds=163840\n"
    hdr += "; @launch kernel=k2_kernel grid=(256,1,1) block=(512,1,1) lds=163840\n"
    hdr += '.amdgcn_target "amdgcn-amd-amdhsa--gfx950"\n'
    kernel1(e, cfg)
    kernel2(e, cfg)
    txt = hdr + e.text() + descriptor("k1_kernel") + descriptor("k2_kernel")
    open(out, "w").write(txt)
if __name__ == "__main__":
    main()
```

```python
import sys, math, struct

def f2u(f): return struct.unpack("<I", struct.pack("<f", f))[0]

class Em:
    def __init__(self):
        self.lines = []
        self.vm = []
        self.lg = []
        self.nlab = 0
    def __call__(self, s): self.lines.append("    " + s)
    def raw(self, s): self.lines.append(s)
    def label(self, s): self.lines.append(s + ":")
    def newlabel(self, p):
        self.nlab += 1
        return "%s_%d" % (p, self.nlab)
    def vm_issue(self, tag): self.vm.append(tag)
    def vm_wait(self, tags):
        last = -1
        for i, t in enumerate(self.vm):
            if t in tags: last = i
        if last < 0: return
        n = len(self.vm) - 1 - last
        assert n <= 63, n
        self("s_waitcnt vmcnt(%d)" % n)
        self.vm = self.vm[last + 1:]
    def vm_wait_all(self):
        self("s_waitcnt vmcnt(0)"); self.vm = []
    def lg_issue(self, tag): self.lg.append(tag)
    def lg_wait(self, tags):
        last = -1
        for i, t in enumerate(self.lg):
            if t in tags: last = i
        if last < 0: return
        n = len(self.lg) - 1 - last
        assert n <= 15, n
        self("s_waitcnt lgkmcnt(%d)" % n)
        self.lg = self.lg[last + 1:]
    def lg_wait_all(self):
        self("s_waitcnt lgkmcnt(0)"); self.lg = []
    def text(self): return "\n".join(self.lines) + "\n"

def vr(a, n=1): return "v%d" % a if n == 1 else "v[%d:%d]" % (a, a + n - 1)

HBUF = 0
UBUF = 0x700000
GBUF = 0x900000
FLAGS = 0x910000
DIAG = 0xA00000
WS_BYTES = 0x1000000
LOG2E = 1.4426950408889634

S_X = 8; S_WA = 12; S_WB = 16; S_WS = 20; S_GW = 24; S_OUT = 28; S_WD = 32; S_DBG = 36
S_WAVE = 40
S_R = 60; S_FB = 61; S_QG = 62; S_EH = 63
S_WF = 64; S_LW = 65
S_LDSW = 66; S_LDSX = 67
S_OFF = 68
S_T1 = 70; S_C = 71
S_STAMP = 80
S_NONCE = 98; S_FLAG = 99; S_PF = 100
V_LANE = 1

class Cfg:
    fused = False
    diag = False
    x = set()

def kernarg_loads(e):
    e("s_load_dwordx2 s[44:45], s[0:1], 0")
    e("s_load_dwordx4 s[48:51], s[0:1], 24")
    e("s_load_dwordx4 s[52:55], s[0:1], 48")
    e("s_load_dwordx4 s[56:59], s[0:1], 64")
    e("s_load_dwordx2 s[46:47], s[0:1], 80")
    e("s_load_dwordx4 s[72:75], s[0:1], 88")

def srd(e, dst, lo, nbytes):
    e("s_mov_b32 s%d, s%d" % (dst, lo))
    e("s_and_b32 s%d, s%d, 0xffff" % (dst + 1, lo + 1))
    e("s_mov_b32 s%d, 0x%x" % (dst + 2, nbytes))
    e("s_mov_b32 s%d, 0x20000" % (dst + 3))

NSTAMP = 6
def stamp(e, cfg, k):
    if cfg.diag:
        assert not e.lg
        e("s_memrealtime s[%d:%d]" % (S_STAMP + 2 * k, S_STAMP + 2 * k + 1))
        if k in (1, 2) and not cfg.fused:
            e("s_memtime s[%d:%d]" % (S_STAMP + 12 + 2 * (k - 1), S_STAMP + 13 + 2 * (k - 1)))
        e("s_waitcnt lgkmcnt(0)")

def stamp_store(e, cfg, slot_base):
    if not cfg.diag: return
    e("s_lshl_b32 s41, s2, 3")
    e("s_add_u32 s41, s41, s%d" % S_WAVE)
    e("s_lshl_b32 s41, s41, 6")
    e("s_add_u32 s41, s41, 0x%x" % (DIAG + slot_base))
    e("v_mov_b32 v1, s41")
    for k in range(9 if cfg.fused else NSTAMP + 2):
        e("v_mov_b32 v2, s%d" % (S_STAMP + 2 * k))
        e("buffer_store_dword v2, v1, s[%d:%d], 0 offen offset:%d" % (S_WS, S_WS + 3, 4 * k))
        e("s_nop 1")
    e("v_mov_b32 v2, s7")
    e("buffer_store_dword v2, v1, s[%d:%d], 0 offen offset:36" % (S_WS, S_WS + 3))
    e("s_waitcnt vmcnt(0)")

def mfma(e, d, a, b, c=None):
    cs = vr(d, 16) if c is None else c
    e("v_mfma_f32_32x32x16_bf16 %s, %s, %s, %s" % (vr(d, 16), vr(a, 4), vr(b, 4), cs))

NODMA = [False]
def rot_next(e, sreg, n):
    e("s_add_u32 s%d, s%d, 1" % (sreg, sreg))
    e("s_cmp_eq_u32 s%d, %d" % (sreg, n))
    e("s_cselect_b32 s%d, 0, s%d" % (sreg, sreg))
def dma(e, srdreg, vaddr, ldsconst, sldswave, soff, tag):
    if NODMA[0]:
        e.vm_issue(tag); e.vm.pop(); return
    e("s_add_u32 m0, s%d, 0x%x" % (sldswave, ldsconst))
    if soff is None:
        e("s_nop 0")
    else:
        e("s_mov_b32 s%d, 0x%x" % (S_OFF, soff))
    e("buffer_load_dwordx4 v%d, s[%d:%d], s%d offen lds" % (vaddr, srdreg, srdreg + 3, S_OFF))
    e.vm_issue(tag)

XSLOT = 16384; NX = 4
WBASE = 65536; NW = 6; WSLOT = 16384
ACC = 64
def accA(i): return ACC + 16 * i
def accB(i): return ACC + 64 + 16 * i
FR = 192
V_XA = 10
V_WA = 14
CONST_LDS = 0

def p1_consumer_addr(e, is_h):
    L = V_LANE; T = 26
    e("v_and_b32 v%d, 31, v%d" % (T, L))
    e("v_lshrrev_b32 v%d, 5, v%d" % (T + 1, L))
    e("v_lshrrev_b32 v%d, 1, v%d" % (T + 2, T))
    e("v_and_b32 v%d, 7, v%d" % (T + 2, T + 2))
    e("v_lshlrev_b32 v%d, 7, v%d" % (T + 3, T))
    if not is_h:
        e("s_lshl_b32 s41, s%d, 5" % S_WF)
        e("v_add_u32 v%d, s41, v%d" % (T + 5, T))
        e("v_lshlrev_b32 v%d, 7, v%d" % (T + 5, T + 5))
        e("v_add_u32 v%d, 0x%x, v%d" % (T + 5, WBASE, T + 5))
    for k in range(4):
        e("v_add_u32 v%d, %d, v%d" % (T + 4, 2 * k, T + 1))
        e("v_xor_b32 v%d, v%d, v%d" % (T + 4, T + 4, T + 2))
        e("v_lshlrev_b32 v%d, 4, v%d" % (T + 4, T + 4))
        e("v_add_u32 v%d, v%d, v%d" % (V_XA + k, T + 3, T + 4))
        if not is_h:
            e("v_add_u32 v%d, v%d, v%d" % (V_WA + k, T + 5, T + 4))
            e("v_add_u32 v%d, 0x10000, v%d" % (V_WA + 4 + k, V_WA + k))
    if is_h:
        e("v_and_b32 v%d, 15, v%d" % (T + 4, L))
        e("v_lshrrev_b32 v%d, 2, v%d" % (T + 5, T + 4))
        e("v_lshlrev_b32 v%d, 3, v%d" % (T + 6, T + 1))
        e("v_add_u32 v%d, v%d, v%d" % (T + 6, T + 6, T + 5))
        e("v_lshlrev_b32 v%d, 8, v%d" % (T + 6, T + 6))
        e("v_xor_b32 v%d, s%d, v%d" % (T + 7, S_WF, T + 5))
        e("v_lshlrev_b32 v%d, 6, v%d" % (T + 7, T + 7))
        e("v_add_u32 v%d, v%d, v%d" % (T + 6, T + 6, T + 7))
        e("v_bfe_u32 v%d, v%d, 4, 1" % (T + 7, L))
        e("v_lshlrev_b32 v%d, 5, v%d" % (T + 7, T + 7))
        e("v_add_u32 v%d, v%d, v%d" % (T + 6, T + 6, T + 7))
        e("v_and_b32 v%d, 3, v%d" % (T + 7, T + 4))
        e("v_lshlrev_b32 v%d, 3, v%d" % (T + 7, T + 7))
        e("v_add_u32 v%d, v%d, v%d" % (T + 6, T + 6, T + 7))
        e("v_add_u32 v%d, 0x%x, v%d" % (V_WA, WBASE, T + 6))
        e("v_add_u32 v%d, 0x%x, v%d" % (V_WA + 1, WBASE + 0x10000, T + 6))

def p1_reads(kap, is_h):
    base = FR + 24 * (kap & 1)
    c = kap >> 2; kk4 = kap & 3
    def xr(nb): return (("X", kap, nb), "ds_read_b128 %s, v%d offset:%d" % (vr(base + 4 * nb, 4), V_XA + kk4, (c % NX) * XSLOT + nb * 4096))
    if is_h:
        j = kap >> 1; kk = kap & 1
        slot = (j % NW) * WSLOT
        va = V_WA + (1 if slot >= 0x10000 else 0); so = slot & 0xffff
        def wr(m, ip): return (("W", kap, m), "ds_read_b64_tr_b16 %s, v%d offset:%d" % (vr(base + 16 + 4 * m + 2 * ip, 2), va, so + m * 8192 + (16 * kk + 4 * ip) * 256))
        return [wr(0, 0), wr(0, 1), xr(0), wr(1, 0), wr(1, 1), xr(1), xr(2), xr(3)]
    else:
        slot = (c % 3) * 32768
        va = V_WA + kk4 + (4 if slot >= 0x10000 else 0); so = slot & 0xffff
        def wr(m): return (("W", kap, m), "ds_read_b128 %s, v%d offset:%d" % (vr(base + 16 + 4 * m, 4), va, so + m * 16384))
        return [wr(0), xr(0), wr(1), xr(1), xr(2), xr(3)]

def p1_consumer(e, cfg, is_h):
    p1_consumer_addr(e, is_h)
    e("s_waitcnt lgkmcnt(0)")
    srd(e, S_WS, 74, WS_BYTES)
    if cfg.fused:
        flag_addr(e, is_h)
        nonce_issue(e)
    stamp(e, cfg, 0)
    e("s_barrier")
    stamp(e, cfg, 1)
    for tag, txt in p1_reads(0, is_h):
        e(txt); e.lg_issue(tag)
    for kap in range(28):
        base = FR + 24 * (kap & 1)
        nxt = p1_reads(kap + 1, is_h) if kap + 1 < 28 else []
        for n in range(8):
            nb = n >> 1; m = n & 1
            e.lg_wait([("W", kap, m), ("X", kap, nb)])
            d = accA(nb) if m == 0 else accB(nb)
            W = base + 16 + 4 * m; X = base + 4 * nb
            c = "0" if kap == 0 else None
            if "no32" in cfg.x:
                for hh in range(2):
                    e("v_mfma_f32_16x16x32_bf16 %s, %s, %s, %s" % (vr(d + 8 * hh, 4), vr(W, 4), vr(X, 4), vr(d + 8 * hh, 4)))
            elif "nomfma" not in cfg.x:
                if is_h: mfma(e, d, W, X, c)
                else: mfma(e, d, X, W, c)
            if nxt and n < len(nxt):
                tag, txt = nxt[n]
                if "nolds" in cfg.x: e.lg_issue(tag); e.lg.pop()
                else:
                    e(txt); e.lg_issue(tag)
        if (kap & 1) and kap < 27:
            e("s_barrier")
        if cfg.fused and kap == 21:
            nonce_load(e)
    assert not e.lg
    if cfg.fused and is_h:
        e("s_barrier")
    if cfg.fused:
        nonce_finish(e)
    stamp(e, cfg, 2)

def h_epilogue(e, cfg):
    sc = " sc1" if cfg.fused else ""
    e("s_lshl_b32 s41, s%d, 1" % S_R)
    e("s_mul_i32 s41, s41, 112")
    e("s_lshl_b32 s42, s%d, 2" % S_FB)
    e("s_add_u32 s42, s42, s%d" % S_WF)
    e("s_lshl_b32 s42, s42, 1")
    e("s_add_u32 s41, s41, s42")
    e("s_lshl_b32 s41, s41, 11")
    e("v_lshlrev_b32 v26, 4, v%d" % V_LANE)
    e("v_add_u32 v26, s41, v26")
    e("v_add_u32 v27, 0x%x, v26" % (112 * 2048))
    e("s_mov_b32 s42, 0x%08x" % f2u(-LOG2E))
    e("s_mov_b32 s43, s42")
    e("s_mov_b32 s44, 1.0")
    e("s_mov_b32 s45, 1.0")
    e("s_nop 7")
    grp = 0
    for nb in range(4):
        for hf in range(2):
            outb = FR + 4 * (grp % 8); grp += 1
            A = accA(nb) + 8 * hf; B = accB(nb) + 8 * hf
            for q in range(0, 8, 2):
                e("v_pk_mul_f32 %s, %s, s[42:43]" % (vr(A + q, 2), vr(A + q, 2)))
            for q in range(8):
                e("v_exp_f32 v%d, v%d" % (A + q, A + q))
            for q in range(0, 8, 2):
                e("v_pk_add_f32 %s, %s, s[44:45]" % (vr(A + q, 2), vr(A + q, 2)))
            for q in range(8):
                e("v_rcp_f32 v%d, v%d" % (A + q, A + q))
            for q in range(0, 8, 2):
                e("v_pk_mul_f32 %s, %s, %s" % (vr(A + q, 2), vr(A + q, 2), vr(B + q, 2)))
            for q2 in range(4):
                e("v_cvt_pk_bf16_f32 v%d, v%d, v%d" % (outb + q2, A + 2 * q2, A + 2 * q2 + 1))
            e("buffer_store_dwordx4 %s, v%d, s[%d:%d], 0 offen offset:%d%s" % (vr(outb, 4), 26 + (nb >> 1), S_WS, S_WS + 3, hf * 2048 + (nb & 1) * 1024, sc))
            e.vm_issue("hst")

def d_epilogue(e, cfg):
    sc = " sc1" if cfg.fused else ""
    L = V_LANE
    ZB = [192, 208, 224, 240]
    e("s_nop 7"); e("s_nop 3")
    for sb in range(4):
        for hf in range(2):
            for pr in range(4):
                q = 8 * hf + 2 * pr
                e("v_cvt_pk_bf16_f32 v%d, v%d, v%d" % (ZB[sb] + 4 * hf + pr, accA(sb) + q, accA(sb) + q + 1))
                e("v_cvt_pk_bf16_f32 v%d, v%d, v%d" % (ZB[sb] + 8 + 4 * hf + pr, accB(sb) + q, accB(sb) + q + 1))
    e("s_barrier")
    e("v_lshlrev_b32 v2, 4, v%d" % L)
    def cread(sb):
        b = 10 + 24 * (sb & 1)
        for k in range(6):
            e("ds_read_b128 %s, v2 offset:%d" % (vr(b + 4 * k, 4), CONST_LDS + (sb * 6 + k) * 1024))
            e.lg_issue(("c", sb, k))
    cread(0); cread(1)
    for sb in range(4):
        b = 10 + 24 * (sb & 1)
        C0, C1, S0, S1, N0, N1 = [b + 4 * k for k in range(6)]
        ZR0, ZR1, ZI0, ZI1 = ZB[sb], ZB[sb] + 4, ZB[sb] + 8, ZB[sb] + 12
        e.lg_wait([("c", sb, k) for k in range(6)])
        mfma(e, accA(sb), C0, ZR0, "0")
        mfma(e, accB(sb), C0, ZI0, "0")
        mfma(e, accA(sb), C1, ZR1)
        mfma(e, accB(sb), C1, ZI1)
        mfma(e, accA(sb), S0, ZI0)
        mfma(e, accB(sb), N0, ZR0)
        mfma(e, accA(sb), S1, ZI1)
        mfma(e, accB(sb), N1, ZR1)
        if sb + 2 < 4:
            cread(sb + 2)
    e("s_lshl_b32 s41, s%d, 8" % S_QG)
    e("s_lshl_b32 s42, s%d, 7" % S_EH)
    e("s_add_u32 s41, s41, s42")
    e("s_lshl_b32 s42, s%d, 5" % S_WF)
    e("s_add_u32 s41, s41, s42")
    e("s_lshl_b32 s41, s41, 4")
    e("s_add_u32 s41, s41, 0x%x" % UBUF)
    e("v_and_b32 v3, 31, v%d" % L)
    e("v_lshlrev_b32 v3, 4, v3")
    e("v_lshrrev_b32 v4, 5, v%d" % L)
    e("v_lshlrev_b32 v4, 18, v4")
    e("v_add3_u32 v3, v3, v4, s41")
    e("s_nop 7"); e("s_nop 3")
    for q in range(16):
        i, jj = q >> 2, q & 3
        pk = 192 + 4 * (q % 8)
        for sb in range(4):
            e("v_cvt_pk_bf16_f32 v%d, v%d, v%d" % (pk + sb, accA(sb) + q, accB(sb) + q))
        e("s_mov_b32 s%d, 0x%x" % (S_OFF, (8 * i + jj) * 65536))
        e("buffer_store_dwordx4 %s, v3, s[%d:%d], s%d offen%s" % (vr(pk, 4), S_WS, S_WS + 3, S_OFF, sc))
        e.vm_issue("ust")

def p1_loader(e, cfg, is_h):
    L = V_LANE; T = 26
    VX = 10
    VW = 14
    e("v_lshrrev_b32 v%d, 3, v%d" % (T, L))
    e("s_lshl_b32 s41, s%d, 5" % S_LW)
    e("v_add_u32 v%d, s41, v%d" % (T, T))
    e("v_and_b32 v%d, 7, v%d" % (T + 1, L))
    e("v_lshrrev_b32 v%d, 4, v%d" % (T + 2, L))
    e("s_movk_i32 s42, 896")
    for i in range(4):
        if i: e("v_add_u32 v%d, 8, v%d" % (T, T))
        e("v_add_u32 v%d, %d, v%d" % (T + 3, (4 * i) & 7, T + 2))
        e("v_and_b32 v%d, 7, v%d" % (T + 3, T + 3))
        e("v_xor_b32 v%d, v%d, v%d" % (T + 3, T + 3, T + 1))
        e("v_lshlrev_b32 v%d, 4, v%d" % (T + 3, T + 3))
        if is_h:
            e("v_lshrrev_b32 v%d, 6, v%d" % (T + 4, T))
            e("v_and_b32 v%d, 63, v%d" % (T + 5, T))
            e("v_lshlrev_b32 v%d, 5, v%d" % (T + 5, T + 5))
            e("s_lshl_b32 s41, s%d, 1" % S_R)
            e("v_add3_u32 v%d, v%d, v%d, s41" % (T + 4, T + 4, T + 5))
        else:
            e("v_and_b32 v%d, 31, v%d" % (T + 4, T))
            e("v_lshlrev_b32 v%d, 6, v%d" % (T + 4, T + 4))
            e("v_lshrrev_b32 v%d, 5, v%d" % (T + 5, T))
            e("s_lshl_b32 s41, s%d, 2" % S_QG)
            e("v_add3_u32 v%d, v%d, v%d, s41" % (T + 4, T + 4, T + 5))
        e("v_mul_lo_u32 v%d, v%d, s42" % (T + 4, T + 4))
        e("v_add_u32 v%d, v%d, v%d" % (VX + i, T + 4, T + 3))
        if not is_h:
            e("s_lshl_b32 s41, s%d, 7" % S_EH)
            e("v_add_u32 v%d, s41, v%d" % (T + 4, T))
            e("v_mul_lo_u32 v%d, v%d, s42" % (T + 4, T + 4))
            e("v_add_u32 v%d, v%d, v%d" % (VW + i, T + 4, T + 3))
    if is_h:
        e("s_lshl_b32 s41, s%d, 3" % S_LW)
        e("v_add_u32 v%d, s41, v%d" % (T + 3, T + 2))
        e("s_movk_i32 s42, 3584")
        e("v_mul_lo_u32 v%d, v%d, s42" % (T + 3, T + 3))
        e("v_bfe_u32 v%d, v%d, 2, 2" % (T + 4, L))
        e("v_xor_b32 v%d, v%d, v%d" % (T + 4, T + 4, T + 2))
        e("v_lshlrev_b32 v%d, 6, v%d" % (T + 4, T + 4))
        e("v_and_b32 v%d, 3, v%d" % (T + 5, L))
        e("v_lshlrev_b32 v%d, 4, v%d" % (T + 5, T + 5))
        e("v_add3_u32 v%d, v%d, v%d, v%d" % (T + 3, T + 3, T + 4, T + 5))
        e("s_lshl_b32 s41, s%d, 8" % S_FB)
        e("v_add_u32 v%d, s41, v%d" % (VW, T + 3))
        e("v_add_u32 v%d, %d, v%d" % (VW + 1, 4 * 3584, VW))
        e("s_lshl_b32 s%d, s%d, 11" % (S_LDSW, S_LW))
    else:
        e("s_lshl_b32 s%d, s%d, 12" % (S_LDSW, S_LW))
    e("s_lshl_b32 s%d, s%d, 12" % (S_LDSX, S_LW))
    e("s_waitcnt lgkmcnt(0)")
    srd(e, S_X, 44, 1835008)
    if is_h:
        srd(e, S_WA, 52, 1605632); srd(e, S_WB, 54, 1605632)
    else:
        srd(e, S_WA, 48, 401408); srd(e, S_WB, 50, 401408)
    srd(e, S_WS, 74, WS_BYTES)
    srd(e, S_GW, 58, 896)
    srd(e, S_WD, 56, 1605632)
    stamp(e, cfg, 0)
    DROT = (not is_h) and ("nodrot" not in cfg.x)
    if DROT:
        e("s_mul_i32 s7, s%d, 3" % S_EH)
        e("s_add_u32 s6, s%d, s7" % S_QG)
        e("s_mul_i32 s7, s6, 37")
        e("s_lshr_b32 s7, s7, 8")
        e("s_mul_i32 s7, s7, 7")
        e("s_sub_u32 s6, s6, s7")
        e("s_mov_b32 s7, s6")
    def dx(c):
        if DROT:
            e("s_lshl_b32 s%d, s6, 7" % S_OFF)
            for i in range(4): dma(e, S_X, VX + i, (c % NX) * XSLOT + i * 1024, S_LDSX, None, ("x", c))
            rot_next(e, 6, 7)
        else:
            for i in range(4): dma(e, S_X, VX + i, (c % NX) * XSLOT + i * 1024, S_LDSX, c * 128, ("x", c))
    def dw(j):
        if is_h:
            for m in range(2):
                for i in range(2):
                    dma(e, S_WA if m == 0 else S_WB, VW + i, WBASE + (j % NW) * WSLOT + m * 8192 + i * 1024, S_LDSW, j * 32 * 3584, ("w", j))
        else:
            c = j
            if DROT: e("s_lshl_b32 s%d, s7, 7" % S_OFF)
            for m in range(2):
                for i in range(4):
                    dma(e, S_WA if m == 0 else S_WB, VW + i, WBASE + (c % 3) * 32768 + m * 16384 + i * 1024, S_LDSW, None if DROT else c * 128, ("w", c))
            if DROT: rot_next(e, 7, 7)
    q = []
    if is_h:
        for j in range(14):
            if j % 2 == 0:
                c = j // 2
                q.append(("x", c, -1 if c < NX else 2 * (c - NX + 1)))
            q.append(("w", j, -1 if j < NW else j - NW + 1))
    else:
        for c in range(7):
            q.append(("x", c, -1 if c < NX else 2 * (c - NX + 1)))
            q.append(("w", c, -1 if c < 3 else 2 * (c - 3 + 1)))
    def cost(it): return 4 if (it[0] == "x" or is_h) else 8
    def issue(it):
        (dx if it[0] == "x" else dw)(it[1])
    def need(j):
        t = []
        for jj in (j, j + 1):
            if jj <= 13:
                t.append(("x", jj >> 1)); t.append(("w", jj if is_h else jj >> 1))
        return t
    issued = set()
    def ensure(tags):
        while q and any(t not in issued for t in tags):
            it = q.pop(0); assert it[2] <= curbar[0], (it, curbar)
            issue(it); issued.add((it[0], it[1]))
    curbar = [-1]
    ensure(need(0))
    budget0 = cfg.pro_extra
    while q and budget0 > 0 and q[0][2] <= -1:
        it = q.pop(0); issue(it); issued.add((it[0], it[1])); budget0 -= cost(it)
    e.vm_wait(need(0))
    e("s_barrier")
    stamp(e, cfg, 1)
    if "nodma" in cfg.x: NODMA[0] = True
    for j in range(13):
        curbar[0] = j
        ensure(need(j + 1))
        budget = cfg.stage_budget
        while q and budget > 0 and q[0][2] <= j:
            it = q.pop(0); issue(it); issued.add((it[0], it[1])); budget -= cost(it)
        if j == 9 and not is_h: dft_consts(e, cfg)
        if j == 7 and is_h:
            gate_issue(e, cfg, True)
            lab = e.newlabel("GX")
            e("s_cmp_ge_u32 s%d, 2" % S_FB)
            e("s_cbranch_scc1 %s" % lab)
            sv = list(e.vm)
            gate_issue(e, cfg, True, True)
            e.vm = sv
            e.label(lab)
        if j == 10 and is_h:
            e("s_waitcnt vmcnt(0)"); e.vm = []
            gate_finish(e, cfg)
            lab = e.newlabel("GY")
            e("s_cmp_ge_u32 s%d, 2" % S_FB)
            e("s_cbranch_scc1 %s" % lab)
            gate_finish(e, cfg, True)
            e.label(lab)
        if j == 11 and cfg.fused:
            e("s_waitcnt vmcnt(0)"); e.vm = []
        e.vm_wait(need(j + 1))
        e("s_barrier")
    assert not q
    NODMA[0] = False
    stamp(e, cfg, 2)
    if not is_h:
        e("v_lshlrev_b32 v2, 4, v%d" % L)
        e("s_mul_i32 s41, s%d, 6144" % S_LW)
        e("v_add_u32 v2, s41, v2")
        for k in range(6):
            e("ds_write_b128 v2, %s offset:%d" % (vr(64 + 4 * k, 4), CONST_LDS + k * 1024))
        e("s_waitcnt lgkmcnt(0)")
        e("s_barrier")

def gate_issue(e, cfg, is_h, extra=False):
    B = 40 if extra else 48
    e("s_lshl_b32 s41, s%d, 3" % S_FB)
    if extra: e("s_add_u32 s41, s41, 112")
    e("s_lshl_b32 s42, s%d, 1" % S_LW)
    e("s_add_u32 s41, s41, s42")
    e("s_lshl_b32 s78, s%d, 7" % S_R)
    e("s_add_u32 s%d, s78, s41" % (77 if extra else 76))
    e("v_lshlrev_b32 v38, 4, v%d" % V_LANE)
    e("v_cmp_gt_u32 vcc, 56, v%d" % V_LANE)
    e("v_mov_b32 v37, 0x7fffffff")
    for u in range(2):
        e("s_add_u32 s78, s41, %d" % u)
        e("s_lshr_b32 s43, s78, 6")
        e("s_lshl_b32 s79, s%d, 1" % S_R)
        e("s_add_u32 s43, s43, s79")
        e("s_and_b32 s78, s78, 63")
        e("s_lshl_b32 s78, s78, 5")
        e("s_add_u32 s43, s43, s78")
        e("s_mul_i32 s43, s43, 896")
        if extra:
            e("s_cmp_ge_u32 s%d, 2" % S_FB)
            e("s_cselect_b32 s43, 0x40000000, s43")
        e("v_add_u32 v39, s43, v38")
        e("v_cndmask_b32 v39, v37, v39, vcc")
        e("buffer_load_dwordx4 %s, v39, s[%d:%d], 0 offen" % (vr(B + 4 * u, 4), S_X, S_X + 3))
        e.vm_issue("gate")
    if not extra:
        e("buffer_load_dwordx4 v[56:59], v38, s[%d:%d], 0 offen" % (S_GW, S_GW + 3))
        e.vm_issue("gate")

def gate_finish(e, cfg, extra=False):
    B = 40 if extra else 48
    e.vm_wait(["gate"])
    for u in range(2):
        e("v_mov_b32 v%d, 0" % (60 + u))
    for i in range(4):
        for u in range(2):
            e("v_dot2_f32_bf16 v%d, v%d, v%d, v%d" % (60 + u, B + 4 * u + i, 56 + i, 60 + u))
    e("s_nop 2")
    for sh in ("row_shr:1", "row_shr:2", "row_shr:4", "row_shr:8"):
        for u in range(2):
            e("v_add_f32_dpp v%d, v%d, v%d %s row_mask:0xf bank_mask:0xf bound_ctrl:0" % (60 + u, 60 + u, 60 + u, sh))
        e("s_nop 0")
    for u in range(2):
        e("v_add_f32_dpp v%d, v%d, v%d row_bcast:15 row_mask:0xa bank_mask:0xf" % (60 + u, 60 + u, 60 + u))
    e("s_nop 0")
    for u in range(2):
        e("v_add_f32_dpp v%d, v%d, v%d row_bcast:31 row_mask:0xc bank_mask:0xf" % (60 + u, 60 + u, 60 + u))
    e("s_nop 0")
    e("v_readlane_b32 s41, v60, 63")
    e("v_readlane_b32 s42, v61, 63")
    e("s_nop 1")
    e("v_mov_b32 v60, s41")
    e("v_mov_b32 v61, s42")
    e("v_cmp_eq_u32 vcc, 1, v%d" % V_LANE)
    e("s_nop 1")
    e("v_cndmask_b32 v60, v60, v61, vcc")
    e("v_mul_f32 v60, 0x%08x, v60" % f2u(-LOG2E))
    e("v_exp_f32 v60, v60")
    e("s_nop 0")
    e("v_add_f32 v60, 1.0, v60")
    e("v_rcp_f32 v60, v60")
    e("s_lshl_b32 s44, s%d, 2" % (77 if extra else 76))
    e("s_add_u32 s44, s44, 0x%x" % GBUF)
    if extra:
        e("s_cmp_ge_u32 s%d, 2" % S_FB)
        e("s_cselect_b32 s44, 0x40000000, s44")
    e("v_lshlrev_b32 v62, 2, v%d" % V_LANE)
    e("v_add_u32 v62, s44, v62")
    e("v_cmp_gt_u32 vcc, 2, v%d" % V_LANE)
    e("v_mov_b32 v37, 0x7fffffff")
    e("s_nop 0")
    e("v_cndmask_b32 v62, v37, v62, vcc")
    e("buffer_store_dword v60, v62, s[%d:%d], 0 offen%s" % (S_WS, S_WS + 3, " sc1" if cfg.fused else ""))
    e.vm_issue("gst")

def dft_consts(e, cfg):
    L = V_LANE
    e("v_and_b32 v26, 31, v%d" % L)
    e("v_lshrrev_b32 v27, 5, v%d" % L)
    e("v_lshlrev_b32 v27, 8, v27")
    e("s_lshl_b32 s41, s%d, 2" % S_QG)
    e("s_add_u32 s41, s41, s%d" % S_LW)
    e("v_add_u32 v27, s41, v27")
    e("s_mov_b32 s42, 0x%08x" % f2u(1.0 / 2048))
    for hf in range(2):
        for pr in range(4):
            for u in range(2):
                idx = 2 * pr + u
                s1c = 16 * hf + 8 * (idx >> 2) + (idx & 3)
                e("v_add_u32 v28, %d, v27" % (64 * s1c))
                e("v_mul_u32_u24 v28, v28, v26")
                e("v_and_b32 v28, 0x7ff, v28")
                e("v_cvt_f32_u32 v28, v28")
                e("v_mul_f32 v28, s42, v28")
                e("v_cos_f32 v%d, v28" % (30 + u))
                e("v_sin_f32 v%d, v28" % (32 + u))
            e("s_nop 0")
            e("v_cvt_pk_bf16_f32 v%d, v30, v31" % (64 + 4 * hf + pr))
            e("v_cvt_pk_bf16_f32 v%d, v32, v33" % (72 + 4 * hf + pr))
            e("v_xor_b32 v%d, 0x80008000, v%d" % (80 + 4 * hf + pr, 72 + 4 * hf + pr))

def entry_common(e):
    e("v_and_b32 v%d, 63, v0" % V_LANE)
    e("v_lshrrev_b32 v2, 6, v0")
    e("s_nop 0")
    e("v_readfirstlane_b32 s%d, v2" % S_WAVE)
    e("s_nop 3")

def phase1(e, cfg, after_h_consumer, after_h_loader, after_d):
    e("s_and_b32 s%d, s%d, 3" % (S_WF, S_WAVE))
    e("s_and_b32 s%d, s%d, 3" % (S_LW, S_WAVE))
    e("s_and_b32 s41, s2, 7")
    e("s_lshr_b32 s42, s2, 3")
    e("s_cmp_ge_u32 s42, 28")
    e("s_cbranch_scc1 P1_DFT")
    e("s_mul_i32 s43, s42, 37")
    e("s_lshr_b32 s43, s43, 8")
    e("s_mul_i32 s76, s43, 7")
    e("s_sub_u32 s76, s42, s76")
    e("s_lshr_b32 s77, s41, 1")
    e("s_lshl_b32 s77, s77, 2")
    e("s_add_u32 s%d, s77, s43" % S_R)
    e("s_and_b32 s77, s41, 1")
    e("s_mul_i32 s77, s77, 7")
    e("s_add_u32 s%d, s77, s76" % S_FB)
    e("s_cmp_ge_u32 s%d, 4" % S_WAVE)
    e("s_cbranch_scc1 P1_H_LOADER")
    e.vm = []; e.lg = []
    p1_consumer(e, cfg, True)
    h_epilogue(e, cfg)
    stamp(e, cfg, 3)
    after_h_consumer()
    e.label("P1_H_LOADER")
    e.vm = []; e.lg = []
    p1_loader(e, cfg, True)
    stamp(e, cfg, 3)
    after_h_loader()
    e.label("P1_DFT")
    e("s_sub_u32 s42, s42, 28")
    e("s_and_b32 s%d, s41, 1" % S_EH)
    e("s_lshr_b32 s77, s41, 1")
    e("s_lshl_b32 s77, s77, 2")
    e("s_add_u32 s%d, s77, s42" % S_QG)
    e("s_cmp_ge_u32 s%d, 4" % S_WAVE)
    e("s_cbranch_scc1 P1_D_LOADER")
    e.vm = []; e.lg = []
    p1_consumer(e, cfg, False)
    d_epilogue(e, cfg)
    stamp(e, cfg, 3)
    after_d(True)
    e.label("P1_D_LOADER")
    e.vm = []; e.lg = []
    p1_loader(e, cfg, False)
    stamp(e, cfg, 3)
    after_d(False)

P2_ACC = 64
P2_H = 96
P2_A = 208
P2_U = 224
P2_T = 240
SLICE = 40960
KSL, NB = 60, 61

def p2_setup(e, cfg):
    L = V_LANE
    e("s_and_b32 s%d, s%d, 3" % (KSL, S_WAVE))
    e("s_lshr_b32 s%d, s%d, 2" % (NB, S_WAVE))
    e("v_lshrrev_b32 v2, 3, v%d" % L)
    e("v_bfe_u32 v3, v%d, 4, 1" % L)
    e("v_lshlrev_b32 v3, 2, v3")
    e("v_and_b32 v4, 7, v%d" % L)
    e("v_xor_b32 v3, v3, v4")
    e("v_lshlrev_b32 v3, 4, v3")
    e("s_mul_i32 s41, s%d, 448" % KSL)
    e("s_lshl_b32 s42, s%d, 3" % NB)
    e("s_add_u32 s41, s41, s42")
    e("v_add_u32 v2, s41, v2")
    e("s_movk_i32 s42, 896")
    e("v_mul_lo_u32 v2, v2, s42")
    e("s_lshl_b32 s41, s%d, 7" % S_C)
    e("v_add3_u32 v10, v2, v3, s41")
    e("s_mul_i32 s62, s%d, %d" % (KSL, SLICE))
    e("s_lshl_b32 s41, s%d, 10" % NB)
    e("s_add_u32 s62, s62, s41")
    e("v_and_b32 v2, 15, v%d" % L)
    e("v_lshrrev_b32 v3, 2, v2")
    e("v_lshrrev_b32 v4, 5, v%d" % L)
    e("v_lshlrev_b32 v5, 2, v4")
    e("v_add_u32 v5, v5, v3")
    e("v_lshlrev_b32 v5, 7, v5")
    e("v_bfe_u32 v6, v2, 3, 1")
    e("v_lshlrev_b32 v6, 6, v6")
    e("v_bfe_u32 v7, v%d, 4, 1" % L)
    e("v_lshlrev_b32 v7, 5, v7")
    e("v_and_b32 v8, 3, v2")
    e("v_lshlrev_b32 v8, 3, v8")
    e("v_add3_u32 v5, v5, v6, v7")
    e("v_add_u32 v5, v5, v8")
    e("s_mul_i32 s41, s%d, %d" % (KSL, SLICE))
    e("v_add_u32 v11, s41, v5")
    e("v_xor_b32 v12, 64, v11")
    e("s_mul_i32 s41, s%d, 112" % S_T1)
    e("s_mul_i32 s42, s%d, 28" % KSL)
    e("s_add_u32 s41, s41, s42")
    e("s_lshl_b32 s41, s41, 1")
    e("s_add_u32 s41, s41, s%d" % NB)
    e("s_lshl_b32 s41, s41, 10")
    e("v_lshlrev_b32 v13, 4, v%d" % L)
    e("v_add_u32 v13, s41, v13")
    e("v_and_b32 v14, 31, v%d" % L)
    e("s_cmp_ge_u32 s%d, 4" % S_C)
    e("s_cselect_b32 s63, 1, 0")
    e("s_sub_u32 s64, 32, s%d" % S_T1)
    e("s_and_b32 s64, s64, 31")
    e("s_cmp_eq_u32 s63, 1")
    e("s_cselect_b32 s64, s64, s%d" % S_T1)
    e("v_lshrrev_b32 v4, 5, v%d" % L)
    e("s_lshl_b32 s41, s%d, 6" % S_C)
    e("s_cmp_eq_u32 s63, 1")
    e("s_cselect_b64 vcc, -1, 0")
    for mb in range(2):
        e("v_add_u32 v2, s41, v14")
        if mb: e("v_add_u32 v2, 32, v2")
        e("v_sub_u32 v3, 448, v2")
        e("v_cndmask_b32 v2, v2, v3, vcc")
        e("v_lshlrev_b32 v2, 4, v2")
        e("v_lshlrev_b32 v3, 12, v4")
        e("v_add_u32 v%d, v2, v3" % (16 + mb))
    e("s_lshl_b32 s41, s64, 4")
    e("s_lshl_b32 s42, s%d, 2" % KSL)
    e("s_add_u32 s41, s41, s42")
    e("s_lshl_b32 s41, s41, 12")
    e("s_add_u32 s65, s41, 0x%x" % UBUF)
    e("s_lshl_b32 s41, s%d, 6" % S_T1)
    e("s_lshl_b32 s42, s%d, 5" % NB)
    e("s_add_u32 s41, s41, s42")
    e("v_add_u32 v2, s41, v14")
    e("v_lshlrev_b32 v2, 2, v2")
    e("v_add_u32 v20, 0x%x, v2" % GBUF)

def p2_dma_wd(e, kk):
    st = kk >> 2
    pos = (st % 5) * 4 + (kk & 3)
    dma(e, S_WD, 10, pos * 2048, 62, kk * 16 * 896, ("wd", st))
def p2_load_h(e, cfg, kk):
    sc = " sc1" if cfg.fused else ""
    e("s_mov_b32 s%d, 0x%x" % (S_OFF, kk * 2048))
    e("buffer_load_dwordx4 %s, v13, s[%d:%d], s%d offen%s" % (vr(P2_H + 4 * kk, 4), S_WS, S_WS + 3, S_OFF, sc))
    e.vm_issue(("h", kk))
def p2_load_g(e, cfg):
    sc = " sc1" if cfg.fused else ""
    e("buffer_load_dword v15, v20, s[%d:%d], 0 offen%s" % (S_WS, S_WS + 3, sc))
    e.vm_issue("g")
def p2_load_u(e, cfg):
    sc = " sc1" if cfg.fused else ""
    for u in range(2):
        for mb in range(2):
            e("s_add_u32 s%d, s65, %d" % (S_OFF, u * 2 * 4096))
            e("buffer_load_dwordx4 %s, v%d, s[%d:%d], s%d offen%s" % (vr(P2_U + 8 * u + 4 * mb, 4), 16 + mb, S_WS, S_WS + 3, S_OFF, sc))
            e.vm_issue("u")
def p2_tfrags(e, cfg):
    L = V_LANE
    e.vm_wait(["g"])
    e("s_cmp_lg_u32 s%d, 0" % S_T1)
    e("s_cselect_b32 s41, s63, 0")
    e("s_lshl_b32 s42, s%d, 5" % NB)
    e("s_add_u32 s41, s41, s42")
    e("v_add_u32 v2, s41, v14")
    e("v_lshrrev_b32 v4, 5, v%d" % L)
    e("v_lshlrev_b32 v4, 2, v4")
    e("s_lshl_b32 s41, s63, 31")
    e("v_xor_b32 v21, s41, v15")
    e("s_mov_b32 s42, 0x%08x" % f2u(1.0 / 64))
    e("s_lshl_b32 s43, s%d, 4" % KSL)
    e("v_add_u32 v4, s43, v4")
    for u in range(2):
        for q in range(4):
            e("v_add_u32 v3, %d, v4" % (8 * u + q))
            e("v_mul_u32_u24 v3, v3, v2")
            e("v_and_b32 v3, 63, v3")
            e("v_cvt_f32_u32 v3, v3")
            e("v_mul_f32 v3, s42, v3")
            e("v_cos_f32 v5, v3")
            e("v_sin_f32 v6, v3")
            e("s_nop 0")
            e("v_mul_f32 v5, v5, v15")
            e("v_mul_f32 v6, v6, v21")
            e("v_cvt_pk_bf16_f32 v%d, v5, v6" % (P2_T + 4 * u + q))
    e("v_sub_f32 v18, 1.0, v15")
    e("v_mov_b32 v19, v18")

def p2_main(e, cfg, wd_pre=0):
    L = V_LANE
    def reads(kk):
        b = P2_A + 8 * (kk & 1)
        st = kk >> 2
        pos = (st % 5) * 4 + (kk & 3)
        for mb in range(2):
            for ip in range(2):
                e("ds_read_b64_tr_b16 %s, v%d offset:%d" % (vr(b + 4 * mb + 2 * ip, 2), 11 + mb, pos * 2048 + ip * 1024))
                e.lg_issue(("A", kk, mb))
    def issue_h(st):
        if st > 6: return
        for kk in range(4 * st, 4 * st + 4): p2_load_h(e, cfg, kk)
    def issue_w(st):
        if st > 6 or st < wd_pre: return
        for kk in range(4 * st, 4 * st + 4): p2_dma_wd(e, kk)
    def issue_both(st):
        if st > 6: return
        for kk in range(4 * st, 4 * st + 4):
            if st >= wd_pre: p2_dma_wd(e, kk)
            p2_load_h(e, cfg, kk)
    LA = cfg.p2_la
    p2_load_g(e, cfg)
    if cfg.fused:
        for st in range(LA): issue_h(st)
        p2_tfrags(e, cfg)
    else:
        for st in range(LA): issue_both(st)
        p2_tfrags(e, cfg)
        e.vm_wait([("wd", 0), ("wd", 1)])
        e("s_barrier")
    stamp(e, cfg, 1 if not cfg.fused else 6)
    reads(0)
    for kk in range(28):
        st = kk >> 2
        if (kk & 3) == 0:
            if cfg.fused:
                if st >= 1: issue_w(st + 4)
                issue_h(st + LA)
            else:
                issue_both(st + LA)
                if st + LA == 7:
                    p2_load_u(e, cfg)
        if kk + 1 < 28: reads(kk + 1)
        e.vm_wait([("h", kk)])
        b = P2_A + 8 * (kk & 1)
        for mb in range(2):
            e.lg_wait([("A", kk, mb)])
            mfma(e, P2_ACC + 16 * mb, b + 4 * mb, P2_H + 4 * kk, "0" if kk == 0 else None)
        if (kk & 3) == 3 and st < 6:
            e.vm_wait([("wd", st + 2)])
            if cfg.fused and st == cfg.p2_dpoll:
                lab = e.newlabel("DP")
                e("s_cmp_lg_u32 s%d, 0" % S_WAVE)
                e("s_cbranch_scc1 %s" % lab)
                e("s_mov_b32 s%d, 0x%x" % (S_PF, FLAGS + 16 * 128))
                poll(e, S_PF, 32)
                e.label(lab)
            e("s_barrier")
            if cfg.fused and st == cfg.p2_dpoll:
                p2_load_u(e, cfg)
    assert not e.lg
    stamp(e, cfg, 2 if not cfg.fused else 7)
    e.vm_wait(["u"])
    e("s_nop 7"); e("s_nop 3")
    for i in range(0, 32, 2):
        e("v_pk_mul_f32 %s, %s, v[18:19]" % (vr(P2_ACC + i, 2), vr(P2_ACC + i, 2)))
    e("s_nop 1")
    for u in range(2):
        for mb in range(2):
            mfma(e, P2_ACC + 16 * mb, P2_U + 8 * u + 4 * mb, P2_T + 4 * u)
    e("s_barrier")
    e("v_lshlrev_b32 v2, 4, v%d" % L)
    e("s_lshl_b32 s41, s%d, 13" % S_WAVE)
    e("v_add_u32 v3, s41, v2")
    e("s_nop 7"); e("s_nop 1")
    for qd in range(4):
        for hf in range(2):
            e("ds_write_b128 v3, %s offset:%d" % (vr(P2_ACC + 8 * qd + 4 * hf, 4), qd * 2048 + hf * 1024))
    e("s_waitcnt lgkmcnt(0)")
    e("s_barrier")
    e("s_lshl_b32 s41, s%d, 15" % NB)
    e("s_lshl_b32 s42, s%d, 11" % KSL)
    e("s_add_u32 s41, s41, s42")
    e("v_add_u32 v3, s41, v2")
    for k in range(4):
        for hf in range(2):
            e("ds_read_b128 %s, v3 offset:%d" % (vr(96 + 8 * k + 4 * hf, 4), k * 8192 + hf * 1024))
    e("s_lshl_b32 s41, s%d, 5" % NB)
    e("v_add_u32 v2, s41, v14")
    e("v_lshlrev_b32 v2, 5, v2")
    e("v_add_u32 v2, s%d, v2" % S_T1)
    e("s_movk_i32 s42, 896")
    e("v_mul_lo_u32 v2, v2, s42")
    e("s_lshl_b32 s41, s%d, 7" % S_C)
    e("s_lshl_b32 s42, s%d, 5" % KSL)
    e("s_add_u32 s41, s41, s42")
    e("v_lshrrev_b32 v4, 5, v%d" % L)
    e("v_lshlrev_b32 v4, 4, v4")
    e("v_add3_u32 v2, v2, v4, s41")
    e("s_waitcnt lgkmcnt(0)")
    for q in range(0, 8, 2):
        e("v_pk_add_f32 %s, %s, %s" % (vr(96 + q, 2), vr(96 + q, 2), vr(104 + q, 2)))
        e("v_pk_add_f32 %s, %s, %s" % (vr(112 + q, 2), vr(112 + q, 2), vr(120 + q, 2)))
    for q in range(0, 8, 2):
        e("v_pk_add_f32 %s, %s, %s" % (vr(96 + q, 2), vr(96 + q, 2), vr(112 + q, 2)))
    for q in range(4):
        e("v_cvt_pk_bf16_f32 v%d, v%d, v%d" % (128 + q, 96 + 2 * q, 96 + 2 * q + 1))
    e("s_nop 1")
    e("v_permlane32_swap_b32 v128, v130")
    e("v_permlane32_swap_b32 v129, v131")
    e("buffer_store_dwordx4 v[128:131], v2, s[%d:%d], 0 offen" % (S_OUT, S_OUT + 3))
    stamp(e, cfg, 3 if not cfg.fused else 8)

def p2_role(e):
    e("s_and_b32 s41, s2, 7")
    e("s_lshr_b32 s42, s2, 3")
    e("s_mul_i32 s43, s42, 37")
    e("s_lshr_b32 s43, s43, 8")
    e("s_mul_i32 s76, s43, 7")
    e("s_sub_u32 s%d, s42, s76" % S_C)
    e("s_lshl_b32 s41, s41, 2")
    e("s_add_u32 s%d, s41, s43" % S_T1)

def header(e, name):
    e.raw(".text"); e.raw(".globl %s" % name); e.raw(".p2align 8"); e.raw(".type %s,@function" % name); e.label(name)

def kernel1(e, cfg):
    header(e, "k1_kernel")
    e("s_cmp_ge_u32 s2, 256")
    e("s_cbranch_scc1 K1_END")
    kernarg_loads(e)
    entry_common(e)
    def fin():
        stamp_store(e, cfg, 0)
        e("s_endpgm")
    phase1(e, cfg, fin, fin, lambda c: fin())
    e.label("K1_END")
    e("s_endpgm")

def kernel2(e, cfg):
    header(e, "k2_kernel")
    e.vm = []; e.lg = []
    e("s_cmp_ge_u32 s2, 256")
    e("s_cbranch_scc1 K2_END")
    e("s_lshr_b32 s42, s2, 3")
    e("s_cmp_ge_u32 s42, 28")
    e("s_cbranch_scc1 K2_END")
    kernarg_loads(e)
    entry_common(e)
    p2_role(e)
    p2_setup(e, cfg)
    e("s_waitcnt lgkmcnt(0)")
    srd(e, S_WS, 74, WS_BYTES)
    srd(e, S_OUT, 46, 1835008)
    srd(e, S_WD, 56, 1605632)
    stamp(e, cfg, 0)
    p2_main(e, cfg, 0)
    stamp_store(e, cfg, 0x40000)
    e.label("K2_END")
    e("s_endpgm")


def nonce_issue(e):
    lab = e.newlabel("NONCE")
    srd(e, S_DBG, 72, 256)
    e("s_or_b32 s41, s2, s%d" % S_WAVE)
    e("s_cmp_lg_u32 s41, 0")
    e("s_cbranch_scc1 %s" % lab)
    e("s_memrealtime s[42:43]")
    e("s_waitcnt lgkmcnt(0)")
    e("s_or_b32 s42, s42, 1")
    e("v_mov_b32 v4, s42")
    e("v_lshlrev_b32 v5, 20, v%d" % V_LANE)
    e("buffer_store_dword v4, v5, s[%d:%d], 0 offen sc1" % (S_DBG, S_DBG + 3))
    e.label(lab)
    e("v_mov_b32 v7, 0")

def nonce_load(e):
    e("buffer_load_dword v4, v7, s[%d:%d], 0 offen sc1" % (S_DBG, S_DBG + 3))

def nonce_finish(e):
    nonce_finish_any(e)

def flag_addr(e, is_h):
    if is_h:
        e("s_lshl_b32 s41, s%d, 9" % S_R)
        e("s_lshl_b32 s42, s%d, 2" % S_FB)
    else:
        e("s_lshl_b32 s41, s%d, 1" % S_QG)
        e("s_add_u32 s41, s41, s%d" % S_EH)
        e("s_lshl_b32 s42, s41, 2")
        e("s_movk_i32 s41, %d" % (16 * 512))
    e("s_add_u32 s41, s41, s42")
    e("s_add_u32 s%d, s41, 0x%x" % (S_FLAG, FLAGS))

def flag_store(e):
    e("v_mov_b32 v60, s%d" % S_NONCE)
    e("v_lshlrev_b32 v61, 24, v%d" % V_LANE)
    e("v_add_u32 v61, s%d, v61" % S_FLAG)
    e("buffer_store_dword v60, v61, s[%d:%d], 0 offen sc1" % (S_WS, S_WS + 3))

def poll_prep(e, sbase, nflags):
    e("v_lshlrev_b32 v61, 2, v%d" % V_LANE)
    e("v_add_u32 v61, s%d, v61" % sbase)
    e("v_cmp_gt_u32 vcc, %d, v%d" % (nflags, V_LANE))
    e("v_mov_b32 v60, 0x7fffffff")
    e("s_nop 0")
    e("v_cndmask_b32 v61, v60, v61, vcc")
def poll_issue(e):
    e("buffer_load_dword v60, v61, s[%d:%d], 0 offen sc1" % (S_WS, S_WS + 3))
def poll_loop(e, nflags, first_issued):
    top = e.newlabel("POLL"); done = e.newlabel("POLLD"); chk = e.newlabel("POLLC")
    e("s_mov_b32 s41, 0")
    if first_issued: e("s_branch %s" % chk)
    e.label(top)
    poll_issue(e)
    e.label(chk)
    e("s_waitcnt vmcnt(0)")
    e("v_cmp_eq_u32 vcc, s%d, v60" % S_NONCE)
    e("s_nop 1")
    mask = (1 << nflags) - 1
    e("s_and_b32 s42, vcc_lo, 0x%x" % (mask & 0xffffffff))
    e("s_cmp_eq_u32 s42, 0x%x" % (mask & 0xffffffff))
    e("s_cbranch_scc1 %s" % done)
    e("s_add_u32 s41, s41, 1")
    e("s_cmp_ge_u32 s41, 0x40000")
    e("s_cbranch_scc1 %s" % done)
    e("s_branch %s" % top)
    e.label(done)
def poll(e, sbase, nflags, drain=True):
    poll_prep(e, sbase, nflags)
    poll_loop(e, nflags, False)

def poll_loop56(e):
    top = e.newlabel("POLL"); done = e.newlabel("POLLD")
    e("s_mov_b32 s41, 0")
    e.label(top)
    poll_issue(e)
    e("s_waitcnt vmcnt(0)")
    e("v_cmp_eq_u32 vcc, s%d, v60" % S_NONCE)
    e("s_nop 1")
    e("s_and_b32 s43, vcc_hi, 0xffffff")
    e("s_cmp_eq_u32 s43, 0xffffff")
    e("s_cselect_b32 s42, vcc_lo, 0")
    e("s_cmp_eq_u32 s42, -1")
    e("s_cbranch_scc1 %s" % done)
    e("s_add_u32 s41, s41, 1")
    e("s_cmp_ge_u32 s41, 0x40000")
    e("s_cbranch_scc1 %s" % done)
    e("s_branch %s" % top)
    e.label(done)

def poll2(e, sline1, line2):
    top = e.newlabel("POLL"); done = e.newlabel("POLLD")
    e("v_lshlrev_b32 v61, 2, v%d" % V_LANE)
    e("v_add_u32 v62, 0x%x, v61" % line2)
    e("v_add_u32 v61, s%d, v61" % sline1)
    e("v_mov_b32 v60, 0x7fffffff")
    e("v_cmp_gt_u32 vcc, 56, v%d" % V_LANE)
    e("s_nop 1")
    e("v_cndmask_b32 v61, v60, v61, vcc")
    e("v_cmp_gt_u32 vcc, 32, v%d" % V_LANE)
    e("s_nop 1")
    e("v_cndmask_b32 v62, v60, v62, vcc")
    e("s_mov_b32 s41, 0")
    e.label(top)
    e("buffer_load_dword v60, v61, s[%d:%d], 0 offen sc1" % (S_WS, S_WS + 3))
    e("buffer_load_dword v58, v62, s[%d:%d], 0 offen sc1" % (S_WS, S_WS + 3))
    e("s_waitcnt vmcnt(0)")
    e("v_cmp_eq_u32 vcc, s%d, v60" % S_NONCE)
    e("v_cmp_eq_u32 s[42:43], s%d, v58" % S_NONCE)
    e("s_nop 1")
    e("s_and_b32 s43, vcc_hi, 0xffffff")
    e("s_and_b32 s42, s42, vcc_lo")
    e("s_cmp_eq_u32 s43, 0xffffff")
    e("s_cselect_b32 s42, s42, 0")
    e("s_cmp_eq_u32 s42, -1")
    e("s_cbranch_scc1 %s" % done)
    e("s_add_u32 s41, s41, 1")
    e("s_cmp_ge_u32 s41, 0x40000")
    e("s_cbranch_scc1 %s" % done)
    e("s_branch %s" % top)
    e.label(done)

def kernel_fused(e, cfg):
    name = "gated_mix__spectral_fnet__glu_gated_glu__prompt_kernel"
    header(e, name)
    e("s_cmp_ge_u32 s2, 256")
    e("s_cbranch_scc1 KF_END")
    kernarg_loads(e)
    entry_common(e)
    def after_h_consumer():
        e.vm_wait_all()
        e("s_barrier")
        lab = e.newlabel("NOTW0")
        e("s_cmp_lg_u32 s%d, 0" % S_WAVE)
        e("s_cbranch_scc1 %s" % lab)
        flag_store(e)
        e.label(lab)
        stamp(e, cfg, 4)
        p2_role(e)
        p2_setup(e, cfg)
        srd(e, S_OUT, 46, 1835008)
        srd(e, S_WD, 56, 1605632)
        e("s_cmp_lg_u32 s%d, 0" % S_WAVE)
        e("s_cbranch_scc1 P2_START")
        e("s_lshr_b32 s43, s%d, 1" % S_T1)
        e("s_lshl_b32 s43, s43, 7")
        e("s_add_u32 s%d, s43, 0x%x" % (S_PF, FLAGS))
        poll(e, S_PF, 14)
        e("s_branch P2_START")
    def after_h_loader():
        e("s_barrier")
        p2_role(e)
        p2_setup(e, cfg)
        srd(e, S_OUT, 46, 1835008)
        e("v_subrev_u32 v9, %d, v10" % (8 * 896))
        e("s_sub_u32 s69, s62, 1024")
        for kk in range(20):
            pos = kk
            dma(e, S_WD, 9, pos * 2048, 69, kk * 16 * 896, ("wdp", kk))
            dma(e, S_WD, 10, pos * 2048, 62, kk * 16 * 896, ("wdp", kk))
        e("s_barrier")
        stamp(e, cfg, 4)
        e.vm = []
        e.label("P2_START")
        e("s_waitcnt vmcnt(0)")
        e("s_barrier")
        stamp(e, cfg, 5)
        e.vm = []; e.lg = []
        p2_main(e, cfg, 5)
        stamp_store(e, cfg, 0)
        e("s_endpgm")
    def after_d(is_cons):
        if is_cons:
            e.vm_wait_all()
            e("s_barrier")
            lab = e.newlabel("DNOTW0")
            e("s_cmp_lg_u32 s%d, 0" % S_WAVE)
            e("s_cbranch_scc1 %s" % lab)
            flag_store(e)
            e("s_waitcnt vmcnt(0)")
            e.label(lab)
            stamp_store(e, cfg, 0)
            e("s_endpgm")
        else:
            e("s_waitcnt vmcnt(0)")
            e("s_barrier")
            stamp_store(e, cfg, 0)
            e("s_endpgm")
    phase1(e, cfg, after_h_consumer, after_h_loader, after_d)
    e.label("KF_END")
    e("s_endpgm")


WB2 = 114688; NW2 = 6; WS2 = 8192
H_ACC = 64
H_FR = 192
V_XA2 = 10
V_WA2 = 18
S_WT = 69

def h2_consumer(e, cfg):
    L = V_LANE; T = 26
    e("s_lshr_b32 s%d, s%d, 1" % (S_WT, S_WAVE))
    e("s_and_b32 s%d, s%d, 1" % (S_WF, S_WAVE))
    e("v_and_b32 v%d, 31, v%d" % (T, L))
    e("v_lshrrev_b32 v%d, 5, v%d" % (T + 1, L))
    e("v_lshrrev_b32 v%d, 1, v%d" % (T + 2, T))
    e("v_and_b32 v%d, 7, v%d" % (T + 2, T + 2))
    e("s_lshl_b32 s41, s%d, 6" % S_WT)
    e("v_add_u32 v%d, s41, v%d" % (T + 3, T))
    e("v_lshlrev_b32 v%d, 7, v%d" % (T + 3, T + 3))
    for k in range(4):
        e("v_add_u32 v%d, %d, v%d" % (T + 4, 2 * k, T + 1))
        e("v_xor_b32 v%d, v%d, v%d" % (T + 4, T + 4, T + 2))
        e("v_lshlrev_b32 v%d, 4, v%d" % (T + 4, T + 4))
        e("v_add_u32 v%d, v%d, v%d" % (V_XA2 + k, T + 3, T + 4))
        e("v_add_u32 v%d, 0x10000, v%d" % (V_XA2 + 4 + k, V_XA2 + k))
    e("v_and_b32 v%d, 15, v%d" % (T + 4, L))
    e("v_lshrrev_b32 v%d, 2, v%d" % (T + 5, T + 4))
    e("v_lshlrev_b32 v%d, 3, v%d" % (T + 6, T + 1))
    e("v_add_u32 v%d, v%d, v%d" % (T + 6, T + 6, T + 5))
    e("v_lshlrev_b32 v%d, 7, v%d" % (T + 6, T + 6))
    e("v_bfe_u32 v%d, v%d, 3, 1" % (T + 7, T + 4))
    e("v_xor_b32 v%d, s%d, v%d" % (T + 7, S_WF, T + 7))
    e("v_lshlrev_b32 v%d, 6, v%d" % (T + 7, T + 7))
    e("v_add_u32 v%d, v%d, v%d" % (T + 6, T + 6, T + 7))
    e("v_bfe_u32 v%d, v%d, 4, 1" % (T + 7, L))
    e("v_lshlrev_b32 v%d, 5, v%d" % (T + 7, T + 7))
    e("v_add_u32 v%d, v%d, v%d" % (T + 6, T + 6, T + 7))
    e("v_and_b32 v%d, 3, v%d" % (T + 7, T + 4))
    e("v_lshlrev_b32 v%d, 3, v%d" % (T + 7, T + 7))
    e("v_add_u32 v%d, v%d, v%d" % (T + 6, T + 6, T + 7))
    e("v_add_u32 v%d, 0x%x, v%d" % (V_WA2, WB2, T + 6))
    e("s_lshl_b32 s41, s%d, 1" % S_R)
    e("s_add_u32 s41, s41, s%d" % S_WT)
    e("s_mul_i32 s41, s41, 112")
    e("s_lshl_b32 s42, s%d, 1" % S_FB)
    e("s_add_u32 s42, s42, s%d" % S_WF)
    e("s_lshl_b32 s42, s42, 1")
    e("s_add_u32 s41, s41, s42")
    e("s_lshl_b32 s41, s41, 11")
    e("v_lshlrev_b32 v20, 4, v%d" % L)
    e("v_add_u32 v20, s41, v20")
    e("v_add_u32 v21, 0x%x, v20" % (56 * 2048))
    e("s_waitcnt lgkmcnt(0)")
    srd(e, S_WS, 74, WS_BYTES)
    flag_addr(e, True)
    nonce_issue(e)
    stamp(e, cfg, 0)
    if "notouch" not in cfg.x:
        srd(e, S_WD, 56, 1605632)
        e("s_lshr_b32 s41, s2, 3")
        e("s_mul_i32 s41, s41, 448")
        e("s_lshl_b32 s42, s%d, 6" % S_WAVE)
        e("s_add_u32 s41, s41, s42")
        e("v_add_u32 v8, s41, v%d" % L)
        e("v_lshlrev_b32 v8, 7, v8")
        e("buffer_load_dword v2, v8, s[%d:%d], 0 offen" % (S_WD, S_WD + 3))
        e("s_cmp_eq_u32 s%d, 3" % S_WAVE)
        lab = e.newlabel("TCH")
        e("s_cbranch_scc1 %s" % lab)
        e("v_add_u32 v8, 0x%x, v8" % (256 * 128))
        e("buffer_load_dword v3, v8, s[%d:%d], 0 offen" % (S_WD, S_WD + 3))
        e.label(lab)
    e("s_barrier")
    stamp(e, cfg, 1)
    if cfg.diag:
        e("s_memtime s[76:77]"); e("s_waitcnt lgkmcnt(0)")
    def reads(g):
        p = g // 28; kap = g % 28
        base = H_FR + 16 * (g & 1)
        c = kap >> 2; kk4 = kap & 3
        xo = c * 16384
        xv = V_XA2 + kk4 + (4 if xo >= 0x10000 else 0); xo &= 0xffff
        j = g >> 1; kk = g & 1
        so = (j % NW2) * WS2
        def xr(nb): return (("X", g, nb), "ds_read_b128 %s, v%d offset:%d" % (vr(base + 4 * nb, 4), xv, xo + nb * 4096))
        def wr(m, ip): return (("W", g, m), "ds_read_b64_tr_b16 %s, v%d offset:%d" % (vr(base + 8 + 4 * m + 2 * ip, 2), V_WA2, so + m * 4096 + (16 * kk + 4 * ip) * 128))
        return [wr(0, 0), wr(0, 1), xr(0), wr(1, 0), wr(1, 1), xr(1)]
    def epilogue(p):
        e("s_mov_b32 s42, 0x%08x" % f2u(-LOG2E))
        e("s_mov_b32 s43, s42")
        e("s_mov_b32 s44, 1.0")
        e("s_mov_b32 s45, 1.0")
        e("s_nop 7")
        grp = 0
        for nb in range(2):
            for hf in range(2):
                outb = 224 + 4 * grp; grp += 1
                A = H_ACC + 16 * nb + 8 * hf; B = H_ACC + 32 + 16 * nb + 8 * hf
                for q in range(0, 8, 2):
                    e("v_pk_mul_f32 %s, %s, s[42:43]" % (vr(A + q, 2), vr(A + q, 2)))
                for q in range(8):
                    e("v_exp_f32 v%d, v%d" % (A + q, A + q))
                for q in range(0, 8, 2):
                    e("v_pk_add_f32 %s, %s, s[44:45]" % (vr(A + q, 2), vr(A + q, 2)))
                for q in range(8):
                    e("v_rcp_f32 v%d, v%d" % (A + q, A + q))
                for q in range(0, 8, 2):
                    e("v_pk_mul_f32 %s, %s, %s" % (vr(A + q, 2), vr(A + q, 2), vr(B + q, 2)))
                for q2 in range(4):
                    e("v_cvt_pk_bf16_f32 v%d, v%d, v%d" % (outb + q2, A + 2 * q2, A + 2 * q2 + 1))
                if not ("nostoreB" in cfg.x and p == 1):
                    e("buffer_store_dwordx4 %s, v%d, s[%d:%d], 0 offen offset:%d%s" % (vr(outb, 4), 20 + p, S_WS, S_WS + 3, hf * 2048 + nb * 1024, "" if "plainst" in cfg.x else " sc1"))
                e.vm_issue("hst")
    for tag, txt in reads(0):
        e(txt); e.lg_issue(tag)
    for g in range(56):
        base = H_FR + 16 * (g & 1)
        nxt = reads(g + 1) if g + 1 < 56 else []
        first = (g % 28 == 0)
        k = 0
        for n in range(4):
            nb = n >> 1; m = n & 1
            e.lg_wait([("W", g, m), ("X", g, nb)])
            d = H_ACC + 32 * m + 16 * nb
            if "nomfma" not in cfg.x:
                mfma(e, d, base + 8 + 4 * m, base + 4 * nb, "0" if first else None)
            cnt = 2 if n < 2 else 1
            for _ in range(cnt):
                if k < len(nxt):
                    tag, txt = nxt[k]; k += 1
                    if "nolds" in cfg.x: continue
                    e(txt); e.lg_issue(tag)
        if g == 27 and "noepiA" not in cfg.x:
            epilogue(0)
        if g == 36:
            nonce_load(e)
        if g == 2 * cfg.flagA_bar - 1:
            e("s_waitcnt vmcnt(0)")
        if (g & 1) and g < 55:
            e("s_barrier")
    assert not e.lg
    e.vm = []
    e("s_barrier")
    if cfg.diag:
        e("s_memtime s[78:79]"); e("s_waitcnt lgkmcnt(0)")
        e("s_sub_u32 s7, s78, s76")
    nonce_finish(e)
    stamp(e, cfg, 2)
    epilogue(1)
    stamp(e, cfg, 3)

def h2_loader(e, cfg):
    L = V_LANE; T = 26
    VX = 10; VW = 14
    e("v_lshrrev_b32 v%d, 3, v%d" % (T, L))
    e("s_lshl_b32 s41, s%d, 5" % S_LW)
    e("v_add_u32 v%d, s41, v%d" % (T, T))
    e("v_and_b32 v%d, 7, v%d" % (T + 1, L))
    e("v_lshrrev_b32 v%d, 4, v%d" % (T + 2, L))
    e("s_movk_i32 s42, 896")
    for i in range(4):
        if i: e("v_add_u32 v%d, 8, v%d" % (T, T))
        e("v_add_u32 v%d, %d, v%d" % (T + 3, (4 * i) & 7, T + 2))
        e("v_and_b32 v%d, 7, v%d" % (T + 3, T + 3))
        e("v_xor_b32 v%d, v%d, v%d" % (T + 3, T + 3, T + 1))
        e("v_lshlrev_b32 v%d, 4, v%d" % (T + 3, T + 3))
        e("v_lshrrev_b32 v%d, 6, v%d" % (T + 4, T))
        e("v_and_b32 v%d, 63, v%d" % (T + 5, T))
        e("v_lshlrev_b32 v%d, 5, v%d" % (T + 5, T + 5))
        e("s_lshl_b32 s41, s%d, 1" % S_R)
        e("v_add3_u32 v%d, v%d, v%d, s41" % (T + 4, T + 4, T + 5))
        e("v_mul_lo_u32 v%d, v%d, s42" % (T + 4, T + 4))
        e("v_add_u32 v%d, v%d, v%d" % (VX + i, T + 4, T + 3))
    e("v_lshrrev_b32 v%d, 3, v%d" % (T + 3, L))
    e("s_lshl_b32 s41, s%d, 3" % S_LW)
    e("v_add_u32 v%d, s41, v%d" % (T + 3, T + 3))
    e("s_movk_i32 s42, 3584")
    e("v_mul_lo_u32 v%d, v%d, s42" % (T + 3, T + 3))
    e("v_bfe_u32 v%d, v%d, 4, 1" % (T + 4, L))
    e("v_lshlrev_b32 v%d, 2, v%d" % (T + 4, T + 4))
    e("v_xor_b32 v%d, v%d, v%d" % (T + 4, T + 4, T + 1))
    e("v_lshlrev_b32 v%d, 4, v%d" % (T + 4, T + 4))
    e("s_lshl_b32 s41, s%d, 7" % S_FB)
    e("v_add3_u32 v%d, v%d, v%d, s41" % (VW, T + 3, T + 4))
    e("s_lshl_b32 s%d, s%d, 10" % (S_LDSW, S_LW))
    e("s_lshl_b32 s%d, s%d, 12" % (S_LDSX, S_LW))
    e("s_waitcnt lgkmcnt(0)")
    srd(e, S_X, 44, 1835008)
    srd(e, S_WA, 52, 1605632); srd(e, S_WB, 54, 1605632)
    srd(e, S_WS, 74, WS_BYTES)
    srd(e, S_GW, 58, 896)
    srd(e, S_WD, 56, 1605632)
    srd(e, S_DBG, 72, 256)
    flag_addr(e, True)
    e("v_mov_b32 v7, 0")
    stamp(e, cfg, 0)
    ROT = "norot" not in cfg.x
    if ROT:
        e("s_add_u32 s6, s%d, s%d" % (S_R, S_FB))
        e("s_mul_i32 s7, s6, 37")
        e("s_lshr_b32 s7, s7, 8")
        e("s_mul_i32 s7, s7, 7")
        e("s_sub_u32 s6, s6, s7")
        e("s_mov_b32 s7, s6")
    def dx(c):
        if ROT:
            e("s_lshl_b32 s%d, s6, 7" % S_OFF)
            for i in range(4): dma(e, S_X, VX + i, c * 16384 + i * 1024, S_LDSX, None, ("x", c))
            rot_next(e, 6, 7)
        else:
            for i in range(4): dma(e, S_X, VX + i, c * 16384 + i * 1024, S_LDSX, c * 128, ("x", c))
    def dw(j):
        p = j // 14; jj = j % 14
        if ROT:
            e("s_mul_i32 s%d, s7, %d" % (S_OFF, 64 * 3584))
            e("s_add_u32 s%d, s%d, %d" % (S_OFF, S_OFF, (jj & 1) * 32 * 3584 + p * 1792))
            for m in range(2):
                dma(e, S_WA if m == 0 else S_WB, VW, WB2 + (j % NW2) * WS2 + m * 4096, S_LDSW, None, ("w", j))
            if jj & 1: rot_next(e, 7, 7)
        else:
            for m in range(2):
                dma(e, S_WA if m == 0 else S_WB, VW, WB2 + (j % NW2) * WS2 + m * 4096, S_LDSW, jj * 32 * 3584 + p * 1792, ("w", j))
    q = []
    for j in range(28):
        if j < 14 and j % 2 == 0: q.append(("x", j // 2, -1))
        q.append(("w", j, -1 if j < NW2 else j - NW2 + 1))
    def cost(it): return 4 if it[0] == "x" else 2
    def issue(it): (dx if it[0] == "x" else dw)(it[1])
    def need(j):
        t = []
        for jj in (j, j + 1):
            if jj <= 27:
                if jj < 14: t.append(("x", jj >> 1))
                t.append(("w", jj))
        return t
    issued = set(); curbar = [-1]
    def ensure(tags):
        while q and any(t not in issued for t in tags):
            it = q.pop(0); assert it[2] <= curbar[0], (it, curbar)
            issue(it); issued.add((it[0], it[1]))
    ensure(need(0))
    budget0 = cfg.pro_extra
    while q and budget0 > 0 and q[0][2] <= -1:
        it = q.pop(0); issue(it); issued.add((it[0], it[1])); budget0 -= cost(it)
    e.vm_wait(need(0))
    e("s_barrier")
    stamp(e, cfg, 1)
    for j in range(27):
        curbar[0] = j
        if j == 0:
            p2_role(e)
            q_setup(e, 0, 16)
            if "spf_disabled" in cfg.x:
                e("s_mul_i32 s4, s43, 448")
                e("s_mul_i32 s5, s%d, 112" % S_LW)
                e("s_add_u32 s4, s4, s5")
                e("s_mul_i32 s4, s4, 896")
                e("s_lshl_b32 s5, s%d, 7" % S_C)
                e("s_add_u32 s4, s4, s5")
        if "spf_disabled" in cfg.x and 1 <= j <= 14:
            for _ in range(8):
                e("s_load_dword s101, s[56:57], s4")
                e("s_add_u32 s4, s4, 896")
        if j >= 16 and j % 2 == 0 and "nowdA" not in cfg.x:
            c = (j - 16) // 2
            q_dma_wd(e, 0, 2 * c, 16); q_dma_wd(e, 0, 2 * c + 1, 16)
        ensure(need(j + 1))
        budget = cfg.stage_budget2
        while q and budget > 0 and q[0][2] <= j:
            it = q.pop(0); issue(it); issued.add((it[0], it[1])); budget -= cost(it)
        if j == cfg.gate_j:
            gate_issue(e, cfg, True)
            gate_issue(e, cfg, True, True)
        if j == cfg.gate_j + 4:
            gate_finish(e, cfg)
            gate_finish(e, cfg, True)
            e("buffer_load_dword v4, v7, s[%d:%d], 0 offen sc1" % (S_DBG, S_DBG + 3))
            e.vm_issue("nonce")
        if j == cfg.flagA_bar - 1:
            e.vm_wait(["nonce"])
            sv = list(e.vm)
            nonce_finish_any(e, keepvm=True)
            e.vm = sv
        if j == cfg.flagA_bar:
            lab = e.newlabel("FA")
            e("s_cmp_lg_u32 s%d, 4" % S_WAVE)
            e("s_cbranch_scc1 %s" % lab)
            flag_store(e)
            e.label(lab)
        if j == cfg.epoll:
            flags_line(e, 0)
            poll_prep(e, S_PF, 14)
            poll_issue(e); e.vm_issue("poll")
        e.vm_wait(need(j + 1))
        e("s_barrier")
    assert not q
    q_setup2(e, 0)
    e("s_waitcnt lgkmcnt(0)")
    e("s_barrier")
    stamp(e, cfg, 2)
    poll_loop(e, 14, True)
    if cfg.diag: e("s_mov_b32 s%d, s41" % (S_STAMP + 16))
    stamp(e, cfg, 4)
    e.vm = []
    e("s_add_u32 s6, s5, 6")
    e("s_cmp_ge_u32 s6, 14")
    e("s_cselect_b32 s41, 14, 0")
    e("s_sub_u32 s6, s6, s41")
    for kk in range(cfg.hpre): q_load_h(e, kk)
    q_dma_wd(e, 0, 12, 16); q_dma_wd(e, 0, 13, 16)

def nonce_finish_any(e, keepvm=False):
    lab = e.newlabel("NFA"); top = e.newlabel("NTA"); chk = e.newlabel("NCK")
    e("s_mov_b32 s42, 0")
    if keepvm: e("s_branch %s" % chk)
    e.label(top)
    e("s_waitcnt vmcnt(0)")
    e.label(chk)
    e("v_readfirstlane_b32 s%d, v4" % S_NONCE)
    e("s_nop 3")
    e("s_cmp_lg_u32 s%d, 0" % S_NONCE)
    e("s_cbranch_scc1 %s" % lab)
    e("s_add_u32 s42, s42, 1")
    e("s_cmp_ge_u32 s42, 0x40000")
    e("s_cbranch_scc1 %s" % lab)
    e("s_sleep 1")
    e("buffer_load_dword v4, v7, s[%d:%d], 0 offen sc1" % (S_DBG, S_DBG + 3))
    e("s_branch %s" % top)
    e.label(lab)

Q_ACC = 64
Q_H = 128
Q_A = 240
SL2 = 40960
SI = 3

def q_setup(e, part, vw=9):
    L = V_LANE
    e("s_and_b32 s%d, s%d, 3" % (SI, S_WAVE))
    e("v_lshrrev_b32 v2, 3, v%d" % L)
    e("v_bfe_u32 v3, v%d, 4, 1" % L)
    e("v_lshlrev_b32 v3, 2, v3")
    e("v_and_b32 v8, 7, v%d" % L)
    e("v_xor_b32 v3, v3, v8")
    e("v_lshlrev_b32 v3, 4, v3")
    e("s_mul_i32 s41, s%d, 224" % SI)
    if part: e("s_add_u32 s41, s41, 896")
    e("v_add_u32 v2, s41, v2")
    e("s_movk_i32 s42, 896")
    e("v_mul_lo_u32 v2, v2, s42")
    e("s_lshl_b32 s41, s%d, 7" % S_C)
    e("v_add3_u32 v%d, v2, v3, s41" % vw)
    e("v_add_u32 v%d, %d, v%d" % (vw + 1, 8 * 896, vw))
    e("s_lshl_b32 s62, s%d, 12" % SI)
    e("s_and_b32 s4, s%d, 3" % S_T1)
    e("s_mul_i32 s4, s4, 3")
    e("s_lshl_b32 s5, s%d, 1" % S_C)
    e("s_add_u32 s4, s4, s5")
    e("s_cmp_ge_u32 s4, 14")
    e("s_cselect_b32 s5, 14, 0")
    e("s_sub_u32 s4, s4, s5")
    if P2ROT[0] == 0: e("s_mov_b32 s4, 0")
    e("s_mov_b32 s5, s4")

P2ROT = [1]
HSC = [" sc1"]
def q_setup2(e, part):
    L = V_LANE
    e("v_and_b32 v2, 15, v%d" % L)
    e("v_lshrrev_b32 v3, 2, v2")
    e("v_lshrrev_b32 v8, 5, v%d" % L)
    e("v_lshlrev_b32 v5, 2, v8")
    e("v_add_u32 v5, v5, v3")
    e("v_lshlrev_b32 v5, 7, v5")
    e("v_bfe_u32 v6, v2, 3, 1")
    e("v_lshlrev_b32 v6, 6, v6")
    e("v_bfe_u32 v3, v%d, 4, 1" % L)
    e("v_lshlrev_b32 v3, 5, v3")
    e("v_and_b32 v8, 3, v2")
    e("v_lshlrev_b32 v8, 3, v8")
    e("v_add3_u32 v5, v5, v6, v3")
    e("v_add_u32 v5, v5, v8")
    e("v_add_u32 v11, s62, v5")
    e("v_xor_b32 v12, 64, v11")
    e("v_add_u32 v18, 0x10000, v11")
    e("v_add_u32 v19, 0x10000, v12")
    e("v_add_u32 v15, 0x20000, v11")
    e("v_add_u32 v63, 0x20000, v12")
    e("s_mul_i32 s41, s%d, 112" % S_T1)
    e("s_mul_i32 s42, s%d, 14" % SI)
    e("s_add_u32 s41, s41, s42")
    if part: e("s_add_u32 s41, s41, 56")
    e("s_lshl_b32 s41, s41, 11")
    e("v_lshlrev_b32 v13, 4, v%d" % L)
    e("v_add_u32 v13, s41, v13")
    e("v_and_b32 v14, 31, v%d" % L)

def q_pos(part, kk):
    if part == 0: return (kk >> 1) * 16384 + (kk & 1) * 2048
    if kk < 6: return WB2 + (kk >> 1) * 16384 + (kk & 1) * 2048
    k2 = kk - 6
    return (k2 >> 1) * 16384 + (k2 & 1) * 2048

def q_dma_wd(e, part, kk, vw=9):
    pos = q_pos(part, kk)
    e("s_mul_i32 s%d, s4, %d" % (S_OFF, 16 * 896))
    dma(e, S_WD, vw, pos, 62, None, ("wd", kk))
    dma(e, S_WD, vw + 1, pos + 1024, 62, None, ("wd", kk))
    rot_next(e, 4, 14)

def q_load_h(e, kk):
    e("s_lshl_b32 s%d, s5, 11" % S_OFF)
    for nb in range(2):
        e("buffer_load_dwordx4 %s, v13, s[%d:%d], s%d offen offset:%d%s" % (vr(Q_H + 8 * kk + 4 * nb, 4), S_WS, S_WS + 3, S_OFF, nb * 1024, HSC[0]))
        e.vm_issue(("h", kk))
    rot_next(e, 5, 14)

def q_mainloop(e, cfg, part, init_zero, pre, extra=None, after_k=None, before_reads=None):
    def reads(kk):
        b = Q_A + 8 * (kk & 1)
        pos = q_pos(part, kk)
        for mb in range(2):
            for ip in range(2):
                va = (11 + mb) if pos < 0x10000 else (18 + mb)
                po = pos if pos < 0x10000 else pos - 0x10000
                if pos >= 0x20000:
                    va = (15, 63)[mb]; po = pos - 0x20000
                e("ds_read_b64_tr_b16 %s, v%d offset:%d" % (vr(b + 4 * mb + 2 * ip, 2), va, po + ip * 1024))
                e.lg_issue(("A", kk, mb))
    nxt = pre
    e.vm_wait([("wd", 0)])
    reads(0)
    for kk in range(14):
        if nxt < 14:
            q_load_h(e, nxt); nxt += 1
            if nxt == 14 and extra: extra()
        late = before_reads is not None and before_reads(kk + 1, False)
        if kk + 1 < 14 and not late:
            e.vm_wait([("wd", kk + 1)])
            reads(kk + 1)
        e.vm_wait([("h", kk)])
        b = Q_A + 8 * (kk & 1)
        for mb in range(2):
            e.lg_wait([("A", kk, mb)])
            for nb in range(2):
                mfma(e, Q_ACC + 16 * (2 * mb + nb), b + 4 * mb, Q_H + 8 * kk + 4 * nb, "0" if (kk == 0 and init_zero) else None)
        if late:
            before_reads(kk + 1, True)
            reads(kk + 1)
        if after_k: after_k(kk)
    assert not e.lg and nxt == 14

def flags_line(e, part):
    e("s_lshr_b32 s43, s%d, 1" % S_T1)
    e("s_lshl_b32 s43, s43, 9")
    e("s_add_u32 s%d, s43, 0x%x" % (S_PF, FLAGS + 256 * part))

def q_loader_A(e, cfg):
    e("v_add_u32 v26, %d, v16" % (896 * 896))
    e("v_add_u32 v27, %d, v17" % (896 * 896))
    stamp(e, cfg, 5)
    def after_k(kk):
        if kk < 8:
            pos = q_pos(0, kk)
            e("s_mul_i32 s%d, s6, %d" % (S_OFF, 16 * 896))
            dma(e, S_WD, 26, pos, 62, None, ("wdb", kk))
            dma(e, S_WD, 27, pos + 1024, 62, None, ("wdb", kk))
            rot_next(e, 6, 14)
    q_mainloop(e, cfg, 0, True, cfg.hpre, None, after_k)
    stamp(e, cfg, 6)
    e("v_lshlrev_b32 v2, 4, v%d" % V_LANE)
    e("v_add_u32 v2, s62, v2")
    e("v_add_u32 v3, 0x10000, v2")
    e("s_nop 7"); e("s_nop 3")
    for tl in range(3):
        for qq in range(4):
            e("ds_write_b128 v3, %s offset:%d" % (vr(Q_ACC + 16 * tl + 4 * qq, 4), (4 + tl) * 16384 - 0x10000 + qq * 1024))
    e("s_waitcnt vmcnt(0) lgkmcnt(0)")
    e.vm = []
    e("s_barrier")
    stamp(e, cfg, 7)
    e("v_add_u32 v3, 0x%x, v2" % WB2)
    for qq in range(4):
        e("ds_write_b128 v3, %s offset:%d" % (vr(Q_ACC + 48 + 4 * qq, 4), qq * 1024))
    e("s_waitcnt lgkmcnt(0)")
    e("s_barrier")

def q_consumer_B(e, cfg):
    L = V_LANE
    p2_role(e)
    q_setup(e, 1)
    q_setup2(e, 1)
    srd(e, S_OUT, 46, 1835008)
    srd(e, S_WD, 56, 1605632)
    flags_line(e, 0)
    poll_prep(e, S_PF, 14)
    poll_issue(e); e.vm_issue("pollA")
    e("s_cmp_ge_u32 s%d, 4" % S_C)
    e("s_cselect_b32 s63, 1, 0")
    e("s_sub_u32 s64, 32, s%d" % S_T1)
    e("s_and_b32 s64, s64, 31")
    e("s_cmp_eq_u32 s63, 1")
    e("s_cselect_b32 s64, s64, s%d" % S_T1)
    e("v_lshrrev_b32 v8, 5, v%d" % L)
    e("s_lshl_b32 s41, s%d, 6" % S_C)
    e("s_cmp_eq_u32 s63, 1")
    e("s_cselect_b64 vcc, -1, 0")
    for mb in range(2):
        e("v_add_u32 v2, s41, v14")
        if mb: e("v_add_u32 v2, 32, v2")
        e("v_sub_u32 v3, 448, v2")
        e("v_cndmask_b32 v2, v2, v3, vcc")
        e("v_lshlrev_b32 v2, 4, v2")
        e("v_lshlrev_b32 v3, 12, v8")
        e("v_add_u32 v%d, v2, v3" % (16 + mb))
    e("s_lshl_b32 s41, s64, 4")
    e("s_lshl_b32 s42, s%d, 2" % SI)
    e("s_add_u32 s41, s41, s42")
    e("s_lshl_b32 s41, s41, 12")
    e("s_add_u32 s65, s41, 0x%x" % UBUF)
    e("s_lshl_b32 s41, s%d, 6" % S_T1)
    e("v_add_u32 v2, s41, v14")
    e("v_lshlrev_b32 v2, 2, v2")
    e("v_add_u32 v20, 0x%x, v2" % GBUF)
    e("s_mul_i32 s41, s61, 12")
    e("s_lshl_b32 s42, s%d, 2" % S_WAVE)
    e("s_add_u32 s41, s41, s42")
    e("s_add_u32 s41, s41, 256")
    e("s_add_u32 s%d, s%d, s41" % (S_FLAG, S_FLAG))
    poll_loop(e, 14, True)
    stamp(e, cfg, 6)
    flag_store(e)
    e.vm = []
    for nb in range(2):
        e("buffer_load_dword v%d, v20, s[%d:%d], 0 offen offset:%d sc1" % (22 + nb, S_WS, S_WS + 3, nb * 128))
        e.vm_issue("g")
    for kk in range(6): q_dma_wd(e, 1, kk)
    stamp(e, cfg, 4)
    flags_line(e, 1)
    poll_prep(e, S_PF, 56)
    poll_loop56(e)
    stamp(e, cfg, 5)
    e.vm = []
    e("v_lshlrev_b32 v62, 2, v%d" % V_LANE)
    e("v_add_u32 v62, 0x%x, v62" % (FLAGS + 16 * 512))
    e("v_mov_b32 v60, 0x7fffffff")
    e("v_cmp_gt_u32 vcc, 32, v%d" % V_LANE)
    e("s_nop 1")
    e("v_cndmask_b32 v62, v60, v62, vcc")
    def uloads():
        for u in range(2):
            for mb in range(2):
                e("s_add_u32 s%d, s65, %d" % (S_OFF, u * 2 * 4096))
                e("buffer_load_dwordx4 %s, v%d, s[%d:%d], s%d offen sc1" % (vr(44 + 8 * u + 4 * mb, 4), 16 + mb, S_WS, S_WS + 3, S_OFF))
                e.vm_issue("u")
    def dflag_issue():
        e("buffer_load_dword v58, v62, s[%d:%d], 0 offen sc1" % (S_WS, S_WS + 3))
        e.vm_issue("dflag")
    def after_k(kk):
        if kk == cfg.dchk:
            ok = e.newlabel("DOK"); top = e.newlabel("DSP")
            e.vm_wait(["dflag"])
            sv = list(e.vm)
            e("s_mov_b32 s41, 0")
            e.label(top)
            e("v_cmp_eq_u32 vcc, s%d, v58" % S_NONCE)
            e("s_nop 1")
            e("s_cmp_eq_u32 vcc_lo, -1")
            e("s_cbranch_scc1 %s" % ok)
            e("s_add_u32 s41, s41, 1")
            e("s_cmp_ge_u32 s41, 0x40000")
            e("s_cbranch_scc1 %s" % ok)
            e("buffer_load_dword v58, v62, s[%d:%d], 0 offen sc1" % (S_WS, S_WS + 3))
            e("s_waitcnt vmcnt(0)")
            e("s_branch %s" % top)
            e.label(ok)
            e.vm = sv
            uloads()
    for kk in range(cfg.hpreB): q_load_h(e, kk)
    e("s_cmp_lg_u32 s%d, 0" % S_T1)
    e("s_cselect_b32 s41, s63, 0")
    e("v_add_u32 v2, s41, v14")
    e("v_lshrrev_b32 v8, 5, v%d" % L)
    e("v_lshlrev_b32 v8, 2, v8")
    e("s_lshl_b32 s43, s%d, 4" % SI)
    e("v_add_u32 v8, s43, v8")
    e("s_lshl_b32 s41, s63, 31")
    e("s_mov_b32 s42, 0x%08x" % f2u(1.0 / 64))
    for nb in range(2):
        if nb: e("v_add_u32 v2, 32, v2")
        e("v_xor_b32 v21, s41, v%d" % (22 + nb))
        for u in range(2):
            for q in range(4):
                e("v_add_u32 v3, %d, v8" % (8 * u + q))
                e("v_mul_u32_u24 v3, v3, v2")
                e("v_and_b32 v3, 63, v3")
                e("v_cvt_f32_u32 v3, v3")
                e("v_mul_f32 v3, s42, v3")
                e("v_cos_f32 v5, v3")
                e("v_sin_f32 v6, v3")
                e("s_nop 0")
                e("v_mul_f32 v5, v5, v%d" % (22 + nb))
                e("v_mul_f32 v6, v6, v21")
                e("v_cvt_pk_bf16_f32 v%d, v5, v6" % (24 + 8 * nb + 4 * u + q))
    for nb in range(2):
        e("v_sub_f32 v%d, 1.0, v%d" % (40 + 2 * nb, 22 + nb))
        e("v_mov_b32 v%d, v%d" % (41 + 2 * nb, 40 + 2 * nb))
    def before_reads(k, doit):
        if k != 6: return False
        if doit: e("s_barrier")
        return True
    q_mainloop(e, cfg, 1, True, cfg.hpreB, dflag_issue, after_k, before_reads)
    stamp(e, cfg, 7)
    e("s_nop 7"); e("s_nop 3")
    for mb in range(2):
        for nb in range(2):
            D = Q_ACC + 16 * (2 * mb + nb)
            for i in range(0, 16, 2):
                e("v_pk_mul_f32 %s, %s, %s" % (vr(D + i, 2), vr(D + i, 2), vr(40 + 2 * nb, 2)))
    e.vm_wait(["u"])
    e("s_nop 1")
    for u in range(2):
        for mb in range(2):
            for nb in range(2):
                mfma(e, Q_ACC + 16 * (2 * mb + nb), 44 + 8 * u + 4 * mb, 24 + 8 * nb + 4 * u)
    e("s_barrier")
    e("v_lshlrev_b32 v2, 4, v%d" % L)
    e("s_lshl_b32 s41, s%d, 14" % SI)
    e("v_add_u32 v3, s41, v2")
    e("s_lshl_b32 s41, s%d, 14" % SI)
    e("s_add_u32 s41, s41, 0x10000")
    e("s_cmp_eq_u32 s%d, 3" % SI)
    e("s_cselect_b32 s41, 0x%x, s41" % WB2)
    e("v_add_u32 v5, s41, v2")
    for k in range(4):
        for qq in range(4):
            e("ds_read_b128 %s, v5 offset:%d" % (vr(192 + 16 * k + 4 * qq, 4), k * 4096 + qq * 1024))
        if k == 2: e("s_waitcnt lgkmcnt(8)")
    e("s_waitcnt lgkmcnt(6)")
    for tl in range(4):
        for qq in range(4):
            e("ds_write_b128 v3, %s offset:%d" % (vr(Q_ACC + 16 * tl + 4 * qq, 4), tl * 4096 + qq * 1024))
        if tl < 3: e("s_waitcnt lgkmcnt(6)")
    e("s_waitcnt lgkmcnt(0)")
    e("s_barrier")
    e("s_lshl_b32 s41, s%d, 12" % SI)
    e("v_add_u32 v3, s41, v2")
    for k in range(4):
        for qq in range(4):
            e("ds_read_b128 %s, v3 offset:%d" % (vr(128 + 16 * k + 4 * qq, 4), k * 16384 + qq * 1024))
        if k == 2: e("s_waitcnt lgkmcnt(8)")
    for q in range(0, 16, 2):
        e("v_pk_add_f32 %s, %s, %s" % (vr(192 + q, 2), vr(192 + q, 2), vr(208 + q, 2)))
        e("v_pk_add_f32 %s, %s, %s" % (vr(224 + q, 2), vr(224 + q, 2), vr(240 + q, 2)))
    for q in range(0, 16, 2):
        e("v_pk_add_f32 %s, %s, %s" % (vr(192 + q, 2), vr(192 + q, 2), vr(224 + q, 2)))
    e("s_and_b32 s41, s%d, 1" % SI)
    e("s_cmp_eq_u32 s41, 1")
    e("s_cselect_b64 vcc, -1, 0")
    e("s_nop 1")
    e("v_cndmask_b32 v40, v40, v42, vcc")
    e("v_mov_b32 v41, v40")
    e("s_lshl_b32 s41, s41, 5")
    e("v_add_u32 v2, s41, v14")
    e("v_lshlrev_b32 v2, 5, v2")
    e("v_add_u32 v2, s%d, v2" % S_T1)
    e("s_movk_i32 s42, 896")
    e("v_mul_lo_u32 v2, v2, s42")
    e("s_lshl_b32 s41, s%d, 7" % S_C)
    e("s_lshr_b32 s42, s%d, 1" % SI)
    e("s_lshl_b32 s42, s42, 6")
    e("s_add_u32 s41, s41, s42")
    e("v_lshrrev_b32 v8, 5, v%d" % L)
    e("v_lshlrev_b32 v8, 4, v8")
    e("v_add3_u32 v2, v2, v8, s41")
    e("s_waitcnt lgkmcnt(0)")
    for q in range(0, 16, 2):
        e("v_pk_add_f32 %s, %s, %s" % (vr(128 + q, 2), vr(128 + q, 2), vr(144 + q, 2)))
        e("v_pk_add_f32 %s, %s, %s" % (vr(160 + q, 2), vr(160 + q, 2), vr(176 + q, 2)))
    for q in range(0, 16, 2):
        e("v_pk_fma_f32 %s, %s, %s, %s" % (vr(128 + q, 2), vr(192 + q, 2), vr(40, 2), vr(128 + q, 2)))
    for q in range(0, 16, 2):
        e("v_pk_add_f32 %s, %s, %s" % (vr(128 + q, 2), vr(128 + q, 2), vr(160 + q, 2)))
    for q in range(8):
        e("v_cvt_pk_bf16_f32 v%d, v%d, v%d" % (96 + q, 128 + 2 * q, 128 + 2 * q + 1))
    e("s_nop 1")
    for ih in range(2):
        e("v_permlane32_swap_b32 v%d, v%d" % (96 + 4 * ih, 98 + 4 * ih))
        e("v_permlane32_swap_b32 v%d, v%d" % (97 + 4 * ih, 99 + 4 * ih))
    for ih in range(2):
        e("buffer_store_dwordx4 %s, v2, s[%d:%d], 0 offen offset:%d" % (vr(96 + 4 * ih, 4), S_OUT, S_OUT + 3, ih * 32))
    stamp(e, cfg, 8)

def kernel_fused2(e, cfg):
    name = "gated_mix__spectral_fnet__glu_gated_glu__prompt_kernel"
    header(e, name)
    e("s_cmp_ge_u32 s2, 256")
    e("s_cbranch_scc1 KF_END")
    kernarg_loads(e)
    entry_common(e)
    e("s_and_b32 s%d, s%d, 3" % (S_WF, S_WAVE))
    e("s_and_b32 s%d, s%d, 3" % (S_LW, S_WAVE))
    e("s_and_b32 s41, s2, 7")
    e("s_lshr_b32 s42, s2, 3")
    e("s_cmp_ge_u32 s42, 28")
    e("s_cbranch_scc1 P1_DFT")
    e("s_mul_i32 s43, s42, 37")
    e("s_lshr_b32 s43, s43, 8")
    e("s_mul_i32 s76, s43, 7")
    e("s_sub_u32 s76, s42, s76")
    e("s_lshr_b32 s77, s41, 1")
    e("s_lshl_b32 s77, s77, 2")
    e("s_add_u32 s%d, s77, s43" % S_R)
    e("s_and_b32 s77, s41, 1")
    e("s_mul_i32 s77, s77, 7")
    e("s_add_u32 s%d, s77, s76" % S_FB)
    e("s_cmp_ge_u32 s%d, 4" % S_WAVE)
    e("s_cbranch_scc1 P1_H_LOADER")
    e.vm = []; e.lg = []
    h2_consumer(e, cfg)
    q_consumer_B(e, cfg)
    stamp_store(e, cfg, 0)
    e("s_endpgm")
    e.label("P1_H_LOADER")
    e.vm = []; e.lg = []
    h2_loader(e, cfg)
    q_loader_A(e, cfg)
    stamp_store(e, cfg, 0)
    e("s_endpgm")
    e.label("P1_DFT")
    e("s_sub_u32 s42, s42, 28")
    e("s_and_b32 s%d, s41, 1" % S_EH)
    e("s_lshr_b32 s77, s41, 1")
    e("s_lshl_b32 s77, s77, 2")
    e("s_add_u32 s%d, s77, s42" % S_QG)
    e("s_cmp_ge_u32 s%d, 4" % S_WAVE)
    e("s_cbranch_scc1 P1_D_LOADER")
    e.vm = []; e.lg = []
    p1_consumer(e, cfg, False)
    d_epilogue(e, cfg)
    stamp(e, cfg, 3)
    e.vm_wait_all()
    e("s_barrier")
    lab = e.newlabel("DNOTW0")
    e("s_cmp_lg_u32 s%d, 0" % S_WAVE)
    e("s_cbranch_scc1 %s" % lab)
    flag_store(e)
    e("s_waitcnt vmcnt(0)")
    e.label(lab)
    stamp_store(e, cfg, 0)
    e("s_endpgm")
    e.label("P1_D_LOADER")
    e.vm = []; e.lg = []
    p1_loader(e, cfg, False)
    stamp(e, cfg, 3)
    e("s_waitcnt vmcnt(0)")
    e("s_barrier")
    stamp_store(e, cfg, 0)
    e("s_endpgm")
    e.label("KF_END")
    e("s_endpgm")

def descriptor(name):
    return """.section .rodata,"a"
.p2align 6
.amdhsa_kernel %s
  .amdhsa_next_free_vgpr 256
  .amdhsa_next_free_sgpr 102
  .amdhsa_accum_offset 256
  .amdhsa_group_segment_fixed_size 0
  .amdhsa_kernarg_size 104
  .amdhsa_user_sgpr_count 2
  .amdhsa_user_sgpr_kernarg_segment_ptr 1
  .amdhsa_system_sgpr_workgroup_id_x 1
.end_amdhsa_kernel
""" % name

def main():
    cfg = Cfg()
    cfg.pro_extra = 8; cfg.stage_budget = 8; cfg.p2_la = 3; cfg.p2_dpoll = 4; cfg.stage_budget2 = 6; cfg.flagA_bar = 22; cfg.epoll = 26; cfg.hpre = 6; cfg.hpreB = 5; cfg.dchk = 11; cfg.gate_j = 8
    out = sys.argv[1]
    for a in sys.argv[2:]:
        if a == "nop2rot": P2ROT[0] = 0
        if a == "hplain": HSC[0] = ""
        if a == "hnt": HSC[0] = " nt"
        if a == "hsc01": HSC[0] = " sc0 sc1"
        if a == "diag": cfg.diag = True
        elif a == "fused": cfg.fused = True
        elif "=" in a:
            k, v = a.split("="); setattr(cfg, k, int(v))
        else: cfg.x = cfg.x | {a}
    e = Em()
    if cfg.fused:
        name = "gated_mix__spectral_fnet__glu_gated_glu__prompt_kernel"
        hdr = "; generated by gen2.py (fused)\n; @launch grid=(256,1,1) block=(512,1,1) lds=163840\n"
        hdr += '.amdgcn_target "amdgcn-amd-amdhsa--gfx950"\n'
        kernel_fused2(e, cfg)
        open(out, "w").write(hdr + e.text() + descriptor(name))
        return
    hdr = "; generated by gen2.py\n"
    hdr += "; @launch kernel=k1_kernel grid=(256,1,1) block=(512,1,1) lds=163840\n"
    hdr += "; @launch kernel=k2_kernel grid=(256,1,1) block=(512,1,1) lds=163840\n"
    hdr += '.amdgcn_target "amdgcn-amd-amdhsa--gfx950"\n'
    kernel1(e, cfg)
    kernel2(e, cfg)
    txt = hdr + e.text() + descriptor("k1_kernel") + descriptor("k2_kernel")
    open(out, "w").write(txt)
if __name__ == "__main__":
    main()
```

```python
import sys, math, struct

def f2u(f): return struct.unpack("<I", struct.pack("<f", f))[0]

class Em:
    def __init__(self):
        self.lines = []
        self.vm = []
        self.lg = []
        self.nlab = 0
    def __call__(self, s): self.lines.append("    " + s)
    def raw(self, s): self.lines.append(s)
    def label(self, s): self.lines.append(s + ":")
    def newlabel(self, p):
        self.nlab += 1
        return "%s_%d" % (p, self.nlab)
    def vm_issue(self, tag): self.vm.append(tag)
    def vm_wait(self, tags):
        last = -1
        for i, t in enumerate(self.vm):
            if t in tags: last = i
        if last < 0: return
        n = len(self.vm) - 1 - last
        assert n <= 63, n
        self("s_waitcnt vmcnt(%d)" % n)
        self.vm = self.vm[last + 1:]
    def vm_wait_all(self):
        self("s_waitcnt vmcnt(0)"); self.vm = []
    def lg_issue(self, tag): self.lg.append(tag)
    def lg_wait(self, tags):
        last = -1
        for i, t in enumerate(self.lg):
            if t in tags: last = i
        if last < 0: return
        n = len(self.lg) - 1 - last
        assert n <= 15, n
        self("s_waitcnt lgkmcnt(%d)" % n)
        self.lg = self.lg[last + 1:]
    def lg_wait_all(self):
        self("s_waitcnt lgkmcnt(0)"); self.lg = []
    def text(self): return "\n".join(self.lines) + "\n"

def vr(a, n=1): return "v%d" % a if n == 1 else "v[%d:%d]" % (a, a + n - 1)

HBUF = 0
UBUF = 0x700000
GBUF = 0x900000
FLAGS = 0x910000
DIAG = 0xA00000
WS_BYTES = 0x1000000
LOG2E = 1.4426950408889634

S_X = 8; S_WA = 12; S_WB = 16; S_WS = 20; S_GW = 24; S_OUT = 28; S_WD = 32; S_DBG = 36
S_WAVE = 40
S_R = 60; S_FB = 61; S_QG = 62; S_EH = 63
S_WF = 64; S_LW = 65
S_LDSW = 66; S_LDSX = 67
S_OFF = 68
S_T1 = 70; S_C = 71
S_STAMP = 80
S_NONCE = 98; S_FLAG = 99; S_PF = 100
V_LANE = 1

class Cfg:
    fused = False
    diag = False
    x = set()

def kernarg_loads(e):
    e("s_load_dwordx2 s[44:45], s[0:1], 0")
    e("s_load_dwordx4 s[48:51], s[0:1], 24")
    e("s_load_dwordx4 s[52:55], s[0:1], 48")
    e("s_load_dwordx4 s[56:59], s[0:1], 64")
    e("s_load_dwordx2 s[46:47], s[0:1], 80")
    e("s_load_dwordx4 s[72:75], s[0:1], 88")

def srd(e, dst, lo, nbytes):
    e("s_mov_b32 s%d, s%d" % (dst, lo))
    e("s_and_b32 s%d, s%d, 0xffff" % (dst + 1, lo + 1))
    e("s_mov_b32 s%d, 0x%x" % (dst + 2, nbytes))
    e("s_mov_b32 s%d, 0x20000" % (dst + 3))

NSTAMP = 6
def stamp(e, cfg, k):
    if cfg.diag:
        assert not e.lg
        e("s_memrealtime s[%d:%d]" % (S_STAMP + 2 * k, S_STAMP + 2 * k + 1))
        if k in (1, 2) and not cfg.fused:
            e("s_memtime s[%d:%d]" % (S_STAMP + 12 + 2 * (k - 1), S_STAMP + 13 + 2 * (k - 1)))
        e("s_waitcnt lgkmcnt(0)")

def stamp_store(e, cfg, slot_base):
    if not cfg.diag: return
    e("s_lshl_b32 s41, s2, 3")
    e("s_add_u32 s41, s41, s%d" % S_WAVE)
    e("s_lshl_b32 s41, s41, 6")
    e("s_add_u32 s41, s41, 0x%x" % (DIAG + slot_base))
    e("v_mov_b32 v1, s41")
    for k in range(9 if cfg.fused else NSTAMP + 2):
        e("v_mov_b32 v2, s%d" % (S_STAMP + 2 * k))
        e("buffer_store_dword v2, v1, s[%d:%d], 0 offen offset:%d" % (S_WS, S_WS + 3, 4 * k))
        e("s_nop 1")
    e("v_mov_b32 v2, s7")
    e("buffer_store_dword v2, v1, s[%d:%d], 0 offen offset:36" % (S_WS, S_WS + 3))
    e("s_waitcnt vmcnt(0)")

def mfma(e, d, a, b, c=None):
    cs = vr(d, 16) if c is None else c
    e("v_mfma_f32_32x32x16_bf16 %s, %s, %s, %s" % (vr(d, 16), vr(a, 4), vr(b, 4), cs))

NODMA = [False]
def rot_next(e, sreg, n):
    e("s_add_u32 s%d, s%d, 1" % (sreg, sreg))
    e("s_cmp_eq_u32 s%d, %d" % (sreg, n))
    e("s_cselect_b32 s%d, 0, s%d" % (sreg, sreg))
def dma(e, srdreg, vaddr, ldsconst, sldswave, soff, tag):
    if NODMA[0]:
        e.vm_issue(tag); e.vm.pop(); return
    e("s_add_u32 m0, s%d, 0x%x" % (sldswave, ldsconst))
    if soff is None:
        e("s_nop 0")
    else:
        e("s_mov_b32 s%d, 0x%x" % (S_OFF, soff))
    e("buffer_load_dwordx4 v%d, s[%d:%d], s%d offen lds" % (vaddr, srdreg, srdreg + 3, S_OFF))
    e.vm_issue(tag)

XSLOT = 16384; NX = 4
WBASE = 65536; NW = 6; WSLOT = 16384
ACC = 64
def accA(i): return ACC + 16 * i
def accB(i): return ACC + 64 + 16 * i
FR = 192
V_XA = 10
V_WA = 14
CONST_LDS = 0

def p1_consumer_addr(e, is_h):
    L = V_LANE; T = 26
    e("v_and_b32 v%d, 31, v%d" % (T, L))
    e("v_lshrrev_b32 v%d, 5, v%d" % (T + 1, L))
    e("v_lshrrev_b32 v%d, 1, v%d" % (T + 2, T))
    e("v_and_b32 v%d, 7, v%d" % (T + 2, T + 2))
    e("v_lshlrev_b32 v%d, 7, v%d" % (T + 3, T))
    if not is_h:
        e("s_lshl_b32 s41, s%d, 5" % S_WF)
        e("v_add_u32 v%d, s41, v%d" % (T + 5, T))
        e("v_lshlrev_b32 v%d, 7, v%d" % (T + 5, T + 5))
        e("v_add_u32 v%d, 0x%x, v%d" % (T + 5, WBASE, T + 5))
    for k in range(4):
        e("v_add_u32 v%d, %d, v%d" % (T + 4, 2 * k, T + 1))
        e("v_xor_b32 v%d, v%d, v%d" % (T + 4, T + 4, T + 2))
        e("v_lshlrev_b32 v%d, 4, v%d" % (T + 4, T + 4))
        e("v_add_u32 v%d, v%d, v%d" % (V_XA + k, T + 3, T + 4))
        if not is_h:
            e("v_add_u32 v%d, v%d, v%d" % (V_WA + k, T + 5, T + 4))
            e("v_add_u32 v%d, 0x10000, v%d" % (V_WA + 4 + k, V_WA + k))
    if is_h:
        e("v_and_b32 v%d, 15, v%d" % (T + 4, L))
        e("v_lshrrev_b32 v%d, 2, v%d" % (T + 5, T + 4))
        e("v_lshlrev_b32 v%d, 3, v%d" % (T + 6, T + 1))
        e("v_add_u32 v%d, v%d, v%d" % (T + 6, T + 6, T + 5))
        e("v_lshlrev_b32 v%d, 8, v%d" % (T + 6, T + 6))
        e("v_xor_b32 v%d, s%d, v%d" % (T + 7, S_WF, T + 5))
        e("v_lshlrev_b32 v%d, 6, v%d" % (T + 7, T + 7))
        e("v_add_u32 v%d, v%d, v%d" % (T + 6, T + 6, T + 7))
        e("v_bfe_u32 v%d, v%d, 4, 1" % (T + 7, L))
        e("v_lshlrev_b32 v%d, 5, v%d" % (T + 7, T + 7))
        e("v_add_u32 v%d, v%d, v%d" % (T + 6, T + 6, T + 7))
        e("v_and_b32 v%d, 3, v%d" % (T + 7, T + 4))
        e("v_lshlrev_b32 v%d, 3, v%d" % (T + 7, T + 7))
        e("v_add_u32 v%d, v%d, v%d" % (T + 6, T + 6, T + 7))
        e("v_add_u32 v%d, 0x%x, v%d" % (V_WA, WBASE, T + 6))
        e("v_add_u32 v%d, 0x%x, v%d" % (V_WA + 1, WBASE + 0x10000, T + 6))

def p1_reads(kap, is_h):
    base = FR + 24 * (kap & 1)
    c = kap >> 2; kk4 = kap & 3
    def xr(nb): return (("X", kap, nb), "ds_read_b128 %s, v%d offset:%d" % (vr(base + 4 * nb, 4), V_XA + kk4, (c % NX) * XSLOT + nb * 4096))
    if is_h:
        j = kap >> 1; kk = kap & 1
        slot = (j % NW) * WSLOT
        va = V_WA + (1 if slot >= 0x10000 else 0); so = slot & 0xffff
        def wr(m, ip): return (("W", kap, m), "ds_read_b64_tr_b16 %s, v%d offset:%d" % (vr(base + 16 + 4 * m + 2 * ip, 2), va, so + m * 8192 + (16 * kk + 4 * ip) * 256))
        return [wr(0, 0), wr(0, 1), xr(0), wr(1, 0), wr(1, 1), xr(1), xr(2), xr(3)]
    else:
        slot = (c % 3) * 32768
        va = V_WA + kk4 + (4 if slot >= 0x10000 else 0); so = slot & 0xffff
        def wr(m): return (("W", kap, m), "ds_read_b128 %s, v%d offset:%d" % (vr(base + 16 + 4 * m, 4), va, so + m * 16384))
        return [wr(0), xr(0), wr(1), xr(1), xr(2), xr(3)]

def p1_consumer(e, cfg, is_h):
    p1_consumer_addr(e, is_h)
    e("s_waitcnt lgkmcnt(0)")
    srd(e, S_WS, 74, WS_BYTES)
    if cfg.fused:
        flag_addr(e, is_h)
        nonce_issue(e)
    stamp(e, cfg, 0)
    e("s_barrier")
    stamp(e, cfg, 1)
    for tag, txt in p1_reads(0, is_h):
        e(txt); e.lg_issue(tag)
    for kap in range(28):
        base = FR + 24 * (kap & 1)
        nxt = p1_reads(kap + 1, is_h) if kap + 1 < 28 else []
        for n in range(8):
            nb = n >> 1; m = n & 1
            e.lg_wait([("W", kap, m), ("X", kap, nb)])
            d = accA(nb) if m == 0 else accB(nb)
            W = base + 16 + 4 * m; X = base + 4 * nb
            c = "0" if kap == 0 else None
            if "no32" in cfg.x:
                for hh in range(2):
                    e("v_mfma_f32_16x16x32_bf16 %s, %s, %s, %s" % (vr(d + 8 * hh, 4), vr(W, 4), vr(X, 4), vr(d + 8 * hh, 4)))
            elif "nomfma" not in cfg.x:
                if is_h: mfma(e, d, W, X, c)
                else: mfma(e, d, X, W, c)
            if nxt and n < len(nxt):
                tag, txt = nxt[n]
                if "nolds" in cfg.x: e.lg_issue(tag); e.lg.pop()
                else:
                    e(txt); e.lg_issue(tag)
        if (kap & 1) and kap < 27:
            e("s_barrier")
        if cfg.fused and kap == 21:
            nonce_load(e)
    assert not e.lg
    if cfg.fused and is_h:
        e("s_barrier")
    if cfg.fused:
        nonce_finish(e)
    stamp(e, cfg, 2)

def h_epilogue(e, cfg):
    sc = " sc1" if cfg.fused else ""
    e("s_lshl_b32 s41, s%d, 1" % S_R)
    e("s_mul_i32 s41, s41, 112")
    e("s_lshl_b32 s42, s%d, 2" % S_FB)
    e("s_add_u32 s42, s42, s%d" % S_WF)
    e("s_lshl_b32 s42, s42, 1")
    e("s_add_u32 s41, s41, s42")
    e("s_lshl_b32 s41, s41, 11")
    e("v_lshlrev_b32 v26, 4, v%d" % V_LANE)
    e("v_add_u32 v26, s41, v26")
    e("v_add_u32 v27, 0x%x, v26" % (112 * 2048))
    e("s_mov_b32 s42, 0x%08x" % f2u(-LOG2E))
    e("s_mov_b32 s43, s42")
    e("s_mov_b32 s44, 1.0")
    e("s_mov_b32 s45, 1.0")
    e("s_nop 7")
    grp = 0
    for nb in range(4):
        for hf in range(2):
            outb = FR + 4 * (grp % 8); grp += 1
            A = accA(nb) + 8 * hf; B = accB(nb) + 8 * hf
            for q in range(0, 8, 2):
                e("v_pk_mul_f32 %s, %s, s[42:43]" % (vr(A + q, 2), vr(A + q, 2)))
            for q in range(8):
                e("v_exp_f32 v%d, v%d" % (A + q, A + q))
            for q in range(0, 8, 2):
                e("v_pk_add_f32 %s, %s, s[44:45]" % (vr(A + q, 2), vr(A + q, 2)))
            for q in range(8):
                e("v_rcp_f32 v%d, v%d" % (A + q, A + q))
            for q in range(0, 8, 2):
                e("v_pk_mul_f32 %s, %s, %s" % (vr(A + q, 2), vr(A + q, 2), vr(B + q, 2)))
            for q2 in range(4):
                e("v_cvt_pk_bf16_f32 v%d, v%d, v%d" % (outb + q2, A + 2 * q2, A + 2 * q2 + 1))
            e("buffer_store_dwordx4 %s, v%d, s[%d:%d], 0 offen offset:%d%s" % (vr(outb, 4), 26 + (nb >> 1), S_WS, S_WS + 3, hf * 2048 + (nb & 1) * 1024, sc))
            e.vm_issue("hst")

def d_epilogue(e, cfg):
    sc = " sc1" if cfg.fused else ""
    L = V_LANE
    ZB = [192, 208, 224, 240]
    e("s_nop 7"); e("s_nop 3")
    for sb in range(4):
        for hf in range(2):
            for pr in range(4):
                q = 8 * hf + 2 * pr
                e("v_cvt_pk_bf16_f32 v%d, v%d, v%d" % (ZB[sb] + 4 * hf + pr, accA(sb) + q, accA(sb) + q + 1))
                e("v_cvt_pk_bf16_f32 v%d, v%d, v%d" % (ZB[sb] + 8 + 4 * hf + pr, accB(sb) + q, accB(sb) + q + 1))
    e("s_barrier")
    e("v_lshlrev_b32 v2, 4, v%d" % L)
    def cread(sb):
        b = 10 + 24 * (sb & 1)
        for k in range(6):
            e("ds_read_b128 %s, v2 offset:%d" % (vr(b + 4 * k, 4), CONST_LDS + (sb * 6 + k) * 1024))
            e.lg_issue(("c", sb, k))
    cread(0); cread(1)
    for sb in range(4):
        b = 10 + 24 * (sb & 1)
        C0, C1, S0, S1, N0, N1 = [b + 4 * k for k in range(6)]
        ZR0, ZR1, ZI0, ZI1 = ZB[sb], ZB[sb] + 4, ZB[sb] + 8, ZB[sb] + 12
        e.lg_wait([("c", sb, k) for k in range(6)])
        mfma(e, accA(sb), C0, ZR0, "0")
        mfma(e, accB(sb), C0, ZI0, "0")
        mfma(e, accA(sb), C1, ZR1)
        mfma(e, accB(sb), C1, ZI1)
        mfma(e, accA(sb), S0, ZI0)
        mfma(e, accB(sb), N0, ZR0)
        mfma(e, accA(sb), S1, ZI1)
        mfma(e, accB(sb), N1, ZR1)
        if sb + 2 < 4:
            cread(sb + 2)
    e("s_lshl_b32 s41, s%d, 8" % S_QG)
    e("s_lshl_b32 s42, s%d, 7" % S_EH)
    e("s_add_u32 s41, s41, s42")
    e("s_lshl_b32 s42, s%d, 5" % S_WF)
    e("s_add_u32 s41, s41, s42")
    e("s_lshl_b32 s41, s41, 4")
    e("s_add_u32 s41, s41, 0x%x" % UBUF)
    e("v_and_b32 v3, 31, v%d" % L)
    e("v_lshlrev_b32 v3, 4, v3")
    e("v_lshrrev_b32 v4, 5, v%d" % L)
    e("v_lshlrev_b32 v4, 18, v4")
    e("v_add3_u32 v3, v3, v4, s41")
    e("s_nop 7"); e("s_nop 3")
    for q in range(16):
        i, jj = q >> 2, q & 3
        pk = 192 + 4 * (q % 8)
        for sb in range(4):
            e("v_cvt_pk_bf16_f32 v%d, v%d, v%d" % (pk + sb, accA(sb) + q, accB(sb) + q))
        e("s_mov_b32 s%d, 0x%x" % (S_OFF, (8 * i + jj) * 65536))
        e("buffer_store_dwordx4 %s, v3, s[%d:%d], s%d offen%s" % (vr(pk, 4), S_WS, S_WS + 3, S_OFF, sc))
        e.vm_issue("ust")

def p1_loader(e, cfg, is_h):
    L = V_LANE; T = 26
    VX = 10
    VW = 14
    e("v_lshrrev_b32 v%d, 3, v%d" % (T, L))
    e("s_lshl_b32 s41, s%d, 5" % S_LW)
    e("v_add_u32 v%d, s41, v%d" % (T, T))
    e("v_and_b32 v%d, 7, v%d" % (T + 1, L))
    e("v_lshrrev_b32 v%d, 4, v%d" % (T + 2, L))
    e("s_movk_i32 s42, 896")
    for i in range(4):
        if i: e("v_add_u32 v%d, 8, v%d" % (T, T))
        e("v_add_u32 v%d, %d, v%d" % (T + 3, (4 * i) & 7, T + 2))
        e("v_and_b32 v%d, 7, v%d" % (T + 3, T + 3))
        e("v_xor_b32 v%d, v%d, v%d" % (T + 3, T + 3, T + 1))
        e("v_lshlrev_b32 v%d, 4, v%d" % (T + 3, T + 3))
        if is_h:
            e("v_lshrrev_b32 v%d, 6, v%d" % (T + 4, T))
            e("v_and_b32 v%d, 63, v%d" % (T + 5, T))
            e("v_lshlrev_b32 v%d, 5, v%d" % (T + 5, T + 5))
            e("s_lshl_b32 s41, s%d, 1" % S_R)
            e("v_add3_u32 v%d, v%d, v%d, s41" % (T + 4, T + 4, T + 5))
        else:
            e("v_and_b32 v%d, 31, v%d" % (T + 4, T))
            e("v_lshlrev_b32 v%d, 6, v%d" % (T + 4, T + 4))
            e("v_lshrrev_b32 v%d, 5, v%d" % (T + 5, T))
            e("s_lshl_b32 s41, s%d, 2" % S_QG)
            e("v_add3_u32 v%d, v%d, v%d, s41" % (T + 4, T + 4, T + 5))
        e("v_mul_lo_u32 v%d, v%d, s42" % (T + 4, T + 4))
        e("v_add_u32 v%d, v%d, v%d" % (VX + i, T + 4, T + 3))
        if not is_h:
            e("s_lshl_b32 s41, s%d, 7" % S_EH)
            e("v_add_u32 v%d, s41, v%d" % (T + 4, T))
            e("v_mul_lo_u32 v%d, v%d, s42" % (T + 4, T + 4))
            e("v_add_u32 v%d, v%d, v%d" % (VW + i, T + 4, T + 3))
    if is_h:
        e("s_lshl_b32 s41, s%d, 3" % S_LW)
        e("v_add_u32 v%d, s41, v%d" % (T + 3, T + 2))
        e("s_movk_i32 s42, 3584")
        e("v_mul_lo_u32 v%d, v%d, s42" % (T + 3, T + 3))
        e("v_bfe_u32 v%d, v%d, 2, 2" % (T + 4, L))
        e("v_xor_b32 v%d, v%d, v%d" % (T + 4, T + 4, T + 2))
        e("v_lshlrev_b32 v%d, 6, v%d" % (T + 4, T + 4))
        e("v_and_b32 v%d, 3, v%d" % (T + 5, L))
        e("v_lshlrev_b32 v%d, 4, v%d" % (T + 5, T + 5))
        e("v_add3_u32 v%d, v%d, v%d, v%d" % (T + 3, T + 3, T + 4, T + 5))
        e("s_lshl_b32 s41, s%d, 8" % S_FB)
        e("v_add_u32 v%d, s41, v%d" % (VW, T + 3))
        e("v_add_u32 v%d, %d, v%d" % (VW + 1, 4 * 3584, VW))
        e("s_lshl_b32 s%d, s%d, 11" % (S_LDSW, S_LW))
    else:
        e("s_lshl_b32 s%d, s%d, 12" % (S_LDSW, S_LW))
    e("s_lshl_b32 s%d, s%d, 12" % (S_LDSX, S_LW))
    e("s_waitcnt lgkmcnt(0)")
    srd(e, S_X, 44, 1835008)
    if is_h:
        srd(e, S_WA, 52, 1605632); srd(e, S_WB, 54, 1605632)
    else:
        srd(e, S_WA, 48, 401408); srd(e, S_WB, 50, 401408)
    srd(e, S_WS, 74, WS_BYTES)
    srd(e, S_GW, 58, 896)
    srd(e, S_WD, 56, 1605632)
    stamp(e, cfg, 0)
    DROT = (not is_h) and ("nodrot" not in cfg.x)
    if DROT:
        e("s_mul_i32 s7, s%d, 3" % S_EH)
        e("s_add_u32 s6, s%d, s7" % S_QG)
        e("s_mul_i32 s7, s6, 37")
        e("s_lshr_b32 s7, s7, 8")
        e("s_mul_i32 s7, s7, 7")
        e("s_sub_u32 s6, s6, s7")
        e("s_mov_b32 s7, s6")
    def dx(c):
        if DROT:
            e("s_lshl_b32 s%d, s6, 7" % S_OFF)
            for i in range(4): dma(e, S_X, VX + i, (c % NX) * XSLOT + i * 1024, S_LDSX, None, ("x", c))
            rot_next(e, 6, 7)
        else:
            for i in range(4): dma(e, S_X, VX + i, (c % NX) * XSLOT + i * 1024, S_LDSX, c * 128, ("x", c))
    def dw(j):
        if is_h:
            for m in range(2):
                for i in range(2):
                    dma(e, S_WA if m == 0 else S_WB, VW + i, WBASE + (j % NW) * WSLOT + m * 8192 + i * 1024, S_LDSW, j * 32 * 3584, ("w", j))
        else:
            c = j
            if DROT: e("s_lshl_b32 s%d, s7, 7" % S_OFF)
            for m in range(2):
                for i in range(4):
                    dma(e, S_WA if m == 0 else S_WB, VW + i, WBASE + (c % 3) * 32768 + m * 16384 + i * 1024, S_LDSW, None if DROT else c * 128, ("w", c))
            if DROT: rot_next(e, 7, 7)
    q = []
    if is_h:
        for j in range(14):
            if j % 2 == 0:
                c = j // 2
                q.append(("x", c, -1 if c < NX else 2 * (c - NX + 1)))
            q.append(("w", j, -1 if j < NW else j - NW + 1))
    else:
        for c in range(7):
            q.append(("x", c, -1 if c < NX else 2 * (c - NX + 1)))
            q.append(("w", c, -1 if c < 3 else 2 * (c - 3 + 1)))
    def cost(it): return 4 if (it[0] == "x" or is_h) else 8
    def issue(it):
        (dx if it[0] == "x" else dw)(it[1])
    def need(j):
        t = []
        for jj in (j, j + 1):
            if jj <= 13:
                t.append(("x", jj >> 1)); t.append(("w", jj if is_h else jj >> 1))
        return t
    issued = set()
    def ensure(tags):
        while q and any(t not in issued for t in tags):
            it = q.pop(0); assert it[2] <= curbar[0], (it, curbar)
            issue(it); issued.add((it[0], it[1]))
    curbar = [-1]
    ensure(need(0))
    budget0 = cfg.pro_extra
    while q and budget0 > 0 and q[0][2] <= -1:
        it = q.pop(0); issue(it); issued.add((it[0], it[1])); budget0 -= cost(it)
    e.vm_wait(need(0))
    e("s_barrier")
    stamp(e, cfg, 1)
    if "nodma" in cfg.x: NODMA[0] = True
    for j in range(13):
        curbar[0] = j
        ensure(need(j + 1))
        budget = cfg.stage_budget
        while q and budget > 0 and q[0][2] <= j:
            it = q.pop(0); issue(it); issued.add((it[0], it[1])); budget -= cost(it)
        if j == 9 and not is_h: dft_consts(e, cfg)
        if j == 7 and is_h:
            gate_issue(e, cfg, True)
            lab = e.newlabel("GX")
            e("s_cmp_ge_u32 s%d, 2" % S_FB)
            e("s_cbranch_scc1 %s" % lab)
            sv = list(e.vm)
            gate_issue(e, cfg, True, True)
            e.vm = sv
            e.label(lab)
        if j == 10 and is_h:
            e("s_waitcnt vmcnt(0)"); e.vm = []
            gate_finish(e, cfg)
            lab = e.newlabel("GY")
            e("s_cmp_ge_u32 s%d, 2" % S_FB)
            e("s_cbranch_scc1 %s" % lab)
            gate_finish(e, cfg, True)
            e.label(lab)
        if j == 11 and cfg.fused:
            e("s_waitcnt vmcnt(0)"); e.vm = []
        e.vm_wait(need(j + 1))
        e("s_barrier")
    assert not q
    NODMA[0] = False
    stamp(e, cfg, 2)
    if not is_h:
        e("v_lshlrev_b32 v2, 4, v%d" % L)
        e("s_mul_i32 s41, s%d, 6144" % S_LW)
        e("v_add_u32 v2, s41, v2")
        for k in range(6):
            e("ds_write_b128 v2, %s offset:%d" % (vr(64 + 4 * k, 4), CONST_LDS + k * 1024))
        e("s_waitcnt lgkmcnt(0)")
        e("s_barrier")

def gate_issue(e, cfg, is_h, extra=False):
    B = 40 if extra else 48
    e("s_lshl_b32 s41, s%d, 3" % S_FB)
    if extra: e("s_add_u32 s41, s41, 112")
    e("s_lshl_b32 s42, s%d, 1" % S_LW)
    e("s_add_u32 s41, s41, s42")
    e("s_lshl_b32 s78, s%d, 7" % S_R)
    e("s_add_u32 s%d, s78, s41" % (77 if extra else 76))
    e("v_lshlrev_b32 v38, 4, v%d" % V_LANE)
    e("v_cmp_gt_u32 vcc, 56, v%d" % V_LANE)
    e("v_mov_b32 v37, 0x7fffffff")
    for u in range(2):
        e("s_add_u32 s78, s41, %d" % u)
        e("s_lshr_b32 s43, s78, 6")
        e("s_lshl_b32 s79, s%d, 1" % S_R)
        e("s_add_u32 s43, s43, s79")
        e("s_and_b32 s78, s78, 63")
        e("s_lshl_b32 s78, s78, 5")
        e("s_add_u32 s43, s43, s78")
        e("s_mul_i32 s43, s43, 896")
        if extra:
            e("s_cmp_ge_u32 s%d, 2" % S_FB)
            e("s_cselect_b32 s43, 0x40000000, s43")
        e("v_add_u32 v39, s43, v38")
        e("v_cndmask_b32 v39, v37, v39, vcc")
        e("buffer_load_dwordx4 %s, v39, s[%d:%d], 0 offen" % (vr(B + 4 * u, 4), S_X, S_X + 3))
        e.vm_issue("gate")
    if not extra:
        e("buffer_load_dwordx4 v[56:59], v38, s[%d:%d], 0 offen" % (S_GW, S_GW + 3))
        e.vm_issue("gate")

def gate_finish(e, cfg, extra=False):
    B = 40 if extra else 48
    e.vm_wait(["gate"])
    for u in range(2):
        e("v_mov_b32 v%d, 0" % (60 + u))
    for i in range(4):
        for u in range(2):
            e("v_dot2_f32_bf16 v%d, v%d, v%d, v%d" % (60 + u, B + 4 * u + i, 56 + i, 60 + u))
    e("s_nop 2")
    for sh in ("row_shr:1", "row_shr:2", "row_shr:4", "row_shr:8"):
        for u in range(2):
            e("v_add_f32_dpp v%d, v%d, v%d %s row_mask:0xf bank_mask:0xf bound_ctrl:0" % (60 + u, 60 + u, 60 + u, sh))
        e("s_nop 0")
    for u in range(2):
        e("v_add_f32_dpp v%d, v%d, v%d row_bcast:15 row_mask:0xa bank_mask:0xf" % (60 + u, 60 + u, 60 + u))
    e("s_nop 0")
    for u in range(2):
        e("v_add_f32_dpp v%d, v%d, v%d row_bcast:31 row_mask:0xc bank_mask:0xf" % (60 + u, 60 + u, 60 + u))
    e("s_nop 0")
    e("v_readlane_b32 s41, v60, 63")
    e("v_readlane_b32 s42, v61, 63")
    e("s_nop 1")
    e("v_mov_b32 v60, s41")
    e("v_mov_b32 v61, s42")
    e("v_cmp_eq_u32 vcc, 1, v%d" % V_LANE)
    e("s_nop 1")
    e("v_cndmask_b32 v60, v60, v61, vcc")
    e("v_mul_f32 v60, 0x%08x, v60" % f2u(-LOG2E))
    e("v_exp_f32 v60, v60")
    e("s_nop 0")
    e("v_add_f32 v60, 1.0, v60")
    e("v_rcp_f32 v60, v60")
    e("s_lshl_b32 s44, s%d, 2" % (77 if extra else 76))
    e("s_add_u32 s44, s44, 0x%x" % GBUF)
    if extra:
        e("s_cmp_ge_u32 s%d, 2" % S_FB)
        e("s_cselect_b32 s44, 0x40000000, s44")
    e("v_lshlrev_b32 v62, 2, v%d" % V_LANE)
    e("v_add_u32 v62, s44, v62")
    e("v_cmp_gt_u32 vcc, 2, v%d" % V_LANE)
    e("v_mov_b32 v37, 0x7fffffff")
    e("s_nop 0")
    e("v_cndmask_b32 v62, v37, v62, vcc")
    e("buffer_store_dword v60, v62, s[%d:%d], 0 offen%s" % (S_WS, S_WS + 3, " sc1" if cfg.fused else ""))
    e.vm_issue("gst")

def dft_consts(e, cfg):
    L = V_LANE
    e("v_and_b32 v26, 31, v%d" % L)
    e("v_lshrrev_b32 v27, 5, v%d" % L)
    e("v_lshlrev_b32 v27, 8, v27")
    e("s_lshl_b32 s41, s%d, 2" % S_QG)
    e("s_add_u32 s41, s41, s%d" % S_LW)
    e("v_add_u32 v27, s41, v27")
    e("s_mov_b32 s42, 0x%08x" % f2u(1.0 / 2048))
    for hf in range(2):
        for pr in range(4):
            for u in range(2):
                idx = 2 * pr + u
                s1c = 16 * hf + 8 * (idx >> 2) + (idx & 3)
                e("v_add_u32 v28, %d, v27" % (64 * s1c))
                e("v_mul_u32_u24 v28, v28, v26")
                e("v_and_b32 v28, 0x7ff, v28")
                e("v_cvt_f32_u32 v28, v28")
                e("v_mul_f32 v28, s42, v28")
                e("v_cos_f32 v%d, v28" % (30 + u))
                e("v_sin_f32 v%d, v28" % (32 + u))
            e("s_nop 0")
            e("v_cvt_pk_bf16_f32 v%d, v30, v31" % (64 + 4 * hf + pr))
            e("v_cvt_pk_bf16_f32 v%d, v32, v33" % (72 + 4 * hf + pr))
            e("v_xor_b32 v%d, 0x80008000, v%d" % (80 + 4 * hf + pr, 72 + 4 * hf + pr))

def entry_common(e):
    e("v_and_b32 v%d, 63, v0" % V_LANE)
    e("v_lshrrev_b32 v2, 6, v0")
    e("s_nop 0")
    e("v_readfirstlane_b32 s%d, v2" % S_WAVE)
    e("s_nop 3")

def phase1(e, cfg, after_h_consumer, after_h_loader, after_d):
    e("s_and_b32 s%d, s%d, 3" % (S_WF, S_WAVE))
    e("s_and_b32 s%d, s%d, 3" % (S_LW, S_WAVE))
    e("s_and_b32 s41, s2, 7")
    e("s_lshr_b32 s42, s2, 3")
    e("s_cmp_ge_u32 s42, 28")
    e("s_cbranch_scc1 P1_DFT")
    e("s_mul_i32 s43, s42, 37")
    e("s_lshr_b32 s43, s43, 8")
    e("s_mul_i32 s76, s43, 7")
    e("s_sub_u32 s76, s42, s76")
    e("s_lshr_b32 s77, s41, 1")
    e("s_lshl_b32 s77, s77, 2")
    e("s_add_u32 s%d, s77, s43" % S_R)
    e("s_and_b32 s77, s41, 1")
    e("s_mul_i32 s77, s77, 7")
    e("s_add_u32 s%d, s77, s76" % S_FB)
    e("s_cmp_ge_u32 s%d, 4" % S_WAVE)
    e("s_cbranch_scc1 P1_H_LOADER")
    e.vm = []; e.lg = []
    p1_consumer(e, cfg, True)
    h_epilogue(e, cfg)
    stamp(e, cfg, 3)
    after_h_consumer()
    e.label("P1_H_LOADER")
    e.vm = []; e.lg = []
    p1_loader(e, cfg, True)
    stamp(e, cfg, 3)
    after_h_loader()
    e.label("P1_DFT")
    e("s_sub_u32 s42, s42, 28")
    e("s_and_b32 s%d, s41, 1" % S_EH)
    e("s_lshr_b32 s77, s41, 1")
    e("s_lshl_b32 s77, s77, 2")
    e("s_add_u32 s%d, s77, s42" % S_QG)
    e("s_cmp_ge_u32 s%d, 4" % S_WAVE)
    e("s_cbranch_scc1 P1_D_LOADER")
    e.vm = []; e.lg = []
    p1_consumer(e, cfg, False)
    d_epilogue(e, cfg)
    stamp(e, cfg, 3)
    after_d(True)
    e.label("P1_D_LOADER")
    e.vm = []; e.lg = []
    p1_loader(e, cfg, False)
    stamp(e, cfg, 3)
    after_d(False)

P2_ACC = 64
P2_H = 96
P2_A = 208
P2_U = 224
P2_T = 240
SLICE = 40960
KSL, NB = 60, 61

def p2_setup(e, cfg):
    L = V_LANE
    e("s_and_b32 s%d, s%d, 3" % (KSL, S_WAVE))
    e("s_lshr_b32 s%d, s%d, 2" % (NB, S_WAVE))
    e("v_lshrrev_b32 v2, 3, v%d" % L)
    e("v_bfe_u32 v3, v%d, 4, 1" % L)
    e("v_lshlrev_b32 v3, 2, v3")
    e("v_and_b32 v4, 7, v%d" % L)
    e("v_xor_b32 v3, v3, v4")
    e("v_lshlrev_b32 v3, 4, v3")
    e("s_mul_i32 s41, s%d, 448" % KSL)
    e("s_lshl_b32 s42, s%d, 3" % NB)
    e("s_add_u32 s41, s41, s42")
    e("v_add_u32 v2, s41, v2")
    e("s_movk_i32 s42, 896")
    e("v_mul_lo_u32 v2, v2, s42")
    e("s_lshl_b32 s41, s%d, 7" % S_C)
    e("v_add3_u32 v10, v2, v3, s41")
    e("s_mul_i32 s62, s%d, %d" % (KSL, SLICE))
    e("s_lshl_b32 s41, s%d, 10" % NB)
    e("s_add_u32 s62, s62, s41")
    e("v_and_b32 v2, 15, v%d" % L)
    e("v_lshrrev_b32 v3, 2, v2")
    e("v_lshrrev_b32 v4, 5, v%d" % L)
    e("v_lshlrev_b32 v5, 2, v4")
    e("v_add_u32 v5, v5, v3")
    e("v_lshlrev_b32 v5, 7, v5")
    e("v_bfe_u32 v6, v2, 3, 1")
    e("v_lshlrev_b32 v6, 6, v6")
    e("v_bfe_u32 v7, v%d, 4, 1" % L)
    e("v_lshlrev_b32 v7, 5, v7")
    e("v_and_b32 v8, 3, v2")
    e("v_lshlrev_b32 v8, 3, v8")
    e("v_add3_u32 v5, v5, v6, v7")
    e("v_add_u32 v5, v5, v8")
    e("s_mul_i32 s41, s%d, %d" % (KSL, SLICE))
    e("v_add_u32 v11, s41, v5")
    e("v_xor_b32 v12, 64, v11")
    e("s_mul_i32 s41, s%d, 112" % S_T1)
    e("s_mul_i32 s42, s%d, 28" % KSL)
    e("s_add_u32 s41, s41, s42")
    e("s_lshl_b32 s41, s41, 1")
    e("s_add_u32 s41, s41, s%d" % NB)
    e("s_lshl_b32 s41, s41, 10")
    e("v_lshlrev_b32 v13, 4, v%d" % L)
    e("v_add_u32 v13, s41, v13")
    e("v_and_b32 v14, 31, v%d" % L)
    e("s_cmp_ge_u32 s%d, 4" % S_C)
    e("s_cselect_b32 s63, 1, 0")
    e("s_sub_u32 s64, 32, s%d" % S_T1)
    e("s_and_b32 s64, s64, 31")
    e("s_cmp_eq_u32 s63, 1")
    e("s_cselect_b32 s64, s64, s%d" % S_T1)
    e("v_lshrrev_b32 v4, 5, v%d" % L)
    e("s_lshl_b32 s41, s%d, 6" % S_C)
    e("s_cmp_eq_u32 s63, 1")
    e("s_cselect_b64 vcc, -1, 0")
    for mb in range(2):
        e("v_add_u32 v2, s41, v14")
        if mb: e("v_add_u32 v2, 32, v2")
        e("v_sub_u32 v3, 448, v2")
        e("v_cndmask_b32 v2, v2, v3, vcc")
        e("v_lshlrev_b32 v2, 4, v2")
        e("v_lshlrev_b32 v3, 12, v4")
        e("v_add_u32 v%d, v2, v3" % (16 + mb))
    e("s_lshl_b32 s41, s64, 4")
    e("s_lshl_b32 s42, s%d, 2" % KSL)
    e("s_add_u32 s41, s41, s42")
    e("s_lshl_b32 s41, s41, 12")
    e("s_add_u32 s65, s41, 0x%x" % UBUF)
    e("s_lshl_b32 s41, s%d, 6" % S_T1)
    e("s_lshl_b32 s42, s%d, 5" % NB)
    e("s_add_u32 s41, s41, s42")
    e("v_add_u32 v2, s41, v14")
    e("v_lshlrev_b32 v2, 2, v2")
    e("v_add_u32 v20, 0x%x, v2" % GBUF)

def p2_dma_wd(e, kk):
    st = kk >> 2
    pos = (st % 5) * 4 + (kk & 3)
    dma(e, S_WD, 10, pos * 2048, 62, kk * 16 * 896, ("wd", st))
def p2_load_h(e, cfg, kk):
    sc = " sc1" if cfg.fused else ""
    e("s_mov_b32 s%d, 0x%x" % (S_OFF, kk * 2048))
    e("buffer_load_dwordx4 %s, v13, s[%d:%d], s%d offen%s" % (vr(P2_H + 4 * kk, 4), S_WS, S_WS + 3, S_OFF, sc))
    e.vm_issue(("h", kk))
def p2_load_g(e, cfg):
    sc = " sc1" if cfg.fused else ""
    e("buffer_load_dword v15, v20, s[%d:%d], 0 offen%s" % (S_WS, S_WS + 3, sc))
    e.vm_issue("g")
def p2_load_u(e, cfg):
    sc = " sc1" if cfg.fused else ""
    for u in range(2):
        for mb in range(2):
            e("s_add_u32 s%d, s65, %d" % (S_OFF, u * 2 * 4096))
            e("buffer_load_dwordx4 %s, v%d, s[%d:%d], s%d offen%s" % (vr(P2_U + 8 * u + 4 * mb, 4), 16 + mb, S_WS, S_WS + 3, S_OFF, sc))
            e.vm_issue("u")
def p2_tfrags(e, cfg):
    L = V_LANE
    e.vm_wait(["g"])
    e("s_cmp_lg_u32 s%d, 0" % S_T1)
    e("s_cselect_b32 s41, s63, 0")
    e("s_lshl_b32 s42, s%d, 5" % NB)
    e("s_add_u32 s41, s41, s42")
    e("v_add_u32 v2, s41, v14")
    e("v_lshrrev_b32 v4, 5, v%d" % L)
    e("v_lshlrev_b32 v4, 2, v4")
    e("s_lshl_b32 s41, s63, 31")
    e("v_xor_b32 v21, s41, v15")
    e("s_mov_b32 s42, 0x%08x" % f2u(1.0 / 64))
    e("s_lshl_b32 s43, s%d, 4" % KSL)
    e("v_add_u32 v4, s43, v4")
    for u in range(2):
        for q in range(4):
            e("v_add_u32 v3, %d, v4" % (8 * u + q))
            e("v_mul_u32_u24 v3, v3, v2")
            e("v_and_b32 v3, 63, v3")
            e("v_cvt_f32_u32 v3, v3")
            e("v_mul_f32 v3, s42, v3")
            e("v_cos_f32 v5, v3")
            e("v_sin_f32 v6, v3")
            e("s_nop 0")
            e("v_mul_f32 v5, v5, v15")
            e("v_mul_f32 v6, v6, v21")
            e("v_cvt_pk_bf16_f32 v%d, v5, v6" % (P2_T + 4 * u + q))
    e("v_sub_f32 v18, 1.0, v15")
    e("v_mov_b32 v19, v18")

def p2_main(e, cfg, wd_pre=0):
    L = V_LANE
    def reads(kk):
        b = P2_A + 8 * (kk & 1)
        st = kk >> 2
        pos = (st % 5) * 4 + (kk & 3)
        for mb in range(2):
            for ip in range(2):
                e("ds_read_b64_tr_b16 %s, v%d offset:%d" % (vr(b + 4 * mb + 2 * ip, 2), 11 + mb, pos * 2048 + ip * 1024))
                e.lg_issue(("A", kk, mb))
    def issue_h(st):
        if st > 6: return
        for kk in range(4 * st, 4 * st + 4): p2_load_h(e, cfg, kk)
    def issue_w(st):
        if st > 6 or st < wd_pre: return
        for kk in range(4 * st, 4 * st + 4): p2_dma_wd(e, kk)
    def issue_both(st):
        if st > 6: return
        for kk in range(4 * st, 4 * st + 4):
            if st >= wd_pre: p2_dma_wd(e, kk)
            p2_load_h(e, cfg, kk)
    LA = cfg.p2_la
    p2_load_g(e, cfg)
    if cfg.fused:
        for st in range(LA): issue_h(st)
        p2_tfrags(e, cfg)
    else:
        for st in range(LA): issue_both(st)
        p2_tfrags(e, cfg)
        e.vm_wait([("wd", 0), ("wd", 1)])
        e("s_barrier")
    stamp(e, cfg, 1 if not cfg.fused else 6)
    reads(0)
    for kk in range(28):
        st = kk >> 2
        if (kk & 3) == 0:
            if cfg.fused:
                if st >= 1: issue_w(st + 4)
                issue_h(st + LA)
            else:
                issue_both(st + LA)
                if st + LA == 7:
                    p2_load_u(e, cfg)
        if kk + 1 < 28: reads(kk + 1)
        e.vm_wait([("h", kk)])
        b = P2_A + 8 * (kk & 1)
        for mb in range(2):
            e.lg_wait([("A", kk, mb)])
            mfma(e, P2_ACC + 16 * mb, b + 4 * mb, P2_H + 4 * kk, "0" if kk == 0 else None)
        if (kk & 3) == 3 and st < 6:
            e.vm_wait([("wd", st + 2)])
            if cfg.fused and st == cfg.p2_dpoll:
                lab = e.newlabel("DP")
                e("s_cmp_lg_u32 s%d, 0" % S_WAVE)
                e("s_cbranch_scc1 %s" % lab)
                e("s_mov_b32 s%d, 0x%x" % (S_PF, FLAGS + 16 * 128))
                poll(e, S_PF, 32)
                e.label(lab)
            e("s_barrier")
            if cfg.fused and st == cfg.p2_dpoll:
                p2_load_u(e, cfg)
    assert not e.lg
    stamp(e, cfg, 2 if not cfg.fused else 7)
    e.vm_wait(["u"])
    e("s_nop 7"); e("s_nop 3")
    for i in range(0, 32, 2):
        e("v_pk_mul_f32 %s, %s, v[18:19]" % (vr(P2_ACC + i, 2), vr(P2_ACC + i, 2)))
    e("s_nop 1")
    for u in range(2):
        for mb in range(2):
            mfma(e, P2_ACC + 16 * mb, P2_U + 8 * u + 4 * mb, P2_T + 4 * u)
    e("s_barrier")
    e("v_lshlrev_b32 v2, 4, v%d" % L)
    e("s_lshl_b32 s41, s%d, 13" % S_WAVE)
    e("v_add_u32 v3, s41, v2")
    e("s_nop 7"); e("s_nop 1")
    for qd in range(4):
        for hf in range(2):
            e("ds_write_b128 v3, %s offset:%d" % (vr(P2_ACC + 8 * qd + 4 * hf, 4), qd * 2048 + hf * 1024))
    e("s_waitcnt lgkmcnt(0)")
    e("s_barrier")
    e("s_lshl_b32 s41, s%d, 15" % NB)
    e("s_lshl_b32 s42, s%d, 11" % KSL)
    e("s_add_u32 s41, s41, s42")
    e("v_add_u32 v3, s41, v2")
    for k in range(4):
        for hf in range(2):
            e("ds_read_b128 %s, v3 offset:%d" % (vr(96 + 8 * k + 4 * hf, 4), k * 8192 + hf * 1024))
    e("s_lshl_b32 s41, s%d, 5" % NB)
    e("v_add_u32 v2, s41, v14")
    e("v_lshlrev_b32 v2, 5, v2")
    e("v_add_u32 v2, s%d, v2" % S_T1)
    e("s_movk_i32 s42, 896")
    e("v_mul_lo_u32 v2, v2, s42")
    e("s_lshl_b32 s41, s%d, 7" % S_C)
    e("s_lshl_b32 s42, s%d, 5" % KSL)
    e("s_add_u32 s41, s41, s42")
    e("v_lshrrev_b32 v4, 5, v%d" % L)
    e("v_lshlrev_b32 v4, 4, v4")
    e("v_add3_u32 v2, v2, v4, s41")
    e("s_waitcnt lgkmcnt(0)")
    for q in range(0, 8, 2):
        e("v_pk_add_f32 %s, %s, %s" % (vr(96 + q, 2), vr(96 + q, 2), vr(104 + q, 2)))
        e("v_pk_add_f32 %s, %s, %s" % (vr(112 + q, 2), vr(112 + q, 2), vr(120 + q, 2)))
    for q in range(0, 8, 2):
        e("v_pk_add_f32 %s, %s, %s" % (vr(96 + q, 2), vr(96 + q, 2), vr(112 + q, 2)))
    for q in range(4):
        e("v_cvt_pk_bf16_f32 v%d, v%d, v%d" % (128 + q, 96 + 2 * q, 96 + 2 * q + 1))
    e("s_nop 1")
    e("v_permlane32_swap_b32 v128, v130")
    e("v_permlane32_swap_b32 v129, v131")
    e("buffer_store_dwordx4 v[128:131], v2, s[%d:%d], 0 offen" % (S_OUT, S_OUT + 3))
    stamp(e, cfg, 3 if not cfg.fused else 8)

def p2_role(e):
    e("s_and_b32 s41, s2, 7")
    e("s_lshr_b32 s42, s2, 3")
    e("s_mul_i32 s43, s42, 37")
    e("s_lshr_b32 s43, s43, 8")
    e("s_mul_i32 s76, s43, 7")
    e("s_sub_u32 s%d, s42, s76" % S_C)
    e("s_lshl_b32 s41, s41, 2")
    e("s_add_u32 s%d, s41, s43" % S_T1)

def header(e, name):
    e.raw(".text"); e.raw(".globl %s" % name); e.raw(".p2align 8"); e.raw(".type %s,@function" % name); e.label(name)

def kernel1(e, cfg):
    header(e, "k1_kernel")
    e("s_cmp_ge_u32 s2, 256")
    e("s_cbranch_scc1 K1_END")
    kernarg_loads(e)
    entry_common(e)
    def fin():
        stamp_store(e, cfg, 0)
        e("s_endpgm")
    phase1(e, cfg, fin, fin, lambda c: fin())
    e.label("K1_END")
    e("s_endpgm")

def kernel2(e, cfg):
    header(e, "k2_kernel")
    e.vm = []; e.lg = []
    e("s_cmp_ge_u32 s2, 256")
    e("s_cbranch_scc1 K2_END")
    e("s_lshr_b32 s42, s2, 3")
    e("s_cmp_ge_u32 s42, 28")
    e("s_cbranch_scc1 K2_END")
    kernarg_loads(e)
    entry_common(e)
    p2_role(e)
    p2_setup(e, cfg)
    e("s_waitcnt lgkmcnt(0)")
    srd(e, S_WS, 74, WS_BYTES)
    srd(e, S_OUT, 46, 1835008)
    srd(e, S_WD, 56, 1605632)
    stamp(e, cfg, 0)
    p2_main(e, cfg, 0)
    stamp_store(e, cfg, 0x40000)
    e.label("K2_END")
    e("s_endpgm")


def nonce_issue(e):
    lab = e.newlabel("NONCE")
    srd(e, S_DBG, 72, 256)
    e("s_or_b32 s41, s2, s%d" % S_WAVE)
    e("s_cmp_lg_u32 s41, 0")
    e("s_cbranch_scc1 %s" % lab)
    e("s_memrealtime s[42:43]")
    e("s_waitcnt lgkmcnt(0)")
    e("s_or_b32 s42, s42, 1")
    e("v_mov_b32 v4, s42")
    e("v_lshlrev_b32 v5, 20, v%d" % V_LANE)
    e("buffer_store_dword v4, v5, s[%d:%d], 0 offen sc1" % (S_DBG, S_DBG + 3))
    e.label(lab)
    e("v_mov_b32 v7, 0")

def nonce_load(e):
    e("buffer_load_dword v4, v7, s[%d:%d], 0 offen sc1" % (S_DBG, S_DBG + 3))

def nonce_finish(e):
    nonce_finish_any(e)

def flag_addr(e, is_h):
    if is_h:
        e("s_lshl_b32 s41, s%d, 9" % S_R)
        e("s_lshl_b32 s42, s%d, 2" % S_FB)
    else:
        e("s_lshl_b32 s41, s%d, 1" % S_QG)
        e("s_add_u32 s41, s41, s%d" % S_EH)
        e("s_lshl_b32 s42, s41, 2")
        e("s_movk_i32 s41, %d" % (16 * 512))
    e("s_add_u32 s41, s41, s42")
    e("s_add_u32 s%d, s41, 0x%x" % (S_FLAG, FLAGS))

def flag_store(e):
    e("v_mov_b32 v60, s%d" % S_NONCE)
    e("v_lshlrev_b32 v61, 24, v%d" % V_LANE)
    e("v_add_u32 v61, s%d, v61" % S_FLAG)
    e("buffer_store_dword v60, v61, s[%d:%d], 0 offen sc1" % (S_WS, S_WS + 3))

def poll_prep(e, sbase, nflags):
    e("v_lshlrev_b32 v61, 2, v%d" % V_LANE)
    e("v_add_u32 v61, s%d, v61" % sbase)
    e("v_cmp_gt_u32 vcc, %d, v%d" % (nflags, V_LANE))
    e("v_mov_b32 v60, 0x7fffffff")
    e("s_nop 0")
    e("v_cndmask_b32 v61, v60, v61, vcc")
def poll_issue(e):
    e("buffer_load_dword v60, v61, s[%d:%d], 0 offen sc1" % (S_WS, S_WS + 3))
def poll_loop(e, nflags, first_issued):
    top = e.newlabel("POLL"); done = e.newlabel("POLLD"); chk = e.newlabel("POLLC")
    e("s_mov_b32 s41, 0")
    if first_issued: e("s_branch %s" % chk)
    e.label(top)
    poll_issue(e)
    e.label(chk)
    e("s_waitcnt vmcnt(0)")
    e("v_cmp_eq_u32 vcc, s%d, v60" % S_NONCE)
    e("s_nop 1")
    mask = (1 << nflags) - 1
    e("s_and_b32 s42, vcc_lo, 0x%x" % (mask & 0xffffffff))
    e("s_cmp_eq_u32 s42, 0x%x" % (mask & 0xffffffff))
    e("s_cbranch_scc1 %s" % done)
    e("s_add_u32 s41, s41, 1")
    e("s_cmp_ge_u32 s41, 0x40000")
    e("s_cbranch_scc1 %s" % done)
    e("s_branch %s" % top)
    e.label(done)
def poll(e, sbase, nflags, drain=True):
    poll_prep(e, sbase, nflags)
    poll_loop(e, nflags, False)

def poll_loop56(e):
    top = e.newlabel("POLL"); done = e.newlabel("POLLD")
    e("s_mov_b32 s41, 0")
    e.label(top)
    poll_issue(e)
    e("s_waitcnt vmcnt(0)")
    e("v_cmp_eq_u32 vcc, s%d, v60" % S_NONCE)
    e("s_nop 1")
    e("s_and_b32 s43, vcc_hi, 0xffffff")
    e("s_cmp_eq_u32 s43, 0xffffff")
    e("s_cselect_b32 s42, vcc_lo, 0")
    e("s_cmp_eq_u32 s42, -1")
    e("s_cbranch_scc1 %s" % done)
    e("s_add_u32 s41, s41, 1")
    e("s_cmp_ge_u32 s41, 0x40000")
    e("s_cbranch_scc1 %s" % done)
    e("s_branch %s" % top)
    e.label(done)

def poll2(e, sline1, line2):
    top = e.newlabel("POLL"); done = e.newlabel("POLLD")
    e("v_lshlrev_b32 v61, 2, v%d" % V_LANE)
    e("v_add_u32 v62, 0x%x, v61" % line2)
    e("v_add_u32 v61, s%d, v61" % sline1)
    e("v_mov_b32 v60, 0x7fffffff")
    e("v_cmp_gt_u32 vcc, 56, v%d" % V_LANE)
    e("s_nop 1")
    e("v_cndmask_b32 v61, v60, v61, vcc")
    e("v_cmp_gt_u32 vcc, 32, v%d" % V_LANE)
    e("s_nop 1")
    e("v_cndmask_b32 v62, v60, v62, vcc")
    e("s_mov_b32 s41, 0")
    e.label(top)
    e("buffer_load_dword v60, v61, s[%d:%d], 0 offen sc1" % (S_WS, S_WS + 3))
    e("buffer_load_dword v58, v62, s[%d:%d], 0 offen sc1" % (S_WS, S_WS + 3))
    e("s_waitcnt vmcnt(0)")
    e("v_cmp_eq_u32 vcc, s%d, v60" % S_NONCE)
    e("v_cmp_eq_u32 s[42:43], s%d, v58" % S_NONCE)
    e("s_nop 1")
    e("s_and_b32 s43, vcc_hi, 0xffffff")
    e("s_and_b32 s42, s42, vcc_lo")
    e("s_cmp_eq_u32 s43, 0xffffff")
    e("s_cselect_b32 s42, s42, 0")
    e("s_cmp_eq_u32 s42, -1")
    e("s_cbranch_scc1 %s" % done)
    e("s_add_u32 s41, s41, 1")
    e("s_cmp_ge_u32 s41, 0x40000")
    e("s_cbranch_scc1 %s" % done)
    e("s_branch %s" % top)
    e.label(done)

def kernel_fused(e, cfg):
    name = "gated_mix__spectral_fnet__glu_gated_glu__prompt_kernel"
    header(e, name)
    e("s_cmp_ge_u32 s2, 256")
    e("s_cbranch_scc1 KF_END")
    kernarg_loads(e)
    entry_common(e)
    def after_h_consumer():
        e.vm_wait_all()
        e("s_barrier")
        lab = e.newlabel("NOTW0")
        e("s_cmp_lg_u32 s%d, 0" % S_WAVE)
        e("s_cbranch_scc1 %s" % lab)
        flag_store(e)
        e.label(lab)
        stamp(e, cfg, 4)
        p2_role(e)
        p2_setup(e, cfg)
        srd(e, S_OUT, 46, 1835008)
        srd(e, S_WD, 56, 1605632)
        e("s_cmp_lg_u32 s%d, 0" % S_WAVE)
        e("s_cbranch_scc1 P2_START")
        e("s_lshr_b32 s43, s%d, 1" % S_T1)
        e("s_lshl_b32 s43, s43, 7")
        e("s_add_u32 s%d, s43, 0x%x" % (S_PF, FLAGS))
        poll(e, S_PF, 14)
        e("s_branch P2_START")
    def after_h_loader():
        e("s_barrier")
        p2_role(e)
        p2_setup(e, cfg)
        srd(e, S_OUT, 46, 1835008)
        e("v_subrev_u32 v9, %d, v10" % (8 * 896))
        e("s_sub_u32 s69, s62, 1024")
        for kk in range(20):
            pos = kk
            dma(e, S_WD, 9, pos * 2048, 69, kk * 16 * 896, ("wdp", kk))
            dma(e, S_WD, 10, pos * 2048, 62, kk * 16 * 896, ("wdp", kk))
        e("s_barrier")
        stamp(e, cfg, 4)
        e.vm = []
        e.label("P2_START")
        e("s_waitcnt vmcnt(0)")
        e("s_barrier")
        stamp(e, cfg, 5)
        e.vm = []; e.lg = []
        p2_main(e, cfg, 5)
        stamp_store(e, cfg, 0)
        e("s_endpgm")
    def after_d(is_cons):
        if is_cons:
            e.vm_wait_all()
            e("s_barrier")
            lab = e.newlabel("DNOTW0")
            e("s_cmp_lg_u32 s%d, 0" % S_WAVE)
            e("s_cbranch_scc1 %s" % lab)
            flag_store(e)
            e("s_waitcnt vmcnt(0)")
            e.label(lab)
            stamp_store(e, cfg, 0)
            e("s_endpgm")
        else:
            e("s_waitcnt vmcnt(0)")
            e("s_barrier")
            stamp_store(e, cfg, 0)
            e("s_endpgm")
    phase1(e, cfg, after_h_consumer, after_h_loader, after_d)
    e.label("KF_END")
    e("s_endpgm")


WB2 = 114688; NW2 = 6; WS2 = 8192
H_ACC = 64
H_FR = 192
V_XA2 = 10
V_WA2 = 18
S_WT = 69

def h2_consumer(e, cfg):
    L = V_LANE; T = 26
    e("s_lshr_b32 s%d, s%d, 1" % (S_WT, S_WAVE))
    e("s_and_b32 s%d, s%d, 1" % (S_WF, S_WAVE))
    e("v_and_b32 v%d, 31, v%d" % (T, L))
    e("v_lshrrev_b32 v%d, 5, v%d" % (T + 1, L))
    e("v_lshrrev_b32 v%d, 1, v%d" % (T + 2, T))
    e("v_and_b32 v%d, 7, v%d" % (T + 2, T + 2))
    e("s_lshl_b32 s41, s%d, 6" % S_WT)
    e("v_add_u32 v%d, s41, v%d" % (T + 3, T))
    e("v_lshlrev_b32 v%d, 7, v%d" % (T + 3, T + 3))
    for k in range(4):
        e("v_add_u32 v%d, %d, v%d" % (T + 4, 2 * k, T + 1))
        e("v_xor_b32 v%d, v%d, v%d" % (T + 4, T + 4, T + 2))
        e("v_lshlrev_b32 v%d, 4, v%d" % (T + 4, T + 4))
        e("v_add_u32 v%d, v%d, v%d" % (V_XA2 + k, T + 3, T + 4))
        e("v_add_u32 v%d, 0x10000, v%d" % (V_XA2 + 4 + k, V_XA2 + k))
    e("v_and_b32 v%d, 15, v%d" % (T + 4, L))
    e("v_lshrrev_b32 v%d, 2, v%d" % (T + 5, T + 4))
    e("v_lshlrev_b32 v%d, 3, v%d" % (T + 6, T + 1))
    e("v_add_u32 v%d, v%d, v%d" % (T + 6, T + 6, T + 5))
    e("v_lshlrev_b32 v%d, 7, v%d" % (T + 6, T + 6))
    e("v_bfe_u32 v%d, v%d, 3, 1" % (T + 7, T + 4))
    e("v_xor_b32 v%d, s%d, v%d" % (T + 7, S_WF, T + 7))
    e("v_lshlrev_b32 v%d, 6, v%d" % (T + 7, T + 7))
    e("v_add_u32 v%d, v%d, v%d" % (T + 6, T + 6, T + 7))
    e("v_bfe_u32 v%d, v%d, 4, 1" % (T + 7, L))
    e("v_lshlrev_b32 v%d, 5, v%d" % (T + 7, T + 7))
    e("v_add_u32 v%d, v%d, v%d" % (T + 6, T + 6, T + 7))
    e("v_and_b32 v%d, 3, v%d" % (T + 7, T + 4))
    e("v_lshlrev_b32 v%d, 3, v%d" % (T + 7, T + 7))
    e("v_add_u32 v%d, v%d, v%d" % (T + 6, T + 6, T + 7))
    e("v_add_u32 v%d, 0x%x, v%d" % (V_WA2, WB2, T + 6))
    e("s_lshl_b32 s41, s%d, 1" % S_R)
    e("s_add_u32 s41, s41, s%d" % S_WT)
    e("s_mul_i32 s41, s41, 112")
    e("s_lshl_b32 s42, s%d, 1" % S_FB)
    e("s_add_u32 s42, s42, s%d" % S_WF)
    e("s_lshl_b32 s42, s42, 1")
    e("s_add_u32 s41, s41, s42")
    e("s_lshl_b32 s41, s41, 11")
    e("v_lshlrev_b32 v20, 4, v%d" % L)
    e("v_add_u32 v20, s41, v20")
    e("v_add_u32 v21, 0x%x, v20" % (56 * 2048))
    e("s_waitcnt lgkmcnt(0)")
    srd(e, S_WS, 74, WS_BYTES)
    flag_addr(e, True)
    nonce_issue(e)
    stamp(e, cfg, 0)
    if "notouch" not in cfg.x:
        srd(e, S_WD, 56, 1605632)
        e("s_lshr_b32 s41, s2, 3")
        e("s_mul_i32 s41, s41, 448")
        e("s_lshl_b32 s42, s%d, 6" % S_WAVE)
        e("s_add_u32 s41, s41, s42")
        e("v_add_u32 v8, s41, v%d" % L)
        e("v_lshlrev_b32 v8, 7, v8")
        e("buffer_load_dword v2, v8, s[%d:%d], 0 offen" % (S_WD, S_WD + 3))
        e("s_cmp_eq_u32 s%d, 3" % S_WAVE)
        lab = e.newlabel("TCH")
        e("s_cbranch_scc1 %s" % lab)
        e("v_add_u32 v8, 0x%x, v8" % (256 * 128))
        e("buffer_load_dword v3, v8, s[%d:%d], 0 offen" % (S_WD, S_WD + 3))
        e.label(lab)
    e("s_barrier")
    stamp(e, cfg, 1)
    if cfg.diag:
        e("s_memtime s[76:77]"); e("s_waitcnt lgkmcnt(0)")
    def reads(g):
        p = g // 28; kap = g % 28
        base = H_FR + 16 * (g & 1)
        c = kap >> 2; kk4 = kap & 3
        xo = c * 16384
        xv = V_XA2 + kk4 + (4 if xo >= 0x10000 else 0); xo &= 0xffff
        j = g >> 1; kk = g & 1
        so = (j % NW2) * WS2
        def xr(nb): return (("X", g, nb), "ds_read_b128 %s, v%d offset:%d" % (vr(base + 4 * nb, 4), xv, xo + nb * 4096))
        def wr(m, ip): return (("W", g, m), "ds_read_b64_tr_b16 %s, v%d offset:%d" % (vr(base + 8 + 4 * m + 2 * ip, 2), V_WA2, so + m * 4096 + (16 * kk + 4 * ip) * 128))
        return [wr(0, 0), wr(0, 1), xr(0), wr(1, 0), wr(1, 1), xr(1)]
    def epilogue(p):
        e("s_mov_b32 s42, 0x%08x" % f2u(-LOG2E))
        e("s_mov_b32 s43, s42")
        e("s_mov_b32 s44, 1.0")
        e("s_mov_b32 s45, 1.0")
        e("s_nop 7")
        grp = 0
        for nb in range(2):
            for hf in range(2):
                outb = 224 + 4 * grp; grp += 1
                A = H_ACC + 16 * nb + 8 * hf; B = H_ACC + 32 + 16 * nb + 8 * hf
                for q in range(0, 8, 2):
                    e("v_pk_mul_f32 %s, %s, s[42:43]" % (vr(A + q, 2), vr(A + q, 2)))
                for q in range(8):
                    e("v_exp_f32 v%d, v%d" % (A + q, A + q))
                for q in range(0, 8, 2):
                    e("v_pk_add_f32 %s, %s, s[44:45]" % (vr(A + q, 2), vr(A + q, 2)))
                for q in range(8):
                    e("v_rcp_f32 v%d, v%d" % (A + q, A + q))
                for q in range(0, 8, 2):
                    e("v_pk_mul_f32 %s, %s, %s" % (vr(A + q, 2), vr(A + q, 2), vr(B + q, 2)))
                for q2 in range(4):
                    e("v_cvt_pk_bf16_f32 v%d, v%d, v%d" % (outb + q2, A + 2 * q2, A + 2 * q2 + 1))
                if not ("nostoreB" in cfg.x and p == 1):
                    e("buffer_store_dwordx4 %s, v%d, s[%d:%d], 0 offen offset:%d%s" % (vr(outb, 4), 20 + p, S_WS, S_WS + 3, hf * 2048 + nb * 1024, "" if "plainst" in cfg.x else " sc1"))
                e.vm_issue("hst")
    for tag, txt in reads(0):
        e(txt); e.lg_issue(tag)
    for g in range(56):
        base = H_FR + 16 * (g & 1)
        nxt = reads(g + 1) if g + 1 < 56 else []
        first = (g % 28 == 0)
        k = 0
        for n in range(4):
            nb = n >> 1; m = n & 1
            e.lg_wait([("W", g, m), ("X", g, nb)])
            d = H_ACC + 32 * m + 16 * nb
            if "nomfma" not in cfg.x:
                mfma(e, d, base + 8 + 4 * m, base + 4 * nb, "0" if first else None)
            cnt = 2 if n < 2 else 1
            for _ in range(cnt):
                if k < len(nxt):
                    tag, txt = nxt[k]; k += 1
                    if "nolds" in cfg.x: continue
                    e(txt); e.lg_issue(tag)
        if g == 27 and "noepiA" not in cfg.x:
            epilogue(0)
        if g == 36:
            nonce_load(e)
        if g == 2 * cfg.flagA_bar - 1:
            e("s_waitcnt vmcnt(0)")
        if (g & 1) and g < 55:
            e("s_barrier")
    assert not e.lg
    e.vm = []
    e("s_barrier")
    if cfg.diag:
        e("s_memtime s[78:79]"); e("s_waitcnt lgkmcnt(0)")
        e("s_sub_u32 s7, s78, s76")
    nonce_finish(e)
    stamp(e, cfg, 2)
    epilogue(1)
    stamp(e, cfg, 3)

def h2_loader(e, cfg):
    L = V_LANE; T = 26
    VX = 10; VW = 14
    e("v_lshrrev_b32 v%d, 3, v%d" % (T, L))
    e("s_lshl_b32 s41, s%d, 5" % S_LW)
    e("v_add_u32 v%d, s41, v%d" % (T, T))
    e("v_and_b32 v%d, 7, v%d" % (T + 1, L))
    e("v_lshrrev_b32 v%d, 4, v%d" % (T + 2, L))
    e("s_movk_i32 s42, 896")
    for i in range(4):
        if i: e("v_add_u32 v%d, 8, v%d" % (T, T))
        e("v_add_u32 v%d, %d, v%d" % (T + 3, (4 * i) & 7, T + 2))
        e("v_and_b32 v%d, 7, v%d" % (T + 3, T + 3))
        e("v_xor_b32 v%d, v%d, v%d" % (T + 3, T + 3, T + 1))
        e("v_lshlrev_b32 v%d, 4, v%d" % (T + 3, T + 3))
        e("v_lshrrev_b32 v%d, 6, v%d" % (T + 4, T))
        e("v_and_b32 v%d, 63, v%d" % (T + 5, T))
        e("v_lshlrev_b32 v%d, 5, v%d" % (T + 5, T + 5))
        e("s_lshl_b32 s41, s%d, 1" % S_R)
        e("v_add3_u32 v%d, v%d, v%d, s41" % (T + 4, T + 4, T + 5))
        e("v_mul_lo_u32 v%d, v%d, s42" % (T + 4, T + 4))
        e("v_add_u32 v%d, v%d, v%d" % (VX + i, T + 4, T + 3))
    e("v_lshrrev_b32 v%d, 3, v%d" % (T + 3, L))
    e("s_lshl_b32 s41, s%d, 3" % S_LW)
    e("v_add_u32 v%d, s41, v%d" % (T + 3, T + 3))
    e("s_movk_i32 s42, 3584")
    e("v_mul_lo_u32 v%d, v%d, s42" % (T + 3, T + 3))
    e("v_bfe_u32 v%d, v%d, 4, 1" % (T + 4, L))
    e("v_lshlrev_b32 v%d, 2, v%d" % (T + 4, T + 4))
    e("v_xor_b32 v%d, v%d, v%d" % (T + 4, T + 4, T + 1))
    e("v_lshlrev_b32 v%d, 4, v%d" % (T + 4, T + 4))
    e("s_lshl_b32 s41, s%d, 7" % S_FB)
    e("v_add3_u32 v%d, v%d, v%d, s41" % (VW, T + 3, T + 4))
    e("s_lshl_b32 s%d, s%d, 10" % (S_LDSW, S_LW))
    e("s_lshl_b32 s%d, s%d, 12" % (S_LDSX, S_LW))
    e("s_waitcnt lgkmcnt(0)")
    srd(e, S_X, 44, 1835008)
    srd(e, S_WA, 52, 1605632); srd(e, S_WB, 54, 1605632)
    srd(e, S_WS, 74, WS_BYTES)
    srd(e, S_GW, 58, 896)
    srd(e, S_WD, 56, 1605632)
    srd(e, S_DBG, 72, 256)
    flag_addr(e, True)
    e("v_mov_b32 v7, 0")
    stamp(e, cfg, 0)
    ROT = "norot" not in cfg.x
    if ROT:
        e("s_add_u32 s6, s%d, s%d" % (S_R, S_FB))
        e("s_mul_i32 s7, s6, 37")
        e("s_lshr_b32 s7, s7, 8")
        e("s_mul_i32 s7, s7, 7")
        e("s_sub_u32 s6, s6, s7")
        e("s_mov_b32 s7, s6")
    def dx(c):
        if ROT:
            e("s_lshl_b32 s%d, s6, 7" % S_OFF)
            for i in range(4): dma(e, S_X, VX + i, c * 16384 + i * 1024, S_LDSX, None, ("x", c))
            rot_next(e, 6, 7)
        else:
            for i in range(4): dma(e, S_X, VX + i, c * 16384 + i * 1024, S_LDSX, c * 128, ("x", c))
    def dw(j):
        p = j // 14; jj = j % 14
        if ROT:
            e("s_mul_i32 s%d, s7, %d" % (S_OFF, 64 * 3584))
            e("s_add_u32 s%d, s%d, %d" % (S_OFF, S_OFF, (jj & 1) * 32 * 3584 + p * 1792))
            for m in range(2):
                dma(e, S_WA if m == 0 else S_WB, VW, WB2 + (j % NW2) * WS2 + m * 4096, S_LDSW, None, ("w", j))
            if jj & 1: rot_next(e, 7, 7)
        else:
            for m in range(2):
                dma(e, S_WA if m == 0 else S_WB, VW, WB2 + (j % NW2) * WS2 + m * 4096, S_LDSW, jj * 32 * 3584 + p * 1792, ("w", j))
    q = []
    for j in range(28):
        if j < 14 and j % 2 == 0: q.append(("x", j // 2, -1))
        q.append(("w", j, -1 if j < NW2 else j - NW2 + 1))
    def cost(it): return 4 if it[0] == "x" else 2
    def issue(it): (dx if it[0] == "x" else dw)(it[1])
    def need(j):
        t = []
        for jj in (j, j + 1):
            if jj <= 27:
                if jj < 14: t.append(("x", jj >> 1))
                t.append(("w", jj))
        return t
    issued = set(); curbar = [-1]
    def ensure(tags):
        while q and any(t not in issued for t in tags):
            it = q.pop(0); assert it[2] <= curbar[0], (it, curbar)
            issue(it); issued.add((it[0], it[1]))
    ensure(need(0))
    budget0 = cfg.pro_extra
    while q and budget0 > 0 and q[0][2] <= -1:
        it = q.pop(0); issue(it); issued.add((it[0], it[1])); budget0 -= cost(it)
    e.vm_wait(need(0))
    e("s_barrier")
    stamp(e, cfg, 1)
    for j in range(27):
        curbar[0] = j
        if j == 0:
            p2_role(e)
            q_setup(e, 0, 16)
            if "spf_disabled" in cfg.x:
                e("s_mul_i32 s4, s43, 448")
                e("s_mul_i32 s5, s%d, 112" % S_LW)
                e("s_add_u32 s4, s4, s5")
                e("s_mul_i32 s4, s4, 896")
                e("s_lshl_b32 s5, s%d, 7" % S_C)
                e("s_add_u32 s4, s4, s5")
        if "spf_disabled" in cfg.x and 1 <= j <= 14:
            for _ in range(8):
                e("s_load_dword s101, s[56:57], s4")
                e("s_add_u32 s4, s4, 896")
        if j >= 16 and j % 2 == 0 and "nowdA" not in cfg.x:
            c = (j - 16) // 2
            q_dma_wd(e, 0, 2 * c, 16); q_dma_wd(e, 0, 2 * c + 1, 16)
        ensure(need(j + 1))
        budget = cfg.stage_budget2
        while q and budget > 0 and q[0][2] <= j:
            it = q.pop(0); issue(it); issued.add((it[0], it[1])); budget -= cost(it)
        if j == cfg.gate_j:
            gate_issue(e, cfg, True)
            gate_issue(e, cfg, True, True)
        if j == cfg.gate_j + 4:
            gate_finish(e, cfg)
            gate_finish(e, cfg, True)
            e("buffer_load_dword v4, v7, s[%d:%d], 0 offen sc1" % (S_DBG, S_DBG + 3))
            e.vm_issue("nonce")
        if j == cfg.flagA_bar - 1:
            e.vm_wait(["nonce"])
            sv = list(e.vm)
            nonce_finish_any(e, keepvm=True)
            e.vm = sv
        if j == cfg.flagA_bar:
            lab = e.newlabel("FA")
            e("s_cmp_lg_u32 s%d, 4" % S_WAVE)
            e("s_cbranch_scc1 %s" % lab)
            flag_store(e)
            e.label(lab)
        if j == cfg.epoll:
            flags_line(e, 0)
            poll_prep(e, S_PF, 14)
            poll_issue(e); e.vm_issue("poll")
        e.vm_wait(need(j + 1))
        e("s_barrier")
    assert not q
    q_setup2(e, 0)
    e("s_waitcnt lgkmcnt(0)")
    e("s_barrier")
    stamp(e, cfg, 2)
    poll_loop(e, 14, True)
    if cfg.diag: e("s_mov_b32 s%d, s41" % (S_STAMP + 16))
    stamp(e, cfg, 4)
    e.vm = []
    e("s_add_u32 s6, s5, 6")
    e("s_cmp_ge_u32 s6, 14")
    e("s_cselect_b32 s41, 14, 0")
    e("s_sub_u32 s6, s6, s41")
    for kk in range(cfg.hpre): q_load_h(e, kk)
    q_dma_wd(e, 0, 12, 16); q_dma_wd(e, 0, 13, 16)

def nonce_finish_any(e, keepvm=False):
    lab = e.newlabel("NFA"); top = e.newlabel("NTA"); chk = e.newlabel("NCK")
    e("s_mov_b32 s42, 0")
    if keepvm: e("s_branch %s" % chk)
    e.label(top)
    e("s_waitcnt vmcnt(0)")
    e.label(chk)
    e("v_readfirstlane_b32 s%d, v4" % S_NONCE)
    e("s_nop 3")
    e("s_cmp_lg_u32 s%d, 0" % S_NONCE)
    e("s_cbranch_scc1 %s" % lab)
    e("s_add_u32 s42, s42, 1")
    e("s_cmp_ge_u32 s42, 0x40000")
    e("s_cbranch_scc1 %s" % lab)
    e("s_sleep 1")
    e("buffer_load_dword v4, v7, s[%d:%d], 0 offen sc1" % (S_DBG, S_DBG + 3))
    e("s_branch %s" % top)
    e.label(lab)

Q_ACC = 64
Q_H = 128
Q_A = 240
SL2 = 40960
SI = 3

def q_setup(e, part, vw=9):
    L = V_LANE
    e("s_and_b32 s%d, s%d, 3" % (SI, S_WAVE))
    e("v_lshrrev_b32 v2, 3, v%d" % L)
    e("v_bfe_u32 v3, v%d, 4, 1" % L)
    e("v_lshlrev_b32 v3, 2, v3")
    e("v_and_b32 v8, 7, v%d" % L)
    e("v_xor_b32 v3, v3, v8")
    e("v_lshlrev_b32 v3, 4, v3")
    e("s_mul_i32 s41, s%d, 224" % SI)
    if part: e("s_add_u32 s41, s41, 896")
    e("v_add_u32 v2, s41, v2")
    e("s_movk_i32 s42, 896")
    e("v_mul_lo_u32 v2, v2, s42")
    e("s_lshl_b32 s41, s%d, 7" % S_C)
    e("v_add3_u32 v%d, v2, v3, s41" % vw)
    e("v_add_u32 v%d, %d, v%d" % (vw + 1, 8 * 896, vw))
    e("s_lshl_b32 s62, s%d, 12" % SI)
    e("s_and_b32 s4, s%d, 3" % S_T1)
    e("s_mul_i32 s4, s4, 3")
    e("s_lshl_b32 s5, s%d, 1" % S_C)
    e("s_add_u32 s4, s4, s5")
    e("s_cmp_ge_u32 s4, 14")
    e("s_cselect_b32 s5, 14, 0")
    e("s_sub_u32 s4, s4, s5")
    if P2ROT[0] == 0: e("s_mov_b32 s4, 0")
    e("s_mov_b32 s5, s4")

P2ROT = [1]
OSC = [""]
HSC = [" sc1"]
def q_setup2(e, part):
    L = V_LANE
    e("v_and_b32 v2, 15, v%d" % L)
    e("v_lshrrev_b32 v3, 2, v2")
    e("v_lshrrev_b32 v8, 5, v%d" % L)
    e("v_lshlrev_b32 v5, 2, v8")
    e("v_add_u32 v5, v5, v3")
    e("v_lshlrev_b32 v5, 7, v5")
    e("v_bfe_u32 v6, v2, 3, 1")
    e("v_lshlrev_b32 v6, 6, v6")
    e("v_bfe_u32 v3, v%d, 4, 1" % L)
    e("v_lshlrev_b32 v3, 5, v3")
    e("v_and_b32 v8, 3, v2")
    e("v_lshlrev_b32 v8, 3, v8")
    e("v_add3_u32 v5, v5, v6, v3")
    e("v_add_u32 v5, v5, v8")
    e("v_add_u32 v11, s62, v5")
    e("v_xor_b32 v12, 64, v11")
    e("v_add_u32 v18, 0x10000, v11")
    e("v_add_u32 v19, 0x10000, v12")
    e("v_add_u32 v15, 0x20000, v11")
    e("v_add_u32 v63, 0x20000, v12")
    e("s_mul_i32 s41, s%d, 112" % S_T1)
    e("s_mul_i32 s42, s%d, 14" % SI)
    e("s_add_u32 s41, s41, s42")
    if part: e("s_add_u32 s41, s41, 56")
    e("s_lshl_b32 s41, s41, 11")
    e("v_lshlrev_b32 v13, 4, v%d" % L)
    e("v_add_u32 v13, s41, v13")
    e("v_and_b32 v14, 31, v%d" % L)

def q_pos(part, kk):
    if part == 0: return (kk >> 1) * 16384 + (kk & 1) * 2048
    if kk < 6: return WB2 + (kk >> 1) * 16384 + (kk & 1) * 2048
    k2 = kk - 6
    return (k2 >> 1) * 16384 + (k2 & 1) * 2048

def q_dma_wd(e, part, kk, vw=9):
    pos = q_pos(part, kk)
    e("s_mul_i32 s%d, s4, %d" % (S_OFF, 16 * 896))
    dma(e, S_WD, vw, pos, 62, None, ("wd", kk))
    dma(e, S_WD, vw + 1, pos + 1024, 62, None, ("wd", kk))
    rot_next(e, 4, 14)

def q_load_h(e, kk):
    e("s_lshl_b32 s%d, s5, 11" % S_OFF)
    for nb in range(2):
        e("buffer_load_dwordx4 %s, v13, s[%d:%d], s%d offen offset:%d%s" % (vr(Q_H + 8 * kk + 4 * nb, 4), S_WS, S_WS + 3, S_OFF, nb * 1024, HSC[0]))
        e.vm_issue(("h", kk))
    rot_next(e, 5, 14)

def q_mainloop(e, cfg, part, init_zero, pre, extra=None, after_k=None, before_reads=None):
    def reads(kk):
        b = Q_A + 8 * (kk & 1)
        pos = q_pos(part, kk)
        for mb in range(2):
            for ip in range(2):
                va = (11 + mb) if pos < 0x10000 else (18 + mb)
                po = pos if pos < 0x10000 else pos - 0x10000
                if pos >= 0x20000:
                    va = (15, 63)[mb]; po = pos - 0x20000
                e("ds_read_b64_tr_b16 %s, v%d offset:%d" % (vr(b + 4 * mb + 2 * ip, 2), va, po + ip * 1024))
                e.lg_issue(("A", kk, mb))
    nxt = pre
    e.vm_wait([("wd", 0)])
    reads(0)
    for kk in range(14):
        if nxt < 14:
            q_load_h(e, nxt); nxt += 1
            if nxt == 14 and extra: extra()
        late = before_reads is not None and before_reads(kk + 1, False)
        if kk + 1 < 14 and not late:
            e.vm_wait([("wd", kk + 1)])
            reads(kk + 1)
        e.vm_wait([("h", kk)])
        b = Q_A + 8 * (kk & 1)
        for mb in range(2):
            e.lg_wait([("A", kk, mb)])
            for nb in range(2):
                mfma(e, Q_ACC + 16 * (2 * mb + nb), b + 4 * mb, Q_H + 8 * kk + 4 * nb, "0" if (kk == 0 and init_zero) else None)
        if late:
            before_reads(kk + 1, True)
            reads(kk + 1)
        if after_k: after_k(kk)
    assert not e.lg and nxt == 14

def flags_line(e, part):
    e("s_lshr_b32 s43, s%d, 1" % S_T1)
    e("s_lshl_b32 s43, s43, 9")
    e("s_add_u32 s%d, s43, 0x%x" % (S_PF, FLAGS + 256 * part))

def q_loader_A(e, cfg):
    e("v_add_u32 v26, %d, v16" % (896 * 896))
    e("v_add_u32 v27, %d, v17" % (896 * 896))
    stamp(e, cfg, 5)
    def after_k(kk):
        if kk < 8:
            pos = q_pos(0, kk)
            e("s_mul_i32 s%d, s6, %d" % (S_OFF, 16 * 896))
            dma(e, S_WD, 26, pos, 62, None, ("wdb", kk))
            dma(e, S_WD, 27, pos + 1024, 62, None, ("wdb", kk))
            rot_next(e, 6, 14)
    q_mainloop(e, cfg, 0, True, cfg.hpre, None, after_k)
    stamp(e, cfg, 6)
    e("v_lshlrev_b32 v2, 4, v%d" % V_LANE)
    e("v_add_u32 v2, s62, v2")
    e("v_add_u32 v3, 0x10000, v2")
    e("s_nop 7"); e("s_nop 3")
    for tl in range(3):
        for qq in range(4):
            e("ds_write_b128 v3, %s offset:%d" % (vr(Q_ACC + 16 * tl + 4 * qq, 4), (4 + tl) * 16384 - 0x10000 + qq * 1024))
    e("s_waitcnt vmcnt(0) lgkmcnt(0)")
    e.vm = []
    e("s_barrier")
    stamp(e, cfg, 7)
    e("v_add_u32 v3, 0x%x, v2" % WB2)
    for qq in range(4):
        e("ds_write_b128 v3, %s offset:%d" % (vr(Q_ACC + 48 + 4 * qq, 4), qq * 1024))
    e("s_waitcnt lgkmcnt(0)")
    e("s_barrier")

def q_consumer_B(e, cfg):
    L = V_LANE
    p2_role(e)
    q_setup(e, 1)
    q_setup2(e, 1)
    srd(e, S_OUT, 46, 1835008)
    srd(e, S_WD, 56, 1605632)
    flags_line(e, 0)
    poll_prep(e, S_PF, 14)
    poll_issue(e); e.vm_issue("pollA")
    e("s_cmp_ge_u32 s%d, 4" % S_C)
    e("s_cselect_b32 s63, 1, 0")
    e("s_sub_u32 s64, 32, s%d" % S_T1)
    e("s_and_b32 s64, s64, 31")
    e("s_cmp_eq_u32 s63, 1")
    e("s_cselect_b32 s64, s64, s%d" % S_T1)
    e("v_lshrrev_b32 v8, 5, v%d" % L)
    e("s_lshl_b32 s41, s%d, 6" % S_C)
    e("s_cmp_eq_u32 s63, 1")
    e("s_cselect_b64 vcc, -1, 0")
    for mb in range(2):
        e("v_add_u32 v2, s41, v14")
        if mb: e("v_add_u32 v2, 32, v2")
        e("v_sub_u32 v3, 448, v2")
        e("v_cndmask_b32 v2, v2, v3, vcc")
        e("v_lshlrev_b32 v2, 4, v2")
        e("v_lshlrev_b32 v3, 12, v8")
        e("v_add_u32 v%d, v2, v3" % (16 + mb))
    e("s_lshl_b32 s41, s64, 4")
    e("s_lshl_b32 s42, s%d, 2" % SI)
    e("s_add_u32 s41, s41, s42")
    e("s_lshl_b32 s41, s41, 12")
    e("s_add_u32 s65, s41, 0x%x" % UBUF)
    e("s_lshl_b32 s41, s%d, 6" % S_T1)
    e("v_add_u32 v2, s41, v14")
    e("v_lshlrev_b32 v2, 2, v2")
    e("v_add_u32 v20, 0x%x, v2" % GBUF)
    e("s_mul_i32 s41, s61, 12")
    e("s_lshl_b32 s42, s%d, 2" % S_WAVE)
    e("s_add_u32 s41, s41, s42")
    e("s_add_u32 s41, s41, 256")
    e("s_add_u32 s%d, s%d, s41" % (S_FLAG, S_FLAG))
    poll_loop(e, 14, True)
    stamp(e, cfg, 6)
    flag_store(e)
    e.vm = []
    for nb in range(2):
        e("buffer_load_dword v%d, v20, s[%d:%d], 0 offen offset:%d sc1" % (22 + nb, S_WS, S_WS + 3, nb * 128))
        e.vm_issue("g")
    for kk in range(6): q_dma_wd(e, 1, kk)
    stamp(e, cfg, 4)
    flags_line(e, 1)
    poll_prep(e, S_PF, 56)
    poll_loop56(e)
    stamp(e, cfg, 5)
    e.vm = []
    e("v_lshlrev_b32 v62, 2, v%d" % V_LANE)
    e("v_add_u32 v62, 0x%x, v62" % (FLAGS + 16 * 512))
    e("v_mov_b32 v60, 0x7fffffff")
    e("v_cmp_gt_u32 vcc, 32, v%d" % V_LANE)
    e("s_nop 1")
    e("v_cndmask_b32 v62, v60, v62, vcc")
    def uloads():
        for u in range(2):
            for mb in range(2):
                e("s_add_u32 s%d, s65, %d" % (S_OFF, u * 2 * 4096))
                e("buffer_load_dwordx4 %s, v%d, s[%d:%d], s%d offen sc1" % (vr(44 + 8 * u + 4 * mb, 4), 16 + mb, S_WS, S_WS + 3, S_OFF))
                e.vm_issue("u")
    def dflag_issue():
        e("buffer_load_dword v58, v62, s[%d:%d], 0 offen sc1" % (S_WS, S_WS + 3))
        e.vm_issue("dflag")
    def after_k(kk):
        if kk == cfg.dchk:
            ok = e.newlabel("DOK"); top = e.newlabel("DSP")
            e.vm_wait(["dflag"])
            sv = list(e.vm)
            e("s_mov_b32 s41, 0")
            e.label(top)
            e("v_cmp_eq_u32 vcc, s%d, v58" % S_NONCE)
            e("s_nop 1")
            e("s_cmp_eq_u32 vcc_lo, -1")
            e("s_cbranch_scc1 %s" % ok)
            e("s_add_u32 s41, s41, 1")
            e("s_cmp_ge_u32 s41, 0x40000")
            e("s_cbranch_scc1 %s" % ok)
            e("buffer_load_dword v58, v62, s[%d:%d], 0 offen sc1" % (S_WS, S_WS + 3))
            e("s_waitcnt vmcnt(0)")
            e("s_branch %s" % top)
            e.label(ok)
            e.vm = sv
            uloads()
    for kk in range(cfg.hpreB): q_load_h(e, kk)
    e("s_cmp_lg_u32 s%d, 0" % S_T1)
    e("s_cselect_b32 s41, s63, 0")
    e("v_add_u32 v2, s41, v14")
    e("v_lshrrev_b32 v8, 5, v%d" % L)
    e("v_lshlrev_b32 v8, 2, v8")
    e("s_lshl_b32 s43, s%d, 4" % SI)
    e("v_add_u32 v8, s43, v8")
    e("s_lshl_b32 s41, s63, 31")
    e("s_mov_b32 s42, 0x%08x" % f2u(1.0 / 64))
    for nb in range(2):
        if nb: e("v_add_u32 v2, 32, v2")
        e("v_xor_b32 v21, s41, v%d" % (22 + nb))
        for u in range(2):
            for q in range(4):
                e("v_add_u32 v3, %d, v8" % (8 * u + q))
                e("v_mul_u32_u24 v3, v3, v2")
                e("v_and_b32 v3, 63, v3")
                e("v_cvt_f32_u32 v3, v3")
                e("v_mul_f32 v3, s42, v3")
                e("v_cos_f32 v5, v3")
                e("v_sin_f32 v6, v3")
                e("s_nop 0")
                e("v_mul_f32 v5, v5, v%d" % (22 + nb))
                e("v_mul_f32 v6, v6, v21")
                e("v_cvt_pk_bf16_f32 v%d, v5, v6" % (24 + 8 * nb + 4 * u + q))
    for nb in range(2):
        e("v_sub_f32 v%d, 1.0, v%d" % (40 + 2 * nb, 22 + nb))
        e("v_mov_b32 v%d, v%d" % (41 + 2 * nb, 40 + 2 * nb))
    def before_reads(k, doit):
        if k != 6: return False
        if doit: e("s_barrier")
        return True
    q_mainloop(e, cfg, 1, True, cfg.hpreB, dflag_issue, after_k, before_reads)
    stamp(e, cfg, 7)
    e("s_nop 7"); e("s_nop 3")
    for mb in range(2):
        for nb in range(2):
            D = Q_ACC + 16 * (2 * mb + nb)
            for i in range(0, 16, 2):
                e("v_pk_mul_f32 %s, %s, %s" % (vr(D + i, 2), vr(D + i, 2), vr(40 + 2 * nb, 2)))
    e.vm_wait(["u"])
    e("s_nop 1")
    for u in range(2):
        for mb in range(2):
            for nb in range(2):
                mfma(e, Q_ACC + 16 * (2 * mb + nb), 44 + 8 * u + 4 * mb, 24 + 8 * nb + 4 * u)
    e("s_barrier")
    e("v_lshlrev_b32 v2, 4, v%d" % L)
    e("s_lshl_b32 s41, s%d, 14" % SI)
    e("v_add_u32 v3, s41, v2")
    e("s_lshl_b32 s41, s%d, 14" % SI)
    e("s_add_u32 s41, s41, 0x10000")
    e("s_cmp_eq_u32 s%d, 3" % SI)
    e("s_cselect_b32 s41, 0x%x, s41" % WB2)
    e("v_add_u32 v5, s41, v2")
    for k in range(4):
        for qq in range(4):
            e("ds_read_b128 %s, v5 offset:%d" % (vr(192 + 16 * k + 4 * qq, 4), k * 4096 + qq * 1024))
        if k == 2: e("s_waitcnt lgkmcnt(8)")
    e("s_waitcnt lgkmcnt(6)")
    for tl in range(4):
        for qq in range(4):
            e("ds_write_b128 v3, %s offset:%d" % (vr(Q_ACC + 16 * tl + 4 * qq, 4), tl * 4096 + qq * 1024))
        if tl < 3: e("s_waitcnt lgkmcnt(6)")
    e("s_waitcnt lgkmcnt(0)")
    e("s_barrier")
    e("s_lshl_b32 s41, s%d, 12" % SI)
    e("v_add_u32 v3, s41, v2")
    for k in range(4):
        for qq in range(4):
            e("ds_read_b128 %s, v3 offset:%d" % (vr(128 + 16 * k + 4 * qq, 4), k * 16384 + qq * 1024))
        if k == 2: e("s_waitcnt lgkmcnt(8)")
    for q in range(0, 16, 2):
        e("v_pk_add_f32 %s, %s, %s" % (vr(192 + q, 2), vr(192 + q, 2), vr(208 + q, 2)))
        e("v_pk_add_f32 %s, %s, %s" % (vr(224 + q, 2), vr(224 + q, 2), vr(240 + q, 2)))
    for q in range(0, 16, 2):
        e("v_pk_add_f32 %s, %s, %s" % (vr(192 + q, 2), vr(192 + q, 2), vr(224 + q, 2)))
    e("s_and_b32 s41, s%d, 1" % SI)
    e("s_cmp_eq_u32 s41, 1")
    e("s_cselect_b64 vcc, -1, 0")
    e("s_nop 1")
    e("v_cndmask_b32 v40, v40, v42, vcc")
    e("v_mov_b32 v41, v40")
    e("s_lshl_b32 s41, s41, 5")
    e("v_add_u32 v2, s41, v14")
    e("v_lshlrev_b32 v2, 5, v2")
    e("v_add_u32 v2, s%d, v2" % S_T1)
    e("s_movk_i32 s42, 896")
    e("v_mul_lo_u32 v2, v2, s42")
    e("s_lshl_b32 s41, s%d, 7" % S_C)
    e("s_lshr_b32 s42, s%d, 1" % SI)
    e("s_lshl_b32 s42, s42, 6")
    e("s_add_u32 s41, s41, s42")
    e("v_lshrrev_b32 v8, 5, v%d" % L)
    e("v_lshlrev_b32 v8, 4, v8")
    e("v_add3_u32 v2, v2, v8, s41")
    e("s_waitcnt lgkmcnt(0)")
    for q in range(0, 16, 2):
        e("v_pk_add_f32 %s, %s, %s" % (vr(128 + q, 2), vr(128 + q, 2), vr(144 + q, 2)))
        e("v_pk_add_f32 %s, %s, %s" % (vr(160 + q, 2), vr(160 + q, 2), vr(176 + q, 2)))
    for q in range(0, 16, 2):
        e("v_pk_fma_f32 %s, %s, %s, %s" % (vr(128 + q, 2), vr(192 + q, 2), vr(40, 2), vr(128 + q, 2)))
    for q in range(0, 16, 2):
        e("v_pk_add_f32 %s, %s, %s" % (vr(128 + q, 2), vr(128 + q, 2), vr(160 + q, 2)))
    for q in range(8):
        e("v_cvt_pk_bf16_f32 v%d, v%d, v%d" % (96 + q, 128 + 2 * q, 128 + 2 * q + 1))
    e("s_nop 1")
    for ih in range(2):
        e("v_permlane32_swap_b32 v%d, v%d" % (96 + 4 * ih, 98 + 4 * ih))
        e("v_permlane32_swap_b32 v%d, v%d" % (97 + 4 * ih, 99 + 4 * ih))
    for ih in range(2):
        e("buffer_store_dwordx4 %s, v2, s[%d:%d], 0 offen offset:%d%s" % (vr(96 + 4 * ih, 4), S_OUT, S_OUT + 3, ih * 32, OSC[0]))
    stamp(e, cfg, 8)

def kernel_fused2(e, cfg):
    name = "gated_mix__spectral_fnet__glu_gated_glu__prompt_kernel"
    header(e, name)
    e("s_cmp_ge_u32 s2, 256")
    e("s_cbranch_scc1 KF_END")
    kernarg_loads(e)
    entry_common(e)
    e("s_and_b32 s%d, s%d, 3" % (S_WF, S_WAVE))
    e("s_and_b32 s%d, s%d, 3" % (S_LW, S_WAVE))
    e("s_and_b32 s41, s2, 7")
    e("s_lshr_b32 s42, s2, 3")
    e("s_cmp_ge_u32 s42, 28")
    e("s_cbranch_scc1 P1_DFT")
    e("s_mul_i32 s43, s42, 37")
    e("s_lshr_b32 s43, s43, 8")
    e("s_mul_i32 s76, s43, 7")
    e("s_sub_u32 s76, s42, s76")
    e("s_lshr_b32 s77, s41, 1")
    e("s_lshl_b32 s77, s77, 2")
    e("s_add_u32 s%d, s77, s43" % S_R)
    e("s_and_b32 s77, s41, 1")
    e("s_mul_i32 s77, s77, 7")
    e("s_add_u32 s%d, s77, s76" % S_FB)
    e("s_cmp_ge_u32 s%d, 4" % S_WAVE)
    e("s_cbranch_scc1 P1_H_LOADER")
    e.vm = []; e.lg = []
    h2_consumer(e, cfg)
    q_consumer_B(e, cfg)
    stamp_store(e, cfg, 0)
    e("s_endpgm")
    e.label("P1_H_LOADER")
    e.vm = []; e.lg = []
    h2_loader(e, cfg)
    q_loader_A(e, cfg)
    stamp_store(e, cfg, 0)
    e("s_endpgm")
    e.label("P1_DFT")
    e("s_sub_u32 s42, s42, 28")
    e("s_and_b32 s%d, s41, 1" % S_EH)
    e("s_lshr_b32 s77, s41, 1")
    e("s_lshl_b32 s77, s77, 2")
    e("s_add_u32 s%d, s77, s42" % S_QG)
    e("s_cmp_ge_u32 s%d, 4" % S_WAVE)
    e("s_cbranch_scc1 P1_D_LOADER")
    e.vm = []; e.lg = []
    p1_consumer(e, cfg, False)
    d_epilogue(e, cfg)
    stamp(e, cfg, 3)
    e.vm_wait_all()
    e("s_barrier")
    lab = e.newlabel("DNOTW0")
    e("s_cmp_lg_u32 s%d, 0" % S_WAVE)
    e("s_cbranch_scc1 %s" % lab)
    flag_store(e)
    e("s_waitcnt vmcnt(0)")
    e.label(lab)
    stamp_store(e, cfg, 0)
    e("s_endpgm")
    e.label("P1_D_LOADER")
    e.vm = []; e.lg = []
    p1_loader(e, cfg, False)
    stamp(e, cfg, 3)
    e("s_waitcnt vmcnt(0)")
    e("s_barrier")
    stamp_store(e, cfg, 0)
    e("s_endpgm")
    e.label("KF_END")
    e("s_endpgm")

def descriptor(name):
    return """.section .rodata,"a"
.p2align 6
.amdhsa_kernel %s
  .amdhsa_next_free_vgpr 256
  .amdhsa_next_free_sgpr 102
  .amdhsa_accum_offset 256
  .amdhsa_group_segment_fixed_size 0
  .amdhsa_kernarg_size 104
  .amdhsa_user_sgpr_count 2
  .amdhsa_user_sgpr_kernarg_segment_ptr 1
  .amdhsa_system_sgpr_workgroup_id_x 1
.end_amdhsa_kernel
""" % name

def main():
    cfg = Cfg()
    cfg.pro_extra = 8; cfg.stage_budget = 8; cfg.p2_la = 3; cfg.p2_dpoll = 4; cfg.stage_budget2 = 6; cfg.flagA_bar = 22; cfg.epoll = 26; cfg.hpre = 6; cfg.hpreB = 5; cfg.dchk = 11; cfg.gate_j = 8
    out = sys.argv[1]
    for a in sys.argv[2:]:
        if a == "nop2rot": P2ROT[0] = 0
        if a == "osc1": OSC[0] = " sc1"
        if a == "ont": OSC[0] = " nt"
        if a == "osc01": OSC[0] = " sc0 sc1"
        if a == "hplain": HSC[0] = ""
        if a == "hnt": HSC[0] = " nt"
        if a == "hsc01": HSC[0] = " sc0 sc1"
        if a == "diag": cfg.diag = True
        elif a == "fused": cfg.fused = True
        elif "=" in a:
            k, v = a.split("="); setattr(cfg, k, int(v))
        else: cfg.x = cfg.x | {a}
    e = Em()
    if cfg.fused:
        name = "gated_mix__spectral_fnet__glu_gated_glu__prompt_kernel"
        hdr = "; generated by gen2.py (fused)\n; @launch grid=(256,1,1) block=(512,1,1) lds=163840\n"
        hdr += '.amdgcn_target "amdgcn-amd-amdhsa--gfx950"\n'
        kernel_fused2(e, cfg)
        open(out, "w").write(hdr + e.text() + descriptor(name))
        return
    hdr = "; generated by gen2.py\n"
    hdr += "; @launch kernel=k1_kernel grid=(256,1,1) block=(512,1,1) lds=163840\n"
    hdr += "; @launch kernel=k2_kernel grid=(256,1,1) block=(512,1,1) lds=163840\n"
    hdr += '.amdgcn_target "amdgcn-amd-amdhsa--gfx950"\n'
    kernel1(e, cfg)
    kernel2(e, cfg)
    txt = hdr + e.text() + descriptor("k1_kernel") + descriptor("k2_kernel")
    open(out, "w").write(txt)
if __name__ == "__main__":
    main()
```

```python
import sys, math, struct

def f2u(f): return struct.unpack("<I", struct.pack("<f", f))[0]

class Em:
    def __init__(self):
        self.lines = []
        self.vm = []
        self.lg = []
        self.nlab = 0
    def __call__(self, s): self.lines.append("    " + s)
    def raw(self, s): self.lines.append(s)
    def label(self, s): self.lines.append(s + ":")
    def newlabel(self, p):
        self.nlab += 1
        return "%s_%d" % (p, self.nlab)
    def vm_issue(self, tag): self.vm.append(tag)
    def vm_wait(self, tags):
        last = -1
        for i, t in enumerate(self.vm):
            if t in tags: last = i
        if last < 0: return
        n = len(self.vm) - 1 - last
        assert n <= 63, n
        self("s_waitcnt vmcnt(%d)" % n)
        self.vm = self.vm[last + 1:]
    def vm_wait_all(self):
        self("s_waitcnt vmcnt(0)"); self.vm = []
    def lg_issue(self, tag): self.lg.append(tag)
    def lg_wait(self, tags):
        last = -1
        for i, t in enumerate(self.lg):
            if t in tags: last = i
        if last < 0: return
        n = len(self.lg) - 1 - last
        assert n <= 15, n
        self("s_waitcnt lgkmcnt(%d)" % n)
        self.lg = self.lg[last + 1:]
    def lg_wait_all(self):
        self("s_waitcnt lgkmcnt(0)"); self.lg = []
    def text(self): return "\n".join(self.lines) + "\n"

def vr(a, n=1): return "v%d" % a if n == 1 else "v[%d:%d]" % (a, a + n - 1)

HBUF = 0
UBUF = 0x700000
GBUF = 0x900000
FLAGS = 0x910000
DIAG = 0xA00000
WS_BYTES = 0x1000000
LOG2E = 1.4426950408889634

S_X = 8; S_WA = 12; S_WB = 16; S_WS = 20; S_GW = 24; S_OUT = 28; S_WD = 32; S_DBG = 36
S_WAVE = 40
S_R = 60; S_FB = 61; S_QG = 62; S_EH = 63
S_WF = 64; S_LW = 65
S_LDSW = 66; S_LDSX = 67
S_OFF = 68
S_T1 = 70; S_C = 71
S_STAMP = 80
S_NONCE = 98; S_FLAG = 99; S_PF = 100
V_LANE = 1

class Cfg:
    fused = False
    diag = False
    x = set()

def kernarg_loads(e):
    e("s_load_dwordx2 s[44:45], s[0:1], 0")
    e("s_load_dwordx4 s[48:51], s[0:1], 24")
    e("s_load_dwordx4 s[52:55], s[0:1], 48")
    e("s_load_dwordx4 s[56:59], s[0:1], 64")
    e("s_load_dwordx2 s[46:47], s[0:1], 80")
    e("s_load_dwordx4 s[72:75], s[0:1], 88")

def srd(e, dst, lo, nbytes):
    e("s_mov_b32 s%d, s%d" % (dst, lo))
    e("s_and_b32 s%d, s%d, 0xffff" % (dst + 1, lo + 1))
    e("s_mov_b32 s%d, 0x%x" % (dst + 2, nbytes))
    e("s_mov_b32 s%d, 0x20000" % (dst + 3))

NSTAMP = 6
def stamp(e, cfg, k):
    if cfg.diag:
        assert not e.lg
        e("s_memrealtime s[%d:%d]" % (S_STAMP + 2 * k, S_STAMP + 2 * k + 1))
        if k in (1, 2) and not cfg.fused:
            e("s_memtime s[%d:%d]" % (S_STAMP + 12 + 2 * (k - 1), S_STAMP + 13 + 2 * (k - 1)))
        e("s_waitcnt lgkmcnt(0)")

def stamp_store(e, cfg, slot_base):
    if not cfg.diag: return
    e("s_lshl_b32 s41, s2, 3")
    e("s_add_u32 s41, s41, s%d" % S_WAVE)
    e("s_lshl_b32 s41, s41, 6")
    e("s_add_u32 s41, s41, 0x%x" % (DIAG + slot_base))
    e("v_mov_b32 v1, s41")
    for k in range(9 if cfg.fused else NSTAMP + 2):
        e("v_mov_b32 v2, s%d" % (S_STAMP + 2 * k))
        e("buffer_store_dword v2, v1, s[%d:%d], 0 offen offset:%d" % (S_WS, S_WS + 3, 4 * k))
        e("s_nop 1")
    e("v_mov_b32 v2, s7")
    e("buffer_store_dword v2, v1, s[%d:%d], 0 offen offset:36" % (S_WS, S_WS + 3))
    e("s_waitcnt vmcnt(0)")

def mfma(e, d, a, b, c=None):
    cs = vr(d, 16) if c is None else c
    e("v_mfma_f32_32x32x16_bf16 %s, %s, %s, %s" % (vr(d, 16), vr(a, 4), vr(b, 4), cs))

NODMA = [False]
def dma_group(e, sldsbase, ldsconst, items):
    e("s_add_u32 m0, s%d, 0x%x" % (sldsbase, ldsconst))
    e("s_nop 0")
    for (srdreg, vaddr, soff, ioff, tag) in items:
        e("buffer_load_dwordx4 v%d, s[%d:%d], s%d offen offset:%d lds" % (vaddr, srdreg, srdreg + 3, soff, ioff))
        e.vm_issue(tag)
def fill_table(e, first, n, scnt, mod, emit):
    for c in range(n):
        emit(first + c)
        if c + 1 < n: rot_next(e, scnt, mod)
def rot_next(e, sreg, n):
    e("s_add_u32 s%d, s%d, 1" % (sreg, sreg))
    e("s_cmp_eq_u32 s%d, %d" % (sreg, n))
    e("s_cselect_b32 s%d, 0, s%d" % (sreg, sreg))
def dma(e, srdreg, vaddr, ldsconst, sldswave, soff, tag):
    if NODMA[0]:
        e.vm_issue(tag); e.vm.pop(); return
    e("s_add_u32 m0, s%d, 0x%x" % (sldswave, ldsconst))
    if soff is None:
        e("s_nop 0")
    else:
        e("s_mov_b32 s%d, 0x%x" % (S_OFF, soff))
    e("buffer_load_dwordx4 v%d, s[%d:%d], s%d offen lds" % (vaddr, srdreg, srdreg + 3, S_OFF))
    e.vm_issue(tag)

XSLOT = 16384; NX = 4
WBASE = 65536; NW = 6; WSLOT = 16384
ACC = 64
def accA(i): return ACC + 16 * i
def accB(i): return ACC + 64 + 16 * i
FR = 192
V_XA = 10
V_WA = 14
CONST_LDS = 0

def p1_consumer_addr(e, is_h):
    L = V_LANE; T = 26
    e("v_and_b32 v%d, 31, v%d" % (T, L))
    e("v_lshrrev_b32 v%d, 5, v%d" % (T + 1, L))
    e("v_lshrrev_b32 v%d, 1, v%d" % (T + 2, T))
    e("v_and_b32 v%d, 7, v%d" % (T + 2, T + 2))
    e("v_lshlrev_b32 v%d, 7, v%d" % (T + 3, T))
    if not is_h:
        e("s_lshl_b32 s41, s%d, 5" % S_WF)
        e("v_add_u32 v%d, s41, v%d" % (T + 5, T))
        e("v_lshlrev_b32 v%d, 7, v%d" % (T + 5, T + 5))
        e("v_add_u32 v%d, 0x%x, v%d" % (T + 5, WBASE, T + 5))
    for k in range(4):
        e("v_add_u32 v%d, %d, v%d" % (T + 4, 2 * k, T + 1))
        e("v_xor_b32 v%d, v%d, v%d" % (T + 4, T + 4, T + 2))
        e("v_lshlrev_b32 v%d, 4, v%d" % (T + 4, T + 4))
        e("v_add_u32 v%d, v%d, v%d" % (V_XA + k, T + 3, T + 4))
        if not is_h:
            e("v_add_u32 v%d, v%d, v%d" % (V_WA + k, T + 5, T + 4))
            e("v_add_u32 v%d, 0x10000, v%d" % (V_WA + 4 + k, V_WA + k))
    if is_h:
        e("v_and_b32 v%d, 15, v%d" % (T + 4, L))
        e("v_lshrrev_b32 v%d, 2, v%d" % (T + 5, T + 4))
        e("v_lshlrev_b32 v%d, 3, v%d" % (T + 6, T + 1))
        e("v_add_u32 v%d, v%d, v%d" % (T + 6, T + 6, T + 5))
        e("v_lshlrev_b32 v%d, 8, v%d" % (T + 6, T + 6))
        e("v_xor_b32 v%d, s%d, v%d" % (T + 7, S_WF, T + 5))
        e("v_lshlrev_b32 v%d, 6, v%d" % (T + 7, T + 7))
        e("v_add_u32 v%d, v%d, v%d" % (T + 6, T + 6, T + 7))
        e("v_bfe_u32 v%d, v%d, 4, 1" % (T + 7, L))
        e("v_lshlrev_b32 v%d, 5, v%d" % (T + 7, T + 7))
        e("v_add_u32 v%d, v%d, v%d" % (T + 6, T + 6, T + 7))
        e("v_and_b32 v%d, 3, v%d" % (T + 7, T + 4))
        e("v_lshlrev_b32 v%d, 3, v%d" % (T + 7, T + 7))
        e("v_add_u32 v%d, v%d, v%d" % (T + 6, T + 6, T + 7))
        e("v_add_u32 v%d, 0x%x, v%d" % (V_WA, WBASE, T + 6))
        e("v_add_u32 v%d, 0x%x, v%d" % (V_WA + 1, WBASE + 0x10000, T + 6))

def p1_reads(kap, is_h):
    base = FR + 24 * (kap & 1)
    c = kap >> 2; kk4 = kap & 3
    def xr(nb): return (("X", kap, nb), "ds_read_b128 %s, v%d offset:%d" % (vr(base + 4 * nb, 4), V_XA + kk4, (c % NX) * XSLOT + nb * 4096))
    if is_h:
        j = kap >> 1; kk = kap & 1
        slot = (j % NW) * WSLOT
        va = V_WA + (1 if slot >= 0x10000 else 0); so = slot & 0xffff
        def wr(m, ip): return (("W", kap, m), "ds_read_b64_tr_b16 %s, v%d offset:%d" % (vr(base + 16 + 4 * m + 2 * ip, 2), va, so + m * 8192 + (16 * kk + 4 * ip) * 256))
        return [wr(0, 0), wr(0, 1), xr(0), wr(1, 0), wr(1, 1), xr(1), xr(2), xr(3)]
    else:
        slot = (c % 3) * 32768
        va = V_WA + kk4 + (4 if slot >= 0x10000 else 0); so = slot & 0xffff
        def wr(m): return (("W", kap, m), "ds_read_b128 %s, v%d offset:%d" % (vr(base + 16 + 4 * m, 4), va, so + m * 16384))
        return [wr(0), xr(0), wr(1), xr(1), xr(2), xr(3)]

def p1_consumer(e, cfg, is_h):
    p1_consumer_addr(e, is_h)
    e("s_waitcnt lgkmcnt(0)")
    srd(e, S_WS, 74, WS_BYTES)
    if cfg.fused:
        flag_addr(e, is_h)
        nonce_issue(e)
    stamp(e, cfg, 0)
    e("s_barrier")
    stamp(e, cfg, 1)
    for tag, txt in p1_reads(0, is_h):
        e(txt); e.lg_issue(tag)
    for kap in range(28):
        base = FR + 24 * (kap & 1)
        nxt = p1_reads(kap + 1, is_h) if kap + 1 < 28 else []
        for n in range(8):
            nb = n >> 1; m = n & 1
            e.lg_wait([("W", kap, m), ("X", kap, nb)])
            d = accA(nb) if m == 0 else accB(nb)
            W = base + 16 + 4 * m; X = base + 4 * nb
            c = "0" if kap == 0 else None
            if "no32" in cfg.x:
                for hh in range(2):
                    e("v_mfma_f32_16x16x32_bf16 %s, %s, %s, %s" % (vr(d + 8 * hh, 4), vr(W, 4), vr(X, 4), vr(d + 8 * hh, 4)))
            elif "nomfma" not in cfg.x:
                if is_h: mfma(e, d, W, X, c)
                else: mfma(e, d, X, W, c)
            if nxt and n < len(nxt):
                tag, txt = nxt[n]
                if "nolds" in cfg.x: e.lg_issue(tag); e.lg.pop()
                else:
                    e(txt); e.lg_issue(tag)
        if (kap & 1) and kap < 27:
            e("s_barrier")
        if cfg.fused and kap == 21:
            nonce_load(e)
    assert not e.lg
    if cfg.fused and is_h:
        e("s_barrier")
    if cfg.fused:
        nonce_finish(e)
    stamp(e, cfg, 2)

def h_epilogue(e, cfg):
    sc = " sc1" if cfg.fused else ""
    e("s_lshl_b32 s41, s%d, 1" % S_R)
    e("s_mul_i32 s41, s41, 112")
    e("s_lshl_b32 s42, s%d, 2" % S_FB)
    e("s_add_u32 s42, s42, s%d" % S_WF)
    e("s_lshl_b32 s42, s42, 1")
    e("s_add_u32 s41, s41, s42")
    e("s_lshl_b32 s41, s41, 11")
    e("v_lshlrev_b32 v26, 4, v%d" % V_LANE)
    e("v_add_u32 v26, s41, v26")
    e("v_add_u32 v27, 0x%x, v26" % (112 * 2048))
    e("s_mov_b32 s42, 0x%08x" % f2u(-LOG2E))
    e("s_mov_b32 s43, s42")
    e("s_mov_b32 s44, 1.0")
    e("s_mov_b32 s45, 1.0")
    e("s_nop 7")
    grp = 0
    for nb in range(4):
        for hf in range(2):
            outb = FR + 4 * (grp % 8); grp += 1
            A = accA(nb) + 8 * hf; B = accB(nb) + 8 * hf
            for q in range(0, 8, 2):
                e("v_pk_mul_f32 %s, %s, s[42:43]" % (vr(A + q, 2), vr(A + q, 2)))
            for q in range(8):
                e("v_exp_f32 v%d, v%d" % (A + q, A + q))
            for q in range(0, 8, 2):
                e("v_pk_add_f32 %s, %s, s[44:45]" % (vr(A + q, 2), vr(A + q, 2)))
            for q in range(8):
                e("v_rcp_f32 v%d, v%d" % (A + q, A + q))
            for q in range(0, 8, 2):
                e("v_pk_mul_f32 %s, %s, %s" % (vr(A + q, 2), vr(A + q, 2), vr(B + q, 2)))
            for q2 in range(4):
                e("v_cvt_pk_bf16_f32 v%d, v%d, v%d" % (outb + q2, A + 2 * q2, A + 2 * q2 + 1))
            e("buffer_store_dwordx4 %s, v%d, s[%d:%d], 0 offen offset:%d%s" % (vr(outb, 4), 26 + (nb >> 1), S_WS, S_WS + 3, hf * 2048 + (nb & 1) * 1024, sc))
            e.vm_issue("hst")

def d_epilogue(e, cfg):
    sc = " sc1" if cfg.fused else ""
    L = V_LANE
    ZB = [192, 208, 224, 240]
    e("s_nop 7"); e("s_nop 3")
    for sb in range(4):
        for hf in range(2):
            for pr in range(4):
                q = 8 * hf + 2 * pr
                e("v_cvt_pk_bf16_f32 v%d, v%d, v%d" % (ZB[sb] + 4 * hf + pr, accA(sb) + q, accA(sb) + q + 1))
                e("v_cvt_pk_bf16_f32 v%d, v%d, v%d" % (ZB[sb] + 8 + 4 * hf + pr, accB(sb) + q, accB(sb) + q + 1))
    e("s_barrier")
    e("v_lshlrev_b32 v2, 4, v%d" % L)
    def cread(sb):
        b = 10 + 24 * (sb & 1)
        for k in range(6):
            e("ds_read_b128 %s, v2 offset:%d" % (vr(b + 4 * k, 4), CONST_LDS + (sb * 6 + k) * 1024))
            e.lg_issue(("c", sb, k))
    cread(0); cread(1)
    for sb in range(4):
        b = 10 + 24 * (sb & 1)
        C0, C1, S0, S1, N0, N1 = [b + 4 * k for k in range(6)]
        ZR0, ZR1, ZI0, ZI1 = ZB[sb], ZB[sb] + 4, ZB[sb] + 8, ZB[sb] + 12
        e.lg_wait([("c", sb, k) for k in range(6)])
        mfma(e, accA(sb), C0, ZR0, "0")
        mfma(e, accB(sb), C0, ZI0, "0")
        mfma(e, accA(sb), C1, ZR1)
        mfma(e, accB(sb), C1, ZI1)
        mfma(e, accA(sb), S0, ZI0)
        mfma(e, accB(sb), N0, ZR0)
        mfma(e, accA(sb), S1, ZI1)
        mfma(e, accB(sb), N1, ZR1)
        if sb + 2 < 4:
            cread(sb + 2)
    e("s_lshl_b32 s41, s%d, 8" % S_QG)
    e("s_lshl_b32 s42, s%d, 7" % S_EH)
    e("s_add_u32 s41, s41, s42")
    e("s_lshl_b32 s42, s%d, 5" % S_WF)
    e("s_add_u32 s41, s41, s42")
    e("s_lshl_b32 s41, s41, 4")
    e("s_add_u32 s41, s41, 0x%x" % UBUF)
    e("v_and_b32 v3, 31, v%d" % L)
    e("v_lshlrev_b32 v3, 4, v3")
    e("v_lshrrev_b32 v4, 5, v%d" % L)
    e("v_lshlrev_b32 v4, 18, v4")
    e("v_add3_u32 v3, v3, v4, s41")
    e("s_nop 7"); e("s_nop 3")
    for q in range(16):
        i, jj = q >> 2, q & 3
        pk = 192 + 4 * (q % 8)
        for sb in range(4):
            e("v_cvt_pk_bf16_f32 v%d, v%d, v%d" % (pk + sb, accA(sb) + q, accB(sb) + q))
        e("s_mov_b32 s%d, 0x%x" % (S_OFF, (8 * i + jj) * 65536))
        e("buffer_store_dwordx4 %s, v3, s[%d:%d], s%d offen%s" % (vr(pk, 4), S_WS, S_WS + 3, S_OFF, sc))
        e.vm_issue("ust")

def p1_loader(e, cfg, is_h):
    L = V_LANE; T = 26
    VX = 10
    VW = 14
    e("v_lshrrev_b32 v%d, 3, v%d" % (T, L))
    e("s_lshl_b32 s41, s%d, 5" % S_LW)
    e("v_add_u32 v%d, s41, v%d" % (T, T))
    e("v_and_b32 v%d, 7, v%d" % (T + 1, L))
    e("v_lshrrev_b32 v%d, 4, v%d" % (T + 2, L))
    e("s_movk_i32 s42, 896")
    for i in range(4):
        if i: e("v_add_u32 v%d, 8, v%d" % (T, T))
        e("v_add_u32 v%d, %d, v%d" % (T + 3, (4 * i) & 7, T + 2))
        e("v_and_b32 v%d, 7, v%d" % (T + 3, T + 3))
        e("v_xor_b32 v%d, v%d, v%d" % (T + 3, T + 3, T + 1))
        e("v_lshlrev_b32 v%d, 4, v%d" % (T + 3, T + 3))
        if is_h:
            e("v_lshrrev_b32 v%d, 6, v%d" % (T + 4, T))
            e("v_and_b32 v%d, 63, v%d" % (T + 5, T))
            e("v_lshlrev_b32 v%d, 5, v%d" % (T + 5, T + 5))
            e("s_lshl_b32 s41, s%d, 1" % S_R)
            e("v_add3_u32 v%d, v%d, v%d, s41" % (T + 4, T + 4, T + 5))
        else:
            e("v_and_b32 v%d, 31, v%d" % (T + 4, T))
            e("v_lshlrev_b32 v%d, 6, v%d" % (T + 4, T + 4))
            e("v_lshrrev_b32 v%d, 5, v%d" % (T + 5, T))
            e("s_lshl_b32 s41, s%d, 2" % S_QG)
            e("v_add3_u32 v%d, v%d, v%d, s41" % (T + 4, T + 4, T + 5))
        e("v_mul_lo_u32 v%d, v%d, s42" % (T + 4, T + 4))
        e("v_add_u32 v%d, v%d, v%d" % (VX + i, T + 4, T + 3))
        if not is_h:
            e("s_lshl_b32 s41, s%d, 7" % S_EH)
            e("v_add_u32 v%d, s41, v%d" % (T + 4, T))
            e("v_mul_lo_u32 v%d, v%d, s42" % (T + 4, T + 4))
            e("v_add_u32 v%d, v%d, v%d" % (VW + i, T + 4, T + 3))
    if is_h:
        e("s_lshl_b32 s41, s%d, 3" % S_LW)
        e("v_add_u32 v%d, s41, v%d" % (T + 3, T + 2))
        e("s_movk_i32 s42, 3584")
        e("v_mul_lo_u32 v%d, v%d, s42" % (T + 3, T + 3))
        e("v_bfe_u32 v%d, v%d, 2, 2" % (T + 4, L))
        e("v_xor_b32 v%d, v%d, v%d" % (T + 4, T + 4, T + 2))
        e("v_lshlrev_b32 v%d, 6, v%d" % (T + 4, T + 4))
        e("v_and_b32 v%d, 3, v%d" % (T + 5, L))
        e("v_lshlrev_b32 v%d, 4, v%d" % (T + 5, T + 5))
        e("v_add3_u32 v%d, v%d, v%d, v%d" % (T + 3, T + 3, T + 4, T + 5))
        e("s_lshl_b32 s41, s%d, 8" % S_FB)
        e("v_add_u32 v%d, s41, v%d" % (VW, T + 3))
        e("v_add_u32 v%d, %d, v%d" % (VW + 1, 4 * 3584, VW))
        e("s_lshl_b32 s%d, s%d, 11" % (S_LDSW, S_LW))
    else:
        e("s_lshl_b32 s%d, s%d, 12" % (S_LDSW, S_LW))
    e("s_lshl_b32 s%d, s%d, 12" % (S_LDSX, S_LW))
    e("s_waitcnt lgkmcnt(0)")
    srd(e, S_X, 44, 1835008)
    if is_h:
        srd(e, S_WA, 52, 1605632); srd(e, S_WB, 54, 1605632)
    else:
        srd(e, S_WA, 48, 401408); srd(e, S_WB, 50, 401408)
    srd(e, S_WS, 74, WS_BYTES)
    srd(e, S_GW, 58, 896)
    srd(e, S_WD, 56, 1605632)
    stamp(e, cfg, 0)
    DROT = (not is_h) and ("nodrot" not in cfg.x)
    if DROT:
        e("s_mul_i32 s7, s%d, 3" % S_EH)
        e("s_add_u32 s6, s%d, s7" % S_QG)
        e("s_mul_i32 s7, s6, 37")
        e("s_lshr_b32 s7, s7, 8")
        e("s_mul_i32 s7, s7, 7")
        e("s_sub_u32 s6, s6, s7")
        e("s_mov_b32 s7, s6")
    def dx(c):
        if DROT:
            e("s_lshl_b32 s%d, s6, 7" % S_OFF)
            for i in range(4): dma(e, S_X, VX + i, (c % NX) * XSLOT + i * 1024, S_LDSX, None, ("x", c))
            rot_next(e, 6, 7)
        else:
            for i in range(4): dma(e, S_X, VX + i, (c % NX) * XSLOT + i * 1024, S_LDSX, c * 128, ("x", c))
    def dw(j):
        if is_h:
            for m in range(2):
                for i in range(2):
                    dma(e, S_WA if m == 0 else S_WB, VW + i, WBASE + (j % NW) * WSLOT + m * 8192 + i * 1024, S_LDSW, j * 32 * 3584, ("w", j))
        else:
            c = j
            if DROT: e("s_lshl_b32 s%d, s7, 7" % S_OFF)
            for m in range(2):
                for i in range(4):
                    dma(e, S_WA if m == 0 else S_WB, VW + i, WBASE + (c % 3) * 32768 + m * 16384 + i * 1024, S_LDSW, None if DROT else c * 128, ("w", c))
            if DROT: rot_next(e, 7, 7)
    q = []
    if is_h:
        for j in range(14):
            if j % 2 == 0:
                c = j // 2
                q.append(("x", c, -1 if c < NX else 2 * (c - NX + 1)))
            q.append(("w", j, -1 if j < NW else j - NW + 1))
    else:
        for c in range(7):
            q.append(("x", c, -1 if c < NX else 2 * (c - NX + 1)))
            q.append(("w", c, -1 if c < 3 else 2 * (c - 3 + 1)))
    def cost(it): return 4 if (it[0] == "x" or is_h) else 8
    def issue(it):
        (dx if it[0] == "x" else dw)(it[1])
    def need(j):
        t = []
        for jj in (j, j + 1):
            if jj <= 13:
                t.append(("x", jj >> 1)); t.append(("w", jj if is_h else jj >> 1))
        return t
    issued = set()
    def ensure(tags):
        while q and any(t not in issued for t in tags):
            it = q.pop(0); assert it[2] <= curbar[0], (it, curbar)
            issue(it); issued.add((it[0], it[1]))
    curbar = [-1]
    ensure(need(0))
    budget0 = cfg.pro_extra
    while q and budget0 > 0 and q[0][2] <= -1:
        it = q.pop(0); issue(it); issued.add((it[0], it[1])); budget0 -= cost(it)
    e.vm_wait(need(0))
    e("s_barrier")
    stamp(e, cfg, 1)
    if "nodma" in cfg.x: NODMA[0] = True
    for j in range(13):
        curbar[0] = j
        ensure(need(j + 1))
        budget = cfg.stage_budget
        while q and budget > 0 and q[0][2] <= j:
            it = q.pop(0); issue(it); issued.add((it[0], it[1])); budget -= cost(it)
        if j == 9 and not is_h: dft_consts(e, cfg)
        if j == 7 and is_h:
            gate_issue(e, cfg, True)
            lab = e.newlabel("GX")
            e("s_cmp_ge_u32 s%d, 2" % S_FB)
            e("s_cbranch_scc1 %s" % lab)
            sv = list(e.vm)
            gate_issue(e, cfg, True, True)
            e.vm = sv
            e.label(lab)
        if j == 10 and is_h:
            e("s_waitcnt vmcnt(0)"); e.vm = []
            gate_finish(e, cfg)
            lab = e.newlabel("GY")
            e("s_cmp_ge_u32 s%d, 2" % S_FB)
            e("s_cbranch_scc1 %s" % lab)
            gate_finish(e, cfg, True)
            e.label(lab)
        if j == 11 and cfg.fused:
            e("s_waitcnt vmcnt(0)"); e.vm = []
        e.vm_wait(need(j + 1))
        e("s_barrier")
    assert not q
    NODMA[0] = False
    stamp(e, cfg, 2)
    if not is_h:
        e("v_lshlrev_b32 v2, 4, v%d" % L)
        e("s_mul_i32 s41, s%d, 6144" % S_LW)
        e("v_add_u32 v2, s41, v2")
        for k in range(6):
            e("ds_write_b128 v2, %s offset:%d" % (vr(64 + 4 * k, 4), CONST_LDS + k * 1024))
        e("s_waitcnt lgkmcnt(0)")
        e("s_barrier")

def gate_issue(e, cfg, is_h, extra=False):
    B = 40 if extra else 48
    e("s_lshl_b32 s41, s%d, 3" % S_FB)
    if extra: e("s_add_u32 s41, s41, 112")
    e("s_lshl_b32 s42, s%d, 1" % S_LW)
    e("s_add_u32 s41, s41, s42")
    e("s_lshl_b32 s78, s%d, 7" % S_R)
    e("s_add_u32 s%d, s78, s41" % (77 if extra else 76))
    e("v_lshlrev_b32 v38, 4, v%d" % V_LANE)
    e("v_cmp_gt_u32 vcc, 56, v%d" % V_LANE)
    e("v_mov_b32 v37, 0x7fffffff")
    for u in range(2):
        e("s_add_u32 s78, s41, %d" % u)
        e("s_lshr_b32 s43, s78, 6")
        e("s_lshl_b32 s79, s%d, 1" % S_R)
        e("s_add_u32 s43, s43, s79")
        e("s_and_b32 s78, s78, 63")
        e("s_lshl_b32 s78, s78, 5")
        e("s_add_u32 s43, s43, s78")
        e("s_mul_i32 s43, s43, 896")
        if extra:
            e("s_cmp_ge_u32 s%d, 2" % S_FB)
            e("s_cselect_b32 s43, 0x40000000, s43")
        e("v_add_u32 v39, s43, v38")
        e("v_cndmask_b32 v39, v37, v39, vcc")
        e("buffer_load_dwordx4 %s, v39, s[%d:%d], 0 offen" % (vr(B + 4 * u, 4), S_X, S_X + 3))
        e.vm_issue("gate")
    if not extra:
        e("buffer_load_dwordx4 v[56:59], v38, s[%d:%d], 0 offen" % (S_GW, S_GW + 3))
        e.vm_issue("gate")

def gate_finish(e, cfg, extra=False):
    B = 40 if extra else 48
    e.vm_wait(["gate"])
    for u in range(2):
        e("v_mov_b32 v%d, 0" % (60 + u))
    for i in range(4):
        for u in range(2):
            e("v_dot2_f32_bf16 v%d, v%d, v%d, v%d" % (60 + u, B + 4 * u + i, 56 + i, 60 + u))
    e("s_nop 2")
    for sh in ("row_shr:1", "row_shr:2", "row_shr:4", "row_shr:8"):
        for u in range(2):
            e("v_add_f32_dpp v%d, v%d, v%d %s row_mask:0xf bank_mask:0xf bound_ctrl:0" % (60 + u, 60 + u, 60 + u, sh))
        e("s_nop 0")
    for u in range(2):
        e("v_add_f32_dpp v%d, v%d, v%d row_bcast:15 row_mask:0xa bank_mask:0xf" % (60 + u, 60 + u, 60 + u))
    e("s_nop 0")
    for u in range(2):
        e("v_add_f32_dpp v%d, v%d, v%d row_bcast:31 row_mask:0xc bank_mask:0xf" % (60 + u, 60 + u, 60 + u))
    e("s_nop 0")
    e("v_readlane_b32 s41, v60, 63")
    e("v_readlane_b32 s42, v61, 63")
    e("s_nop 1")
    e("v_mov_b32 v60, s41")
    e("v_mov_b32 v61, s42")
    e("v_cmp_eq_u32 vcc, 1, v%d" % V_LANE)
    e("s_nop 1")
    e("v_cndmask_b32 v60, v60, v61, vcc")
    e("v_mul_f32 v60, 0x%08x, v60" % f2u(-LOG2E))
    e("v_exp_f32 v60, v60")
    e("s_nop 0")
    e("v_add_f32 v60, 1.0, v60")
    e("v_rcp_f32 v60, v60")
    e("s_lshl_b32 s44, s%d, 2" % (77 if extra else 76))
    e("s_add_u32 s44, s44, 0x%x" % GBUF)
    if extra:
        e("s_cmp_ge_u32 s%d, 2" % S_FB)
        e("s_cselect_b32 s44, 0x40000000, s44")
    e("v_lshlrev_b32 v62, 2, v%d" % V_LANE)
    e("v_add_u32 v62, s44, v62")
    e("v_cmp_gt_u32 vcc, 2, v%d" % V_LANE)
    e("v_mov_b32 v37, 0x7fffffff")
    e("s_nop 0")
    e("v_cndmask_b32 v62, v37, v62, vcc")
    e("buffer_store_dword v60, v62, s[%d:%d], 0 offen%s" % (S_WS, S_WS + 3, " sc1" if cfg.fused else ""))
    e.vm_issue("gst")

def dft_consts(e, cfg):
    L = V_LANE
    e("v_and_b32 v26, 31, v%d" % L)
    e("v_lshrrev_b32 v27, 5, v%d" % L)
    e("v_lshlrev_b32 v27, 8, v27")
    e("s_lshl_b32 s41, s%d, 2" % S_QG)
    e("s_add_u32 s41, s41, s%d" % S_LW)
    e("v_add_u32 v27, s41, v27")
    e("s_mov_b32 s42, 0x%08x" % f2u(1.0 / 2048))
    for hf in range(2):
        for pr in range(4):
            for u in range(2):
                idx = 2 * pr + u
                s1c = 16 * hf + 8 * (idx >> 2) + (idx & 3)
                e("v_add_u32 v28, %d, v27" % (64 * s1c))
                e("v_mul_u32_u24 v28, v28, v26")
                e("v_and_b32 v28, 0x7ff, v28")
                e("v_cvt_f32_u32 v28, v28")
                e("v_mul_f32 v28, s42, v28")
                e("v_cos_f32 v%d, v28" % (30 + u))
                e("v_sin_f32 v%d, v28" % (32 + u))
            e("s_nop 0")
            e("v_cvt_pk_bf16_f32 v%d, v30, v31" % (64 + 4 * hf + pr))
            e("v_cvt_pk_bf16_f32 v%d, v32, v33" % (72 + 4 * hf + pr))
            e("v_xor_b32 v%d, 0x80008000, v%d" % (80 + 4 * hf + pr, 72 + 4 * hf + pr))

def entry_common(e):
    e("v_and_b32 v%d, 63, v0" % V_LANE)
    e("v_lshrrev_b32 v2, 6, v0")
    e("s_nop 0")
    e("v_readfirstlane_b32 s%d, v2" % S_WAVE)
    e("s_nop 3")

def phase1(e, cfg, after_h_consumer, after_h_loader, after_d):
    e("s_and_b32 s%d, s%d, 3" % (S_WF, S_WAVE))
    e("s_and_b32 s%d, s%d, 3" % (S_LW, S_WAVE))
    e("s_and_b32 s41, s2, 7")
    e("s_lshr_b32 s42, s2, 3")
    e("s_cmp_ge_u32 s42, 28")
    e("s_cbranch_scc1 P1_DFT")
    e("s_mul_i32 s43, s42, 37")
    e("s_lshr_b32 s43, s43, 8")
    e("s_mul_i32 s76, s43, 7")
    e("s_sub_u32 s76, s42, s76")
    e("s_lshr_b32 s77, s41, 1")
    e("s_lshl_b32 s77, s77, 2")
    e("s_add_u32 s%d, s77, s43" % S_R)
    e("s_and_b32 s77, s41, 1")
    e("s_mul_i32 s77, s77, 7")
    e("s_add_u32 s%d, s77, s76" % S_FB)
    e("s_cmp_ge_u32 s%d, 4" % S_WAVE)
    e("s_cbranch_scc1 P1_H_LOADER")
    e.vm = []; e.lg = []
    p1_consumer(e, cfg, True)
    h_epilogue(e, cfg)
    stamp(e, cfg, 3)
    after_h_consumer()
    e.label("P1_H_LOADER")
    e.vm = []; e.lg = []
    p1_loader(e, cfg, True)
    stamp(e, cfg, 3)
    after_h_loader()
    e.label("P1_DFT")
    e("s_sub_u32 s42, s42, 28")
    e("s_and_b32 s%d, s41, 1" % S_EH)
    e("s_lshr_b32 s77, s41, 1")
    e("s_lshl_b32 s77, s77, 2")
    e("s_add_u32 s%d, s77, s42" % S_QG)
    e("s_cmp_ge_u32 s%d, 4" % S_WAVE)
    e("s_cbranch_scc1 P1_D_LOADER")
    e.vm = []; e.lg = []
    p1_consumer(e, cfg, False)
    d_epilogue(e, cfg)
    stamp(e, cfg, 3)
    after_d(True)
    e.label("P1_D_LOADER")
    e.vm = []; e.lg = []
    p1_loader(e, cfg, False)
    stamp(e, cfg, 3)
    after_d(False)

P2_ACC = 64
P2_H = 96
P2_A = 208
P2_U = 224
P2_T = 240
SLICE = 40960
KSL, NB = 60, 61

def p2_setup(e, cfg):
    L = V_LANE
    e("s_and_b32 s%d, s%d, 3" % (KSL, S_WAVE))
    e("s_lshr_b32 s%d, s%d, 2" % (NB, S_WAVE))
    e("v_lshrrev_b32 v2, 3, v%d" % L)
    e("v_bfe_u32 v3, v%d, 4, 1" % L)
    e("v_lshlrev_b32 v3, 2, v3")
    e("v_and_b32 v4, 7, v%d" % L)
    e("v_xor_b32 v3, v3, v4")
    e("v_lshlrev_b32 v3, 4, v3")
    e("s_mul_i32 s41, s%d, 448" % KSL)
    e("s_lshl_b32 s42, s%d, 3" % NB)
    e("s_add_u32 s41, s41, s42")
    e("v_add_u32 v2, s41, v2")
    e("s_movk_i32 s42, 896")
    e("v_mul_lo_u32 v2, v2, s42")
    e("s_lshl_b32 s41, s%d, 7" % S_C)
    e("v_add3_u32 v10, v2, v3, s41")
    e("s_mul_i32 s62, s%d, %d" % (KSL, SLICE))
    e("s_lshl_b32 s41, s%d, 10" % NB)
    e("s_add_u32 s62, s62, s41")
    e("v_and_b32 v2, 15, v%d" % L)
    e("v_lshrrev_b32 v3, 2, v2")
    e("v_lshrrev_b32 v4, 5, v%d" % L)
    e("v_lshlrev_b32 v5, 2, v4")
    e("v_add_u32 v5, v5, v3")
    e("v_lshlrev_b32 v5, 7, v5")
    e("v_bfe_u32 v6, v2, 3, 1")
    e("v_lshlrev_b32 v6, 6, v6")
    e("v_bfe_u32 v7, v%d, 4, 1" % L)
    e("v_lshlrev_b32 v7, 5, v7")
    e("v_and_b32 v8, 3, v2")
    e("v_lshlrev_b32 v8, 3, v8")
    e("v_add3_u32 v5, v5, v6, v7")
    e("v_add_u32 v5, v5, v8")
    e("s_mul_i32 s41, s%d, %d" % (KSL, SLICE))
    e("v_add_u32 v11, s41, v5")
    e("v_xor_b32 v12, 64, v11")
    e("s_mul_i32 s41, s%d, 112" % S_T1)
    e("s_mul_i32 s42, s%d, 28" % KSL)
    e("s_add_u32 s41, s41, s42")
    e("s_lshl_b32 s41, s41, 1")
    e("s_add_u32 s41, s41, s%d" % NB)
    e("s_lshl_b32 s41, s41, 10")
    e("v_lshlrev_b32 v13, 4, v%d" % L)
    e("v_add_u32 v13, s41, v13")
    e("v_and_b32 v14, 31, v%d" % L)
    e("s_cmp_ge_u32 s%d, 4" % S_C)
    e("s_cselect_b32 s63, 1, 0")
    e("s_sub_u32 s64, 32, s%d" % S_T1)
    e("s_and_b32 s64, s64, 31")
    e("s_cmp_eq_u32 s63, 1")
    e("s_cselect_b32 s64, s64, s%d" % S_T1)
    e("v_lshrrev_b32 v4, 5, v%d" % L)
    e("s_lshl_b32 s41, s%d, 6" % S_C)
    e("s_cmp_eq_u32 s63, 1")
    e("s_cselect_b64 vcc, -1, 0")
    for mb in range(2):
        e("v_add_u32 v2, s41, v14")
        if mb: e("v_add_u32 v2, 32, v2")
        e("v_sub_u32 v3, 448, v2")
        e("v_cndmask_b32 v2, v2, v3, vcc")
        e("v_lshlrev_b32 v2, 4, v2")
        e("v_lshlrev_b32 v3, 12, v4")
        e("v_add_u32 v%d, v2, v3" % (16 + mb))
    e("s_lshl_b32 s41, s64, 4")
    e("s_lshl_b32 s42, s%d, 2" % KSL)
    e("s_add_u32 s41, s41, s42")
    e("s_lshl_b32 s41, s41, 12")
    e("s_add_u32 s65, s41, 0x%x" % UBUF)
    e("s_lshl_b32 s41, s%d, 6" % S_T1)
    e("s_lshl_b32 s42, s%d, 5" % NB)
    e("s_add_u32 s41, s41, s42")
    e("v_add_u32 v2, s41, v14")
    e("v_lshlrev_b32 v2, 2, v2")
    e("v_add_u32 v20, 0x%x, v2" % GBUF)

def p2_dma_wd(e, kk):
    st = kk >> 2
    pos = (st % 5) * 4 + (kk & 3)
    dma(e, S_WD, 10, pos * 2048, 62, kk * 16 * 896, ("wd", st))
def p2_load_h(e, cfg, kk):
    sc = " sc1" if cfg.fused else ""
    e("s_mov_b32 s%d, 0x%x" % (S_OFF, kk * 2048))
    e("buffer_load_dwordx4 %s, v13, s[%d:%d], s%d offen%s" % (vr(P2_H + 4 * kk, 4), S_WS, S_WS + 3, S_OFF, sc))
    e.vm_issue(("h", kk))
def p2_load_g(e, cfg):
    sc = " sc1" if cfg.fused else ""
    e("buffer_load_dword v15, v20, s[%d:%d], 0 offen%s" % (S_WS, S_WS + 3, sc))
    e.vm_issue("g")
def p2_load_u(e, cfg):
    sc = " sc1" if cfg.fused else ""
    for u in range(2):
        for mb in range(2):
            e("s_add_u32 s%d, s65, %d" % (S_OFF, u * 2 * 4096))
            e("buffer_load_dwordx4 %s, v%d, s[%d:%d], s%d offen%s" % (vr(P2_U + 8 * u + 4 * mb, 4), 16 + mb, S_WS, S_WS + 3, S_OFF, sc))
            e.vm_issue("u")
def p2_tfrags(e, cfg):
    L = V_LANE
    e.vm_wait(["g"])
    e("s_cmp_lg_u32 s%d, 0" % S_T1)
    e("s_cselect_b32 s41, s63, 0")
    e("s_lshl_b32 s42, s%d, 5" % NB)
    e("s_add_u32 s41, s41, s42")
    e("v_add_u32 v2, s41, v14")
    e("v_lshrrev_b32 v4, 5, v%d" % L)
    e("v_lshlrev_b32 v4, 2, v4")
    e("s_lshl_b32 s41, s63, 31")
    e("v_xor_b32 v21, s41, v15")
    e("s_mov_b32 s42, 0x%08x" % f2u(1.0 / 64))
    e("s_lshl_b32 s43, s%d, 4" % KSL)
    e("v_add_u32 v4, s43, v4")
    for u in range(2):
        for q in range(4):
            e("v_add_u32 v3, %d, v4" % (8 * u + q))
            e("v_mul_u32_u24 v3, v3, v2")
            e("v_and_b32 v3, 63, v3")
            e("v_cvt_f32_u32 v3, v3")
            e("v_mul_f32 v3, s42, v3")
            e("v_cos_f32 v5, v3")
            e("v_sin_f32 v6, v3")
            e("s_nop 0")
            e("v_mul_f32 v5, v5, v15")
            e("v_mul_f32 v6, v6, v21")
            e("v_cvt_pk_bf16_f32 v%d, v5, v6" % (P2_T + 4 * u + q))
    e("v_sub_f32 v18, 1.0, v15")
    e("v_mov_b32 v19, v18")

def p2_main(e, cfg, wd_pre=0):
    L = V_LANE
    def reads(kk):
        b = P2_A + 8 * (kk & 1)
        st = kk >> 2
        pos = (st % 5) * 4 + (kk & 3)
        for mb in range(2):
            for ip in range(2):
                e("ds_read_b64_tr_b16 %s, v%d offset:%d" % (vr(b + 4 * mb + 2 * ip, 2), 11 + mb, pos * 2048 + ip * 1024))
                e.lg_issue(("A", kk, mb))
    def issue_h(st):
        if st > 6: return
        for kk in range(4 * st, 4 * st + 4): p2_load_h(e, cfg, kk)
    def issue_w(st):
        if st > 6 or st < wd_pre: return
        for kk in range(4 * st, 4 * st + 4): p2_dma_wd(e, kk)
    def issue_both(st):
        if st > 6: return
        for kk in range(4 * st, 4 * st + 4):
            if st >= wd_pre: p2_dma_wd(e, kk)
            p2_load_h(e, cfg, kk)
    LA = cfg.p2_la
    p2_load_g(e, cfg)
    if cfg.fused:
        for st in range(LA): issue_h(st)
        p2_tfrags(e, cfg)
    else:
        for st in range(LA): issue_both(st)
        p2_tfrags(e, cfg)
        e.vm_wait([("wd", 0), ("wd", 1)])
        e("s_barrier")
    stamp(e, cfg, 1 if not cfg.fused else 6)
    reads(0)
    for kk in range(28):
        st = kk >> 2
        if (kk & 3) == 0:
            if cfg.fused:
                if st >= 1: issue_w(st + 4)
                issue_h(st + LA)
            else:
                issue_both(st + LA)
                if st + LA == 7:
                    p2_load_u(e, cfg)
        if kk + 1 < 28: reads(kk + 1)
        e.vm_wait([("h", kk)])
        b = P2_A + 8 * (kk & 1)
        for mb in range(2):
            e.lg_wait([("A", kk, mb)])
            mfma(e, P2_ACC + 16 * mb, b + 4 * mb, P2_H + 4 * kk, "0" if kk == 0 else None)
        if (kk & 3) == 3 and st < 6:
            e.vm_wait([("wd", st + 2)])
            if cfg.fused and st == cfg.p2_dpoll:
                lab = e.newlabel("DP")
                e("s_cmp_lg_u32 s%d, 0" % S_WAVE)
                e("s_cbranch_scc1 %s" % lab)
                e("s_mov_b32 s%d, 0x%x" % (S_PF, FLAGS + 16 * 128))
                poll(e, S_PF, 32)
                e.label(lab)
            e("s_barrier")
            if cfg.fused and st == cfg.p2_dpoll:
                p2_load_u(e, cfg)
    assert not e.lg
    stamp(e, cfg, 2 if not cfg.fused else 7)
    e.vm_wait(["u"])
    e("s_nop 7"); e("s_nop 3")
    for i in range(0, 32, 2):
        e("v_pk_mul_f32 %s, %s, v[18:19]" % (vr(P2_ACC + i, 2), vr(P2_ACC + i, 2)))
    e("s_nop 1")
    for u in range(2):
        for mb in range(2):
            mfma(e, P2_ACC + 16 * mb, P2_U + 8 * u + 4 * mb, P2_T + 4 * u)
    e("s_barrier")
    e("v_lshlrev_b32 v2, 4, v%d" % L)
    e("s_lshl_b32 s41, s%d, 13" % S_WAVE)
    e("v_add_u32 v3, s41, v2")
    e("s_nop 7"); e("s_nop 1")
    for qd in range(4):
        for hf in range(2):
            e("ds_write_b128 v3, %s offset:%d" % (vr(P2_ACC + 8 * qd + 4 * hf, 4), qd * 2048 + hf * 1024))
    e("s_waitcnt lgkmcnt(0)")
    e("s_barrier")
    e("s_lshl_b32 s41, s%d, 15" % NB)
    e("s_lshl_b32 s42, s%d, 11" % KSL)
    e("s_add_u32 s41, s41, s42")
    e("v_add_u32 v3, s41, v2")
    for k in range(4):
        for hf in range(2):
            e("ds_read_b128 %s, v3 offset:%d" % (vr(96 + 8 * k + 4 * hf, 4), k * 8192 + hf * 1024))
    e("s_lshl_b32 s41, s%d, 5" % NB)
    e("v_add_u32 v2, s41, v14")
    e("v_lshlrev_b32 v2, 5, v2")
    e("v_add_u32 v2, s%d, v2" % S_T1)
    e("s_movk_i32 s42, 896")
    e("v_mul_lo_u32 v2, v2, s42")
    e("s_lshl_b32 s41, s%d, 7" % S_C)
    e("s_lshl_b32 s42, s%d, 5" % KSL)
    e("s_add_u32 s41, s41, s42")
    e("v_lshrrev_b32 v4, 5, v%d" % L)
    e("v_lshlrev_b32 v4, 4, v4")
    e("v_add3_u32 v2, v2, v4, s41")
    e("s_waitcnt lgkmcnt(0)")
    for q in range(0, 8, 2):
        e("v_pk_add_f32 %s, %s, %s" % (vr(96 + q, 2), vr(96 + q, 2), vr(104 + q, 2)))
        e("v_pk_add_f32 %s, %s, %s" % (vr(112 + q, 2), vr(112 + q, 2), vr(120 + q, 2)))
    for q in range(0, 8, 2):
        e("v_pk_add_f32 %s, %s, %s" % (vr(96 + q, 2), vr(96 + q, 2), vr(112 + q, 2)))
    for q in range(4):
        e("v_cvt_pk_bf16_f32 v%d, v%d, v%d" % (128 + q, 96 + 2 * q, 96 + 2 * q + 1))
    e("s_nop 1")
    e("v_permlane32_swap_b32 v128, v130")
    e("v_permlane32_swap_b32 v129, v131")
    e("buffer_store_dwordx4 v[128:131], v2, s[%d:%d], 0 offen" % (S_OUT, S_OUT + 3))
    stamp(e, cfg, 3 if not cfg.fused else 8)

def p2_role(e):
    e("s_and_b32 s41, s2, 7")
    e("s_lshr_b32 s42, s2, 3")
    e("s_mul_i32 s43, s42, 37")
    e("s_lshr_b32 s43, s43, 8")
    e("s_mul_i32 s76, s43, 7")
    e("s_sub_u32 s%d, s42, s76" % S_C)
    e("s_lshl_b32 s41, s41, 2")
    e("s_add_u32 s%d, s41, s43" % S_T1)

def header(e, name):
    e.raw(".text"); e.raw(".globl %s" % name); e.raw(".p2align 8"); e.raw(".type %s,@function" % name); e.label(name)

def kernel1(e, cfg):
    header(e, "k1_kernel")
    e("s_cmp_ge_u32 s2, 256")
    e("s_cbranch_scc1 K1_END")
    kernarg_loads(e)
    entry_common(e)
    def fin():
        stamp_store(e, cfg, 0)
        e("s_endpgm")
    phase1(e, cfg, fin, fin, lambda c: fin())
    e.label("K1_END")
    e("s_endpgm")

def kernel2(e, cfg):
    header(e, "k2_kernel")
    e.vm = []; e.lg = []
    e("s_cmp_ge_u32 s2, 256")
    e("s_cbranch_scc1 K2_END")
    e("s_lshr_b32 s42, s2, 3")
    e("s_cmp_ge_u32 s42, 28")
    e("s_cbranch_scc1 K2_END")
    kernarg_loads(e)
    entry_common(e)
    p2_role(e)
    p2_setup(e, cfg)
    e("s_waitcnt lgkmcnt(0)")
    srd(e, S_WS, 74, WS_BYTES)
    srd(e, S_OUT, 46, 1835008)
    srd(e, S_WD, 56, 1605632)
    stamp(e, cfg, 0)
    p2_main(e, cfg, 0)
    stamp_store(e, cfg, 0x40000)
    e.label("K2_END")
    e("s_endpgm")


def nonce_issue(e):
    lab = e.newlabel("NONCE")
    srd(e, S_DBG, 72, 256)
    e("s_or_b32 s41, s2, s%d" % S_WAVE)
    e("s_cmp_lg_u32 s41, 0")
    e("s_cbranch_scc1 %s" % lab)
    e("s_memrealtime s[42:43]")
    e("s_waitcnt lgkmcnt(0)")
    e("s_or_b32 s42, s42, 1")
    e("v_mov_b32 v4, s42")
    e("v_lshlrev_b32 v5, 20, v%d" % V_LANE)
    e("buffer_store_dword v4, v5, s[%d:%d], 0 offen sc1" % (S_DBG, S_DBG + 3))
    e.label(lab)
    e("v_mov_b32 v7, 0")

def nonce_load(e):
    e("buffer_load_dword v4, v7, s[%d:%d], 0 offen sc1" % (S_DBG, S_DBG + 3))

def nonce_finish(e):
    nonce_finish_any(e)

def flag_addr(e, is_h):
    if is_h:
        e("s_lshl_b32 s41, s%d, 9" % S_R)
        e("s_lshl_b32 s42, s%d, 2" % S_FB)
    else:
        e("s_lshl_b32 s41, s%d, 1" % S_QG)
        e("s_add_u32 s41, s41, s%d" % S_EH)
        e("s_lshl_b32 s42, s41, 2")
        e("s_movk_i32 s41, %d" % (16 * 512))
    e("s_add_u32 s41, s41, s42")
    e("s_add_u32 s%d, s41, 0x%x" % (S_FLAG, FLAGS))

def flag_store(e):
    e("v_mov_b32 v60, s%d" % S_NONCE)
    e("v_lshlrev_b32 v61, 24, v%d" % V_LANE)
    e("v_add_u32 v61, s%d, v61" % S_FLAG)
    e("buffer_store_dword v60, v61, s[%d:%d], 0 offen sc1" % (S_WS, S_WS + 3))

def poll_prep(e, sbase, nflags):
    e("v_lshlrev_b32 v61, 2, v%d" % V_LANE)
    e("v_add_u32 v61, s%d, v61" % sbase)
    e("v_cmp_gt_u32 vcc, %d, v%d" % (nflags, V_LANE))
    e("v_mov_b32 v60, 0x7fffffff")
    e("s_nop 0")
    e("v_cndmask_b32 v61, v60, v61, vcc")
def poll_issue(e):
    e("buffer_load_dword v60, v61, s[%d:%d], 0 offen sc1" % (S_WS, S_WS + 3))
def poll_loop(e, nflags, first_issued):
    top = e.newlabel("POLL"); done = e.newlabel("POLLD"); chk = e.newlabel("POLLC")
    e("s_mov_b32 s41, 0")
    if first_issued: e("s_branch %s" % chk)
    e.label(top)
    poll_issue(e)
    e.label(chk)
    e("s_waitcnt vmcnt(0)")
    e("v_cmp_eq_u32 vcc, s%d, v60" % S_NONCE)
    e("s_nop 1")
    mask = (1 << nflags) - 1
    e("s_and_b32 s42, vcc_lo, 0x%x" % (mask & 0xffffffff))
    e("s_cmp_eq_u32 s42, 0x%x" % (mask & 0xffffffff))
    e("s_cbranch_scc1 %s" % done)
    e("s_add_u32 s41, s41, 1")
    e("s_cmp_ge_u32 s41, 0x40000")
    e("s_cbranch_scc1 %s" % done)
    e("s_branch %s" % top)
    e.label(done)
def poll(e, sbase, nflags, drain=True):
    poll_prep(e, sbase, nflags)
    poll_loop(e, nflags, False)

def poll_loop56(e):
    top = e.newlabel("POLL"); done = e.newlabel("POLLD")
    e("s_mov_b32 s41, 0")
    e.label(top)
    poll_issue(e)
    e("s_waitcnt vmcnt(0)")
    e("v_cmp_eq_u32 vcc, s%d, v60" % S_NONCE)
    e("s_nop 1")
    e("s_and_b32 s43, vcc_hi, 0xffffff")
    e("s_cmp_eq_u32 s43, 0xffffff")
    e("s_cselect_b32 s42, vcc_lo, 0")
    e("s_cmp_eq_u32 s42, -1")
    e("s_cbranch_scc1 %s" % done)
    e("s_add_u32 s41, s41, 1")
    e("s_cmp_ge_u32 s41, 0x40000")
    e("s_cbranch_scc1 %s" % done)
    e("s_branch %s" % top)
    e.label(done)

def poll2(e, sline1, line2):
    top = e.newlabel("POLL"); done = e.newlabel("POLLD")
    e("v_lshlrev_b32 v61, 2, v%d" % V_LANE)
    e("v_add_u32 v62, 0x%x, v61" % line2)
    e("v_add_u32 v61, s%d, v61" % sline1)
    e("v_mov_b32 v60, 0x7fffffff")
    e("v_cmp_gt_u32 vcc, 56, v%d" % V_LANE)
    e("s_nop 1")
    e("v_cndmask_b32 v61, v60, v61, vcc")
    e("v_cmp_gt_u32 vcc, 32, v%d" % V_LANE)
    e("s_nop 1")
    e("v_cndmask_b32 v62, v60, v62, vcc")
    e("s_mov_b32 s41, 0")
    e.label(top)
    e("buffer_load_dword v60, v61, s[%d:%d], 0 offen sc1" % (S_WS, S_WS + 3))
    e("buffer_load_dword v58, v62, s[%d:%d], 0 offen sc1" % (S_WS, S_WS + 3))
    e("s_waitcnt vmcnt(0)")
    e("v_cmp_eq_u32 vcc, s%d, v60" % S_NONCE)
    e("v_cmp_eq_u32 s[42:43], s%d, v58" % S_NONCE)
    e("s_nop 1")
    e("s_and_b32 s43, vcc_hi, 0xffffff")
    e("s_and_b32 s42, s42, vcc_lo")
    e("s_cmp_eq_u32 s43, 0xffffff")
    e("s_cselect_b32 s42, s42, 0")
    e("s_cmp_eq_u32 s42, -1")
    e("s_cbranch_scc1 %s" % done)
    e("s_add_u32 s41, s41, 1")
    e("s_cmp_ge_u32 s41, 0x40000")
    e("s_cbranch_scc1 %s" % done)
    e("s_branch %s" % top)
    e.label(done)

def kernel_fused(e, cfg):
    name = "gated_mix__spectral_fnet__glu_gated_glu__prompt_kernel"
    header(e, name)
    e("s_cmp_ge_u32 s2, 256")
    e("s_cbranch_scc1 KF_END")
    kernarg_loads(e)
    entry_common(e)
    def after_h_consumer():
        e.vm_wait_all()
        e("s_barrier")
        lab = e.newlabel("NOTW0")
        e("s_cmp_lg_u32 s%d, 0" % S_WAVE)
        e("s_cbranch_scc1 %s" % lab)
        flag_store(e)
        e.label(lab)
        stamp(e, cfg, 4)
        p2_role(e)
        p2_setup(e, cfg)
        srd(e, S_OUT, 46, 1835008)
        srd(e, S_WD, 56, 1605632)
        e("s_cmp_lg_u32 s%d, 0" % S_WAVE)
        e("s_cbranch_scc1 P2_START")
        e("s_lshr_b32 s43, s%d, 1" % S_T1)
        e("s_lshl_b32 s43, s43, 7")
        e("s_add_u32 s%d, s43, 0x%x" % (S_PF, FLAGS))
        poll(e, S_PF, 14)
        e("s_branch P2_START")
    def after_h_loader():
        e("s_barrier")
        p2_role(e)
        p2_setup(e, cfg)
        srd(e, S_OUT, 46, 1835008)
        e("v_subrev_u32 v9, %d, v10" % (8 * 896))
        e("s_sub_u32 s69, s62, 1024")
        for kk in range(20):
            pos = kk
            dma(e, S_WD, 9, pos * 2048, 69, kk * 16 * 896, ("wdp", kk))
            dma(e, S_WD, 10, pos * 2048, 62, kk * 16 * 896, ("wdp", kk))
        e("s_barrier")
        stamp(e, cfg, 4)
        e.vm = []
        e.label("P2_START")
        e("s_waitcnt vmcnt(0)")
        e("s_barrier")
        stamp(e, cfg, 5)
        e.vm = []; e.lg = []
        p2_main(e, cfg, 5)
        stamp_store(e, cfg, 0)
        e("s_endpgm")
    def after_d(is_cons):
        if is_cons:
            e.vm_wait_all()
            e("s_barrier")
            lab = e.newlabel("DNOTW0")
            e("s_cmp_lg_u32 s%d, 0" % S_WAVE)
            e("s_cbranch_scc1 %s" % lab)
            flag_store(e)
            e("s_waitcnt vmcnt(0)")
            e.label(lab)
            stamp_store(e, cfg, 0)
            e("s_endpgm")
        else:
            e("s_waitcnt vmcnt(0)")
            e("s_barrier")
            stamp_store(e, cfg, 0)
            e("s_endpgm")
    phase1(e, cfg, after_h_consumer, after_h_loader, after_d)
    e.label("KF_END")
    e("s_endpgm")


WB2 = 114688; NW2 = 6; WS2 = 8192
H_ACC = 64
H_FR = 192
V_XA2 = 10
V_WA2 = 18
S_WT = 69

def h2_consumer(e, cfg):
    L = V_LANE; T = 26
    e("s_lshr_b32 s%d, s%d, 1" % (S_WT, S_WAVE))
    e("s_and_b32 s%d, s%d, 1" % (S_WF, S_WAVE))
    e("v_and_b32 v%d, 31, v%d" % (T, L))
    e("v_lshrrev_b32 v%d, 5, v%d" % (T + 1, L))
    e("v_lshrrev_b32 v%d, 1, v%d" % (T + 2, T))
    e("v_and_b32 v%d, 7, v%d" % (T + 2, T + 2))
    e("s_lshl_b32 s41, s%d, 6" % S_WT)
    e("v_add_u32 v%d, s41, v%d" % (T + 3, T))
    e("v_lshlrev_b32 v%d, 7, v%d" % (T + 3, T + 3))
    for k in range(4):
        e("v_add_u32 v%d, %d, v%d" % (T + 4, 2 * k, T + 1))
        e("v_xor_b32 v%d, v%d, v%d" % (T + 4, T + 4, T + 2))
        e("v_lshlrev_b32 v%d, 4, v%d" % (T + 4, T + 4))
        e("v_add_u32 v%d, v%d, v%d" % (V_XA2 + k, T + 3, T + 4))
        e("v_add_u32 v%d, 0x10000, v%d" % (V_XA2 + 4 + k, V_XA2 + k))
    e("v_and_b32 v%d, 15, v%d" % (T + 4, L))
    e("v_lshrrev_b32 v%d, 2, v%d" % (T + 5, T + 4))
    e("v_lshlrev_b32 v%d, 7, v%d" % (T + 5, T + 5))
    e("v_lshlrev_b32 v%d, 11, v%d" % (T + 6, T + 1))
    e("v_add_u32 v%d, v%d, v%d" % (T + 6, T + 6, T + 5))
    e("v_bfe_u32 v%d, v%d, 3, 1" % (T + 7, T + 4))
    e("v_xor_b32 v%d, s%d, v%d" % (T + 7, S_WF, T + 7))
    e("v_lshlrev_b32 v%d, 6, v%d" % (T + 7, T + 7))
    e("v_add_u32 v%d, v%d, v%d" % (T + 6, T + 6, T + 7))
    e("v_bfe_u32 v%d, v%d, 4, 1" % (T + 7, L))
    e("v_lshlrev_b32 v%d, 5, v%d" % (T + 7, T + 7))
    e("v_add_u32 v%d, v%d, v%d" % (T + 6, T + 6, T + 7))
    e("v_and_b32 v%d, 3, v%d" % (T + 7, T + 4))
    e("v_lshlrev_b32 v%d, 3, v%d" % (T + 7, T + 7))
    e("v_add_u32 v%d, v%d, v%d" % (T + 6, T + 6, T + 7))
    e("v_add_u32 v%d, 0x%x, v%d" % (V_WA2, WB2, T + 6))
    e("s_lshl_b32 s41, s%d, 1" % S_R)
    e("s_add_u32 s41, s41, s%d" % S_WT)
    e("s_mul_i32 s41, s41, 112")
    e("s_lshl_b32 s42, s%d, 1" % S_FB)
    e("s_add_u32 s42, s42, s%d" % S_WF)
    e("s_lshl_b32 s42, s42, 1")
    e("s_add_u32 s41, s41, s42")
    e("s_lshl_b32 s41, s41, 11")
    e("v_lshlrev_b32 v20, 4, v%d" % L)
    e("v_add_u32 v20, s41, v20")
    e("v_add_u32 v21, 0x%x, v20" % (56 * 2048))
    e("s_waitcnt lgkmcnt(0)")
    srd(e, S_WS, 74, WS_BYTES)
    flag_addr(e, True)
    nonce_issue(e)
    stamp(e, cfg, 0)
    if "notouch" not in cfg.x:
        srd(e, S_WD, 56, 1605632)
        e("s_lshr_b32 s41, s2, 3")
        e("s_mul_i32 s41, s41, 448")
        e("s_lshl_b32 s42, s%d, 6" % S_WAVE)
        e("s_add_u32 s41, s41, s42")
        e("v_add_u32 v8, s41, v%d" % L)
        e("v_lshlrev_b32 v8, 7, v8")
        e("buffer_load_dword v2, v8, s[%d:%d], 0 offen" % (S_WD, S_WD + 3))
        e("s_cmp_eq_u32 s%d, 3" % S_WAVE)
        lab = e.newlabel("TCH")
        e("s_cbranch_scc1 %s" % lab)
        e("v_add_u32 v8, 0x%x, v8" % (256 * 128))
        e("buffer_load_dword v3, v8, s[%d:%d], 0 offen" % (S_WD, S_WD + 3))
        e.label(lab)
    e("s_barrier")
    stamp(e, cfg, 1)
    if cfg.diag:
        e("s_memtime s[76:77]"); e("s_waitcnt lgkmcnt(0)")
    def reads(g):
        p = g // 28; kap = g % 28
        base = H_FR + 16 * (g & 1)
        c = kap >> 2; kk4 = kap & 3
        xo = c * 16384
        xv = V_XA2 + kk4 + (4 if xo >= 0x10000 else 0); xo &= 0xffff
        j = g >> 1; kk = g & 1
        so = (j % NW2) * WS2
        def xr(nb): return (("X", g, nb), "ds_read_b128 %s, v%d offset:%d" % (vr(base + 4 * nb, 4), xv, xo + nb * 4096))
        def wr(m, ip): return (("W", g, m), "ds_read_b64_tr_b16 %s, v%d offset:%d" % (vr(base + 8 + 4 * m + 2 * ip, 2), V_WA2, so + kk * 4096 + ip * 512 + m * 1024))
        return [wr(0, 0), wr(0, 1), xr(0), wr(1, 0), wr(1, 1), xr(1)]
    def epi_list(p):
        ACCB = H_ACC + 64 * p
        L_ = []
        def I(txt): L_.append(lambda: e(txt))
        grp = 0
        for nb in range(2):
            for hf in range(2):
                outb = 224 + 4 * grp; grp += 1
                A = ACCB + 16 * nb + 8 * hf; B = ACCB + 32 + 16 * nb + 8 * hf
                for q in range(0, 8, 2):
                    I("v_pk_mul_f32 %s, %s, s[44:45]" % (vr(A + q, 2), vr(A + q, 2)))
                for q in range(8):
                    I("v_exp_f32 v%d, v%d" % (A + q, A + q))
                for q in range(0, 8, 2):
                    I("v_pk_add_f32 %s, %s, s[46:47]" % (vr(A + q, 2), vr(A + q, 2))) if False else I("v_pk_add_f32 %s, %s, 1.0 op_sel_hi:[1,0]" % (vr(A + q, 2), vr(A + q, 2)))
                for q in range(8):
                    I("v_rcp_f32 v%d, v%d" % (A + q, A + q))
                for q in range(0, 8, 2):
                    I("v_pk_mul_f32 %s, %s, %s" % (vr(A + q, 2), vr(A + q, 2), vr(B + q, 2)))
                for q2 in range(4):
                    I("v_cvt_pk_bf16_f32 v%d, v%d, v%d" % (outb + q2, A + 2 * q2, A + 2 * q2 + 1))
                def st(outb=outb, nb=nb, hf=hf):
                    e("buffer_store_dwordx4 %s, v%d, s[%d:%d], 0 offen offset:%d sc1" % (vr(outb, 4), 20 + p, S_WS, S_WS + 3, hf * 2048 + nb * 1024))
                    e.vm_issue("hst")
                L_.append(st)
        return L_
    e("s_mov_b32 s44, 0x%08x" % f2u(-LOG2E))
    e("s_mov_b32 s45, s44")
    def epilogue(p):
        e("s_nop 7"); e("s_nop 3")
        for f in epi_list(p): f()
    pend_epi = []
    for tag, txt in reads(0):
        e(txt); e.lg_issue(tag)
    for g in range(56):
        base = H_FR + 16 * (g & 1)
        nxt = reads(g + 1) if g + 1 < 56 else []
        first = (g % 28 == 0)
        ACCB = H_ACC + 64 * (g // 28)
        if g == 28 + cfg.epi_start and cfg.epi_rate > 0:
            pend_epi = epi_list(0)
        k = 0
        for n in range(4):
            nb = n >> 1; m = n & 1
            if "wait2" in cfg.x:
                if n == 0: e.lg_wait([("W", g, 0), ("X", g, 0)])
                if n == 1: e.lg_wait([("W", g, 1), ("X", g, 1)])
            elif "wait1" in cfg.x:
                if n == 0: e.lg_wait([("W", g, 0), ("X", g, 0), ("W", g, 1), ("X", g, 1)])
            else:
                e.lg_wait([("W", g, m), ("X", g, nb)])
            d = ACCB + 32 * m + 16 * nb
            if "nomfma" not in cfg.x:
                mfma(e, d, base + 8 + 4 * m, base + 4 * nb, "0" if first else None)
            cnt = 2 if n < 2 else 1
            if "rd3" in cfg.x: cnt = (3, 3, 0, 0)[n]
            if "rd6" in cfg.x: cnt = (6, 0, 0, 0)[n]
            for _ in range(cnt):
                if k < len(nxt):
                    tag, txt = nxt[k]; k += 1
                    if "nolds" in cfg.x: continue
                    e(txt); e.lg_issue(tag)
            for _ in range(cfg.epi_rate):
                if pend_epi: pend_epi.pop(0)()
        if g == 27 and cfg.epi_rate == 0:
            epilogue(0)
        if g == 46:
            nonce_load(e)
        if g == 2 * cfg.flagA_bar - 1:
            e("s_waitcnt vmcnt(0)")
        if (g & 1) and g < 55:
            e("s_barrier")
    assert not e.lg
    e.vm = []
    e("s_barrier")
    if cfg.diag:
        e("s_memtime s[78:79]"); e("s_waitcnt lgkmcnt(0)")
        e("s_sub_u32 s7, s78, s76")
    nonce_finish(e)
    assert not pend_epi
    stamp(e, cfg, 2)
    epilogue(1)
    stamp(e, cfg, 3)

def h2_loader(e, cfg):
    L = V_LANE; T = 26
    VX = 10; VW = 14
    e("v_lshrrev_b32 v%d, 3, v%d" % (T, L))
    e("s_lshl_b32 s41, s%d, 5" % S_LW)
    e("v_add_u32 v%d, s41, v%d" % (T, T))
    e("v_and_b32 v%d, 7, v%d" % (T + 1, L))
    e("v_lshrrev_b32 v%d, 4, v%d" % (T + 2, L))
    e("s_movk_i32 s42, 896")
    for i in range(4):
        if i: e("v_add_u32 v%d, 8, v%d" % (T, T))
        e("v_add_u32 v%d, %d, v%d" % (T + 3, (4 * i) & 7, T + 2))
        e("v_and_b32 v%d, 7, v%d" % (T + 3, T + 3))
        e("v_xor_b32 v%d, v%d, v%d" % (T + 3, T + 3, T + 1))
        e("v_lshlrev_b32 v%d, 4, v%d" % (T + 3, T + 3))
        e("v_lshrrev_b32 v%d, 6, v%d" % (T + 4, T))
        e("v_and_b32 v%d, 63, v%d" % (T + 5, T))
        e("v_lshlrev_b32 v%d, 5, v%d" % (T + 5, T + 5))
        e("s_lshl_b32 s41, s%d, 1" % S_R)
        e("v_add3_u32 v%d, v%d, v%d, s41" % (T + 4, T + 4, T + 5))
        e("v_mul_lo_u32 v%d, v%d, s42" % (T + 4, T + 4))
        e("v_add_u32 v%d, v%d, v%d" % (VX + i, T + 4, T + 3))
        if i: e("v_subrev_u32 v%d, %d, v%d" % (VX + i, i * 1024, VX + i))
    e("v_lshrrev_b32 v%d, 3, v%d" % (T + 3, L))
    e("s_lshl_b32 s41, s%d, 3" % S_LW)
    e("v_add_u32 v%d, s41, v%d" % (T + 3, T + 3))
    e("s_movk_i32 s42, 3584")
    e("v_mul_lo_u32 v%d, v%d, s42" % (T + 3, T + 3))
    e("v_bfe_u32 v%d, v%d, 4, 1" % (T + 4, L))
    e("v_lshlrev_b32 v%d, 2, v%d" % (T + 4, T + 4))
    e("v_xor_b32 v%d, v%d, v%d" % (T + 4, T + 4, T + 1))
    e("v_lshlrev_b32 v%d, 4, v%d" % (T + 4, T + 4))
    e("s_lshl_b32 s41, s%d, 7" % S_FB)
    e("v_add3_u32 v%d, v%d, v%d, s41" % (VW, T + 3, T + 4))
    e("v_add_u32 v%d, %d, v%d" % (VW + 1, 32 * 3584, VW))
    e("v_add_u32 v%d, %d, v%d" % (VW + 2, 1792, VW))
    e("v_add_u32 v%d, %d, v%d" % (VW + 3, 1792, VW + 1))
    e("s_lshl_b32 s%d, s%d, 11" % (S_LDSW, S_LW))
    e("s_lshl_b32 s%d, s%d, 12" % (S_LDSX, S_LW))
    e("s_add_u32 s6, s%d, s%d" % (S_R, S_FB))
    e("s_mul_i32 s7, s6, 37")
    e("s_lshr_b32 s7, s7, 8")
    e("s_mul_i32 s7, s7, 7")
    e("s_sub_u32 s6, s6, s7")
    e("s_waitcnt lgkmcnt(0)")
    srd(e, S_X, 44, 1835008)
    srd(e, S_WA, 52, 1605632)
    e("s_sub_u32 s%d, s54, 1024" % S_WB)
    e("s_subb_u32 s%d, s55, 0" % (S_WB + 1))
    e("s_and_b32 s%d, s%d, 0xffff" % (S_WB + 1, S_WB + 1))
    e("s_mov_b32 s%d, 0x%x" % (S_WB + 2, 1605632 + 1024))
    e("s_mov_b32 s%d, 0x20000" % (S_WB + 3))
    srd(e, S_WS, 74, WS_BYTES)
    srd(e, S_GW, 58, 896)
    srd(e, S_WD, 56, 1605632)
    srd(e, S_DBG, 72, 256)
    def emitT(dst):
        c = dst - 44
        e("s_lshl_b32 s%d, s6, 7" % (44 + c))
        e("s_mul_i32 s%d, s6, %d" % (51 + c, 64 * 3584))
    emitT(44)
    flag_addr(e, True)
    e("v_mov_b32 v7, 0")
    stamp(e, cfg, 0)
    tdone = [1]
    def need_table(c):
        while tdone[0] <= c:
            rot_next(e, 6, 7)
            emitT(44 + tdone[0]); tdone[0] += 1
    def dx(c):
        need_table(c)
        dma_group(e, S_LDSX, c * 16384, [(S_X, VX + i, 44 + c, i * 1024, ("x", c)) for i in range(4)])
    def dw(j):
        p = j // 14; jj = j % 14; c = jj >> 1
        need_table(c)
        va = VW + 2 * p + (jj & 1)
        dma_group(e, S_LDSW, WB2 + (j % NW2) * WS2, [(S_WA, va, 51 + c, 0, ("w", j)), (S_WB, va, 51 + c, 1024, ("w", j))])
    q = []
    for j in range(28):
        if j < 14 and j % 2 == 0: q.append(("x", j // 2, -1))
        q.append(("w", j, -1 if j < NW2 else j - NW2 + 1))
    def cost(it): return 4 if it[0] == "x" else 2
    def issue(it): (dx if it[0] == "x" else dw)(it[1])
    def need(j):
        t = []
        for jj in (j, j + 1):
            if jj <= 27:
                if jj < 14: t.append(("x", jj >> 1))
                t.append(("w", jj))
        return t
    issued = set(); curbar = [-1]
    def ensure(tags):
        while q and any(t not in issued for t in tags):
            it = q.pop(0); assert it[2] <= curbar[0], (it, curbar)
            issue(it); issued.add((it[0], it[1]))
    ensure(need(0))
    budget0 = cfg.pro_extra
    while q and budget0 > 0 and q[0][2] <= -1:
        it = q.pop(0); issue(it); issued.add((it[0], it[1])); budget0 -= cost(it)
    e.vm_wait(need(0))
    e("s_barrier")
    stamp(e, cfg, 1)
    for j in range(27):
        curbar[0] = j
        ensure(need(j + 1))
        budget = cfg.stage_budget2
        while q and budget > 0 and q[0][2] <= j:
            it = q.pop(0); issue(it); issued.add((it[0], it[1])); budget -= cost(it)
        if j == 1:
            p2_role(e)
            q_setup(e, 0, 26)
        if j == 14:
            q_table(e, 44, 2 * 16 * 896)
        if j >= 16 and j % 2 == 0:
            c = (j - 16) // 2
            q_dma_pair(e, 0, c, 26, 44)
        if j == cfg.gate_j:
            gate_issue(e, cfg, True)
            gate_issue(e, cfg, True, True)
        if j == cfg.gate_j + 4:
            gate_finish(e, cfg)
            gate_finish(e, cfg, True)
            e("buffer_load_dword v4, v7, s[%d:%d], 0 offen sc1" % (S_DBG, S_DBG + 3))
            e.vm_issue("nonce")
        if j == cfg.flagA_bar - 1:
            e.vm_wait(["nonce"])
            sv = list(e.vm)
            nonce_finish_any(e, keepvm=True)
            e.vm = sv
        if j == cfg.flagA_bar:
            lab = e.newlabel("FA")
            e("s_cmp_lg_u32 s%d, 4" % S_WAVE)
            e("s_cbranch_scc1 %s" % lab)
            flag_store(e)
            e.label(lab)
        if j == cfg.epoll:
            flags_line(e, 0)
            poll_prep(e, S_PF, 14)
            poll_issue(e); e.vm_issue("poll")
        e.vm_wait(need(j + 1))
        e("s_barrier")
    assert not q
    q_setup2(e, 0)
    q_table(e, 51, 4096)
    e("s_waitcnt lgkmcnt(0)")
    e("s_barrier")
    stamp(e, cfg, 2)
    poll_loop(e, 14, True)
    if cfg.diag: e("s_mov_b32 s%d, s41" % (S_STAMP + 16))
    stamp(e, cfg, 4)
    e.vm = []
    for kk in range(cfg.hpre): q_load_h(e, kk)
    q_dma_pair(e, 0, 6, 26, 44)

def nonce_finish_any(e, keepvm=False):
    lab = e.newlabel("NFA"); top = e.newlabel("NTA"); chk = e.newlabel("NCK")
    e("s_mov_b32 s42, 0")
    if keepvm: e("s_branch %s" % chk)
    e.label(top)
    e("s_waitcnt vmcnt(0)")
    e.label(chk)
    e("v_readfirstlane_b32 s%d, v4" % S_NONCE)
    e("s_nop 3")
    e("s_cmp_lg_u32 s%d, 0" % S_NONCE)
    e("s_cbranch_scc1 %s" % lab)
    e("s_add_u32 s42, s42, 1")
    e("s_cmp_ge_u32 s42, 0x40000")
    e("s_cbranch_scc1 %s" % lab)
    e("s_sleep 1")
    e("buffer_load_dword v4, v7, s[%d:%d], 0 offen sc1" % (S_DBG, S_DBG + 3))
    e("s_branch %s" % top)
    e.label(lab)

Q_ACC = 64
Q_H = 128
Q_A = 240
SL2 = 40960
SI = 3

def q_setup(e, part, vw=9):
    L = V_LANE
    e("s_and_b32 s%d, s%d, 3" % (SI, S_WAVE))
    e("v_lshrrev_b32 v2, 3, v%d" % L)
    e("v_bfe_u32 v3, v%d, 4, 1" % L)
    e("v_lshlrev_b32 v3, 2, v3")
    e("v_and_b32 v8, 7, v%d" % L)
    e("v_xor_b32 v3, v3, v8")
    e("v_lshlrev_b32 v3, 4, v3")
    e("s_mul_i32 s41, s%d, 224" % SI)
    if part: e("s_add_u32 s41, s41, 896")
    e("v_add_u32 v2, s41, v2")
    e("s_movk_i32 s42, 896")
    e("v_mul_lo_u32 v2, v2, s42")
    e("s_lshl_b32 s41, s%d, 7" % S_C)
    e("v_add3_u32 v%d, v2, v3, s41" % vw)
    e("v_add_u32 v%d, %d, v%d" % (vw + 1, 8 * 896 - 1024, vw))
    e("v_add_u32 v%d, %d, v%d" % (vw + 2, 16 * 896 - 2048, vw))
    e("v_add_u32 v%d, %d, v%d" % (vw + 3, 24 * 896 - 3072, vw))
    e("s_lshl_b32 s62, s%d, 12" % SI)
    e("s_and_b32 s4, s%d, 3" % S_T1)
    e("s_lshl_b32 s4, s4, 1")
    e("s_add_u32 s4, s4, s%d" % S_C)
    e("s_cmp_ge_u32 s4, 7")
    e("s_cselect_b32 s5, 7, 0")
    e("s_sub_u32 s4, s4, s5")
    if P2ROT[0] == 0: e("s_mov_b32 s4, 0")

def q_table(e, first, mult):
    e("s_mov_b32 s5, s4")
    for c in range(7):
        e("s_mul_i32 s%d, s5, %d" % (first + c, mult))
        if c < 6: rot_next(e, 5, 7)

def q_dma_pair(e, part, c, vw, tab):
    pos = q_pos(part, 2 * c)
    dma_group(e, 62, pos, [(S_WD, vw + i, tab + c, i * 1024, ("wd", 2 * c + (i >> 1))) for i in range(4)])

P2ROT = [1]
OSC = [""]
HSC = [" sc1"]
def q_setup2(e, part):
    L = V_LANE
    e("v_and_b32 v2, 15, v%d" % L)
    e("v_lshrrev_b32 v3, 2, v2")
    e("v_lshrrev_b32 v8, 5, v%d" % L)
    e("v_lshlrev_b32 v5, 2, v8")
    e("v_add_u32 v5, v5, v3")
    e("v_lshlrev_b32 v5, 7, v5")
    e("v_bfe_u32 v6, v2, 3, 1")
    e("v_lshlrev_b32 v6, 6, v6")
    e("v_bfe_u32 v3, v%d, 4, 1" % L)
    e("v_lshlrev_b32 v3, 5, v3")
    e("v_and_b32 v8, 3, v2")
    e("v_lshlrev_b32 v8, 3, v8")
    e("v_add3_u32 v5, v5, v6, v3")
    e("v_add_u32 v5, v5, v8")
    e("v_add_u32 v11, s62, v5")
    e("v_xor_b32 v12, 64, v11")
    e("v_add_u32 v18, 0x10000, v11")
    e("v_add_u32 v19, 0x10000, v12")
    e("v_add_u32 v15, 0x20000, v11")
    e("v_add_u32 v63, 0x20000, v12")
    e("s_mul_i32 s41, s%d, 112" % S_T1)
    e("s_mul_i32 s42, s%d, 14" % SI)
    e("s_add_u32 s41, s41, s42")
    if part: e("s_add_u32 s41, s41, 56")
    e("s_lshl_b32 s41, s41, 11")
    e("v_lshlrev_b32 v13, 4, v%d" % L)
    e("v_add_u32 v13, s41, v13")
    e("v_and_b32 v14, 31, v%d" % L)

def q_pos(part, kk):
    if part == 0: return (kk >> 1) * 16384 + (kk & 1) * 2048
    if kk < 6: return WB2 + (kk >> 1) * 16384 + (kk & 1) * 2048
    k2 = kk - 6
    return (k2 >> 1) * 16384 + (k2 & 1) * 2048

HT = [51]
def q_load_h(e, kk):
    c = kk >> 1; u = kk & 1
    for nb in range(2):
        e("buffer_load_dwordx4 %s, v13, s[%d:%d], s%d offen offset:%d%s" % (vr(Q_H + 8 * kk + 4 * nb, 4), S_WS, S_WS + 3, HT[0] + c, u * 2048 + nb * 1024, HSC[0]))
        e.vm_issue(("h", kk))

def q_mainloop(e, cfg, part, init_zero, pre, extra=None, after_k=None, before_reads=None):
    def reads(kk):
        b = Q_A + 8 * (kk & 1)
        pos = q_pos(part, kk)
        for mb in range(2):
            for ip in range(2):
                va = (11 + mb) if pos < 0x10000 else (18 + mb)
                po = pos if pos < 0x10000 else pos - 0x10000
                if pos >= 0x20000:
                    va = (15, 63)[mb]; po = pos - 0x20000
                e("ds_read_b64_tr_b16 %s, v%d offset:%d" % (vr(b + 4 * mb + 2 * ip, 2), va, po + ip * 1024))
                e.lg_issue(("A", kk, mb))
    nxt = pre
    e.vm_wait([("wd", 0)])
    reads(0)
    for kk in range(14):
        if nxt < 14:
            q_load_h(e, nxt); nxt += 1
            if nxt == 14 and extra: extra()
        late = before_reads is not None and before_reads(kk + 1, False)
        if kk + 1 < 14 and not late:
            e.vm_wait([("wd", kk + 1)])
            reads(kk + 1)
        e.vm_wait([("h", kk)])
        b = Q_A + 8 * (kk & 1)
        for mb in range(2):
            e.lg_wait([("A", kk, mb)])
            for nb in range(2):
                mfma(e, Q_ACC + 16 * (2 * mb + nb), b + 4 * mb, Q_H + 8 * kk + 4 * nb, "0" if (kk == 0 and init_zero) else None)
        if late:
            before_reads(kk + 1, True)
            reads(kk + 1)
        if after_k: after_k(kk)
    assert not e.lg and nxt == 14

def flags_line(e, part):
    e("s_lshr_b32 s43, s%d, 1" % S_T1)
    e("s_lshl_b32 s43, s43, 9")
    e("s_add_u32 s%d, s43, 0x%x" % (S_PF, FLAGS + 256 * part))

def q_loader_A(e, cfg):
    for i in range(4):
        e("v_add_u32 v%d, %d, v%d" % (20 + i, 896 * 896, 26 + i))
    stamp(e, cfg, 5)
    def after_k(kk):
        if kk < 8 and (kk & 1):
            m = kk >> 1
            pos = q_pos(0, 2 * m)
            dma_group(e, 62, pos, [(S_WD, 20 + i, 44 + 3 + m, i * 1024, ("wdb", kk)) for i in range(4)])
    q_mainloop(e, cfg, 0, True, cfg.hpre, None, after_k)
    stamp(e, cfg, 6)
    e("v_lshlrev_b32 v2, 4, v%d" % V_LANE)
    e("v_add_u32 v2, s62, v2")
    e("v_add_u32 v3, 0x10000, v2")
    e("s_nop 7"); e("s_nop 3")
    for tl in range(3):
        for qq in range(4):
            e("ds_write_b128 v3, %s offset:%d" % (vr(Q_ACC + 16 * tl + 4 * qq, 4), (4 + tl) * 16384 - 0x10000 + qq * 1024))
    e("s_waitcnt vmcnt(0) lgkmcnt(0)")
    e.vm = []
    e("s_barrier")
    stamp(e, cfg, 7)
    e("v_add_u32 v3, 0x%x, v2" % WB2)
    for qq in range(4):
        e("ds_write_b128 v3, %s offset:%d" % (vr(Q_ACC + 48 + 4 * qq, 4), qq * 1024))
    e("s_waitcnt lgkmcnt(0)")
    e("s_barrier")

def q_consumer_B(e, cfg):
    L = V_LANE
    p2_role(e)
    q_setup(e, 1, 26)
    q_setup2(e, 1)
    srd(e, S_OUT, 46, 1835008)
    srd(e, S_WD, 56, 1605632)
    q_table(e, 44, 2 * 16 * 896)
    q_table(e, 51, 4096)
    flags_line(e, 0)
    poll_prep(e, S_PF, 14)
    poll_issue(e); e.vm_issue("pollA")
    e("s_cmp_ge_u32 s%d, 4" % S_C)
    e("s_cselect_b32 s63, 1, 0")
    e("s_sub_u32 s64, 32, s%d" % S_T1)
    e("s_and_b32 s64, s64, 31")
    e("s_cmp_eq_u32 s63, 1")
    e("s_cselect_b32 s64, s64, s%d" % S_T1)
    e("v_lshrrev_b32 v8, 5, v%d" % L)
    e("s_lshl_b32 s41, s%d, 6" % S_C)
    e("s_cmp_eq_u32 s63, 1")
    e("s_cselect_b64 vcc, -1, 0")
    for mb in range(2):
        e("v_add_u32 v2, s41, v14")
        if mb: e("v_add_u32 v2, 32, v2")
        e("v_sub_u32 v3, 448, v2")
        e("v_cndmask_b32 v2, v2, v3, vcc")
        e("v_lshlrev_b32 v2, 4, v2")
        e("v_lshlrev_b32 v3, 12, v8")
        e("v_add_u32 v%d, v2, v3" % (16 + mb))
    e("s_lshl_b32 s41, s64, 4")
    e("s_lshl_b32 s42, s%d, 2" % SI)
    e("s_add_u32 s41, s41, s42")
    e("s_lshl_b32 s41, s41, 12")
    e("s_add_u32 s65, s41, 0x%x" % UBUF)
    e("s_lshl_b32 s41, s%d, 6" % S_T1)
    e("v_add_u32 v2, s41, v14")
    e("v_lshlrev_b32 v2, 2, v2")
    e("v_add_u32 v20, 0x%x, v2" % GBUF)
    e("s_mul_i32 s41, s61, 12")
    e("s_lshl_b32 s42, s%d, 2" % S_WAVE)
    e("s_add_u32 s41, s41, s42")
    e("s_add_u32 s41, s41, 256")
    e("s_add_u32 s%d, s%d, s41" % (S_FLAG, S_FLAG))
    poll_loop(e, 14, True)
    stamp(e, cfg, 6)
    flag_store(e)
    e.vm = []
    for nb in range(2):
        e("buffer_load_dword v%d, v20, s[%d:%d], 0 offen offset:%d sc1" % (22 + nb, S_WS, S_WS + 3, nb * 128))
        e.vm_issue("g")
    for c in range(3): q_dma_pair(e, 1, c, 26, 44)
    stamp(e, cfg, 4)
    flags_line(e, 1)
    poll_prep(e, S_PF, 56)
    poll_loop56(e)
    stamp(e, cfg, 5)
    e.vm = []
    e("v_lshlrev_b32 v62, 2, v%d" % V_LANE)
    e("v_add_u32 v62, 0x%x, v62" % (FLAGS + 16 * 512))
    e("v_mov_b32 v60, 0x7fffffff")
    e("v_cmp_gt_u32 vcc, 32, v%d" % V_LANE)
    e("s_nop 1")
    e("v_cndmask_b32 v62, v60, v62, vcc")
    def uloads():
        for u in range(2):
            for mb in range(2):
                e("s_add_u32 s%d, s65, %d" % (S_OFF, u * 2 * 4096))
                e("buffer_load_dwordx4 %s, v%d, s[%d:%d], s%d offen sc1" % (vr(44 + 8 * u + 4 * mb, 4), 16 + mb, S_WS, S_WS + 3, S_OFF))
                e.vm_issue("u")
    def dflag_issue():
        e("buffer_load_dword v58, v62, s[%d:%d], 0 offen sc1" % (S_WS, S_WS + 3))
        e.vm_issue("dflag")
    def after_k(kk):
        if kk == cfg.dchk:
            ok = e.newlabel("DOK"); top = e.newlabel("DSP")
            e.vm_wait(["dflag"])
            sv = list(e.vm)
            e("s_mov_b32 s41, 0")
            e.label(top)
            e("v_cmp_eq_u32 vcc, s%d, v58" % S_NONCE)
            e("s_nop 1")
            e("s_cmp_eq_u32 vcc_lo, -1")
            e("s_cbranch_scc1 %s" % ok)
            e("s_add_u32 s41, s41, 1")
            e("s_cmp_ge_u32 s41, 0x40000")
            e("s_cbranch_scc1 %s" % ok)
            e("buffer_load_dword v58, v62, s[%d:%d], 0 offen sc1" % (S_WS, S_WS + 3))
            e("s_waitcnt vmcnt(0)")
            e("s_branch %s" % top)
            e.label(ok)
            e.vm = sv
            uloads()
    for kk in range(cfg.hpreB): q_load_h(e, kk)
    e("s_cmp_lg_u32 s%d, 0" % S_T1)
    e("s_cselect_b32 s41, s63, 0")
    e("v_add_u32 v2, s41, v14")
    e("v_lshrrev_b32 v8, 5, v%d" % L)
    e("v_lshlrev_b32 v8, 2, v8")
    e("s_lshl_b32 s43, s%d, 4" % SI)
    e("v_add_u32 v8, s43, v8")
    e("s_lshl_b32 s41, s63, 31")
    e("s_mov_b32 s42, 0x%08x" % f2u(1.0 / 64))
    for nb in range(2):
        if nb: e("v_add_u32 v2, 32, v2")
        e("v_xor_b32 v21, s41, v%d" % (22 + nb))
        for u in range(2):
            for q in range(4):
                e("v_add_u32 v3, %d, v8" % (8 * u + q))
                e("v_mul_u32_u24 v3, v3, v2")
                e("v_and_b32 v3, 63, v3")
                e("v_cvt_f32_u32 v3, v3")
                e("v_mul_f32 v3, s42, v3")
                e("v_cos_f32 v5, v3")
                e("v_sin_f32 v6, v3")
                e("s_nop 0")
                e("v_mul_f32 v5, v5, v%d" % (22 + nb))
                e("v_mul_f32 v6, v6, v21")
                e("v_cvt_pk_bf16_f32 v%d, v5, v6" % (24 + 8 * nb + 4 * u + q))
    for nb in range(2):
        e("v_sub_f32 v%d, 1.0, v%d" % (40 + 2 * nb, 22 + nb))
        e("v_mov_b32 v%d, v%d" % (41 + 2 * nb, 40 + 2 * nb))
    def before_reads(k, doit):
        if k != 6: return False
        if doit: e("s_barrier")
        return True
    q_mainloop(e, cfg, 1, True, cfg.hpreB, dflag_issue, after_k, before_reads)
    stamp(e, cfg, 7)
    e("s_nop 7"); e("s_nop 3")
    for mb in range(2):
        for nb in range(2):
            D = Q_ACC + 16 * (2 * mb + nb)
            for i in range(0, 16, 2):
                e("v_pk_mul_f32 %s, %s, %s" % (vr(D + i, 2), vr(D + i, 2), vr(40 + 2 * nb, 2)))
    e.vm_wait(["u"])
    e("s_nop 1")
    for u in range(2):
        for mb in range(2):
            for nb in range(2):
                mfma(e, Q_ACC + 16 * (2 * mb + nb), 44 + 8 * u + 4 * mb, 24 + 8 * nb + 4 * u)
    e("s_barrier")
    e("v_lshlrev_b32 v2, 4, v%d" % L)
    e("s_lshl_b32 s41, s%d, 14" % SI)
    e("v_add_u32 v3, s41, v2")
    e("s_lshl_b32 s41, s%d, 14" % SI)
    e("s_add_u32 s41, s41, 0x10000")
    e("s_cmp_eq_u32 s%d, 3" % SI)
    e("s_cselect_b32 s41, 0x%x, s41" % WB2)
    e("v_add_u32 v5, s41, v2")
    for k in range(4):
        for qq in range(4):
            e("ds_read_b128 %s, v5 offset:%d" % (vr(192 + 16 * k + 4 * qq, 4), k * 4096 + qq * 1024))
        if k == 2: e("s_waitcnt lgkmcnt(8)")
    e("s_waitcnt lgkmcnt(6)")
    for tl in range(4):
        for qq in range(4):
            e("ds_write_b128 v3, %s offset:%d" % (vr(Q_ACC + 16 * tl + 4 * qq, 4), tl * 4096 + qq * 1024))
        if tl < 3: e("s_waitcnt lgkmcnt(6)")
    e("s_waitcnt lgkmcnt(0)")
    e("s_barrier")
    e("s_lshl_b32 s41, s%d, 12" % SI)
    e("v_add_u32 v3, s41, v2")
    for k in range(4):
        for qq in range(4):
            e("ds_read_b128 %s, v3 offset:%d" % (vr(128 + 16 * k + 4 * qq, 4), k * 16384 + qq * 1024))
        if k == 2: e("s_waitcnt lgkmcnt(8)")
    for q in range(0, 16, 2):
        e("v_pk_add_f32 %s, %s, %s" % (vr(192 + q, 2), vr(192 + q, 2), vr(208 + q, 2)))
        e("v_pk_add_f32 %s, %s, %s" % (vr(224 + q, 2), vr(224 + q, 2), vr(240 + q, 2)))
    for q in range(0, 16, 2):
        e("v_pk_add_f32 %s, %s, %s" % (vr(192 + q, 2), vr(192 + q, 2), vr(224 + q, 2)))
    e("s_and_b32 s41, s%d, 1" % SI)
    e("s_cmp_eq_u32 s41, 1")
    e("s_cselect_b64 vcc, -1, 0")
    e("s_nop 1")
    e("v_cndmask_b32 v40, v40, v42, vcc")
    e("v_mov_b32 v41, v40")
    e("s_lshl_b32 s41, s41, 5")
    e("v_add_u32 v2, s41, v14")
    e("v_lshlrev_b32 v2, 5, v2")
    e("v_add_u32 v2, s%d, v2" % S_T1)
    e("s_movk_i32 s42, 896")
    e("v_mul_lo_u32 v2, v2, s42")
    e("s_lshl_b32 s41, s%d, 7" % S_C)
    e("s_lshr_b32 s42, s%d, 1" % SI)
    e("s_lshl_b32 s42, s42, 6")
    e("s_add_u32 s41, s41, s42")
    e("v_lshrrev_b32 v8, 5, v%d" % L)
    e("v_lshlrev_b32 v8, 4, v8")
    e("v_add3_u32 v2, v2, v8, s41")
    e("s_waitcnt lgkmcnt(0)")
    for q in range(0, 16, 2):
        e("v_pk_add_f32 %s, %s, %s" % (vr(128 + q, 2), vr(128 + q, 2), vr(144 + q, 2)))
        e("v_pk_add_f32 %s, %s, %s" % (vr(160 + q, 2), vr(160 + q, 2), vr(176 + q, 2)))
    for q in range(0, 16, 2):
        e("v_pk_fma_f32 %s, %s, %s, %s" % (vr(128 + q, 2), vr(192 + q, 2), vr(40, 2), vr(128 + q, 2)))
    for q in range(0, 16, 2):
        e("v_pk_add_f32 %s, %s, %s" % (vr(128 + q, 2), vr(128 + q, 2), vr(160 + q, 2)))
    for q in range(8):
        e("v_cvt_pk_bf16_f32 v%d, v%d, v%d" % (96 + q, 128 + 2 * q, 128 + 2 * q + 1))
    e("s_nop 1")
    for ih in range(2):
        e("v_permlane32_swap_b32 v%d, v%d" % (96 + 4 * ih, 98 + 4 * ih))
        e("v_permlane32_swap_b32 v%d, v%d" % (97 + 4 * ih, 99 + 4 * ih))
    for ih in range(2):
        e("buffer_store_dwordx4 %s, v2, s[%d:%d], 0 offen offset:%d%s" % (vr(96 + 4 * ih, 4), S_OUT, S_OUT + 3, ih * 32, OSC[0]))
    stamp(e, cfg, 8)

def kernel_fused2(e, cfg):
    name = "gated_mix__spectral_fnet__glu_gated_glu__prompt_kernel"
    header(e, name)
    e("s_cmp_ge_u32 s2, 256")
    e("s_cbranch_scc1 KF_END")
    kernarg_loads(e)
    entry_common(e)
    e("s_and_b32 s%d, s%d, 3" % (S_WF, S_WAVE))
    e("s_and_b32 s%d, s%d, 3" % (S_LW, S_WAVE))
    e("s_and_b32 s41, s2, 7")
    e("s_lshr_b32 s42, s2, 3")
    e("s_cmp_ge_u32 s42, 28")
    e("s_cbranch_scc1 P1_DFT")
    e("s_mul_i32 s43, s42, 37")
    e("s_lshr_b32 s43, s43, 8")
    e("s_mul_i32 s76, s43, 7")
    e("s_sub_u32 s76, s42, s76")
    e("s_lshr_b32 s77, s41, 1")
    e("s_lshl_b32 s77, s77, 2")
    e("s_add_u32 s%d, s77, s43" % S_R)
    e("s_and_b32 s77, s41, 1")
    e("s_mul_i32 s77, s77, 7")
    e("s_add_u32 s%d, s77, s76" % S_FB)
    e("s_cmp_ge_u32 s%d, 4" % S_WAVE)
    e("s_cbranch_scc1 P1_H_LOADER")
    e.vm = []; e.lg = []
    h2_consumer(e, cfg)
    q_consumer_B(e, cfg)
    stamp_store(e, cfg, 0)
    e("s_endpgm")
    e.label("P1_H_LOADER")
    e.vm = []; e.lg = []
    h2_loader(e, cfg)
    q_loader_A(e, cfg)
    stamp_store(e, cfg, 0)
    e("s_endpgm")
    e.label("P1_DFT")
    e("s_sub_u32 s42, s42, 28")
    e("s_and_b32 s%d, s41, 1" % S_EH)
    e("s_lshr_b32 s77, s41, 1")
    e("s_lshl_b32 s77, s77, 2")
    e("s_add_u32 s%d, s77, s42" % S_QG)
    e("s_cmp_ge_u32 s%d, 4" % S_WAVE)
    e("s_cbranch_scc1 P1_D_LOADER")
    e.vm = []; e.lg = []
    p1_consumer(e, cfg, False)
    d_epilogue(e, cfg)
    stamp(e, cfg, 3)
    e.vm_wait_all()
    e("s_barrier")
    lab = e.newlabel("DNOTW0")
    e("s_cmp_lg_u32 s%d, 0" % S_WAVE)
    e("s_cbranch_scc1 %s" % lab)
    flag_store(e)
    e("s_waitcnt vmcnt(0)")
    e.label(lab)
    stamp_store(e, cfg, 0)
    e("s_endpgm")
    e.label("P1_D_LOADER")
    e.vm = []; e.lg = []
    p1_loader(e, cfg, False)
    stamp(e, cfg, 3)
    e("s_waitcnt vmcnt(0)")
    e("s_barrier")
    stamp_store(e, cfg, 0)
    e("s_endpgm")
    e.label("KF_END")
    e("s_endpgm")

def descriptor(name):
    return """.section .rodata,"a"
.p2align 6
.amdhsa_kernel %s
  .amdhsa_next_free_vgpr 256
  .amdhsa_next_free_sgpr 102
  .amdhsa_accum_offset 256
  .amdhsa_group_segment_fixed_size 0
  .amdhsa_kernarg_size 104
  .amdhsa_user_sgpr_count 2
  .amdhsa_user_sgpr_kernarg_segment_ptr 1
  .amdhsa_system_sgpr_workgroup_id_x 1
.end_amdhsa_kernel
""" % name

def main():
    cfg = Cfg()
    cfg.pro_extra = 8; cfg.stage_budget = 8; cfg.p2_la = 3; cfg.p2_dpoll = 4; cfg.stage_budget2 = 6; cfg.flagA_bar = 25; cfg.epi_rate = 3; cfg.epi_start = 1; cfg.epoll = 26; cfg.hpre = 6; cfg.hpreB = 5; cfg.dchk = 11; cfg.gate_j = 8
    out = sys.argv[1]
    for a in sys.argv[2:]:
        if a == "nop2rot": P2ROT[0] = 0
        if a == "osc1": OSC[0] = " sc1"
        if a == "ont": OSC[0] = " nt"
        if a == "osc01": OSC[0] = " sc0 sc1"
        if a == "hplain": HSC[0] = ""
        if a == "hnt": HSC[0] = " nt"
        if a == "hsc01": HSC[0] = " sc0 sc1"
        if a == "diag": cfg.diag = True
        elif a == "fused": cfg.fused = True
        elif "=" in a:
            k, v = a.split("="); setattr(cfg, k, int(v))
        else: cfg.x = cfg.x | {a}
    e = Em()
    if cfg.fused:
        name = "gated_mix__spectral_fnet__glu_gated_glu__prompt_kernel"
        hdr = "; generated by gen2.py (fused)\n; @launch grid=(256,1,1) block=(512,1,1) lds=163840\n"
        hdr += '.amdgcn_target "amdgcn-amd-amdhsa--gfx950"\n'
        kernel_fused2(e, cfg)
        open(out, "w").write(hdr + e.text() + descriptor(name))
        return
    hdr = "; generated by gen2.py\n"
    hdr += "; @launch kernel=k1_kernel grid=(256,1,1) block=(512,1,1) lds=163840\n"
    hdr += "; @launch kernel=k2_kernel grid=(256,1,1) block=(512,1,1) lds=163840\n"
    hdr += '.amdgcn_target "amdgcn-amd-amdhsa--gfx950"\n'
    kernel1(e, cfg)
    kernel2(e, cfg)
    txt = hdr + e.text() + descriptor("k1_kernel") + descriptor("k2_kernel")
    open(out, "w").write(txt)
if __name__ == "__main__":
    main()
```

```python
import sys, math, struct

def f2u(f): return struct.unpack("<I", struct.pack("<f", f))[0]

class Em:
    def __init__(self):
        self.lines = []
        self.vm = []
        self.lg = []
        self.nlab = 0
    def __call__(self, s): self.lines.append("    " + s)
    def raw(self, s): self.lines.append(s)
    def label(self, s): self.lines.append(s + ":")
    def newlabel(self, p):
        self.nlab += 1
        return "%s_%d" % (p, self.nlab)
    def vm_issue(self, tag): self.vm.append(tag)
    def vm_wait(self, tags):
        last = -1
        for i, t in enumerate(self.vm):
            if t in tags: last = i
        if last < 0: return
        n = len(self.vm) - 1 - last
        assert n <= 63, n
        self("s_waitcnt vmcnt(%d)" % n)
        self.vm = self.vm[last + 1:]
    def vm_wait_all(self):
        self("s_waitcnt vmcnt(0)"); self.vm = []
    def lg_issue(self, tag): self.lg.append(tag)
    def lg_wait(self, tags):
        last = -1
        for i, t in enumerate(self.lg):
            if t in tags: last = i
        if last < 0: return
        n = len(self.lg) - 1 - last
        assert n <= 15, n
        self("s_waitcnt lgkmcnt(%d)" % n)
        self.lg = self.lg[last + 1:]
    def lg_wait_all(self):
        self("s_waitcnt lgkmcnt(0)"); self.lg = []
    def text(self): return "\n".join(self.lines) + "\n"

def vr(a, n=1): return "v%d" % a if n == 1 else "v[%d:%d]" % (a, a + n - 1)

HBUF = 0
UBUF = 0x700000
GBUF = 0x900000
FLAGS = 0x910000
DIAG = 0xA00000
WS_BYTES = 0x1000000
LOG2E = 1.4426950408889634

S_X = 8; S_WA = 12; S_WB = 16; S_WS = 20; S_GW = 24; S_OUT = 28; S_WD = 32; S_DBG = 36
S_WAVE = 40
S_R = 60; S_FB = 61; S_QG = 62; S_EH = 63
S_WF = 64; S_LW = 65
S_LDSW = 66; S_LDSX = 67
S_OFF = 68
S_T1 = 70; S_C = 71
S_STAMP = 80
S_NONCE = 98; S_FLAG = 99; S_PF = 100
V_LANE = 1

class Cfg:
    fused = False
    diag = False
    x = set()

def kernarg_loads(e):
    e("s_load_dwordx2 s[44:45], s[0:1], 0")
    e("s_load_dwordx4 s[48:51], s[0:1], 24")
    e("s_load_dwordx4 s[52:55], s[0:1], 48")
    e("s_load_dwordx4 s[56:59], s[0:1], 64")
    e("s_load_dwordx2 s[46:47], s[0:1], 80")
    e("s_load_dwordx4 s[72:75], s[0:1], 88")

def srd(e, dst, lo, nbytes):
    e("s_mov_b32 s%d, s%d" % (dst, lo))
    e("s_and_b32 s%d, s%d, 0xffff" % (dst + 1, lo + 1))
    e("s_mov_b32 s%d, 0x%x" % (dst + 2, nbytes))
    e("s_mov_b32 s%d, 0x20000" % (dst + 3))

NSTAMP = 6
def stamp(e, cfg, k):
    if cfg.diag:
        assert not e.lg
        e("s_memrealtime s[%d:%d]" % (S_STAMP + 2 * k, S_STAMP + 2 * k + 1))
        if k in (1, 2) and not cfg.fused:
            e("s_memtime s[%d:%d]" % (S_STAMP + 12 + 2 * (k - 1), S_STAMP + 13 + 2 * (k - 1)))
        e("s_waitcnt lgkmcnt(0)")

def stamp_store(e, cfg, slot_base):
    if not cfg.diag: return
    e("s_lshl_b32 s41, s2, 3")
    e("s_add_u32 s41, s41, s%d" % S_WAVE)
    e("s_lshl_b32 s41, s41, 6")
    e("s_add_u32 s41, s41, 0x%x" % (DIAG + slot_base))
    e("v_mov_b32 v1, s41")
    for k in range(9 if cfg.fused else NSTAMP + 2):
        e("v_mov_b32 v2, s%d" % (S_STAMP + 2 * k))
        e("buffer_store_dword v2, v1, s[%d:%d], 0 offen offset:%d" % (S_WS, S_WS + 3, 4 * k))
        e("s_nop 1")
    e("v_mov_b32 v2, s7")
    e("buffer_store_dword v2, v1, s[%d:%d], 0 offen offset:36" % (S_WS, S_WS + 3))
    e("s_waitcnt vmcnt(0)")

def mfma(e, d, a, b, c=None):
    cs = vr(d, 16) if c is None else c
    e("v_mfma_f32_32x32x16_bf16 %s, %s, %s, %s" % (vr(d, 16), vr(a, 4), vr(b, 4), cs))

NODMA = [False]
def dma_group(e, sldsbase, ldsconst, items):
    e("s_add_u32 m0, s%d, 0x%x" % (sldsbase, ldsconst))
    e("s_nop 0")
    for (srdreg, vaddr, soff, ioff, tag) in items:
        e("buffer_load_dwordx4 v%d, s[%d:%d], s%d offen offset:%d lds" % (vaddr, srdreg, srdreg + 3, soff, ioff))
        e.vm_issue(tag)
def fill_table(e, first, n, scnt, mod, emit):
    for c in range(n):
        emit(first + c)
        if c + 1 < n: rot_next(e, scnt, mod)
def rot_next(e, sreg, n):
    e("s_add_u32 s%d, s%d, 1" % (sreg, sreg))
    e("s_cmp_eq_u32 s%d, %d" % (sreg, n))
    e("s_cselect_b32 s%d, 0, s%d" % (sreg, sreg))
def dma(e, srdreg, vaddr, ldsconst, sldswave, soff, tag):
    if NODMA[0]:
        e.vm_issue(tag); e.vm.pop(); return
    e("s_add_u32 m0, s%d, 0x%x" % (sldswave, ldsconst))
    if soff is None:
        e("s_nop 0")
    else:
        e("s_mov_b32 s%d, 0x%x" % (S_OFF, soff))
    e("buffer_load_dwordx4 v%d, s[%d:%d], s%d offen lds" % (vaddr, srdreg, srdreg + 3, S_OFF))
    e.vm_issue(tag)

XSLOT = 16384; NX = 4
WBASE = 65536; NW = 6; WSLOT = 16384
ACC = 64
def accA(i): return ACC + 16 * i
def accB(i): return ACC + 64 + 16 * i
FR = 192
V_XA = 10
V_WA = 14
CONST_LDS = 0

def p1_consumer_addr(e, is_h):
    L = V_LANE; T = 26
    e("v_and_b32 v%d, 31, v%d" % (T, L))
    e("v_lshrrev_b32 v%d, 5, v%d" % (T + 1, L))
    e("v_lshrrev_b32 v%d, 1, v%d" % (T + 2, T))
    e("v_and_b32 v%d, 7, v%d" % (T + 2, T + 2))
    e("v_lshlrev_b32 v%d, 7, v%d" % (T + 3, T))
    if not is_h:
        e("s_lshl_b32 s41, s%d, 5" % S_WF)
        e("v_add_u32 v%d, s41, v%d" % (T + 5, T))
        e("v_lshlrev_b32 v%d, 7, v%d" % (T + 5, T + 5))
        e("v_add_u32 v%d, 0x%x, v%d" % (T + 5, WBASE, T + 5))
    for k in range(4):
        e("v_add_u32 v%d, %d, v%d" % (T + 4, 2 * k, T + 1))
        e("v_xor_b32 v%d, v%d, v%d" % (T + 4, T + 4, T + 2))
        e("v_lshlrev_b32 v%d, 4, v%d" % (T + 4, T + 4))
        e("v_add_u32 v%d, v%d, v%d" % (V_XA + k, T + 3, T + 4))
        if not is_h:
            e("v_add_u32 v%d, v%d, v%d" % (V_WA + k, T + 5, T + 4))
            e("v_add_u32 v%d, 0x10000, v%d" % (V_WA + 4 + k, V_WA + k))
    if is_h:
        e("v_and_b32 v%d, 15, v%d" % (T + 4, L))
        e("v_lshrrev_b32 v%d, 2, v%d" % (T + 5, T + 4))
        e("v_lshlrev_b32 v%d, 3, v%d" % (T + 6, T + 1))
        e("v_add_u32 v%d, v%d, v%d" % (T + 6, T + 6, T + 5))
        e("v_lshlrev_b32 v%d, 8, v%d" % (T + 6, T + 6))
        e("v_xor_b32 v%d, s%d, v%d" % (T + 7, S_WF, T + 5))
        e("v_lshlrev_b32 v%d, 6, v%d" % (T + 7, T + 7))
        e("v_add_u32 v%d, v%d, v%d" % (T + 6, T + 6, T + 7))
        e("v_bfe_u32 v%d, v%d, 4, 1" % (T + 7, L))
        e("v_lshlrev_b32 v%d, 5, v%d" % (T + 7, T + 7))
        e("v_add_u32 v%d, v%d, v%d" % (T + 6, T + 6, T + 7))
        e("v_and_b32 v%d, 3, v%d" % (T + 7, T + 4))
        e("v_lshlrev_b32 v%d, 3, v%d" % (T + 7, T + 7))
        e("v_add_u32 v%d, v%d, v%d" % (T + 6, T + 6, T + 7))
        e("v_add_u32 v%d, 0x%x, v%d" % (V_WA, WBASE, T + 6))
        e("v_add_u32 v%d, 0x%x, v%d" % (V_WA + 1, WBASE + 0x10000, T + 6))

def p1_reads(kap, is_h):
    base = FR + 24 * (kap & 1)
    c = kap >> 2; kk4 = kap & 3
    def xr(nb): return (("X", kap, nb), "ds_read_b128 %s, v%d offset:%d" % (vr(base + 4 * nb, 4), V_XA + kk4, (c % NX) * XSLOT + nb * 4096))
    if is_h:
        j = kap >> 1; kk = kap & 1
        slot = (j % NW) * WSLOT
        va = V_WA + (1 if slot >= 0x10000 else 0); so = slot & 0xffff
        def wr(m, ip): return (("W", kap, m), "ds_read_b64_tr_b16 %s, v%d offset:%d" % (vr(base + 16 + 4 * m + 2 * ip, 2), va, so + m * 8192 + (16 * kk + 4 * ip) * 256))
        return [wr(0, 0), wr(0, 1), xr(0), wr(1, 0), wr(1, 1), xr(1), xr(2), xr(3)]
    else:
        slot = (c % 3) * 32768
        va = V_WA + kk4 + (4 if slot >= 0x10000 else 0); so = slot & 0xffff
        def wr(m): return (("W", kap, m), "ds_read_b128 %s, v%d offset:%d" % (vr(base + 16 + 4 * m, 4), va, so + m * 16384))
        return [wr(0), xr(0), wr(1), xr(1), xr(2), xr(3)]

def p1_consumer(e, cfg, is_h):
    p1_consumer_addr(e, is_h)
    e("s_waitcnt lgkmcnt(0)")
    srd(e, S_WS, 74, WS_BYTES)
    if cfg.fused:
        flag_addr(e, is_h)
        nonce_issue(e)
    stamp(e, cfg, 0)
    e("s_barrier")
    stamp(e, cfg, 1)
    for tag, txt in p1_reads(0, is_h):
        e(txt); e.lg_issue(tag)
    for kap in range(28):
        base = FR + 24 * (kap & 1)
        nxt = p1_reads(kap + 1, is_h) if kap + 1 < 28 else []
        for n in range(8):
            nb = n >> 1; m = n & 1
            e.lg_wait([("W", kap, m), ("X", kap, nb)])
            d = accA(nb) if m == 0 else accB(nb)
            W = base + 16 + 4 * m; X = base + 4 * nb
            c = "0" if kap == 0 else None
            if "no32" in cfg.x:
                for hh in range(2):
                    e("v_mfma_f32_16x16x32_bf16 %s, %s, %s, %s" % (vr(d + 8 * hh, 4), vr(W, 4), vr(X, 4), vr(d + 8 * hh, 4)))
            elif "nomfma" not in cfg.x:
                if is_h: mfma(e, d, W, X, c)
                else: mfma(e, d, X, W, c)
            if nxt and n < len(nxt):
                tag, txt = nxt[n]
                if "nolds" in cfg.x: e.lg_issue(tag); e.lg.pop()
                else:
                    e(txt); e.lg_issue(tag)
        if (kap & 1) and kap < 27:
            e("s_barrier")
        if cfg.fused and kap == 21:
            nonce_load(e)
    assert not e.lg
    if cfg.fused and is_h:
        e("s_barrier")
    if cfg.fused:
        nonce_finish(e)
    stamp(e, cfg, 2)

def h_epilogue(e, cfg):
    sc = " sc1" if cfg.fused else ""
    e("s_lshl_b32 s41, s%d, 1" % S_R)
    e("s_mul_i32 s41, s41, 112")
    e("s_lshl_b32 s42, s%d, 2" % S_FB)
    e("s_add_u32 s42, s42, s%d" % S_WF)
    e("s_lshl_b32 s42, s42, 1")
    e("s_add_u32 s41, s41, s42")
    e("s_lshl_b32 s41, s41, 11")
    e("v_lshlrev_b32 v26, 4, v%d" % V_LANE)
    e("v_add_u32 v26, s41, v26")
    e("v_add_u32 v27, 0x%x, v26" % (112 * 2048))
    e("s_mov_b32 s42, 0x%08x" % f2u(-LOG2E))
    e("s_mov_b32 s43, s42")
    e("s_mov_b32 s44, 1.0")
    e("s_mov_b32 s45, 1.0")
    e("s_nop 7")
    grp = 0
    for nb in range(4):
        for hf in range(2):
            outb = FR + 4 * (grp % 8); grp += 1
            A = accA(nb) + 8 * hf; B = accB(nb) + 8 * hf
            for q in range(0, 8, 2):
                e("v_pk_mul_f32 %s, %s, s[42:43]" % (vr(A + q, 2), vr(A + q, 2)))
            for q in range(8):
                e("v_exp_f32 v%d, v%d" % (A + q, A + q))
            for q in range(0, 8, 2):
                e("v_pk_add_f32 %s, %s, s[44:45]" % (vr(A + q, 2), vr(A + q, 2)))
            for q in range(8):
                e("v_rcp_f32 v%d, v%d" % (A + q, A + q))
            for q in range(0, 8, 2):
                e("v_pk_mul_f32 %s, %s, %s" % (vr(A + q, 2), vr(A + q, 2), vr(B + q, 2)))
            for q2 in range(4):
                e("v_cvt_pk_bf16_f32 v%d, v%d, v%d" % (outb + q2, A + 2 * q2, A + 2 * q2 + 1))
            e("buffer_store_dwordx4 %s, v%d, s[%d:%d], 0 offen offset:%d%s" % (vr(outb, 4), 26 + (nb >> 1), S_WS, S_WS + 3, hf * 2048 + (nb & 1) * 1024, sc))
            e.vm_issue("hst")

def d_epilogue(e, cfg):
    sc = " sc1" if cfg.fused else ""
    L = V_LANE
    ZB = [192, 208, 224, 240]
    e("s_nop 7"); e("s_nop 3")
    for sb in range(4):
        for hf in range(2):
            for pr in range(4):
                q = 8 * hf + 2 * pr
                e("v_cvt_pk_bf16_f32 v%d, v%d, v%d" % (ZB[sb] + 4 * hf + pr, accA(sb) + q, accA(sb) + q + 1))
                e("v_cvt_pk_bf16_f32 v%d, v%d, v%d" % (ZB[sb] + 8 + 4 * hf + pr, accB(sb) + q, accB(sb) + q + 1))
    e("s_barrier")
    e("v_lshlrev_b32 v2, 4, v%d" % L)
    def cread(sb):
        b = 10 + 24 * (sb & 1)
        for k in range(6):
            e("ds_read_b128 %s, v2 offset:%d" % (vr(b + 4 * k, 4), CONST_LDS + (sb * 6 + k) * 1024))
            e.lg_issue(("c", sb, k))
    cread(0); cread(1)
    for sb in range(4):
        b = 10 + 24 * (sb & 1)
        C0, C1, S0, S1, N0, N1 = [b + 4 * k for k in range(6)]
        ZR0, ZR1, ZI0, ZI1 = ZB[sb], ZB[sb] + 4, ZB[sb] + 8, ZB[sb] + 12
        e.lg_wait([("c", sb, k) for k in range(6)])
        mfma(e, accA(sb), C0, ZR0, "0")
        mfma(e, accB(sb), C0, ZI0, "0")
        mfma(e, accA(sb), C1, ZR1)
        mfma(e, accB(sb), C1, ZI1)
        mfma(e, accA(sb), S0, ZI0)
        mfma(e, accB(sb), N0, ZR0)
        mfma(e, accA(sb), S1, ZI1)
        mfma(e, accB(sb), N1, ZR1)
        if sb + 2 < 4:
            cread(sb + 2)
    e("s_lshl_b32 s41, s%d, 8" % S_QG)
    e("s_lshl_b32 s42, s%d, 7" % S_EH)
    e("s_add_u32 s41, s41, s42")
    e("s_lshl_b32 s42, s%d, 5" % S_WF)
    e("s_add_u32 s41, s41, s42")
    e("s_lshl_b32 s41, s41, 4")
    e("s_add_u32 s41, s41, 0x%x" % UBUF)
    e("v_and_b32 v3, 31, v%d" % L)
    e("v_lshlrev_b32 v3, 4, v3")
    e("v_lshrrev_b32 v4, 5, v%d" % L)
    e("v_lshlrev_b32 v4, 18, v4")
    e("v_add3_u32 v3, v3, v4, s41")
    e("s_nop 7"); e("s_nop 3")
    for q in range(16):
        i, jj = q >> 2, q & 3
        pk = 192 + 4 * (q % 8)
        for sb in range(4):
            e("v_cvt_pk_bf16_f32 v%d, v%d, v%d" % (pk + sb, accA(sb) + q, accB(sb) + q))
        e("s_mov_b32 s%d, 0x%x" % (S_OFF, (8 * i + jj) * 65536))
        e("buffer_store_dwordx4 %s, v3, s[%d:%d], s%d offen%s" % (vr(pk, 4), S_WS, S_WS + 3, S_OFF, sc))
        e.vm_issue("ust")

def p1_loader(e, cfg, is_h):
    L = V_LANE; T = 26
    VX = 10
    VW = 14
    e("v_lshrrev_b32 v%d, 3, v%d" % (T, L))
    e("s_lshl_b32 s41, s%d, 5" % S_LW)
    e("v_add_u32 v%d, s41, v%d" % (T, T))
    e("v_and_b32 v%d, 7, v%d" % (T + 1, L))
    e("v_lshrrev_b32 v%d, 4, v%d" % (T + 2, L))
    e("s_movk_i32 s42, 896")
    for i in range(4):
        if i: e("v_add_u32 v%d, 8, v%d" % (T, T))
        e("v_add_u32 v%d, %d, v%d" % (T + 3, (4 * i) & 7, T + 2))
        e("v_and_b32 v%d, 7, v%d" % (T + 3, T + 3))
        e("v_xor_b32 v%d, v%d, v%d" % (T + 3, T + 3, T + 1))
        e("v_lshlrev_b32 v%d, 4, v%d" % (T + 3, T + 3))
        if is_h:
            e("v_lshrrev_b32 v%d, 6, v%d" % (T + 4, T))
            e("v_and_b32 v%d, 63, v%d" % (T + 5, T))
            e("v_lshlrev_b32 v%d, 5, v%d" % (T + 5, T + 5))
            e("s_lshl_b32 s41, s%d, 1" % S_R)
            e("v_add3_u32 v%d, v%d, v%d, s41" % (T + 4, T + 4, T + 5))
        else:
            e("v_and_b32 v%d, 31, v%d" % (T + 4, T))
            e("v_lshlrev_b32 v%d, 6, v%d" % (T + 4, T + 4))
            e("v_lshrrev_b32 v%d, 5, v%d" % (T + 5, T))
            e("s_lshl_b32 s41, s%d, 2" % S_QG)
            e("v_add3_u32 v%d, v%d, v%d, s41" % (T + 4, T + 4, T + 5))
        e("v_mul_lo_u32 v%d, v%d, s42" % (T + 4, T + 4))
        e("v_add_u32 v%d, v%d, v%d" % (VX + i, T + 4, T + 3))
        if not is_h:
            e("s_lshl_b32 s41, s%d, 7" % S_EH)
            e("v_add_u32 v%d, s41, v%d" % (T + 4, T))
            e("v_mul_lo_u32 v%d, v%d, s42" % (T + 4, T + 4))
            e("v_add_u32 v%d, v%d, v%d" % (VW + i, T + 4, T + 3))
    if is_h:
        e("s_lshl_b32 s41, s%d, 3" % S_LW)
        e("v_add_u32 v%d, s41, v%d" % (T + 3, T + 2))
        e("s_movk_i32 s42, 3584")
        e("v_mul_lo_u32 v%d, v%d, s42" % (T + 3, T + 3))
        e("v_bfe_u32 v%d, v%d, 2, 2" % (T + 4, L))
        e("v_xor_b32 v%d, v%d, v%d" % (T + 4, T + 4, T + 2))
        e("v_lshlrev_b32 v%d, 6, v%d" % (T + 4, T + 4))
        e("v_and_b32 v%d, 3, v%d" % (T + 5, L))
        e("v_lshlrev_b32 v%d, 4, v%d" % (T + 5, T + 5))
        e("v_add3_u32 v%d, v%d, v%d, v%d" % (T + 3, T + 3, T + 4, T + 5))
        e("s_lshl_b32 s41, s%d, 8" % S_FB)
        e("v_add_u32 v%d, s41, v%d" % (VW, T + 3))
        e("v_add_u32 v%d, %d, v%d" % (VW + 1, 4 * 3584, VW))
        e("s_lshl_b32 s%d, s%d, 11" % (S_LDSW, S_LW))
    else:
        e("s_lshl_b32 s%d, s%d, 12" % (S_LDSW, S_LW))
    e("s_lshl_b32 s%d, s%d, 12" % (S_LDSX, S_LW))
    e("s_waitcnt lgkmcnt(0)")
    srd(e, S_X, 44, 1835008)
    if is_h:
        srd(e, S_WA, 52, 1605632); srd(e, S_WB, 54, 1605632)
    else:
        srd(e, S_WA, 48, 401408); srd(e, S_WB, 50, 401408)
    srd(e, S_WS, 74, WS_BYTES)
    srd(e, S_GW, 58, 896)
    srd(e, S_WD, 56, 1605632)
    stamp(e, cfg, 0)
    DROT = (not is_h) and ("nodrot" not in cfg.x)
    if DROT:
        e("s_mul_i32 s7, s%d, 3" % S_EH)
        e("s_add_u32 s6, s%d, s7" % S_QG)
        e("s_mul_i32 s7, s6, 37")
        e("s_lshr_b32 s7, s7, 8")
        e("s_mul_i32 s7, s7, 7")
        e("s_sub_u32 s6, s6, s7")
        e("s_mov_b32 s7, s6")
    def dx(c):
        if DROT:
            e("s_lshl_b32 s%d, s6, 7" % S_OFF)
            for i in range(4): dma(e, S_X, VX + i, (c % NX) * XSLOT + i * 1024, S_LDSX, None, ("x", c))
            rot_next(e, 6, 7)
        else:
            for i in range(4): dma(e, S_X, VX + i, (c % NX) * XSLOT + i * 1024, S_LDSX, c * 128, ("x", c))
    def dw(j):
        if is_h:
            for m in range(2):
                for i in range(2):
                    dma(e, S_WA if m == 0 else S_WB, VW + i, WBASE + (j % NW) * WSLOT + m * 8192 + i * 1024, S_LDSW, j * 32 * 3584, ("w", j))
        else:
            c = j
            if DROT: e("s_lshl_b32 s%d, s7, 7" % S_OFF)
            for m in range(2):
                for i in range(4):
                    dma(e, S_WA if m == 0 else S_WB, VW + i, WBASE + (c % 3) * 32768 + m * 16384 + i * 1024, S_LDSW, None if DROT else c * 128, ("w", c))
            if DROT: rot_next(e, 7, 7)
    q = []
    if is_h:
        for j in range(14):
            if j % 2 == 0:
                c = j // 2
                q.append(("x", c, -1 if c < NX else 2 * (c - NX + 1)))
            q.append(("w", j, -1 if j < NW else j - NW + 1))
    else:
        for c in range(7):
            q.append(("x", c, -1 if c < NX else 2 * (c - NX + 1)))
            q.append(("w", c, -1 if c < 3 else 2 * (c - 3 + 1)))
    def cost(it): return 4 if (it[0] == "x" or is_h) else 8
    def issue(it):
        (dx if it[0] == "x" else dw)(it[1])
    def need(j):
        t = []
        for jj in (j, j + 1):
            if jj <= 13:
                t.append(("x", jj >> 1)); t.append(("w", jj if is_h else jj >> 1))
        return t
    issued = set()
    def ensure(tags):
        while q and any(t not in issued for t in tags):
            it = q.pop(0); assert it[2] <= curbar[0], (it, curbar)
            issue(it); issued.add((it[0], it[1]))
    curbar = [-1]
    ensure(need(0))
    budget0 = cfg.pro_extra
    while q and budget0 > 0 and q[0][2] <= -1:
        it = q.pop(0); issue(it); issued.add((it[0], it[1])); budget0 -= cost(it)
    e.vm_wait(need(0))
    e("s_barrier")
    stamp(e, cfg, 1)
    if "nodma" in cfg.x: NODMA[0] = True
    for j in range(13):
        curbar[0] = j
        ensure(need(j + 1))
        budget = cfg.stage_budget
        while q and budget > 0 and q[0][2] <= j:
            it = q.pop(0); issue(it); issued.add((it[0], it[1])); budget -= cost(it)
        if j == 9 and not is_h: dft_consts(e, cfg)
        if j == 7 and is_h:
            gate_issue(e, cfg, True)
            lab = e.newlabel("GX")
            e("s_cmp_ge_u32 s%d, 2" % S_FB)
            e("s_cbranch_scc1 %s" % lab)
            sv = list(e.vm)
            gate_issue(e, cfg, True, True)
            e.vm = sv
            e.label(lab)
        if j == 10 and is_h:
            e("s_waitcnt vmcnt(0)"); e.vm = []
            gate_finish(e, cfg)
            lab = e.newlabel("GY")
            e("s_cmp_ge_u32 s%d, 2" % S_FB)
            e("s_cbranch_scc1 %s" % lab)
            gate_finish(e, cfg, True)
            e.label(lab)
        if j == 11 and cfg.fused:
            e("s_waitcnt vmcnt(0)"); e.vm = []
        e.vm_wait(need(j + 1))
        e("s_barrier")
    assert not q
    NODMA[0] = False
    stamp(e, cfg, 2)
    if not is_h:
        e("v_lshlrev_b32 v2, 4, v%d" % L)
        e("s_mul_i32 s41, s%d, 6144" % S_LW)
        e("v_add_u32 v2, s41, v2")
        for k in range(6):
            e("ds_write_b128 v2, %s offset:%d" % (vr(64 + 4 * k, 4), CONST_LDS + k * 1024))
        e("s_waitcnt lgkmcnt(0)")
        e("s_barrier")

def gate_issue(e, cfg, is_h, extra=False):
    B = 40 if extra else 48
    e("s_lshl_b32 s41, s%d, 3" % S_FB)
    if extra: e("s_add_u32 s41, s41, 112")
    e("s_lshl_b32 s42, s%d, 1" % S_LW)
    e("s_add_u32 s41, s41, s42")
    e("s_lshl_b32 s78, s%d, 7" % S_R)
    e("s_add_u32 s%d, s78, s41" % (77 if extra else 76))
    e("v_lshlrev_b32 v38, 4, v%d" % V_LANE)
    e("v_cmp_gt_u32 vcc, 56, v%d" % V_LANE)
    e("v_mov_b32 v37, 0x7fffffff")
    for u in range(2):
        e("s_add_u32 s78, s41, %d" % u)
        e("s_lshr_b32 s43, s78, 6")
        e("s_lshl_b32 s79, s%d, 1" % S_R)
        e("s_add_u32 s43, s43, s79")
        e("s_and_b32 s78, s78, 63")
        e("s_lshl_b32 s78, s78, 5")
        e("s_add_u32 s43, s43, s78")
        e("s_mul_i32 s43, s43, 896")
        if extra:
            e("s_cmp_ge_u32 s%d, 2" % S_FB)
            e("s_cselect_b32 s43, 0x40000000, s43")
        e("v_add_u32 v39, s43, v38")
        e("v_cndmask_b32 v39, v37, v39, vcc")
        e("buffer_load_dwordx4 %s, v39, s[%d:%d], 0 offen" % (vr(B + 4 * u, 4), S_X, S_X + 3))
        e.vm_issue("gate")
    if not extra:
        e("buffer_load_dwordx4 v[56:59], v38, s[%d:%d], 0 offen" % (S_GW, S_GW + 3))
        e.vm_issue("gate")

def gate_finish(e, cfg, extra=False):
    B = 40 if extra else 48
    e.vm_wait(["gate"])
    for u in range(2):
        e("v_mov_b32 v%d, 0" % (60 + u))
    for i in range(4):
        for u in range(2):
            e("v_dot2_f32_bf16 v%d, v%d, v%d, v%d" % (60 + u, B + 4 * u + i, 56 + i, 60 + u))
    e("s_nop 2")
    for sh in ("row_shr:1", "row_shr:2", "row_shr:4", "row_shr:8"):
        for u in range(2):
            e("v_add_f32_dpp v%d, v%d, v%d %s row_mask:0xf bank_mask:0xf bound_ctrl:0" % (60 + u, 60 + u, 60 + u, sh))
        e("s_nop 0")
    for u in range(2):
        e("v_add_f32_dpp v%d, v%d, v%d row_bcast:15 row_mask:0xa bank_mask:0xf" % (60 + u, 60 + u, 60 + u))
    e("s_nop 0")
    for u in range(2):
        e("v_add_f32_dpp v%d, v%d, v%d row_bcast:31 row_mask:0xc bank_mask:0xf" % (60 + u, 60 + u, 60 + u))
    e("s_nop 0")
    e("v_readlane_b32 s41, v60, 63")
    e("v_readlane_b32 s42, v61, 63")
    e("s_nop 1")
    e("v_mov_b32 v60, s41")
    e("v_mov_b32 v61, s42")
    e("v_cmp_eq_u32 vcc, 1, v%d" % V_LANE)
    e("s_nop 1")
    e("v_cndmask_b32 v60, v60, v61, vcc")
    e("v_mul_f32 v60, 0x%08x, v60" % f2u(-LOG2E))
    e("v_exp_f32 v60, v60")
    e("s_nop 0")
    e("v_add_f32 v60, 1.0, v60")
    e("v_rcp_f32 v60, v60")
    e("s_lshl_b32 s44, s%d, 2" % (77 if extra else 76))
    e("s_add_u32 s44, s44, 0x%x" % GBUF)
    if extra:
        e("s_cmp_ge_u32 s%d, 2" % S_FB)
        e("s_cselect_b32 s44, 0x40000000, s44")
    e("v_lshlrev_b32 v62, 2, v%d" % V_LANE)
    e("v_add_u32 v62, s44, v62")
    e("v_cmp_gt_u32 vcc, 2, v%d" % V_LANE)
    e("v_mov_b32 v37, 0x7fffffff")
    e("s_nop 0")
    e("v_cndmask_b32 v62, v37, v62, vcc")
    e("buffer_store_dword v60, v62, s[%d:%d], 0 offen%s" % (S_WS, S_WS + 3, " sc1" if cfg.fused else ""))
    e.vm_issue("gst")

def dft_consts(e, cfg):
    L = V_LANE
    e("v_and_b32 v26, 31, v%d" % L)
    e("v_lshrrev_b32 v27, 5, v%d" % L)
    e("v_lshlrev_b32 v27, 8, v27")
    e("s_lshl_b32 s41, s%d, 2" % S_QG)
    e("s_add_u32 s41, s41, s%d" % S_LW)
    e("v_add_u32 v27, s41, v27")
    e("s_mov_b32 s42, 0x%08x" % f2u(1.0 / 2048))
    for hf in range(2):
        for pr in range(4):
            for u in range(2):
                idx = 2 * pr + u
                s1c = 16 * hf + 8 * (idx >> 2) + (idx & 3)
                e("v_add_u32 v28, %d, v27" % (64 * s1c))
                e("v_mul_u32_u24 v28, v28, v26")
                e("v_and_b32 v28, 0x7ff, v28")
                e("v_cvt_f32_u32 v28, v28")
                e("v_mul_f32 v28, s42, v28")
                e("v_cos_f32 v%d, v28" % (30 + u))
                e("v_sin_f32 v%d, v28" % (32 + u))
            e("s_nop 0")
            e("v_cvt_pk_bf16_f32 v%d, v30, v31" % (64 + 4 * hf + pr))
            e("v_cvt_pk_bf16_f32 v%d, v32, v33" % (72 + 4 * hf + pr))
            e("v_xor_b32 v%d, 0x80008000, v%d" % (80 + 4 * hf + pr, 72 + 4 * hf + pr))

def entry_common(e):
    e("v_and_b32 v%d, 63, v0" % V_LANE)
    e("v_lshrrev_b32 v2, 6, v0")
    e("s_nop 0")
    e("v_readfirstlane_b32 s%d, v2" % S_WAVE)
    e("s_nop 3")

def phase1(e, cfg, after_h_consumer, after_h_loader, after_d):
    e("s_and_b32 s%d, s%d, 3" % (S_WF, S_WAVE))
    e("s_and_b32 s%d, s%d, 3" % (S_LW, S_WAVE))
    e("s_and_b32 s41, s2, 7")
    e("s_lshr_b32 s42, s2, 3")
    e("s_cmp_ge_u32 s42, 28")
    e("s_cbranch_scc1 P1_DFT")
    e("s_mul_i32 s43, s42, 37")
    e("s_lshr_b32 s43, s43, 8")
    e("s_mul_i32 s76, s43, 7")
    e("s_sub_u32 s76, s42, s76")
    e("s_lshr_b32 s77, s41, 1")
    e("s_lshl_b32 s77, s77, 2")
    e("s_add_u32 s%d, s77, s43" % S_R)
    e("s_and_b32 s77, s41, 1")
    e("s_mul_i32 s77, s77, 7")
    e("s_add_u32 s%d, s77, s76" % S_FB)
    e("s_cmp_ge_u32 s%d, 4" % S_WAVE)
    e("s_cbranch_scc1 P1_H_LOADER")
    e.vm = []; e.lg = []
    p1_consumer(e, cfg, True)
    h_epilogue(e, cfg)
    stamp(e, cfg, 3)
    after_h_consumer()
    e.label("P1_H_LOADER")
    e.vm = []; e.lg = []
    p1_loader(e, cfg, True)
    stamp(e, cfg, 3)
    after_h_loader()
    e.label("P1_DFT")
    e("s_sub_u32 s42, s42, 28")
    e("s_and_b32 s%d, s41, 1" % S_EH)
    e("s_lshr_b32 s77, s41, 1")
    e("s_lshl_b32 s77, s77, 2")
    e("s_add_u32 s%d, s77, s42" % S_QG)
    e("s_cmp_ge_u32 s%d, 4" % S_WAVE)
    e("s_cbranch_scc1 P1_D_LOADER")
    e.vm = []; e.lg = []
    p1_consumer(e, cfg, False)
    d_epilogue(e, cfg)
    stamp(e, cfg, 3)
    after_d(True)
    e.label("P1_D_LOADER")
    e.vm = []; e.lg = []
    p1_loader(e, cfg, False)
    stamp(e, cfg, 3)
    after_d(False)

P2_ACC = 64
P2_H = 96
P2_A = 208
P2_U = 224
P2_T = 240
SLICE = 40960
KSL, NB = 60, 61

def p2_setup(e, cfg):
    L = V_LANE
    e("s_and_b32 s%d, s%d, 3" % (KSL, S_WAVE))
    e("s_lshr_b32 s%d, s%d, 2" % (NB, S_WAVE))
    e("v_lshrrev_b32 v2, 3, v%d" % L)
    e("v_bfe_u32 v3, v%d, 4, 1" % L)
    e("v_lshlrev_b32 v3, 2, v3")
    e("v_and_b32 v4, 7, v%d" % L)
    e("v_xor_b32 v3, v3, v4")
    e("v_lshlrev_b32 v3, 4, v3")
    e("s_mul_i32 s41, s%d, 448" % KSL)
    e("s_lshl_b32 s42, s%d, 3" % NB)
    e("s_add_u32 s41, s41, s42")
    e("v_add_u32 v2, s41, v2")
    e("s_movk_i32 s42, 896")
    e("v_mul_lo_u32 v2, v2, s42")
    e("s_lshl_b32 s41, s%d, 7" % S_C)
    e("v_add3_u32 v10, v2, v3, s41")
    e("s_mul_i32 s62, s%d, %d" % (KSL, SLICE))
    e("s_lshl_b32 s41, s%d, 10" % NB)
    e("s_add_u32 s62, s62, s41")
    e("v_and_b32 v2, 15, v%d" % L)
    e("v_lshrrev_b32 v3, 2, v2")
    e("v_lshrrev_b32 v4, 5, v%d" % L)
    e("v_lshlrev_b32 v5, 2, v4")
    e("v_add_u32 v5, v5, v3")
    e("v_lshlrev_b32 v5, 7, v5")
    e("v_bfe_u32 v6, v2, 3, 1")
    e("v_lshlrev_b32 v6, 6, v6")
    e("v_bfe_u32 v7, v%d, 4, 1" % L)
    e("v_lshlrev_b32 v7, 5, v7")
    e("v_and_b32 v8, 3, v2")
    e("v_lshlrev_b32 v8, 3, v8")
    e("v_add3_u32 v5, v5, v6, v7")
    e("v_add_u32 v5, v5, v8")
    e("s_mul_i32 s41, s%d, %d" % (KSL, SLICE))
    e("v_add_u32 v11, s41, v5")
    e("v_xor_b32 v12, 64, v11")
    e("s_mul_i32 s41, s%d, 112" % S_T1)
    e("s_mul_i32 s42, s%d, 28" % KSL)
    e("s_add_u32 s41, s41, s42")
    e("s_lshl_b32 s41, s41, 1")
    e("s_add_u32 s41, s41, s%d" % NB)
    e("s_lshl_b32 s41, s41, 10")
    e("v_lshlrev_b32 v13, 4, v%d" % L)
    e("v_add_u32 v13, s41, v13")
    e("v_and_b32 v14, 31, v%d" % L)
    e("s_cmp_ge_u32 s%d, 4" % S_C)
    e("s_cselect_b32 s63, 1, 0")
    e("s_sub_u32 s64, 32, s%d" % S_T1)
    e("s_and_b32 s64, s64, 31")
    e("s_cmp_eq_u32 s63, 1")
    e("s_cselect_b32 s64, s64, s%d" % S_T1)
    e("v_lshrrev_b32 v4, 5, v%d" % L)
    e("s_lshl_b32 s41, s%d, 6" % S_C)
    e("s_cmp_eq_u32 s63, 1")
    e("s_cselect_b64 vcc, -1, 0")
    for mb in range(2):
        e("v_add_u32 v2, s41, v14")
        if mb: e("v_add_u32 v2, 32, v2")
        e("v_sub_u32 v3, 448, v2")
        e("v_cndmask_b32 v2, v2, v3, vcc")
        e("v_lshlrev_b32 v2, 4, v2")
        e("v_lshlrev_b32 v3, 12, v4")
        e("v_add_u32 v%d, v2, v3" % (16 + mb))
    e("s_lshl_b32 s41, s64, 4")
    e("s_lshl_b32 s42, s%d, 2" % KSL)
    e("s_add_u32 s41, s41, s42")
    e("s_lshl_b32 s41, s41, 12")
    e("s_add_u32 s65, s41, 0x%x" % UBUF)
    e("s_lshl_b32 s41, s%d, 6" % S_T1)
    e("s_lshl_b32 s42, s%d, 5" % NB)
    e("s_add_u32 s41, s41, s42")
    e("v_add_u32 v2, s41, v14")
    e("v_lshlrev_b32 v2, 2, v2")
    e("v_add_u32 v20, 0x%x, v2" % GBUF)

def p2_dma_wd(e, kk):
    st = kk >> 2
    pos = (st % 5) * 4 + (kk & 3)
    dma(e, S_WD, 10, pos * 2048, 62, kk * 16 * 896, ("wd", st))
def p2_load_h(e, cfg, kk):
    sc = " sc1" if cfg.fused else ""
    e("s_mov_b32 s%d, 0x%x" % (S_OFF, kk * 2048))
    e("buffer_load_dwordx4 %s, v13, s[%d:%d], s%d offen%s" % (vr(P2_H + 4 * kk, 4), S_WS, S_WS + 3, S_OFF, sc))
    e.vm_issue(("h", kk))
def p2_load_g(e, cfg):
    sc = " sc1" if cfg.fused else ""
    e("buffer_load_dword v15, v20, s[%d:%d], 0 offen%s" % (S_WS, S_WS + 3, sc))
    e.vm_issue("g")
def p2_load_u(e, cfg):
    sc = " sc1" if cfg.fused else ""
    for u in range(2):
        for mb in range(2):
            e("s_add_u32 s%d, s65, %d" % (S_OFF, u * 2 * 4096))
            e("buffer_load_dwordx4 %s, v%d, s[%d:%d], s%d offen%s" % (vr(P2_U + 8 * u + 4 * mb, 4), 16 + mb, S_WS, S_WS + 3, S_OFF, sc))
            e.vm_issue("u")
def p2_tfrags(e, cfg):
    L = V_LANE
    e.vm_wait(["g"])
    e("s_cmp_lg_u32 s%d, 0" % S_T1)
    e("s_cselect_b32 s41, s63, 0")
    e("s_lshl_b32 s42, s%d, 5" % NB)
    e("s_add_u32 s41, s41, s42")
    e("v_add_u32 v2, s41, v14")
    e("v_lshrrev_b32 v4, 5, v%d" % L)
    e("v_lshlrev_b32 v4, 2, v4")
    e("s_lshl_b32 s41, s63, 31")
    e("v_xor_b32 v21, s41, v15")
    e("s_mov_b32 s42, 0x%08x" % f2u(1.0 / 64))
    e("s_lshl_b32 s43, s%d, 4" % KSL)
    e("v_add_u32 v4, s43, v4")
    for u in range(2):
        for q in range(4):
            e("v_add_u32 v3, %d, v4" % (8 * u + q))
            e("v_mul_u32_u24 v3, v3, v2")
            e("v_and_b32 v3, 63, v3")
            e("v_cvt_f32_u32 v3, v3")
            e("v_mul_f32 v3, s42, v3")
            e("v_cos_f32 v5, v3")
            e("v_sin_f32 v6, v3")
            e("s_nop 0")
            e("v_mul_f32 v5, v5, v15")
            e("v_mul_f32 v6, v6, v21")
            e("v_cvt_pk_bf16_f32 v%d, v5, v6" % (P2_T + 4 * u + q))
    e("v_sub_f32 v18, 1.0, v15")
    e("v_mov_b32 v19, v18")

def p2_main(e, cfg, wd_pre=0):
    L = V_LANE
    def reads(kk):
        b = P2_A + 8 * (kk & 1)
        st = kk >> 2
        pos = (st % 5) * 4 + (kk & 3)
        for mb in range(2):
            for ip in range(2):
                e("ds_read_b64_tr_b16 %s, v%d offset:%d" % (vr(b + 4 * mb + 2 * ip, 2), 11 + mb, pos * 2048 + ip * 1024))
                e.lg_issue(("A", kk, mb))
    def issue_h(st):
        if st > 6: return
        for kk in range(4 * st, 4 * st + 4): p2_load_h(e, cfg, kk)
    def issue_w(st):
        if st > 6 or st < wd_pre: return
        for kk in range(4 * st, 4 * st + 4): p2_dma_wd(e, kk)
    def issue_both(st):
        if st > 6: return
        for kk in range(4 * st, 4 * st + 4):
            if st >= wd_pre: p2_dma_wd(e, kk)
            p2_load_h(e, cfg, kk)
    LA = cfg.p2_la
    p2_load_g(e, cfg)
    if cfg.fused:
        for st in range(LA): issue_h(st)
        p2_tfrags(e, cfg)
    else:
        for st in range(LA): issue_both(st)
        p2_tfrags(e, cfg)
        e.vm_wait([("wd", 0), ("wd", 1)])
        e("s_barrier")
    stamp(e, cfg, 1 if not cfg.fused else 6)
    reads(0)
    for kk in range(28):
        st = kk >> 2
        if (kk & 3) == 0:
            if cfg.fused:
                if st >= 1: issue_w(st + 4)
                issue_h(st + LA)
            else:
                issue_both(st + LA)
                if st + LA == 7:
                    p2_load_u(e, cfg)
        if kk + 1 < 28: reads(kk + 1)
        e.vm_wait([("h", kk)])
        b = P2_A + 8 * (kk & 1)
        for mb in range(2):
            e.lg_wait([("A", kk, mb)])
            mfma(e, P2_ACC + 16 * mb, b + 4 * mb, P2_H + 4 * kk, "0" if kk == 0 else None)
        if (kk & 3) == 3 and st < 6:
            e.vm_wait([("wd", st + 2)])
            if cfg.fused and st == cfg.p2_dpoll:
                lab = e.newlabel("DP")
                e("s_cmp_lg_u32 s%d, 0" % S_WAVE)
                e("s_cbranch_scc1 %s" % lab)
                e("s_mov_b32 s%d, 0x%x" % (S_PF, FLAGS + 16 * 128))
                poll(e, S_PF, 32)
                e.label(lab)
            e("s_barrier")
            if cfg.fused and st == cfg.p2_dpoll:
                p2_load_u(e, cfg)
    assert not e.lg
    stamp(e, cfg, 2 if not cfg.fused else 7)
    e.vm_wait(["u"])
    e("s_nop 7"); e("s_nop 3")
    for i in range(0, 32, 2):
        e("v_pk_mul_f32 %s, %s, v[18:19]" % (vr(P2_ACC + i, 2), vr(P2_ACC + i, 2)))
    e("s_nop 1")
    for u in range(2):
        for mb in range(2):
            mfma(e, P2_ACC + 16 * mb, P2_U + 8 * u + 4 * mb, P2_T + 4 * u)
    e("s_barrier")
    e("v_lshlrev_b32 v2, 4, v%d" % L)
    e("s_lshl_b32 s41, s%d, 13" % S_WAVE)
    e("v_add_u32 v3, s41, v2")
    e("s_nop 7"); e("s_nop 1")
    for qd in range(4):
        for hf in range(2):
            e("ds_write_b128 v3, %s offset:%d" % (vr(P2_ACC + 8 * qd + 4 * hf, 4), qd * 2048 + hf * 1024))
    e("s_waitcnt lgkmcnt(0)")
    e("s_barrier")
    e("s_lshl_b32 s41, s%d, 15" % NB)
    e("s_lshl_b32 s42, s%d, 11" % KSL)
    e("s_add_u32 s41, s41, s42")
    e("v_add_u32 v3, s41, v2")
    for k in range(4):
        for hf in range(2):
            e("ds_read_b128 %s, v3 offset:%d" % (vr(96 + 8 * k + 4 * hf, 4), k * 8192 + hf * 1024))
    e("s_lshl_b32 s41, s%d, 5" % NB)
    e("v_add_u32 v2, s41, v14")
    e("v_lshlrev_b32 v2, 5, v2")
    e("v_add_u32 v2, s%d, v2" % S_T1)
    e("s_movk_i32 s42, 896")
    e("v_mul_lo_u32 v2, v2, s42")
    e("s_lshl_b32 s41, s%d, 7" % S_C)
    e("s_lshl_b32 s42, s%d, 5" % KSL)
    e("s_add_u32 s41, s41, s42")
    e("v_lshrrev_b32 v4, 5, v%d" % L)
    e("v_lshlrev_b32 v4, 4, v4")
    e("v_add3_u32 v2, v2, v4, s41")
    e("s_waitcnt lgkmcnt(0)")
    for q in range(0, 8, 2):
        e("v_pk_add_f32 %s, %s, %s" % (vr(96 + q, 2), vr(96 + q, 2), vr(104 + q, 2)))
        e("v_pk_add_f32 %s, %s, %s" % (vr(112 + q, 2), vr(112 + q, 2), vr(120 + q, 2)))
    for q in range(0, 8, 2):
        e("v_pk_add_f32 %s, %s, %s" % (vr(96 + q, 2), vr(96 + q, 2), vr(112 + q, 2)))
    for q in range(4):
        e("v_cvt_pk_bf16_f32 v%d, v%d, v%d" % (128 + q, 96 + 2 * q, 96 + 2 * q + 1))
    e("s_nop 1")
    e("v_permlane32_swap_b32 v128, v130")
    e("v_permlane32_swap_b32 v129, v131")
    e("buffer_store_dwordx4 v[128:131], v2, s[%d:%d], 0 offen" % (S_OUT, S_OUT + 3))
    stamp(e, cfg, 3 if not cfg.fused else 8)

def p2_role(e):
    e("s_and_b32 s41, s2, 7")
    e("s_lshr_b32 s42, s2, 3")
    e("s_mul_i32 s43, s42, 37")
    e("s_lshr_b32 s43, s43, 8")
    e("s_mul_i32 s76, s43, 7")
    e("s_sub_u32 s%d, s42, s76" % S_C)
    e("s_lshl_b32 s41, s41, 2")
    e("s_add_u32 s%d, s41, s43" % S_T1)

def header(e, name):
    e.raw(".text"); e.raw(".globl %s" % name); e.raw(".p2align 8"); e.raw(".type %s,@function" % name); e.label(name)

def kernel1(e, cfg):
    header(e, "k1_kernel")
    e("s_cmp_ge_u32 s2, 256")
    e("s_cbranch_scc1 K1_END")
    kernarg_loads(e)
    entry_common(e)
    def fin():
        stamp_store(e, cfg, 0)
        e("s_endpgm")
    phase1(e, cfg, fin, fin, lambda c: fin())
    e.label("K1_END")
    e("s_endpgm")

def kernel2(e, cfg):
    header(e, "k2_kernel")
    e.vm = []; e.lg = []
    e("s_cmp_ge_u32 s2, 256")
    e("s_cbranch_scc1 K2_END")
    e("s_lshr_b32 s42, s2, 3")
    e("s_cmp_ge_u32 s42, 28")
    e("s_cbranch_scc1 K2_END")
    kernarg_loads(e)
    entry_common(e)
    p2_role(e)
    p2_setup(e, cfg)
    e("s_waitcnt lgkmcnt(0)")
    srd(e, S_WS, 74, WS_BYTES)
    srd(e, S_OUT, 46, 1835008)
    srd(e, S_WD, 56, 1605632)
    stamp(e, cfg, 0)
    p2_main(e, cfg, 0)
    stamp_store(e, cfg, 0x40000)
    e.label("K2_END")
    e("s_endpgm")


def nonce_issue(e):
    lab = e.newlabel("NONCE")
    srd(e, S_DBG, 72, 256)
    e("s_or_b32 s41, s2, s%d" % S_WAVE)
    e("s_cmp_lg_u32 s41, 0")
    e("s_cbranch_scc1 %s" % lab)
    e("s_memrealtime s[42:43]")
    e("s_waitcnt lgkmcnt(0)")
    e("s_or_b32 s42, s42, 1")
    e("v_mov_b32 v4, s42")
    e("v_lshlrev_b32 v5, 20, v%d" % V_LANE)
    e("buffer_store_dword v4, v5, s[%d:%d], 0 offen sc1" % (S_DBG, S_DBG + 3))
    e.label(lab)
    e("v_mov_b32 v7, 0")

def nonce_load(e):
    e("buffer_load_dword v4, v7, s[%d:%d], 0 offen sc1" % (S_DBG, S_DBG + 3))

def nonce_finish(e):
    nonce_finish_any(e)

def flag_addr(e, is_h):
    if is_h:
        e("s_lshl_b32 s41, s%d, 9" % S_R)
        e("s_lshl_b32 s42, s%d, 2" % S_FB)
    else:
        e("s_lshl_b32 s41, s%d, 1" % S_QG)
        e("s_add_u32 s41, s41, s%d" % S_EH)
        e("s_lshl_b32 s42, s41, 2")
        e("s_movk_i32 s41, %d" % (16 * 512))
    e("s_add_u32 s41, s41, s42")
    e("s_add_u32 s%d, s41, 0x%x" % (S_FLAG, FLAGS))

def flag_store(e):
    e("v_mov_b32 v60, s%d" % S_NONCE)
    e("v_lshlrev_b32 v61, 24, v%d" % V_LANE)
    e("v_add_u32 v61, s%d, v61" % S_FLAG)
    e("buffer_store_dword v60, v61, s[%d:%d], 0 offen sc1" % (S_WS, S_WS + 3))

def poll_prep(e, sbase, nflags):
    e("v_lshlrev_b32 v61, 2, v%d" % V_LANE)
    e("v_add_u32 v61, s%d, v61" % sbase)
    e("v_cmp_gt_u32 vcc, %d, v%d" % (nflags, V_LANE))
    e("v_mov_b32 v60, 0x7fffffff")
    e("s_nop 0")
    e("v_cndmask_b32 v61, v60, v61, vcc")
def poll_issue(e):
    e("buffer_load_dword v60, v61, s[%d:%d], 0 offen sc1" % (S_WS, S_WS + 3))
def poll_loop(e, nflags, first_issued):
    top = e.newlabel("POLL"); done = e.newlabel("POLLD"); chk = e.newlabel("POLLC")
    e("s_mov_b32 s41, 0")
    if first_issued: e("s_branch %s" % chk)
    e.label(top)
    poll_issue(e)
    e.label(chk)
    e("s_waitcnt vmcnt(0)")
    e("v_cmp_eq_u32 vcc, s%d, v60" % S_NONCE)
    e("s_nop 1")
    mask = (1 << nflags) - 1
    e("s_and_b32 s42, vcc_lo, 0x%x" % (mask & 0xffffffff))
    e("s_cmp_eq_u32 s42, 0x%x" % (mask & 0xffffffff))
    e("s_cbranch_scc1 %s" % done)
    e("s_add_u32 s41, s41, 1")
    e("s_cmp_ge_u32 s41, 0x40000")
    e("s_cbranch_scc1 %s" % done)
    e("s_branch %s" % top)
    e.label(done)
def poll(e, sbase, nflags, drain=True):
    poll_prep(e, sbase, nflags)
    poll_loop(e, nflags, False)

def poll_loop56(e):
    top = e.newlabel("POLL"); done = e.newlabel("POLLD")
    e("s_mov_b32 s41, 0")
    e.label(top)
    poll_issue(e)
    e("s_waitcnt vmcnt(0)")
    e("v_cmp_eq_u32 vcc, s%d, v60" % S_NONCE)
    e("s_nop 1")
    e("s_and_b32 s43, vcc_hi, 0xffffff")
    e("s_cmp_eq_u32 s43, 0xffffff")
    e("s_cselect_b32 s42, vcc_lo, 0")
    e("s_cmp_eq_u32 s42, -1")
    e("s_cbranch_scc1 %s" % done)
    e("s_add_u32 s41, s41, 1")
    e("s_cmp_ge_u32 s41, 0x40000")
    e("s_cbranch_scc1 %s" % done)
    e("s_branch %s" % top)
    e.label(done)

def poll2(e, sline1, line2):
    top = e.newlabel("POLL"); done = e.newlabel("POLLD")
    e("v_lshlrev_b32 v61, 2, v%d" % V_LANE)
    e("v_add_u32 v62, 0x%x, v61" % line2)
    e("v_add_u32 v61, s%d, v61" % sline1)
    e("v_mov_b32 v60, 0x7fffffff")
    e("v_cmp_gt_u32 vcc, 56, v%d" % V_LANE)
    e("s_nop 1")
    e("v_cndmask_b32 v61, v60, v61, vcc")
    e("v_cmp_gt_u32 vcc, 32, v%d" % V_LANE)
    e("s_nop 1")
    e("v_cndmask_b32 v62, v60, v62, vcc")
    e("s_mov_b32 s41, 0")
    e.label(top)
    e("buffer_load_dword v60, v61, s[%d:%d], 0 offen sc1" % (S_WS, S_WS + 3))
    e("buffer_load_dword v58, v62, s[%d:%d], 0 offen sc1" % (S_WS, S_WS + 3))
    e("s_waitcnt vmcnt(0)")
    e("v_cmp_eq_u32 vcc, s%d, v60" % S_NONCE)
    e("v_cmp_eq_u32 s[42:43], s%d, v58" % S_NONCE)
    e("s_nop 1")
    e("s_and_b32 s43, vcc_hi, 0xffffff")
    e("s_and_b32 s42, s42, vcc_lo")
    e("s_cmp_eq_u32 s43, 0xffffff")
    e("s_cselect_b32 s42, s42, 0")
    e("s_cmp_eq_u32 s42, -1")
    e("s_cbranch_scc1 %s" % done)
    e("s_add_u32 s41, s41, 1")
    e("s_cmp_ge_u32 s41, 0x40000")
    e("s_cbranch_scc1 %s" % done)
    e("s_branch %s" % top)
    e.label(done)

def kernel_fused(e, cfg):
    name = "gated_mix__spectral_fnet__glu_gated_glu__prompt_kernel"
    header(e, name)
    e("s_cmp_ge_u32 s2, 256")
    e("s_cbranch_scc1 KF_END")
    kernarg_loads(e)
    entry_common(e)
    def after_h_consumer():
        e.vm_wait_all()
        e("s_barrier")
        lab = e.newlabel("NOTW0")
        e("s_cmp_lg_u32 s%d, 0" % S_WAVE)
        e("s_cbranch_scc1 %s" % lab)
        flag_store(e)
        e.label(lab)
        stamp(e, cfg, 4)
        p2_role(e)
        p2_setup(e, cfg)
        srd(e, S_OUT, 46, 1835008)
        srd(e, S_WD, 56, 1605632)
        e("s_cmp_lg_u32 s%d, 0" % S_WAVE)
        e("s_cbranch_scc1 P2_START")
        e("s_lshr_b32 s43, s%d, 1" % S_T1)
        e("s_lshl_b32 s43, s43, 7")
        e("s_add_u32 s%d, s43, 0x%x" % (S_PF, FLAGS))
        poll(e, S_PF, 14)
        e("s_branch P2_START")
    def after_h_loader():
        e("s_barrier")
        p2_role(e)
        p2_setup(e, cfg)
        srd(e, S_OUT, 46, 1835008)
        e("v_subrev_u32 v9, %d, v10" % (8 * 896))
        e("s_sub_u32 s69, s62, 1024")
        for kk in range(20):
            pos = kk
            dma(e, S_WD, 9, pos * 2048, 69, kk * 16 * 896, ("wdp", kk))
            dma(e, S_WD, 10, pos * 2048, 62, kk * 16 * 896, ("wdp", kk))
        e("s_barrier")
        stamp(e, cfg, 4)
        e.vm = []
        e.label("P2_START")
        e("s_waitcnt vmcnt(0)")
        e("s_barrier")
        stamp(e, cfg, 5)
        e.vm = []; e.lg = []
        p2_main(e, cfg, 5)
        stamp_store(e, cfg, 0)
        e("s_endpgm")
    def after_d(is_cons):
        if is_cons:
            e.vm_wait_all()
            e("s_barrier")
            lab = e.newlabel("DNOTW0")
            e("s_cmp_lg_u32 s%d, 0" % S_WAVE)
            e("s_cbranch_scc1 %s" % lab)
            flag_store(e)
            e("s_waitcnt vmcnt(0)")
            e.label(lab)
            stamp_store(e, cfg, 0)
            e("s_endpgm")
        else:
            e("s_waitcnt vmcnt(0)")
            e("s_barrier")
            stamp_store(e, cfg, 0)
            e("s_endpgm")
    phase1(e, cfg, after_h_consumer, after_h_loader, after_d)
    e.label("KF_END")
    e("s_endpgm")


WB2 = 114688; NW2 = 6; WS2 = 8192
H_ACC = 64
H_FR = 192
V_XA2 = 10
V_WA2 = 18
S_WT = 69

def h2_consumer(e, cfg):
    L = V_LANE; T = 26
    e("s_lshr_b32 s%d, s%d, 1" % (S_WT, S_WAVE))
    e("s_and_b32 s%d, s%d, 1" % (S_WF, S_WAVE))
    e("v_and_b32 v%d, 31, v%d" % (T, L))
    e("v_lshrrev_b32 v%d, 5, v%d" % (T + 1, L))
    e("v_lshrrev_b32 v%d, 1, v%d" % (T + 2, T))
    e("v_and_b32 v%d, 7, v%d" % (T + 2, T + 2))
    e("s_lshl_b32 s41, s%d, 6" % S_WT)
    e("v_add_u32 v%d, s41, v%d" % (T + 3, T))
    e("v_lshlrev_b32 v%d, 7, v%d" % (T + 3, T + 3))
    for k in range(4):
        e("v_add_u32 v%d, %d, v%d" % (T + 4, 2 * k, T + 1))
        e("v_xor_b32 v%d, v%d, v%d" % (T + 4, T + 4, T + 2))
        e("v_lshlrev_b32 v%d, 4, v%d" % (T + 4, T + 4))
        e("v_add_u32 v%d, v%d, v%d" % (V_XA2 + k, T + 3, T + 4))
        e("v_add_u32 v%d, 0x10000, v%d" % (V_XA2 + 4 + k, V_XA2 + k))
    e("v_and_b32 v%d, 15, v%d" % (T + 4, L))
    e("v_lshrrev_b32 v%d, 2, v%d" % (T + 5, T + 4))
    e("v_lshlrev_b32 v%d, 7, v%d" % (T + 5, T + 5))
    e("v_lshlrev_b32 v%d, 11, v%d" % (T + 6, T + 1))
    e("v_add_u32 v%d, v%d, v%d" % (T + 6, T + 6, T + 5))
    e("v_bfe_u32 v%d, v%d, 3, 1" % (T + 7, T + 4))
    e("v_xor_b32 v%d, s%d, v%d" % (T + 7, S_WF, T + 7))
    e("v_lshlrev_b32 v%d, 6, v%d" % (T + 7, T + 7))
    e("v_add_u32 v%d, v%d, v%d" % (T + 6, T + 6, T + 7))
    e("v_bfe_u32 v%d, v%d, 4, 1" % (T + 7, L))
    e("v_lshlrev_b32 v%d, 5, v%d" % (T + 7, T + 7))
    e("v_add_u32 v%d, v%d, v%d" % (T + 6, T + 6, T + 7))
    e("v_and_b32 v%d, 3, v%d" % (T + 7, T + 4))
    e("v_lshlrev_b32 v%d, 3, v%d" % (T + 7, T + 7))
    e("v_add_u32 v%d, v%d, v%d" % (T + 6, T + 6, T + 7))
    e("v_add_u32 v%d, 0x%x, v%d" % (V_WA2, WB2, T + 6))
    e("s_lshl_b32 s41, s%d, 1" % S_R)
    e("s_add_u32 s41, s41, s%d" % S_WT)
    e("s_mul_i32 s41, s41, 112")
    e("s_lshl_b32 s42, s%d, 1" % S_FB)
    e("s_add_u32 s42, s42, s%d" % S_WF)
    e("s_lshl_b32 s42, s42, 1")
    e("s_add_u32 s41, s41, s42")
    e("s_lshl_b32 s41, s41, 11")
    e("v_lshlrev_b32 v20, 4, v%d" % L)
    e("v_add_u32 v20, s41, v20")
    e("v_add_u32 v21, 0x%x, v20" % (56 * 2048))
    e("s_waitcnt lgkmcnt(0)")
    srd(e, S_WS, 74, WS_BYTES)
    flag_addr(e, True)
    nonce_issue(e)
    stamp(e, cfg, 0)
    if "notouch" not in cfg.x:
        srd(e, S_WD, 56, 1605632)
        e("s_lshr_b32 s41, s2, 3")
        e("s_mul_i32 s41, s41, 448")
        e("s_lshl_b32 s42, s%d, 6" % S_WAVE)
        e("s_add_u32 s41, s41, s42")
        e("v_add_u32 v8, s41, v%d" % L)
        e("v_lshlrev_b32 v8, 7, v8")
        e("buffer_load_dword v2, v8, s[%d:%d], 0 offen" % (S_WD, S_WD + 3))
        e("s_cmp_eq_u32 s%d, 3" % S_WAVE)
        lab = e.newlabel("TCH")
        e("s_cbranch_scc1 %s" % lab)
        e("v_add_u32 v8, 0x%x, v8" % (256 * 128))
        e("buffer_load_dword v3, v8, s[%d:%d], 0 offen" % (S_WD, S_WD + 3))
        e.label(lab)
    e("s_barrier")
    stamp(e, cfg, 1)
    if cfg.diag:
        e("s_memtime s[76:77]"); e("s_waitcnt lgkmcnt(0)")
    def reads(g):
        p = g // 28; kap = g % 28
        base = H_FR + 16 * (g & 1)
        c = kap >> 2; kk4 = kap & 3
        xo = c * 16384
        xv = V_XA2 + kk4 + (4 if xo >= 0x10000 else 0); xo &= 0xffff
        j = g >> 1; kk = g & 1
        so = (j % NW2) * WS2
        def xr(nb): return (("X", g, nb), "ds_read_b128 %s, v%d offset:%d" % (vr(base + 4 * nb, 4), xv, xo + nb * 4096))
        def wr(m, ip): return (("W", g, m), "ds_read_b64_tr_b16 %s, v%d offset:%d" % (vr(base + 8 + 4 * m + 2 * ip, 2), V_WA2, so + kk * 4096 + ip * 512 + m * 1024))
        return [wr(0, 0), wr(0, 1), xr(0), wr(1, 0), wr(1, 1), xr(1)]
    def epi_list(p):
        ACCB = H_ACC + 64 * p
        L_ = []
        def I(txt): L_.append(lambda: e(txt))
        grp = 0
        for nb in range(2):
            for hf in range(2):
                outb = 224 + 4 * grp; grp += 1
                A = ACCB + 16 * nb + 8 * hf; B = ACCB + 32 + 16 * nb + 8 * hf
                for q in range(0, 8, 2):
                    I("v_pk_mul_f32 %s, %s, s[44:45]" % (vr(A + q, 2), vr(A + q, 2)))
                for q in range(8):
                    I("v_exp_f32 v%d, v%d" % (A + q, A + q))
                for q in range(0, 8, 2):
                    I("v_pk_add_f32 %s, %s, s[46:47]" % (vr(A + q, 2), vr(A + q, 2))) if False else I("v_pk_add_f32 %s, %s, 1.0 op_sel_hi:[1,0]" % (vr(A + q, 2), vr(A + q, 2)))
                for q in range(8):
                    I("v_rcp_f32 v%d, v%d" % (A + q, A + q))
                for q in range(0, 8, 2):
                    I("v_pk_mul_f32 %s, %s, %s" % (vr(A + q, 2), vr(A + q, 2), vr(B + q, 2)))
                for q2 in range(4):
                    I("v_cvt_pk_bf16_f32 v%d, v%d, v%d" % (outb + q2, A + 2 * q2, A + 2 * q2 + 1))
                def st(outb=outb, nb=nb, hf=hf):
                    e("buffer_store_dwordx4 %s, v%d, s[%d:%d], 0 offen offset:%d sc1" % (vr(outb, 4), 20 + p, S_WS, S_WS + 3, hf * 2048 + nb * 1024))
                    e.vm_issue("hst")
                L_.append(st)
        return L_
    e("s_mov_b32 s44, 0x%08x" % f2u(-LOG2E))
    e("s_mov_b32 s45, s44")
    def epilogue(p):
        e("s_nop 7"); e("s_nop 3")
        for f in epi_list(p): f()
    pend_epi = []
    for tag, txt in reads(0):
        e(txt); e.lg_issue(tag)
    for g in range(56):
        base = H_FR + 16 * (g & 1)
        nxt = reads(g + 1) if g + 1 < 56 else []
        first = (g % 28 == 0)
        ACCB = H_ACC + 64 * (g // 28)
        if g == 28 + cfg.epi_start and cfg.epi_rate > 0:
            pend_epi = epi_list(0)
        k = 0
        for n in range(4):
            nb = n >> 1; m = n & 1
            if "wait2" in cfg.x:
                if n == 0: e.lg_wait([("W", g, 0), ("X", g, 0)])
                if n == 1: e.lg_wait([("W", g, 1), ("X", g, 1)])
            elif "wait1" in cfg.x:
                if n == 0: e.lg_wait([("W", g, 0), ("X", g, 0), ("W", g, 1), ("X", g, 1)])
            else:
                e.lg_wait([("W", g, m), ("X", g, nb)])
            d = ACCB + 32 * m + 16 * nb
            if "nomfma" not in cfg.x:
                mfma(e, d, base + 8 + 4 * m, base + 4 * nb, "0" if first else None)
            cnt = 2 if n < 2 else 1
            if "rd3" in cfg.x: cnt = (3, 3, 0, 0)[n]
            if "rd6" in cfg.x: cnt = (6, 0, 0, 0)[n]
            for _ in range(cnt):
                if k < len(nxt):
                    tag, txt = nxt[k]; k += 1
                    if "nolds" in cfg.x: continue
                    e(txt); e.lg_issue(tag)
            for _ in range(cfg.epi_rate):
                if pend_epi: pend_epi.pop(0)()
        if g == 27 and cfg.epi_rate == 0:
            epilogue(0)
        if g == 46:
            nonce_load(e)
        if g == 2 * cfg.flagA_bar - 1:
            e("s_waitcnt vmcnt(0)")
        if (g & 1) and g < 55:
            e("s_barrier")
    assert not e.lg
    e.vm = []
    e("s_barrier")
    if cfg.diag:
        e("s_memtime s[78:79]"); e("s_waitcnt lgkmcnt(0)")
        e("s_sub_u32 s7, s78, s76")
    nonce_finish(e)
    assert not pend_epi
    stamp(e, cfg, 2)
    p2_role(e)
    flags_line(e, 0)
    poll_prep(e, S_PF, 14)
    poll_issue(e); e.vm_issue("pollA")
    epilogue(1)
    stamp(e, cfg, 3)

def h2_loader(e, cfg):
    L = V_LANE; T = 26
    VX = 10; VW = 14
    e("v_lshrrev_b32 v%d, 3, v%d" % (T, L))
    e("s_lshl_b32 s41, s%d, 5" % S_LW)
    e("v_add_u32 v%d, s41, v%d" % (T, T))
    e("v_and_b32 v%d, 7, v%d" % (T + 1, L))
    e("v_lshrrev_b32 v%d, 4, v%d" % (T + 2, L))
    e("s_movk_i32 s42, 896")
    for i in range(4):
        if i: e("v_add_u32 v%d, 8, v%d" % (T, T))
        e("v_add_u32 v%d, %d, v%d" % (T + 3, (4 * i) & 7, T + 2))
        e("v_and_b32 v%d, 7, v%d" % (T + 3, T + 3))
        e("v_xor_b32 v%d, v%d, v%d" % (T + 3, T + 3, T + 1))
        e("v_lshlrev_b32 v%d, 4, v%d" % (T + 3, T + 3))
        e("v_lshrrev_b32 v%d, 6, v%d" % (T + 4, T))
        e("v_and_b32 v%d, 63, v%d" % (T + 5, T))
        e("v_lshlrev_b32 v%d, 5, v%d" % (T + 5, T + 5))
        e("s_lshl_b32 s41, s%d, 1" % S_R)
        e("v_add3_u32 v%d, v%d, v%d, s41" % (T + 4, T + 4, T + 5))
        e("v_mul_lo_u32 v%d, v%d, s42" % (T + 4, T + 4))
        e("v_add_u32 v%d, v%d, v%d" % (VX + i, T + 4, T + 3))
        if i: e("v_subrev_u32 v%d, %d, v%d" % (VX + i, i * 1024, VX + i))
    e("v_lshrrev_b32 v%d, 3, v%d" % (T + 3, L))
    e("s_lshl_b32 s41, s%d, 3" % S_LW)
    e("v_add_u32 v%d, s41, v%d" % (T + 3, T + 3))
    e("s_movk_i32 s42, 3584")
    e("v_mul_lo_u32 v%d, v%d, s42" % (T + 3, T + 3))
    e("v_bfe_u32 v%d, v%d, 4, 1" % (T + 4, L))
    e("v_lshlrev_b32 v%d, 2, v%d" % (T + 4, T + 4))
    e("v_xor_b32 v%d, v%d, v%d" % (T + 4, T + 4, T + 1))
    e("v_lshlrev_b32 v%d, 4, v%d" % (T + 4, T + 4))
    e("s_lshl_b32 s41, s%d, 7" % S_FB)
    e("v_add3_u32 v%d, v%d, v%d, s41" % (VW, T + 3, T + 4))
    e("v_add_u32 v%d, %d, v%d" % (VW + 1, 32 * 3584, VW))
    e("v_add_u32 v%d, %d, v%d" % (VW + 2, 1792, VW))
    e("v_add_u32 v%d, %d, v%d" % (VW + 3, 1792, VW + 1))
    e("s_lshl_b32 s%d, s%d, 11" % (S_LDSW, S_LW))
    e("s_lshl_b32 s%d, s%d, 12" % (S_LDSX, S_LW))
    e("s_add_u32 s6, s%d, s%d" % (S_R, S_FB))
    e("s_mul_i32 s7, s6, 37")
    e("s_lshr_b32 s7, s7, 8")
    e("s_mul_i32 s7, s7, 7")
    e("s_sub_u32 s6, s6, s7")
    e("s_waitcnt lgkmcnt(0)")
    srd(e, S_X, 44, 1835008)
    srd(e, S_WA, 52, 1605632)
    e("s_sub_u32 s%d, s54, 1024" % S_WB)
    e("s_subb_u32 s%d, s55, 0" % (S_WB + 1))
    e("s_and_b32 s%d, s%d, 0xffff" % (S_WB + 1, S_WB + 1))
    e("s_mov_b32 s%d, 0x%x" % (S_WB + 2, 1605632 + 1024))
    e("s_mov_b32 s%d, 0x20000" % (S_WB + 3))
    srd(e, S_WS, 74, WS_BYTES)
    srd(e, S_GW, 58, 896)
    srd(e, S_WD, 56, 1605632)
    srd(e, S_DBG, 72, 256)
    def emitT(dst):
        c = dst - 44
        e("s_lshl_b32 s%d, s6, 7" % (44 + c))
        e("s_mul_i32 s%d, s6, %d" % (51 + c, 64 * 3584))
    emitT(44)
    flag_addr(e, True)
    e("v_mov_b32 v7, 0")
    stamp(e, cfg, 0)
    tdone = [1]
    def need_table(c):
        while tdone[0] <= c:
            rot_next(e, 6, 7)
            emitT(44 + tdone[0]); tdone[0] += 1
    def dx(c):
        need_table(c)
        dma_group(e, S_LDSX, c * 16384, [(S_X, VX + i, 44 + c, i * 1024, ("x", c)) for i in range(4)])
    def dw(j):
        p = j // 14; jj = j % 14; c = jj >> 1
        need_table(c)
        va = VW + 2 * p + (jj & 1)
        dma_group(e, S_LDSW, WB2 + (j % NW2) * WS2, [(S_WA, va, 51 + c, 0, ("w", j)), (S_WB, va, 51 + c, 1024, ("w", j))])
    q = []
    for j in range(28):
        if j < 14 and j % 2 == 0: q.append(("x", j // 2, -1))
        q.append(("w", j, -1 if j < NW2 else j - NW2 + 1))
    def cost(it): return 4 if it[0] == "x" else 2
    def issue(it): (dx if it[0] == "x" else dw)(it[1])
    def need(j):
        t = []
        for jj in (j, j + 1):
            if jj <= 27:
                if jj < 14: t.append(("x", jj >> 1))
                t.append(("w", jj))
        return t
    issued = set(); curbar = [-1]
    def ensure(tags):
        while q and any(t not in issued for t in tags):
            it = q.pop(0); assert it[2] <= curbar[0], (it, curbar)
            issue(it); issued.add((it[0], it[1]))
    ensure(need(0))
    budget0 = cfg.pro_extra
    while q and budget0 > 0 and q[0][2] <= -1:
        it = q.pop(0); issue(it); issued.add((it[0], it[1])); budget0 -= cost(it)
    e.vm_wait(need(0))
    e("s_barrier")
    stamp(e, cfg, 1)
    for j in range(27):
        curbar[0] = j
        ensure(need(j + 1))
        budget = cfg.stage_budget2
        while q and budget > 0 and q[0][2] <= j:
            it = q.pop(0); issue(it); issued.add((it[0], it[1])); budget -= cost(it)
        if j == 1:
            p2_role(e)
            q_setup(e, 0, 26)
        if j == 14:
            q_table(e, 44, 2 * 16 * 896)
        if j >= 16 and j % 2 == 0:
            c = (j - 16) // 2
            q_dma_pair(e, 0, c, 26, 44)
        if j == cfg.gate_j:
            gate_issue(e, cfg, True)
            gate_issue(e, cfg, True, True)
        if j == cfg.gate_j + 4:
            gate_finish(e, cfg)
            gate_finish(e, cfg, True)
            e("buffer_load_dword v4, v7, s[%d:%d], 0 offen sc1" % (S_DBG, S_DBG + 3))
            e.vm_issue("nonce")
        if j == cfg.flagA_bar - 1:
            e.vm_wait(["nonce"])
            sv = list(e.vm)
            nonce_finish_any(e, keepvm=True)
            e.vm = sv
        if j == cfg.flagA_bar:
            lab = e.newlabel("FA")
            e("s_cmp_lg_u32 s%d, 4" % S_WAVE)
            e("s_cbranch_scc1 %s" % lab)
            flag_store(e)
            e.label(lab)
        if j == cfg.epoll:
            flags_line(e, 0)
            poll_prep(e, S_PF, 14)
            poll_issue(e); e.vm_issue("poll")
        e.vm_wait(need(j + 1))
        e("s_barrier")
    assert not q
    q_setup2(e, 0)
    q_table(e, 51, 4096)
    e.vm_wait([("wd", 11)])
    e("s_waitcnt lgkmcnt(0)")
    e("s_barrier")
    stamp(e, cfg, 2)
    poll_loop(e, 14, True)
    if cfg.diag: e("s_mov_b32 s%d, s41" % (S_STAMP + 16))
    stamp(e, cfg, 4)
    e.vm = []
    cfg.stepsA = q_steps(0, [0, 1, 2, 3, 4, 5, 12, 13], 13)
    for i in range(cfg.hpre): q_issue_h(e, cfg.stepsA[i])
    q_dma_pair(e, 0, 6, 26, 44)

def nonce_finish_any(e, keepvm=False):
    lab = e.newlabel("NFA"); top = e.newlabel("NTA"); chk = e.newlabel("NCK")
    e("s_mov_b32 s42, 0")
    if keepvm: e("s_branch %s" % chk)
    e.label(top)
    e("s_waitcnt vmcnt(0)")
    e.label(chk)
    e("v_readfirstlane_b32 s%d, v4" % S_NONCE)
    e("s_nop 3")
    e("s_cmp_lg_u32 s%d, 0" % S_NONCE)
    e("s_cbranch_scc1 %s" % lab)
    e("s_add_u32 s42, s42, 1")
    e("s_cmp_ge_u32 s42, 0x40000")
    e("s_cbranch_scc1 %s" % lab)
    e("s_sleep 1")
    e("buffer_load_dword v4, v7, s[%d:%d], 0 offen sc1" % (S_DBG, S_DBG + 3))
    e("s_branch %s" % top)
    e.label(lab)

Q_ACC = 64
Q_H = 128
Q_A = 240
SL2 = 40960
SI = 3

def q_setup(e, part, vw=9):
    L = V_LANE
    e("s_and_b32 s%d, s%d, 3" % (SI, S_WAVE))
    e("v_lshrrev_b32 v2, 3, v%d" % L)
    e("v_bfe_u32 v3, v%d, 4, 1" % L)
    e("v_lshlrev_b32 v3, 2, v3")
    e("v_and_b32 v8, 7, v%d" % L)
    e("v_xor_b32 v3, v3, v8")
    e("v_lshlrev_b32 v3, 4, v3")
    e("s_mul_i32 s41, s%d, 224" % SI)
    if part: e("s_add_u32 s41, s41, 896")
    e("v_add_u32 v2, s41, v2")
    e("s_movk_i32 s42, 896")
    e("v_mul_lo_u32 v2, v2, s42")
    e("s_lshl_b32 s41, s%d, 7" % S_C)
    e("v_add3_u32 v%d, v2, v3, s41" % vw)
    e("v_add_u32 v%d, %d, v%d" % (vw + 1, 8 * 896 - 1024, vw))
    e("v_add_u32 v%d, %d, v%d" % (vw + 2, 16 * 896 - 2048, vw))
    e("v_add_u32 v%d, %d, v%d" % (vw + 3, 24 * 896 - 3072, vw))
    e("s_lshl_b32 s62, s%d, 12" % SI)
    e("s_and_b32 s4, s%d, 3" % S_T1)
    e("s_lshl_b32 s4, s4, 1")
    e("s_add_u32 s4, s4, s%d" % S_C)
    e("s_cmp_ge_u32 s4, 7")
    e("s_cselect_b32 s5, 7, 0")
    e("s_sub_u32 s4, s4, s5")
    if P2ROT[0] == 0: e("s_mov_b32 s4, 0")

def q_table(e, first, mult):
    e("s_mov_b32 s5, s4")
    for c in range(7):
        e("s_mul_i32 s%d, s5, %d" % (first + c, mult))
        if c < 6: rot_next(e, 5, 7)

def q_dma_pair(e, part, c, vw, tab):
    pos = q_pos(part, 2 * c)
    dma_group(e, 62, pos, [(S_WD, vw + i, tab + c, i * 1024, ("wd", 2 * c + (i >> 1))) for i in range(4)])

P2ROT = [1]
OSC = [""]
HSC = [" sc1"]
def q_setup2(e, part):
    L = V_LANE
    e("v_and_b32 v2, 15, v%d" % L)
    e("v_lshrrev_b32 v3, 2, v2")
    e("v_lshrrev_b32 v8, 5, v%d" % L)
    e("v_lshlrev_b32 v5, 2, v8")
    e("v_add_u32 v5, v5, v3")
    e("v_lshlrev_b32 v5, 7, v5")
    e("v_bfe_u32 v6, v2, 3, 1")
    e("v_lshlrev_b32 v6, 6, v6")
    e("v_bfe_u32 v3, v%d, 4, 1" % L)
    e("v_lshlrev_b32 v3, 5, v3")
    e("v_and_b32 v8, 3, v2")
    e("v_lshlrev_b32 v8, 3, v8")
    e("v_add3_u32 v5, v5, v6, v3")
    e("v_add_u32 v5, v5, v8")
    e("v_add_u32 v11, s62, v5")
    e("v_xor_b32 v12, 64, v11")
    e("v_add_u32 v18, 0x10000, v11")
    e("v_add_u32 v19, 0x10000, v12")
    e("v_add_u32 v15, 0x20000, v11")
    e("v_add_u32 v63, 0x20000, v12")
    e("s_mul_i32 s41, s%d, 112" % S_T1)
    e("s_mul_i32 s42, s%d, 14" % SI)
    e("s_add_u32 s41, s41, s42")
    if part: e("s_add_u32 s41, s41, 56")
    e("s_lshl_b32 s41, s41, 11")
    e("v_lshlrev_b32 v13, 4, v%d" % L)
    e("v_add_u32 v13, s41, v13")
    e("v_and_b32 v14, 31, v%d" % L)

def q_pos(part, kk):
    c = kk >> 1; u = kk & 1
    if part == 0: return c * 16384 + u * 2048
    if c < 3: return WB2 + c * 16384 + u * 2048
    if c < 6: return c * 16384 + u * 2048
    return 0 * 16384 + u * 2048

HT = [51]
def q_load_h(e, kk, hreg, hv, tag):
    c = kk >> 1; u = kk & 1
    for nb in range(2):
        e("buffer_load_dwordx4 %s, v%d, s[%d:%d], s%d offen offset:%d%s" % (vr(hreg + 4 * nb, 4), hv, S_WS, S_WS + 3, HT[0] + c, u * 2048 + nb * 1024, HSC[0]))
        e.vm_issue(tag)

def q_steps(part, kks, hv, reg0=0):
    return [dict(part=part, kk=kk, hv=hv, hreg=Q_H + 8 * (reg0 + i), tag=("h", part, kk)) for i, kk in enumerate(kks)]

def q_issue_h(e, st):
    q_load_h(e, st["kk"], st["hreg"], st["hv"], st["tag"])

def q_mainloop(e, cfg, steps, init_zero, pre, extra=None, after_i=None, barrier_before=None):
    n = len(steps)
    def reads(i):
        st = steps[i]
        b = Q_A + 8 * (i & 1)
        pos = q_pos(st["part"], st["kk"])
        for mb in range(2):
            for ip in range(2):
                va = (11 + mb) if pos < 0x10000 else (18 + mb)
                po = pos if pos < 0x10000 else pos - 0x10000
                if pos >= 0x20000:
                    va = (15, 63)[mb]; po = pos - 0x20000
                e("ds_read_b64_tr_b16 %s, v%d offset:%d" % (vr(b + 4 * mb + 2 * ip, 2), va, po + ip * 1024))
                e.lg_issue(("A", i, mb))
    nxt = pre
    e.vm_wait([("wd", steps[0]["kk"])])
    reads(0)
    for i in range(n):
        st = steps[i]
        if nxt < n:
            q_issue_h(e, steps[nxt]); nxt += 1
            if nxt == n and extra: extra()
        late = (barrier_before is not None and i + 1 == barrier_before)
        if i + 1 < n and not late:
            e.vm_wait([("wd", steps[i + 1]["kk"])])
            reads(i + 1)
        e.vm_wait([st["tag"]])
        b = Q_A + 8 * (i & 1)
        for mb in range(2):
            e.lg_wait([("A", i, mb)])
            for nb in range(2):
                mfma(e, Q_ACC + 16 * (2 * mb + nb), b + 4 * mb, st["hreg"] + 4 * nb, "0" if (i == 0 and init_zero) else None)
        if late:
            e("s_barrier")
            reads(i + 1)
        if after_i: after_i(i)
    assert not e.lg and nxt >= n

def flags_line(e, part):
    e("s_lshr_b32 s43, s%d, 1" % S_T1)
    e("s_lshl_b32 s43, s43, 9")
    e("s_add_u32 s%d, s43, 0x%x" % (S_PF, FLAGS + 256 * part))

def q_loader_A(e, cfg):
    for i in range(4):
        e("v_add_u32 v%d, %d, v%d" % (20 + i, 896 * 896, 26 + i))
    stamp(e, cfg, 5)
    def after_i(i):
        if i == 1:
            dma_group(e, 62, q_pos(1, 12), [(S_WD, 20 + k, 44 + 6, k * 1024, ("wdb", 6)) for k in range(4)])
    q_mainloop(e, cfg, cfg.stepsA, True, cfg.hpre, None, after_i)
    stamp(e, cfg, 6)
    e("v_lshlrev_b32 v2, 4, v%d" % V_LANE)
    e("v_add_u32 v2, s62, v2")
    e("v_add_u32 v3, 0x10000, v2")
    e("s_nop 7"); e("s_nop 3")
    for tl, (va, off) in enumerate(((2, 16384), (2, 32768), (3, 6 * 16384 - 0x10000))):
        for qq in range(4):
            e("ds_write_b128 v%d, %s offset:%d" % (va, vr(Q_ACC + 16 * tl + 4 * qq, 4), off + qq * 1024))
    e("s_waitcnt vmcnt(0) lgkmcnt(0)")
    e.vm = []
    e("s_barrier")
    stamp(e, cfg, 7)
    e("v_add_u32 v3, 0x%x, v2" % WB2)
    for qq in range(4):
        e("ds_write_b128 v3, %s offset:%d" % (vr(Q_ACC + 48 + 4 * qq, 4), qq * 1024))
    e("s_waitcnt lgkmcnt(0)")
    e("s_barrier")

def q_consumer_B(e, cfg):
    L = V_LANE
    q_setup(e, 1, 26)
    q_setup2(e, 1)
    e("v_subrev_u32 v9, %d, v13" % (56 * 2048))
    srd(e, S_OUT, 46, 1835008)
    srd(e, S_WD, 56, 1605632)
    q_table(e, 44, 2 * 16 * 896)
    q_table(e, 51, 4096)
    e.vm_wait(["pollA"])
    okA = e.newlabel("AOK")
    e("v_cmp_eq_u32 vcc, s%d, v60" % S_NONCE)
    e("s_nop 1")
    e("s_and_b32 s42, vcc_lo, 0x3fff")
    e("s_cmp_eq_u32 s42, 0x3fff")
    e("s_cbranch_scc1 %s" % okA)
    svm = list(e.vm)
    poll_loop(e, 14, False)
    e.vm = svm
    e.label(okA)
    stepsCA = q_steps(0, [6, 7, 8, 9, 10, 11], 9)
    for st in stepsCA[:cfg.preCA]: q_issue_h(e, st)
    e("s_cmp_ge_u32 s%d, 4" % S_C)
    e("s_cselect_b32 s63, 1, 0")
    e("s_sub_u32 s64, 32, s%d" % S_T1)
    e("s_and_b32 s64, s64, 31")
    e("s_cmp_eq_u32 s63, 1")
    e("s_cselect_b32 s64, s64, s%d" % S_T1)
    e("v_lshrrev_b32 v8, 5, v%d" % L)
    e("s_lshl_b32 s41, s%d, 6" % S_C)
    e("s_cmp_eq_u32 s63, 1")
    e("s_cselect_b64 vcc, -1, 0")
    for mb in range(2):
        e("v_add_u32 v2, s41, v14")
        if mb: e("v_add_u32 v2, 32, v2")
        e("v_sub_u32 v3, 448, v2")
        e("v_cndmask_b32 v2, v2, v3, vcc")
        e("v_lshlrev_b32 v2, 4, v2")
        e("v_lshlrev_b32 v3, 12, v8")
        e("v_add_u32 v%d, v2, v3" % (16 + mb))
    e("s_lshl_b32 s41, s64, 4")
    e("s_lshl_b32 s42, s%d, 2" % SI)
    e("s_add_u32 s41, s41, s42")
    e("s_lshl_b32 s41, s41, 12")
    e("s_add_u32 s65, s41, 0x%x" % UBUF)
    e("s_lshl_b32 s41, s%d, 6" % S_T1)
    e("v_add_u32 v2, s41, v14")
    e("v_lshlrev_b32 v2, 2, v2")
    e("v_add_u32 v20, 0x%x, v2" % GBUF)
    e("s_mul_i32 s41, s61, 12")
    e("s_lshl_b32 s42, s%d, 2" % S_WAVE)
    e("s_add_u32 s41, s41, s42")
    e("s_add_u32 s41, s41, 256")
    e("s_add_u32 s%d, s%d, s41" % (S_FLAG, S_FLAG))
    e.vm_wait(["hst"])
    stamp(e, cfg, 6)
    flag_store(e)
    e.vm_issue("flagB")
    for st in stepsCA[cfg.preCA:]: q_issue_h(e, st)
    for c in range(3): q_dma_pair(e, 1, c, 26, 44)
    for nb in range(2):
        e("buffer_load_dword v%d, v20, s[%d:%d], 0 offen offset:%d sc1" % (22 + nb, S_WS, S_WS + 3, nb * 128))
        e.vm_issue("g")
    def afterA(i):
        if i & 1:
            c = 3 + (i >> 1)
            q_dma_pair(e, 1, c, 26, 44)
    q_mainloop(e, cfg, stepsCA, True, len(stepsCA), None, afterA)
    stamp(e, cfg, 4)
    flags_line(e, 1)
    poll_prep(e, S_PF, 56)
    poll_loop56(e)
    stamp(e, cfg, 5)
    e.vm = []
    e("v_lshlrev_b32 v62, 2, v%d" % V_LANE)
    e("v_add_u32 v62, 0x%x, v62" % (FLAGS + 16 * 512))
    e("v_mov_b32 v60, 0x7fffffff")
    e("v_cmp_gt_u32 vcc, 32, v%d" % V_LANE)
    e("s_nop 1")
    e("v_cndmask_b32 v62, v60, v62, vcc")
    def uloads():
        for u in range(2):
            for mb in range(2):
                e("s_add_u32 s%d, s65, %d" % (S_OFF, u * 2 * 4096))
                e("buffer_load_dwordx4 %s, v%d, s[%d:%d], s%d offen sc1" % (vr(44 + 8 * u + 4 * mb, 4), 16 + mb, S_WS, S_WS + 3, S_OFF))
                e.vm_issue("u")
    def dflag_issue():
        e("buffer_load_dword v58, v62, s[%d:%d], 0 offen sc1" % (S_WS, S_WS + 3))
        e.vm_issue("dflag")
    def after_k(kk):
        if kk == cfg.dchk:
            ok = e.newlabel("DOK"); top = e.newlabel("DSP")
            e.vm_wait(["dflag"])
            sv = list(e.vm)
            e("s_mov_b32 s41, 0")
            e.label(top)
            e("v_cmp_eq_u32 vcc, s%d, v58" % S_NONCE)
            e("s_nop 1")
            e("s_cmp_eq_u32 vcc_lo, -1")
            e("s_cbranch_scc1 %s" % ok)
            e("s_add_u32 s41, s41, 1")
            e("s_cmp_ge_u32 s41, 0x40000")
            e("s_cbranch_scc1 %s" % ok)
            e("buffer_load_dword v58, v62, s[%d:%d], 0 offen sc1" % (S_WS, S_WS + 3))
            e("s_waitcnt vmcnt(0)")
            e("s_branch %s" % top)
            e.label(ok)
            e.vm = sv
            uloads()
    stepsB = q_steps(1, list(range(14)), 13)
    for i in range(cfg.hpreB): q_issue_h(e, stepsB[i])
    e("s_cmp_lg_u32 s%d, 0" % S_T1)
    e("s_cselect_b32 s41, s63, 0")
    e("v_add_u32 v2, s41, v14")
    e("v_lshrrev_b32 v8, 5, v%d" % L)
    e("v_lshlrev_b32 v8, 2, v8")
    e("s_lshl_b32 s43, s%d, 4" % SI)
    e("v_add_u32 v8, s43, v8")
    e("s_lshl_b32 s41, s63, 31")
    e("s_mov_b32 s42, 0x%08x" % f2u(1.0 / 64))
    for nb in range(2):
        if nb: e("v_add_u32 v2, 32, v2")
        e("v_xor_b32 v21, s41, v%d" % (22 + nb))
        for u in range(2):
            for q in range(4):
                e("v_add_u32 v3, %d, v8" % (8 * u + q))
                e("v_mul_u32_u24 v3, v3, v2")
                e("v_and_b32 v3, 63, v3")
                e("v_cvt_f32_u32 v3, v3")
                e("v_mul_f32 v3, s42, v3")
                e("v_cos_f32 v5, v3")
                e("v_sin_f32 v6, v3")
                e("s_nop 0")
                e("v_mul_f32 v5, v5, v%d" % (22 + nb))
                e("v_mul_f32 v6, v6, v21")
                e("v_cvt_pk_bf16_f32 v%d, v5, v6" % (24 + 8 * nb + 4 * u + q))
    for nb in range(2):
        e("v_sub_f32 v%d, 1.0, v%d" % (40 + 2 * nb, 22 + nb))
        e("v_mov_b32 v%d, v%d" % (41 + 2 * nb, 40 + 2 * nb))
    q_mainloop(e, cfg, stepsB, False, cfg.hpreB, dflag_issue, after_k, 2)
    stamp(e, cfg, 7)
    e("s_nop 7"); e("s_nop 3")
    for mb in range(2):
        for nb in range(2):
            D = Q_ACC + 16 * (2 * mb + nb)
            for i in range(0, 16, 2):
                e("v_pk_mul_f32 %s, %s, %s" % (vr(D + i, 2), vr(D + i, 2), vr(40 + 2 * nb, 2)))
    e.vm_wait(["u"])
    e("s_nop 1")
    for u in range(2):
        for mb in range(2):
            for nb in range(2):
                mfma(e, Q_ACC + 16 * (2 * mb + nb), 44 + 8 * u + 4 * mb, 24 + 8 * nb + 4 * u)
    e("s_barrier")
    e("v_lshlrev_b32 v2, 4, v%d" % L)
    e("s_add_u32 s41, s%d, 2" % SI)
    e("s_cmp_eq_u32 s%d, 0" % SI)
    e("s_cselect_b32 s41, 0, s41")
    e("s_lshl_b32 s41, s41, 14")
    e("v_add_u32 v3, s41, v2")
    e("s_add_u32 s41, s%d, 1" % SI)
    e("s_lshl_b32 s41, s41, 14")
    e("s_cmp_eq_u32 s%d, 2" % SI)
    e("s_cselect_b32 s41, %d, s41" % (6 * 16384))
    e("s_cmp_eq_u32 s%d, 3" % SI)
    e("s_cselect_b32 s41, 0x%x, s41" % WB2)
    e("v_add_u32 v5, s41, v2")
    for k in range(4):
        for qq in range(4):
            e("ds_read_b128 %s, v5 offset:%d" % (vr(192 + 16 * k + 4 * qq, 4), k * 4096 + qq * 1024))
        if k == 2: e("s_waitcnt lgkmcnt(8)")
    e("s_waitcnt lgkmcnt(6)")
    for tl in range(4):
        for qq in range(4):
            e("ds_write_b128 v3, %s offset:%d" % (vr(Q_ACC + 16 * tl + 4 * qq, 4), tl * 4096 + qq * 1024))
        if tl < 3: e("s_waitcnt lgkmcnt(6)")
    e("s_waitcnt lgkmcnt(0)")
    e("s_barrier")
    e("s_lshl_b32 s41, s%d, 12" % SI)
    e("v_add_u32 v3, s41, v2")
    e("v_add_u32 v6, 0x10000, v3")
    for k, (va, off) in enumerate(((3, 0), (3, 3 * 16384), (6, 0), (6, 16384))):
        for qq in range(4):
            e("ds_read_b128 %s, v%d offset:%d" % (vr(128 + 16 * k + 4 * qq, 4), va, off + qq * 1024))
        if k == 2: e("s_waitcnt lgkmcnt(8)")
    for q in range(0, 16, 2):
        e("v_pk_add_f32 %s, %s, %s" % (vr(192 + q, 2), vr(192 + q, 2), vr(208 + q, 2)))
        e("v_pk_add_f32 %s, %s, %s" % (vr(224 + q, 2), vr(224 + q, 2), vr(240 + q, 2)))
    for q in range(0, 16, 2):
        e("v_pk_add_f32 %s, %s, %s" % (vr(192 + q, 2), vr(192 + q, 2), vr(224 + q, 2)))
    e("s_and_b32 s41, s%d, 1" % SI)
    e("s_cmp_eq_u32 s41, 1")
    e("s_cselect_b64 vcc, -1, 0")
    e("s_nop 1")
    e("v_cndmask_b32 v40, v40, v42, vcc")
    e("v_mov_b32 v41, v40")
    e("s_lshl_b32 s41, s41, 5")
    e("v_add_u32 v2, s41, v14")
    e("v_lshlrev_b32 v2, 5, v2")
    e("v_add_u32 v2, s%d, v2" % S_T1)
    e("s_movk_i32 s42, 896")
    e("v_mul_lo_u32 v2, v2, s42")
    e("s_lshl_b32 s41, s%d, 7" % S_C)
    e("s_lshr_b32 s42, s%d, 1" % SI)
    e("s_lshl_b32 s42, s42, 6")
    e("s_add_u32 s41, s41, s42")
    e("v_lshrrev_b32 v8, 5, v%d" % L)
    e("v_lshlrev_b32 v8, 4, v8")
    e("v_add3_u32 v2, v2, v8, s41")
    e("s_waitcnt lgkmcnt(0)")
    for q in range(0, 16, 2):
        e("v_pk_add_f32 %s, %s, %s" % (vr(128 + q, 2), vr(128 + q, 2), vr(144 + q, 2)))
        e("v_pk_add_f32 %s, %s, %s" % (vr(160 + q, 2), vr(160 + q, 2), vr(176 + q, 2)))
    for q in range(0, 16, 2):
        e("v_pk_fma_f32 %s, %s, %s, %s" % (vr(128 + q, 2), vr(192 + q, 2), vr(40, 2), vr(128 + q, 2)))
    for q in range(0, 16, 2):
        e("v_pk_add_f32 %s, %s, %s" % (vr(128 + q, 2), vr(128 + q, 2), vr(160 + q, 2)))
    for q in range(8):
        e("v_cvt_pk_bf16_f32 v%d, v%d, v%d" % (96 + q, 128 + 2 * q, 128 + 2 * q + 1))
    e("s_nop 1")
    for ih in range(2):
        e("v_permlane32_swap_b32 v%d, v%d" % (96 + 4 * ih, 98 + 4 * ih))
        e("v_permlane32_swap_b32 v%d, v%d" % (97 + 4 * ih, 99 + 4 * ih))
    for ih in range(2):
        e("buffer_store_dwordx4 %s, v2, s[%d:%d], 0 offen offset:%d%s" % (vr(96 + 4 * ih, 4), S_OUT, S_OUT + 3, ih * 32, OSC[0]))
    stamp(e, cfg, 8)

def kernel_fused2(e, cfg):
    name = "gated_mix__spectral_fnet__glu_gated_glu__prompt_kernel"
    header(e, name)
    e("s_cmp_ge_u32 s2, 256")
    e("s_cbranch_scc1 KF_END")
    kernarg_loads(e)
    entry_common(e)
    e("s_and_b32 s%d, s%d, 3" % (S_WF, S_WAVE))
    e("s_and_b32 s%d, s%d, 3" % (S_LW, S_WAVE))
    e("s_and_b32 s41, s2, 7")
    e("s_lshr_b32 s42, s2, 3")
    e("s_cmp_ge_u32 s42, 28")
    e("s_cbranch_scc1 P1_DFT")
    e("s_mul_i32 s43, s42, 37")
    e("s_lshr_b32 s43, s43, 8")
    e("s_mul_i32 s76, s43, 7")
    e("s_sub_u32 s76, s42, s76")
    e("s_lshr_b32 s77, s41, 1")
    e("s_lshl_b32 s77, s77, 2")
    e("s_add_u32 s%d, s77, s43" % S_R)
    e("s_and_b32 s77, s41, 1")
    e("s_mul_i32 s77, s77, 7")
    e("s_add_u32 s%d, s77, s76" % S_FB)
    e("s_cmp_ge_u32 s%d, 4" % S_WAVE)
    e("s_cbranch_scc1 P1_H_LOADER")
    e.vm = []; e.lg = []
    h2_consumer(e, cfg)
    q_consumer_B(e, cfg)
    stamp_store(e, cfg, 0)
    e("s_endpgm")
    e.label("P1_H_LOADER")
    e.vm = []; e.lg = []
    h2_loader(e, cfg)
    q_loader_A(e, cfg)
    stamp_store(e, cfg, 0)
    e("s_endpgm")
    e.label("P1_DFT")
    e("s_sub_u32 s42, s42, 28")
    e("s_and_b32 s%d, s41, 1" % S_EH)
    e("s_lshr_b32 s77, s41, 1")
    e("s_lshl_b32 s77, s77, 2")
    e("s_add_u32 s%d, s77, s42" % S_QG)
    e("s_cmp_ge_u32 s%d, 4" % S_WAVE)
    e("s_cbranch_scc1 P1_D_LOADER")
    e.vm = []; e.lg = []
    p1_consumer(e, cfg, False)
    d_epilogue(e, cfg)
    stamp(e, cfg, 3)
    e.vm_wait_all()
    e("s_barrier")
    lab = e.newlabel("DNOTW0")
    e("s_cmp_lg_u32 s%d, 0" % S_WAVE)
    e("s_cbranch_scc1 %s" % lab)
    flag_store(e)
    e("s_waitcnt vmcnt(0)")
    e.label(lab)
    stamp_store(e, cfg, 0)
    e("s_endpgm")
    e.label("P1_D_LOADER")
    e.vm = []; e.lg = []
    p1_loader(e, cfg, False)
    stamp(e, cfg, 3)
    e("s_waitcnt vmcnt(0)")
    e("s_barrier")
    stamp_store(e, cfg, 0)
    e("s_endpgm")
    e.label("KF_END")
    e("s_endpgm")

def descriptor(name):
    return """.section .rodata,"a"
.p2align 6
.amdhsa_kernel %s
  .amdhsa_next_free_vgpr 256
  .amdhsa_next_free_sgpr 102
  .amdhsa_accum_offset 256
  .amdhsa_group_segment_fixed_size 0
  .amdhsa_kernarg_size 104
  .amdhsa_user_sgpr_count 2
  .amdhsa_user_sgpr_kernarg_segment_ptr 1
  .amdhsa_system_sgpr_workgroup_id_x 1
.end_amdhsa_kernel
""" % name

def main():
    cfg = Cfg()
    cfg.pro_extra = 8; cfg.stage_budget = 8; cfg.p2_la = 3; cfg.p2_dpoll = 4; cfg.stage_budget2 = 6; cfg.flagA_bar = 25; cfg.epi_rate = 3; cfg.epi_start = 1; cfg.epoll = 26; cfg.hpre = 5; cfg.preCA = 3; cfg.hpreB = 5; cfg.dchk = 11; cfg.gate_j = 8
    out = sys.argv[1]
    for a in sys.argv[2:]:
        if a == "nop2rot": P2ROT[0] = 0
        if a == "osc1": OSC[0] = " sc1"
        if a == "ont": OSC[0] = " nt"
        if a == "osc01": OSC[0] = " sc0 sc1"
        if a == "hplain": HSC[0] = ""
        if a == "hnt": HSC[0] = " nt"
        if a == "hsc01": HSC[0] = " sc0 sc1"
        if a == "diag": cfg.diag = True
        elif a == "fused": cfg.fused = True
        elif "=" in a:
            k, v = a.split("="); setattr(cfg, k, int(v))
        else: cfg.x = cfg.x | {a}
    e = Em()
    if cfg.fused:
        name = "gated_mix__spectral_fnet__glu_gated_glu__prompt_kernel"
        hdr = "; generated by gen2.py (fused)\n; @launch grid=(256,1,1) block=(512,1,1) lds=163840\n"
        hdr += '.amdgcn_target "amdgcn-amd-amdhsa--gfx950"\n'
        kernel_fused2(e, cfg)
        open(out, "w").write(hdr + e.text() + descriptor(name))
        return
    hdr = "; generated by gen2.py\n"
    hdr += "; @launch kernel=k1_kernel grid=(256,1,1) block=(512,1,1) lds=163840\n"
    hdr += "; @launch kernel=k2_kernel grid=(256,1,1) block=(512,1,1) lds=163840\n"
    hdr += '.amdgcn_target "amdgcn-amd-amdhsa--gfx950"\n'
    kernel1(e, cfg)
    kernel2(e, cfg)
    txt = hdr + e.text() + descriptor("k1_kernel") + descriptor("k2_kernel")
    open(out, "w").write(txt)
if __name__ == "__main__":
    main()
```

```python
import sys, math, struct

def f2u(f): return struct.unpack("<I", struct.pack("<f", f))[0]

class Em:
    def __init__(self):
        self.lines = []
        self.vm = []
        self.lg = []
        self.nlab = 0
    def __call__(self, s): self.lines.append("    " + s)
    def raw(self, s): self.lines.append(s)
    def label(self, s): self.lines.append(s + ":")
    def newlabel(self, p):
        self.nlab += 1
        return "%s_%d" % (p, self.nlab)
    def vm_issue(self, tag): self.vm.append(tag)
    def vm_wait(self, tags):
        last = -1
        for i, t in enumerate(self.vm):
            if t in tags: last = i
        if last < 0: return
        n = len(self.vm) - 1 - last
        assert n <= 63, n
        self("s_waitcnt vmcnt(%d)" % n)
        self.vm = self.vm[last + 1:]
    def vm_wait_all(self):
        self("s_waitcnt vmcnt(0)"); self.vm = []
    def lg_issue(self, tag): self.lg.append(tag)
    def lg_wait(self, tags):
        last = -1
        for i, t in enumerate(self.lg):
            if t in tags: last = i
        if last < 0: return
        n = len(self.lg) - 1 - last
        assert n <= 15, n
        self("s_waitcnt lgkmcnt(%d)" % n)
        self.lg = self.lg[last + 1:]
    def lg_wait_all(self):
        self("s_waitcnt lgkmcnt(0)"); self.lg = []
    def text(self): return "\n".join(self.lines) + "\n"

def vr(a, n=1): return "v%d" % a if n == 1 else "v[%d:%d]" % (a, a + n - 1)

HBUF = 0
UBUF = 0x700000
GBUF = 0x900000
FLAGS = 0x910000
DIAG = 0xA00000
WS_BYTES = 0x1000000
LOG2E = 1.4426950408889634

S_X = 8; S_WA = 12; S_WB = 16; S_WS = 20; S_GW = 24; S_OUT = 28; S_WD = 32; S_DBG = 36
S_WAVE = 40
S_R = 60; S_FB = 61; S_QG = 62; S_EH = 63
S_WF = 64; S_LW = 65
S_LDSW = 66; S_LDSX = 67
S_OFF = 68
S_T1 = 70; S_C = 71
S_STAMP = 80
S_NONCE = 98; S_FLAG = 99; S_PF = 100
V_LANE = 1

class Cfg:
    fused = False
    diag = False
    x = set()

def kernarg_loads(e):
    e("s_load_dwordx2 s[44:45], s[0:1], 0")
    e("s_load_dwordx4 s[48:51], s[0:1], 24")
    e("s_load_dwordx4 s[52:55], s[0:1], 48")
    e("s_load_dwordx4 s[56:59], s[0:1], 64")
    e("s_load_dwordx2 s[46:47], s[0:1], 80")
    e("s_load_dwordx4 s[72:75], s[0:1], 88")

def srd(e, dst, lo, nbytes):
    e("s_mov_b32 s%d, s%d" % (dst, lo))
    e("s_and_b32 s%d, s%d, 0xffff" % (dst + 1, lo + 1))
    e("s_mov_b32 s%d, 0x%x" % (dst + 2, nbytes))
    e("s_mov_b32 s%d, 0x20000" % (dst + 3))

NSTAMP = 6
def stamp(e, cfg, k):
    if cfg.diag:
        assert not e.lg
        e("s_memrealtime s[%d:%d]" % (S_STAMP + 2 * k, S_STAMP + 2 * k + 1))
        if k in (1, 2) and not cfg.fused:
            e("s_memtime s[%d:%d]" % (S_STAMP + 12 + 2 * (k - 1), S_STAMP + 13 + 2 * (k - 1)))
        e("s_waitcnt lgkmcnt(0)")

def stamp_store(e, cfg, slot_base):
    if not cfg.diag: return
    e("s_lshl_b32 s41, s2, 3")
    e("s_add_u32 s41, s41, s%d" % S_WAVE)
    e("s_lshl_b32 s41, s41, 6")
    e("s_add_u32 s41, s41, 0x%x" % (DIAG + slot_base))
    e("v_mov_b32 v1, s41")
    for k in range(9 if cfg.fused else NSTAMP + 2):
        e("v_mov_b32 v2, s%d" % (S_STAMP + 2 * k))
        e("buffer_store_dword v2, v1, s[%d:%d], 0 offen offset:%d" % (S_WS, S_WS + 3, 4 * k))
        e("s_nop 1")
    e("v_mov_b32 v2, s7")
    e("buffer_store_dword v2, v1, s[%d:%d], 0 offen offset:36" % (S_WS, S_WS + 3))
    e("s_waitcnt vmcnt(0)")

def mfma(e, d, a, b, c=None):
    cs = vr(d, 16) if c is None else c
    e("v_mfma_f32_32x32x16_bf16 %s, %s, %s, %s" % (vr(d, 16), vr(a, 4), vr(b, 4), cs))

NODMA = [False]
def dma_group(e, sldsbase, ldsconst, items):
    e("s_add_u32 m0, s%d, 0x%x" % (sldsbase, ldsconst))
    e("s_nop 0")
    for (srdreg, vaddr, soff, ioff, tag) in items:
        e("buffer_load_dwordx4 v%d, s[%d:%d], s%d offen offset:%d lds" % (vaddr, srdreg, srdreg + 3, soff, ioff))
        e.vm_issue(tag)
def fill_table(e, first, n, scnt, mod, emit):
    for c in range(n):
        emit(first + c)
        if c + 1 < n: rot_next(e, scnt, mod)
def rot_next(e, sreg, n):
    e("s_add_u32 s%d, s%d, 1" % (sreg, sreg))
    e("s_cmp_eq_u32 s%d, %d" % (sreg, n))
    e("s_cselect_b32 s%d, 0, s%d" % (sreg, sreg))
def dma(e, srdreg, vaddr, ldsconst, sldswave, soff, tag):
    if NODMA[0]:
        e.vm_issue(tag); e.vm.pop(); return
    e("s_add_u32 m0, s%d, 0x%x" % (sldswave, ldsconst))
    if soff is None:
        e("s_nop 0")
    else:
        e("s_mov_b32 s%d, 0x%x" % (S_OFF, soff))
    e("buffer_load_dwordx4 v%d, s[%d:%d], s%d offen lds" % (vaddr, srdreg, srdreg + 3, S_OFF))
    e.vm_issue(tag)

XSLOT = 16384; NX = 4
WBASE = 65536; NW = 6; WSLOT = 16384
ACC = 64
def accA(i): return ACC + 16 * i
def accB(i): return ACC + 64 + 16 * i
FR = 192
V_XA = 10
V_WA = 14
CONST_LDS = 0

def p1_consumer_addr(e, is_h):
    L = V_LANE; T = 26
    e("v_and_b32 v%d, 31, v%d" % (T, L))
    e("v_lshrrev_b32 v%d, 5, v%d" % (T + 1, L))
    e("v_lshrrev_b32 v%d, 1, v%d" % (T + 2, T))
    e("v_and_b32 v%d, 7, v%d" % (T + 2, T + 2))
    e("v_lshlrev_b32 v%d, 7, v%d" % (T + 3, T))
    if not is_h:
        e("s_lshl_b32 s41, s%d, 5" % S_WF)
        e("v_add_u32 v%d, s41, v%d" % (T + 5, T))
        e("v_lshlrev_b32 v%d, 7, v%d" % (T + 5, T + 5))
        e("v_add_u32 v%d, 0x%x, v%d" % (T + 5, WBASE, T + 5))
    for k in range(4):
        e("v_add_u32 v%d, %d, v%d" % (T + 4, 2 * k, T + 1))
        e("v_xor_b32 v%d, v%d, v%d" % (T + 4, T + 4, T + 2))
        e("v_lshlrev_b32 v%d, 4, v%d" % (T + 4, T + 4))
        e("v_add_u32 v%d, v%d, v%d" % (V_XA + k, T + 3, T + 4))
        if not is_h:
            e("v_add_u32 v%d, v%d, v%d" % (V_WA + k, T + 5, T + 4))
            e("v_add_u32 v%d, 0x10000, v%d" % (V_WA + 4 + k, V_WA + k))
    if is_h:
        e("v_and_b32 v%d, 15, v%d" % (T + 4, L))
        e("v_lshrrev_b32 v%d, 2, v%d" % (T + 5, T + 4))
        e("v_lshlrev_b32 v%d, 3, v%d" % (T + 6, T + 1))
        e("v_add_u32 v%d, v%d, v%d" % (T + 6, T + 6, T + 5))
        e("v_lshlrev_b32 v%d, 8, v%d" % (T + 6, T + 6))
        e("v_xor_b32 v%d, s%d, v%d" % (T + 7, S_WF, T + 5))
        e("v_lshlrev_b32 v%d, 6, v%d" % (T + 7, T + 7))
        e("v_add_u32 v%d, v%d, v%d" % (T + 6, T + 6, T + 7))
        e("v_bfe_u32 v%d, v%d, 4, 1" % (T + 7, L))
        e("v_lshlrev_b32 v%d, 5, v%d" % (T + 7, T + 7))
        e("v_add_u32 v%d, v%d, v%d" % (T + 6, T + 6, T + 7))
        e("v_and_b32 v%d, 3, v%d" % (T + 7, T + 4))
        e("v_lshlrev_b32 v%d, 3, v%d" % (T + 7, T + 7))
        e("v_add_u32 v%d, v%d, v%d" % (T + 6, T + 6, T + 7))
        e("v_add_u32 v%d, 0x%x, v%d" % (V_WA, WBASE, T + 6))
        e("v_add_u32 v%d, 0x%x, v%d" % (V_WA + 1, WBASE + 0x10000, T + 6))

def p1_reads(kap, is_h):
    base = FR + 24 * (kap & 1)
    c = kap >> 2; kk4 = kap & 3
    def xr(nb): return (("X", kap, nb), "ds_read_b128 %s, v%d offset:%d" % (vr(base + 4 * nb, 4), V_XA + kk4, (c % NX) * XSLOT + nb * 4096))
    if is_h:
        j = kap >> 1; kk = kap & 1
        slot = (j % NW) * WSLOT
        va = V_WA + (1 if slot >= 0x10000 else 0); so = slot & 0xffff
        def wr(m, ip): return (("W", kap, m), "ds_read_b64_tr_b16 %s, v%d offset:%d" % (vr(base + 16 + 4 * m + 2 * ip, 2), va, so + m * 8192 + (16 * kk + 4 * ip) * 256))
        return [wr(0, 0), wr(0, 1), xr(0), wr(1, 0), wr(1, 1), xr(1), xr(2), xr(3)]
    else:
        slot = (c % 3) * 32768
        va = V_WA + kk4 + (4 if slot >= 0x10000 else 0); so = slot & 0xffff
        def wr(m): return (("W", kap, m), "ds_read_b128 %s, v%d offset:%d" % (vr(base + 16 + 4 * m, 4), va, so + m * 16384))
        return [wr(0), xr(0), wr(1), xr(1), xr(2), xr(3)]

def p1_consumer(e, cfg, is_h):
    p1_consumer_addr(e, is_h)
    e("s_waitcnt lgkmcnt(0)")
    srd(e, S_WS, 74, WS_BYTES)
    if cfg.fused:
        flag_addr(e, is_h)
        nonce_issue(e)
    stamp(e, cfg, 0)
    e("s_barrier")
    stamp(e, cfg, 1)
    for tag, txt in p1_reads(0, is_h):
        e(txt); e.lg_issue(tag)
    for kap in range(28):
        base = FR + 24 * (kap & 1)
        nxt = p1_reads(kap + 1, is_h) if kap + 1 < 28 else []
        for n in range(8):
            nb = n >> 1; m = n & 1
            e.lg_wait([("W", kap, m), ("X", kap, nb)])
            d = accA(nb) if m == 0 else accB(nb)
            W = base + 16 + 4 * m; X = base + 4 * nb
            c = "0" if kap == 0 else None
            if "no32" in cfg.x:
                for hh in range(2):
                    e("v_mfma_f32_16x16x32_bf16 %s, %s, %s, %s" % (vr(d + 8 * hh, 4), vr(W, 4), vr(X, 4), vr(d + 8 * hh, 4)))
            elif "nomfma" not in cfg.x:
                if is_h: mfma(e, d, W, X, c)
                else: mfma(e, d, X, W, c)
            if nxt and n < len(nxt):
                tag, txt = nxt[n]
                if "nolds" in cfg.x: e.lg_issue(tag); e.lg.pop()
                else:
                    e(txt); e.lg_issue(tag)
        if (kap & 1) and kap < 27:
            e("s_barrier")
        if cfg.fused and kap == 21:
            nonce_load(e)
    assert not e.lg
    if cfg.fused and is_h:
        e("s_barrier")
    if cfg.fused:
        nonce_finish(e)
    stamp(e, cfg, 2)

def h_epilogue(e, cfg):
    sc = " sc1" if cfg.fused else ""
    e("s_lshl_b32 s41, s%d, 1" % S_R)
    e("s_mul_i32 s41, s41, 112")
    e("s_lshl_b32 s42, s%d, 2" % S_FB)
    e("s_add_u32 s42, s42, s%d" % S_WF)
    e("s_lshl_b32 s42, s42, 1")
    e("s_add_u32 s41, s41, s42")
    e("s_lshl_b32 s41, s41, 11")
    e("v_lshlrev_b32 v26, 4, v%d" % V_LANE)
    e("v_add_u32 v26, s41, v26")
    e("v_add_u32 v27, 0x%x, v26" % (112 * 2048))
    e("s_mov_b32 s42, 0x%08x" % f2u(-LOG2E))
    e("s_mov_b32 s43, s42")
    e("s_mov_b32 s44, 1.0")
    e("s_mov_b32 s45, 1.0")
    e("s_nop 7")
    grp = 0
    for nb in range(4):
        for hf in range(2):
            outb = FR + 4 * (grp % 8); grp += 1
            A = accA(nb) + 8 * hf; B = accB(nb) + 8 * hf
            for q in range(0, 8, 2):
                e("v_pk_mul_f32 %s, %s, s[42:43]" % (vr(A + q, 2), vr(A + q, 2)))
            for q in range(8):
                e("v_exp_f32 v%d, v%d" % (A + q, A + q))
            for q in range(0, 8, 2):
                e("v_pk_add_f32 %s, %s, s[44:45]" % (vr(A + q, 2), vr(A + q, 2)))
            for q in range(8):
                e("v_rcp_f32 v%d, v%d" % (A + q, A + q))
            for q in range(0, 8, 2):
                e("v_pk_mul_f32 %s, %s, %s" % (vr(A + q, 2), vr(A + q, 2), vr(B + q, 2)))
            for q2 in range(4):
                e("v_cvt_pk_bf16_f32 v%d, v%d, v%d" % (outb + q2, A + 2 * q2, A + 2 * q2 + 1))
            e("buffer_store_dwordx4 %s, v%d, s[%d:%d], 0 offen offset:%d%s" % (vr(outb, 4), 26 + (nb >> 1), S_WS, S_WS + 3, hf * 2048 + (nb & 1) * 1024, sc))
            e.vm_issue("hst")

def d_epilogue(e, cfg):
    sc = " sc1" if cfg.fused else ""
    L = V_LANE
    ZB = [192, 208, 224, 240]
    e("s_nop 7"); e("s_nop 3")
    for sb in range(4):
        for hf in range(2):
            for pr in range(4):
                q = 8 * hf + 2 * pr
                e("v_cvt_pk_bf16_f32 v%d, v%d, v%d" % (ZB[sb] + 4 * hf + pr, accA(sb) + q, accA(sb) + q + 1))
                e("v_cvt_pk_bf16_f32 v%d, v%d, v%d" % (ZB[sb] + 8 + 4 * hf + pr, accB(sb) + q, accB(sb) + q + 1))
    e("s_barrier")
    e("v_lshlrev_b32 v2, 4, v%d" % L)
    def cread(sb):
        b = 10 + 24 * (sb & 1)
        for k in range(6):
            e("ds_read_b128 %s, v2 offset:%d" % (vr(b + 4 * k, 4), CONST_LDS + (sb * 6 + k) * 1024))
            e.lg_issue(("c", sb, k))
    cread(0); cread(1)
    for sb in range(4):
        b = 10 + 24 * (sb & 1)
        C0, C1, S0, S1, N0, N1 = [b + 4 * k for k in range(6)]
        ZR0, ZR1, ZI0, ZI1 = ZB[sb], ZB[sb] + 4, ZB[sb] + 8, ZB[sb] + 12
        e.lg_wait([("c", sb, k) for k in range(6)])
        mfma(e, accA(sb), C0, ZR0, "0")
        mfma(e, accB(sb), C0, ZI0, "0")
        mfma(e, accA(sb), C1, ZR1)
        mfma(e, accB(sb), C1, ZI1)
        mfma(e, accA(sb), S0, ZI0)
        mfma(e, accB(sb), N0, ZR0)
        mfma(e, accA(sb), S1, ZI1)
        mfma(e, accB(sb), N1, ZR1)
        if sb + 2 < 4:
            cread(sb + 2)
    e("s_lshl_b32 s41, s%d, 8" % S_QG)
    e("s_lshl_b32 s42, s%d, 7" % S_EH)
    e("s_add_u32 s41, s41, s42")
    e("s_lshl_b32 s42, s%d, 5" % S_WF)
    e("s_add_u32 s41, s41, s42")
    e("s_lshl_b32 s41, s41, 4")
    e("s_add_u32 s41, s41, 0x%x" % UBUF)
    e("v_and_b32 v3, 31, v%d" % L)
    e("v_lshlrev_b32 v3, 4, v3")
    e("v_lshrrev_b32 v4, 5, v%d" % L)
    e("v_lshlrev_b32 v4, 18, v4")
    e("v_add3_u32 v3, v3, v4, s41")
    e("s_nop 7"); e("s_nop 3")
    for q in range(16):
        i, jj = q >> 2, q & 3
        pk = 192 + 4 * (q % 8)
        for sb in range(4):
            e("v_cvt_pk_bf16_f32 v%d, v%d, v%d" % (pk + sb, accA(sb) + q, accB(sb) + q))
        e("s_mov_b32 s%d, 0x%x" % (S_OFF, (8 * i + jj) * 65536))
        e("buffer_store_dwordx4 %s, v3, s[%d:%d], s%d offen%s" % (vr(pk, 4), S_WS, S_WS + 3, S_OFF, sc))
        e.vm_issue("ust")

def p1_loader(e, cfg, is_h):
    L = V_LANE; T = 26
    VX = 10
    VW = 14
    e("v_lshrrev_b32 v%d, 3, v%d" % (T, L))
    e("s_lshl_b32 s41, s%d, 5" % S_LW)
    e("v_add_u32 v%d, s41, v%d" % (T, T))
    e("v_and_b32 v%d, 7, v%d" % (T + 1, L))
    e("v_lshrrev_b32 v%d, 4, v%d" % (T + 2, L))
    e("s_movk_i32 s42, 896")
    for i in range(4):
        if i: e("v_add_u32 v%d, 8, v%d" % (T, T))
        e("v_add_u32 v%d, %d, v%d" % (T + 3, (4 * i) & 7, T + 2))
        e("v_and_b32 v%d, 7, v%d" % (T + 3, T + 3))
        e("v_xor_b32 v%d, v%d, v%d" % (T + 3, T + 3, T + 1))
        e("v_lshlrev_b32 v%d, 4, v%d" % (T + 3, T + 3))
        if is_h:
            e("v_lshrrev_b32 v%d, 6, v%d" % (T + 4, T))
            e("v_and_b32 v%d, 63, v%d" % (T + 5, T))
            e("v_lshlrev_b32 v%d, 5, v%d" % (T + 5, T + 5))
            e("s_lshl_b32 s41, s%d, 1" % S_R)
            e("v_add3_u32 v%d, v%d, v%d, s41" % (T + 4, T + 4, T + 5))
        else:
            e("v_and_b32 v%d, 31, v%d" % (T + 4, T))
            e("v_lshlrev_b32 v%d, 6, v%d" % (T + 4, T + 4))
            e("v_lshrrev_b32 v%d, 5, v%d" % (T + 5, T))
            e("s_lshl_b32 s41, s%d, 2" % S_QG)
            e("v_add3_u32 v%d, v%d, v%d, s41" % (T + 4, T + 4, T + 5))
        e("v_mul_lo_u32 v%d, v%d, s42" % (T + 4, T + 4))
        e("v_add_u32 v%d, v%d, v%d" % (VX + i, T + 4, T + 3))
        if not is_h:
            e("s_lshl_b32 s41, s%d, 7" % S_EH)
            e("v_add_u32 v%d, s41, v%d" % (T + 4, T))
            e("v_mul_lo_u32 v%d, v%d, s42" % (T + 4, T + 4))
            e("v_add_u32 v%d, v%d, v%d" % (VW + i, T + 4, T + 3))
    if is_h:
        e("s_lshl_b32 s41, s%d, 3" % S_LW)
        e("v_add_u32 v%d, s41, v%d" % (T + 3, T + 2))
        e("s_movk_i32 s42, 3584")
        e("v_mul_lo_u32 v%d, v%d, s42" % (T + 3, T + 3))
        e("v_bfe_u32 v%d, v%d, 2, 2" % (T + 4, L))
        e("v_xor_b32 v%d, v%d, v%d" % (T + 4, T + 4, T + 2))
        e("v_lshlrev_b32 v%d, 6, v%d" % (T + 4, T + 4))
        e("v_and_b32 v%d, 3, v%d" % (T + 5, L))
        e("v_lshlrev_b32 v%d, 4, v%d" % (T + 5, T + 5))
        e("v_add3_u32 v%d, v%d, v%d, v%d" % (T + 3, T + 3, T + 4, T + 5))
        e("s_lshl_b32 s41, s%d, 8" % S_FB)
        e("v_add_u32 v%d, s41, v%d" % (VW, T + 3))
        e("v_add_u32 v%d, %d, v%d" % (VW + 1, 4 * 3584, VW))
        e("s_lshl_b32 s%d, s%d, 11" % (S_LDSW, S_LW))
    else:
        e("s_lshl_b32 s%d, s%d, 12" % (S_LDSW, S_LW))
    e("s_lshl_b32 s%d, s%d, 12" % (S_LDSX, S_LW))
    e("s_waitcnt lgkmcnt(0)")
    srd(e, S_X, 44, 1835008)
    if is_h:
        srd(e, S_WA, 52, 1605632); srd(e, S_WB, 54, 1605632)
    else:
        srd(e, S_WA, 48, 401408); srd(e, S_WB, 50, 401408)
    srd(e, S_WS, 74, WS_BYTES)
    srd(e, S_GW, 58, 896)
    srd(e, S_WD, 56, 1605632)
    stamp(e, cfg, 0)
    DROT = (not is_h) and ("nodrot" not in cfg.x)
    if DROT:
        e("s_mul_i32 s7, s%d, 3" % S_EH)
        e("s_add_u32 s6, s%d, s7" % S_QG)
        e("s_mul_i32 s7, s6, 37")
        e("s_lshr_b32 s7, s7, 8")
        e("s_mul_i32 s7, s7, 7")
        e("s_sub_u32 s6, s6, s7")
        e("s_mov_b32 s7, s6")
    def dx(c):
        if DROT:
            e("s_lshl_b32 s%d, s6, 7" % S_OFF)
            for i in range(4): dma(e, S_X, VX + i, (c % NX) * XSLOT + i * 1024, S_LDSX, None, ("x", c))
            rot_next(e, 6, 7)
        else:
            for i in range(4): dma(e, S_X, VX + i, (c % NX) * XSLOT + i * 1024, S_LDSX, c * 128, ("x", c))
    def dw(j):
        if is_h:
            for m in range(2):
                for i in range(2):
                    dma(e, S_WA if m == 0 else S_WB, VW + i, WBASE + (j % NW) * WSLOT + m * 8192 + i * 1024, S_LDSW, j * 32 * 3584, ("w", j))
        else:
            c = j
            if DROT: e("s_lshl_b32 s%d, s7, 7" % S_OFF)
            for m in range(2):
                for i in range(4):
                    dma(e, S_WA if m == 0 else S_WB, VW + i, WBASE + (c % 3) * 32768 + m * 16384 + i * 1024, S_LDSW, None if DROT else c * 128, ("w", c))
            if DROT: rot_next(e, 7, 7)
    q = []
    if is_h:
        for j in range(14):
            if j % 2 == 0:
                c = j // 2
                q.append(("x", c, -1 if c < NX else 2 * (c - NX + 1)))
            q.append(("w", j, -1 if j < NW else j - NW + 1))
    else:
        for c in range(7):
            q.append(("x", c, -1 if c < NX else 2 * (c - NX + 1)))
            q.append(("w", c, -1 if c < 3 else 2 * (c - 3 + 1)))
    def cost(it): return 4 if (it[0] == "x" or is_h) else 8
    def issue(it):
        (dx if it[0] == "x" else dw)(it[1])
    def need(j):
        t = []
        for jj in (j, j + 1):
            if jj <= 13:
                t.append(("x", jj >> 1)); t.append(("w", jj if is_h else jj >> 1))
        return t
    issued = set()
    def ensure(tags):
        while q and any(t not in issued for t in tags):
            it = q.pop(0); assert it[2] <= curbar[0], (it, curbar)
            issue(it); issued.add((it[0], it[1]))
    curbar = [-1]
    ensure(need(0))
    budget0 = cfg.pro_extra
    while q and budget0 > 0 and q[0][2] <= -1:
        it = q.pop(0); issue(it); issued.add((it[0], it[1])); budget0 -= cost(it)
    e.vm_wait(need(0))
    e("s_barrier")
    stamp(e, cfg, 1)
    if "nodma" in cfg.x: NODMA[0] = True
    for j in range(13):
        curbar[0] = j
        ensure(need(j + 1))
        budget = cfg.stage_budget
        while q and budget > 0 and q[0][2] <= j:
            it = q.pop(0); issue(it); issued.add((it[0], it[1])); budget -= cost(it)
        if j == cfg.pfWd_j and not is_h and "pfWd" in cfg.x:
            e("s_lshr_b32 s41, s2, 3")
            e("s_sub_u32 s41, s41, 28")
            e("s_lshl_b32 s41, s41, 2")
            e("s_add_u32 s41, s41, s%d" % S_LW)
            e("s_mul_i32 s41, s41, 784")
            e("v_add_u32 v100, s41, v%d" % V_LANE)
            e("v_lshlrev_b32 v100, 7, v100")
            for t in range(13):
                e("s_mov_b32 s%d, %d" % (S_OFF, t * 8192))
                e("buffer_load_dword v%d, v100, s[%d:%d], s%d offen" % (101 + t, S_WD, S_WD + 3, S_OFF))
                e.vm_issue(("pf", t))
        if j == cfg.pfW_j and not is_h and "pfW" in cfg.x:
            e("s_lshr_b32 s41, s2, 3")
            e("s_sub_u32 s41, s41, 28")
            e("s_lshl_b32 s41, s41, 2")
            e("s_add_u32 s41, s41, s%d" % S_LW)
            e("s_mul_i32 s41, s41, 196")
            e("v_add_u32 v100, s41, v%d" % V_LANE)
            e("s_mov_b32 s42, 0x24924925")
            e("s_and_b32 s43, s2, 1")
            e("s_mul_i32 s43, s43, 896")
            e("s_add_u32 s43, s43, 1792")
            for t in range(4):
                e("v_add_u32 v101, %d, v100" % (64 * t))
                e("v_mul_hi_u32 v102, v101, s42")
                e("v_mul_u32_u24 v103, 7, v102")
                e("v_sub_u32 v103, v101, v103")
                e("v_mul_u32_u24 v102, 3584, v102")
                e("v_lshlrev_b32 v103, 7, v103")
                e("v_add3_u32 v%d, v102, v103, s43" % (104 + t))
            srd(e, S_GW, 52, 1605632)
            for t in range(4):
                e("buffer_load_dword v%d, v%d, s[%d:%d], 0 offen" % (110 + t, 104 + t, S_GW, S_GW + 3)); e.vm_issue(("pf", t))
            srd(e, S_GW, 54, 1605632)
            e("s_nop 0")
            for t in range(4):
                e("buffer_load_dword v%d, v%d, s[%d:%d], 0 offen" % (114 + t, 104 + t, S_GW, S_GW + 3)); e.vm_issue(("pf", t))
        if j == 9 and not is_h: dft_consts(e, cfg)
        if j == 7 and is_h:
            gate_issue(e, cfg, True)
            lab = e.newlabel("GX")
            e("s_cmp_ge_u32 s%d, 2" % S_FB)
            e("s_cbranch_scc1 %s" % lab)
            sv = list(e.vm)
            gate_issue(e, cfg, True, True)
            e.vm = sv
            e.label(lab)
        if j == 10 and is_h:
            e("s_waitcnt vmcnt(0)"); e.vm = []
            gate_finish(e, cfg)
            lab = e.newlabel("GY")
            e("s_cmp_ge_u32 s%d, 2" % S_FB)
            e("s_cbranch_scc1 %s" % lab)
            gate_finish(e, cfg, True)
            e.label(lab)
        if j == 11 and cfg.fused:
            e("s_waitcnt vmcnt(0)"); e.vm = []
        e.vm_wait(need(j + 1))
        e("s_barrier")
    assert not q
    NODMA[0] = False
    stamp(e, cfg, 2)
    if not is_h:
        e("v_lshlrev_b32 v2, 4, v%d" % L)
        e("s_mul_i32 s41, s%d, 6144" % S_LW)
        e("v_add_u32 v2, s41, v2")
        for k in range(6):
            e("ds_write_b128 v2, %s offset:%d" % (vr(64 + 4 * k, 4), CONST_LDS + k * 1024))
        e("s_waitcnt lgkmcnt(0)")
        e("s_barrier")

def gate_issue(e, cfg, is_h, extra=False):
    B = 40 if extra else 48
    e("s_lshl_b32 s41, s%d, 3" % S_FB)
    if extra: e("s_add_u32 s41, s41, 112")
    e("s_lshl_b32 s42, s%d, 1" % S_LW)
    e("s_add_u32 s41, s41, s42")
    e("s_lshl_b32 s78, s%d, 7" % S_R)
    e("s_add_u32 s%d, s78, s41" % (77 if extra else 76))
    e("v_lshlrev_b32 v38, 4, v%d" % V_LANE)
    e("v_cmp_gt_u32 vcc, 56, v%d" % V_LANE)
    e("v_mov_b32 v37, 0x7fffffff")
    for u in range(2):
        e("s_add_u32 s78, s41, %d" % u)
        e("s_lshr_b32 s43, s78, 6")
        e("s_lshl_b32 s79, s%d, 1" % S_R)
        e("s_add_u32 s43, s43, s79")
        e("s_and_b32 s78, s78, 63")
        e("s_lshl_b32 s78, s78, 5")
        e("s_add_u32 s43, s43, s78")
        e("s_mul_i32 s43, s43, 896")
        if extra:
            e("s_cmp_ge_u32 s%d, 2" % S_FB)
            e("s_cselect_b32 s43, 0x40000000, s43")
        e("v_add_u32 v39, s43, v38")
        e("v_cndmask_b32 v39, v37, v39, vcc")
        e("buffer_load_dwordx4 %s, v39, s[%d:%d], 0 offen" % (vr(B + 4 * u, 4), S_X, S_X + 3))
        e.vm_issue("gate")
    if not extra:
        e("buffer_load_dwordx4 v[56:59], v38, s[%d:%d], 0 offen" % (S_GW, S_GW + 3))
        e.vm_issue("gate")

def gate_finish(e, cfg, extra=False):
    B = 40 if extra else 48
    e.vm_wait(["gate"])
    for u in range(2):
        e("v_mov_b32 v%d, 0" % (60 + u))
    for i in range(4):
        for u in range(2):
            e("v_dot2_f32_bf16 v%d, v%d, v%d, v%d" % (60 + u, B + 4 * u + i, 56 + i, 60 + u))
    e("s_nop 2")
    for sh in ("row_shr:1", "row_shr:2", "row_shr:4", "row_shr:8"):
        for u in range(2):
            e("v_add_f32_dpp v%d, v%d, v%d %s row_mask:0xf bank_mask:0xf bound_ctrl:0" % (60 + u, 60 + u, 60 + u, sh))
        e("s_nop 0")
    for u in range(2):
        e("v_add_f32_dpp v%d, v%d, v%d row_bcast:15 row_mask:0xa bank_mask:0xf" % (60 + u, 60 + u, 60 + u))
    e("s_nop 0")
    for u in range(2):
        e("v_add_f32_dpp v%d, v%d, v%d row_bcast:31 row_mask:0xc bank_mask:0xf" % (60 + u, 60 + u, 60 + u))
    e("s_nop 0")
    e("v_readlane_b32 s41, v60, 63")
    e("v_readlane_b32 s42, v61, 63")
    e("s_nop 1")
    e("v_mov_b32 v60, s41")
    e("v_mov_b32 v61, s42")
    e("v_cmp_eq_u32 vcc, 1, v%d" % V_LANE)
    e("s_nop 1")
    e("v_cndmask_b32 v60, v60, v61, vcc")
    e("v_mul_f32 v60, 0x%08x, v60" % f2u(-LOG2E))
    e("v_exp_f32 v60, v60")
    e("s_nop 0")
    e("v_add_f32 v60, 1.0, v60")
    e("v_rcp_f32 v60, v60")
    e("s_lshl_b32 s44, s%d, 2" % (77 if extra else 76))
    e("s_add_u32 s44, s44, 0x%x" % GBUF)
    if extra:
        e("s_cmp_ge_u32 s%d, 2" % S_FB)
        e("s_cselect_b32 s44, 0x40000000, s44")
    e("v_lshlrev_b32 v62, 2, v%d" % V_LANE)
    e("v_add_u32 v62, s44, v62")
    e("v_cmp_gt_u32 vcc, 2, v%d" % V_LANE)
    e("v_mov_b32 v37, 0x7fffffff")
    e("s_nop 0")
    e("v_cndmask_b32 v62, v37, v62, vcc")
    e("buffer_store_dword v60, v62, s[%d:%d], 0 offen%s" % (S_WS, S_WS + 3, " sc1" if cfg.fused else ""))
    e.vm_issue("gst")

def dft_consts(e, cfg):
    L = V_LANE
    e("v_and_b32 v26, 31, v%d" % L)
    e("v_lshrrev_b32 v27, 5, v%d" % L)
    e("v_lshlrev_b32 v27, 8, v27")
    e("s_lshl_b32 s41, s%d, 2" % S_QG)
    e("s_add_u32 s41, s41, s%d" % S_LW)
    e("v_add_u32 v27, s41, v27")
    e("s_mov_b32 s42, 0x%08x" % f2u(1.0 / 2048))
    for hf in range(2):
        for pr in range(4):
            for u in range(2):
                idx = 2 * pr + u
                s1c = 16 * hf + 8 * (idx >> 2) + (idx & 3)
                e("v_add_u32 v28, %d, v27" % (64 * s1c))
                e("v_mul_u32_u24 v28, v28, v26")
                e("v_and_b32 v28, 0x7ff, v28")
                e("v_cvt_f32_u32 v28, v28")
                e("v_mul_f32 v28, s42, v28")
                e("v_cos_f32 v%d, v28" % (30 + u))
                e("v_sin_f32 v%d, v28" % (32 + u))
            e("s_nop 0")
            e("v_cvt_pk_bf16_f32 v%d, v30, v31" % (64 + 4 * hf + pr))
            e("v_cvt_pk_bf16_f32 v%d, v32, v33" % (72 + 4 * hf + pr))
            e("v_xor_b32 v%d, 0x80008000, v%d" % (80 + 4 * hf + pr, 72 + 4 * hf + pr))

def entry_common(e):
    e("v_and_b32 v%d, 63, v0" % V_LANE)
    e("v_lshrrev_b32 v2, 6, v0")
    e("s_nop 0")
    e("v_readfirstlane_b32 s%d, v2" % S_WAVE)
    e("s_nop 3")

def phase1(e, cfg, after_h_consumer, after_h_loader, after_d):
    e("s_and_b32 s%d, s%d, 3" % (S_WF, S_WAVE))
    e("s_and_b32 s%d, s%d, 3" % (S_LW, S_WAVE))
    e("s_and_b32 s41, s2, 7")
    e("s_lshr_b32 s42, s2, 3")
    e("s_cmp_ge_u32 s42, 28")
    e("s_cbranch_scc1 P1_DFT")
    e("s_mul_i32 s43, s42, 37")
    e("s_lshr_b32 s43, s43, 8")
    e("s_mul_i32 s76, s43, 7")
    e("s_sub_u32 s76, s42, s76")
    e("s_lshr_b32 s77, s41, 1")
    e("s_lshl_b32 s77, s77, 2")
    e("s_add_u32 s%d, s77, s43" % S_R)
    e("s_and_b32 s77, s41, 1")
    e("s_mul_i32 s77, s77, 7")
    e("s_add_u32 s%d, s77, s76" % S_FB)
    e("s_cmp_lt_u32 s%d, 4" % S_WAVE)
    e("s_cbranch_scc1 P1_H_CONSUMER")
    e.vm = []; e.lg = []
    h2_loader(e, cfg)
    q_loader_A(e, cfg)
    stamp_store(e, cfg, 0)
    e("s_endpgm")
    e.label("P1_H_CONSUMER")
    e.vm = []; e.lg = []
    h2_consumer(e, cfg)
    q_consumer_B(e, cfg)
    stamp_store(e, cfg, 0)
    e("s_endpgm")
    e.label("P1_DFT")
    e("s_sub_u32 s42, s42, 28")
    e("s_and_b32 s%d, s41, 1" % S_EH)
    e("s_lshr_b32 s77, s41, 1")
    e("s_lshl_b32 s77, s77, 2")
    e("s_add_u32 s%d, s77, s42" % S_QG)
    e("s_cmp_ge_u32 s%d, 4" % S_WAVE)
    e("s_cbranch_scc1 P1_D_LOADER")
    e.vm = []; e.lg = []
    p1_consumer(e, cfg, False)
    d_epilogue(e, cfg)
    stamp(e, cfg, 3)
    after_d(True)
    e.label("P1_D_LOADER")
    e.vm = []; e.lg = []
    p1_loader(e, cfg, False)
    stamp(e, cfg, 3)
    after_d(False)

P2_ACC = 64
P2_H = 96
P2_A = 208
P2_U = 224
P2_T = 240
SLICE = 40960
KSL, NB = 60, 61

def p2_setup(e, cfg):
    L = V_LANE
    e("s_and_b32 s%d, s%d, 3" % (KSL, S_WAVE))
    e("s_lshr_b32 s%d, s%d, 2" % (NB, S_WAVE))
    e("v_lshrrev_b32 v2, 3, v%d" % L)
    e("v_bfe_u32 v3, v%d, 4, 1" % L)
    e("v_lshlrev_b32 v3, 2, v3")
    e("v_and_b32 v4, 7, v%d" % L)
    e("v_xor_b32 v3, v3, v4")
    e("v_lshlrev_b32 v3, 4, v3")
    e("s_mul_i32 s41, s%d, 448" % KSL)
    e("s_lshl_b32 s42, s%d, 3" % NB)
    e("s_add_u32 s41, s41, s42")
    e("v_add_u32 v2, s41, v2")
    e("s_movk_i32 s42, 896")
    e("v_mul_lo_u32 v2, v2, s42")
    e("s_lshl_b32 s41, s%d, 7" % S_C)
    e("v_add3_u32 v10, v2, v3, s41")
    e("s_mul_i32 s62, s%d, %d" % (KSL, SLICE))
    e("s_lshl_b32 s41, s%d, 10" % NB)
    e("s_add_u32 s62, s62, s41")
    e("v_and_b32 v2, 15, v%d" % L)
    e("v_lshrrev_b32 v3, 2, v2")
    e("v_lshrrev_b32 v4, 5, v%d" % L)
    e("v_lshlrev_b32 v5, 2, v4")
    e("v_add_u32 v5, v5, v3")
    e("v_lshlrev_b32 v5, 7, v5")
    e("v_bfe_u32 v6, v2, 3, 1")
    e("v_lshlrev_b32 v6, 6, v6")
    e("v_bfe_u32 v7, v%d, 4, 1" % L)
    e("v_lshlrev_b32 v7, 5, v7")
    e("v_and_b32 v8, 3, v2")
    e("v_lshlrev_b32 v8, 3, v8")
    e("v_add3_u32 v5, v5, v6, v7")
    e("v_add_u32 v5, v5, v8")
    e("s_mul_i32 s41, s%d, %d" % (KSL, SLICE))
    e("v_add_u32 v11, s41, v5")
    e("v_xor_b32 v12, 64, v11")
    e("s_mul_i32 s41, s%d, 112" % S_T1)
    e("s_mul_i32 s42, s%d, 28" % KSL)
    e("s_add_u32 s41, s41, s42")
    e("s_lshl_b32 s41, s41, 1")
    e("s_add_u32 s41, s41, s%d" % NB)
    e("s_lshl_b32 s41, s41, 10")
    e("v_lshlrev_b32 v13, 4, v%d" % L)
    e("v_add_u32 v13, s41, v13")
    e("v_and_b32 v14, 31, v%d" % L)
    e("s_cmp_ge_u32 s%d, 4" % S_C)
    e("s_cselect_b32 s63, 1, 0")
    e("s_sub_u32 s64, 32, s%d" % S_T1)
    e("s_and_b32 s64, s64, 31")
    e("s_cmp_eq_u32 s63, 1")
    e("s_cselect_b32 s64, s64, s%d" % S_T1)
    e("v_lshrrev_b32 v4, 5, v%d" % L)
    e("s_lshl_b32 s41, s%d, 6" % S_C)
    e("s_cmp_eq_u32 s63, 1")
    e("s_cselect_b64 vcc, -1, 0")
    for mb in range(2):
        e("v_add_u32 v2, s41, v14")
        if mb: e("v_add_u32 v2, 32, v2")
        e("v_sub_u32 v3, 448, v2")
        e("v_cndmask_b32 v2, v2, v3, vcc")
        e("v_lshlrev_b32 v2, 4, v2")
        e("v_lshlrev_b32 v3, 12, v4")
        e("v_add_u32 v%d, v2, v3" % (16 + mb))
    e("s_lshl_b32 s41, s64, 4")
    e("s_lshl_b32 s42, s%d, 2" % KSL)
    e("s_add_u32 s41, s41, s42")
    e("s_lshl_b32 s41, s41, 12")
    e("s_add_u32 s65, s41, 0x%x" % UBUF)
    e("s_lshl_b32 s41, s%d, 6" % S_T1)
    e("s_lshl_b32 s42, s%d, 5" % NB)
    e("s_add_u32 s41, s41, s42")
    e("v_add_u32 v2, s41, v14")
    e("v_lshlrev_b32 v2, 2, v2")
    e("v_add_u32 v20, 0x%x, v2" % GBUF)

def p2_dma_wd(e, kk):
    st = kk >> 2
    pos = (st % 5) * 4 + (kk & 3)
    dma(e, S_WD, 10, pos * 2048, 62, kk * 16 * 896, ("wd", st))
def p2_load_h(e, cfg, kk):
    sc = " sc1" if cfg.fused else ""
    e("s_mov_b32 s%d, 0x%x" % (S_OFF, kk * 2048))
    e("buffer_load_dwordx4 %s, v13, s[%d:%d], s%d offen%s" % (vr(P2_H + 4 * kk, 4), S_WS, S_WS + 3, S_OFF, sc))
    e.vm_issue(("h", kk))
def p2_load_g(e, cfg):
    sc = " sc1" if cfg.fused else ""
    e("buffer_load_dword v15, v20, s[%d:%d], 0 offen%s" % (S_WS, S_WS + 3, sc))
    e.vm_issue("g")
def p2_load_u(e, cfg):
    sc = " sc1" if cfg.fused else ""
    for u in range(2):
        for mb in range(2):
            e("s_add_u32 s%d, s65, %d" % (S_OFF, u * 2 * 4096))
            e("buffer_load_dwordx4 %s, v%d, s[%d:%d], s%d offen%s" % (vr(P2_U + 8 * u + 4 * mb, 4), 16 + mb, S_WS, S_WS + 3, S_OFF, sc))
            e.vm_issue("u")
def p2_tfrags(e, cfg):
    L = V_LANE
    e.vm_wait(["g"])
    e("s_cmp_lg_u32 s%d, 0" % S_T1)
    e("s_cselect_b32 s41, s63, 0")
    e("s_lshl_b32 s42, s%d, 5" % NB)
    e("s_add_u32 s41, s41, s42")
    e("v_add_u32 v2, s41, v14")
    e("v_lshrrev_b32 v4, 5, v%d" % L)
    e("v_lshlrev_b32 v4, 2, v4")
    e("s_lshl_b32 s41, s63, 31")
    e("v_xor_b32 v21, s41, v15")
    e("s_mov_b32 s42, 0x%08x" % f2u(1.0 / 64))
    e("s_lshl_b32 s43, s%d, 4" % KSL)
    e("v_add_u32 v4, s43, v4")
    for u in range(2):
        for q in range(4):
            e("v_add_u32 v3, %d, v4" % (8 * u + q))
            e("v_mul_u32_u24 v3, v3, v2")
            e("v_and_b32 v3, 63, v3")
            e("v_cvt_f32_u32 v3, v3")
            e("v_mul_f32 v3, s42, v3")
            e("v_cos_f32 v5, v3")
            e("v_sin_f32 v6, v3")
            e("s_nop 0")
            e("v_mul_f32 v5, v5, v15")
            e("v_mul_f32 v6, v6, v21")
            e("v_cvt_pk_bf16_f32 v%d, v5, v6" % (P2_T + 4 * u + q))
    e("v_sub_f32 v18, 1.0, v15")
    e("v_mov_b32 v19, v18")

def p2_main(e, cfg, wd_pre=0):
    L = V_LANE
    def reads(kk):
        b = P2_A + 8 * (kk & 1)
        st = kk >> 2
        pos = (st % 5) * 4 + (kk & 3)
        for mb in range(2):
            for ip in range(2):
                e("ds_read_b64_tr_b16 %s, v%d offset:%d" % (vr(b + 4 * mb + 2 * ip, 2), 11 + mb, pos * 2048 + ip * 1024))
                e.lg_issue(("A", kk, mb))
    def issue_h(st):
        if st > 6: return
        for kk in range(4 * st, 4 * st + 4): p2_load_h(e, cfg, kk)
    def issue_w(st):
        if st > 6 or st < wd_pre: return
        for kk in range(4 * st, 4 * st + 4): p2_dma_wd(e, kk)
    def issue_both(st):
        if st > 6: return
        for kk in range(4 * st, 4 * st + 4):
            if st >= wd_pre: p2_dma_wd(e, kk)
            p2_load_h(e, cfg, kk)
    LA = cfg.p2_la
    p2_load_g(e, cfg)
    if cfg.fused:
        for st in range(LA): issue_h(st)
        p2_tfrags(e, cfg)
    else:
        for st in range(LA): issue_both(st)
        p2_tfrags(e, cfg)
        e.vm_wait([("wd", 0), ("wd", 1)])
        e("s_barrier")
    stamp(e, cfg, 1 if not cfg.fused else 6)
    reads(0)
    for kk in range(28):
        st = kk >> 2
        if (kk & 3) == 0:
            if cfg.fused:
                if st >= 1: issue_w(st + 4)
                issue_h(st + LA)
            else:
                issue_both(st + LA)
                if st + LA == 7:
                    p2_load_u(e, cfg)
        if kk + 1 < 28: reads(kk + 1)
        e.vm_wait([("h", kk)])
        b = P2_A + 8 * (kk & 1)
        for mb in range(2):
            e.lg_wait([("A", kk, mb)])
            mfma(e, P2_ACC + 16 * mb, b + 4 * mb, P2_H + 4 * kk, "0" if kk == 0 else None)
        if (kk & 3) == 3 and st < 6:
            e.vm_wait([("wd", st + 2)])
            if cfg.fused and st == cfg.p2_dpoll:
                lab = e.newlabel("DP")
                e("s_cmp_lg_u32 s%d, 0" % S_WAVE)
                e("s_cbranch_scc1 %s" % lab)
                e("s_mov_b32 s%d, 0x%x" % (S_PF, FLAGS + 16 * 128))
                poll(e, S_PF, 32)
                e.label(lab)
            e("s_barrier")
            if cfg.fused and st == cfg.p2_dpoll:
                p2_load_u(e, cfg)
    assert not e.lg
    stamp(e, cfg, 2 if not cfg.fused else 7)
    e.vm_wait(["u"])
    e("s_nop 7"); e("s_nop 3")
    for i in range(0, 32, 2):
        e("v_pk_mul_f32 %s, %s, v[18:19]" % (vr(P2_ACC + i, 2), vr(P2_ACC + i, 2)))
    e("s_nop 1")
    for u in range(2):
        for mb in range(2):
            mfma(e, P2_ACC + 16 * mb, P2_U + 8 * u + 4 * mb, P2_T + 4 * u)
    e("s_barrier")
    e("v_lshlrev_b32 v2, 4, v%d" % L)
    e("s_lshl_b32 s41, s%d, 13" % S_WAVE)
    e("v_add_u32 v3, s41, v2")
    e("s_nop 7"); e("s_nop 1")
    for qd in range(4):
        for hf in range(2):
            e("ds_write_b128 v3, %s offset:%d" % (vr(P2_ACC + 8 * qd + 4 * hf, 4), qd * 2048 + hf * 1024))
    e("s_waitcnt lgkmcnt(0)")
    e("s_barrier")
    e("s_lshl_b32 s41, s%d, 15" % NB)
    e("s_lshl_b32 s42, s%d, 11" % KSL)
    e("s_add_u32 s41, s41, s42")
    e("v_add_u32 v3, s41, v2")
    for k in range(4):
        for hf in range(2):
            e("ds_read_b128 %s, v3 offset:%d" % (vr(96 + 8 * k + 4 * hf, 4), k * 8192 + hf * 1024))
    e("s_lshl_b32 s41, s%d, 5" % NB)
    e("v_add_u32 v2, s41, v14")
    e("v_lshlrev_b32 v2, 5, v2")
    e("v_add_u32 v2, s%d, v2" % S_T1)
    e("s_movk_i32 s42, 896")
    e("v_mul_lo_u32 v2, v2, s42")
    e("s_lshl_b32 s41, s%d, 7" % S_C)
    e("s_lshl_b32 s42, s%d, 5" % KSL)
    e("s_add_u32 s41, s41, s42")
    e("v_lshrrev_b32 v4, 5, v%d" % L)
    e("v_lshlrev_b32 v4, 4, v4")
    e("v_add3_u32 v2, v2, v4, s41")
    e("s_waitcnt lgkmcnt(0)")
    for q in range(0, 8, 2):
        e("v_pk_add_f32 %s, %s, %s" % (vr(96 + q, 2), vr(96 + q, 2), vr(104 + q, 2)))
        e("v_pk_add_f32 %s, %s, %s" % (vr(112 + q, 2), vr(112 + q, 2), vr(120 + q, 2)))
    for q in range(0, 8, 2):
        e("v_pk_add_f32 %s, %s, %s" % (vr(96 + q, 2), vr(96 + q, 2), vr(112 + q, 2)))
    for q in range(4):
        e("v_cvt_pk_bf16_f32 v%d, v%d, v%d" % (128 + q, 96 + 2 * q, 96 + 2 * q + 1))
    e("s_nop 1")
    e("v_permlane32_swap_b32 v128, v130")
    e("v_permlane32_swap_b32 v129, v131")
    e("buffer_store_dwordx4 v[128:131], v2, s[%d:%d], 0 offen" % (S_OUT, S_OUT + 3))
    stamp(e, cfg, 3 if not cfg.fused else 8)

def p2_role(e):
    e("s_and_b32 s41, s2, 7")
    e("s_lshr_b32 s42, s2, 3")
    e("s_mul_i32 s43, s42, 37")
    e("s_lshr_b32 s43, s43, 8")
    e("s_mul_i32 s76, s43, 7")
    e("s_sub_u32 s%d, s42, s76" % S_C)
    e("s_lshl_b32 s41, s41, 2")
    e("s_add_u32 s%d, s41, s43" % S_T1)

def header(e, name):
    e.raw(".text"); e.raw(".globl %s" % name); e.raw(".p2align 8"); e.raw(".type %s,@function" % name); e.label(name)

def kernel1(e, cfg):
    header(e, "k1_kernel")
    e("s_cmp_ge_u32 s2, 256")
    e("s_cbranch_scc1 K1_END")
    kernarg_loads(e)
    entry_common(e)
    def fin():
        stamp_store(e, cfg, 0)
        e("s_endpgm")
    phase1(e, cfg, fin, fin, lambda c: fin())
    e.label("K1_END")
    e("s_endpgm")

def kernel2(e, cfg):
    header(e, "k2_kernel")
    e.vm = []; e.lg = []
    e("s_cmp_ge_u32 s2, 256")
    e("s_cbranch_scc1 K2_END")
    e("s_lshr_b32 s42, s2, 3")
    e("s_cmp_ge_u32 s42, 28")
    e("s_cbranch_scc1 K2_END")
    kernarg_loads(e)
    entry_common(e)
    p2_role(e)
    p2_setup(e, cfg)
    e("s_waitcnt lgkmcnt(0)")
    srd(e, S_WS, 74, WS_BYTES)
    srd(e, S_OUT, 46, 1835008)
    srd(e, S_WD, 56, 1605632)
    stamp(e, cfg, 0)
    p2_main(e, cfg, 0)
    stamp_store(e, cfg, 0x40000)
    e.label("K2_END")
    e("s_endpgm")


def nonce_issue(e):
    lab = e.newlabel("NONCE")
    srd(e, S_DBG, 72, 256)
    e("s_or_b32 s41, s2, s%d" % S_WAVE)
    e("s_cmp_lg_u32 s41, 0")
    e("s_cbranch_scc1 %s" % lab)
    e("s_memrealtime s[42:43]")
    e("s_waitcnt lgkmcnt(0)")
    e("s_or_b32 s42, s42, 1")
    e("v_mov_b32 v4, s42")
    e("v_lshlrev_b32 v5, 20, v%d" % V_LANE)
    e("buffer_store_dword v4, v5, s[%d:%d], 0 offen sc1" % (S_DBG, S_DBG + 3))
    e.label(lab)
    e("v_mov_b32 v7, 0")

def nonce_load(e):
    e("buffer_load_dword v4, v7, s[%d:%d], 0 offen sc1" % (S_DBG, S_DBG + 3))

def nonce_finish(e):
    nonce_finish_any(e)

def flag_addr(e, is_h):
    if is_h:
        e("s_lshl_b32 s41, s%d, 9" % S_R)
        e("s_lshl_b32 s42, s%d, 2" % S_FB)
    else:
        e("s_lshl_b32 s41, s%d, 1" % S_QG)
        e("s_add_u32 s41, s41, s%d" % S_EH)
        e("s_lshl_b32 s42, s41, 2")
        e("s_movk_i32 s41, %d" % (16 * 512))
    e("s_add_u32 s41, s41, s42")
    e("s_add_u32 s%d, s41, 0x%x" % (S_FLAG, FLAGS))

def flag_store(e):
    e("v_mov_b32 v60, s%d" % S_NONCE)
    e("v_lshlrev_b32 v61, 24, v%d" % V_LANE)
    e("v_add_u32 v61, s%d, v61" % S_FLAG)
    e("buffer_store_dword v60, v61, s[%d:%d], 0 offen sc1" % (S_WS, S_WS + 3))

def poll_prep(e, sbase, nflags):
    e("v_lshlrev_b32 v61, 2, v%d" % V_LANE)
    e("v_add_u32 v61, s%d, v61" % sbase)
    e("v_cmp_gt_u32 vcc, %d, v%d" % (nflags, V_LANE))
    e("v_mov_b32 v60, 0x7fffffff")
    e("s_nop 0")
    e("v_cndmask_b32 v61, v60, v61, vcc")
def poll_issue(e):
    e("buffer_load_dword v60, v61, s[%d:%d], 0 offen sc1" % (S_WS, S_WS + 3))
def poll_loop(e, nflags, first_issued):
    top = e.newlabel("POLL"); done = e.newlabel("POLLD"); chk = e.newlabel("POLLC")
    e("s_mov_b32 s41, 0")
    if first_issued: e("s_branch %s" % chk)
    e.label(top)
    poll_issue(e)
    e.label(chk)
    e("s_waitcnt vmcnt(0)")
    e("v_cmp_eq_u32 vcc, s%d, v60" % S_NONCE)
    e("s_nop 1")
    mask = (1 << nflags) - 1
    e("s_and_b32 s42, vcc_lo, 0x%x" % (mask & 0xffffffff))
    e("s_cmp_eq_u32 s42, 0x%x" % (mask & 0xffffffff))
    e("s_cbranch_scc1 %s" % done)
    e("s_add_u32 s41, s41, 1")
    e("s_cmp_ge_u32 s41, 0x40000")
    e("s_cbranch_scc1 %s" % done)
    e("s_branch %s" % top)
    e.label(done)
def poll(e, sbase, nflags, drain=True):
    poll_prep(e, sbase, nflags)
    poll_loop(e, nflags, False)

def poll_loop56(e):
    top = e.newlabel("POLL"); done = e.newlabel("POLLD")
    e("s_mov_b32 s41, 0")
    e.label(top)
    poll_issue(e)
    e("s_waitcnt vmcnt(0)")
    e("v_cmp_eq_u32 vcc, s%d, v60" % S_NONCE)
    e("s_nop 1")
    e("s_and_b32 s43, vcc_hi, 0xffffff")
    e("s_cmp_eq_u32 s43, 0xffffff")
    e("s_cselect_b32 s42, vcc_lo, 0")
    e("s_cmp_eq_u32 s42, -1")
    e("s_cbranch_scc1 %s" % done)
    e("s_add_u32 s41, s41, 1")
    e("s_cmp_ge_u32 s41, 0x40000")
    e("s_cbranch_scc1 %s" % done)
    e("s_branch %s" % top)
    e.label(done)

def poll2(e, sline1, line2):
    top = e.newlabel("POLL"); done = e.newlabel("POLLD")
    e("v_lshlrev_b32 v61, 2, v%d" % V_LANE)
    e("v_add_u32 v62, 0x%x, v61" % line2)
    e("v_add_u32 v61, s%d, v61" % sline1)
    e("v_mov_b32 v60, 0x7fffffff")
    e("v_cmp_gt_u32 vcc, 56, v%d" % V_LANE)
    e("s_nop 1")
    e("v_cndmask_b32 v61, v60, v61, vcc")
    e("v_cmp_gt_u32 vcc, 32, v%d" % V_LANE)
    e("s_nop 1")
    e("v_cndmask_b32 v62, v60, v62, vcc")
    e("s_mov_b32 s41, 0")
    e.label(top)
    e("buffer_load_dword v60, v61, s[%d:%d], 0 offen sc1" % (S_WS, S_WS + 3))
    e("buffer_load_dword v58, v62, s[%d:%d], 0 offen sc1" % (S_WS, S_WS + 3))
    e("s_waitcnt vmcnt(0)")
    e("v_cmp_eq_u32 vcc, s%d, v60" % S_NONCE)
    e("v_cmp_eq_u32 s[42:43], s%d, v58" % S_NONCE)
    e("s_nop 1")
    e("s_and_b32 s43, vcc_hi, 0xffffff")
    e("s_and_b32 s42, s42, vcc_lo")
    e("s_cmp_eq_u32 s43, 0xffffff")
    e("s_cselect_b32 s42, s42, 0")
    e("s_cmp_eq_u32 s42, -1")
    e("s_cbranch_scc1 %s" % done)
    e("s_add_u32 s41, s41, 1")
    e("s_cmp_ge_u32 s41, 0x40000")
    e("s_cbranch_scc1 %s" % done)
    e("s_branch %s" % top)
    e.label(done)

def kernel_fused(e, cfg):
    name = "gated_mix__spectral_fnet__glu_gated_glu__prompt_kernel"
    header(e, name)
    e("s_cmp_ge_u32 s2, 256")
    e("s_cbranch_scc1 KF_END")
    kernarg_loads(e)
    entry_common(e)
    def after_h_consumer():
        e.vm_wait_all()
        e("s_barrier")
        lab = e.newlabel("NOTW0")
        e("s_cmp_lg_u32 s%d, 0" % S_WAVE)
        e("s_cbranch_scc1 %s" % lab)
        flag_store(e)
        e.label(lab)
        stamp(e, cfg, 4)
        p2_role(e)
        p2_setup(e, cfg)
        srd(e, S_OUT, 46, 1835008)
        srd(e, S_WD, 56, 1605632)
        e("s_cmp_lg_u32 s%d, 0" % S_WAVE)
        e("s_cbranch_scc1 P2_START")
        e("s_lshr_b32 s43, s%d, 1" % S_T1)
        e("s_lshl_b32 s43, s43, 7")
        e("s_add_u32 s%d, s43, 0x%x" % (S_PF, FLAGS))
        poll(e, S_PF, 14)
        e("s_branch P2_START")
    def after_h_loader():
        e("s_barrier")
        p2_role(e)
        p2_setup(e, cfg)
        srd(e, S_OUT, 46, 1835008)
        e("v_subrev_u32 v9, %d, v10" % (8 * 896))
        e("s_sub_u32 s69, s62, 1024")
        for kk in range(20):
            pos = kk
            dma(e, S_WD, 9, pos * 2048, 69, kk * 16 * 896, ("wdp", kk))
            dma(e, S_WD, 10, pos * 2048, 62, kk * 16 * 896, ("wdp", kk))
        e("s_barrier")
        stamp(e, cfg, 4)
        e.vm = []
        e.label("P2_START")
        e("s_waitcnt vmcnt(0)")
        e("s_barrier")
        stamp(e, cfg, 5)
        e.vm = []; e.lg = []
        p2_main(e, cfg, 5)
        stamp_store(e, cfg, 0)
        e("s_endpgm")
    def after_d(is_cons):
        if is_cons:
            e.vm_wait_all()
            e("s_barrier")
            lab = e.newlabel("DNOTW0")
            e("s_cmp_lg_u32 s%d, 0" % S_WAVE)
            e("s_cbranch_scc1 %s" % lab)
            flag_store(e)
            e("s_waitcnt vmcnt(0)")
            e.label(lab)
            stamp_store(e, cfg, 0)
            e("s_endpgm")
        else:
            e("s_waitcnt vmcnt(0)")
            e("s_barrier")
            stamp_store(e, cfg, 0)
            e("s_endpgm")
    phase1(e, cfg, after_h_consumer, after_h_loader, after_d)
    e.label("KF_END")
    e("s_endpgm")


WB2 = 114688; NW2 = 6; WS2 = 8192
H_ACC = 64
H_FR = 192
V_XA2 = 10
V_WA2 = 18
S_WT = 69

def h2_consumer(e, cfg):
    L = V_LANE; T = 26
    e("s_lshr_b32 s%d, s%d, 1" % (S_WT, S_WAVE))
    e("s_and_b32 s%d, s%d, 1" % (S_WF, S_WAVE))
    e("v_and_b32 v%d, 31, v%d" % (T, L))
    e("v_lshrrev_b32 v%d, 5, v%d" % (T + 1, L))
    e("v_lshrrev_b32 v%d, 1, v%d" % (T + 2, T))
    e("v_and_b32 v%d, 7, v%d" % (T + 2, T + 2))
    e("s_lshl_b32 s41, s%d, 6" % S_WT)
    e("v_add_u32 v%d, s41, v%d" % (T + 3, T))
    e("v_lshlrev_b32 v%d, 7, v%d" % (T + 3, T + 3))
    for k in range(4):
        e("v_add_u32 v%d, %d, v%d" % (T + 4, 2 * k, T + 1))
        e("v_xor_b32 v%d, v%d, v%d" % (T + 4, T + 4, T + 2))
        e("v_lshlrev_b32 v%d, 4, v%d" % (T + 4, T + 4))
        e("v_add_u32 v%d, v%d, v%d" % (V_XA2 + k, T + 3, T + 4))
        e("v_add_u32 v%d, 0x10000, v%d" % (V_XA2 + 4 + k, V_XA2 + k))
    e("v_and_b32 v%d, 15, v%d" % (T + 4, L))
    e("v_lshrrev_b32 v%d, 2, v%d" % (T + 5, T + 4))
    e("v_lshlrev_b32 v%d, 7, v%d" % (T + 5, T + 5))
    e("v_lshlrev_b32 v%d, 11, v%d" % (T + 6, T + 1))
    e("v_add_u32 v%d, v%d, v%d" % (T + 6, T + 6, T + 5))
    e("v_bfe_u32 v%d, v%d, 3, 1" % (T + 7, T + 4))
    e("v_xor_b32 v%d, s%d, v%d" % (T + 7, S_WF, T + 7))
    e("v_lshlrev_b32 v%d, 6, v%d" % (T + 7, T + 7))
    e("v_add_u32 v%d, v%d, v%d" % (T + 6, T + 6, T + 7))
    e("v_bfe_u32 v%d, v%d, 4, 1" % (T + 7, L))
    e("v_lshlrev_b32 v%d, 5, v%d" % (T + 7, T + 7))
    e("v_add_u32 v%d, v%d, v%d" % (T + 6, T + 6, T + 7))
    e("v_and_b32 v%d, 3, v%d" % (T + 7, T + 4))
    e("v_lshlrev_b32 v%d, 3, v%d" % (T + 7, T + 7))
    e("v_add_u32 v%d, v%d, v%d" % (T + 6, T + 6, T + 7))
    e("v_add_u32 v%d, 0x%x, v%d" % (V_WA2, WB2, T + 6))
    e("s_lshl_b32 s41, s%d, 1" % S_R)
    e("s_add_u32 s41, s41, s%d" % S_WT)
    e("s_mul_i32 s41, s41, 112")
    e("s_lshl_b32 s42, s%d, 1" % S_FB)
    e("s_add_u32 s42, s42, s%d" % S_WF)
    e("s_lshl_b32 s42, s42, 1")
    e("s_add_u32 s41, s41, s42")
    e("s_lshl_b32 s41, s41, 11")
    e("v_lshlrev_b32 v20, 4, v%d" % L)
    e("v_add_u32 v20, s41, v20")
    e("v_add_u32 v21, 0x%x, v20" % (56 * 2048))
    e("s_waitcnt lgkmcnt(0)")
    srd(e, S_WS, 74, WS_BYTES)
    flag_addr(e, True)
    nonce_issue(e)
    stamp(e, cfg, 0)
    if "notouch" not in cfg.x:
        srd(e, S_WD, 56, 1605632)
        e("s_lshr_b32 s41, s2, 3")
        e("s_mul_i32 s41, s41, 448")
        e("s_lshl_b32 s42, s%d, 6" % S_WAVE)
        e("s_add_u32 s41, s41, s42")
        e("v_add_u32 v8, s41, v%d" % L)
        e("v_lshlrev_b32 v8, 7, v8")
        e("buffer_load_dword v2, v8, s[%d:%d], 0 offen" % (S_WD, S_WD + 3))
        e("s_cmp_eq_u32 s%d, 3" % S_WAVE)
        lab = e.newlabel("TCH")
        e("s_cbranch_scc1 %s" % lab)
        e("v_add_u32 v8, 0x%x, v8" % (256 * 128))
        e("buffer_load_dword v3, v8, s[%d:%d], 0 offen" % (S_WD, S_WD + 3))
        e.label(lab)
    e("s_barrier")
    stamp(e, cfg, 1)
    if cfg.diag:
        e("s_memtime s[76:77]"); e("s_waitcnt lgkmcnt(0)")
    def reads(g):
        p = g // 28; kap = g % 28
        base = H_FR + 16 * (g & 1)
        c = kap >> 2; kk4 = kap & 3
        xo = c * 16384
        xv = V_XA2 + kk4 + (4 if xo >= 0x10000 else 0); xo &= 0xffff
        j = g >> 1; kk = g & 1
        so = (j % NW2) * WS2
        def xr(nb): return (("X", g, nb), "ds_read_b128 %s, v%d offset:%d" % (vr(base + 4 * nb, 4), xv, xo + nb * 4096))
        def wr(m, ip): return (("W", g, m), "ds_read_b64_tr_b16 %s, v%d offset:%d" % (vr(base + 8 + 4 * m + 2 * ip, 2), V_WA2, so + kk * 4096 + ip * 512 + m * 1024))
        return [wr(0, 0), wr(0, 1), xr(0), wr(1, 0), wr(1, 1), xr(1)]
    def epi_list(p):
        ACCB = H_ACC + 64 * p
        L_ = []
        def I(txt): L_.append(lambda: e(txt))
        grp = 0
        for nb in range(2):
            for hf in range(2):
                outb = 224 + 4 * grp; grp += 1
                A = ACCB + 16 * nb + 8 * hf; B = ACCB + 32 + 16 * nb + 8 * hf
                for q in range(0, 8, 2):
                    I("v_pk_mul_f32 %s, %s, s[44:45]" % (vr(A + q, 2), vr(A + q, 2)))
                for q in range(8):
                    I("v_exp_f32 v%d, v%d" % (A + q, A + q))
                for q in range(0, 8, 2):
                    I("v_pk_add_f32 %s, %s, s[46:47]" % (vr(A + q, 2), vr(A + q, 2))) if False else I("v_pk_add_f32 %s, %s, 1.0 op_sel_hi:[1,0]" % (vr(A + q, 2), vr(A + q, 2)))
                for q in range(8):
                    I("v_rcp_f32 v%d, v%d" % (A + q, A + q))
                for q in range(0, 8, 2):
                    I("v_pk_mul_f32 %s, %s, %s" % (vr(A + q, 2), vr(A + q, 2), vr(B + q, 2)))
                for q2 in range(4):
                    I("v_cvt_pk_bf16_f32 v%d, v%d, v%d" % (outb + q2, A + 2 * q2, A + 2 * q2 + 1))
                def st(outb=outb, nb=nb, hf=hf):
                    e("buffer_store_dwordx4 %s, v%d, s[%d:%d], 0 offen offset:%d sc1" % (vr(outb, 4), 20 + p, S_WS, S_WS + 3, hf * 2048 + nb * 1024))
                    e.vm_issue("hst")
                L_.append(st)
        return L_
    e("s_mov_b32 s44, 0x%08x" % f2u(-LOG2E))
    e("s_mov_b32 s45, s44")
    def epilogue(p):
        e("s_nop 7"); e("s_nop 3")
        for f in epi_list(p): f()
    pend_epi = []
    for tag, txt in reads(0):
        e(txt); e.lg_issue(tag)
    for g in range(56):
        base = H_FR + 16 * (g & 1)
        nxt = reads(g + 1) if g + 1 < 56 else []
        first = (g % 28 == 0)
        ACCB = H_ACC + 64 * (g // 28)
        if g == 28 + cfg.epi_start and cfg.epi_rate > 0:
            pend_epi = epi_list(0)
        k = 0
        for n in range(4):
            nb = n >> 1; m = n & 1
            if "wait2" in cfg.x:
                if n == 0: e.lg_wait([("W", g, 0), ("X", g, 0)])
                if n == 1: e.lg_wait([("W", g, 1), ("X", g, 1)])
            elif "wait1" in cfg.x:
                if n == 0: e.lg_wait([("W", g, 0), ("X", g, 0), ("W", g, 1), ("X", g, 1)])
            else:
                e.lg_wait([("W", g, m), ("X", g, nb)])
            d = ACCB + 32 * m + 16 * nb
            if "nomfma" not in cfg.x:
                mfma(e, d, base + 8 + 4 * m, base + 4 * nb, "0" if first else None)
            cnt = 2 if n < 2 else 1
            if "rd3" in cfg.x: cnt = (3, 3, 0, 0)[n]
            if "rd6" in cfg.x: cnt = (6, 0, 0, 0)[n]
            for _ in range(cnt):
                if k < len(nxt):
                    tag, txt = nxt[k]; k += 1
                    if "nolds" in cfg.x: continue
                    e(txt); e.lg_issue(tag)
            for _ in range(cfg.epi_rate):
                if pend_epi: pend_epi.pop(0)()
        if g == 27 and cfg.epi_rate == 0:
            epilogue(0)
        if g == 46:
            nonce_load(e)
        if g == 2 * cfg.flagA_bar - 1:
            e("s_waitcnt vmcnt(0)")
        if (g & 1) and g < 55:
            e("s_barrier")
    assert not e.lg
    e.vm = []
    e("s_barrier")
    if cfg.diag:
        e("s_memtime s[78:79]"); e("s_waitcnt lgkmcnt(0)")
        e("s_sub_u32 s7, s78, s76")
    nonce_finish(e)
    assert not pend_epi
    stamp(e, cfg, 2)
    p2_role(e)
    flags_line(e, 0)
    poll_prep(e, S_PF, 14)
    poll_issue(e); e.vm_issue("pollA")
    epilogue(1)
    stamp(e, cfg, 3)

def h2_loader(e, cfg):
    L = V_LANE; T = 26
    VX = 10; VW = 14
    e("v_lshrrev_b32 v%d, 3, v%d" % (T, L))
    e("v_and_b32 v%d, 7, v%d" % (T + 1, L))
    e("v_lshrrev_b32 v%d, 4, v%d" % (T + 2, L))
    e("v_xor_b32 v%d, v%d, v%d" % (T + 3, T + 1, T + 2))
    e("v_lshlrev_b32 v%d, 4, v%d" % (T + 3, T + 3))
    e("v_mul_u32_u24 v%d, 28672, v%d" % (T + 4, T))
    e("s_lshl_b32 s41, s%d, 1" % S_R)
    e("s_lshr_b32 s42, s%d, 1" % S_LW)
    e("s_add_u32 s41, s41, s42")
    e("s_mul_i32 s41, s41, 896")
    e("s_and_b32 s42, s%d, 1" % S_LW)
    e("s_mul_i32 s42, s42, %d" % (32 * 28672))
    e("s_add_u32 s41, s41, s42")
    e("v_add3_u32 v%d, v%d, v%d, s41" % (VX, T + 4, T + 3))
    e("v_xor_b32 v%d, 64, v%d" % (T + 3, T + 3))
    e("s_add_u32 s42, s41, %d" % (8 * 28672 - 1024))
    e("v_add3_u32 v%d, v%d, v%d, s42" % (VX + 1, T + 4, T + 3))
    e("v_add_u32 v%d, %d, v%d" % (VX + 2, 16 * 28672 - 2048, VX))
    e("v_add_u32 v%d, %d, v%d" % (VX + 3, 16 * 28672 - 2048, VX + 1))
    e("v_mul_u32_u24 v%d, 3584, v%d" % (T + 4, T))
    e("v_and_b32 v%d, 1, v%d" % (T + 2, T + 2))
    e("v_lshlrev_b32 v%d, 2, v%d" % (T + 2, T + 2))
    e("v_xor_b32 v%d, v%d, v%d" % (T + 2, T + 2, T + 1))
    e("v_lshlrev_b32 v%d, 4, v%d" % (T + 2, T + 2))
    e("s_mul_i32 s41, s%d, %d" % (S_LW, 8 * 3584))
    e("s_lshl_b32 s42, s%d, 7" % S_FB)
    e("s_add_u32 s41, s41, s42")
    e("v_add3_u32 v%d, v%d, v%d, s41" % (VW, T + 4, T + 2))
    e("v_add_u32 v%d, %d, v%d" % (VW + 1, 32 * 3584, VW))
    e("s_lshl_b32 s%d, s%d, 11" % (S_LDSW, S_LW))
    e("s_lshl_b32 s%d, s%d, 12" % (S_LDSX, S_LW))
    e("s_add_u32 s6, s%d, s%d" % (S_R, S_FB))
    e("s_mul_i32 s7, s6, 37")
    e("s_lshr_b32 s7, s7, 8")
    e("s_mul_i32 s7, s7, 7")
    e("s_sub_u32 s6, s6, s7")
    e("s_waitcnt lgkmcnt(0)")
    srd(e, S_X, 44, 1835008)
    srd(e, S_WA, 52, 1605632)
    e("s_sub_u32 s%d, s54, 1024" % S_WB)
    e("s_subb_u32 s%d, s55, 0" % (S_WB + 1))
    e("s_and_b32 s%d, s%d, 0xffff" % (S_WB + 1, S_WB + 1))
    e("s_mov_b32 s%d, 0x%x" % (S_WB + 2, 1605632 + 1024))
    e("s_mov_b32 s%d, 0x20000" % (S_WB + 3))
    e("s_mov_b64 s[76:77], s[56:57]")
    e("s_mov_b64 s[78:79], s[58:59]")
    def emitT(dst):
        c = dst - 44
        e("s_lshl_b32 s%d, s6, 7" % (44 + c))
        e("s_mul_i32 s%d, s6, %d" % (51 + c, 64 * 3584))
    emitT(44)
    stamp(e, cfg, 0)
    tdone = [1]
    def need_table(c):
        while tdone[0] <= c:
            rot_next(e, 6, 7)
            emitT(44 + tdone[0]); tdone[0] += 1
    def dx(c):
        need_table(c)
        dma_group(e, S_LDSX, c * 16384, [(S_X, VX + i, 44 + c, i * 1024, ("x", c)) for i in range(4)])
    def dw(j):
        p = j // 14; jj = j % 14; c = jj >> 1
        need_table(c)
        va = VW + 2 * p + (jj & 1)
        dma_group(e, S_LDSW, WB2 + (j % NW2) * WS2, [(S_WA, va, 51 + c, 0, ("w", j)), (S_WB, va, 51 + c, 1024, ("w", j))])
    q = []
    for j in range(28):
        if j < 14 and j % 2 == 0: q.append(("x", j // 2, -1))
        q.append(("w", j, -1 if j < NW2 else j - NW2 + 1))
    def cost(it): return 4 if it[0] == "x" else 2
    def issue(it): (dx if it[0] == "x" else dw)(it[1])
    def need(j):
        t = []
        for jj in (j, j + 1):
            if jj <= 27:
                if jj < 14: t.append(("x", jj >> 1))
                t.append(("w", jj))
        return t
    issued = set(); curbar = [-1]
    def ensure(tags):
        while q and any(t not in issued for t in tags):
            it = q.pop(0); assert it[2] <= curbar[0], (it, curbar)
            issue(it); issued.add((it[0], it[1]))
    ensure(need(0))
    e("v_add_u32 v%d, %d, v%d" % (VW + 2, 1792, VW))
    e("v_add_u32 v%d, %d, v%d" % (VW + 3, 1792, VW + 1))
    srd(e, S_WS, 74, WS_BYTES)
    srd(e, S_WD, 76, 1605632)
    srd(e, S_GW, 78, 896)
    srd(e, S_DBG, 72, 256)
    flag_addr(e, True)
    e("v_mov_b32 v7, 0")
    budget0 = cfg.pro_extra
    while q and budget0 > 0 and q[0][2] <= -1:
        it = q.pop(0); issue(it); issued.add((it[0], it[1])); budget0 -= cost(it)
    e.vm_wait(need(0))
    e("s_barrier")
    stamp(e, cfg, 1)
    for j in range(27):
        curbar[0] = j
        ensure(need(j + 1))
        budget = cfg.stage_budget2
        while q and budget > 0 and q[0][2] <= j:
            it = q.pop(0); issue(it); issued.add((it[0], it[1])); budget -= cost(it)
        if j == 1:
            p2_role(e)
            q_setup(e, 0, 26)
        if j == 14:
            q_table(e, 44, 2 * 16 * 896)
        if j >= 16 and j % 2 == 0:
            c = (j - 16) // 2
            q_dma_pair(e, 0, c, 26, 44)
        if j == cfg.gate_j:
            gate_issue(e, cfg, True)
            gate_issue(e, cfg, True, True)
        if j == cfg.gate_j + 4:
            gate_finish(e, cfg)
            gate_finish(e, cfg, True)
            e("buffer_load_dword v4, v7, s[%d:%d], 0 offen sc1" % (S_DBG, S_DBG + 3))
            e.vm_issue("nonce")
        if j == 13:
            e("s_waitcnt vmcnt(0)"); e.vm = []
            nonce_finish_any(e, keepvm=True)
        if j == cfg.flagA_bar:
            lab = e.newlabel("FA")
            e("s_cmp_lg_u32 s%d, 4" % S_WAVE)
            e("s_cbranch_scc1 %s" % lab)
            flag_store(e)
            e.label(lab)
        if j == cfg.epoll:
            flags_line(e, 0)
            poll_prep(e, S_PF, 14)
            poll_issue(e); e.vm_issue("poll")
        e.vm_wait(need(j + 1))
        e("s_barrier")
    assert not q
    q_setup2(e, 0)
    q_table(e, 51, 4096)
    e.vm_wait([("wd", 11)])
    e("s_waitcnt lgkmcnt(0)")
    e("s_barrier")
    stamp(e, cfg, 2)
    poll_loop(e, 14, True)
    if cfg.diag: e("s_mov_b32 s%d, s41" % (S_STAMP + 16))
    stamp(e, cfg, 4)
    e.vm = []
    cfg.stepsA = q_steps(0, list(range(0, 2 * (6 - cfg.nca))) + [12, 13], 13)
    for i in range(cfg.hpre): q_issue_h(e, cfg.stepsA[i])
    q_dma_pair(e, 0, 6, 26, 44)

def nonce_finish_any(e, keepvm=False):
    lab = e.newlabel("NFA"); top = e.newlabel("NTA"); chk = e.newlabel("NCK")
    e("s_mov_b32 s42, 0")
    if keepvm: e("s_branch %s" % chk)
    e.label(top)
    e("s_waitcnt vmcnt(0)")
    e.label(chk)
    e("v_readfirstlane_b32 s%d, v4" % S_NONCE)
    e("s_nop 3")
    e("s_cmp_lg_u32 s%d, 0" % S_NONCE)
    e("s_cbranch_scc1 %s" % lab)
    e("s_add_u32 s42, s42, 1")
    e("s_cmp_ge_u32 s42, 0x40000")
    e("s_cbranch_scc1 %s" % lab)
    e("s_sleep 1")
    e("buffer_load_dword v4, v7, s[%d:%d], 0 offen sc1" % (S_DBG, S_DBG + 3))
    e("s_branch %s" % top)
    e.label(lab)

Q_ACC = 64
Q_H = 128
Q_A = 240
SL2 = 40960
SI = 3

def q_setup(e, part, vw=9):
    L = V_LANE
    e("s_and_b32 s%d, s%d, 3" % (SI, S_WAVE))
    e("v_lshrrev_b32 v2, 3, v%d" % L)
    e("v_bfe_u32 v3, v%d, 4, 1" % L)
    e("v_lshlrev_b32 v3, 2, v3")
    e("v_and_b32 v8, 7, v%d" % L)
    e("v_xor_b32 v3, v3, v8")
    e("v_lshlrev_b32 v3, 4, v3")
    e("s_mul_i32 s41, s%d, 224" % SI)
    if part: e("s_add_u32 s41, s41, 896")
    e("v_add_u32 v2, s41, v2")
    e("s_movk_i32 s42, 896")
    e("v_mul_lo_u32 v2, v2, s42")
    e("s_lshl_b32 s41, s%d, 7" % S_C)
    e("v_add3_u32 v%d, v2, v3, s41" % vw)
    e("v_add_u32 v%d, %d, v%d" % (vw + 1, 8 * 896 - 1024, vw))
    e("v_add_u32 v%d, %d, v%d" % (vw + 2, 16 * 896 - 2048, vw))
    e("v_add_u32 v%d, %d, v%d" % (vw + 3, 24 * 896 - 3072, vw))
    e("s_lshl_b32 s62, s%d, 12" % SI)
    e("s_and_b32 s4, s%d, 3" % S_T1)
    e("s_lshl_b32 s4, s4, 1")
    e("s_add_u32 s4, s4, s%d" % S_C)
    e("s_cmp_ge_u32 s4, 7")
    e("s_cselect_b32 s5, 7, 0")
    e("s_sub_u32 s4, s4, s5")
    if P2ROT[0] == 0: e("s_mov_b32 s4, 0")

def q_table(e, first, mult):
    e("s_mov_b32 s5, s4")
    for c in range(7):
        e("s_mul_i32 s%d, s5, %d" % (first + c, mult))
        if c < 6: rot_next(e, 5, 7)

def q_dma_pair(e, part, c, vw, tab):
    pos = q_pos(part, 2 * c)
    dma_group(e, 62, pos, [(S_WD, vw + i, tab + c, i * 1024, ("wd", 2 * c + (i >> 1))) for i in range(4)])

P2ROT = [1]
OSC = [""]
HSC = [" sc1"]
def q_setup2(e, part):
    L = V_LANE
    e("v_and_b32 v2, 15, v%d" % L)
    e("v_lshrrev_b32 v3, 2, v2")
    e("v_lshrrev_b32 v8, 5, v%d" % L)
    e("v_lshlrev_b32 v5, 2, v8")
    e("v_add_u32 v5, v5, v3")
    e("v_lshlrev_b32 v5, 7, v5")
    e("v_bfe_u32 v6, v2, 3, 1")
    e("v_lshlrev_b32 v6, 6, v6")
    e("v_bfe_u32 v3, v%d, 4, 1" % L)
    e("v_lshlrev_b32 v3, 5, v3")
    e("v_and_b32 v8, 3, v2")
    e("v_lshlrev_b32 v8, 3, v8")
    e("v_add3_u32 v5, v5, v6, v3")
    e("v_add_u32 v5, v5, v8")
    e("v_add_u32 v11, s62, v5")
    e("v_xor_b32 v12, 64, v11")
    e("v_add_u32 v18, 0x10000, v11")
    e("v_add_u32 v19, 0x10000, v12")
    e("v_add_u32 v15, 0x20000, v11")
    e("v_add_u32 v63, 0x20000, v12")
    e("s_mul_i32 s41, s%d, 112" % S_T1)
    e("s_mul_i32 s42, s%d, 14" % SI)
    e("s_add_u32 s41, s41, s42")
    if part: e("s_add_u32 s41, s41, 56")
    e("s_lshl_b32 s41, s41, 11")
    e("v_lshlrev_b32 v13, 4, v%d" % L)
    e("v_add_u32 v13, s41, v13")
    e("v_and_b32 v14, 31, v%d" % L)

def q_pos(part, kk):
    c = kk >> 1; u = kk & 1
    if part == 0: return c * 16384 + u * 2048
    if c < 3: return WB2 + c * 16384 + u * 2048
    if c < 6: return c * 16384 + u * 2048
    return 0 * 16384 + u * 2048

HT = [51]
def q_load_h(e, kk, hreg, hv, tag):
    c = kk >> 1; u = kk & 1
    for nb in range(2):
        e("buffer_load_dwordx4 %s, v%d, s[%d:%d], s%d offen offset:%d%s" % (vr(hreg + 4 * nb, 4), hv, S_WS, S_WS + 3, HT[0] + c, u * 2048 + nb * 1024, HSC[0]))
        e.vm_issue(tag)

def q_steps(part, kks, hv, reg0=0):
    return [dict(part=part, kk=kk, hv=hv, hreg=Q_H + 8 * (reg0 + i), tag=("h", part, kk)) for i, kk in enumerate(kks)]

def q_issue_h(e, st):
    q_load_h(e, st["kk"], st["hreg"], st["hv"], st["tag"])

def q_mainloop(e, cfg, steps, init_zero, pre, extra=None, after_i=None, barrier_before=None):
    n = len(steps)
    def reads(i):
        st = steps[i]
        b = Q_A + 8 * (i & 1)
        pos = q_pos(st["part"], st["kk"])
        for mb in range(2):
            for ip in range(2):
                va = (11 + mb) if pos < 0x10000 else (18 + mb)
                po = pos if pos < 0x10000 else pos - 0x10000
                if pos >= 0x20000:
                    va = (15, 63)[mb]; po = pos - 0x20000
                e("ds_read_b64_tr_b16 %s, v%d offset:%d" % (vr(b + 4 * mb + 2 * ip, 2), va, po + ip * 1024))
                e.lg_issue(("A", i, mb))
    nxt = pre
    e.vm_wait([("wd", steps[0]["kk"])])
    reads(0)
    for i in range(n):
        st = steps[i]
        if nxt < n:
            q_issue_h(e, steps[nxt]); nxt += 1
            if nxt == n and extra: extra()
        late = (barrier_before is not None and i + 1 == barrier_before)
        if i + 1 < n and not late:
            e.vm_wait([("wd", steps[i + 1]["kk"])])
            reads(i + 1)
        e.vm_wait([st["tag"]])
        b = Q_A + 8 * (i & 1)
        for mb in range(2):
            e.lg_wait([("A", i, mb)])
            for nb in range(2):
                mfma(e, Q_ACC + 16 * (2 * mb + nb), b + 4 * mb, st["hreg"] + 4 * nb, "0" if (i == 0 and init_zero) else None)
        if late:
            e("s_barrier")
            reads(i + 1)
        if after_i: after_i(i)
    assert not e.lg and nxt >= n

def flags_line(e, part):
    e("s_lshr_b32 s43, s%d, 1" % S_T1)
    e("s_lshl_b32 s43, s43, 9")
    e("s_add_u32 s%d, s43, 0x%x" % (S_PF, FLAGS + 256 * part))

def q_loader_A(e, cfg):
    for i in range(4):
        e("v_add_u32 v%d, %d, v%d" % (20 + i, 896 * 896, 26 + i))
    stamp(e, cfg, 5)
    def after_i(i):
        if i == 1:
            dma_group(e, 62, q_pos(1, 12), [(S_WD, 20 + k, 44 + 6, k * 1024, ("wdb", 6)) for k in range(4)])
        if (i & 1) and 3 <= (i >> 1) < 6 - cfg.nca:
            c = i >> 1
            dma_group(e, 62, q_pos(1, 2 * c), [(S_WD, 20 + k, 44 + c, k * 1024, ("wdb", c)) for k in range(4)])
    q_mainloop(e, cfg, cfg.stepsA, True, cfg.hpre, None, after_i)
    stamp(e, cfg, 6)
    e("v_lshlrev_b32 v2, 4, v%d" % V_LANE)
    e("v_add_u32 v2, s62, v2")
    e("v_add_u32 v3, 0x10000, v2")
    e("s_nop 7"); e("s_nop 3")
    for tl, (va, off) in enumerate(((2, 16384), (2, 32768), (3, 6 * 16384 - 0x10000))):
        for qq in range(4):
            e("ds_write_b128 v%d, %s offset:%d" % (va, vr(Q_ACC + 16 * tl + 4 * qq, 4), off + qq * 1024))
    e("s_waitcnt vmcnt(0) lgkmcnt(0)")
    e.vm = []
    e("s_barrier")
    stamp(e, cfg, 7)
    e("v_add_u32 v3, 0x%x, v2" % WB2)
    for qq in range(4):
        e("ds_write_b128 v3, %s offset:%d" % (vr(Q_ACC + 48 + 4 * qq, 4), qq * 1024))
    e("s_waitcnt lgkmcnt(0)")
    e("s_barrier")

def tprime(e):
    L = V_LANE
    e("s_cmp_lg_u32 s%d, 0" % S_T1)
    e("s_cselect_b32 s76, s63, 0")
    e("v_add_u32 v2, s76, v14")
    e("v_lshrrev_b32 v8, 5, v%d" % L)
    e("v_lshlrev_b32 v8, 2, v8")
    e("s_lshl_b32 s77, s%d, 4" % SI)
    e("v_add_u32 v8, s77, v8")
    e("s_lshl_b32 s76, s63, 31")
    e("s_mov_b32 s77, 0x%08x" % f2u(1.0 / 64))
    for nb in range(2):
        if nb: e("v_add_u32 v2, 32, v2")
        e("v_xor_b32 v21, s76, v%d" % (22 + nb))
        for u in range(2):
            for q in range(4):
                e("v_add_u32 v3, %d, v8" % (8 * u + q))
                e("v_mul_u32_u24 v3, v3, v2")
                e("v_and_b32 v3, 63, v3")
                e("v_cvt_f32_u32 v3, v3")
                e("v_mul_f32 v3, s77, v3")
                e("v_cos_f32 v5, v3")
                e("v_sin_f32 v6, v3")
                e("s_nop 0")
                e("v_mul_f32 v5, v5, v%d" % (22 + nb))
                e("v_mul_f32 v6, v6, v21")
                e("v_cvt_pk_bf16_f32 v%d, v5, v6" % (T_REG + 8 * nb + 4 * u + q))
    for nb in range(2):
        e("v_sub_f32 v%d, 1.0, v%d" % (40 + 2 * nb, 22 + nb))
        e("v_mov_b32 v%d, v%d" % (41 + 2 * nb, 40 + 2 * nb))

T_REG = 44
U_REG = 128
def q_consumer_B(e, cfg):
    L = V_LANE
    q_setup(e, 1, 26)
    q_setup2(e, 1)
    e("v_subrev_u32 v9, %d, v13" % (56 * 2048))
    srd(e, S_OUT, 46, 1835008)
    srd(e, S_WD, 56, 1605632)
    q_table(e, 44, 2 * 16 * 896)
    q_table(e, 51, 4096)
    e.vm_wait(["pollA"])
    okA = e.newlabel("AOK")
    e("v_cmp_eq_u32 vcc, s%d, v60" % S_NONCE)
    e("s_nop 1")
    e("s_and_b32 s42, vcc_lo, 0x3fff")
    e("s_cmp_eq_u32 s42, 0x3fff")
    e("s_cbranch_scc1 %s" % okA)
    svm = list(e.vm)
    poll_loop(e, 14, False)
    e.vm = svm
    e.label(okA)
    stepsCA = q_steps(0, list(range(2 * (6 - cfg.nca), 12)), 9)
    for st in stepsCA[:cfg.preCA]: q_issue_h(e, st)
    e("s_cmp_ge_u32 s%d, 4" % S_C)
    e("s_cselect_b32 s63, 1, 0")
    e("s_sub_u32 s64, 32, s%d" % S_T1)
    e("s_and_b32 s64, s64, 31")
    e("s_cmp_eq_u32 s63, 1")
    e("s_cselect_b32 s64, s64, s%d" % S_T1)
    e("v_lshrrev_b32 v8, 5, v%d" % L)
    e("s_lshl_b32 s41, s%d, 6" % S_C)
    e("s_cmp_eq_u32 s63, 1")
    e("s_cselect_b64 vcc, -1, 0")
    for mb in range(2):
        e("v_add_u32 v2, s41, v14")
        if mb: e("v_add_u32 v2, 32, v2")
        e("v_sub_u32 v3, 448, v2")
        e("v_cndmask_b32 v2, v2, v3, vcc")
        e("v_lshlrev_b32 v2, 4, v2")
        e("v_lshlrev_b32 v3, 12, v8")
        e("v_add_u32 v%d, v2, v3" % (16 + mb))
    e("s_lshl_b32 s41, s64, 4")
    e("s_lshl_b32 s42, s%d, 2" % SI)
    e("s_add_u32 s41, s41, s42")
    e("s_lshl_b32 s41, s41, 12")
    e("s_add_u32 s65, s41, 0x%x" % UBUF)
    e("s_lshl_b32 s41, s%d, 6" % S_T1)
    e("v_add_u32 v2, s41, v14")
    e("v_lshlrev_b32 v2, 2, v2")
    e("v_add_u32 v20, 0x%x, v2" % GBUF)
    e("s_mul_i32 s41, s61, 12")
    e("s_lshl_b32 s42, s%d, 2" % S_WAVE)
    e("s_add_u32 s41, s41, s42")
    e("s_add_u32 s41, s41, 256")
    e("s_add_u32 s%d, s%d, s41" % (S_FLAG, S_FLAG))
    e.vm_wait(["hst"])
    stamp(e, cfg, 6)
    flag_store(e)
    e.vm_issue("flagB")
    for nb in range(2):
        e("buffer_load_dword v%d, v20, s[%d:%d], 0 offen offset:%d sc1" % (22 + nb, S_WS, S_WS + 3, nb * 128))
        e.vm_issue("g")
    for st in stepsCA[cfg.preCA:]: q_issue_h(e, st)
    for c in range(3): q_dma_pair(e, 1, c, 26, 44)
    e.vm_wait(["g"])
    tprime(e)
    def afterA(i):
        if i & 1:
            c = 6 - cfg.nca + (i >> 1)
            q_dma_pair(e, 1, c, 26, 44)
    if stepsCA:
        q_mainloop(e, cfg, stepsCA, True, len(stepsCA), None, afterA)
    stamp(e, cfg, 4)
    flags_line(e, 1)
    poll_prep(e, S_PF, 56)
    poll_loop56(e)
    stamp(e, cfg, 5)
    e.vm = []
    e("v_lshlrev_b32 v62, 2, v%d" % V_LANE)
    e("v_add_u32 v62, 0x%x, v62" % (FLAGS + 16 * 512))
    e("v_mov_b32 v60, 0x7fffffff")
    e("v_cmp_gt_u32 vcc, 32, v%d" % V_LANE)
    e("s_nop 1")
    e("v_cndmask_b32 v62, v60, v62, vcc")
    def uloads():
        for u in range(2):
            for mb in range(2):
                e("s_add_u32 s%d, s65, %d" % (S_OFF, u * 2 * 4096))
                e("buffer_load_dwordx4 %s, v%d, s[%d:%d], s%d offen sc1" % (vr(U_REG + 8 * u + 4 * mb, 4), 16 + mb, S_WS, S_WS + 3, S_OFF))
                e.vm_issue("u")
    def dflag_issue():
        e("buffer_load_dword v10, v62, s[%d:%d], 0 offen sc1" % (S_WS, S_WS + 3))
        e.vm_issue("dflag")
    def after_k(kk):
        if kk == cfg.dchk:
            ok = e.newlabel("DOK"); top = e.newlabel("DSP")
            e.vm_wait(["dflag"])
            sv = list(e.vm)
            e("s_mov_b32 s41, 0")
            e.label(top)
            e("v_cmp_eq_u32 vcc, s%d, v10" % S_NONCE)
            e("s_nop 1")
            e("s_cmp_eq_u32 vcc_lo, -1")
            e("s_cbranch_scc1 %s" % ok)
            e("s_add_u32 s41, s41, 1")
            e("s_cmp_ge_u32 s41, 0x40000")
            e("s_cbranch_scc1 %s" % ok)
            e("buffer_load_dword v10, v62, s[%d:%d], 0 offen sc1" % (S_WS, S_WS + 3))
            e("s_waitcnt vmcnt(0)")
            e("s_branch %s" % top)
            e.label(ok)
            e.vm = sv
            uloads()
    stepsB = q_steps(1, list(range(14)), 13)
    for i in range(cfg.hpreB): q_issue_h(e, stepsB[i])
    q_mainloop(e, cfg, stepsB, cfg.nca == 0, cfg.hpreB, dflag_issue, after_k, 2 if cfg.nca == 3 else 6)
    stamp(e, cfg, 7)
    e("s_nop 7"); e("s_nop 3")
    for mb in range(2):
        for nb in range(2):
            D = Q_ACC + 16 * (2 * mb + nb)
            for i in range(0, 16, 2):
                e("v_pk_mul_f32 %s, %s, %s" % (vr(D + i, 2), vr(D + i, 2), vr(40 + 2 * nb, 2)))
    e.vm_wait(["u"])
    e("s_nop 1")
    for u in range(2):
        for mb in range(2):
            for nb in range(2):
                mfma(e, Q_ACC + 16 * (2 * mb + nb), U_REG + 8 * u + 4 * mb, T_REG + 8 * nb + 4 * u)
    e("s_barrier")
    e("v_lshlrev_b32 v2, 4, v%d" % L)
    e("s_add_u32 s41, s%d, 2" % SI)
    e("s_cmp_eq_u32 s%d, 0" % SI)
    e("s_cselect_b32 s41, 0, s41")
    e("s_lshl_b32 s41, s41, 14")
    e("v_add_u32 v3, s41, v2")
    e("s_add_u32 s41, s%d, 1" % SI)
    e("s_lshl_b32 s41, s41, 14")
    e("s_cmp_eq_u32 s%d, 2" % SI)
    e("s_cselect_b32 s41, %d, s41" % (6 * 16384))
    e("s_cmp_eq_u32 s%d, 3" % SI)
    e("s_cselect_b32 s41, 0x%x, s41" % WB2)
    e("v_add_u32 v5, s41, v2")
    for k in range(4):
        for qq in range(4):
            e("ds_read_b128 %s, v5 offset:%d" % (vr(192 + 16 * k + 4 * qq, 4), k * 4096 + qq * 1024))
        if k == 2: e("s_waitcnt lgkmcnt(8)")
    e("s_waitcnt lgkmcnt(6)")
    for tl in range(4):
        for qq in range(4):
            e("ds_write_b128 v3, %s offset:%d" % (vr(Q_ACC + 16 * tl + 4 * qq, 4), tl * 4096 + qq * 1024))
        if tl < 3: e("s_waitcnt lgkmcnt(6)")
    e("s_waitcnt lgkmcnt(0)")
    e("s_barrier")
    e("s_lshl_b32 s41, s%d, 12" % SI)
    e("v_add_u32 v3, s41, v2")
    e("v_add_u32 v6, 0x10000, v3")
    for k, (va, off) in enumerate(((3, 0), (3, 3 * 16384), (6, 0), (6, 16384))):
        for qq in range(4):
            e("ds_read_b128 %s, v%d offset:%d" % (vr(128 + 16 * k + 4 * qq, 4), va, off + qq * 1024))
        if k == 2: e("s_waitcnt lgkmcnt(8)")
    for q in range(0, 16, 2):
        e("v_pk_add_f32 %s, %s, %s" % (vr(192 + q, 2), vr(192 + q, 2), vr(208 + q, 2)))
        e("v_pk_add_f32 %s, %s, %s" % (vr(224 + q, 2), vr(224 + q, 2), vr(240 + q, 2)))
    for q in range(0, 16, 2):
        e("v_pk_add_f32 %s, %s, %s" % (vr(192 + q, 2), vr(192 + q, 2), vr(224 + q, 2)))
    e("s_and_b32 s41, s%d, 1" % SI)
    e("s_cmp_eq_u32 s41, 1")
    e("s_cselect_b64 vcc, -1, 0")
    e("s_nop 1")
    e("v_cndmask_b32 v40, v40, v42, vcc")
    e("v_mov_b32 v41, v40")
    e("s_lshl_b32 s41, s41, 5")
    e("v_add_u32 v2, s41, v14")
    e("v_lshlrev_b32 v2, 5, v2")
    e("v_add_u32 v2, s%d, v2" % S_T1)
    e("s_movk_i32 s42, 896")
    e("v_mul_lo_u32 v2, v2, s42")
    e("s_lshl_b32 s41, s%d, 7" % S_C)
    e("s_lshr_b32 s42, s%d, 1" % SI)
    e("s_lshl_b32 s42, s42, 6")
    e("s_add_u32 s41, s41, s42")
    e("v_lshrrev_b32 v8, 5, v%d" % L)
    e("v_lshlrev_b32 v8, 4, v8")
    e("v_add3_u32 v2, v2, v8, s41")
    e("s_waitcnt lgkmcnt(0)")
    for q in range(0, 16, 2):
        e("v_pk_add_f32 %s, %s, %s" % (vr(128 + q, 2), vr(128 + q, 2), vr(144 + q, 2)))
        e("v_pk_add_f32 %s, %s, %s" % (vr(160 + q, 2), vr(160 + q, 2), vr(176 + q, 2)))
    for q in range(0, 16, 2):
        e("v_pk_fma_f32 %s, %s, %s, %s" % (vr(128 + q, 2), vr(192 + q, 2), vr(40, 2), vr(128 + q, 2)))
    for q in range(0, 16, 2):
        e("v_pk_add_f32 %s, %s, %s" % (vr(128 + q, 2), vr(128 + q, 2), vr(160 + q, 2)))
    for q in range(8):
        e("v_cvt_pk_bf16_f32 v%d, v%d, v%d" % (96 + q, 128 + 2 * q, 128 + 2 * q + 1))
    e("s_nop 1")
    for ih in range(2):
        e("v_permlane32_swap_b32 v%d, v%d" % (96 + 4 * ih, 98 + 4 * ih))
        e("v_permlane32_swap_b32 v%d, v%d" % (97 + 4 * ih, 99 + 4 * ih))
    for ih in range(2):
        e("buffer_store_dwordx4 %s, v2, s[%d:%d], 0 offen offset:%d%s" % (vr(96 + 4 * ih, 4), S_OUT, S_OUT + 3, ih * 32, OSC[0]))
    stamp(e, cfg, 8)

def kernel_fused2(e, cfg):
    name = "gated_mix__spectral_fnet__glu_gated_glu__prompt_kernel"
    header(e, name)
    if cfg.diag:
        e("s_memrealtime s[%d:%d]" % (S_STAMP + 6, S_STAMP + 7))
    e("s_cmp_ge_u32 s2, 256")
    e("s_cbranch_scc1 KF_END")
    kernarg_loads(e)
    entry_common(e)
    e("s_and_b32 s%d, s%d, 3" % (S_WF, S_WAVE))
    e("s_and_b32 s%d, s%d, 3" % (S_LW, S_WAVE))
    e("s_and_b32 s41, s2, 7")
    e("s_lshr_b32 s42, s2, 3")
    e("s_cmp_ge_u32 s42, 28")
    e("s_cbranch_scc1 P1_DFT")
    e("s_mul_i32 s43, s42, 37")
    e("s_lshr_b32 s43, s43, 8")
    e("s_mul_i32 s76, s43, 7")
    e("s_sub_u32 s76, s42, s76")
    e("s_lshr_b32 s77, s41, 1")
    e("s_lshl_b32 s77, s77, 2")
    e("s_add_u32 s%d, s77, s43" % S_R)
    e("s_and_b32 s77, s41, 1")
    e("s_mul_i32 s77, s77, 7")
    e("s_add_u32 s%d, s77, s76" % S_FB)
    e("s_cmp_lt_u32 s%d, 4" % S_WAVE)
    e("s_cbranch_scc1 P1_H_CONSUMER")
    e.vm = []; e.lg = []
    h2_loader(e, cfg)
    q_loader_A(e, cfg)
    stamp_store(e, cfg, 0)
    e("s_endpgm")
    e.label("P1_H_CONSUMER")
    e.vm = []; e.lg = []
    h2_consumer(e, cfg)
    q_consumer_B(e, cfg)
    stamp_store(e, cfg, 0)
    e("s_endpgm")
    e.label("P1_DFT")
    e("s_sub_u32 s42, s42, 28")
    e("s_and_b32 s%d, s41, 1" % S_EH)
    e("s_lshr_b32 s77, s41, 1")
    e("s_lshl_b32 s77, s77, 2")
    e("s_add_u32 s%d, s77, s42" % S_QG)
    e("s_cmp_ge_u32 s%d, 4" % S_WAVE)
    e("s_cbranch_scc1 P1_D_LOADER")
    e.vm = []; e.lg = []
    p1_consumer(e, cfg, False)
    d_epilogue(e, cfg)
    stamp(e, cfg, 3)
    e.vm_wait_all()
    e("s_barrier")
    lab = e.newlabel("DNOTW0")
    e("s_cmp_lg_u32 s%d, 0" % S_WAVE)
    e("s_cbranch_scc1 %s" % lab)
    flag_store(e)
    e("s_waitcnt vmcnt(0)")
    e.label(lab)
    stamp_store(e, cfg, 0)
    e("s_endpgm")
    e.label("P1_D_LOADER")
    e.vm = []; e.lg = []
    p1_loader(e, cfg, False)
    stamp(e, cfg, 3)
    e("s_waitcnt vmcnt(0)")
    e("s_barrier")
    stamp_store(e, cfg, 0)
    e("s_endpgm")
    e.label("KF_END")
    e("s_endpgm")

def descriptor(name):
    return """.section .rodata,"a"
.p2align 6
.amdhsa_kernel %s
  .amdhsa_next_free_vgpr 256
  .amdhsa_next_free_sgpr 102
  .amdhsa_accum_offset 256
  .amdhsa_group_segment_fixed_size 0
  .amdhsa_kernarg_size 104
  .amdhsa_user_sgpr_count 2
  .amdhsa_user_sgpr_kernarg_segment_ptr 1
  .amdhsa_system_sgpr_workgroup_id_x 1
.end_amdhsa_kernel
""" % name

def main():
    cfg = Cfg()
    cfg.pro_extra = 8; cfg.stage_budget = 8; cfg.p2_la = 3; cfg.p2_dpoll = 4; cfg.stage_budget2 = 6; cfg.flagA_bar = 22; cfg.epi_rate = 0; cfg.epi_start = 1; cfg.epoll = 26; cfg.hpre = 5; cfg.preCA = 0; cfg.nca = 3; cfg.hpreB = 5; cfg.dchk = 11; cfg.gate_j = 5; cfg.pfWd_j = 8; cfg.pfW_j = 1
    out = sys.argv[1]
    for a in sys.argv[2:]:
        if a == "nop2rot": P2ROT[0] = 0
        if a == "osc1": OSC[0] = " sc1"
        if a == "ont": OSC[0] = " nt"
        if a == "osc01": OSC[0] = " sc0 sc1"
        if a == "hplain": HSC[0] = ""
        if a == "hnt": HSC[0] = " nt"
        if a == "hsc01": HSC[0] = " sc0 sc1"
        if a == "diag": cfg.diag = True
        elif a == "fused": cfg.fused = True
        elif "=" in a:
            k, v = a.split("="); setattr(cfg, k, int(v))
        else: cfg.x = cfg.x | {a}
    e = Em()
    if cfg.fused:
        name = "gated_mix__spectral_fnet__glu_gated_glu__prompt_kernel"
        hdr = "; generated by gen2.py (fused)\n; @launch grid=(256,1,1) block=(512,1,1) lds=163840\n"
        hdr += '.amdgcn_target "amdgcn-amd-amdhsa--gfx950"\n'
        kernel_fused2(e, cfg)
        open(out, "w").write(hdr + e.text() + descriptor(name))
        return
    hdr = "; generated by gen2.py\n"
    hdr += "; @launch kernel=k1_kernel grid=(256,1,1) block=(512,1,1) lds=163840\n"
    hdr += "; @launch kernel=k2_kernel grid=(256,1,1) block=(512,1,1) lds=163840\n"
    hdr += '.amdgcn_target "amdgcn-amd-amdhsa--gfx950"\n'
    kernel1(e, cfg)
    kernel2(e, cfg)
    txt = hdr + e.text() + descriptor("k1_kernel") + descriptor("k2_kernel")
    open(out, "w").write(txt)
if __name__ == "__main__":
    main()
```

```python
import sys, math, struct

def f2u(f): return struct.unpack("<I", struct.pack("<f", f))[0]

class Em:
    def __init__(self):
        self.lines = []
        self.vm = []
        self.lg = []
        self.nlab = 0
    def __call__(self, s): self.lines.append("    " + s)
    def raw(self, s): self.lines.append(s)
    def label(self, s): self.lines.append(s + ":")
    def newlabel(self, p):
        self.nlab += 1
        return "%s_%d" % (p, self.nlab)
    def vm_issue(self, tag): self.vm.append(tag)
    def vm_wait(self, tags):
        last = -1
        for i, t in enumerate(self.vm):
            if t in tags: last = i
        if last < 0: return
        n = len(self.vm) - 1 - last
        assert n <= 63, n
        self("s_waitcnt vmcnt(%d)" % n)
        self.vm = self.vm[last + 1:]
    def vm_wait_all(self):
        self("s_waitcnt vmcnt(0)"); self.vm = []
    def lg_issue(self, tag): self.lg.append(tag)
    def lg_wait(self, tags):
        last = -1
        for i, t in enumerate(self.lg):
            if t in tags: last = i
        if last < 0: return
        n = len(self.lg) - 1 - last
        assert n <= 15, n
        self("s_waitcnt lgkmcnt(%d)" % n)
        self.lg = self.lg[last + 1:]
    def lg_wait_all(self):
        self("s_waitcnt lgkmcnt(0)"); self.lg = []
    def text(self): return "\n".join(self.lines) + "\n"

def vr(a, n=1): return "v%d" % a if n == 1 else "v[%d:%d]" % (a, a + n - 1)

HBUF = 0
UBUF = 0x700000
GBUF = 0x900000
FLAGS = 0x910000
DIAG = 0xA00000
WS_BYTES = 0x1000000
LOG2E = 1.4426950408889634

S_X = 8; S_WA = 12; S_WB = 16; S_WS = 20; S_GW = 24; S_OUT = 28; S_WD = 32; S_DBG = 36
S_WAVE = 40
S_R = 60; S_FB = 61; S_QG = 62; S_EH = 63
S_WF = 64; S_LW = 65
S_LDSW = 66; S_LDSX = 67
S_OFF = 68
S_T1 = 70; S_C = 71
S_STAMP = 80
S_NONCE = 98; S_FLAG = 99; S_PF = 100
V_LANE = 1

class Cfg:
    fused = False
    diag = False
    x = set()

def kernarg_loads(e):
    e("s_load_dwordx2 s[44:45], s[0:1], 0")
    e("s_load_dwordx4 s[48:51], s[0:1], 24")
    e("s_load_dwordx4 s[52:55], s[0:1], 48")
    e("s_load_dwordx4 s[56:59], s[0:1], 64")
    e("s_load_dwordx2 s[46:47], s[0:1], 80")
    e("s_load_dwordx4 s[72:75], s[0:1], 88")

def srd(e, dst, lo, nbytes):
    e("s_mov_b32 s%d, s%d" % (dst, lo))
    e("s_and_b32 s%d, s%d, 0xffff" % (dst + 1, lo + 1))
    e("s_mov_b32 s%d, 0x%x" % (dst + 2, nbytes))
    e("s_mov_b32 s%d, 0x20000" % (dst + 3))

NSTAMP = 6
STG = [False]
def stamp(e, cfg, k):
    if cfg.diag and not ("stg" in cfg.x and k in (4,5,6,7) and STG[0]):
        assert not e.lg
        e("s_memrealtime s[%d:%d]" % (S_STAMP + 2 * k, S_STAMP + 2 * k + 1))
        if k in (1, 2) and not cfg.fused:
            e("s_memtime s[%d:%d]" % (S_STAMP + 12 + 2 * (k - 1), S_STAMP + 13 + 2 * (k - 1)))
        e("s_waitcnt lgkmcnt(0)")

def stamp_store(e, cfg, slot_base):
    if not cfg.diag: return
    e("s_lshl_b32 s41, s2, 3")
    e("s_add_u32 s41, s41, s%d" % S_WAVE)
    e("s_lshl_b32 s41, s41, 6")
    e("s_add_u32 s41, s41, 0x%x" % (DIAG + slot_base))
    e("v_mov_b32 v1, s41")
    for k in range(9 if cfg.fused else NSTAMP + 2):
        e("v_mov_b32 v2, s%d" % (S_STAMP + 2 * k))
        e("buffer_store_dword v2, v1, s[%d:%d], 0 offen offset:%d" % (S_WS, S_WS + 3, 4 * k))
        e("s_nop 1")
    e("v_mov_b32 v2, s7")
    e("buffer_store_dword v2, v1, s[%d:%d], 0 offen offset:36" % (S_WS, S_WS + 3))
    e("s_waitcnt vmcnt(0)")

def mfma(e, d, a, b, c=None):
    cs = vr(d, 16) if c is None else c
    e("v_mfma_f32_32x32x16_bf16 %s, %s, %s, %s" % (vr(d, 16), vr(a, 4), vr(b, 4), cs))

NODMA = [False]
def dma_group(e, sldsbase, ldsconst, items):
    e("s_add_u32 m0, s%d, 0x%x" % (sldsbase, ldsconst))
    e("s_nop 0")
    for (srdreg, vaddr, soff, ioff, tag) in items:
        e("buffer_load_dwordx4 v%d, s[%d:%d], s%d offen offset:%d lds" % (vaddr, srdreg, srdreg + 3, soff, ioff))
        e.vm_issue(tag)
def fill_table(e, first, n, scnt, mod, emit):
    for c in range(n):
        emit(first + c)
        if c + 1 < n: rot_next(e, scnt, mod)
def rot_next(e, sreg, n):
    e("s_add_u32 s%d, s%d, 1" % (sreg, sreg))
    e("s_cmp_eq_u32 s%d, %d" % (sreg, n))
    e("s_cselect_b32 s%d, 0, s%d" % (sreg, sreg))
def dma(e, srdreg, vaddr, ldsconst, sldswave, soff, tag):
    if NODMA[0]:
        e.vm_issue(tag); e.vm.pop(); return
    e("s_add_u32 m0, s%d, 0x%x" % (sldswave, ldsconst))
    if soff is None:
        e("s_nop 0")
    else:
        e("s_mov_b32 s%d, 0x%x" % (S_OFF, soff))
    e("buffer_load_dwordx4 v%d, s[%d:%d], s%d offen lds" % (vaddr, srdreg, srdreg + 3, S_OFF))
    e.vm_issue(tag)

XSLOT = 16384; NX = 4
WBASE = 65536; NW = 6; WSLOT = 16384
ACC = 64
def accA(i): return ACC + 16 * i
def accB(i): return ACC + 64 + 16 * i
FR = 192
V_XA = 10
V_WA = 14
CONST_LDS = 0

def p1_consumer_addr(e, is_h):
    L = V_LANE; T = 26
    e("v_and_b32 v%d, 31, v%d" % (T, L))
    e("v_lshrrev_b32 v%d, 5, v%d" % (T + 1, L))
    e("v_lshrrev_b32 v%d, 1, v%d" % (T + 2, T))
    e("v_and_b32 v%d, 7, v%d" % (T + 2, T + 2))
    e("v_lshlrev_b32 v%d, 7, v%d" % (T + 3, T))
    if not is_h:
        e("s_lshl_b32 s41, s%d, 5" % S_WF)
        e("v_add_u32 v%d, s41, v%d" % (T + 5, T))
        e("v_lshlrev_b32 v%d, 7, v%d" % (T + 5, T + 5))
        e("v_add_u32 v%d, 0x%x, v%d" % (T + 5, WBASE, T + 5))
    for k in range(4):
        e("v_add_u32 v%d, %d, v%d" % (T + 4, 2 * k, T + 1))
        e("v_xor_b32 v%d, v%d, v%d" % (T + 4, T + 4, T + 2))
        e("v_lshlrev_b32 v%d, 4, v%d" % (T + 4, T + 4))
        e("v_add_u32 v%d, v%d, v%d" % (V_XA + k, T + 3, T + 4))
        if not is_h:
            e("v_add_u32 v%d, v%d, v%d" % (V_WA + k, T + 5, T + 4))
            e("v_add_u32 v%d, 0x10000, v%d" % (V_WA + 4 + k, V_WA + k))
    if is_h:
        e("v_and_b32 v%d, 15, v%d" % (T + 4, L))
        e("v_lshrrev_b32 v%d, 2, v%d" % (T + 5, T + 4))
        e("v_lshlrev_b32 v%d, 3, v%d" % (T + 6, T + 1))
        e("v_add_u32 v%d, v%d, v%d" % (T + 6, T + 6, T + 5))
        e("v_lshlrev_b32 v%d, 8, v%d" % (T + 6, T + 6))
        e("v_xor_b32 v%d, s%d, v%d" % (T + 7, S_WF, T + 5))
        e("v_lshlrev_b32 v%d, 6, v%d" % (T + 7, T + 7))
        e("v_add_u32 v%d, v%d, v%d" % (T + 6, T + 6, T + 7))
        e("v_bfe_u32 v%d, v%d, 4, 1" % (T + 7, L))
        e("v_lshlrev_b32 v%d, 5, v%d" % (T + 7, T + 7))
        e("v_add_u32 v%d, v%d, v%d" % (T + 6, T + 6, T + 7))
        e("v_and_b32 v%d, 3, v%d" % (T + 7, T + 4))
        e("v_lshlrev_b32 v%d, 3, v%d" % (T + 7, T + 7))
        e("v_add_u32 v%d, v%d, v%d" % (T + 6, T + 6, T + 7))
        e("v_add_u32 v%d, 0x%x, v%d" % (V_WA, WBASE, T + 6))
        e("v_add_u32 v%d, 0x%x, v%d" % (V_WA + 1, WBASE + 0x10000, T + 6))

def p1_reads(kap, is_h):
    base = FR + 24 * (kap & 1)
    c = kap >> 2; kk4 = kap & 3
    def xr(nb): return (("X", kap, nb), "ds_read_b128 %s, v%d offset:%d" % (vr(base + 4 * nb, 4), V_XA + kk4, (c % NX) * XSLOT + nb * 4096))
    if is_h:
        j = kap >> 1; kk = kap & 1
        slot = (j % NW) * WSLOT
        va = V_WA + (1 if slot >= 0x10000 else 0); so = slot & 0xffff
        def wr(m, ip): return (("W", kap, m), "ds_read_b64_tr_b16 %s, v%d offset:%d" % (vr(base + 16 + 4 * m + 2 * ip, 2), va, so + m * 8192 + (16 * kk + 4 * ip) * 256))
        return [wr(0, 0), wr(0, 1), xr(0), wr(1, 0), wr(1, 1), xr(1), xr(2), xr(3)]
    else:
        slot = (c % 3) * 32768
        va = V_WA + kk4 + (4 if slot >= 0x10000 else 0); so = slot & 0xffff
        def wr(m): return (("W", kap, m), "ds_read_b128 %s, v%d offset:%d" % (vr(base + 16 + 4 * m, 4), va, so + m * 16384))
        return [wr(0), xr(0), wr(1), xr(1), xr(2), xr(3)]

def p1_consumer(e, cfg, is_h):
    p1_consumer_addr(e, is_h)
    e("s_waitcnt lgkmcnt(0)")
    srd(e, S_WS, 74, WS_BYTES)
    if cfg.fused:
        flag_addr(e, is_h)
        nonce_issue(e)
    stamp(e, cfg, 0)
    if (not is_h) and "pfcode" in cfg.x:
        lab = e.newlabel("PC")
        e("s_getpc_b64 s[42:43]")
        e.label(lab)
        e("s_sub_u32 s42, s42, (%s - gated_mix__spectral_fnet__glu_gated_glu__prompt_kernel)" % lab)
        e("s_subb_u32 s43, s43, 0")
        e("s_lshr_b32 s41, s2, 3")
        e("s_sub_u32 s41, s41, 28")
        e("s_lshl_b32 s41, s41, 2")
        e("s_add_u32 s41, s41, s%d" % S_WAVE)
        e("s_mul_i32 s41, s41, 16")
        e("v_and_b32 v9, 15, v%d" % V_LANE)
        e("v_add_u32 v8, s41, v9")
        e("v_lshlrev_b32 v8, 7, v8")
        e("v_min_u32 v8, (KF_CODE_END - gated_mix__spectral_fnet__glu_gated_glu__prompt_kernel - 4), v8")
        e("v_mov_b32 v9, s43")
        e("v_add_co_u32 v8, vcc, s42, v8")
        e("s_nop 1")
        e("v_addc_co_u32 v9, vcc, 0, v9, vcc")
        e("global_load_dword v3, v[8:9], off")
    e("s_barrier")
    stamp(e, cfg, 1)
    for tag, txt in p1_reads(0, is_h):
        e(txt); e.lg_issue(tag)
    for kap in range(28):
        base = FR + 24 * (kap & 1)
        nxt = p1_reads(kap + 1, is_h) if kap + 1 < 28 else []
        for n in range(8):
            nb = n >> 1; m = n & 1
            e.lg_wait([("W", kap, m), ("X", kap, nb)])
            d = accA(nb) if m == 0 else accB(nb)
            W = base + 16 + 4 * m; X = base + 4 * nb
            c = "0" if kap == 0 else None
            if "no32" in cfg.x:
                for hh in range(2):
                    e("v_mfma_f32_16x16x32_bf16 %s, %s, %s, %s" % (vr(d + 8 * hh, 4), vr(W, 4), vr(X, 4), vr(d + 8 * hh, 4)))
            elif "nomfma" not in cfg.x:
                if is_h: mfma(e, d, W, X, c)
                else: mfma(e, d, X, W, c)
            if nxt and n < len(nxt):
                tag, txt = nxt[n]
                if "nolds" in cfg.x: e.lg_issue(tag); e.lg.pop()
                else:
                    e(txt); e.lg_issue(tag)
        if (kap & 1) and kap < 27:
            e("s_barrier")
        if cfg.fused and kap == 21:
            nonce_load(e)
    assert not e.lg
    if cfg.fused and is_h:
        e("s_barrier")
    if cfg.fused:
        nonce_finish(e)
    stamp(e, cfg, 2)

def h_epilogue(e, cfg):
    sc = " sc1" if cfg.fused else ""
    e("s_lshl_b32 s41, s%d, 1" % S_R)
    e("s_mul_i32 s41, s41, 112")
    e("s_lshl_b32 s42, s%d, 2" % S_FB)
    e("s_add_u32 s42, s42, s%d" % S_WF)
    e("s_lshl_b32 s42, s42, 1")
    e("s_add_u32 s41, s41, s42")
    e("s_lshl_b32 s41, s41, 11")
    e("v_lshlrev_b32 v26, 4, v%d" % V_LANE)
    e("v_add_u32 v26, s41, v26")
    e("v_add_u32 v27, 0x%x, v26" % (112 * 2048))
    e("s_mov_b32 s42, 0x%08x" % f2u(-LOG2E))
    e("s_mov_b32 s43, s42")
    e("s_mov_b32 s44, 1.0")
    e("s_mov_b32 s45, 1.0")
    e("s_nop 7")
    grp = 0
    for nb in range(4):
        for hf in range(2):
            outb = FR + 4 * (grp % 8); grp += 1
            A = accA(nb) + 8 * hf; B = accB(nb) + 8 * hf
            for q in range(0, 8, 2):
                e("v_pk_mul_f32 %s, %s, s[42:43]" % (vr(A + q, 2), vr(A + q, 2)))
            for q in range(8):
                e("v_exp_f32 v%d, v%d" % (A + q, A + q))
            for q in range(0, 8, 2):
                e("v_pk_add_f32 %s, %s, s[44:45]" % (vr(A + q, 2), vr(A + q, 2)))
            for q in range(8):
                e("v_rcp_f32 v%d, v%d" % (A + q, A + q))
            for q in range(0, 8, 2):
                e("v_pk_mul_f32 %s, %s, %s" % (vr(A + q, 2), vr(A + q, 2), vr(B + q, 2)))
            for q2 in range(4):
                e("v_cvt_pk_bf16_f32 v%d, v%d, v%d" % (outb + q2, A + 2 * q2, A + 2 * q2 + 1))
            e("buffer_store_dwordx4 %s, v%d, s[%d:%d], 0 offen offset:%d%s" % (vr(outb, 4), 26 + (nb >> 1), S_WS, S_WS + 3, hf * 2048 + (nb & 1) * 1024, sc))
            e.vm_issue("hst")

def d_epilogue(e, cfg):
    sc = " sc1" if cfg.fused else ""
    L = V_LANE
    ZB = [192, 208, 224, 240]
    e("s_nop 7"); e("s_nop 3")
    for sb in range(4):
        for hf in range(2):
            for pr in range(4):
                q = 8 * hf + 2 * pr
                e("v_cvt_pk_bf16_f32 v%d, v%d, v%d" % (ZB[sb] + 4 * hf + pr, accA(sb) + q, accA(sb) + q + 1))
                e("v_cvt_pk_bf16_f32 v%d, v%d, v%d" % (ZB[sb] + 8 + 4 * hf + pr, accB(sb) + q, accB(sb) + q + 1))
    e("s_barrier")
    e("v_lshlrev_b32 v2, 4, v%d" % L)
    def cread(sb):
        b = 10 + 24 * (sb & 1)
        for k in range(6):
            e("ds_read_b128 %s, v2 offset:%d" % (vr(b + 4 * k, 4), CONST_LDS + (sb * 6 + k) * 1024))
            e.lg_issue(("c", sb, k))
    cread(0); cread(1)
    for sb in range(4):
        b = 10 + 24 * (sb & 1)
        C0, C1, S0, S1, N0, N1 = [b + 4 * k for k in range(6)]
        ZR0, ZR1, ZI0, ZI1 = ZB[sb], ZB[sb] + 4, ZB[sb] + 8, ZB[sb] + 12
        e.lg_wait([("c", sb, k) for k in range(6)])
        mfma(e, accA(sb), C0, ZR0, "0")
        mfma(e, accB(sb), C0, ZI0, "0")
        mfma(e, accA(sb), C1, ZR1)
        mfma(e, accB(sb), C1, ZI1)
        mfma(e, accA(sb), S0, ZI0)
        mfma(e, accB(sb), N0, ZR0)
        mfma(e, accA(sb), S1, ZI1)
        mfma(e, accB(sb), N1, ZR1)
        if sb + 2 < 4:
            cread(sb + 2)
    e("s_lshl_b32 s41, s%d, 8" % S_QG)
    e("s_lshl_b32 s42, s%d, 7" % S_EH)
    e("s_add_u32 s41, s41, s42")
    e("s_lshl_b32 s42, s%d, 5" % S_WF)
    e("s_add_u32 s41, s41, s42")
    e("s_lshl_b32 s41, s41, 4")
    e("s_add_u32 s41, s41, 0x%x" % UBUF)
    e("v_and_b32 v3, 31, v%d" % L)
    e("v_lshlrev_b32 v3, 4, v3")
    e("v_lshrrev_b32 v4, 5, v%d" % L)
    e("v_lshlrev_b32 v4, 18, v4")
    e("v_add3_u32 v3, v3, v4, s41")
    e("s_nop 7"); e("s_nop 3")
    for q in range(16):
        i, jj = q >> 2, q & 3
        pk = 192 + 4 * (q % 8)
        for sb in range(4):
            e("v_cvt_pk_bf16_f32 v%d, v%d, v%d" % (pk + sb, accA(sb) + q, accB(sb) + q))
        e("s_mov_b32 s%d, 0x%x" % (S_OFF, (8 * i + jj) * 65536))
        e("buffer_store_dwordx4 %s, v3, s[%d:%d], s%d offen%s" % (vr(pk, 4), S_WS, S_WS + 3, S_OFF, sc))
        e.vm_issue("ust")

def p1_loader(e, cfg, is_h):
    L = V_LANE; T = 26
    VX = 10
    VW = 14
    e("v_lshrrev_b32 v%d, 3, v%d" % (T, L))
    e("s_lshl_b32 s41, s%d, 5" % S_LW)
    e("v_add_u32 v%d, s41, v%d" % (T, T))
    e("v_and_b32 v%d, 7, v%d" % (T + 1, L))
    e("v_lshrrev_b32 v%d, 4, v%d" % (T + 2, L))
    e("s_movk_i32 s42, 896")
    for i in range(4):
        if i: e("v_add_u32 v%d, 8, v%d" % (T, T))
        e("v_add_u32 v%d, %d, v%d" % (T + 3, (4 * i) & 7, T + 2))
        e("v_and_b32 v%d, 7, v%d" % (T + 3, T + 3))
        e("v_xor_b32 v%d, v%d, v%d" % (T + 3, T + 3, T + 1))
        e("v_lshlrev_b32 v%d, 4, v%d" % (T + 3, T + 3))
        if is_h:
            e("v_lshrrev_b32 v%d, 6, v%d" % (T + 4, T))
            e("v_and_b32 v%d, 63, v%d" % (T + 5, T))
            e("v_lshlrev_b32 v%d, 5, v%d" % (T + 5, T + 5))
            e("s_lshl_b32 s41, s%d, 1" % S_R)
            e("v_add3_u32 v%d, v%d, v%d, s41" % (T + 4, T + 4, T + 5))
        else:
            e("v_and_b32 v%d, 31, v%d" % (T + 4, T))
            e("v_lshlrev_b32 v%d, 6, v%d" % (T + 4, T + 4))
            e("v_lshrrev_b32 v%d, 5, v%d" % (T + 5, T))
            e("s_lshl_b32 s41, s%d, 2" % S_QG)
            e("v_add3_u32 v%d, v%d, v%d, s41" % (T + 4, T + 4, T + 5))
        e("v_mul_lo_u32 v%d, v%d, s42" % (T + 4, T + 4))
        e("v_add_u32 v%d, v%d, v%d" % (VX + i, T + 4, T + 3))
        if not is_h:
            e("s_lshl_b32 s41, s%d, 7" % S_EH)
            e("v_add_u32 v%d, s41, v%d" % (T + 4, T))
            e("v_mul_lo_u32 v%d, v%d, s42" % (T + 4, T + 4))
            e("v_add_u32 v%d, v%d, v%d" % (VW + i, T + 4, T + 3))
    if is_h:
        e("s_lshl_b32 s41, s%d, 3" % S_LW)
        e("v_add_u32 v%d, s41, v%d" % (T + 3, T + 2))
        e("s_movk_i32 s42, 3584")
        e("v_mul_lo_u32 v%d, v%d, s42" % (T + 3, T + 3))
        e("v_bfe_u32 v%d, v%d, 2, 2" % (T + 4, L))
        e("v_xor_b32 v%d, v%d, v%d" % (T + 4, T + 4, T + 2))
        e("v_lshlrev_b32 v%d, 6, v%d" % (T + 4, T + 4))
        e("v_and_b32 v%d, 3, v%d" % (T + 5, L))
        e("v_lshlrev_b32 v%d, 4, v%d" % (T + 5, T + 5))
        e("v_add3_u32 v%d, v%d, v%d, v%d" % (T + 3, T + 3, T + 4, T + 5))
        e("s_lshl_b32 s41, s%d, 8" % S_FB)
        e("v_add_u32 v%d, s41, v%d" % (VW, T + 3))
        e("v_add_u32 v%d, %d, v%d" % (VW + 1, 4 * 3584, VW))
        e("s_lshl_b32 s%d, s%d, 11" % (S_LDSW, S_LW))
    else:
        e("s_lshl_b32 s%d, s%d, 12" % (S_LDSW, S_LW))
    e("s_lshl_b32 s%d, s%d, 12" % (S_LDSX, S_LW))
    e("s_waitcnt lgkmcnt(0)")
    srd(e, S_X, 44, 1835008)
    if is_h:
        srd(e, S_WA, 52, 1605632); srd(e, S_WB, 54, 1605632)
    else:
        srd(e, S_WA, 48, 401408); srd(e, S_WB, 50, 401408)
    srd(e, S_WS, 74, WS_BYTES)
    srd(e, S_GW, 58, 896)
    srd(e, S_WD, 56, 1605632)
    stamp(e, cfg, 0)
    DROT = (not is_h) and ("nodrot" not in cfg.x)
    if DROT:
        e("s_mul_i32 s7, s%d, 3" % S_EH)
        e("s_mul_i32 s6, s%d, %d" % (S_QG, RMUL[0]))
        e("s_add_u32 s6, s6, s7")
        e("s_mul_i32 s7, s6, 37")
        e("s_lshr_b32 s7, s7, 8")
        e("s_mul_i32 s7, s7, 7")
        e("s_sub_u32 s6, s6, s7")
        e("s_mov_b32 s7, s6")
    def dx(c):
        if DROT:
            e("s_lshl_b32 s%d, s6, 7" % S_OFF)
            for i in range(4): dma(e, S_X, VX + i, (c % NX) * XSLOT + i * 1024, S_LDSX, None, ("x", c))
            rot_next(e, 6, 7)
        else:
            for i in range(4): dma(e, S_X, VX + i, (c % NX) * XSLOT + i * 1024, S_LDSX, c * 128, ("x", c))
    def dw(j):
        if is_h:
            for m in range(2):
                for i in range(2):
                    dma(e, S_WA if m == 0 else S_WB, VW + i, WBASE + (j % NW) * WSLOT + m * 8192 + i * 1024, S_LDSW, j * 32 * 3584, ("w", j))
        else:
            c = j
            if DROT: e("s_lshl_b32 s%d, s7, 7" % S_OFF)
            for m in range(2):
                for i in range(4):
                    dma(e, S_WA if m == 0 else S_WB, VW + i, WBASE + (c % 3) * 32768 + m * 16384 + i * 1024, S_LDSW, None if DROT else c * 128, ("w", c))
            if DROT: rot_next(e, 7, 7)
    q = []
    if is_h:
        for j in range(14):
            if j % 2 == 0:
                c = j // 2
                q.append(("x", c, -1 if c < NX else 2 * (c - NX + 1)))
            q.append(("w", j, -1 if j < NW else j - NW + 1))
    else:
        for c in range(7):
            q.append(("x", c, -1 if c < NX else 2 * (c - NX + 1)))
            q.append(("w", c, -1 if c < 3 else 2 * (c - 3 + 1)))
    def cost(it): return 4 if (it[0] == "x" or is_h) else 8
    def issue(it):
        (dx if it[0] == "x" else dw)(it[1])
    def need(j):
        t = []
        for jj in (j, j + 1):
            if jj <= 13:
                t.append(("x", jj >> 1)); t.append(("w", jj if is_h else jj >> 1))
        return t
    issued = set()
    def ensure(tags):
        while q and any(t not in issued for t in tags):
            it = q.pop(0); assert it[2] <= curbar[0], (it, curbar)
            issue(it); issued.add((it[0], it[1]))
    curbar = [-1]
    ensure(need(0))
    budget0 = cfg.pro_extra
    while q and budget0 > 0 and q[0][2] <= -1:
        it = q.pop(0); issue(it); issued.add((it[0], it[1])); budget0 -= cost(it)
    e.vm_wait(need(0))
    e("s_barrier")
    stamp(e, cfg, 1)
    if "nodma" in cfg.x: NODMA[0] = True
    for j in range(13):
        curbar[0] = j
        ensure(need(j + 1))
        budget = cfg.stage_budget
        while q and budget > 0 and q[0][2] <= j:
            it = q.pop(0); issue(it); issued.add((it[0], it[1])); budget -= cost(it)
        if j == cfg.pfWd_j and not is_h and "pf1" in cfg.x:
            e("s_lshl_b32 s41, s%d, 1" % S_QG)
            e("s_add_u32 s41, s41, s%d" % S_EH)
            e("s_lshl_b32 s41, s41, 2")
            e("s_add_u32 s41, s41, s%d" % S_LW)
            e("s_mul_i32 s41, s41, 98")
            e("v_add_u32 v100, s41, v%d" % V_LANE)
            e("v_lshlrev_b32 v100, 7, v100")
            e("buffer_load_dword v101, v100, s[%d:%d], 0 offen" % (S_WD, S_WD + 3)); e.vm_issue(("pf", 0))
            e("v_add_u32 v100, %d, v100" % (64 * 128))
            e("v_cmp_gt_u32 vcc, 34, v%d" % V_LANE)
            e("v_mov_b32 v102, 0x7fffffff")
            e("s_nop 0")
            e("v_cndmask_b32 v100, v102, v100, vcc")
            e("buffer_load_dword v103, v100, s[%d:%d], 0 offen" % (S_WD, S_WD + 3)); e.vm_issue(("pf", 1))
        if j == cfg.pfWd_j and not is_h and "pfWd" in cfg.x:
            e("s_lshr_b32 s41, s2, 3")
            e("s_sub_u32 s41, s41, 28")
            e("s_lshl_b32 s41, s41, 2")
            e("s_add_u32 s41, s41, s%d" % S_LW)
            e("s_mul_i32 s41, s41, 784")
            e("v_add_u32 v100, s41, v%d" % V_LANE)
            e("v_lshlrev_b32 v100, 7, v100")
            for t in range(13):
                e("s_mov_b32 s%d, %d" % (S_OFF, t * 8192))
                e("buffer_load_dword v%d, v100, s[%d:%d], s%d offen" % (101 + t, S_WD, S_WD + 3, S_OFF))
                e.vm_issue(("pf", t))
        if j == cfg.pfW_j and not is_h and "pfW" in cfg.x:
            e("s_lshr_b32 s41, s2, 3")
            e("s_sub_u32 s41, s41, 28")
            e("s_lshl_b32 s41, s41, 2")
            e("s_add_u32 s41, s41, s%d" % S_LW)
            e("s_mul_i32 s41, s41, 196")
            e("v_add_u32 v100, s41, v%d" % V_LANE)
            e("s_mov_b32 s42, 0x24924925")
            e("s_and_b32 s43, s2, 1")
            e("s_mul_i32 s43, s43, 896")
            e("s_add_u32 s43, s43, 1792")
            for t in range(4):
                e("v_add_u32 v101, %d, v100" % (64 * t))
                e("v_mul_hi_u32 v102, v101, s42")
                e("v_mul_u32_u24 v103, 7, v102")
                e("v_sub_u32 v103, v101, v103")
                e("v_mul_u32_u24 v102, 3584, v102")
                e("v_lshlrev_b32 v103, 7, v103")
                e("v_add3_u32 v%d, v102, v103, s43" % (104 + t))
            srd(e, S_GW, 52, 1605632)
            for t in range(4):
                e("buffer_load_dword v%d, v%d, s[%d:%d], 0 offen" % (110 + t, 104 + t, S_GW, S_GW + 3)); e.vm_issue(("pf", t))
            srd(e, S_GW, 54, 1605632)
            e("s_nop 0")
            for t in range(4):
                e("buffer_load_dword v%d, v%d, s[%d:%d], 0 offen" % (114 + t, 104 + t, S_GW, S_GW + 3)); e.vm_issue(("pf", t))
        if j == 9 and not is_h: dft_consts(e, cfg)
        if j == 7 and is_h:
            gate_issue(e, cfg, True)
            lab = e.newlabel("GX")
            e("s_cmp_ge_u32 s%d, 2" % S_FB)
            e("s_cbranch_scc1 %s" % lab)
            sv = list(e.vm)
            gate_issue(e, cfg, True, True)
            e.vm = sv
            e.label(lab)
        if j == 10 and is_h:
            e("s_waitcnt vmcnt(0)"); e.vm = []
            gate_finish(e, cfg)
            lab = e.newlabel("GY")
            e("s_cmp_ge_u32 s%d, 2" % S_FB)
            e("s_cbranch_scc1 %s" % lab)
            gate_finish(e, cfg, True)
            e.label(lab)
        if j == 11 and cfg.fused:
            e("s_waitcnt vmcnt(0)"); e.vm = []
        e.vm_wait(need(j + 1))
        e("s_barrier")
    assert not q
    NODMA[0] = False
    stamp(e, cfg, 2)
    if not is_h:
        e("v_lshlrev_b32 v2, 4, v%d" % L)
        e("s_mul_i32 s41, s%d, 6144" % S_LW)
        e("v_add_u32 v2, s41, v2")
        for k in range(6):
            e("ds_write_b128 v2, %s offset:%d" % (vr(64 + 4 * k, 4), CONST_LDS + k * 1024))
        e("s_waitcnt lgkmcnt(0)")
        e("s_barrier")

def gate_issue(e, cfg, is_h, extra=False):
    B = 40 if extra else 48
    e("s_lshl_b32 s41, s%d, 3" % S_FB)
    if extra: e("s_add_u32 s41, s41, 112")
    e("s_lshl_b32 s42, s%d, 1" % S_LW)
    e("s_add_u32 s41, s41, s42")
    e("s_lshl_b32 s78, s%d, 7" % S_R)
    e("s_add_u32 s%d, s78, s41" % (63 if extra else 62))
    e("v_lshlrev_b32 v38, 4, v%d" % V_LANE)
    e("v_cmp_gt_u32 vcc, 56, v%d" % V_LANE)
    e("v_mov_b32 v37, 0x7fffffff")
    for u in range(2):
        e("s_add_u32 s78, s41, %d" % u)
        e("s_lshr_b32 s43, s78, 6")
        e("s_lshl_b32 s79, s%d, 1" % S_R)
        e("s_add_u32 s43, s43, s79")
        e("s_and_b32 s78, s78, 63")
        e("s_lshl_b32 s78, s78, 5")
        e("s_add_u32 s43, s43, s78")
        e("s_mul_i32 s43, s43, 896")
        if extra:
            e("s_cmp_ge_u32 s%d, 2" % S_FB)
            e("s_cselect_b32 s43, 0x40000000, s43")
        e("v_add_u32 v39, s43, v38")
        e("v_cndmask_b32 v39, v37, v39, vcc")
        e("buffer_load_dwordx4 %s, v39, s[%d:%d], 0 offen" % (vr(B + 4 * u, 4), S_X, S_X + 3))
        e.vm_issue("gate")
    if not extra:
        e("buffer_load_dwordx4 v[56:59], v38, s[%d:%d], 0 offen" % (S_GW, S_GW + 3))
        e.vm_issue("gate")

def gate_finish(e, cfg, extra=False):
    B = 40 if extra else 48
    e.vm_wait(["gate"])
    for u in range(2):
        e("v_mov_b32 v%d, 0" % (60 + u))
    for i in range(4):
        for u in range(2):
            e("v_dot2_f32_bf16 v%d, v%d, v%d, v%d" % (60 + u, B + 4 * u + i, 56 + i, 60 + u))
    e("s_nop 2")
    for sh in ("row_shr:1", "row_shr:2", "row_shr:4", "row_shr:8"):
        for u in range(2):
            e("v_add_f32_dpp v%d, v%d, v%d %s row_mask:0xf bank_mask:0xf bound_ctrl:0" % (60 + u, 60 + u, 60 + u, sh))
        e("s_nop 0")
    for u in range(2):
        e("v_add_f32_dpp v%d, v%d, v%d row_bcast:15 row_mask:0xa bank_mask:0xf" % (60 + u, 60 + u, 60 + u))
    e("s_nop 0")
    for u in range(2):
        e("v_add_f32_dpp v%d, v%d, v%d row_bcast:31 row_mask:0xc bank_mask:0xf" % (60 + u, 60 + u, 60 + u))
    e("s_nop 0")
    e("v_readlane_b32 s41, v60, 63")
    e("v_readlane_b32 s42, v61, 63")
    e("s_nop 1")
    e("v_mov_b32 v60, s41")
    e("v_mov_b32 v61, s42")
    e("v_cmp_eq_u32 vcc, 1, v%d" % V_LANE)
    e("s_nop 1")
    e("v_cndmask_b32 v60, v60, v61, vcc")
    e("v_mul_f32 v60, 0x%08x, v60" % f2u(-LOG2E))
    e("v_exp_f32 v60, v60")
    e("s_nop 0")
    e("v_add_f32 v60, 1.0, v60")
    e("v_rcp_f32 v60, v60")
    e("s_lshl_b32 s5, s%d, 2" % (63 if extra else 62))
    e("s_add_u32 s5, s5, 0x%x" % GBUF)
    if extra:
        e("s_cmp_ge_u32 s%d, 2" % S_FB)
        e("s_cselect_b32 s5, 0x40000000, s5")
    e("v_lshlrev_b32 v62, 2, v%d" % V_LANE)
    e("v_add_u32 v62, s5, v62")
    e("v_cmp_gt_u32 vcc, 2, v%d" % V_LANE)
    e("v_mov_b32 v37, 0x7fffffff")
    e("s_nop 0")
    e("v_cndmask_b32 v62, v37, v62, vcc")
    e("buffer_store_dword v60, v62, s[%d:%d], 0 offen%s" % (S_WS, S_WS + 3, " sc1" if cfg.fused else ""))
    e.vm_issue("gst")

def dft_consts(e, cfg):
    L = V_LANE
    e("v_and_b32 v26, 31, v%d" % L)
    e("v_lshrrev_b32 v27, 5, v%d" % L)
    e("v_lshlrev_b32 v27, 8, v27")
    e("s_lshl_b32 s41, s%d, 2" % S_QG)
    e("s_add_u32 s41, s41, s%d" % S_LW)
    e("v_add_u32 v27, s41, v27")
    e("s_mov_b32 s42, 0x%08x" % f2u(1.0 / 2048))
    for hf in range(2):
        for pr in range(4):
            for u in range(2):
                idx = 2 * pr + u
                s1c = 16 * hf + 8 * (idx >> 2) + (idx & 3)
                e("v_add_u32 v28, %d, v27" % (64 * s1c))
                e("v_mul_u32_u24 v28, v28, v26")
                e("v_and_b32 v28, 0x7ff, v28")
                e("v_cvt_f32_u32 v28, v28")
                e("v_mul_f32 v28, s42, v28")
                e("v_cos_f32 v%d, v28" % (30 + u))
                e("v_sin_f32 v%d, v28" % (32 + u))
            e("s_nop 0")
            e("v_cvt_pk_bf16_f32 v%d, v30, v31" % (64 + 4 * hf + pr))
            e("v_cvt_pk_bf16_f32 v%d, v32, v33" % (72 + 4 * hf + pr))
            e("v_xor_b32 v%d, 0x80008000, v%d" % (80 + 4 * hf + pr, 72 + 4 * hf + pr))

def entry_common(e):
    e("v_and_b32 v%d, 63, v0" % V_LANE)
    e("v_lshrrev_b32 v2, 6, v0")
    e("s_nop 0")
    e("v_readfirstlane_b32 s%d, v2" % S_WAVE)
    e("s_nop 3")

def phase1(e, cfg, after_h_consumer, after_h_loader, after_d):
    e("s_and_b32 s%d, s%d, 3" % (S_WF, S_WAVE))
    e("s_and_b32 s%d, s%d, 3" % (S_LW, S_WAVE))
    e("s_and_b32 s41, s2, 7")
    e("s_lshr_b32 s42, s2, 3")
    e("s_cmp_ge_u32 s42, 28")
    e("s_cbranch_scc1 P1_DFT")
    e("s_mul_i32 s43, s42, 37")
    e("s_lshr_b32 s43, s43, 8")
    e("s_mul_i32 s76, s43, 7")
    e("s_sub_u32 s76, s42, s76")
    e("s_lshr_b32 s77, s41, 1")
    e("s_lshl_b32 s77, s77, 2")
    e("s_add_u32 s%d, s77, s43" % S_R)
    e("s_and_b32 s77, s41, 1")
    e("s_mul_i32 s77, s77, 7")
    e("s_add_u32 s%d, s77, s76" % S_FB)
    e("s_cmp_lt_u32 s%d, 4" % S_WAVE)
    e("s_cbranch_scc1 P1_H_CONSUMER")
    e.vm = []; e.lg = []
    STG[0] = True
    h2_loader(e, cfg)
    q_loader_A(e, cfg)
    STG[0] = False
    stamp_store(e, cfg, 0)
    e("s_endpgm")
    e.label("P1_H_CONSUMER")
    e.vm = []; e.lg = []
    h2_consumer(e, cfg)
    q_consumer_B(e, cfg)
    stamp_store(e, cfg, 0)
    e("s_endpgm")
    e.label("P1_DFT")
    e("s_sub_u32 s42, s42, 28")
    e("s_and_b32 s%d, s41, 1" % S_EH)
    e("s_lshr_b32 s77, s41, 1")
    e("s_lshl_b32 s77, s77, 2")
    e("s_add_u32 s%d, s77, s42" % S_QG)
    e("s_cmp_ge_u32 s%d, 4" % S_WAVE)
    e("s_cbranch_scc1 P1_D_LOADER")
    e.vm = []; e.lg = []
    p1_consumer(e, cfg, False)
    d_epilogue(e, cfg)
    stamp(e, cfg, 3)
    after_d(True)
    e.label("P1_D_LOADER")
    e.vm = []; e.lg = []
    p1_loader(e, cfg, False)
    stamp(e, cfg, 3)
    after_d(False)

P2_ACC = 64
P2_H = 96
P2_A = 208
P2_U = 224
P2_T = 240
SLICE = 40960
KSL, NB = 60, 61

def p2_setup(e, cfg):
    L = V_LANE
    e("s_and_b32 s%d, s%d, 3" % (KSL, S_WAVE))
    e("s_lshr_b32 s%d, s%d, 2" % (NB, S_WAVE))
    e("v_lshrrev_b32 v2, 3, v%d" % L)
    e("v_bfe_u32 v3, v%d, 4, 1" % L)
    e("v_lshlrev_b32 v3, 2, v3")
    e("v_and_b32 v4, 7, v%d" % L)
    e("v_xor_b32 v3, v3, v4")
    e("v_lshlrev_b32 v3, 4, v3")
    e("s_mul_i32 s41, s%d, 448" % KSL)
    e("s_lshl_b32 s42, s%d, 3" % NB)
    e("s_add_u32 s41, s41, s42")
    e("v_add_u32 v2, s41, v2")
    e("s_movk_i32 s42, 896")
    e("v_mul_lo_u32 v2, v2, s42")
    e("s_lshl_b32 s41, s%d, 7" % S_C)
    e("v_add3_u32 v10, v2, v3, s41")
    e("s_mul_i32 s62, s%d, %d" % (KSL, SLICE))
    e("s_lshl_b32 s41, s%d, 10" % NB)
    e("s_add_u32 s62, s62, s41")
    e("v_and_b32 v2, 15, v%d" % L)
    e("v_lshrrev_b32 v3, 2, v2")
    e("v_lshrrev_b32 v4, 5, v%d" % L)
    e("v_lshlrev_b32 v5, 2, v4")
    e("v_add_u32 v5, v5, v3")
    e("v_lshlrev_b32 v5, 7, v5")
    e("v_bfe_u32 v6, v2, 3, 1")
    e("v_lshlrev_b32 v6, 6, v6")
    e("v_bfe_u32 v7, v%d, 4, 1" % L)
    e("v_lshlrev_b32 v7, 5, v7")
    e("v_and_b32 v8, 3, v2")
    e("v_lshlrev_b32 v8, 3, v8")
    e("v_add3_u32 v5, v5, v6, v7")
    e("v_add_u32 v5, v5, v8")
    e("s_mul_i32 s41, s%d, %d" % (KSL, SLICE))
    e("v_add_u32 v11, s41, v5")
    e("v_xor_b32 v12, 64, v11")
    e("s_mul_i32 s41, s%d, 112" % S_T1)
    e("s_mul_i32 s42, s%d, 28" % KSL)
    e("s_add_u32 s41, s41, s42")
    e("s_lshl_b32 s41, s41, 1")
    e("s_add_u32 s41, s41, s%d" % NB)
    e("s_lshl_b32 s41, s41, 10")
    e("v_lshlrev_b32 v13, 4, v%d" % L)
    e("v_add_u32 v13, s41, v13")
    e("v_and_b32 v14, 31, v%d" % L)
    e("s_cmp_ge_u32 s%d, 4" % S_C)
    e("s_cselect_b32 s63, 1, 0")
    e("s_sub_u32 s64, 32, s%d" % S_T1)
    e("s_and_b32 s64, s64, 31")
    e("s_cmp_eq_u32 s63, 1")
    e("s_cselect_b32 s64, s64, s%d" % S_T1)
    e("v_lshrrev_b32 v4, 5, v%d" % L)
    e("s_lshl_b32 s41, s%d, 6" % S_C)
    e("s_cmp_eq_u32 s63, 1")
    e("s_cselect_b64 vcc, -1, 0")
    for mb in range(2):
        e("v_add_u32 v2, s41, v14")
        if mb: e("v_add_u32 v2, 32, v2")
        e("v_sub_u32 v3, 448, v2")
        e("v_cndmask_b32 v2, v2, v3, vcc")
        e("v_lshlrev_b32 v2, 4, v2")
        e("v_lshlrev_b32 v3, 12, v4")
        e("v_add_u32 v%d, v2, v3" % (16 + mb))
    e("s_lshl_b32 s41, s64, 4")
    e("s_lshl_b32 s42, s%d, 2" % KSL)
    e("s_add_u32 s41, s41, s42")
    e("s_lshl_b32 s41, s41, 12")
    e("s_add_u32 s65, s41, 0x%x" % UBUF)
    e("s_lshl_b32 s41, s%d, 6" % S_T1)
    e("s_lshl_b32 s42, s%d, 5" % NB)
    e("s_add_u32 s41, s41, s42")
    e("v_add_u32 v2, s41, v14")
    e("v_lshlrev_b32 v2, 2, v2")
    e("v_add_u32 v20, 0x%x, v2" % GBUF)

def p2_dma_wd(e, kk):
    st = kk >> 2
    pos = (st % 5) * 4 + (kk & 3)
    dma(e, S_WD, 10, pos * 2048, 62, kk * 16 * 896, ("wd", st))
def p2_load_h(e, cfg, kk):
    sc = " sc1" if cfg.fused else ""
    e("s_mov_b32 s%d, 0x%x" % (S_OFF, kk * 2048))
    e("buffer_load_dwordx4 %s, v13, s[%d:%d], s%d offen%s" % (vr(P2_H + 4 * kk, 4), S_WS, S_WS + 3, S_OFF, sc))
    e.vm_issue(("h", kk))
def p2_load_g(e, cfg):
    sc = " sc1" if cfg.fused else ""
    e("buffer_load_dword v15, v20, s[%d:%d], 0 offen%s" % (S_WS, S_WS + 3, sc))
    e.vm_issue("g")
def p2_load_u(e, cfg):
    sc = " sc1" if cfg.fused else ""
    for u in range(2):
        for mb in range(2):
            e("s_add_u32 s%d, s65, %d" % (S_OFF, u * 2 * 4096))
            e("buffer_load_dwordx4 %s, v%d, s[%d:%d], s%d offen%s" % (vr(P2_U + 8 * u + 4 * mb, 4), 16 + mb, S_WS, S_WS + 3, S_OFF, sc))
            e.vm_issue("u")
def p2_tfrags(e, cfg):
    L = V_LANE
    e.vm_wait(["g"])
    e("s_cmp_lg_u32 s%d, 0" % S_T1)
    e("s_cselect_b32 s41, s63, 0")
    e("s_lshl_b32 s42, s%d, 5" % NB)
    e("s_add_u32 s41, s41, s42")
    e("v_add_u32 v2, s41, v14")
    e("v_lshrrev_b32 v4, 5, v%d" % L)
    e("v_lshlrev_b32 v4, 2, v4")
    e("s_lshl_b32 s41, s63, 31")
    e("v_xor_b32 v21, s41, v15")
    e("s_mov_b32 s42, 0x%08x" % f2u(1.0 / 64))
    e("s_lshl_b32 s43, s%d, 4" % KSL)
    e("v_add_u32 v4, s43, v4")
    for u in range(2):
        for q in range(4):
            e("v_add_u32 v3, %d, v4" % (8 * u + q))
            e("v_mul_u32_u24 v3, v3, v2")
            e("v_and_b32 v3, 63, v3")
            e("v_cvt_f32_u32 v3, v3")
            e("v_mul_f32 v3, s42, v3")
            e("v_cos_f32 v5, v3")
            e("v_sin_f32 v6, v3")
            e("s_nop 0")
            e("v_mul_f32 v5, v5, v15")
            e("v_mul_f32 v6, v6, v21")
            e("v_cvt_pk_bf16_f32 v%d, v5, v6" % (P2_T + 4 * u + q))
    e("v_sub_f32 v18, 1.0, v15")
    e("v_mov_b32 v19, v18")

def p2_main(e, cfg, wd_pre=0):
    L = V_LANE
    def reads(kk):
        b = P2_A + 8 * (kk & 1)
        st = kk >> 2
        pos = (st % 5) * 4 + (kk & 3)
        for mb in range(2):
            for ip in range(2):
                e("ds_read_b64_tr_b16 %s, v%d offset:%d" % (vr(b + 4 * mb + 2 * ip, 2), 11 + mb, pos * 2048 + ip * 1024))
                e.lg_issue(("A", kk, mb))
    def issue_h(st):
        if st > 6: return
        for kk in range(4 * st, 4 * st + 4): p2_load_h(e, cfg, kk)
    def issue_w(st):
        if st > 6 or st < wd_pre: return
        for kk in range(4 * st, 4 * st + 4): p2_dma_wd(e, kk)
    def issue_both(st):
        if st > 6: return
        for kk in range(4 * st, 4 * st + 4):
            if st >= wd_pre: p2_dma_wd(e, kk)
            p2_load_h(e, cfg, kk)
    LA = cfg.p2_la
    p2_load_g(e, cfg)
    if cfg.fused:
        for st in range(LA): issue_h(st)
        p2_tfrags(e, cfg)
    else:
        for st in range(LA): issue_both(st)
        p2_tfrags(e, cfg)
        e.vm_wait([("wd", 0), ("wd", 1)])
        e("s_barrier")
    stamp(e, cfg, 1 if not cfg.fused else 6)
    reads(0)
    for kk in range(28):
        st = kk >> 2
        if (kk & 3) == 0:
            if cfg.fused:
                if st >= 1: issue_w(st + 4)
                issue_h(st + LA)
            else:
                issue_both(st + LA)
                if st + LA == 7:
                    p2_load_u(e, cfg)
        if kk + 1 < 28: reads(kk + 1)
        e.vm_wait([("h", kk)])
        b = P2_A + 8 * (kk & 1)
        for mb in range(2):
            e.lg_wait([("A", kk, mb)])
            mfma(e, P2_ACC + 16 * mb, b + 4 * mb, P2_H + 4 * kk, "0" if kk == 0 else None)
        if (kk & 3) == 3 and st < 6:
            e.vm_wait([("wd", st + 2)])
            if cfg.fused and st == cfg.p2_dpoll:
                lab = e.newlabel("DP")
                e("s_cmp_lg_u32 s%d, 0" % S_WAVE)
                e("s_cbranch_scc1 %s" % lab)
                e("s_mov_b32 s%d, 0x%x" % (S_PF, FLAGS + 16 * 128))
                poll(e, S_PF, 32)
                e.label(lab)
            e("s_barrier")
            if cfg.fused and st == cfg.p2_dpoll:
                p2_load_u(e, cfg)
    assert not e.lg
    stamp(e, cfg, 2 if not cfg.fused else 7)
    e.vm_wait(["u"])
    e("s_nop 7"); e("s_nop 3")
    for i in range(0, 32, 2):
        e("v_pk_mul_f32 %s, %s, v[18:19]" % (vr(P2_ACC + i, 2), vr(P2_ACC + i, 2)))
    e("s_nop 1")
    for u in range(2):
        for mb in range(2):
            mfma(e, P2_ACC + 16 * mb, P2_U + 8 * u + 4 * mb, P2_T + 4 * u)
    e("s_barrier")
    e("v_lshlrev_b32 v2, 4, v%d" % L)
    e("s_lshl_b32 s41, s%d, 13" % S_WAVE)
    e("v_add_u32 v3, s41, v2")
    e("s_nop 7"); e("s_nop 1")
    for qd in range(4):
        for hf in range(2):
            e("ds_write_b128 v3, %s offset:%d" % (vr(P2_ACC + 8 * qd + 4 * hf, 4), qd * 2048 + hf * 1024))
    e("s_waitcnt lgkmcnt(0)")
    e("s_barrier")
    e("s_lshl_b32 s41, s%d, 15" % NB)
    e("s_lshl_b32 s42, s%d, 11" % KSL)
    e("s_add_u32 s41, s41, s42")
    e("v_add_u32 v3, s41, v2")
    for k in range(4):
        for hf in range(2):
            e("ds_read_b128 %s, v3 offset:%d" % (vr(96 + 8 * k + 4 * hf, 4), k * 8192 + hf * 1024))
    e("s_lshl_b32 s41, s%d, 5" % NB)
    e("v_add_u32 v2, s41, v14")
    e("v_lshlrev_b32 v2, 5, v2")
    e("v_add_u32 v2, s%d, v2" % S_T1)
    e("s_movk_i32 s42, 896")
    e("v_mul_lo_u32 v2, v2, s42")
    e("s_lshl_b32 s41, s%d, 7" % S_C)
    e("s_lshl_b32 s42, s%d, 5" % KSL)
    e("s_add_u32 s41, s41, s42")
    e("v_lshrrev_b32 v4, 5, v%d" % L)
    e("v_lshlrev_b32 v4, 4, v4")
    e("v_add3_u32 v2, v2, v4, s41")
    e("s_waitcnt lgkmcnt(0)")
    for q in range(0, 8, 2):
        e("v_pk_add_f32 %s, %s, %s" % (vr(96 + q, 2), vr(96 + q, 2), vr(104 + q, 2)))
        e("v_pk_add_f32 %s, %s, %s" % (vr(112 + q, 2), vr(112 + q, 2), vr(120 + q, 2)))
    for q in range(0, 8, 2):
        e("v_pk_add_f32 %s, %s, %s" % (vr(96 + q, 2), vr(96 + q, 2), vr(112 + q, 2)))
    for q in range(4):
        e("v_cvt_pk_bf16_f32 v%d, v%d, v%d" % (128 + q, 96 + 2 * q, 96 + 2 * q + 1))
    e("s_nop 1")
    e("v_permlane32_swap_b32 v128, v130")
    e("v_permlane32_swap_b32 v129, v131")
    e("buffer_store_dwordx4 v[128:131], v2, s[%d:%d], 0 offen" % (S_OUT, S_OUT + 3))
    stamp(e, cfg, 3 if not cfg.fused else 8)

def p2_role(e):
    e("s_and_b32 s41, s2, 7")
    e("s_lshr_b32 s42, s2, 3")
    e("s_mul_i32 s43, s42, 37")
    e("s_lshr_b32 s43, s43, 8")
    e("s_mul_i32 s76, s43, 7")
    e("s_sub_u32 s%d, s42, s76" % S_C)
    e("s_lshl_b32 s41, s41, 2")
    e("s_add_u32 s%d, s41, s43" % S_T1)

def header(e, name):
    e.raw(".text"); e.raw(".globl %s" % name); e.raw(".p2align 8"); e.raw(".type %s,@function" % name); e.label(name)

def kernel1(e, cfg):
    header(e, "k1_kernel")
    e("s_cmp_ge_u32 s2, 256")
    e("s_cbranch_scc1 K1_END")
    kernarg_loads(e)
    entry_common(e)
    def fin():
        stamp_store(e, cfg, 0)
        e("s_endpgm")
    phase1(e, cfg, fin, fin, lambda c: fin())
    e.label("K1_END")
    e("s_endpgm")

def kernel2(e, cfg):
    header(e, "k2_kernel")
    e.vm = []; e.lg = []
    e("s_cmp_ge_u32 s2, 256")
    e("s_cbranch_scc1 K2_END")
    e("s_lshr_b32 s42, s2, 3")
    e("s_cmp_ge_u32 s42, 28")
    e("s_cbranch_scc1 K2_END")
    kernarg_loads(e)
    entry_common(e)
    p2_role(e)
    p2_setup(e, cfg)
    e("s_waitcnt lgkmcnt(0)")
    srd(e, S_WS, 74, WS_BYTES)
    srd(e, S_OUT, 46, 1835008)
    srd(e, S_WD, 56, 1605632)
    stamp(e, cfg, 0)
    p2_main(e, cfg, 0)
    stamp_store(e, cfg, 0x40000)
    e.label("K2_END")
    e("s_endpgm")


def nonce_issue(e):
    lab = e.newlabel("NONCE")
    srd(e, S_DBG, 72, 256)
    e("s_or_b32 s41, s2, s%d" % S_WAVE)
    e("s_cmp_lg_u32 s41, 0")
    e("s_cbranch_scc1 %s" % lab)
    e("s_memrealtime s[42:43]")
    e("s_waitcnt lgkmcnt(0)")
    e("s_or_b32 s42, s42, 1")
    e("v_mov_b32 v4, s42")
    e("v_lshlrev_b32 v5, 20, v%d" % V_LANE)
    e("buffer_store_dword v4, v5, s[%d:%d], 0 offen sc1" % (S_DBG, S_DBG + 3))
    e.label(lab)
    e("v_mov_b32 v7, 0")

def nonce_publish(e):
    lab = e.newlabel("NONCE")
    e("s_or_b32 s41, s2, s%d" % S_WAVE)
    e("s_cmp_lg_u32 s41, 0")
    e("s_cbranch_scc1 %s" % lab)
    srd(e, S_DBG, 72, 256)
    e("s_memrealtime s[42:43]")
    e("s_waitcnt lgkmcnt(0)")
    e("s_or_b32 s42, s42, 1")
    e("v_mov_b32 v4, s42")
    e("v_lshlrev_b32 v5, 20, v%d" % V_LANE)
    e("buffer_store_dword v4, v5, s[%d:%d], 0 offen sc1" % (S_DBG, S_DBG + 3))
    e.label(lab)

def nonce_load(e):
    e("buffer_load_dword v4, v7, s[%d:%d], 0 offen sc1" % (S_DBG, S_DBG + 3))

def nonce_finish(e):
    nonce_finish_any(e)

def flag_addr(e, is_h):
    if is_h:
        e("s_lshl_b32 s41, s%d, 9" % S_R)
        e("s_lshl_b32 s42, s%d, 2" % S_FB)
    else:
        e("s_lshl_b32 s41, s%d, 1" % S_QG)
        e("s_add_u32 s41, s41, s%d" % S_EH)
        e("s_lshl_b32 s42, s41, 2")
        e("s_movk_i32 s41, %d" % (16 * 512))
    e("s_add_u32 s41, s41, s42")
    e("s_add_u32 s%d, s41, 0x%x" % (S_FLAG, FLAGS))

def flag_store(e):
    e("v_mov_b32 v60, s%d" % S_NONCE)
    e("v_lshlrev_b32 v61, 24, v%d" % V_LANE)
    e("v_add_u32 v61, s%d, v61" % S_FLAG)
    e("buffer_store_dword v60, v61, s[%d:%d], 0 offen sc1" % (S_WS, S_WS + 3))

def poll_prep(e, sbase, nflags):
    e("v_lshlrev_b32 v61, 2, v%d" % V_LANE)
    e("v_add_u32 v61, s%d, v61" % sbase)
    e("v_cmp_gt_u32 vcc, %d, v%d" % (nflags, V_LANE))
    e("v_mov_b32 v60, 0x7fffffff")
    e("s_nop 0")
    e("v_cndmask_b32 v61, v60, v61, vcc")
def poll_issue(e):
    e("buffer_load_dword v60, v61, s[%d:%d], 0 offen sc1" % (S_WS, S_WS + 3))
def poll_loop(e, nflags, first_issued):
    top = e.newlabel("POLL"); done = e.newlabel("POLLD"); chk = e.newlabel("POLLC")
    e("s_mov_b32 s41, 0")
    if first_issued: e("s_branch %s" % chk)
    e.label(top)
    poll_issue(e)
    e.label(chk)
    e("s_waitcnt vmcnt(0)")
    e("v_cmp_eq_u32 vcc, s%d, v60" % S_NONCE)
    e("s_nop 1")
    mask = (1 << nflags) - 1
    e("s_and_b32 s42, vcc_lo, 0x%x" % (mask & 0xffffffff))
    e("s_cmp_eq_u32 s42, 0x%x" % (mask & 0xffffffff))
    e("s_cbranch_scc1 %s" % done)
    e("s_add_u32 s41, s41, 1")
    e("s_cmp_ge_u32 s41, 0x40000")
    e("s_cbranch_scc1 %s" % done)
    e("s_branch %s" % top)
    e.label(done)
def poll(e, sbase, nflags, drain=True):
    poll_prep(e, sbase, nflags)
    poll_loop(e, nflags, False)

def poll_loop56(e):
    top = e.newlabel("POLL"); done = e.newlabel("POLLD")
    e("s_mov_b32 s41, 0")
    e.label(top)
    poll_issue(e)
    e("s_waitcnt vmcnt(0)")
    e("v_cmp_eq_u32 vcc, s%d, v60" % S_NONCE)
    e("s_nop 1")
    e("s_and_b32 s43, vcc_hi, 0xffffff")
    e("s_cmp_eq_u32 s43, 0xffffff")
    e("s_cselect_b32 s42, vcc_lo, 0")
    e("s_cmp_eq_u32 s42, -1")
    e("s_cbranch_scc1 %s" % done)
    e("s_add_u32 s41, s41, 1")
    e("s_cmp_ge_u32 s41, 0x40000")
    e("s_cbranch_scc1 %s" % done)
    e("s_branch %s" % top)
    e.label(done)

def poll2(e, sline1, line2):
    top = e.newlabel("POLL"); done = e.newlabel("POLLD")
    e("v_lshlrev_b32 v61, 2, v%d" % V_LANE)
    e("v_add_u32 v62, 0x%x, v61" % line2)
    e("v_add_u32 v61, s%d, v61" % sline1)
    e("v_mov_b32 v60, 0x7fffffff")
    e("v_cmp_gt_u32 vcc, 56, v%d" % V_LANE)
    e("s_nop 1")
    e("v_cndmask_b32 v61, v60, v61, vcc")
    e("v_cmp_gt_u32 vcc, 32, v%d" % V_LANE)
    e("s_nop 1")
    e("v_cndmask_b32 v62, v60, v62, vcc")
    e("s_mov_b32 s41, 0")
    e.label(top)
    e("buffer_load_dword v60, v61, s[%d:%d], 0 offen sc1" % (S_WS, S_WS + 3))
    e("buffer_load_dword v58, v62, s[%d:%d], 0 offen sc1" % (S_WS, S_WS + 3))
    e("s_waitcnt vmcnt(0)")
    e("v_cmp_eq_u32 vcc, s%d, v60" % S_NONCE)
    e("v_cmp_eq_u32 s[42:43], s%d, v58" % S_NONCE)
    e("s_nop 1")
    e("s_and_b32 s43, vcc_hi, 0xffffff")
    e("s_and_b32 s42, s42, vcc_lo")
    e("s_cmp_eq_u32 s43, 0xffffff")
    e("s_cselect_b32 s42, s42, 0")
    e("s_cmp_eq_u32 s42, -1")
    e("s_cbranch_scc1 %s" % done)
    e("s_add_u32 s41, s41, 1")
    e("s_cmp_ge_u32 s41, 0x40000")
    e("s_cbranch_scc1 %s" % done)
    e("s_branch %s" % top)
    e.label(done)

def kernel_fused(e, cfg):
    name = "gated_mix__spectral_fnet__glu_gated_glu__prompt_kernel"
    header(e, name)
    e("s_cmp_ge_u32 s2, 256")
    e("s_cbranch_scc1 KF_END")
    kernarg_loads(e)
    entry_common(e)
    def after_h_consumer():
        e.vm_wait_all()
        e("s_barrier")
        lab = e.newlabel("NOTW0")
        e("s_cmp_lg_u32 s%d, 0" % S_WAVE)
        e("s_cbranch_scc1 %s" % lab)
        flag_store(e)
        e.label(lab)
        stamp(e, cfg, 4)
        p2_role(e)
        p2_setup(e, cfg)
        srd(e, S_OUT, 46, 1835008)
        srd(e, S_WD, 56, 1605632)
        e("s_cmp_lg_u32 s%d, 0" % S_WAVE)
        e("s_cbranch_scc1 P2_START")
        e("s_lshr_b32 s43, s%d, 1" % S_T1)
        e("s_lshl_b32 s43, s43, 7")
        e("s_add_u32 s%d, s43, 0x%x" % (S_PF, FLAGS))
        poll(e, S_PF, 14)
        e("s_branch P2_START")
    def after_h_loader():
        e("s_barrier")
        p2_role(e)
        p2_setup(e, cfg)
        srd(e, S_OUT, 46, 1835008)
        e("v_subrev_u32 v9, %d, v10" % (8 * 896))
        e("s_sub_u32 s69, s62, 1024")
        for kk in range(20):
            pos = kk
            dma(e, S_WD, 9, pos * 2048, 69, kk * 16 * 896, ("wdp", kk))
            dma(e, S_WD, 10, pos * 2048, 62, kk * 16 * 896, ("wdp", kk))
        e("s_barrier")
        stamp(e, cfg, 4)
        e.vm = []
        e.label("P2_START")
        e("s_waitcnt vmcnt(0)")
        e("s_barrier")
        stamp(e, cfg, 5)
        e.vm = []; e.lg = []
        p2_main(e, cfg, 5)
        stamp_store(e, cfg, 0)
        e("s_endpgm")
    def after_d(is_cons):
        if is_cons:
            e.vm_wait_all()
            e("s_barrier")
            lab = e.newlabel("DNOTW0")
            e("s_cmp_lg_u32 s%d, 0" % S_WAVE)
            e("s_cbranch_scc1 %s" % lab)
            flag_store(e)
            e("s_waitcnt vmcnt(0)")
            e.label(lab)
            stamp_store(e, cfg, 0)
            e("s_endpgm")
        else:
            e("s_waitcnt vmcnt(0)")
            e("s_barrier")
            stamp_store(e, cfg, 0)
            e("s_endpgm")
    phase1(e, cfg, after_h_consumer, after_h_loader, after_d)
    e.label("KF_END")
    e("s_endpgm")


WB2 = 114688; NW2 = 6; WS2 = 8192
H_ACC = 64
H_FR = 192
V_XA2 = 10
V_WA2 = 18
S_WT = 69

def h2_consumer(e, cfg):
    L = V_LANE; T = 26
    e("s_lshr_b32 s%d, s%d, 1" % (S_WT, S_WAVE))
    e("s_and_b32 s%d, s%d, 1" % (S_WF, S_WAVE))
    e("v_and_b32 v%d, 31, v%d" % (T, L))
    e("v_lshrrev_b32 v%d, 5, v%d" % (T + 1, L))
    e("v_lshrrev_b32 v%d, 1, v%d" % (T + 2, T))
    e("v_and_b32 v%d, 7, v%d" % (T + 2, T + 2))
    e("s_lshl_b32 s41, s%d, 6" % S_WT)
    e("v_add_u32 v%d, s41, v%d" % (T + 3, T))
    e("v_lshlrev_b32 v%d, 7, v%d" % (T + 3, T + 3))
    for k in range(4):
        e("v_add_u32 v%d, %d, v%d" % (T + 4, 2 * k, T + 1))
        e("v_xor_b32 v%d, v%d, v%d" % (T + 4, T + 4, T + 2))
        e("v_lshlrev_b32 v%d, 4, v%d" % (T + 4, T + 4))
        e("v_add_u32 v%d, v%d, v%d" % (V_XA2 + k, T + 3, T + 4))
        e("v_add_u32 v%d, 0x10000, v%d" % (V_XA2 + 4 + k, V_XA2 + k))
    e("v_and_b32 v%d, 15, v%d" % (T + 4, L))
    e("v_lshrrev_b32 v%d, 2, v%d" % (T + 5, T + 4))
    e("v_lshlrev_b32 v%d, 7, v%d" % (T + 5, T + 5))
    e("v_lshlrev_b32 v%d, 11, v%d" % (T + 6, T + 1))
    e("v_add_u32 v%d, v%d, v%d" % (T + 6, T + 6, T + 5))
    e("v_bfe_u32 v%d, v%d, 3, 1" % (T + 7, T + 4))
    e("v_xor_b32 v%d, s%d, v%d" % (T + 7, S_WF, T + 7))
    e("v_lshlrev_b32 v%d, 6, v%d" % (T + 7, T + 7))
    e("v_add_u32 v%d, v%d, v%d" % (T + 6, T + 6, T + 7))
    e("v_bfe_u32 v%d, v%d, 4, 1" % (T + 7, L))
    e("v_lshlrev_b32 v%d, 5, v%d" % (T + 7, T + 7))
    e("v_add_u32 v%d, v%d, v%d" % (T + 6, T + 6, T + 7))
    e("v_and_b32 v%d, 3, v%d" % (T + 7, T + 4))
    e("v_lshlrev_b32 v%d, 3, v%d" % (T + 7, T + 7))
    e("v_add_u32 v%d, v%d, v%d" % (T + 6, T + 6, T + 7))
    e("v_add_u32 v%d, 0x%x, v%d" % (V_WA2, WB2, T + 6))
    e("s_waitcnt lgkmcnt(0)")
    srd(e, S_WS, 74, WS_BYTES)
    if cfg.ncx > 0:
        srd(e, S_X, 44, 1835008)
        e("v_lshrrev_b32 v40, 3, v%d" % L)
        e("v_and_b32 v41, 7, v%d" % L)
        e("v_lshrrev_b32 v42, 4, v%d" % L)
        e("v_xor_b32 v41, v41, v42")
        e("v_lshlrev_b32 v41, 4, v41")
        e("v_mul_u32_u24 v40, 28672, v40")
        e("s_lshl_b32 s41, s%d, 1" % S_R)
        e("s_lshr_b32 s42, s%d, 1" % S_WAVE)
        e("s_add_u32 s41, s41, s42")
        e("s_mul_i32 s41, s41, 896")
        e("s_and_b32 s42, s%d, 1" % S_WAVE)
        e("s_mul_i32 s42, s42, %d" % (32 * 28672))
        e("s_add_u32 s41, s41, s42")
        e("v_add3_u32 v36, v40, v41, s41")
        e("v_xor_b32 v41, 64, v41")
        e("s_add_u32 s42, s41, %d" % (8 * 28672 - 1024))
        e("v_add3_u32 v37, v40, v41, s42")
        e("v_add_u32 v38, %d, v36" % (16 * 28672 - 2048))
        e("v_add_u32 v39, %d, v37" % (16 * 28672 - 2048))
        e("s_mul_i32 s6, s%d, %d" % (S_R, RMUL[0]))
        e("s_add_u32 s6, s6, s%d" % S_FB)
        e("s_mul_i32 s7, s6, 37")
        e("s_lshr_b32 s7, s7, 8")
        e("s_mul_i32 s7, s7, 7")
        e("s_sub_u32 s6, s6, s7")
        e("s_lshl_b32 s5, s%d, 12" % S_WAVE)
        for c in range(1, cfg.ncx + 1):
            rot_next(e, 6, 7)
            e("s_lshl_b32 s4, s6, 7")
            dma_group(e, 5, c * 16384, [(S_X, 36 + i, 4, i * 1024, ("xc", c)) for i in range(4)])
    de = Em()
    _e = e
    e = de
    e("s_lshl_b32 s41, s%d, 1" % S_R)
    e("s_add_u32 s41, s41, s%d" % S_WT)
    e("s_mul_i32 s41, s41, 112")
    e("s_lshl_b32 s42, s%d, 1" % S_FB)
    e("s_add_u32 s42, s42, s%d" % S_WF)
    e("s_lshl_b32 s42, s42, 1")
    e("s_add_u32 s41, s41, s42")
    e("s_lshl_b32 s41, s41, 11")
    e("v_lshlrev_b32 v20, 4, v%d" % L)
    e("v_add_u32 v20, s41, v20")
    e("v_add_u32 v21, 0x%x, v20" % (56 * 2048))
    if cfg.ncx == 0: srd(e, S_X, 44, 1835008)
    srd(e, S_GW, 58, 896)
    e("s_mov_b32 s%d, s%d" % (S_LW, S_WAVE))
    gate_issue(e, cfg, True)
    gate_issue(e, cfg, True, True)
    flag_addr(e, True)
    srd(e, S_DBG, 72, 256)
    e("v_mov_b32 v7, 0")
    e("s_mov_b32 s44, 0x%08x" % f2u(-LOG2E))
    e("s_mov_b32 s45, s44")
    defer_list = [ln.strip() for ln in de.lines]
    e = _e
    nonce_publish(e)
    stamp(e, cfg, 0)
    if "notouch" not in cfg.x:
        srd(e, S_WD, 56, 1605632)
        e("s_lshr_b32 s41, s2, 3")
        e("s_mul_i32 s41, s41, 448")
        e("s_lshl_b32 s42, s%d, 6" % S_WAVE)
        e("s_add_u32 s41, s41, s42")
        e("v_add_u32 v8, s41, v%d" % L)
        e("v_lshlrev_b32 v8, 7, v8")
        e("buffer_load_dword v2, v8, s[%d:%d], 0 offen" % (S_WD, S_WD + 3))
        e("s_cmp_eq_u32 s%d, 3" % S_WAVE)
        lab = e.newlabel("TCH")
        e("s_cbranch_scc1 %s" % lab)
        e("v_add_u32 v8, 0x%x, v8" % (256 * 128))
        e("buffer_load_dword v3, v8, s[%d:%d], 0 offen" % (S_WD, S_WD + 3))
        e.label(lab)
    e("s_barrier")
    stamp(e, cfg, 1)
    if cfg.diag:
        e("s_memtime s[76:77]"); e("s_waitcnt lgkmcnt(0)")
    def reads(g):
        p = g // 28; kap = g % 28
        base = H_FR + 16 * (g & 1)
        c = kap >> 2; kk4 = kap & 3
        xo = c * 16384
        xv = V_XA2 + kk4 + (4 if xo >= 0x10000 else 0); xo &= 0xffff
        j = g >> 1; kk = g & 1
        so = (j % NW2) * WS2
        def xr(nb): return (("X", g, nb), "ds_read_b128 %s, v%d offset:%d" % (vr(base + 4 * nb, 4), xv, xo + nb * 4096))
        def wr(m, ip): return (("W", g, m), "ds_read_b64_tr_b16 %s, v%d offset:%d" % (vr(base + 8 + 4 * m + 2 * ip, 2), V_WA2, so + kk * 4096 + ip * 512 + m * 1024))
        return [wr(0, 0), wr(0, 1), xr(0), wr(1, 0), wr(1, 1), xr(1)]
    def epi_list(p):
        ACCB = H_ACC + 64 * p
        L_ = []
        def I(txt): L_.append(lambda: e(txt))
        grp = 0
        for nb in range(2):
            for hf in range(2):
                outb = 224 + 4 * grp; grp += 1
                A = ACCB + 16 * nb + 8 * hf; B = ACCB + 32 + 16 * nb + 8 * hf
                for q in range(0, 8, 2):
                    I("v_pk_mul_f32 %s, %s, s[44:45]" % (vr(A + q, 2), vr(A + q, 2)))
                for q in range(8):
                    I("v_exp_f32 v%d, v%d" % (A + q, A + q))
                for q in range(0, 8, 2):
                    I("v_pk_add_f32 %s, %s, s[46:47]" % (vr(A + q, 2), vr(A + q, 2))) if False else I("v_pk_add_f32 %s, %s, 1.0 op_sel_hi:[1,0]" % (vr(A + q, 2), vr(A + q, 2)))
                for q in range(8):
                    I("v_rcp_f32 v%d, v%d" % (A + q, A + q))
                for q in range(0, 8, 2):
                    I("v_pk_mul_f32 %s, %s, %s" % (vr(A + q, 2), vr(A + q, 2), vr(B + q, 2)))
                for q2 in range(4):
                    I("v_cvt_pk_bf16_f32 v%d, v%d, v%d" % (outb + q2, A + 2 * q2, A + 2 * q2 + 1))
                def st(outb=outb, nb=nb, hf=hf):
                    e("buffer_store_dwordx4 %s, v%d, s[%d:%d], 0 offen offset:%d sc1" % (vr(outb, 4), 20 + p, S_WS, S_WS + 3, hf * 2048 + nb * 1024))
                    e.vm_issue("hst")
                L_.append(st)
        return L_
    def epilogue(p):
        e("s_nop 7"); e("s_nop 3")
        for f in epi_list(p): f()
    pend_epi = []
    ge = Em()
    gate_finish(ge, cfg); gate_finish(ge, cfg, True)
    gate_list = [ln.strip() for ln in ge.lines]
    for tag, txt in reads(0):
        e(txt); e.lg_issue(tag)
    for g in range(56):
        base = H_FR + 16 * (g & 1)
        nxt = reads(g + 1) if g + 1 < 56 else []
        first = (g % 28 == 0)
        ACCB = H_ACC + 64 * (g // 28)
        if g == 28 + cfg.epi_start and cfg.epi_rate > 0:
            pend_epi = epi_list(0)
        k = 0
        for n in range(4):
            nb = n >> 1; m = n & 1
            if "wait2" in cfg.x:
                if n == 0: e.lg_wait([("W", g, 0), ("X", g, 0)])
                if n == 1: e.lg_wait([("W", g, 1), ("X", g, 1)])
            elif "wait1" in cfg.x:
                if n == 0: e.lg_wait([("W", g, 0), ("X", g, 0), ("W", g, 1), ("X", g, 1)])
            else:
                e.lg_wait([("W", g, m), ("X", g, nb)])
            d = ACCB + 32 * m + 16 * nb
            if "nomfma" not in cfg.x:
                mfma(e, d, base + 8 + 4 * m, base + 4 * nb, "0" if first else None)
            cnt = 2 if n < 2 else 1
            if "rd3" in cfg.x: cnt = (3, 3, 0, 0)[n]
            if "rd6" in cfg.x: cnt = (6, 0, 0, 0)[n]
            for _ in range(cnt):
                if k < len(nxt):
                    tag, txt = nxt[k]; k += 1
                    if "nolds" in cfg.x: continue
                    e(txt); e.lg_issue(tag)
            for _ in range(cfg.epi_rate):
                if pend_epi: pend_epi.pop(0)()
            for _ in range(cfg.defer_rate):
                if defer_list: e(defer_list.pop(0))
            if g >= cfg.gate_g:
                if g == cfg.gate_g and n == 0:
                    assert not defer_list
                    e("s_waitcnt vmcnt(0)")
                for _ in range(cfg.gate_rate):
                    if gate_list: e(gate_list.pop(0))
        if g == 27 and cfg.epi_rate == 0:
            epilogue(0)
        for c in range(1, cfg.ncx + 1):
            if g == 4 * c - 3:
                e.vm_wait([("xc", c)])
        if g == 46:
            nonce_load(e)
        if g == 2 * cfg.flagA_bar - 1:
            e("s_waitcnt vmcnt(0)")
        if (g & 1) and g < 55:
            e("s_barrier")
    assert not e.lg
    e.vm = []
    e("s_barrier")
    if cfg.diag:
        e("s_memtime s[78:79]"); e("s_waitcnt lgkmcnt(0)")
        e("s_sub_u32 s7, s78, s76")
    nonce_finish(e)
    assert not pend_epi and not gate_list
    stamp(e, cfg, 2)
    p2_role(e)
    flags_line(e, 0)
    poll_prep(e, S_PF, 14)
    poll_issue(e); e.vm_issue("pollA")
    epilogue(1)
    stamp(e, cfg, 3)

def h2_loader(e, cfg):
    L = V_LANE; T = 26
    VX = 10; VW = 14
    e("v_lshrrev_b32 v%d, 3, v%d" % (T, L))
    e("v_and_b32 v%d, 7, v%d" % (T + 1, L))
    e("v_lshrrev_b32 v%d, 4, v%d" % (T + 2, L))
    e("v_xor_b32 v%d, v%d, v%d" % (T + 3, T + 1, T + 2))
    e("v_lshlrev_b32 v%d, 4, v%d" % (T + 3, T + 3))
    e("v_mul_u32_u24 v%d, 28672, v%d" % (T + 4, T))
    e("s_lshl_b32 s41, s%d, 1" % S_R)
    e("s_lshr_b32 s42, s%d, 1" % S_LW)
    e("s_add_u32 s41, s41, s42")
    e("s_mul_i32 s41, s41, 896")
    e("s_and_b32 s42, s%d, 1" % S_LW)
    e("s_mul_i32 s42, s42, %d" % (32 * 28672))
    e("s_add_u32 s41, s41, s42")
    e("v_add3_u32 v%d, v%d, v%d, s41" % (VX, T + 4, T + 3))
    e("v_xor_b32 v%d, 64, v%d" % (T + 3, T + 3))
    e("s_add_u32 s42, s41, %d" % (8 * 28672 - 1024))
    e("v_add3_u32 v%d, v%d, v%d, s42" % (VX + 1, T + 4, T + 3))
    e("v_add_u32 v%d, %d, v%d" % (VX + 2, 16 * 28672 - 2048, VX))
    e("v_add_u32 v%d, %d, v%d" % (VX + 3, 16 * 28672 - 2048, VX + 1))
    e("v_mul_u32_u24 v%d, 3584, v%d" % (T + 4, T))
    e("v_and_b32 v%d, 1, v%d" % (T + 2, T + 2))
    e("v_lshlrev_b32 v%d, 2, v%d" % (T + 2, T + 2))
    e("v_xor_b32 v%d, v%d, v%d" % (T + 2, T + 2, T + 1))
    e("v_lshlrev_b32 v%d, 4, v%d" % (T + 2, T + 2))
    e("s_mul_i32 s41, s%d, %d" % (S_LW, 8 * 3584))
    e("s_lshl_b32 s42, s%d, 7" % S_FB)
    e("s_add_u32 s41, s41, s42")
    e("v_add3_u32 v%d, v%d, v%d, s41" % (VW, T + 4, T + 2))
    e("v_add_u32 v%d, %d, v%d" % (VW + 1, 32 * 3584, VW))
    e("s_lshl_b32 s%d, s%d, 11" % (S_LDSW, S_LW))
    e("s_lshl_b32 s%d, s%d, 12" % (S_LDSX, S_LW))
    e("s_mul_i32 s6, s%d, %d" % (S_R, RMUL[0]))
    e("s_add_u32 s6, s6, s%d" % S_FB)
    e("s_mul_i32 s7, s6, 37")
    e("s_lshr_b32 s7, s7, 8")
    e("s_mul_i32 s7, s7, 7")
    e("s_sub_u32 s6, s6, s7")
    e("s_waitcnt lgkmcnt(0)")
    srd(e, S_X, 44, 1835008)
    srd(e, S_WA, 52, 1605632)
    e("s_sub_u32 s%d, s54, 1024" % S_WB)
    e("s_subb_u32 s%d, s55, 0" % (S_WB + 1))
    e("s_and_b32 s%d, s%d, 0xffff" % (S_WB + 1, S_WB + 1))
    e("s_mov_b32 s%d, 0x%x" % (S_WB + 2, 1605632 + 1024))
    e("s_mov_b32 s%d, 0x20000" % (S_WB + 3))
    e("s_mov_b64 s[76:77], s[56:57]")
    e("s_mov_b64 s[78:79], s[58:59]")
    def emitT(dst):
        c = dst - 44
        e("s_lshl_b32 s%d, s6, 7" % (44 + c))
        e("s_mul_i32 s%d, s6, %d" % (51 + c, 64 * 3584))
    emitT(44)
    stamp(e, cfg, 0)
    tdone = [1]
    def need_table(c):
        while tdone[0] <= c:
            rot_next(e, 6, 7)
            emitT(44 + tdone[0]); tdone[0] += 1
    def dx(c):
        need_table(c)
        dma_group(e, S_LDSX, c * 16384, [(S_X, VX + i, 44 + c, i * 1024, ("x", c)) for i in range(4)])
    def dw(j):
        p = j // 14; jj = j % 14; c = jj >> 1
        need_table(c)
        va = VW + 2 * p + (jj & 1)
        dma_group(e, S_LDSW, WB2 + (j % NW2) * WS2, [(S_WA, va, 51 + c, 0, ("w", j)), (S_WB, va, 51 + c, 1024, ("w", j))])
    q = []
    for j in range(28):
        if j < 14 and j % 2 == 0 and not (1 <= j // 2 <= cfg.ncx): q.append(("x", j // 2, -1))
        q.append(("w", j, -1 if j < NW2 else j - NW2 + 1))
    def cost(it): return 4 if it[0] == "x" else 2
    def issue(it): (dx if it[0] == "x" else dw)(it[1])
    def need(j):
        t = []
        for jj in (j, j + 1):
            if jj <= 27:
                if jj < 14 and not (1 <= (jj >> 1) <= cfg.ncx): t.append(("x", jj >> 1))
                t.append(("w", jj))
        return t
    issued = set(); curbar = [-1]
    def ensure(tags):
        while q and any(t not in issued for t in tags):
            it = q.pop(0); assert it[2] <= curbar[0], (it, curbar)
            issue(it); issued.add((it[0], it[1]))
    ensure(need(0))
    e("v_add_u32 v%d, %d, v%d" % (VW + 2, 1792, VW))
    e("v_add_u32 v%d, %d, v%d" % (VW + 3, 1792, VW + 1))
    srd(e, S_WS, 74, WS_BYTES)
    srd(e, S_WD, 76, 1605632)
    srd(e, S_GW, 78, 896)
    srd(e, S_DBG, 72, 256)
    flag_addr(e, True)
    e("v_mov_b32 v7, 0")
    budget0 = cfg.pro_extra
    while q and budget0 > 0 and q[0][2] <= -1:
        it = q.pop(0); issue(it); issued.add((it[0], it[1])); budget0 -= cost(it)
    e.vm_wait(need(0))
    e("s_barrier")
    stamp(e, cfg, 1)
    for j in range(27):
        curbar[0] = j
        ensure(need(j + 1))
        budget = cfg.stage_budget2
        while q and budget > 0 and q[0][2] <= j:
            it = q.pop(0); issue(it); issued.add((it[0], it[1])); budget -= cost(it)
        if j == 1:
            p2_role(e)
            q_setup(e, 0, 26)
        if j == 14:
            q_table(e, 44, 2 * 16 * 896)
        if j >= 16 and j % 2 == 0:
            c = (j - 16) // 2
            q_dma_pair(e, 0, c, 26, 44)
        if j == 9:
            e("buffer_load_dword v4, v7, s[%d:%d], 0 offen sc1" % (S_DBG, S_DBG + 3))
            e.vm_issue("nonce")
        if j == 13:
            e("s_waitcnt vmcnt(0)"); e.vm = []
            nonce_finish_any(e, keepvm=True)
        if j == cfg.flagA_bar:
            lab = e.newlabel("FA")
            e("s_cmp_lg_u32 s%d, 4" % S_WAVE)
            e("s_cbranch_scc1 %s" % lab)
            flag_store(e)
            e.label(lab)
        if j == cfg.epoll:
            flags_line(e, 0)
            poll_prep(e, S_PF, 14)
            poll_issue(e); e.vm_issue("poll")
        e.vm_wait(need(j + 1))
        if "stg" in cfg.x and j + 1 in (4, 12, 15, 18, 26):
            pass
        e("s_barrier")
        if "stg" in cfg.x and j + 1 in (4, 12, 15, 18, 26):
            k = {4: 3, 12: 4, 15: 5, 18: 6, 26: 7}[j + 1]
            e("s_memtime s[%d:%d]" % (S_STAMP + 2 * k, S_STAMP + 2 * k + 1)); e("s_waitcnt lgkmcnt(0)")
    assert not q
    q_setup2(e, 0)
    q_table(e, 51, 4096)
    e.vm_wait([("wd", 11)])
    e("s_waitcnt lgkmcnt(0)")
    e("s_barrier")
    stamp(e, cfg, 2)
    poll_loop(e, 14, True)
    if cfg.diag: e("s_mov_b32 s%d, s41" % (S_STAMP + 16))
    stamp(e, cfg, 4)
    e.vm = []
    cfg.stepsA = q_steps(0, list(range(0, 2 * (6 - cfg.nca))) + [12, 13], 13)
    for i in range(cfg.hpre): q_issue_h(e, cfg.stepsA[i])
    q_dma_pair(e, 0, 6, 26, 44)

def nonce_finish_any(e, keepvm=False):
    lab = e.newlabel("NFA"); top = e.newlabel("NTA"); chk = e.newlabel("NCK")
    e("s_mov_b32 s42, 0")
    if keepvm: e("s_branch %s" % chk)
    e.label(top)
    e("s_waitcnt vmcnt(0)")
    e.label(chk)
    e("v_readfirstlane_b32 s%d, v4" % S_NONCE)
    e("s_nop 3")
    e("s_cmp_lg_u32 s%d, 0" % S_NONCE)
    e("s_cbranch_scc1 %s" % lab)
    e("s_add_u32 s42, s42, 1")
    e("s_cmp_ge_u32 s42, 0x40000")
    e("s_cbranch_scc1 %s" % lab)
    e("s_sleep 1")
    e("buffer_load_dword v4, v7, s[%d:%d], 0 offen sc1" % (S_DBG, S_DBG + 3))
    e("s_branch %s" % top)
    e.label(lab)

Q_ACC = 64
Q_H = 128
Q_A = 240
SL2 = 40960
SI = 3

def q_setup(e, part, vw=9):
    L = V_LANE
    e("s_and_b32 s%d, s%d, 3" % (SI, S_WAVE))
    e("v_lshrrev_b32 v2, 3, v%d" % L)
    e("v_bfe_u32 v3, v%d, 4, 1" % L)
    e("v_lshlrev_b32 v3, 2, v3")
    e("v_and_b32 v8, 7, v%d" % L)
    e("v_xor_b32 v3, v3, v8")
    e("v_lshlrev_b32 v3, 4, v3")
    e("s_mul_i32 s41, s%d, 224" % SI)
    if part: e("s_add_u32 s41, s41, 896")
    e("v_add_u32 v2, s41, v2")
    e("s_movk_i32 s42, 896")
    e("v_mul_lo_u32 v2, v2, s42")
    e("s_lshl_b32 s41, s%d, 7" % S_C)
    e("v_add3_u32 v%d, v2, v3, s41" % vw)
    e("v_add_u32 v%d, %d, v%d" % (vw + 1, 8 * 896 - 1024, vw))
    e("v_add_u32 v%d, %d, v%d" % (vw + 2, 16 * 896 - 2048, vw))
    e("v_add_u32 v%d, %d, v%d" % (vw + 3, 24 * 896 - 3072, vw))
    e("s_lshl_b32 s62, s%d, 12" % SI)
    e("s_and_b32 s4, s%d, 3" % S_T1)
    e("s_lshl_b32 s4, s4, 1")
    e("s_add_u32 s4, s4, s%d" % S_C)
    e("s_cmp_ge_u32 s4, 7")
    e("s_cselect_b32 s5, 7, 0")
    e("s_sub_u32 s4, s4, s5")
    if P2ROT[0] == 0: e("s_mov_b32 s4, 0")

def q_table(e, first, mult):
    e("s_mov_b32 s5, s4")
    for c in range(7):
        e("s_mul_i32 s%d, s5, %d" % (first + c, mult))
        if c < 6: rot_next(e, 5, 7)

def q_dma_pair(e, part, c, vw, tab):
    pos = q_pos(part, 2 * c)
    dma_group(e, 62, pos, [(S_WD, vw + i, tab + c, i * 1024, ("wd", 2 * c + (i >> 1))) for i in range(4)])

P2ROT = [1]
RMUL = [2]
OSC = [""]
HSC = [" sc1"]
def q_setup2(e, part):
    L = V_LANE
    e("v_and_b32 v2, 15, v%d" % L)
    e("v_lshrrev_b32 v3, 2, v2")
    e("v_lshrrev_b32 v8, 5, v%d" % L)
    e("v_lshlrev_b32 v5, 2, v8")
    e("v_add_u32 v5, v5, v3")
    e("v_lshlrev_b32 v5, 7, v5")
    e("v_bfe_u32 v6, v2, 3, 1")
    e("v_lshlrev_b32 v6, 6, v6")
    e("v_bfe_u32 v3, v%d, 4, 1" % L)
    e("v_lshlrev_b32 v3, 5, v3")
    e("v_and_b32 v8, 3, v2")
    e("v_lshlrev_b32 v8, 3, v8")
    e("v_add3_u32 v5, v5, v6, v3")
    e("v_add_u32 v5, v5, v8")
    e("v_add_u32 v11, s62, v5")
    e("v_xor_b32 v12, 64, v11")
    e("v_add_u32 v18, 0x10000, v11")
    e("v_add_u32 v19, 0x10000, v12")
    e("v_add_u32 v15, 0x20000, v11")
    e("v_add_u32 v63, 0x20000, v12")
    e("s_mul_i32 s41, s%d, 112" % S_T1)
    e("s_mul_i32 s42, s%d, 14" % SI)
    e("s_add_u32 s41, s41, s42")
    if part: e("s_add_u32 s41, s41, 56")
    e("s_lshl_b32 s41, s41, 11")
    e("v_lshlrev_b32 v13, 4, v%d" % L)
    e("v_add_u32 v13, s41, v13")
    e("v_and_b32 v14, 31, v%d" % L)

def q_pos(part, kk):
    c = kk >> 1; u = kk & 1
    if part == 0: return c * 16384 + u * 2048
    if c < 3: return WB2 + c * 16384 + u * 2048
    if c < 6: return c * 16384 + u * 2048
    return 0 * 16384 + u * 2048

HT = [51]
def q_load_h(e, kk, hreg, hv, tag):
    c = kk >> 1; u = kk & 1
    for nb in range(2):
        e("buffer_load_dwordx4 %s, v%d, s[%d:%d], s%d offen offset:%d%s" % (vr(hreg + 4 * nb, 4), hv, S_WS, S_WS + 3, HT[0] + c, u * 2048 + nb * 1024, HSC[0]))
        e.vm_issue(tag)

def q_steps(part, kks, hv, reg0=0):
    return [dict(part=part, kk=kk, hv=hv, hreg=Q_H + 8 * (reg0 + i), tag=("h", part, kk)) for i, kk in enumerate(kks)]

def q_issue_h(e, st):
    q_load_h(e, st["kk"], st["hreg"], st["hv"], st["tag"])

def q_mainloop(e, cfg, steps, init_zero, pre, extra=None, after_i=None, barrier_before=None):
    n = len(steps)
    def reads(i):
        st = steps[i]
        b = Q_A + 8 * (i & 1)
        pos = q_pos(st["part"], st["kk"])
        for mb in range(2):
            for ip in range(2):
                va = (11 + mb) if pos < 0x10000 else (18 + mb)
                po = pos if pos < 0x10000 else pos - 0x10000
                if pos >= 0x20000:
                    va = (15, 63)[mb]; po = pos - 0x20000
                e("ds_read_b64_tr_b16 %s, v%d offset:%d" % (vr(b + 4 * mb + 2 * ip, 2), va, po + ip * 1024))
                e.lg_issue(("A", i, mb))
    nxt = pre
    e.vm_wait([("wd", steps[0]["kk"])])
    reads(0)
    for i in range(n):
        st = steps[i]
        if nxt < n:
            q_issue_h(e, steps[nxt]); nxt += 1
            if nxt == n and extra: extra()
        late = (barrier_before is not None and i + 1 == barrier_before)
        if i + 1 < n and not late:
            e.vm_wait([("wd", steps[i + 1]["kk"])])
            reads(i + 1)
        e.vm_wait([st["tag"]])
        b = Q_A + 8 * (i & 1)
        for mb in range(2):
            e.lg_wait([("A", i, mb)])
            for nb in range(2):
                mfma(e, Q_ACC + 16 * (2 * mb + nb), b + 4 * mb, st["hreg"] + 4 * nb, "0" if (i == 0 and init_zero) else None)
        if late:
            e("s_barrier")
            reads(i + 1)
        if after_i: after_i(i)
    assert not e.lg and nxt >= n

def flags_line(e, part):
    e("s_lshr_b32 s43, s%d, 1" % S_T1)
    e("s_lshl_b32 s43, s43, 9")
    e("s_add_u32 s%d, s43, 0x%x" % (S_PF, FLAGS + 256 * part))

def q_loader_A(e, cfg):
    for i in range(4):
        e("v_add_u32 v%d, %d, v%d" % (20 + i, 896 * 896, 26 + i))
    stamp(e, cfg, 5)
    def after_i(i):
        if i == 1:
            dma_group(e, 62, q_pos(1, 12), [(S_WD, 20 + k, 44 + 6, k * 1024, ("wdb", 6)) for k in range(4)])
        if (i & 1) and 3 <= (i >> 1) < 6 - cfg.nca:
            c = i >> 1
            dma_group(e, 62, q_pos(1, 2 * c), [(S_WD, 20 + k, 44 + c, k * 1024, ("wdb", c)) for k in range(4)])
    q_mainloop(e, cfg, cfg.stepsA, True, cfg.hpre, None, after_i)
    stamp(e, cfg, 6)
    e("v_lshlrev_b32 v2, 4, v%d" % V_LANE)
    e("v_add_u32 v2, s62, v2")
    e("v_add_u32 v3, 0x10000, v2")
    e("s_nop 7"); e("s_nop 3")
    for tl, (va, off) in enumerate(((2, 16384), (2, 32768), (3, 6 * 16384 - 0x10000))):
        for qq in range(4):
            e("ds_write_b128 v%d, %s offset:%d" % (va, vr(Q_ACC + 16 * tl + 4 * qq, 4), off + qq * 1024))
    e("s_waitcnt vmcnt(0) lgkmcnt(0)")
    e.vm = []
    e("s_barrier")
    stamp(e, cfg, 7)
    e("v_add_u32 v3, 0x%x, v2" % WB2)
    for qq in range(4):
        e("ds_write_b128 v3, %s offset:%d" % (vr(Q_ACC + 48 + 4 * qq, 4), qq * 1024))
    e("s_waitcnt lgkmcnt(0)")
    e("s_barrier")

def tprime(e):
    L = V_LANE
    e("s_cmp_lg_u32 s%d, 0" % S_T1)
    e("s_cselect_b32 s76, s63, 0")
    e("v_add_u32 v2, s76, v14")
    e("v_lshrrev_b32 v8, 5, v%d" % L)
    e("v_lshlrev_b32 v8, 2, v8")
    e("s_lshl_b32 s77, s%d, 4" % SI)
    e("v_add_u32 v8, s77, v8")
    e("s_lshl_b32 s76, s63, 31")
    e("s_mov_b32 s77, 0x%08x" % f2u(1.0 / 64))
    for nb in range(2):
        if nb: e("v_add_u32 v2, 32, v2")
        e("v_xor_b32 v21, s76, v%d" % (22 + nb))
        for u in range(2):
            for q in range(4):
                e("v_add_u32 v3, %d, v8" % (8 * u + q))
                e("v_mul_u32_u24 v3, v3, v2")
                e("v_and_b32 v3, 63, v3")
                e("v_cvt_f32_u32 v3, v3")
                e("v_mul_f32 v3, s77, v3")
                e("v_cos_f32 v5, v3")
                e("v_sin_f32 v6, v3")
                e("s_nop 0")
                e("v_mul_f32 v5, v5, v%d" % (22 + nb))
                e("v_mul_f32 v6, v6, v21")
                e("v_cvt_pk_bf16_f32 v%d, v5, v6" % (T_REG + 8 * nb + 4 * u + q))
    for nb in range(2):
        e("v_sub_f32 v%d, 1.0, v%d" % (40 + 2 * nb, 22 + nb))
        e("v_mov_b32 v%d, v%d" % (41 + 2 * nb, 40 + 2 * nb))

T_REG = 44
U_REG = 128
def q_consumer_B(e, cfg):
    L = V_LANE
    q_setup(e, 1, 26)
    q_setup2(e, 1)
    e("v_subrev_u32 v9, %d, v13" % (56 * 2048))
    srd(e, S_OUT, 46, 1835008)
    srd(e, S_WD, 56, 1605632)
    q_table(e, 44, 2 * 16 * 896)
    q_table(e, 51, 4096)
    e.vm_wait(["pollA"])
    okA = e.newlabel("AOK")
    e("v_cmp_eq_u32 vcc, s%d, v60" % S_NONCE)
    e("s_nop 1")
    e("s_and_b32 s42, vcc_lo, 0x3fff")
    e("s_cmp_eq_u32 s42, 0x3fff")
    e("s_cbranch_scc1 %s" % okA)
    svm = list(e.vm)
    poll_loop(e, 14, False)
    e.vm = svm
    e.label(okA)
    stepsCA = q_steps(0, list(range(2 * (6 - cfg.nca), 12)), 9)
    for st in stepsCA[:cfg.preCA]: q_issue_h(e, st)
    e("s_cmp_ge_u32 s%d, 4" % S_C)
    e("s_cselect_b32 s63, 1, 0")
    e("s_sub_u32 s64, 32, s%d" % S_T1)
    e("s_and_b32 s64, s64, 31")
    e("s_cmp_eq_u32 s63, 1")
    e("s_cselect_b32 s64, s64, s%d" % S_T1)
    e("v_lshrrev_b32 v8, 5, v%d" % L)
    e("s_lshl_b32 s41, s%d, 6" % S_C)
    e("s_cmp_eq_u32 s63, 1")
    e("s_cselect_b64 vcc, -1, 0")
    for mb in range(2):
        e("v_add_u32 v2, s41, v14")
        if mb: e("v_add_u32 v2, 32, v2")
        e("v_sub_u32 v3, 448, v2")
        e("v_cndmask_b32 v2, v2, v3, vcc")
        e("v_lshlrev_b32 v2, 4, v2")
        e("v_lshlrev_b32 v3, 12, v8")
        e("v_add_u32 v%d, v2, v3" % (16 + mb))
    e("s_lshl_b32 s41, s64, 4")
    e("s_lshl_b32 s42, s%d, 2" % SI)
    e("s_add_u32 s41, s41, s42")
    e("s_lshl_b32 s41, s41, 12")
    e("s_add_u32 s65, s41, 0x%x" % UBUF)
    e("s_lshl_b32 s41, s%d, 6" % S_T1)
    e("v_add_u32 v2, s41, v14")
    e("v_lshlrev_b32 v2, 2, v2")
    e("v_add_u32 v20, 0x%x, v2" % GBUF)
    e("s_mul_i32 s41, s61, 12")
    e("s_lshl_b32 s42, s%d, 2" % S_WAVE)
    e("s_add_u32 s41, s41, s42")
    e("s_add_u32 s41, s41, 256")
    e("s_add_u32 s%d, s%d, s41" % (S_FLAG, S_FLAG))
    e.vm_wait(["hst"])
    stamp(e, cfg, 6)
    flag_store(e)
    e.vm_issue("flagB")
    for nb in range(2):
        e("buffer_load_dword v%d, v20, s[%d:%d], 0 offen offset:%d sc1" % (22 + nb, S_WS, S_WS + 3, nb * 128))
        e.vm_issue("g")
    for st in stepsCA[cfg.preCA:]: q_issue_h(e, st)
    for c in range(3): q_dma_pair(e, 1, c, 26, 44)
    e.vm_wait(["g"])
    tprime(e)
    def afterA(i):
        if i & 1:
            c = 6 - cfg.nca + (i >> 1)
            q_dma_pair(e, 1, c, 26, 44)
    if stepsCA:
        q_mainloop(e, cfg, stepsCA, True, len(stepsCA), None, afterA)
    stamp(e, cfg, 4)
    flags_line(e, 1)
    poll_prep(e, S_PF, 56)
    poll_loop56(e)
    stamp(e, cfg, 5)
    e.vm = []
    e("v_lshlrev_b32 v62, 2, v%d" % V_LANE)
    e("v_add_u32 v62, 0x%x, v62" % (FLAGS + 16 * 512))
    e("v_mov_b32 v60, 0x7fffffff")
    e("v_cmp_gt_u32 vcc, 32, v%d" % V_LANE)
    e("s_nop 1")
    e("v_cndmask_b32 v62, v60, v62, vcc")
    def uloads():
        for u in range(2):
            for mb in range(2):
                e("s_add_u32 s%d, s65, %d" % (S_OFF, u * 2 * 4096))
                e("buffer_load_dwordx4 %s, v%d, s[%d:%d], s%d offen sc1" % (vr(U_REG + 8 * u + 4 * mb, 4), 16 + mb, S_WS, S_WS + 3, S_OFF))
                e.vm_issue("u")
    def dflag_issue():
        e("buffer_load_dword v10, v62, s[%d:%d], 0 offen sc1" % (S_WS, S_WS + 3))
        e.vm_issue("dflag")
    def after_k(kk):
        if kk == cfg.dchk:
            ok = e.newlabel("DOK"); top = e.newlabel("DSP")
            e.vm_wait(["dflag"])
            sv = list(e.vm)
            e("s_mov_b32 s41, 0")
            e.label(top)
            e("v_cmp_eq_u32 vcc, s%d, v10" % S_NONCE)
            e("s_nop 1")
            e("s_cmp_eq_u32 vcc_lo, -1")
            e("s_cbranch_scc1 %s" % ok)
            e("s_add_u32 s41, s41, 1")
            e("s_cmp_ge_u32 s41, 0x40000")
            e("s_cbranch_scc1 %s" % ok)
            e("buffer_load_dword v10, v62, s[%d:%d], 0 offen sc1" % (S_WS, S_WS + 3))
            e("s_waitcnt vmcnt(0)")
            e("s_branch %s" % top)
            e.label(ok)
            e.vm = sv
            uloads()
    stepsB = q_steps(1, list(range(14)), 13)
    for i in range(cfg.hpreB): q_issue_h(e, stepsB[i])
    q_mainloop(e, cfg, stepsB, cfg.nca == 0, cfg.hpreB, dflag_issue, after_k, 2 if cfg.nca == 3 else 6)
    stamp(e, cfg, 7)
    e("s_nop 7"); e("s_nop 3")
    for mb in range(2):
        for nb in range(2):
            D = Q_ACC + 16 * (2 * mb + nb)
            for i in range(0, 16, 2):
                e("v_pk_mul_f32 %s, %s, %s" % (vr(D + i, 2), vr(D + i, 2), vr(40 + 2 * nb, 2)))
    e.vm_wait(["u"])
    e("s_nop 1")
    for u in range(2):
        for mb in range(2):
            for nb in range(2):
                mfma(e, Q_ACC + 16 * (2 * mb + nb), U_REG + 8 * u + 4 * mb, T_REG + 8 * nb + 4 * u)
    e("s_barrier")
    e("v_lshlrev_b32 v2, 4, v%d" % L)
    e("s_add_u32 s41, s%d, 2" % SI)
    e("s_cmp_eq_u32 s%d, 0" % SI)
    e("s_cselect_b32 s41, 0, s41")
    e("s_lshl_b32 s41, s41, 14")
    e("v_add_u32 v3, s41, v2")
    e("s_add_u32 s41, s%d, 1" % SI)
    e("s_lshl_b32 s41, s41, 14")
    e("s_cmp_eq_u32 s%d, 2" % SI)
    e("s_cselect_b32 s41, %d, s41" % (6 * 16384))
    e("s_cmp_eq_u32 s%d, 3" % SI)
    e("s_cselect_b32 s41, 0x%x, s41" % WB2)
    e("v_add_u32 v5, s41, v2")
    for k in range(4):
        for qq in range(4):
            e("ds_read_b128 %s, v5 offset:%d" % (vr(192 + 16 * k + 4 * qq, 4), k * 4096 + qq * 1024))
        if k == 2: e("s_waitcnt lgkmcnt(8)")
    e("s_waitcnt lgkmcnt(6)")
    for tl in range(4):
        for qq in range(4):
            e("ds_write_b128 v3, %s offset:%d" % (vr(Q_ACC + 16 * tl + 4 * qq, 4), tl * 4096 + qq * 1024))
        if tl < 3: e("s_waitcnt lgkmcnt(6)")
    e("s_waitcnt lgkmcnt(0)")
    e("s_barrier")
    e("s_lshl_b32 s41, s%d, 12" % SI)
    e("v_add_u32 v3, s41, v2")
    e("v_add_u32 v6, 0x10000, v3")
    for k, (va, off) in enumerate(((3, 0), (3, 3 * 16384), (6, 0), (6, 16384))):
        for qq in range(4):
            e("ds_read_b128 %s, v%d offset:%d" % (vr(128 + 16 * k + 4 * qq, 4), va, off + qq * 1024))
        if k == 2: e("s_waitcnt lgkmcnt(8)")
    for q in range(0, 16, 2):
        e("v_pk_add_f32 %s, %s, %s" % (vr(192 + q, 2), vr(192 + q, 2), vr(208 + q, 2)))
        e("v_pk_add_f32 %s, %s, %s" % (vr(224 + q, 2), vr(224 + q, 2), vr(240 + q, 2)))
    for q in range(0, 16, 2):
        e("v_pk_add_f32 %s, %s, %s" % (vr(192 + q, 2), vr(192 + q, 2), vr(224 + q, 2)))
    e("s_and_b32 s41, s%d, 1" % SI)
    e("s_cmp_eq_u32 s41, 1")
    e("s_cselect_b64 vcc, -1, 0")
    e("s_nop 1")
    e("v_cndmask_b32 v40, v40, v42, vcc")
    e("v_mov_b32 v41, v40")
    e("s_lshl_b32 s41, s41, 5")
    e("v_add_u32 v2, s41, v14")
    e("v_lshlrev_b32 v2, 5, v2")
    e("v_add_u32 v2, s%d, v2" % S_T1)
    e("s_movk_i32 s42, 896")
    e("v_mul_lo_u32 v2, v2, s42")
    e("s_lshl_b32 s41, s%d, 7" % S_C)
    e("s_lshr_b32 s42, s%d, 1" % SI)
    e("s_lshl_b32 s42, s42, 6")
    e("s_add_u32 s41, s41, s42")
    e("v_lshrrev_b32 v8, 5, v%d" % L)
    e("v_lshlrev_b32 v8, 4, v8")
    e("v_add3_u32 v2, v2, v8, s41")
    e("s_waitcnt lgkmcnt(0)")
    for q in range(0, 16, 2):
        e("v_pk_add_f32 %s, %s, %s" % (vr(128 + q, 2), vr(128 + q, 2), vr(144 + q, 2)))
        e("v_pk_add_f32 %s, %s, %s" % (vr(160 + q, 2), vr(160 + q, 2), vr(176 + q, 2)))
    for q in range(0, 16, 2):
        e("v_pk_fma_f32 %s, %s, %s, %s" % (vr(128 + q, 2), vr(192 + q, 2), vr(40, 2), vr(128 + q, 2)))
    for q in range(0, 16, 2):
        e("v_pk_add_f32 %s, %s, %s" % (vr(128 + q, 2), vr(128 + q, 2), vr(160 + q, 2)))
    for q in range(8):
        e("v_cvt_pk_bf16_f32 v%d, v%d, v%d" % (96 + q, 128 + 2 * q, 128 + 2 * q + 1))
    e("s_nop 1")
    for ih in range(2):
        e("v_permlane32_swap_b32 v%d, v%d" % (96 + 4 * ih, 98 + 4 * ih))
        e("v_permlane32_swap_b32 v%d, v%d" % (97 + 4 * ih, 99 + 4 * ih))
    for ih in range(2):
        e("buffer_store_dwordx4 %s, v2, s[%d:%d], 0 offen offset:%d%s" % (vr(96 + 4 * ih, 4), S_OUT, S_OUT + 3, ih * 32, OSC[0]))
    stamp(e, cfg, 8)

def kernel_fused2(e, cfg):
    name = "gated_mix__spectral_fnet__glu_gated_glu__prompt_kernel"
    header(e, name)
    if cfg.diag:
        e("s_memrealtime s[%d:%d]" % (S_STAMP + 6, S_STAMP + 7))
    e("s_cmp_ge_u32 s2, 256")
    e("s_cbranch_scc1 KF_END")
    kernarg_loads(e)
    entry_common(e)
    e("s_and_b32 s%d, s%d, 3" % (S_WF, S_WAVE))
    e("s_and_b32 s%d, s%d, 3" % (S_LW, S_WAVE))
    e("s_and_b32 s41, s2, 7")
    e("s_lshr_b32 s42, s2, 3")
    e("s_cmp_ge_u32 s42, 28")
    e("s_cbranch_scc1 P1_DFT")
    e("s_mul_i32 s43, s42, 37")
    e("s_lshr_b32 s43, s43, 8")
    e("s_mul_i32 s76, s43, 7")
    e("s_sub_u32 s76, s42, s76")
    e("s_lshr_b32 s77, s41, 1")
    e("s_lshl_b32 s77, s77, 2")
    e("s_add_u32 s%d, s77, s43" % S_R)
    e("s_and_b32 s77, s41, 1")
    e("s_mul_i32 s77, s77, 7")
    e("s_add_u32 s%d, s77, s76" % S_FB)
    e("s_cmp_lt_u32 s%d, 4" % S_WAVE)
    e("s_cbranch_scc1 P1_H_CONSUMER")
    e.vm = []; e.lg = []
    STG[0] = True
    h2_loader(e, cfg)
    q_loader_A(e, cfg)
    STG[0] = False
    stamp_store(e, cfg, 0)
    e("s_endpgm")
    e.label("P1_H_CONSUMER")
    e.vm = []; e.lg = []
    h2_consumer(e, cfg)
    q_consumer_B(e, cfg)
    stamp_store(e, cfg, 0)
    e("s_endpgm")
    e.label("P1_DFT")
    e("s_sub_u32 s42, s42, 28")
    e("s_and_b32 s%d, s41, 1" % S_EH)
    e("s_lshr_b32 s77, s41, 1")
    e("s_lshl_b32 s77, s77, 2")
    e("s_add_u32 s%d, s77, s42" % S_QG)
    e("s_cmp_ge_u32 s%d, 4" % S_WAVE)
    e("s_cbranch_scc1 P1_D_LOADER")
    e.vm = []; e.lg = []
    p1_consumer(e, cfg, False)
    d_epilogue(e, cfg)
    stamp(e, cfg, 3)
    e.vm_wait_all()
    e("s_barrier")
    lab = e.newlabel("DNOTW0")
    e("s_cmp_lg_u32 s%d, 0" % S_WAVE)
    e("s_cbranch_scc1 %s" % lab)
    flag_store(e)
    e("s_waitcnt vmcnt(0)")
    e.label(lab)
    stamp_store(e, cfg, 0)
    e("s_endpgm")
    e.label("P1_D_LOADER")
    e.vm = []; e.lg = []
    p1_loader(e, cfg, False)
    stamp(e, cfg, 3)
    e("s_waitcnt vmcnt(0)")
    e("s_barrier")
    stamp_store(e, cfg, 0)
    e("s_endpgm")
    e.label("KF_END")
    e("s_endpgm")
    e.label("KF_CODE_END")

def descriptor(name):
    return """.section .rodata,"a"
.p2align 6
.amdhsa_kernel %s
  .amdhsa_next_free_vgpr 256
  .amdhsa_next_free_sgpr 102
  .amdhsa_accum_offset 256
  .amdhsa_group_segment_fixed_size 0
  .amdhsa_kernarg_size 104
  .amdhsa_user_sgpr_count 2
  .amdhsa_user_sgpr_kernarg_segment_ptr 1
  .amdhsa_system_sgpr_workgroup_id_x 1
.end_amdhsa_kernel
""" % name

def main():
    cfg = Cfg()
    cfg.pro_extra = 8; cfg.stage_budget = 8; cfg.p2_la = 3; cfg.p2_dpoll = 4; cfg.stage_budget2 = 6; cfg.flagA_bar = 22; cfg.epi_rate = 0; cfg.epi_start = 1; cfg.epoll = 26; cfg.hpre = 5; cfg.preCA = 0; cfg.nca = 3; cfg.hpreB = 5; cfg.dchk = 11; cfg.gate_j = 5; cfg.ncx = 0; cfg.gate_g = 14; cfg.gate_rate = 3; cfg.defer_rate = 3; cfg.pfWd_j = 1; cfg.pfW_j = 1
    out = sys.argv[1]
    for a in sys.argv[2:]:
        if a == "nop2rot": P2ROT[0] = 0
        if a == "rmul1": RMUL[0] = 1
        if a == "osc1": OSC[0] = " sc1"
        if a == "ont": OSC[0] = " nt"
        if a == "osc01": OSC[0] = " sc0 sc1"
        if a == "hplain": HSC[0] = ""
        if a == "hnt": HSC[0] = " nt"
        if a == "hsc01": HSC[0] = " sc0 sc1"
        if a == "diag": cfg.diag = True
        elif a == "fused": cfg.fused = True
        elif "=" in a:
            k, v = a.split("="); setattr(cfg, k, int(v))
        else: cfg.x = cfg.x | {a}
    e = Em()
    if cfg.fused:
        name = "gated_mix__spectral_fnet__glu_gated_glu__prompt_kernel"
        hdr = "; generated by gen2.py (fused)\n; @launch grid=(256,1,1) block=(512,1,1) lds=163840\n"
        hdr += '.amdgcn_target "amdgcn-amd-amdhsa--gfx950"\n'
        kernel_fused2(e, cfg)
        open(out, "w").write(hdr + e.text() + descriptor(name))
        return
    hdr = "; generated by gen2.py\n"
    hdr += "; @launch kernel=k1_kernel grid=(256,1,1) block=(512,1,1) lds=163840\n"
    hdr += "; @launch kernel=k2_kernel grid=(256,1,1) block=(512,1,1) lds=163840\n"
    hdr += '.amdgcn_target "amdgcn-amd-amdhsa--gfx950"\n'
    kernel1(e, cfg)
    kernel2(e, cfg)
    txt = hdr + e.text() + descriptor("k1_kernel") + descriptor("k2_kernel")
    open(out, "w").write(txt)
if __name__ == "__main__":
    main()
```

```python
import sys, math, struct

def f2u(f): return struct.unpack("<I", struct.pack("<f", f))[0]

class Em:
    def __init__(self):
        self.lines = []
        self.vm = []
        self.lg = []
        self.nlab = 0
    def __call__(self, s): self.lines.append("    " + s)
    def raw(self, s): self.lines.append(s)
    def label(self, s): self.lines.append(s + ":")
    def newlabel(self, p):
        self.nlab += 1
        return "%s_%d" % (p, self.nlab)
    def vm_issue(self, tag): self.vm.append(tag)
    def vm_wait(self, tags):
        last = -1
        for i, t in enumerate(self.vm):
            if t in tags: last = i
        if last < 0: return
        n = len(self.vm) - 1 - last
        assert n <= 63, n
        self("s_waitcnt vmcnt(%d)" % n)
        self.vm = self.vm[last + 1:]
    def vm_wait_all(self):
        self("s_waitcnt vmcnt(0)"); self.vm = []
    def lg_issue(self, tag): self.lg.append(tag)
    def lg_wait(self, tags):
        last = -1
        for i, t in enumerate(self.lg):
            if t in tags: last = i
        if last < 0: return
        n = len(self.lg) - 1 - last
        assert n <= 15, n
        self("s_waitcnt lgkmcnt(%d)" % n)
        self.lg = self.lg[last + 1:]
    def lg_wait_all(self):
        self("s_waitcnt lgkmcnt(0)"); self.lg = []
    def text(self): return "\n".join(self.lines) + "\n"

def vr(a, n=1): return "v%d" % a if n == 1 else "v[%d:%d]" % (a, a + n - 1)

HBUF = 0
UBUF = 0x700000
GBUF = 0x900000
FLAGS = 0x910000
DIAG = 0xA00000
WS_BYTES = 0x1000000
LOG2E = 1.4426950408889634

S_X = 8; S_WA = 12; S_WB = 16; S_WS = 20; S_GW = 24; S_OUT = 28; S_WD = 32; S_DBG = 36
S_WAVE = 40
S_R = 60; S_FB = 61; S_QG = 62; S_EH = 63
S_WF = 64; S_LW = 65
S_LDSW = 66; S_LDSX = 67
S_OFF = 68
S_T1 = 70; S_C = 71
S_STAMP = 80
S_NONCE = 98; S_FLAG = 99; S_PF = 100
V_LANE = 1

class Cfg:
    fused = False
    diag = False
    x = set()

def kernarg_loads(e):
    e("s_load_dwordx2 s[44:45], s[0:1], 0")
    e("s_load_dwordx4 s[48:51], s[0:1], 24")
    e("s_load_dwordx4 s[52:55], s[0:1], 48")
    e("s_load_dwordx4 s[56:59], s[0:1], 64")
    e("s_load_dwordx2 s[46:47], s[0:1], 80")
    e("s_load_dwordx4 s[72:75], s[0:1], 88")

def srd(e, dst, lo, nbytes):
    e("s_mov_b32 s%d, s%d" % (dst, lo))
    e("s_and_b32 s%d, s%d, 0xffff" % (dst + 1, lo + 1))
    e("s_mov_b32 s%d, 0x%x" % (dst + 2, nbytes))
    e("s_mov_b32 s%d, 0x20000" % (dst + 3))

NSTAMP = 6
STG = [False]
def stamp(e, cfg, k):
    if cfg.diag and not ("stg" in cfg.x and k in (4,5,6,7) and STG[0]):
        assert not e.lg
        e("s_memrealtime s[%d:%d]" % (S_STAMP + 2 * k, S_STAMP + 2 * k + 1))
        if k in (1, 2) and not cfg.fused:
            e("s_memtime s[%d:%d]" % (S_STAMP + 12 + 2 * (k - 1), S_STAMP + 13 + 2 * (k - 1)))
        e("s_waitcnt lgkmcnt(0)")

def stamp_store(e, cfg, slot_base):
    if not cfg.diag: return
    e("s_lshl_b32 s41, s2, 3")
    e("s_add_u32 s41, s41, s%d" % S_WAVE)
    e("s_lshl_b32 s41, s41, 6")
    e("s_add_u32 s41, s41, 0x%x" % (DIAG + slot_base))
    e("v_mov_b32 v1, s41")
    for k in range(9 if cfg.fused else NSTAMP + 2):
        e("v_mov_b32 v2, s%d" % (S_STAMP + 2 * k))
        e("buffer_store_dword v2, v1, s[%d:%d], 0 offen offset:%d" % (S_WS, S_WS + 3, 4 * k))
        e("s_nop 1")
    e("v_mov_b32 v2, s7")
    e("buffer_store_dword v2, v1, s[%d:%d], 0 offen offset:36" % (S_WS, S_WS + 3))
    e("s_waitcnt vmcnt(0)")

def mfma(e, d, a, b, c=None):
    cs = vr(d, 16) if c is None else c
    e("v_mfma_f32_32x32x16_bf16 %s, %s, %s, %s" % (vr(d, 16), vr(a, 4), vr(b, 4), cs))

NODMA = [False]
def dma_group(e, sldsbase, ldsconst, items):
    e("s_add_u32 m0, s%d, 0x%x" % (sldsbase, ldsconst))
    e("s_nop 0")
    for (srdreg, vaddr, soff, ioff, tag) in items:
        e("buffer_load_dwordx4 v%d, s[%d:%d], s%d offen offset:%d lds" % (vaddr, srdreg, srdreg + 3, soff, ioff))
        e.vm_issue(tag)
def fill_table(e, first, n, scnt, mod, emit):
    for c in range(n):
        emit(first + c)
        if c + 1 < n: rot_next(e, scnt, mod)
def rot_next(e, sreg, n):
    e("s_add_u32 s%d, s%d, 1" % (sreg, sreg))
    e("s_cmp_eq_u32 s%d, %d" % (sreg, n))
    e("s_cselect_b32 s%d, 0, s%d" % (sreg, sreg))
def dma(e, srdreg, vaddr, ldsconst, sldswave, soff, tag):
    if NODMA[0]:
        e.vm_issue(tag); e.vm.pop(); return
    e("s_add_u32 m0, s%d, 0x%x" % (sldswave, ldsconst))
    if soff is None:
        e("s_nop 0")
    else:
        e("s_mov_b32 s%d, 0x%x" % (S_OFF, soff))
    e("buffer_load_dwordx4 v%d, s[%d:%d], s%d offen lds" % (vaddr, srdreg, srdreg + 3, S_OFF))
    e.vm_issue(tag)

XSLOT = 16384; NX = 4
WBASE = 65536; NW = 6; WSLOT = 16384
ACC = 64
def accA(i): return ACC + 16 * i
def accB(i): return ACC + 64 + 16 * i
FR = 192
V_XA = 10
V_WA = 14
CONST_LDS = 0

def p1_consumer_addr(e, is_h):
    L = V_LANE; T = 26
    e("v_and_b32 v%d, 31, v%d" % (T, L))
    e("v_lshrrev_b32 v%d, 5, v%d" % (T + 1, L))
    e("v_lshrrev_b32 v%d, 1, v%d" % (T + 2, T))
    e("v_and_b32 v%d, 7, v%d" % (T + 2, T + 2))
    e("v_lshlrev_b32 v%d, 7, v%d" % (T + 3, T))
    if not is_h:
        e("s_lshl_b32 s41, s%d, 5" % S_WF)
        e("v_add_u32 v%d, s41, v%d" % (T + 5, T))
        e("v_lshlrev_b32 v%d, 7, v%d" % (T + 5, T + 5))
        e("v_add_u32 v%d, 0x%x, v%d" % (T + 5, WBASE, T + 5))
    for k in range(4):
        e("v_add_u32 v%d, %d, v%d" % (T + 4, 2 * k, T + 1))
        e("v_xor_b32 v%d, v%d, v%d" % (T + 4, T + 4, T + 2))
        e("v_lshlrev_b32 v%d, 4, v%d" % (T + 4, T + 4))
        e("v_add_u32 v%d, v%d, v%d" % (V_XA + k, T + 3, T + 4))
        if not is_h:
            e("v_add_u32 v%d, v%d, v%d" % (V_WA + k, T + 5, T + 4))
            e("v_add_u32 v%d, 0x10000, v%d" % (V_WA + 4 + k, V_WA + k))
    if is_h:
        e("v_and_b32 v%d, 15, v%d" % (T + 4, L))
        e("v_lshrrev_b32 v%d, 2, v%d" % (T + 5, T + 4))
        e("v_lshlrev_b32 v%d, 3, v%d" % (T + 6, T + 1))
        e("v_add_u32 v%d, v%d, v%d" % (T + 6, T + 6, T + 5))
        e("v_lshlrev_b32 v%d, 8, v%d" % (T + 6, T + 6))
        e("v_xor_b32 v%d, s%d, v%d" % (T + 7, S_WF, T + 5))
        e("v_lshlrev_b32 v%d, 6, v%d" % (T + 7, T + 7))
        e("v_add_u32 v%d, v%d, v%d" % (T + 6, T + 6, T + 7))
        e("v_bfe_u32 v%d, v%d, 4, 1" % (T + 7, L))
        e("v_lshlrev_b32 v%d, 5, v%d" % (T + 7, T + 7))
        e("v_add_u32 v%d, v%d, v%d" % (T + 6, T + 6, T + 7))
        e("v_and_b32 v%d, 3, v%d" % (T + 7, T + 4))
        e("v_lshlrev_b32 v%d, 3, v%d" % (T + 7, T + 7))
        e("v_add_u32 v%d, v%d, v%d" % (T + 6, T + 6, T + 7))
        e("v_add_u32 v%d, 0x%x, v%d" % (V_WA, WBASE, T + 6))
        e("v_add_u32 v%d, 0x%x, v%d" % (V_WA + 1, WBASE + 0x10000, T + 6))

def p1_reads(kap, is_h):
    base = FR + 24 * (kap & 1)
    c = kap >> 2; kk4 = kap & 3
    def xr(nb): return (("X", kap, nb), "ds_read_b128 %s, v%d offset:%d" % (vr(base + 4 * nb, 4), V_XA + kk4, (c % NX) * XSLOT + nb * 4096))
    if is_h:
        j = kap >> 1; kk = kap & 1
        slot = (j % NW) * WSLOT
        va = V_WA + (1 if slot >= 0x10000 else 0); so = slot & 0xffff
        def wr(m, ip): return (("W", kap, m), "ds_read_b64_tr_b16 %s, v%d offset:%d" % (vr(base + 16 + 4 * m + 2 * ip, 2), va, so + m * 8192 + (16 * kk + 4 * ip) * 256))
        return [wr(0, 0), wr(0, 1), xr(0), wr(1, 0), wr(1, 1), xr(1), xr(2), xr(3)]
    else:
        slot = (c % 3) * 32768
        va = V_WA + kk4 + (4 if slot >= 0x10000 else 0); so = slot & 0xffff
        def wr(m): return (("W", kap, m), "ds_read_b128 %s, v%d offset:%d" % (vr(base + 16 + 4 * m, 4), va, so + m * 16384))
        return [wr(0), xr(0), wr(1), xr(1), xr(2), xr(3)]

def p1_consumer(e, cfg, is_h):
    p1_consumer_addr(e, is_h)
    e("s_waitcnt lgkmcnt(0)")
    srd(e, S_WS, 74, WS_BYTES)
    if cfg.fused:
        flag_addr(e, is_h)
        nonce_issue(e)
    if not is_h:
        srd(e, S_X, 44, 1835008)
        srd(e, S_GW, 58, 896)
        e("s_mov_b32 s%d, s%d" % (S_LW, S_WAVE))
        gate4_issue(e)
        e("buffer_load_dword v4, v7, s[%d:%d], 0 offen sc1" % (S_DBG, S_DBG + 3)); e.vm_issue("gate")
        for p in range(4): gate4_pass(e, p)
    stamp(e, cfg, 0)
    if (not is_h) and "pfcode" in cfg.x:
        lab = e.newlabel("PC")
        e("s_getpc_b64 s[42:43]")
        e.label(lab)
        e("s_sub_u32 s42, s42, (%s - gated_mix__spectral_fnet__glu_gated_glu__prompt_kernel)" % lab)
        e("s_subb_u32 s43, s43, 0")
        e("s_lshr_b32 s41, s2, 3")
        e("s_sub_u32 s41, s41, 28")
        e("s_lshl_b32 s41, s41, 2")
        e("s_add_u32 s41, s41, s%d" % S_WAVE)
        e("s_mul_i32 s41, s41, 16")
        e("v_and_b32 v9, 15, v%d" % V_LANE)
        e("v_add_u32 v8, s41, v9")
        e("v_lshlrev_b32 v8, 7, v8")
        e("v_min_u32 v8, (KF_CODE_END - gated_mix__spectral_fnet__glu_gated_glu__prompt_kernel - 4), v8")
        e("v_mov_b32 v9, s43")
        e("v_add_co_u32 v8, vcc, s42, v8")
        e("s_nop 1")
        e("v_addc_co_u32 v9, vcc, 0, v9, vcc")
        e("global_load_dword v3, v[8:9], off")
    e("s_barrier")
    stamp(e, cfg, 1)
    for tag, txt in p1_reads(0, is_h):
        e(txt); e.lg_issue(tag)
    for kap in range(28):
        base = FR + 24 * (kap & 1)
        nxt = p1_reads(kap + 1, is_h) if kap + 1 < 28 else []
        for n in range(8):
            nb = n >> 1; m = n & 1
            e.lg_wait([("W", kap, m), ("X", kap, nb)])
            d = accA(nb) if m == 0 else accB(nb)
            W = base + 16 + 4 * m; X = base + 4 * nb
            c = "0" if kap == 0 else None
            if "no32" in cfg.x:
                for hh in range(2):
                    e("v_mfma_f32_16x16x32_bf16 %s, %s, %s, %s" % (vr(d + 8 * hh, 4), vr(W, 4), vr(X, 4), vr(d + 8 * hh, 4)))
            elif "nomfma" not in cfg.x:
                if is_h: mfma(e, d, W, X, c)
                else: mfma(e, d, X, W, c)
            if nxt and n < len(nxt):
                tag, txt = nxt[n]
                if "nolds" in cfg.x: e.lg_issue(tag); e.lg.pop()
                else:
                    e(txt); e.lg_issue(tag)
        if (not is_h) and kap == 5:
            e("s_waitcnt vmcnt(0)"); e.vm = []
        if (kap & 1) and kap < 27:
            e("s_barrier")
        if (not is_h) and kap == 5:
            lab = e.newlabel("GF")
            e("s_cmp_lg_u32 s%d, 0" % S_WAVE)
            e("s_cbranch_scc1 %s" % lab)
            nonce_finish_any(e, keepvm=True)
            e("s_add_u32 s%d, s%d, 128" % (S_FLAG, S_FLAG))
            flag_store(e)
            e("s_sub_u32 s%d, s%d, 128" % (S_FLAG, S_FLAG))
            e.label(lab)
        if cfg.fused and kap == 21:
            nonce_load(e)
    assert not e.lg
    if cfg.fused and is_h:
        e("s_barrier")
    if cfg.fused:
        nonce_finish(e)
    stamp(e, cfg, 2)

def h_epilogue(e, cfg):
    sc = " sc1" if cfg.fused else ""
    e("s_lshl_b32 s41, s%d, 1" % S_R)
    e("s_mul_i32 s41, s41, 112")
    e("s_lshl_b32 s42, s%d, 2" % S_FB)
    e("s_add_u32 s42, s42, s%d" % S_WF)
    e("s_lshl_b32 s42, s42, 1")
    e("s_add_u32 s41, s41, s42")
    e("s_lshl_b32 s41, s41, 11")
    e("v_lshlrev_b32 v26, 4, v%d" % V_LANE)
    e("v_add_u32 v26, s41, v26")
    e("v_add_u32 v27, 0x%x, v26" % (112 * 2048))
    e("s_mov_b32 s42, 0x%08x" % f2u(-LOG2E))
    e("s_mov_b32 s43, s42")
    e("s_mov_b32 s44, 1.0")
    e("s_mov_b32 s45, 1.0")
    e("s_nop 7")
    grp = 0
    for nb in range(4):
        for hf in range(2):
            outb = FR + 4 * (grp % 8); grp += 1
            A = accA(nb) + 8 * hf; B = accB(nb) + 8 * hf
            for q in range(0, 8, 2):
                e("v_pk_mul_f32 %s, %s, s[42:43]" % (vr(A + q, 2), vr(A + q, 2)))
            for q in range(8):
                e("v_exp_f32 v%d, v%d" % (A + q, A + q))
            for q in range(0, 8, 2):
                e("v_pk_add_f32 %s, %s, s[44:45]" % (vr(A + q, 2), vr(A + q, 2)))
            for q in range(8):
                e("v_rcp_f32 v%d, v%d" % (A + q, A + q))
            for q in range(0, 8, 2):
                e("v_pk_mul_f32 %s, %s, %s" % (vr(A + q, 2), vr(A + q, 2), vr(B + q, 2)))
            for q2 in range(4):
                e("v_cvt_pk_bf16_f32 v%d, v%d, v%d" % (outb + q2, A + 2 * q2, A + 2 * q2 + 1))
            e("buffer_store_dwordx4 %s, v%d, s[%d:%d], 0 offen offset:%d%s" % (vr(outb, 4), 26 + (nb >> 1), S_WS, S_WS + 3, hf * 2048 + (nb & 1) * 1024, sc))
            e.vm_issue("hst")

def d_epilogue(e, cfg):
    sc = " sc1" if cfg.fused else ""
    L = V_LANE
    ZB = [192, 208, 224, 240]
    e("s_nop 7"); e("s_nop 3")
    for sb in range(4):
        for hf in range(2):
            for pr in range(4):
                q = 8 * hf + 2 * pr
                e("v_cvt_pk_bf16_f32 v%d, v%d, v%d" % (ZB[sb] + 4 * hf + pr, accA(sb) + q, accA(sb) + q + 1))
                e("v_cvt_pk_bf16_f32 v%d, v%d, v%d" % (ZB[sb] + 8 + 4 * hf + pr, accB(sb) + q, accB(sb) + q + 1))
    e("s_barrier")
    e("v_lshlrev_b32 v2, 4, v%d" % L)
    def cread(sb):
        b = 10 + 24 * (sb & 1)
        for k in range(6):
            e("ds_read_b128 %s, v2 offset:%d" % (vr(b + 4 * k, 4), CONST_LDS + (sb * 6 + k) * 1024))
            e.lg_issue(("c", sb, k))
    cread(0); cread(1)
    for sb in range(4):
        b = 10 + 24 * (sb & 1)
        C0, C1, S0, S1, N0, N1 = [b + 4 * k for k in range(6)]
        ZR0, ZR1, ZI0, ZI1 = ZB[sb], ZB[sb] + 4, ZB[sb] + 8, ZB[sb] + 12
        e.lg_wait([("c", sb, k) for k in range(6)])
        mfma(e, accA(sb), C0, ZR0, "0")
        mfma(e, accB(sb), C0, ZI0, "0")
        mfma(e, accA(sb), C1, ZR1)
        mfma(e, accB(sb), C1, ZI1)
        mfma(e, accA(sb), S0, ZI0)
        mfma(e, accB(sb), N0, ZR0)
        mfma(e, accA(sb), S1, ZI1)
        mfma(e, accB(sb), N1, ZR1)
        if sb + 2 < 4:
            cread(sb + 2)
    e("s_lshl_b32 s41, s%d, 8" % S_QG)
    e("s_lshl_b32 s42, s%d, 7" % S_EH)
    e("s_add_u32 s41, s41, s42")
    e("s_lshl_b32 s42, s%d, 5" % S_WF)
    e("s_add_u32 s41, s41, s42")
    e("s_lshl_b32 s41, s41, 4")
    e("s_add_u32 s41, s41, 0x%x" % UBUF)
    e("v_and_b32 v3, 31, v%d" % L)
    e("v_lshlrev_b32 v3, 4, v3")
    e("v_lshrrev_b32 v4, 5, v%d" % L)
    e("v_lshlrev_b32 v4, 18, v4")
    e("v_add3_u32 v3, v3, v4, s41")
    e("s_nop 7"); e("s_nop 3")
    for q in range(16):
        i, jj = q >> 2, q & 3
        pk = 192 + 4 * (q % 8)
        for sb in range(4):
            e("v_cvt_pk_bf16_f32 v%d, v%d, v%d" % (pk + sb, accA(sb) + q, accB(sb) + q))
        e("s_mov_b32 s%d, 0x%x" % (S_OFF, (8 * i + jj) * 65536))
        e("buffer_store_dwordx4 %s, v3, s[%d:%d], s%d offen%s" % (vr(pk, 4), S_WS, S_WS + 3, S_OFF, sc))
        e.vm_issue("ust")

def p1_loader(e, cfg, is_h):
    L = V_LANE; T = 26
    VX = 10
    VW = 14
    e("v_lshrrev_b32 v%d, 3, v%d" % (T, L))
    e("s_lshl_b32 s41, s%d, 5" % S_LW)
    e("v_add_u32 v%d, s41, v%d" % (T, T))
    e("v_and_b32 v%d, 7, v%d" % (T + 1, L))
    e("v_lshrrev_b32 v%d, 4, v%d" % (T + 2, L))
    e("s_movk_i32 s42, 896")
    for i in range(4):
        if i: e("v_add_u32 v%d, 8, v%d" % (T, T))
        e("v_add_u32 v%d, %d, v%d" % (T + 3, (4 * i) & 7, T + 2))
        e("v_and_b32 v%d, 7, v%d" % (T + 3, T + 3))
        e("v_xor_b32 v%d, v%d, v%d" % (T + 3, T + 3, T + 1))
        e("v_lshlrev_b32 v%d, 4, v%d" % (T + 3, T + 3))
        if is_h:
            e("v_lshrrev_b32 v%d, 6, v%d" % (T + 4, T))
            e("v_and_b32 v%d, 63, v%d" % (T + 5, T))
            e("v_lshlrev_b32 v%d, 5, v%d" % (T + 5, T + 5))
            e("s_lshl_b32 s41, s%d, 1" % S_R)
            e("v_add3_u32 v%d, v%d, v%d, s41" % (T + 4, T + 4, T + 5))
        else:
            e("v_and_b32 v%d, 31, v%d" % (T + 4, T))
            e("v_lshlrev_b32 v%d, 6, v%d" % (T + 4, T + 4))
            e("v_lshrrev_b32 v%d, 5, v%d" % (T + 5, T))
            e("s_lshl_b32 s41, s%d, 2" % S_QG)
            e("v_add3_u32 v%d, v%d, v%d, s41" % (T + 4, T + 4, T + 5))
        e("v_mul_lo_u32 v%d, v%d, s42" % (T + 4, T + 4))
        e("v_add_u32 v%d, v%d, v%d" % (VX + i, T + 4, T + 3))
        if not is_h:
            e("s_lshl_b32 s41, s%d, 7" % S_EH)
            e("v_add_u32 v%d, s41, v%d" % (T + 4, T))
            e("v_mul_lo_u32 v%d, v%d, s42" % (T + 4, T + 4))
            e("v_add_u32 v%d, v%d, v%d" % (VW + i, T + 4, T + 3))
    if is_h:
        e("s_lshl_b32 s41, s%d, 3" % S_LW)
        e("v_add_u32 v%d, s41, v%d" % (T + 3, T + 2))
        e("s_movk_i32 s42, 3584")
        e("v_mul_lo_u32 v%d, v%d, s42" % (T + 3, T + 3))
        e("v_bfe_u32 v%d, v%d, 2, 2" % (T + 4, L))
        e("v_xor_b32 v%d, v%d, v%d" % (T + 4, T + 4, T + 2))
        e("v_lshlrev_b32 v%d, 6, v%d" % (T + 4, T + 4))
        e("v_and_b32 v%d, 3, v%d" % (T + 5, L))
        e("v_lshlrev_b32 v%d, 4, v%d" % (T + 5, T + 5))
        e("v_add3_u32 v%d, v%d, v%d, v%d" % (T + 3, T + 3, T + 4, T + 5))
        e("s_lshl_b32 s41, s%d, 8" % S_FB)
        e("v_add_u32 v%d, s41, v%d" % (VW, T + 3))
        e("v_add_u32 v%d, %d, v%d" % (VW + 1, 4 * 3584, VW))
        e("s_lshl_b32 s%d, s%d, 11" % (S_LDSW, S_LW))
    else:
        e("s_lshl_b32 s%d, s%d, 12" % (S_LDSW, S_LW))
    e("s_lshl_b32 s%d, s%d, 12" % (S_LDSX, S_LW))
    e("s_waitcnt lgkmcnt(0)")
    srd(e, S_X, 44, 1835008)
    if is_h:
        srd(e, S_WA, 52, 1605632); srd(e, S_WB, 54, 1605632)
    else:
        srd(e, S_WA, 48, 401408); srd(e, S_WB, 50, 401408)
    srd(e, S_WS, 74, WS_BYTES)
    srd(e, S_GW, 58, 896)
    srd(e, S_WD, 56, 1605632)
    stamp(e, cfg, 0)
    DROT = (not is_h) and ("nodrot" not in cfg.x)
    if DROT:
        e("s_mul_i32 s7, s%d, 3" % S_EH)
        e("s_mul_i32 s6, s%d, %d" % (S_QG, RMUL[0]))
        e("s_add_u32 s6, s6, s7")
        e("s_mul_i32 s7, s6, 37")
        e("s_lshr_b32 s7, s7, 8")
        e("s_mul_i32 s7, s7, 7")
        e("s_sub_u32 s6, s6, s7")
        e("s_mov_b32 s7, s6")
    def dx(c):
        if DROT:
            e("s_lshl_b32 s%d, s6, 7" % S_OFF)
            for i in range(4): dma(e, S_X, VX + i, (c % NX) * XSLOT + i * 1024, S_LDSX, None, ("x", c))
            rot_next(e, 6, 7)
        else:
            for i in range(4): dma(e, S_X, VX + i, (c % NX) * XSLOT + i * 1024, S_LDSX, c * 128, ("x", c))
    def dw(j):
        if is_h:
            for m in range(2):
                for i in range(2):
                    dma(e, S_WA if m == 0 else S_WB, VW + i, WBASE + (j % NW) * WSLOT + m * 8192 + i * 1024, S_LDSW, j * 32 * 3584, ("w", j))
        else:
            c = j
            if DROT: e("s_lshl_b32 s%d, s7, 7" % S_OFF)
            for m in range(2):
                for i in range(4):
                    dma(e, S_WA if m == 0 else S_WB, VW + i, WBASE + (c % 3) * 32768 + m * 16384 + i * 1024, S_LDSW, None if DROT else c * 128, ("w", c))
            if DROT: rot_next(e, 7, 7)
    q = []
    if is_h:
        for j in range(14):
            if j % 2 == 0:
                c = j // 2
                q.append(("x", c, -1 if c < NX else 2 * (c - NX + 1)))
            q.append(("w", j, -1 if j < NW else j - NW + 1))
    else:
        for c in range(7):
            q.append(("x", c, -1 if c < NX else 2 * (c - NX + 1)))
            q.append(("w", c, -1 if c < 3 else 2 * (c - 3 + 1)))
    def cost(it): return 4 if (it[0] == "x" or is_h) else 8
    def issue(it):
        (dx if it[0] == "x" else dw)(it[1])
    def need(j):
        t = []
        for jj in (j, j + 1):
            if jj <= 13:
                t.append(("x", jj >> 1)); t.append(("w", jj if is_h else jj >> 1))
        return t
    issued = set()
    def ensure(tags):
        while q and any(t not in issued for t in tags):
            it = q.pop(0); assert it[2] <= curbar[0], (it, curbar)
            issue(it); issued.add((it[0], it[1]))
    curbar = [-1]
    ensure(need(0))
    budget0 = cfg.pro_extra
    while q and budget0 > 0 and q[0][2] <= -1:
        it = q.pop(0); issue(it); issued.add((it[0], it[1])); budget0 -= cost(it)
    e.vm_wait(need(0))
    e("s_barrier")
    stamp(e, cfg, 1)
    if "nodma" in cfg.x: NODMA[0] = True
    for j in range(13):
        curbar[0] = j
        ensure(need(j + 1))
        budget = cfg.stage_budget
        while q and budget > 0 and q[0][2] <= j:
            it = q.pop(0); issue(it); issued.add((it[0], it[1])); budget -= cost(it)
        if j == cfg.pfWd_j and not is_h and "pf1" in cfg.x:
            e("s_lshl_b32 s41, s%d, 1" % S_QG)
            e("s_add_u32 s41, s41, s%d" % S_EH)
            e("s_lshl_b32 s41, s41, 2")
            e("s_add_u32 s41, s41, s%d" % S_LW)
            e("s_mul_i32 s41, s41, 98")
            e("v_add_u32 v100, s41, v%d" % V_LANE)
            e("v_lshlrev_b32 v100, 7, v100")
            e("buffer_load_dword v101, v100, s[%d:%d], 0 offen" % (S_WD, S_WD + 3)); e.vm_issue(("pf", 0))
            e("v_add_u32 v100, %d, v100" % (64 * 128))
            e("v_cmp_gt_u32 vcc, 34, v%d" % V_LANE)
            e("v_mov_b32 v102, 0x7fffffff")
            e("s_nop 0")
            e("v_cndmask_b32 v100, v102, v100, vcc")
            e("buffer_load_dword v103, v100, s[%d:%d], 0 offen" % (S_WD, S_WD + 3)); e.vm_issue(("pf", 1))
        if j == cfg.pfWd_j and not is_h and "pfWd" in cfg.x:
            e("s_lshr_b32 s41, s2, 3")
            e("s_sub_u32 s41, s41, 28")
            e("s_lshl_b32 s41, s41, 2")
            e("s_add_u32 s41, s41, s%d" % S_LW)
            e("s_mul_i32 s41, s41, 784")
            e("v_add_u32 v100, s41, v%d" % V_LANE)
            e("v_lshlrev_b32 v100, 7, v100")
            for t in range(13):
                e("s_mov_b32 s%d, %d" % (S_OFF, t * 8192))
                e("buffer_load_dword v%d, v100, s[%d:%d], s%d offen" % (101 + t, S_WD, S_WD + 3, S_OFF))
                e.vm_issue(("pf", t))
        if j == cfg.pfW_j and not is_h and "pfW" in cfg.x:
            e("s_lshr_b32 s41, s2, 3")
            e("s_sub_u32 s41, s41, 28")
            e("s_lshl_b32 s41, s41, 2")
            e("s_add_u32 s41, s41, s%d" % S_LW)
            e("s_mul_i32 s41, s41, 196")
            e("v_add_u32 v100, s41, v%d" % V_LANE)
            e("s_mov_b32 s42, 0x24924925")
            e("s_and_b32 s43, s2, 1")
            e("s_mul_i32 s43, s43, 896")
            e("s_add_u32 s43, s43, 1792")
            for t in range(4):
                e("v_add_u32 v101, %d, v100" % (64 * t))
                e("v_mul_hi_u32 v102, v101, s42")
                e("v_mul_u32_u24 v103, 7, v102")
                e("v_sub_u32 v103, v101, v103")
                e("v_mul_u32_u24 v102, 3584, v102")
                e("v_lshlrev_b32 v103, 7, v103")
                e("v_add3_u32 v%d, v102, v103, s43" % (104 + t))
            srd(e, S_GW, 52, 1605632)
            for t in range(4):
                e("buffer_load_dword v%d, v%d, s[%d:%d], 0 offen" % (110 + t, 104 + t, S_GW, S_GW + 3)); e.vm_issue(("pf", t))
            srd(e, S_GW, 54, 1605632)
            e("s_nop 0")
            for t in range(4):
                e("buffer_load_dword v%d, v%d, s[%d:%d], 0 offen" % (114 + t, 104 + t, S_GW, S_GW + 3)); e.vm_issue(("pf", t))
        if j == 9 and not is_h: dft_consts(e, cfg)
        if j == 7 and is_h:
            gate_issue(e, cfg, True)
            lab = e.newlabel("GX")
            e("s_cmp_ge_u32 s%d, 2" % S_FB)
            e("s_cbranch_scc1 %s" % lab)
            sv = list(e.vm)
            gate_issue(e, cfg, True, True)
            e.vm = sv
            e.label(lab)
        if j == 10 and is_h:
            e("s_waitcnt vmcnt(0)"); e.vm = []
            gate_finish(e, cfg)
            lab = e.newlabel("GY")
            e("s_cmp_ge_u32 s%d, 2" % S_FB)
            e("s_cbranch_scc1 %s" % lab)
            gate_finish(e, cfg, True)
            e.label(lab)
        if j == 11 and cfg.fused:
            e("s_waitcnt vmcnt(0)"); e.vm = []
        e.vm_wait(need(j + 1))
        e("s_barrier")
    assert not q
    NODMA[0] = False
    stamp(e, cfg, 2)
    if not is_h:
        e("v_lshlrev_b32 v2, 4, v%d" % L)
        e("s_mul_i32 s41, s%d, 6144" % S_LW)
        e("v_add_u32 v2, s41, v2")
        for k in range(6):
            e("ds_write_b128 v2, %s offset:%d" % (vr(64 + 4 * k, 4), CONST_LDS + k * 1024))
        e("s_waitcnt lgkmcnt(0)")
        e("s_barrier")

def gate_issue(e, cfg, is_h, extra=False):
    B = 40 if extra else 48
    e("s_lshl_b32 s41, s%d, 3" % S_FB)
    if extra: e("s_add_u32 s41, s41, 112")
    e("s_lshl_b32 s42, s%d, 1" % S_LW)
    e("s_add_u32 s41, s41, s42")
    e("s_lshl_b32 s78, s%d, 7" % S_R)
    e("s_add_u32 s%d, s78, s41" % (63 if extra else 62))
    e("v_lshlrev_b32 v38, 4, v%d" % V_LANE)
    e("v_cmp_gt_u32 vcc, 56, v%d" % V_LANE)
    e("v_mov_b32 v37, 0x7fffffff")
    for u in range(2):
        e("s_add_u32 s78, s41, %d" % u)
        e("s_lshr_b32 s43, s78, 6")
        e("s_lshl_b32 s79, s%d, 1" % S_R)
        e("s_add_u32 s43, s43, s79")
        e("s_and_b32 s78, s78, 63")
        e("s_lshl_b32 s78, s78, 5")
        e("s_add_u32 s43, s43, s78")
        e("s_mul_i32 s43, s43, 896")
        if extra:
            e("s_cmp_ge_u32 s%d, 2" % S_FB)
            e("s_cselect_b32 s43, 0x40000000, s43")
        e("v_add_u32 v39, s43, v38")
        e("v_cndmask_b32 v39, v37, v39, vcc")
        e("buffer_load_dwordx4 %s, v39, s[%d:%d], 0 offen" % (vr(B + 4 * u, 4), S_X, S_X + 3))
        e.vm_issue("gate")
    if not extra:
        e("buffer_load_dwordx4 v[56:59], v38, s[%d:%d], 0 offen" % (S_GW, S_GW + 3))
        e.vm_issue("gate")

def gate_finish(e, cfg, extra=False):
    B = 40 if extra else 48
    e.vm_wait(["gate"])
    for u in range(2):
        e("v_mov_b32 v%d, 0" % (60 + u))
    for i in range(4):
        for u in range(2):
            e("v_dot2_f32_bf16 v%d, v%d, v%d, v%d" % (60 + u, B + 4 * u + i, 56 + i, 60 + u))
    e("s_nop 2")
    for sh in ("row_shr:1", "row_shr:2", "row_shr:4", "row_shr:8"):
        for u in range(2):
            e("v_add_f32_dpp v%d, v%d, v%d %s row_mask:0xf bank_mask:0xf bound_ctrl:0" % (60 + u, 60 + u, 60 + u, sh))
        e("s_nop 0")
    for u in range(2):
        e("v_add_f32_dpp v%d, v%d, v%d row_bcast:15 row_mask:0xa bank_mask:0xf" % (60 + u, 60 + u, 60 + u))
    e("s_nop 0")
    for u in range(2):
        e("v_add_f32_dpp v%d, v%d, v%d row_bcast:31 row_mask:0xc bank_mask:0xf" % (60 + u, 60 + u, 60 + u))
    e("s_nop 0")
    e("v_readlane_b32 s41, v60, 63")
    e("v_readlane_b32 s42, v61, 63")
    e("s_nop 1")
    e("v_mov_b32 v60, s41")
    e("v_mov_b32 v61, s42")
    e("v_cmp_eq_u32 vcc, 1, v%d" % V_LANE)
    e("s_nop 1")
    e("v_cndmask_b32 v60, v60, v61, vcc")
    e("v_mul_f32 v60, 0x%08x, v60" % f2u(-LOG2E))
    e("v_exp_f32 v60, v60")
    e("s_nop 0")
    e("v_add_f32 v60, 1.0, v60")
    e("v_rcp_f32 v60, v60")
    e("s_lshl_b32 s5, s%d, 2" % (63 if extra else 62))
    e("s_add_u32 s5, s5, 0x%x" % GBUF)
    if extra:
        e("s_cmp_ge_u32 s%d, 2" % S_FB)
        e("s_cselect_b32 s5, 0x40000000, s5")
    e("v_lshlrev_b32 v62, 2, v%d" % V_LANE)
    e("v_add_u32 v62, s5, v62")
    e("v_cmp_gt_u32 vcc, 2, v%d" % V_LANE)
    e("v_mov_b32 v37, 0x7fffffff")
    e("s_nop 0")
    e("v_cndmask_b32 v62, v37, v62, vcc")
    e("buffer_store_dword v60, v62, s[%d:%d], 0 offen%s" % (S_WS, S_WS + 3, " sc1" if cfg.fused else ""))
    e.vm_issue("gst")


def gate4_issue(e):
    L = V_LANE
    e("s_lshl_b32 s41, s%d, 1" % S_QG)
    e("s_add_u32 s41, s41, s%d" % S_EH)
    e("s_lshl_b32 s5, s41, 6")
    e("s_lshl_b32 s42, s%d, 4" % S_LW)
    e("s_add_u32 s5, s5, s42")
    e("v_and_b32 v104, 15, v%d" % L)
    e("v_lshrrev_b32 v105, 4, v%d" % L)
    e("v_lshlrev_b32 v106, 4, v104")
    e("v_cmp_gt_u32 vcc, 14, v104")
    e("v_mov_b32 v107, 0x7fffffff")
    e("s_nop 0")
    e("v_cndmask_b32 v106, v107, v106, vcc")
    for q in range(4):
        e("buffer_load_dwordx4 %s, v106, s[%d:%d], 0 offen offset:%d" % (vr(184 + 4 * q, 4), S_GW, S_GW + 3, 224 * q))
        e.vm_issue("gate")
    e("s_lshl_b32 s42, s%d, 9" % S_LW)
    e("s_add_u32 s42, s42, s41")
    e("s_mul_i32 s42, s42, 896")
    e("v_mul_u32_u24 v108, 28672, v105")
    e("v_add_u32 v108, s42, v108")
    e("v_add_u32 v108, v108, v106")
    e("v_cndmask_b32 v108, v107, v108, vcc")
    for p in range(4):
        e("s_mov_b32 s%d, %d" % (S_OFF, p * 4 * 28672))
        for q in range(4):
            e("buffer_load_dwordx4 %s, v108, s[%d:%d], s%d offen offset:%d" % (vr(120 + 16 * p + 4 * q, 4), S_X, S_X + 3, S_OFF, 224 * q))
            e.vm_issue("gate")

def gate4_pass(e, p):
    L = V_LANE
    e.vm_wait(["gate"])
    e("v_mov_b32 v109, 0")
    for q in range(16):
        e("v_dot2_f32_bf16 v109, v%d, v%d, v109" % (120 + 16 * p + q, 184 + q))
    e("s_nop 2")
    for sh in ("row_shr:1", "row_shr:2", "row_shr:4", "row_shr:8"):
        e("v_add_f32_dpp v109, v109, v109 %s row_mask:0xf bank_mask:0xf bound_ctrl:0" % sh)
        e("s_nop 1")
    e("v_mul_f32 v109, 0x%08x, v109" % f2u(-LOG2E))
    e("v_exp_f32 v109, v109")
    e("s_nop 0")
    e("v_add_f32 v109, 1.0, v109")
    e("v_rcp_f32 v109, v109")
    e("v_add_u32 v110, s5, v105")
    e("v_add_u32 v110, %d, v110" % (4 * p))
    e("v_lshlrev_b32 v110, 2, v110")
    e("v_add_u32 v110, 0x%x, v110" % GBUF)
    e("v_cmp_eq_u32 vcc, 15, v104")
    e("s_nop 1")
    e("v_cndmask_b32 v110, v107, v110, vcc")
    e("buffer_store_dword v109, v110, s[%d:%d], 0 offen sc1" % (S_WS, S_WS + 3))
    e.vm_issue("gst")

def dft_consts(e, cfg):
    L = V_LANE
    e("v_and_b32 v26, 31, v%d" % L)
    e("v_lshrrev_b32 v27, 5, v%d" % L)
    e("v_lshlrev_b32 v27, 8, v27")
    e("s_lshl_b32 s41, s%d, 2" % S_QG)
    e("s_add_u32 s41, s41, s%d" % S_LW)
    e("v_add_u32 v27, s41, v27")
    e("s_mov_b32 s42, 0x%08x" % f2u(1.0 / 2048))
    for hf in range(2):
        for pr in range(4):
            for u in range(2):
                idx = 2 * pr + u
                s1c = 16 * hf + 8 * (idx >> 2) + (idx & 3)
                e("v_add_u32 v28, %d, v27" % (64 * s1c))
                e("v_mul_u32_u24 v28, v28, v26")
                e("v_and_b32 v28, 0x7ff, v28")
                e("v_cvt_f32_u32 v28, v28")
                e("v_mul_f32 v28, s42, v28")
                e("v_cos_f32 v%d, v28" % (30 + u))
                e("v_sin_f32 v%d, v28" % (32 + u))
            e("s_nop 0")
            e("v_cvt_pk_bf16_f32 v%d, v30, v31" % (64 + 4 * hf + pr))
            e("v_cvt_pk_bf16_f32 v%d, v32, v33" % (72 + 4 * hf + pr))
            e("v_xor_b32 v%d, 0x80008000, v%d" % (80 + 4 * hf + pr, 72 + 4 * hf + pr))

def entry_common(e):
    e("v_and_b32 v%d, 63, v0" % V_LANE)
    e("v_lshrrev_b32 v2, 6, v0")
    e("s_nop 0")
    e("v_readfirstlane_b32 s%d, v2" % S_WAVE)
    e("s_nop 3")

def phase1(e, cfg, after_h_consumer, after_h_loader, after_d):
    e("s_and_b32 s%d, s%d, 3" % (S_WF, S_WAVE))
    e("s_and_b32 s%d, s%d, 3" % (S_LW, S_WAVE))
    e("s_and_b32 s41, s2, 7")
    e("s_lshr_b32 s42, s2, 3")
    e("s_cmp_ge_u32 s42, 28")
    e("s_cbranch_scc1 P1_DFT")
    e("s_mul_i32 s43, s42, 37")
    e("s_lshr_b32 s43, s43, 8")
    e("s_mul_i32 s76, s43, 7")
    e("s_sub_u32 s76, s42, s76")
    e("s_lshr_b32 s77, s41, 1")
    e("s_lshl_b32 s77, s77, 2")
    e("s_add_u32 s%d, s77, s43" % S_R)
    e("s_and_b32 s77, s41, 1")
    e("s_mul_i32 s77, s77, 7")
    e("s_add_u32 s%d, s77, s76" % S_FB)
    e("s_cmp_lt_u32 s%d, 4" % S_WAVE)
    e("s_cbranch_scc1 P1_H_CONSUMER")
    e.vm = []; e.lg = []
    STG[0] = True
    h2_loader(e, cfg)
    q_loader_A(e, cfg)
    STG[0] = False
    stamp_store(e, cfg, 0)
    e("s_endpgm")
    e.label("P1_H_CONSUMER")
    e.vm = []; e.lg = []
    h2_consumer(e, cfg)
    q_consumer_B(e, cfg)
    stamp_store(e, cfg, 0)
    e("s_endpgm")
    e.label("P1_DFT")
    e("s_sub_u32 s42, s42, 28")
    e("s_and_b32 s%d, s41, 1" % S_EH)
    e("s_lshr_b32 s77, s41, 1")
    e("s_lshl_b32 s77, s77, 2")
    e("s_add_u32 s%d, s77, s42" % S_QG)
    e("s_cmp_ge_u32 s%d, 4" % S_WAVE)
    e("s_cbranch_scc1 P1_D_LOADER")
    e.vm = []; e.lg = []
    p1_consumer(e, cfg, False)
    d_epilogue(e, cfg)
    stamp(e, cfg, 3)
    after_d(True)
    e.label("P1_D_LOADER")
    e.vm = []; e.lg = []
    p1_loader(e, cfg, False)
    stamp(e, cfg, 3)
    after_d(False)

P2_ACC = 64
P2_H = 96
P2_A = 208
P2_U = 224
P2_T = 240
SLICE = 40960
KSL, NB = 60, 61

def p2_setup(e, cfg):
    L = V_LANE
    e("s_and_b32 s%d, s%d, 3" % (KSL, S_WAVE))
    e("s_lshr_b32 s%d, s%d, 2" % (NB, S_WAVE))
    e("v_lshrrev_b32 v2, 3, v%d" % L)
    e("v_bfe_u32 v3, v%d, 4, 1" % L)
    e("v_lshlrev_b32 v3, 2, v3")
    e("v_and_b32 v4, 7, v%d" % L)
    e("v_xor_b32 v3, v3, v4")
    e("v_lshlrev_b32 v3, 4, v3")
    e("s_mul_i32 s41, s%d, 448" % KSL)
    e("s_lshl_b32 s42, s%d, 3" % NB)
    e("s_add_u32 s41, s41, s42")
    e("v_add_u32 v2, s41, v2")
    e("s_movk_i32 s42, 896")
    e("v_mul_lo_u32 v2, v2, s42")
    e("s_lshl_b32 s41, s%d, 7" % S_C)
    e("v_add3_u32 v10, v2, v3, s41")
    e("s_mul_i32 s62, s%d, %d" % (KSL, SLICE))
    e("s_lshl_b32 s41, s%d, 10" % NB)
    e("s_add_u32 s62, s62, s41")
    e("v_and_b32 v2, 15, v%d" % L)
    e("v_lshrrev_b32 v3, 2, v2")
    e("v_lshrrev_b32 v4, 5, v%d" % L)
    e("v_lshlrev_b32 v5, 2, v4")
    e("v_add_u32 v5, v5, v3")
    e("v_lshlrev_b32 v5, 7, v5")
    e("v_bfe_u32 v6, v2, 3, 1")
    e("v_lshlrev_b32 v6, 6, v6")
    e("v_bfe_u32 v7, v%d, 4, 1" % L)
    e("v_lshlrev_b32 v7, 5, v7")
    e("v_and_b32 v8, 3, v2")
    e("v_lshlrev_b32 v8, 3, v8")
    e("v_add3_u32 v5, v5, v6, v7")
    e("v_add_u32 v5, v5, v8")
    e("s_mul_i32 s41, s%d, %d" % (KSL, SLICE))
    e("v_add_u32 v11, s41, v5")
    e("v_xor_b32 v12, 64, v11")
    e("s_mul_i32 s41, s%d, 112" % S_T1)
    e("s_mul_i32 s42, s%d, 28" % KSL)
    e("s_add_u32 s41, s41, s42")
    e("s_lshl_b32 s41, s41, 1")
    e("s_add_u32 s41, s41, s%d" % NB)
    e("s_lshl_b32 s41, s41, 10")
    e("v_lshlrev_b32 v13, 4, v%d" % L)
    e("v_add_u32 v13, s41, v13")
    e("v_and_b32 v14, 31, v%d" % L)
    e("s_cmp_ge_u32 s%d, 4" % S_C)
    e("s_cselect_b32 s63, 1, 0")
    e("s_sub_u32 s64, 32, s%d" % S_T1)
    e("s_and_b32 s64, s64, 31")
    e("s_cmp_eq_u32 s63, 1")
    e("s_cselect_b32 s64, s64, s%d" % S_T1)
    e("v_lshrrev_b32 v4, 5, v%d" % L)
    e("s_lshl_b32 s41, s%d, 6" % S_C)
    e("s_cmp_eq_u32 s63, 1")
    e("s_cselect_b64 vcc, -1, 0")
    for mb in range(2):
        e("v_add_u32 v2, s41, v14")
        if mb: e("v_add_u32 v2, 32, v2")
        e("v_sub_u32 v3, 448, v2")
        e("v_cndmask_b32 v2, v2, v3, vcc")
        e("v_lshlrev_b32 v2, 4, v2")
        e("v_lshlrev_b32 v3, 12, v4")
        e("v_add_u32 v%d, v2, v3" % (16 + mb))
    e("s_lshl_b32 s41, s64, 4")
    e("s_lshl_b32 s42, s%d, 2" % KSL)
    e("s_add_u32 s41, s41, s42")
    e("s_lshl_b32 s41, s41, 12")
    e("s_add_u32 s65, s41, 0x%x" % UBUF)
    e("s_lshl_b32 s41, s%d, 6" % S_T1)
    e("s_lshl_b32 s42, s%d, 5" % NB)
    e("s_add_u32 s41, s41, s42")
    e("v_add_u32 v2, s41, v14")
    e("v_lshlrev_b32 v2, 2, v2")
    e("v_add_u32 v20, 0x%x, v2" % GBUF)

def p2_dma_wd(e, kk):
    st = kk >> 2
    pos = (st % 5) * 4 + (kk & 3)
    dma(e, S_WD, 10, pos * 2048, 62, kk * 16 * 896, ("wd", st))
def p2_load_h(e, cfg, kk):
    sc = " sc1" if cfg.fused else ""
    e("s_mov_b32 s%d, 0x%x" % (S_OFF, kk * 2048))
    e("buffer_load_dwordx4 %s, v13, s[%d:%d], s%d offen%s" % (vr(P2_H + 4 * kk, 4), S_WS, S_WS + 3, S_OFF, sc))
    e.vm_issue(("h", kk))
def p2_load_g(e, cfg):
    sc = " sc1" if cfg.fused else ""
    e("buffer_load_dword v15, v20, s[%d:%d], 0 offen%s" % (S_WS, S_WS + 3, sc))
    e.vm_issue("g")
def p2_load_u(e, cfg):
    sc = " sc1" if cfg.fused else ""
    for u in range(2):
        for mb in range(2):
            e("s_add_u32 s%d, s65, %d" % (S_OFF, u * 2 * 4096))
            e("buffer_load_dwordx4 %s, v%d, s[%d:%d], s%d offen%s" % (vr(P2_U + 8 * u + 4 * mb, 4), 16 + mb, S_WS, S_WS + 3, S_OFF, sc))
            e.vm_issue("u")
def p2_tfrags(e, cfg):
    L = V_LANE
    e.vm_wait(["g"])
    e("s_cmp_lg_u32 s%d, 0" % S_T1)
    e("s_cselect_b32 s41, s63, 0")
    e("s_lshl_b32 s42, s%d, 5" % NB)
    e("s_add_u32 s41, s41, s42")
    e("v_add_u32 v2, s41, v14")
    e("v_lshrrev_b32 v4, 5, v%d" % L)
    e("v_lshlrev_b32 v4, 2, v4")
    e("s_lshl_b32 s41, s63, 31")
    e("v_xor_b32 v21, s41, v15")
    e("s_mov_b32 s42, 0x%08x" % f2u(1.0 / 64))
    e("s_lshl_b32 s43, s%d, 4" % KSL)
    e("v_add_u32 v4, s43, v4")
    for u in range(2):
        for q in range(4):
            e("v_add_u32 v3, %d, v4" % (8 * u + q))
            e("v_mul_u32_u24 v3, v3, v2")
            e("v_and_b32 v3, 63, v3")
            e("v_cvt_f32_u32 v3, v3")
            e("v_mul_f32 v3, s42, v3")
            e("v_cos_f32 v5, v3")
            e("v_sin_f32 v6, v3")
            e("s_nop 0")
            e("v_mul_f32 v5, v5, v15")
            e("v_mul_f32 v6, v6, v21")
            e("v_cvt_pk_bf16_f32 v%d, v5, v6" % (P2_T + 4 * u + q))
    e("v_sub_f32 v18, 1.0, v15")
    e("v_mov_b32 v19, v18")

def p2_main(e, cfg, wd_pre=0):
    L = V_LANE
    def reads(kk):
        b = P2_A + 8 * (kk & 1)
        st = kk >> 2
        pos = (st % 5) * 4 + (kk & 3)
        for mb in range(2):
            for ip in range(2):
                e("ds_read_b64_tr_b16 %s, v%d offset:%d" % (vr(b + 4 * mb + 2 * ip, 2), 11 + mb, pos * 2048 + ip * 1024))
                e.lg_issue(("A", kk, mb))
    def issue_h(st):
        if st > 6: return
        for kk in range(4 * st, 4 * st + 4): p2_load_h(e, cfg, kk)
    def issue_w(st):
        if st > 6 or st < wd_pre: return
        for kk in range(4 * st, 4 * st + 4): p2_dma_wd(e, kk)
    def issue_both(st):
        if st > 6: return
        for kk in range(4 * st, 4 * st + 4):
            if st >= wd_pre: p2_dma_wd(e, kk)
            p2_load_h(e, cfg, kk)
    LA = cfg.p2_la
    p2_load_g(e, cfg)
    if cfg.fused:
        for st in range(LA): issue_h(st)
        p2_tfrags(e, cfg)
    else:
        for st in range(LA): issue_both(st)
        p2_tfrags(e, cfg)
        e.vm_wait([("wd", 0), ("wd", 1)])
        e("s_barrier")
    stamp(e, cfg, 1 if not cfg.fused else 6)
    reads(0)
    for kk in range(28):
        st = kk >> 2
        if (kk & 3) == 0:
            if cfg.fused:
                if st >= 1: issue_w(st + 4)
                issue_h(st + LA)
            else:
                issue_both(st + LA)
                if st + LA == 7:
                    p2_load_u(e, cfg)
        if kk + 1 < 28: reads(kk + 1)
        e.vm_wait([("h", kk)])
        b = P2_A + 8 * (kk & 1)
        for mb in range(2):
            e.lg_wait([("A", kk, mb)])
            mfma(e, P2_ACC + 16 * mb, b + 4 * mb, P2_H + 4 * kk, "0" if kk == 0 else None)
        if (kk & 3) == 3 and st < 6:
            e.vm_wait([("wd", st + 2)])
            if cfg.fused and st == cfg.p2_dpoll:
                lab = e.newlabel("DP")
                e("s_cmp_lg_u32 s%d, 0" % S_WAVE)
                e("s_cbranch_scc1 %s" % lab)
                e("s_mov_b32 s%d, 0x%x" % (S_PF, FLAGS + 16 * 128))
                poll(e, S_PF, 32)
                e.label(lab)
            e("s_barrier")
            if cfg.fused and st == cfg.p2_dpoll:
                p2_load_u(e, cfg)
    assert not e.lg
    stamp(e, cfg, 2 if not cfg.fused else 7)
    e.vm_wait(["u"])
    e("s_nop 7"); e("s_nop 3")
    for i in range(0, 32, 2):
        e("v_pk_mul_f32 %s, %s, v[18:19]" % (vr(P2_ACC + i, 2), vr(P2_ACC + i, 2)))
    e("s_nop 1")
    for u in range(2):
        for mb in range(2):
            mfma(e, P2_ACC + 16 * mb, P2_U + 8 * u + 4 * mb, P2_T + 4 * u)
    e("s_barrier")
    e("v_lshlrev_b32 v2, 4, v%d" % L)
    e("s_lshl_b32 s41, s%d, 13" % S_WAVE)
    e("v_add_u32 v3, s41, v2")
    e("s_nop 7"); e("s_nop 1")
    for qd in range(4):
        for hf in range(2):
            e("ds_write_b128 v3, %s offset:%d" % (vr(P2_ACC + 8 * qd + 4 * hf, 4), qd * 2048 + hf * 1024))
    e("s_waitcnt lgkmcnt(0)")
    e("s_barrier")
    e("s_lshl_b32 s41, s%d, 15" % NB)
    e("s_lshl_b32 s42, s%d, 11" % KSL)
    e("s_add_u32 s41, s41, s42")
    e("v_add_u32 v3, s41, v2")
    for k in range(4):
        for hf in range(2):
            e("ds_read_b128 %s, v3 offset:%d" % (vr(96 + 8 * k + 4 * hf, 4), k * 8192 + hf * 1024))
    e("s_lshl_b32 s41, s%d, 5" % NB)
    e("v_add_u32 v2, s41, v14")
    e("v_lshlrev_b32 v2, 5, v2")
    e("v_add_u32 v2, s%d, v2" % S_T1)
    e("s_movk_i32 s42, 896")
    e("v_mul_lo_u32 v2, v2, s42")
    e("s_lshl_b32 s41, s%d, 7" % S_C)
    e("s_lshl_b32 s42, s%d, 5" % KSL)
    e("s_add_u32 s41, s41, s42")
    e("v_lshrrev_b32 v4, 5, v%d" % L)
    e("v_lshlrev_b32 v4, 4, v4")
    e("v_add3_u32 v2, v2, v4, s41")
    e("s_waitcnt lgkmcnt(0)")
    for q in range(0, 8, 2):
        e("v_pk_add_f32 %s, %s, %s" % (vr(96 + q, 2), vr(96 + q, 2), vr(104 + q, 2)))
        e("v_pk_add_f32 %s, %s, %s" % (vr(112 + q, 2), vr(112 + q, 2), vr(120 + q, 2)))
    for q in range(0, 8, 2):
        e("v_pk_add_f32 %s, %s, %s" % (vr(96 + q, 2), vr(96 + q, 2), vr(112 + q, 2)))
    for q in range(4):
        e("v_cvt_pk_bf16_f32 v%d, v%d, v%d" % (128 + q, 96 + 2 * q, 96 + 2 * q + 1))
    e("s_nop 1")
    e("v_permlane32_swap_b32 v128, v130")
    e("v_permlane32_swap_b32 v129, v131")
    e("buffer_store_dwordx4 v[128:131], v2, s[%d:%d], 0 offen" % (S_OUT, S_OUT + 3))
    stamp(e, cfg, 3 if not cfg.fused else 8)

def p2_role(e):
    e("s_and_b32 s41, s2, 7")
    e("s_lshr_b32 s42, s2, 3")
    e("s_mul_i32 s43, s42, 37")
    e("s_lshr_b32 s43, s43, 8")
    e("s_mul_i32 s76, s43, 7")
    e("s_sub_u32 s%d, s42, s76" % S_C)
    e("s_lshl_b32 s41, s41, 2")
    e("s_add_u32 s%d, s41, s43" % S_T1)

def header(e, name):
    e.raw(".text"); e.raw(".globl %s" % name); e.raw(".p2align 8"); e.raw(".type %s,@function" % name); e.label(name)

def kernel1(e, cfg):
    header(e, "k1_kernel")
    e("s_cmp_ge_u32 s2, 256")
    e("s_cbranch_scc1 K1_END")
    kernarg_loads(e)
    entry_common(e)
    def fin():
        stamp_store(e, cfg, 0)
        e("s_endpgm")
    phase1(e, cfg, fin, fin, lambda c: fin())
    e.label("K1_END")
    e("s_endpgm")

def kernel2(e, cfg):
    header(e, "k2_kernel")
    e.vm = []; e.lg = []
    e("s_cmp_ge_u32 s2, 256")
    e("s_cbranch_scc1 K2_END")
    e("s_lshr_b32 s42, s2, 3")
    e("s_cmp_ge_u32 s42, 28")
    e("s_cbranch_scc1 K2_END")
    kernarg_loads(e)
    entry_common(e)
    p2_role(e)
    p2_setup(e, cfg)
    e("s_waitcnt lgkmcnt(0)")
    srd(e, S_WS, 74, WS_BYTES)
    srd(e, S_OUT, 46, 1835008)
    srd(e, S_WD, 56, 1605632)
    stamp(e, cfg, 0)
    p2_main(e, cfg, 0)
    stamp_store(e, cfg, 0x40000)
    e.label("K2_END")
    e("s_endpgm")


def nonce_issue(e):
    lab = e.newlabel("NONCE")
    srd(e, S_DBG, 72, 256)
    e("s_or_b32 s41, s2, s%d" % S_WAVE)
    e("s_cmp_lg_u32 s41, 0")
    e("s_cbranch_scc1 %s" % lab)
    e("s_memrealtime s[42:43]")
    e("s_waitcnt lgkmcnt(0)")
    e("s_or_b32 s42, s42, 1")
    e("v_mov_b32 v4, s42")
    e("v_lshlrev_b32 v5, 20, v%d" % V_LANE)
    e("buffer_store_dword v4, v5, s[%d:%d], 0 offen sc1" % (S_DBG, S_DBG + 3))
    e.label(lab)
    e("v_mov_b32 v7, 0")

def nonce_publish(e):
    lab = e.newlabel("NONCE")
    e("s_or_b32 s41, s2, s%d" % S_WAVE)
    e("s_cmp_lg_u32 s41, 0")
    e("s_cbranch_scc1 %s" % lab)
    srd(e, S_DBG, 72, 256)
    e("s_memrealtime s[42:43]")
    e("s_waitcnt lgkmcnt(0)")
    e("s_or_b32 s42, s42, 1")
    e("v_mov_b32 v4, s42")
    e("v_lshlrev_b32 v5, 20, v%d" % V_LANE)
    e("buffer_store_dword v4, v5, s[%d:%d], 0 offen sc1" % (S_DBG, S_DBG + 3))
    e.label(lab)

def nonce_load(e):
    e("buffer_load_dword v4, v7, s[%d:%d], 0 offen sc1" % (S_DBG, S_DBG + 3))

def nonce_finish(e):
    nonce_finish_any(e)

def flag_addr(e, is_h):
    if is_h:
        e("s_lshl_b32 s41, s%d, 9" % S_R)
        e("s_lshl_b32 s42, s%d, 2" % S_FB)
    else:
        e("s_lshl_b32 s41, s%d, 1" % S_QG)
        e("s_add_u32 s41, s41, s%d" % S_EH)
        e("s_lshl_b32 s42, s41, 2")
        e("s_movk_i32 s41, %d" % (16 * 512))
    e("s_add_u32 s41, s41, s42")
    e("s_add_u32 s%d, s41, 0x%x" % (S_FLAG, FLAGS))

def flag_store(e):
    e("v_mov_b32 v60, s%d" % S_NONCE)
    e("v_lshlrev_b32 v61, 24, v%d" % V_LANE)
    e("v_add_u32 v61, s%d, v61" % S_FLAG)
    e("buffer_store_dword v60, v61, s[%d:%d], 0 offen sc1" % (S_WS, S_WS + 3))

def poll_prep(e, sbase, nflags):
    e("v_lshlrev_b32 v61, 2, v%d" % V_LANE)
    e("v_add_u32 v61, s%d, v61" % sbase)
    e("v_cmp_gt_u32 vcc, %d, v%d" % (nflags, V_LANE))
    e("v_mov_b32 v60, 0x7fffffff")
    e("s_nop 0")
    e("v_cndmask_b32 v61, v60, v61, vcc")
def poll_issue(e):
    e("buffer_load_dword v60, v61, s[%d:%d], 0 offen sc1" % (S_WS, S_WS + 3))
def poll_loop(e, nflags, first_issued):
    top = e.newlabel("POLL"); done = e.newlabel("POLLD"); chk = e.newlabel("POLLC")
    e("s_mov_b32 s41, 0")
    if first_issued: e("s_branch %s" % chk)
    e.label(top)
    poll_issue(e)
    e.label(chk)
    e("s_waitcnt vmcnt(0)")
    e("v_cmp_eq_u32 vcc, s%d, v60" % S_NONCE)
    e("s_nop 1")
    mask = (1 << nflags) - 1
    e("s_and_b32 s42, vcc_lo, 0x%x" % (mask & 0xffffffff))
    e("s_cmp_eq_u32 s42, 0x%x" % (mask & 0xffffffff))
    e("s_cbranch_scc1 %s" % done)
    e("s_add_u32 s41, s41, 1")
    e("s_cmp_ge_u32 s41, 0x40000")
    e("s_cbranch_scc1 %s" % done)
    e("s_branch %s" % top)
    e.label(done)
def poll(e, sbase, nflags, drain=True):
    poll_prep(e, sbase, nflags)
    poll_loop(e, nflags, False)

def pollAG_prep(e):
    e("v_lshlrev_b32 v61, 2, v%d" % V_LANE)
    e("v_add_u32 v62, 0x%x, v61" % (FLAGS + 16 * 512 + 128 - 128))
    e("v_add_u32 v61, s%d, v61" % S_PF)
    e("v_cmp_gt_u32 vcc, 14, v%d" % V_LANE)
    e("v_mov_b32 v60, 0x7fffffff")
    e("s_nop 0")
    e("v_cndmask_b32 v61, v60, v61, vcc")
    e("v_cmp_lt_u32 vcc, 31, v%d" % V_LANE)
    e("s_nop 1")
    e("v_cndmask_b32 v61, v61, v62, vcc")

def poll_loop56(e):
    top = e.newlabel("POLL"); done = e.newlabel("POLLD")
    e("s_mov_b32 s41, 0")
    e.label(top)
    poll_issue(e)
    e("s_waitcnt vmcnt(0)")
    e("v_cmp_eq_u32 vcc, s%d, v60" % S_NONCE)
    e("s_nop 1")
    e("s_and_b32 s43, vcc_hi, 0xffffff")
    e("s_cmp_eq_u32 s43, 0xffffff")
    e("s_cselect_b32 s42, vcc_lo, 0")
    e("s_cmp_eq_u32 s42, -1")
    e("s_cbranch_scc1 %s" % done)
    e("s_add_u32 s41, s41, 1")
    e("s_cmp_ge_u32 s41, 0x40000")
    e("s_cbranch_scc1 %s" % done)
    e("s_branch %s" % top)
    e.label(done)

def poll2(e, sline1, line2):
    top = e.newlabel("POLL"); done = e.newlabel("POLLD")
    e("v_lshlrev_b32 v61, 2, v%d" % V_LANE)
    e("v_add_u32 v62, 0x%x, v61" % line2)
    e("v_add_u32 v61, s%d, v61" % sline1)
    e("v_mov_b32 v60, 0x7fffffff")
    e("v_cmp_gt_u32 vcc, 56, v%d" % V_LANE)
    e("s_nop 1")
    e("v_cndmask_b32 v61, v60, v61, vcc")
    e("v_cmp_gt_u32 vcc, 32, v%d" % V_LANE)
    e("s_nop 1")
    e("v_cndmask_b32 v62, v60, v62, vcc")
    e("s_mov_b32 s41, 0")
    e.label(top)
    e("buffer_load_dword v60, v61, s[%d:%d], 0 offen sc1" % (S_WS, S_WS + 3))
    e("buffer_load_dword v58, v62, s[%d:%d], 0 offen sc1" % (S_WS, S_WS + 3))
    e("s_waitcnt vmcnt(0)")
    e("v_cmp_eq_u32 vcc, s%d, v60" % S_NONCE)
    e("v_cmp_eq_u32 s[42:43], s%d, v58" % S_NONCE)
    e("s_nop 1")
    e("s_and_b32 s43, vcc_hi, 0xffffff")
    e("s_and_b32 s42, s42, vcc_lo")
    e("s_cmp_eq_u32 s43, 0xffffff")
    e("s_cselect_b32 s42, s42, 0")
    e("s_cmp_eq_u32 s42, -1")
    e("s_cbranch_scc1 %s" % done)
    e("s_add_u32 s41, s41, 1")
    e("s_cmp_ge_u32 s41, 0x40000")
    e("s_cbranch_scc1 %s" % done)
    e("s_branch %s" % top)
    e.label(done)

def kernel_fused(e, cfg):
    name = "gated_mix__spectral_fnet__glu_gated_glu__prompt_kernel"
    header(e, name)
    e("s_cmp_ge_u32 s2, 256")
    e("s_cbranch_scc1 KF_END")
    kernarg_loads(e)
    entry_common(e)
    def after_h_consumer():
        e.vm_wait_all()
        e("s_barrier")
        lab = e.newlabel("NOTW0")
        e("s_cmp_lg_u32 s%d, 0" % S_WAVE)
        e("s_cbranch_scc1 %s" % lab)
        flag_store(e)
        e.label(lab)
        stamp(e, cfg, 4)
        p2_role(e)
        p2_setup(e, cfg)
        srd(e, S_OUT, 46, 1835008)
        srd(e, S_WD, 56, 1605632)
        e("s_cmp_lg_u32 s%d, 0" % S_WAVE)
        e("s_cbranch_scc1 P2_START")
        e("s_lshr_b32 s43, s%d, 1" % S_T1)
        e("s_lshl_b32 s43, s43, 7")
        e("s_add_u32 s%d, s43, 0x%x" % (S_PF, FLAGS))
        poll(e, S_PF, 14)
        e("s_branch P2_START")
    def after_h_loader():
        e("s_barrier")
        p2_role(e)
        p2_setup(e, cfg)
        srd(e, S_OUT, 46, 1835008)
        e("v_subrev_u32 v9, %d, v10" % (8 * 896))
        e("s_sub_u32 s69, s62, 1024")
        for kk in range(20):
            pos = kk
            dma(e, S_WD, 9, pos * 2048, 69, kk * 16 * 896, ("wdp", kk))
            dma(e, S_WD, 10, pos * 2048, 62, kk * 16 * 896, ("wdp", kk))
        e("s_barrier")
        stamp(e, cfg, 4)
        e.vm = []
        e.label("P2_START")
        e("s_waitcnt vmcnt(0)")
        e("s_barrier")
        stamp(e, cfg, 5)
        e.vm = []; e.lg = []
        p2_main(e, cfg, 5)
        stamp_store(e, cfg, 0)
        e("s_endpgm")
    def after_d(is_cons):
        if is_cons:
            e.vm_wait_all()
            e("s_barrier")
            lab = e.newlabel("DNOTW0")
            e("s_cmp_lg_u32 s%d, 0" % S_WAVE)
            e("s_cbranch_scc1 %s" % lab)
            flag_store(e)
            e("s_waitcnt vmcnt(0)")
            e.label(lab)
            stamp_store(e, cfg, 0)
            e("s_endpgm")
        else:
            e("s_waitcnt vmcnt(0)")
            e("s_barrier")
            stamp_store(e, cfg, 0)
            e("s_endpgm")
    phase1(e, cfg, after_h_consumer, after_h_loader, after_d)
    e.label("KF_END")
    e("s_endpgm")


WB2 = 114688; NW2 = 6; WS2 = 8192
H_ACC = 64
H_FR = 192
V_XA2 = 10
V_WA2 = 18
S_WT = 69

def h2_consumer(e, cfg):
    L = V_LANE; T = 26
    e("s_lshr_b32 s%d, s%d, 1" % (S_WT, S_WAVE))
    e("s_and_b32 s%d, s%d, 1" % (S_WF, S_WAVE))
    e("v_and_b32 v%d, 31, v%d" % (T, L))
    e("v_lshrrev_b32 v%d, 5, v%d" % (T + 1, L))
    e("v_lshrrev_b32 v%d, 1, v%d" % (T + 2, T))
    e("v_and_b32 v%d, 7, v%d" % (T + 2, T + 2))
    e("s_lshl_b32 s41, s%d, 6" % S_WT)
    e("v_add_u32 v%d, s41, v%d" % (T + 3, T))
    e("v_lshlrev_b32 v%d, 7, v%d" % (T + 3, T + 3))
    for k in range(4):
        e("v_add_u32 v%d, %d, v%d" % (T + 4, 2 * k, T + 1))
        e("v_xor_b32 v%d, v%d, v%d" % (T + 4, T + 4, T + 2))
        e("v_lshlrev_b32 v%d, 4, v%d" % (T + 4, T + 4))
        e("v_add_u32 v%d, v%d, v%d" % (V_XA2 + k, T + 3, T + 4))
        e("v_add_u32 v%d, 0x10000, v%d" % (V_XA2 + 4 + k, V_XA2 + k))
    e("v_and_b32 v%d, 15, v%d" % (T + 4, L))
    e("v_lshrrev_b32 v%d, 2, v%d" % (T + 5, T + 4))
    e("v_lshlrev_b32 v%d, 7, v%d" % (T + 5, T + 5))
    e("v_lshlrev_b32 v%d, 11, v%d" % (T + 6, T + 1))
    e("v_add_u32 v%d, v%d, v%d" % (T + 6, T + 6, T + 5))
    e("v_bfe_u32 v%d, v%d, 3, 1" % (T + 7, T + 4))
    e("v_xor_b32 v%d, s%d, v%d" % (T + 7, S_WF, T + 7))
    e("v_lshlrev_b32 v%d, 6, v%d" % (T + 7, T + 7))
    e("v_add_u32 v%d, v%d, v%d" % (T + 6, T + 6, T + 7))
    e("v_bfe_u32 v%d, v%d, 4, 1" % (T + 7, L))
    e("v_lshlrev_b32 v%d, 5, v%d" % (T + 7, T + 7))
    e("v_add_u32 v%d, v%d, v%d" % (T + 6, T + 6, T + 7))
    e("v_and_b32 v%d, 3, v%d" % (T + 7, T + 4))
    e("v_lshlrev_b32 v%d, 3, v%d" % (T + 7, T + 7))
    e("v_add_u32 v%d, v%d, v%d" % (T + 6, T + 6, T + 7))
    e("v_add_u32 v%d, 0x%x, v%d" % (V_WA2, WB2, T + 6))
    e("s_waitcnt lgkmcnt(0)")
    srd(e, S_WS, 74, WS_BYTES)
    if cfg.ncx > 0:
        srd(e, S_X, 44, 1835008)
        e("v_lshrrev_b32 v40, 3, v%d" % L)
        e("v_and_b32 v41, 7, v%d" % L)
        e("v_lshrrev_b32 v42, 4, v%d" % L)
        e("v_xor_b32 v41, v41, v42")
        e("v_lshlrev_b32 v41, 4, v41")
        e("v_mul_u32_u24 v40, 28672, v40")
        e("s_lshl_b32 s41, s%d, 1" % S_R)
        e("s_lshr_b32 s42, s%d, 1" % S_WAVE)
        e("s_add_u32 s41, s41, s42")
        e("s_mul_i32 s41, s41, 896")
        e("s_and_b32 s42, s%d, 1" % S_WAVE)
        e("s_mul_i32 s42, s42, %d" % (32 * 28672))
        e("s_add_u32 s41, s41, s42")
        e("v_add3_u32 v36, v40, v41, s41")
        e("v_xor_b32 v41, 64, v41")
        e("s_add_u32 s42, s41, %d" % (8 * 28672 - 1024))
        e("v_add3_u32 v37, v40, v41, s42")
        e("v_add_u32 v38, %d, v36" % (16 * 28672 - 2048))
        e("v_add_u32 v39, %d, v37" % (16 * 28672 - 2048))
        e("s_mul_i32 s6, s%d, %d" % (S_R, RMUL[0]))
        e("s_add_u32 s6, s6, s%d" % S_FB)
        e("s_mul_i32 s7, s6, 37")
        e("s_lshr_b32 s7, s7, 8")
        e("s_mul_i32 s7, s7, 7")
        e("s_sub_u32 s6, s6, s7")
        e("s_lshl_b32 s5, s%d, 12" % S_WAVE)
        for c in range(1, cfg.ncx + 1):
            rot_next(e, 6, 7)
            e("s_lshl_b32 s4, s6, 7")
            dma_group(e, 5, c * 16384, [(S_X, 36 + i, 4, i * 1024, ("xc", c)) for i in range(4)])
    de = Em()
    _e = e
    e = de
    e("s_lshl_b32 s41, s%d, 1" % S_R)
    e("s_add_u32 s41, s41, s%d" % S_WT)
    e("s_mul_i32 s41, s41, 112")
    e("s_lshl_b32 s42, s%d, 1" % S_FB)
    e("s_add_u32 s42, s42, s%d" % S_WF)
    e("s_lshl_b32 s42, s42, 1")
    e("s_add_u32 s41, s41, s42")
    e("s_lshl_b32 s41, s41, 11")
    e("v_lshlrev_b32 v20, 4, v%d" % L)
    e("v_add_u32 v20, s41, v20")
    e("v_add_u32 v21, 0x%x, v20" % (56 * 2048))
    flag_addr(e, True)
    srd(e, S_DBG, 72, 256)
    e("v_mov_b32 v7, 0")
    e("s_mov_b32 s44, 0x%08x" % f2u(-LOG2E))
    e("s_mov_b32 s45, s44")
    defer_list = [ln.strip() for ln in de.lines]
    e = _e
    nonce_publish(e)
    if "pf2" in cfg.x:
        lab = e.newlabel("PF2")
        e("s_cmp_lg_u32 s%d, 0" % S_WAVE)
        e("s_cbranch_scc1 %s" % lab)
        srd(e, S_WD, 56, 1605632)
        e("s_mul_i32 s41, s%d, 14" % S_R)
        e("s_add_u32 s41, s41, s%d" % S_FB)
        e("s_mul_i32 s41, s41, 56")
        e("v_add_u32 v8, s41, v%d" % L)
        e("v_lshlrev_b32 v8, 7, v8")
        e("buffer_load_dword v9, v8, s[%d:%d], 0 offen" % (S_WD, S_WD + 3))
        e.label(lab)
    stamp(e, cfg, 0)
    if "notouch" not in cfg.x:
        srd(e, S_WD, 56, 1605632)
        e("s_lshr_b32 s41, s2, 3")
        e("s_mul_i32 s41, s41, 448")
        e("s_lshl_b32 s42, s%d, 6" % S_WAVE)
        e("s_add_u32 s41, s41, s42")
        e("v_add_u32 v8, s41, v%d" % L)
        e("v_lshlrev_b32 v8, 7, v8")
        e("buffer_load_dword v2, v8, s[%d:%d], 0 offen" % (S_WD, S_WD + 3))
        e("s_cmp_eq_u32 s%d, 3" % S_WAVE)
        lab = e.newlabel("TCH")
        e("s_cbranch_scc1 %s" % lab)
        e("v_add_u32 v8, 0x%x, v8" % (256 * 128))
        e("buffer_load_dword v3, v8, s[%d:%d], 0 offen" % (S_WD, S_WD + 3))
        e.label(lab)
    e("s_barrier")
    stamp(e, cfg, 1)
    if cfg.diag:
        e("s_memtime s[76:77]"); e("s_waitcnt lgkmcnt(0)")
    def reads(g):
        p = g // 28; kap = g % 28
        base = H_FR + 16 * (g & 1)
        c = kap >> 2; kk4 = kap & 3
        xo = c * 16384
        xv = V_XA2 + kk4 + (4 if xo >= 0x10000 else 0); xo &= 0xffff
        j = g >> 1; kk = g & 1
        so = (j % NW2) * WS2
        def xr(nb): return (("X", g, nb), "ds_read_b128 %s, v%d offset:%d" % (vr(base + 4 * nb, 4), xv, xo + nb * 4096))
        def wr(m, ip): return (("W", g, m), "ds_read_b64_tr_b16 %s, v%d offset:%d" % (vr(base + 8 + 4 * m + 2 * ip, 2), V_WA2, so + kk * 4096 + ip * 512 + m * 1024))
        return [wr(0, 0), wr(0, 1), xr(0), wr(1, 0), wr(1, 1), xr(1)]
    def epi_list(p):
        ACCB = H_ACC + 64 * p
        L_ = []
        def I(txt): L_.append(lambda: e(txt))
        grp = 0
        for nb in range(2):
            for hf in range(2):
                outb = 224 + 4 * grp; grp += 1
                A = ACCB + 16 * nb + 8 * hf; B = ACCB + 32 + 16 * nb + 8 * hf
                for q in range(0, 8, 2):
                    I("v_pk_mul_f32 %s, %s, s[44:45]" % (vr(A + q, 2), vr(A + q, 2)))
                for q in range(8):
                    I("v_exp_f32 v%d, v%d" % (A + q, A + q))
                for q in range(0, 8, 2):
                    I("v_pk_add_f32 %s, %s, s[46:47]" % (vr(A + q, 2), vr(A + q, 2))) if False else I("v_pk_add_f32 %s, %s, 1.0 op_sel_hi:[1,0]" % (vr(A + q, 2), vr(A + q, 2)))
                for q in range(8):
                    I("v_rcp_f32 v%d, v%d" % (A + q, A + q))
                for q in range(0, 8, 2):
                    I("v_pk_mul_f32 %s, %s, %s" % (vr(A + q, 2), vr(A + q, 2), vr(B + q, 2)))
                for q2 in range(4):
                    I("v_cvt_pk_bf16_f32 v%d, v%d, v%d" % (outb + q2, A + 2 * q2, A + 2 * q2 + 1))
                def st(outb=outb, nb=nb, hf=hf):
                    e("buffer_store_dwordx4 %s, v%d, s[%d:%d], 0 offen offset:%d sc1" % (vr(outb, 4), 20 + p, S_WS, S_WS + 3, hf * 2048 + nb * 1024))
                    e.vm_issue("hst")
                L_.append(st)
        return L_
    def epilogue(p):
        e("s_nop 7"); e("s_nop 3")
        for f in epi_list(p): f()
    pend_epi = []
    ge = Em()
    gate_list = []
    for tag, txt in reads(0):
        e(txt); e.lg_issue(tag)
    for g in range(56):
        base = H_FR + 16 * (g & 1)
        nxt = reads(g + 1) if g + 1 < 56 else []
        first = (g % 28 == 0)
        ACCB = H_ACC + 64 * (g // 28)
        if g == 28 + cfg.epi_start and cfg.epi_rate > 0:
            pend_epi = epi_list(0)
        k = 0
        for n in range(4):
            nb = n >> 1; m = n & 1
            if "wait2" in cfg.x:
                if n == 0: e.lg_wait([("W", g, 0), ("X", g, 0)])
                if n == 1: e.lg_wait([("W", g, 1), ("X", g, 1)])
            elif "wait1" in cfg.x:
                if n == 0: e.lg_wait([("W", g, 0), ("X", g, 0), ("W", g, 1), ("X", g, 1)])
            else:
                e.lg_wait([("W", g, m), ("X", g, nb)])
            d = ACCB + 32 * m + 16 * nb
            if "fake16" in cfg.x:
                for hh in range(2):
                    e("v_mfma_f32_16x16x32_bf16 %s, %s, %s, %s" % (vr(d + 8 * hh, 4), vr(base + 8 + 4 * m, 4), vr(base + 4 * nb, 4), "0" if first else vr(d + 8 * hh, 4)))
            elif "nomfma" not in cfg.x:
                mfma(e, d, base + 8 + 4 * m, base + 4 * nb, "0" if first else None)
            cnt = 2 if n < 2 else 1
            if "rd3" in cfg.x: cnt = (3, 3, 0, 0)[n]
            if "rd6" in cfg.x: cnt = (6, 0, 0, 0)[n]
            for _ in range(cnt):
                if k < len(nxt):
                    tag, txt = nxt[k]; k += 1
                    if "nolds" in cfg.x: continue
                    e(txt); e.lg_issue(tag)
            for _ in range(cfg.epi_rate):
                if pend_epi: pend_epi.pop(0)()
            for _ in range(cfg.defer_rate):
                if defer_list: e(defer_list.pop(0))
            if g >= cfg.gate_g:
                pass
                for _ in range(cfg.gate_rate):
                    if gate_list: e(gate_list.pop(0))
        if g == 27 and cfg.epi_rate == 0:
            epilogue(0)
        for c in range(1, cfg.ncx + 1):
            if g == 4 * c - 3:
                e.vm_wait([("xc", c)])
        if g == 46:
            nonce_load(e)
        if g == 2 * cfg.flagA_bar - 1:
            e("s_waitcnt vmcnt(0)")
        if (g & 1) and g < 55:
            e("s_barrier")
    assert not e.lg
    e.vm = []
    e("s_barrier")
    if cfg.diag:
        e("s_memtime s[78:79]"); e("s_waitcnt lgkmcnt(0)")
        e("s_sub_u32 s7, s78, s76")
    nonce_finish(e)
    assert not pend_epi and not gate_list
    stamp(e, cfg, 2)
    p2_role(e)
    flags_line(e, 0)
    pollAG_prep(e)
    poll_issue(e); e.vm_issue("pollA")
    epilogue(1)
    stamp(e, cfg, 3)

def h2_loader(e, cfg):
    L = V_LANE; T = 26
    VX = 10; VW = 14
    e("v_lshrrev_b32 v%d, 3, v%d" % (T, L))
    e("v_and_b32 v%d, 7, v%d" % (T + 1, L))
    e("v_lshrrev_b32 v%d, 4, v%d" % (T + 2, L))
    e("v_xor_b32 v%d, v%d, v%d" % (T + 3, T + 1, T + 2))
    e("v_lshlrev_b32 v%d, 4, v%d" % (T + 3, T + 3))
    e("v_mul_u32_u24 v%d, 28672, v%d" % (T + 4, T))
    e("s_lshl_b32 s41, s%d, 1" % S_R)
    e("s_lshr_b32 s42, s%d, 1" % S_LW)
    e("s_add_u32 s41, s41, s42")
    e("s_mul_i32 s41, s41, 896")
    e("s_and_b32 s42, s%d, 1" % S_LW)
    e("s_mul_i32 s42, s42, %d" % (32 * 28672))
    e("s_add_u32 s41, s41, s42")
    e("v_add3_u32 v%d, v%d, v%d, s41" % (VX, T + 4, T + 3))
    e("v_xor_b32 v%d, 64, v%d" % (T + 3, T + 3))
    e("s_add_u32 s42, s41, %d" % (8 * 28672 - 1024))
    e("v_add3_u32 v%d, v%d, v%d, s42" % (VX + 1, T + 4, T + 3))
    e("v_add_u32 v%d, %d, v%d" % (VX + 2, 16 * 28672 - 2048, VX))
    e("v_add_u32 v%d, %d, v%d" % (VX + 3, 16 * 28672 - 2048, VX + 1))
    e("v_mul_u32_u24 v%d, 3584, v%d" % (T + 4, T))
    e("v_and_b32 v%d, 1, v%d" % (T + 2, T + 2))
    e("v_lshlrev_b32 v%d, 2, v%d" % (T + 2, T + 2))
    e("v_xor_b32 v%d, v%d, v%d" % (T + 2, T + 2, T + 1))
    e("v_lshlrev_b32 v%d, 4, v%d" % (T + 2, T + 2))
    e("s_mul_i32 s41, s%d, %d" % (S_LW, 8 * 3584))
    e("s_lshl_b32 s42, s%d, 7" % S_FB)
    e("s_add_u32 s41, s41, s42")
    e("v_add3_u32 v%d, v%d, v%d, s41" % (VW, T + 4, T + 2))
    e("v_add_u32 v%d, %d, v%d" % (VW + 1, 32 * 3584, VW))
    e("s_lshl_b32 s%d, s%d, 11" % (S_LDSW, S_LW))
    e("s_lshl_b32 s%d, s%d, 12" % (S_LDSX, S_LW))
    e("s_mul_i32 s6, s%d, %d" % (S_R, RMUL[0]))
    e("s_add_u32 s6, s6, s%d" % S_FB)
    e("s_mul_i32 s7, s6, 37")
    e("s_lshr_b32 s7, s7, 8")
    e("s_mul_i32 s7, s7, 7")
    e("s_sub_u32 s6, s6, s7")
    e("s_waitcnt lgkmcnt(0)")
    srd(e, S_X, 44, 1835008)
    srd(e, S_WA, 52, 1605632)
    e("s_sub_u32 s%d, s54, 1024" % S_WB)
    e("s_subb_u32 s%d, s55, 0" % (S_WB + 1))
    e("s_and_b32 s%d, s%d, 0xffff" % (S_WB + 1, S_WB + 1))
    e("s_mov_b32 s%d, 0x%x" % (S_WB + 2, 1605632 + 1024))
    e("s_mov_b32 s%d, 0x20000" % (S_WB + 3))
    e("s_mov_b64 s[76:77], s[56:57]")
    e("s_mov_b64 s[78:79], s[58:59]")
    def emitT(dst):
        c = dst - 44
        e("s_lshl_b32 s%d, s6, 7" % (44 + c))
        e("s_mul_i32 s%d, s6, %d" % (51 + c, 64 * 3584))
    emitT(44)
    stamp(e, cfg, 0)
    tdone = [1]
    def need_table(c):
        while tdone[0] <= c:
            rot_next(e, 6, 7)
            emitT(44 + tdone[0]); tdone[0] += 1
    def dx(c):
        need_table(c)
        dma_group(e, S_LDSX, c * 16384, [(S_X, VX + i, 44 + c, i * 1024, ("x", c)) for i in range(4)])
    def dw(j):
        p = j // 14; jj = j % 14; c = jj >> 1
        need_table(c)
        va = VW + 2 * p + (jj & 1)
        dma_group(e, S_LDSW, WB2 + (j % NW2) * WS2, [(S_WA, va, 51 + c, 0, ("w", j)), (S_WB, va, 51 + c, 1024, ("w", j))])
    q = []
    for j in range(28):
        if j < 14 and j % 2 == 0 and not (1 <= j // 2 <= cfg.ncx): q.append(("x", j // 2, -1))
        q.append(("w", j, -1 if j < NW2 else j - NW2 + 1))
    def cost(it): return 4 if it[0] == "x" else 2
    def issue(it): (dx if it[0] == "x" else dw)(it[1])
    def need(j):
        t = []
        for jj in (j, j + 1):
            if jj <= 27:
                if jj < 14 and not (1 <= (jj >> 1) <= cfg.ncx): t.append(("x", jj >> 1))
                t.append(("w", jj))
        return t
    issued = set(); curbar = [-1]
    def ensure(tags):
        while q and any(t not in issued for t in tags):
            it = q.pop(0); assert it[2] <= curbar[0], (it, curbar)
            issue(it); issued.add((it[0], it[1]))
    ensure(need(0))
    e("v_add_u32 v%d, %d, v%d" % (VW + 2, 1792, VW))
    e("v_add_u32 v%d, %d, v%d" % (VW + 3, 1792, VW + 1))
    srd(e, S_WS, 74, WS_BYTES)
    srd(e, S_WD, 76, 1605632)
    srd(e, S_GW, 78, 896)
    srd(e, S_DBG, 72, 256)
    flag_addr(e, True)
    e("v_mov_b32 v7, 0")
    budget0 = cfg.pro_extra
    while q and budget0 > 0 and q[0][2] <= -1:
        it = q.pop(0); issue(it); issued.add((it[0], it[1])); budget0 -= cost(it)
    e.vm_wait(need(0))
    e("s_barrier")
    stamp(e, cfg, 1)
    for j in range(27):
        curbar[0] = j
        ensure(need(j + 1))
        budget = cfg.stage_budget2
        while q and budget > 0 and q[0][2] <= j:
            it = q.pop(0); issue(it); issued.add((it[0], it[1])); budget -= cost(it)
        if j == 1:
            p2_role(e)
            q_setup(e, 0, 26)
        if j == 14:
            q_table(e, 44, 2 * 16 * 896)
        if j >= 16 and j % 2 == 0:
            c = (j - 16) // 2
            q_dma_pair(e, 0, c, 26, 44)
        if j == 9:
            e("buffer_load_dword v4, v7, s[%d:%d], 0 offen sc1" % (S_DBG, S_DBG + 3))
            e.vm_issue("nonce")
        if j == 13:
            e.vm_wait(["nonce"])
            sv = list(e.vm)
            nonce_finish_any(e, keepvm=True)
            e.vm = sv
        if j == cfg.flagA_bar:
            lab = e.newlabel("FA")
            e("s_cmp_lg_u32 s%d, 4" % S_WAVE)
            e("s_cbranch_scc1 %s" % lab)
            flag_store(e)
            e.label(lab)
        if j == cfg.epoll:
            flags_line(e, 0)
            poll_prep(e, S_PF, 14)
            poll_issue(e); e.vm_issue("poll")
        e.vm_wait(need(j + 1))
        if "stg" in cfg.x and j + 1 in (4, 12, 15, 18, 26):
            pass
        e("s_barrier")
        if "stg" in cfg.x and j + 1 in (4, 12, 15, 18, 26):
            k = {4: 3, 12: 4, 15: 5, 18: 6, 26: 7}[j + 1]
            e("s_memtime s[%d:%d]" % (S_STAMP + 2 * k, S_STAMP + 2 * k + 1)); e("s_waitcnt lgkmcnt(0)")
    assert not q
    q_setup2(e, 0)
    q_table(e, 51, 4096)
    e.vm_wait([("wd", 11)])
    e("s_waitcnt lgkmcnt(0)")
    e("s_barrier")
    stamp(e, cfg, 2)
    poll_loop(e, 14, True)
    if cfg.diag: e("s_mov_b32 s%d, s41" % (S_STAMP + 16))
    stamp(e, cfg, 4)
    e.vm = []
    cfg.stepsA = q_steps(0, list(range(0, 2 * (6 - cfg.nca))) + [12, 13], 13)
    for i in range(cfg.hpre): q_issue_h(e, cfg.stepsA[i])
    q_dma_pair(e, 0, 6, 26, 44)

def nonce_finish_any(e, keepvm=False):
    lab = e.newlabel("NFA"); top = e.newlabel("NTA"); chk = e.newlabel("NCK")
    e("s_mov_b32 s42, 0")
    if keepvm: e("s_branch %s" % chk)
    e.label(top)
    e("s_waitcnt vmcnt(0)")
    e.label(chk)
    e("v_readfirstlane_b32 s%d, v4" % S_NONCE)
    e("s_nop 3")
    e("s_cmp_lg_u32 s%d, 0" % S_NONCE)
    e("s_cbranch_scc1 %s" % lab)
    e("s_add_u32 s42, s42, 1")
    e("s_cmp_ge_u32 s42, 0x40000")
    e("s_cbranch_scc1 %s" % lab)
    e("s_sleep 1")
    e("buffer_load_dword v4, v7, s[%d:%d], 0 offen sc1" % (S_DBG, S_DBG + 3))
    e("s_branch %s" % top)
    e.label(lab)

Q_ACC = 64
Q_H = 128
Q_A = 240
SL2 = 40960
SI = 3

def q_setup(e, part, vw=9):
    L = V_LANE
    e("s_and_b32 s%d, s%d, 3" % (SI, S_WAVE))
    e("v_lshrrev_b32 v2, 3, v%d" % L)
    e("v_bfe_u32 v3, v%d, 4, 1" % L)
    e("v_lshlrev_b32 v3, 2, v3")
    e("v_and_b32 v8, 7, v%d" % L)
    e("v_xor_b32 v3, v3, v8")
    e("v_lshlrev_b32 v3, 4, v3")
    e("s_mul_i32 s41, s%d, 224" % SI)
    if part: e("s_add_u32 s41, s41, 896")
    e("v_add_u32 v2, s41, v2")
    e("s_movk_i32 s42, 896")
    e("v_mul_lo_u32 v2, v2, s42")
    e("s_lshl_b32 s41, s%d, 7" % S_C)
    e("v_add3_u32 v%d, v2, v3, s41" % vw)
    e("v_add_u32 v%d, %d, v%d" % (vw + 1, 8 * 896 - 1024, vw))
    e("v_add_u32 v%d, %d, v%d" % (vw + 2, 16 * 896 - 2048, vw))
    e("v_add_u32 v%d, %d, v%d" % (vw + 3, 24 * 896 - 3072, vw))
    e("s_lshl_b32 s62, s%d, 12" % SI)
    e("s_and_b32 s4, s%d, 3" % S_T1)
    e("s_lshl_b32 s4, s4, 1")
    e("s_add_u32 s4, s4, s%d" % S_C)
    e("s_cmp_ge_u32 s4, 7")
    e("s_cselect_b32 s5, 7, 0")
    e("s_sub_u32 s4, s4, s5")
    if P2ROT[0] == 0: e("s_mov_b32 s4, 0")

def q_table(e, first, mult):
    e("s_mov_b32 s5, s4")
    for c in range(7):
        e("s_mul_i32 s%d, s5, %d" % (first + c, mult))
        if c < 6: rot_next(e, 5, 7)

def q_dma_pair(e, part, c, vw, tab):
    pos = q_pos(part, 2 * c)
    dma_group(e, 62, pos, [(S_WD, vw + i, tab + c, i * 1024, ("wd", 2 * c + (i >> 1))) for i in range(4)])

P2ROT = [1]
RMUL = [2]
OSC = [""]
HSC = [" sc1"]
def q_setup2(e, part):
    L = V_LANE
    e("v_and_b32 v2, 15, v%d" % L)
    e("v_lshrrev_b32 v3, 2, v2")
    e("v_lshrrev_b32 v8, 5, v%d" % L)
    e("v_lshlrev_b32 v5, 2, v8")
    e("v_add_u32 v5, v5, v3")
    e("v_lshlrev_b32 v5, 7, v5")
    e("v_bfe_u32 v6, v2, 3, 1")
    e("v_lshlrev_b32 v6, 6, v6")
    e("v_bfe_u32 v3, v%d, 4, 1" % L)
    e("v_lshlrev_b32 v3, 5, v3")
    e("v_and_b32 v8, 3, v2")
    e("v_lshlrev_b32 v8, 3, v8")
    e("v_add3_u32 v5, v5, v6, v3")
    e("v_add_u32 v5, v5, v8")
    e("v_add_u32 v11, s62, v5")
    e("v_xor_b32 v12, 64, v11")
    e("v_add_u32 v18, 0x10000, v11")
    e("v_add_u32 v19, 0x10000, v12")
    e("v_add_u32 v15, 0x20000, v11")
    e("v_add_u32 v63, 0x20000, v12")
    e("s_mul_i32 s41, s%d, 112" % S_T1)
    e("s_mul_i32 s42, s%d, 14" % SI)
    e("s_add_u32 s41, s41, s42")
    if part: e("s_add_u32 s41, s41, 56")
    e("s_lshl_b32 s41, s41, 11")
    e("v_lshlrev_b32 v13, 4, v%d" % L)
    e("v_add_u32 v13, s41, v13")
    e("v_and_b32 v14, 31, v%d" % L)

def q_pos(part, kk):
    c = kk >> 1; u = kk & 1
    if part == 0: return c * 16384 + u * 2048
    if c < 3: return WB2 + c * 16384 + u * 2048
    if c < 6: return c * 16384 + u * 2048
    return 0 * 16384 + u * 2048

HT = [51]
def q_load_h(e, kk, hreg, hv, tag):
    c = kk >> 1; u = kk & 1
    for nb in range(2):
        e("buffer_load_dwordx4 %s, v%d, s[%d:%d], s%d offen offset:%d%s" % (vr(hreg + 4 * nb, 4), hv, S_WS, S_WS + 3, HT[0] + c, u * 2048 + nb * 1024, HSC[0]))
        e.vm_issue(tag)

def q_steps(part, kks, hv, reg0=0):
    return [dict(part=part, kk=kk, hv=hv, hreg=Q_H + 8 * (reg0 + i), tag=("h", part, kk)) for i, kk in enumerate(kks)]

def q_issue_h(e, st):
    q_load_h(e, st["kk"], st["hreg"], st["hv"], st["tag"])

def q_mainloop(e, cfg, steps, init_zero, pre, extra=None, after_i=None, barrier_before=None):
    n = len(steps)
    def reads(i):
        st = steps[i]
        b = Q_A + 8 * (i & 1)
        pos = q_pos(st["part"], st["kk"])
        for mb in range(2):
            for ip in range(2):
                va = (11 + mb) if pos < 0x10000 else (18 + mb)
                po = pos if pos < 0x10000 else pos - 0x10000
                if pos >= 0x20000:
                    va = (15, 63)[mb]; po = pos - 0x20000
                e("ds_read_b64_tr_b16 %s, v%d offset:%d" % (vr(b + 4 * mb + 2 * ip, 2), va, po + ip * 1024))
                e.lg_issue(("A", i, mb))
    nxt = pre
    e.vm_wait([("wd", steps[0]["kk"])])
    reads(0)
    for i in range(n):
        st = steps[i]
        if nxt < n:
            q_issue_h(e, steps[nxt]); nxt += 1
            if nxt == n and extra: extra()
        late = (barrier_before is not None and i + 1 == barrier_before)
        if i + 1 < n and not late:
            e.vm_wait([("wd", steps[i + 1]["kk"])])
            reads(i + 1)
        e.vm_wait([st["tag"]])
        b = Q_A + 8 * (i & 1)
        for mb in range(2):
            e.lg_wait([("A", i, mb)])
            for nb in range(2):
                mfma(e, Q_ACC + 16 * (2 * mb + nb), b + 4 * mb, st["hreg"] + 4 * nb, "0" if (i == 0 and init_zero) else None)
        if late:
            e("s_barrier")
            reads(i + 1)
        if after_i: after_i(i)
    assert not e.lg and nxt >= n

def flags_line(e, part):
    e("s_lshr_b32 s43, s%d, 1" % S_T1)
    e("s_lshl_b32 s43, s43, 9")
    e("s_add_u32 s%d, s43, 0x%x" % (S_PF, FLAGS + 256 * part))

def q_loader_A(e, cfg):
    for i in range(4):
        e("v_add_u32 v%d, %d, v%d" % (20 + i, 896 * 896, 26 + i))
    stamp(e, cfg, 5)
    def after_i(i):
        if i == 1:
            dma_group(e, 62, q_pos(1, 12), [(S_WD, 20 + k, 44 + 6, k * 1024, ("wdb", 6)) for k in range(4)])
        if (i & 1) and 3 <= (i >> 1) < 6 - cfg.nca:
            c = i >> 1
            dma_group(e, 62, q_pos(1, 2 * c), [(S_WD, 20 + k, 44 + c, k * 1024, ("wdb", c)) for k in range(4)])
    q_mainloop(e, cfg, cfg.stepsA, True, cfg.hpre, None, after_i)
    stamp(e, cfg, 6)
    e("v_lshlrev_b32 v2, 4, v%d" % V_LANE)
    e("v_add_u32 v2, s62, v2")
    e("v_add_u32 v3, 0x10000, v2")
    e("s_nop 7"); e("s_nop 3")
    for tl, (va, off) in enumerate(((2, 16384), (2, 32768), (3, 6 * 16384 - 0x10000))):
        for qq in range(4):
            e("ds_write_b128 v%d, %s offset:%d" % (va, vr(Q_ACC + 16 * tl + 4 * qq, 4), off + qq * 1024))
    e("s_waitcnt vmcnt(0) lgkmcnt(0)")
    e.vm = []
    e("s_barrier")
    stamp(e, cfg, 7)
    e("v_add_u32 v3, 0x%x, v2" % WB2)
    for qq in range(4):
        e("ds_write_b128 v3, %s offset:%d" % (vr(Q_ACC + 48 + 4 * qq, 4), qq * 1024))
    e("s_waitcnt lgkmcnt(0)")
    e("s_barrier")

def tprime(e):
    L = V_LANE
    e("s_cmp_lg_u32 s%d, 0" % S_T1)
    e("s_cselect_b32 s76, s63, 0")
    e("v_add_u32 v2, s76, v14")
    e("v_lshrrev_b32 v8, 5, v%d" % L)
    e("v_lshlrev_b32 v8, 2, v8")
    e("s_lshl_b32 s77, s%d, 4" % SI)
    e("v_add_u32 v8, s77, v8")
    e("s_lshl_b32 s76, s63, 31")
    e("s_mov_b32 s77, 0x%08x" % f2u(1.0 / 64))
    for nb in range(2):
        if nb: e("v_add_u32 v2, 32, v2")
        e("v_xor_b32 v21, s76, v%d" % (22 + nb))
        for u in range(2):
            for q in range(4):
                e("v_add_u32 v3, %d, v8" % (8 * u + q))
                e("v_mul_u32_u24 v3, v3, v2")
                e("v_and_b32 v3, 63, v3")
                e("v_cvt_f32_u32 v3, v3")
                e("v_mul_f32 v3, s77, v3")
                e("v_cos_f32 v5, v3")
                e("v_sin_f32 v6, v3")
                e("s_nop 0")
                e("v_mul_f32 v5, v5, v%d" % (22 + nb))
                e("v_mul_f32 v6, v6, v21")
                e("v_cvt_pk_bf16_f32 v%d, v5, v6" % (T_REG + 8 * nb + 4 * u + q))
    for nb in range(2):
        e("v_sub_f32 v%d, 1.0, v%d" % (40 + 2 * nb, 22 + nb))
        e("v_mov_b32 v%d, v%d" % (41 + 2 * nb, 40 + 2 * nb))

T_REG = 44
U_REG = 128
def q_consumer_B(e, cfg):
    L = V_LANE
    q_setup(e, 1, 26)
    q_setup2(e, 1)
    e("v_subrev_u32 v9, %d, v13" % (56 * 2048))
    srd(e, S_OUT, 46, 1835008)
    srd(e, S_WD, 56, 1605632)
    q_table(e, 44, 2 * 16 * 896)
    q_table(e, 51, 4096)
    e.vm_wait(["pollA"])
    okA = e.newlabel("AOK")
    topA = e.newlabel("ATOP")
    e("s_mov_b32 s41, 0")
    e.label(topA)
    e("v_cmp_eq_u32 vcc, s%d, v60" % S_NONCE)
    e("s_nop 1")
    e("s_and_b32 s42, vcc_lo, 0x3fff")
    e("s_cmp_eq_u32 s42, 0x3fff")
    e("s_cselect_b32 s42, vcc_hi, 0")
    e("s_cmp_eq_u32 s42, -1")
    e("s_cbranch_scc1 %s" % okA)
    e("s_add_u32 s41, s41, 1")
    e("s_cmp_ge_u32 s41, 0x40000")
    e("s_cbranch_scc1 %s" % okA)
    poll_issue(e)
    e("s_waitcnt vmcnt(0)")
    e("s_branch %s" % topA)
    e.label(okA)
    stepsCA = q_steps(0, list(range(2 * (6 - cfg.nca), 12)), 9)
    for st in stepsCA[:cfg.preCA]: q_issue_h(e, st)
    e("s_cmp_ge_u32 s%d, 4" % S_C)
    e("s_cselect_b32 s63, 1, 0")
    e("s_sub_u32 s64, 32, s%d" % S_T1)
    e("s_and_b32 s64, s64, 31")
    e("s_cmp_eq_u32 s63, 1")
    e("s_cselect_b32 s64, s64, s%d" % S_T1)
    e("v_lshrrev_b32 v8, 5, v%d" % L)
    e("s_lshl_b32 s41, s%d, 6" % S_C)
    e("s_cmp_eq_u32 s63, 1")
    e("s_cselect_b64 vcc, -1, 0")
    for mb in range(2):
        e("v_add_u32 v2, s41, v14")
        if mb: e("v_add_u32 v2, 32, v2")
        e("v_sub_u32 v3, 448, v2")
        e("v_cndmask_b32 v2, v2, v3, vcc")
        e("v_lshlrev_b32 v2, 4, v2")
        e("v_lshlrev_b32 v3, 12, v8")
        e("v_add_u32 v%d, v2, v3" % (16 + mb))
    e("s_lshl_b32 s41, s64, 4")
    e("s_lshl_b32 s42, s%d, 2" % SI)
    e("s_add_u32 s41, s41, s42")
    e("s_lshl_b32 s41, s41, 12")
    e("s_add_u32 s65, s41, 0x%x" % UBUF)
    e("s_lshl_b32 s41, s%d, 6" % S_T1)
    e("v_add_u32 v2, s41, v14")
    e("v_lshlrev_b32 v2, 2, v2")
    e("v_add_u32 v20, 0x%x, v2" % GBUF)
    e("s_mul_i32 s41, s61, 12")
    e("s_lshl_b32 s42, s%d, 2" % S_WAVE)
    e("s_add_u32 s41, s41, s42")
    e("s_add_u32 s41, s41, 256")
    e("s_add_u32 s%d, s%d, s41" % (S_FLAG, S_FLAG))
    e.vm_wait(["hst"])
    stamp(e, cfg, 6)
    flag_store(e)
    e.vm_issue("flagB")
    for nb in range(2):
        e("buffer_load_dword v%d, v20, s[%d:%d], 0 offen offset:%d sc1" % (22 + nb, S_WS, S_WS + 3, nb * 128))
        e.vm_issue("g")
    for st in stepsCA[cfg.preCA:]: q_issue_h(e, st)
    for c in range(3): q_dma_pair(e, 1, c, 26, 44)
    e.vm_wait(["g"])
    tprime(e)
    def afterA(i):
        if i & 1:
            c = 6 - cfg.nca + (i >> 1)
            q_dma_pair(e, 1, c, 26, 44)
    if stepsCA:
        q_mainloop(e, cfg, stepsCA, True, len(stepsCA), None, afterA)
    stamp(e, cfg, 4)
    flags_line(e, 1)
    poll_prep(e, S_PF, 56)
    poll_loop56(e)
    stamp(e, cfg, 5)
    e.vm = []
    e("v_lshlrev_b32 v62, 2, v%d" % V_LANE)
    e("v_add_u32 v62, 0x%x, v62" % (FLAGS + 16 * 512))
    e("v_mov_b32 v60, 0x7fffffff")
    e("v_cmp_gt_u32 vcc, 32, v%d" % V_LANE)
    e("s_nop 1")
    e("v_cndmask_b32 v62, v60, v62, vcc")
    def uloads():
        for u in range(2):
            for mb in range(2):
                e("s_add_u32 s%d, s65, %d" % (S_OFF, u * 2 * 4096))
                e("buffer_load_dwordx4 %s, v%d, s[%d:%d], s%d offen sc1" % (vr(U_REG + 8 * u + 4 * mb, 4), 16 + mb, S_WS, S_WS + 3, S_OFF))
                e.vm_issue("u")
    def dflag_issue():
        e("buffer_load_dword v10, v62, s[%d:%d], 0 offen sc1" % (S_WS, S_WS + 3))
        e.vm_issue("dflag")
    def after_k(kk):
        if kk == cfg.dchk:
            ok = e.newlabel("DOK"); top = e.newlabel("DSP")
            e.vm_wait(["dflag"])
            sv = list(e.vm)
            e("s_mov_b32 s41, 0")
            e.label(top)
            e("v_cmp_eq_u32 vcc, s%d, v10" % S_NONCE)
            e("s_nop 1")
            e("s_cmp_eq_u32 vcc_lo, -1")
            e("s_cbranch_scc1 %s" % ok)
            e("s_add_u32 s41, s41, 1")
            e("s_cmp_ge_u32 s41, 0x40000")
            e("s_cbranch_scc1 %s" % ok)
            e("buffer_load_dword v10, v62, s[%d:%d], 0 offen sc1" % (S_WS, S_WS + 3))
            e("s_waitcnt vmcnt(0)")
            e("s_branch %s" % top)
            e.label(ok)
            e.vm = sv
            uloads()
    stepsB = q_steps(1, list(range(14)), 13)
    for i in range(cfg.hpreB): q_issue_h(e, stepsB[i])
    q_mainloop(e, cfg, stepsB, cfg.nca == 0, cfg.hpreB, dflag_issue, after_k, 2 if cfg.nca == 3 else 6)
    stamp(e, cfg, 7)
    e("s_nop 7"); e("s_nop 3")
    for mb in range(2):
        for nb in range(2):
            D = Q_ACC + 16 * (2 * mb + nb)
            for i in range(0, 16, 2):
                e("v_pk_mul_f32 %s, %s, %s" % (vr(D + i, 2), vr(D + i, 2), vr(40 + 2 * nb, 2)))
    e.vm_wait(["u"])
    e("s_nop 1")
    for u in range(2):
        for mb in range(2):
            for nb in range(2):
                mfma(e, Q_ACC + 16 * (2 * mb + nb), U_REG + 8 * u + 4 * mb, T_REG + 8 * nb + 4 * u)
    e("s_barrier")
    e("v_lshlrev_b32 v2, 4, v%d" % L)
    e("s_add_u32 s41, s%d, 2" % SI)
    e("s_cmp_eq_u32 s%d, 0" % SI)
    e("s_cselect_b32 s41, 0, s41")
    e("s_lshl_b32 s41, s41, 14")
    e("v_add_u32 v3, s41, v2")
    e("s_add_u32 s41, s%d, 1" % SI)
    e("s_lshl_b32 s41, s41, 14")
    e("s_cmp_eq_u32 s%d, 2" % SI)
    e("s_cselect_b32 s41, %d, s41" % (6 * 16384))
    e("s_cmp_eq_u32 s%d, 3" % SI)
    e("s_cselect_b32 s41, 0x%x, s41" % WB2)
    e("v_add_u32 v5, s41, v2")
    for k in range(4):
        for qq in range(4):
            e("ds_read_b128 %s, v5 offset:%d" % (vr(192 + 16 * k + 4 * qq, 4), k * 4096 + qq * 1024))
        if k == 2: e("s_waitcnt lgkmcnt(8)")
    e("s_waitcnt lgkmcnt(6)")
    for tl in range(4):
        for qq in range(4):
            e("ds_write_b128 v3, %s offset:%d" % (vr(Q_ACC + 16 * tl + 4 * qq, 4), tl * 4096 + qq * 1024))
        if tl < 3: e("s_waitcnt lgkmcnt(6)")
    e("s_waitcnt lgkmcnt(0)")
    e("s_barrier")
    e("s_lshl_b32 s41, s%d, 12" % SI)
    e("v_add_u32 v3, s41, v2")
    e("v_add_u32 v6, 0x10000, v3")
    for k, (va, off) in enumerate(((3, 0), (3, 3 * 16384), (6, 0), (6, 16384))):
        for qq in range(4):
            e("ds_read_b128 %s, v%d offset:%d" % (vr(128 + 16 * k + 4 * qq, 4), va, off + qq * 1024))
        if k == 2: e("s_waitcnt lgkmcnt(8)")
    for q in range(0, 16, 2):
        e("v_pk_add_f32 %s, %s, %s" % (vr(192 + q, 2), vr(192 + q, 2), vr(208 + q, 2)))
        e("v_pk_add_f32 %s, %s, %s" % (vr(224 + q, 2), vr(224 + q, 2), vr(240 + q, 2)))
    for q in range(0, 16, 2):
        e("v_pk_add_f32 %s, %s, %s" % (vr(192 + q, 2), vr(192 + q, 2), vr(224 + q, 2)))
    e("s_and_b32 s41, s%d, 1" % SI)
    e("s_cmp_eq_u32 s41, 1")
    e("s_cselect_b64 vcc, -1, 0")
    e("s_nop 1")
    e("v_cndmask_b32 v40, v40, v42, vcc")
    e("v_mov_b32 v41, v40")
    e("s_lshl_b32 s41, s41, 5")
    e("v_add_u32 v2, s41, v14")
    e("v_lshlrev_b32 v2, 5, v2")
    e("v_add_u32 v2, s%d, v2" % S_T1)
    e("s_movk_i32 s42, 896")
    e("v_mul_lo_u32 v2, v2, s42")
    e("s_lshl_b32 s41, s%d, 7" % S_C)
    e("s_lshr_b32 s42, s%d, 1" % SI)
    e("s_lshl_b32 s42, s42, 6")
    e("s_add_u32 s41, s41, s42")
    e("v_lshrrev_b32 v8, 5, v%d" % L)
    e("v_lshlrev_b32 v8, 4, v8")
    e("v_add3_u32 v2, v2, v8, s41")
    e("s_waitcnt lgkmcnt(0)")
    for q in range(0, 16, 2):
        e("v_pk_add_f32 %s, %s, %s" % (vr(128 + q, 2), vr(128 + q, 2), vr(144 + q, 2)))
        e("v_pk_add_f32 %s, %s, %s" % (vr(160 + q, 2), vr(160 + q, 2), vr(176 + q, 2)))
    for q in range(0, 16, 2):
        e("v_pk_fma_f32 %s, %s, %s, %s" % (vr(128 + q, 2), vr(192 + q, 2), vr(40, 2), vr(128 + q, 2)))
    for q in range(0, 16, 2):
        e("v_pk_add_f32 %s, %s, %s" % (vr(128 + q, 2), vr(128 + q, 2), vr(160 + q, 2)))
    for q in range(8):
        e("v_cvt_pk_bf16_f32 v%d, v%d, v%d" % (96 + q, 128 + 2 * q, 128 + 2 * q + 1))
    e("s_nop 1")
    for ih in range(2):
        e("v_permlane32_swap_b32 v%d, v%d" % (96 + 4 * ih, 98 + 4 * ih))
        e("v_permlane32_swap_b32 v%d, v%d" % (97 + 4 * ih, 99 + 4 * ih))
    for ih in range(2):
        e("buffer_store_dwordx4 %s, v2, s[%d:%d], 0 offen offset:%d%s" % (vr(96 + 4 * ih, 4), S_OUT, S_OUT + 3, ih * 32, OSC[0]))
    stamp(e, cfg, 8)

def kernel_fused2(e, cfg):
    name = "gated_mix__spectral_fnet__glu_gated_glu__prompt_kernel"
    header(e, name)
    if cfg.diag:
        e("s_memrealtime s[%d:%d]" % (S_STAMP + 6, S_STAMP + 7))
    e("s_cmp_ge_u32 s2, 256")
    e("s_cbranch_scc1 KF_END")
    kernarg_loads(e)
    entry_common(e)
    e("s_and_b32 s%d, s%d, 3" % (S_WF, S_WAVE))
    e("s_and_b32 s%d, s%d, 3" % (S_LW, S_WAVE))
    e("s_and_b32 s41, s2, 7")
    e("s_lshr_b32 s42, s2, 3")
    e("s_cmp_ge_u32 s42, 28")
    e("s_cbranch_scc1 P1_DFT")
    e("s_mul_i32 s43, s42, 37")
    e("s_lshr_b32 s43, s43, 8")
    e("s_mul_i32 s76, s43, 7")
    e("s_sub_u32 s76, s42, s76")
    e("s_lshr_b32 s77, s41, 1")
    e("s_lshl_b32 s77, s77, 2")
    e("s_add_u32 s%d, s77, s43" % S_R)
    e("s_and_b32 s77, s41, 1")
    e("s_mul_i32 s77, s77, 7")
    e("s_add_u32 s%d, s77, s76" % S_FB)
    e("s_cmp_lt_u32 s%d, 4" % S_WAVE)
    e("s_cbranch_scc1 P1_H_CONSUMER")
    e.vm = []; e.lg = []
    STG[0] = True
    h2_loader(e, cfg)
    q_loader_A(e, cfg)
    STG[0] = False
    stamp_store(e, cfg, 0)
    e("s_endpgm")
    e.label("P1_H_CONSUMER")
    e.vm = []; e.lg = []
    h2_consumer(e, cfg)
    q_consumer_B(e, cfg)
    stamp_store(e, cfg, 0)
    e("s_endpgm")
    e.label("P1_DFT")
    e("s_sub_u32 s42, s42, 28")
    e("s_and_b32 s%d, s41, 1" % S_EH)
    e("s_lshr_b32 s77, s41, 1")
    e("s_lshl_b32 s77, s77, 2")
    e("s_add_u32 s%d, s77, s42" % S_QG)
    e("s_cmp_ge_u32 s%d, 4" % S_WAVE)
    e("s_cbranch_scc1 P1_D_LOADER")
    e.vm = []; e.lg = []
    p1_consumer(e, cfg, False)
    d_epilogue(e, cfg)
    stamp(e, cfg, 3)
    e.vm_wait_all()
    e("s_barrier")
    lab = e.newlabel("DNOTW0")
    e("s_cmp_lg_u32 s%d, 0" % S_WAVE)
    e("s_cbranch_scc1 %s" % lab)
    flag_store(e)
    e("s_waitcnt vmcnt(0)")
    e.label(lab)
    stamp_store(e, cfg, 0)
    e("s_endpgm")
    e.label("P1_D_LOADER")
    e.vm = []; e.lg = []
    p1_loader(e, cfg, False)
    stamp(e, cfg, 3)
    e("s_waitcnt vmcnt(0)")
    e("s_barrier")
    stamp_store(e, cfg, 0)
    e("s_endpgm")
    e.label("KF_END")
    e("s_endpgm")
    e.label("KF_CODE_END")

def descriptor(name):
    return """.section .rodata,"a"
.p2align 6
.amdhsa_kernel %s
  .amdhsa_next_free_vgpr 256
  .amdhsa_next_free_sgpr 102
  .amdhsa_accum_offset 256
  .amdhsa_group_segment_fixed_size 0
  .amdhsa_kernarg_size 104
  .amdhsa_user_sgpr_count 2
  .amdhsa_user_sgpr_kernarg_segment_ptr 1
  .amdhsa_system_sgpr_workgroup_id_x 1
.end_amdhsa_kernel
""" % name

def main():
    cfg = Cfg()
    cfg.pro_extra = 8; cfg.stage_budget = 8; cfg.p2_la = 3; cfg.p2_dpoll = 4; cfg.stage_budget2 = 6; cfg.flagA_bar = 22; cfg.epi_rate = 0; cfg.epi_start = 1; cfg.epoll = 26; cfg.hpre = 5; cfg.preCA = 0; cfg.nca = 2; cfg.hpreB = 5; cfg.dchk = 11; cfg.gate_j = 5; cfg.ncx = 0; cfg.gate_g = 14; cfg.gate_rate = 3; cfg.defer_rate = 3; cfg.pfWd_j = 1; cfg.pfW_j = 1
    out = sys.argv[1]
    for a in sys.argv[2:]:
        if a == "nop2rot": P2ROT[0] = 0
        if a == "rmul1": RMUL[0] = 1
        if a == "osc1": OSC[0] = " sc1"
        if a == "ont": OSC[0] = " nt"
        if a == "osc01": OSC[0] = " sc0 sc1"
        if a == "hplain": HSC[0] = ""
        if a == "hnt": HSC[0] = " nt"
        if a == "hsc01": HSC[0] = " sc0 sc1"
        if a == "diag": cfg.diag = True
        elif a == "fused": cfg.fused = True
        elif "=" in a:
            k, v = a.split("="); setattr(cfg, k, int(v))
        else: cfg.x = cfg.x | {a}
    e = Em()
    if cfg.fused:
        name = "gated_mix__spectral_fnet__glu_gated_glu__prompt_kernel"
        hdr = "; generated by gen2.py (fused)\n; @launch grid=(256,1,1) block=(512,1,1) lds=163840\n"
        hdr += '.amdgcn_target "amdgcn-amd-amdhsa--gfx950"\n'
        kernel_fused2(e, cfg)
        open(out, "w").write(hdr + e.text() + descriptor(name))
        return
    hdr = "; generated by gen2.py\n"
    hdr += "; @launch kernel=k1_kernel grid=(256,1,1) block=(512,1,1) lds=163840\n"
    hdr += "; @launch kernel=k2_kernel grid=(256,1,1) block=(512,1,1) lds=163840\n"
    hdr += '.amdgcn_target "amdgcn-amd-amdhsa--gfx950"\n'
    kernel1(e, cfg)
    kernel2(e, cfg)
    txt = hdr + e.text() + descriptor("k1_kernel") + descriptor("k2_kernel")
    open(out, "w").write(txt)
if __name__ == "__main__":
    main()
```

```python
import sys, math, struct

def f2u(f): return struct.unpack("<I", struct.pack("<f", f))[0]

class Em:
    def __init__(self):
        self.lines = []
        self.vm = []
        self.lg = []
        self.nlab = 0
    def __call__(self, s): self.lines.append("    " + s)
    def raw(self, s): self.lines.append(s)
    def label(self, s): self.lines.append(s + ":")
    def newlabel(self, p):
        self.nlab += 1
        return "%s_%d" % (p, self.nlab)
    def vm_issue(self, tag): self.vm.append(tag)
    def vm_wait(self, tags):
        last = -1
        for i, t in enumerate(self.vm):
            if t in tags: last = i
        if last < 0: return
        n = len(self.vm) - 1 - last
        assert n <= 63, n
        self("s_waitcnt vmcnt(%d)" % n)
        self.vm = self.vm[last + 1:]
    def vm_wait_all(self):
        self("s_waitcnt vmcnt(0)"); self.vm = []
    def lg_issue(self, tag): self.lg.append(tag)
    def lg_wait(self, tags):
        last = -1
        for i, t in enumerate(self.lg):
            if t in tags: last = i
        if last < 0: return
        n = len(self.lg) - 1 - last
        assert n <= 15, n
        self("s_waitcnt lgkmcnt(%d)" % n)
        self.lg = self.lg[last + 1:]
    def lg_wait_all(self):
        self("s_waitcnt lgkmcnt(0)"); self.lg = []
    def text(self): return "\n".join(self.lines) + "\n"

def vr(a, n=1): return "v%d" % a if n == 1 else "v[%d:%d]" % (a, a + n - 1)

HBUF = 0
UBUF = 0x700000
GBUF = 0x900000
FLAGS = 0x910000
DIAG = 0xA00000
WS_BYTES = 0x1000000
LOG2E = 1.4426950408889634

S_X = 8; S_WA = 12; S_WB = 16; S_WS = 20; S_GW = 24; S_OUT = 28; S_WD = 32; S_DBG = 36
S_WAVE = 40
S_R = 60; S_FB = 61; S_QG = 62; S_EH = 63
S_WF = 64; S_LW = 65
S_LDSW = 66; S_LDSX = 67
S_OFF = 68
S_T1 = 70; S_C = 71
S_STAMP = 80
S_NONCE = 98; S_FLAG = 99; S_PF = 100
V_LANE = 1

class Cfg:
    fused = False
    diag = False
    x = set()

def kernarg_loads(e):
    e("s_load_dwordx2 s[44:45], s[0:1], 0")
    e("s_load_dwordx4 s[48:51], s[0:1], 24")
    e("s_load_dwordx4 s[52:55], s[0:1], 48")
    e("s_load_dwordx4 s[56:59], s[0:1], 64")
    e("s_load_dwordx2 s[46:47], s[0:1], 80")
    e("s_load_dwordx4 s[72:75], s[0:1], 88")

def srd(e, dst, lo, nbytes):
    e("s_mov_b32 s%d, s%d" % (dst, lo))
    e("s_and_b32 s%d, s%d, 0xffff" % (dst + 1, lo + 1))
    e("s_mov_b32 s%d, 0x%x" % (dst + 2, nbytes))
    e("s_mov_b32 s%d, 0x20000" % (dst + 3))

NSTAMP = 6
STG = [False]
def stamp(e, cfg, k):
    if cfg.diag and not ("stg" in cfg.x and k in (4,5,6,7) and STG[0]):
        assert not e.lg
        e("s_memrealtime s[%d:%d]" % (S_STAMP + 2 * k, S_STAMP + 2 * k + 1))
        if k in (1, 2) and not cfg.fused:
            e("s_memtime s[%d:%d]" % (S_STAMP + 12 + 2 * (k - 1), S_STAMP + 13 + 2 * (k - 1)))
        e("s_waitcnt lgkmcnt(0)")

def stamp_store(e, cfg, slot_base):
    if not cfg.diag: return
    e("s_lshl_b32 s41, s2, 3")
    e("s_add_u32 s41, s41, s%d" % S_WAVE)
    e("s_lshl_b32 s41, s41, 6")
    e("s_add_u32 s41, s41, 0x%x" % (DIAG + slot_base))
    e("v_mov_b32 v1, s41")
    for k in range(9 if cfg.fused else NSTAMP + 2):
        e("v_mov_b32 v2, s%d" % (S_STAMP + 2 * k))
        e("buffer_store_dword v2, v1, s[%d:%d], 0 offen offset:%d" % (S_WS, S_WS + 3, 4 * k))
        e("s_nop 1")
    e("v_mov_b32 v2, s7")
    e("buffer_store_dword v2, v1, s[%d:%d], 0 offen offset:36" % (S_WS, S_WS + 3))
    e("s_waitcnt vmcnt(0)")

def mfma(e, d, a, b, c=None):
    cs = vr(d, 16) if c is None else c
    e("v_mfma_f32_32x32x16_bf16 %s, %s, %s, %s" % (vr(d, 16), vr(a, 4), vr(b, 4), cs))

NODMA = [False]
def dma_group(e, sldsbase, ldsconst, items):
    e("s_add_u32 m0, s%d, 0x%x" % (sldsbase, ldsconst))
    e("s_nop 0")
    for (srdreg, vaddr, soff, ioff, tag) in items:
        e("buffer_load_dwordx4 v%d, s[%d:%d], s%d offen offset:%d lds" % (vaddr, srdreg, srdreg + 3, soff, ioff))
        e.vm_issue(tag)
def fill_table(e, first, n, scnt, mod, emit):
    for c in range(n):
        emit(first + c)
        if c + 1 < n: rot_next(e, scnt, mod)
def rot_next(e, sreg, n):
    e("s_add_u32 s%d, s%d, 1" % (sreg, sreg))
    e("s_cmp_eq_u32 s%d, %d" % (sreg, n))
    e("s_cselect_b32 s%d, 0, s%d" % (sreg, sreg))
def dma(e, srdreg, vaddr, ldsconst, sldswave, soff, tag):
    if NODMA[0]:
        e.vm_issue(tag); e.vm.pop(); return
    e("s_add_u32 m0, s%d, 0x%x" % (sldswave, ldsconst))
    if soff is None:
        e("s_nop 0")
    else:
        e("s_mov_b32 s%d, 0x%x" % (S_OFF, soff))
    e("buffer_load_dwordx4 v%d, s[%d:%d], s%d offen lds" % (vaddr, srdreg, srdreg + 3, S_OFF))
    e.vm_issue(tag)

XSLOT = 16384; NX = 4
WBASE = 65536; NW = 6; WSLOT = 16384
ACC = 64
def accA(i): return ACC + 16 * i
def accB(i): return ACC + 64 + 16 * i
FR = 192
V_XA = 10
V_WA = 14
CONST_LDS = 0

def p1_consumer_addr(e, is_h):
    L = V_LANE; T = 26
    e("v_and_b32 v%d, 31, v%d" % (T, L))
    e("v_lshrrev_b32 v%d, 5, v%d" % (T + 1, L))
    e("v_lshrrev_b32 v%d, 1, v%d" % (T + 2, T))
    e("v_and_b32 v%d, 7, v%d" % (T + 2, T + 2))
    e("v_lshlrev_b32 v%d, 7, v%d" % (T + 3, T))
    if not is_h:
        e("s_lshl_b32 s41, s%d, 5" % S_WF)
        e("v_add_u32 v%d, s41, v%d" % (T + 5, T))
        e("v_lshlrev_b32 v%d, 7, v%d" % (T + 5, T + 5))
        e("v_add_u32 v%d, 0x%x, v%d" % (T + 5, WBASE, T + 5))
    for k in range(4):
        e("v_add_u32 v%d, %d, v%d" % (T + 4, 2 * k, T + 1))
        e("v_xor_b32 v%d, v%d, v%d" % (T + 4, T + 4, T + 2))
        e("v_lshlrev_b32 v%d, 4, v%d" % (T + 4, T + 4))
        e("v_add_u32 v%d, v%d, v%d" % (V_XA + k, T + 3, T + 4))
        if not is_h:
            e("v_add_u32 v%d, v%d, v%d" % (V_WA + k, T + 5, T + 4))
            e("v_add_u32 v%d, 0x10000, v%d" % (V_WA + 4 + k, V_WA + k))
    if is_h:
        e("v_and_b32 v%d, 15, v%d" % (T + 4, L))
        e("v_lshrrev_b32 v%d, 2, v%d" % (T + 5, T + 4))
        e("v_lshlrev_b32 v%d, 3, v%d" % (T + 6, T + 1))
        e("v_add_u32 v%d, v%d, v%d" % (T + 6, T + 6, T + 5))
        e("v_lshlrev_b32 v%d, 8, v%d" % (T + 6, T + 6))
        e("v_xor_b32 v%d, s%d, v%d" % (T + 7, S_WF, T + 5))
        e("v_lshlrev_b32 v%d, 6, v%d" % (T + 7, T + 7))
        e("v_add_u32 v%d, v%d, v%d" % (T + 6, T + 6, T + 7))
        e("v_bfe_u32 v%d, v%d, 4, 1" % (T + 7, L))
        e("v_lshlrev_b32 v%d, 5, v%d" % (T + 7, T + 7))
        e("v_add_u32 v%d, v%d, v%d" % (T + 6, T + 6, T + 7))
        e("v_and_b32 v%d, 3, v%d" % (T + 7, T + 4))
        e("v_lshlrev_b32 v%d, 3, v%d" % (T + 7, T + 7))
        e("v_add_u32 v%d, v%d, v%d" % (T + 6, T + 6, T + 7))
        e("v_add_u32 v%d, 0x%x, v%d" % (V_WA, WBASE, T + 6))
        e("v_add_u32 v%d, 0x%x, v%d" % (V_WA + 1, WBASE + 0x10000, T + 6))

def p1_reads(kap, is_h):
    base = FR + 24 * (kap & 1)
    c = kap >> 2; kk4 = kap & 3
    def xr(nb): return (("X", kap, nb), "ds_read_b128 %s, v%d offset:%d" % (vr(base + 4 * nb, 4), V_XA + kk4, (c % NX) * XSLOT + nb * 4096))
    if is_h:
        j = kap >> 1; kk = kap & 1
        slot = (j % NW) * WSLOT
        va = V_WA + (1 if slot >= 0x10000 else 0); so = slot & 0xffff
        def wr(m, ip): return (("W", kap, m), "ds_read_b64_tr_b16 %s, v%d offset:%d" % (vr(base + 16 + 4 * m + 2 * ip, 2), va, so + m * 8192 + (16 * kk + 4 * ip) * 256))
        return [wr(0, 0), wr(0, 1), xr(0), wr(1, 0), wr(1, 1), xr(1), xr(2), xr(3)]
    else:
        slot = (c % 3) * 32768
        va = V_WA + kk4 + (4 if slot >= 0x10000 else 0); so = slot & 0xffff
        def wr(m): return (("W", kap, m), "ds_read_b128 %s, v%d offset:%d" % (vr(base + 16 + 4 * m, 4), va, so + m * 16384))
        return [wr(0), xr(0), wr(1), xr(1), xr(2), xr(3)]

def p1_consumer(e, cfg, is_h):
    p1_consumer_addr(e, is_h)
    e("s_waitcnt lgkmcnt(0)")
    srd(e, S_WS, 74, WS_BYTES)
    if cfg.fused:
        flag_addr(e, is_h)
        nonce_issue(e)
    if not is_h:
        srd(e, S_X, 44, 1835008)
        srd(e, S_GW, 58, 896)
        e("s_mov_b32 s%d, s%d" % (S_LW, S_WAVE))
        gate4_issue(e)
        for p in range(4): gate4_pass(e, p)
    stamp(e, cfg, 0)
    if (not is_h) and "pfcode" in cfg.x:
        lab = e.newlabel("PC")
        e("s_getpc_b64 s[42:43]")
        e.label(lab)
        e("s_sub_u32 s42, s42, (%s - gated_mix__spectral_fnet__glu_gated_glu__prompt_kernel)" % lab)
        e("s_subb_u32 s43, s43, 0")
        e("s_lshr_b32 s41, s2, 3")
        e("s_sub_u32 s41, s41, 28")
        e("s_lshl_b32 s41, s41, 2")
        e("s_add_u32 s41, s41, s%d" % S_WAVE)
        e("s_mul_i32 s41, s41, 16")
        e("v_and_b32 v9, 15, v%d" % V_LANE)
        e("v_add_u32 v8, s41, v9")
        e("v_lshlrev_b32 v8, 7, v8")
        e("v_min_u32 v8, (KF_CODE_END - gated_mix__spectral_fnet__glu_gated_glu__prompt_kernel - 4), v8")
        e("v_mov_b32 v9, s43")
        e("v_add_co_u32 v8, vcc, s42, v8")
        e("s_nop 1")
        e("v_addc_co_u32 v9, vcc, 0, v9, vcc")
        e("global_load_dword v3, v[8:9], off")
    e("s_barrier")
    stamp(e, cfg, 1)
    for tag, txt in p1_reads(0, is_h):
        e(txt); e.lg_issue(tag)
    for kap in range(28):
        base = FR + 24 * (kap & 1)
        nxt = p1_reads(kap + 1, is_h) if kap + 1 < 28 else []
        for n in range(8):
            nb = n >> 1; m = n & 1
            e.lg_wait([("W", kap, m), ("X", kap, nb)])
            d = accA(nb) if m == 0 else accB(nb)
            W = base + 16 + 4 * m; X = base + 4 * nb
            c = "0" if kap == 0 else None
            if "no32" in cfg.x:
                for hh in range(2):
                    e("v_mfma_f32_16x16x32_bf16 %s, %s, %s, %s" % (vr(d + 8 * hh, 4), vr(W, 4), vr(X, 4), vr(d + 8 * hh, 4)))
            elif "nomfma" not in cfg.x:
                if is_h: mfma(e, d, W, X, c)
                else: mfma(e, d, X, W, c)
            if nxt and n < len(nxt):
                tag, txt = nxt[n]
                if "nolds" in cfg.x: e.lg_issue(tag); e.lg.pop()
                else:
                    e(txt); e.lg_issue(tag)
        if (not is_h) and kap == cfg.gflag_k - 4:
            nonce_load(e)
        if (not is_h) and kap == cfg.gflag_k:
            e("s_waitcnt vmcnt(0)"); e.vm = []
        if (kap & 1) and kap < 27:
            e("s_barrier")
        if (not is_h) and kap == cfg.gflag_k:
            lab = e.newlabel("GF")
            e("s_cmp_lg_u32 s%d, 0" % S_WAVE)
            e("s_cbranch_scc1 %s" % lab)
            nonce_finish_any(e, keepvm=True)
            e("s_add_u32 s%d, s%d, 128" % (S_FLAG, S_FLAG))
            flag_store(e)
            e("s_sub_u32 s%d, s%d, 128" % (S_FLAG, S_FLAG))
            e.label(lab)
        if cfg.fused and kap == 21:
            nonce_load(e)
    assert not e.lg
    if cfg.fused and is_h:
        e("s_barrier")
    if cfg.fused:
        nonce_finish(e)
    stamp(e, cfg, 2)

def h_epilogue(e, cfg):
    sc = " sc1" if cfg.fused else ""
    e("s_lshl_b32 s41, s%d, 1" % S_R)
    e("s_mul_i32 s41, s41, 112")
    e("s_lshl_b32 s42, s%d, 2" % S_FB)
    e("s_add_u32 s42, s42, s%d" % S_WF)
    e("s_lshl_b32 s42, s42, 1")
    e("s_add_u32 s41, s41, s42")
    e("s_lshl_b32 s41, s41, 11")
    e("v_lshlrev_b32 v26, 4, v%d" % V_LANE)
    e("v_add_u32 v26, s41, v26")
    e("v_add_u32 v27, 0x%x, v26" % (112 * 2048))
    e("s_mov_b32 s42, 0x%08x" % f2u(-LOG2E))
    e("s_mov_b32 s43, s42")
    e("s_mov_b32 s44, 1.0")
    e("s_mov_b32 s45, 1.0")
    e("s_nop 7")
    grp = 0
    for nb in range(4):
        for hf in range(2):
            outb = FR + 4 * (grp % 8); grp += 1
            A = accA(nb) + 8 * hf; B = accB(nb) + 8 * hf
            for q in range(0, 8, 2):
                e("v_pk_mul_f32 %s, %s, s[42:43]" % (vr(A + q, 2), vr(A + q, 2)))
            for q in range(8):
                e("v_exp_f32 v%d, v%d" % (A + q, A + q))
            for q in range(0, 8, 2):
                e("v_pk_add_f32 %s, %s, s[44:45]" % (vr(A + q, 2), vr(A + q, 2)))
            for q in range(8):
                e("v_rcp_f32 v%d, v%d" % (A + q, A + q))
            for q in range(0, 8, 2):
                e("v_pk_mul_f32 %s, %s, %s" % (vr(A + q, 2), vr(A + q, 2), vr(B + q, 2)))
            for q2 in range(4):
                e("v_cvt_pk_bf16_f32 v%d, v%d, v%d" % (outb + q2, A + 2 * q2, A + 2 * q2 + 1))
            e("buffer_store_dwordx4 %s, v%d, s[%d:%d], 0 offen offset:%d%s" % (vr(outb, 4), 26 + (nb >> 1), S_WS, S_WS + 3, hf * 2048 + (nb & 1) * 1024, sc))
            e.vm_issue("hst")

def d_epilogue(e, cfg):
    sc = " sc1" if cfg.fused else ""
    L = V_LANE
    ZB = [192, 208, 224, 240]
    e("s_nop 7"); e("s_nop 3")
    for sb in range(4):
        for hf in range(2):
            for pr in range(4):
                q = 8 * hf + 2 * pr
                e("v_cvt_pk_bf16_f32 v%d, v%d, v%d" % (ZB[sb] + 4 * hf + pr, accA(sb) + q, accA(sb) + q + 1))
                e("v_cvt_pk_bf16_f32 v%d, v%d, v%d" % (ZB[sb] + 8 + 4 * hf + pr, accB(sb) + q, accB(sb) + q + 1))
    e("s_barrier")
    e("v_lshlrev_b32 v2, 4, v%d" % L)
    def cread(sb):
        b = 10 + 24 * (sb & 1)
        for k in range(6):
            e("ds_read_b128 %s, v2 offset:%d" % (vr(b + 4 * k, 4), CONST_LDS + (sb * 6 + k) * 1024))
            e.lg_issue(("c", sb, k))
    cread(0); cread(1)
    for sb in range(4):
        b = 10 + 24 * (sb & 1)
        C0, C1, S0, S1, N0, N1 = [b + 4 * k for k in range(6)]
        ZR0, ZR1, ZI0, ZI1 = ZB[sb], ZB[sb] + 4, ZB[sb] + 8, ZB[sb] + 12
        e.lg_wait([("c", sb, k) for k in range(6)])
        mfma(e, accA(sb), C0, ZR0, "0")
        mfma(e, accB(sb), C0, ZI0, "0")
        mfma(e, accA(sb), C1, ZR1)
        mfma(e, accB(sb), C1, ZI1)
        mfma(e, accA(sb), S0, ZI0)
        mfma(e, accB(sb), N0, ZR0)
        mfma(e, accA(sb), S1, ZI1)
        mfma(e, accB(sb), N1, ZR1)
        if sb + 2 < 4:
            cread(sb + 2)
    e("s_lshl_b32 s41, s%d, 8" % S_QG)
    e("s_lshl_b32 s42, s%d, 7" % S_EH)
    e("s_add_u32 s41, s41, s42")
    e("s_lshl_b32 s42, s%d, 5" % S_WF)
    e("s_add_u32 s41, s41, s42")
    e("s_lshl_b32 s41, s41, 4")
    e("s_add_u32 s41, s41, 0x%x" % UBUF)
    e("v_and_b32 v3, 31, v%d" % L)
    e("v_lshlrev_b32 v3, 4, v3")
    e("v_lshrrev_b32 v4, 5, v%d" % L)
    e("v_lshlrev_b32 v4, 18, v4")
    e("v_add3_u32 v3, v3, v4, s41")
    e("s_nop 7"); e("s_nop 3")
    for q in range(16):
        i, jj = q >> 2, q & 3
        pk = 192 + 4 * (q % 8)
        for sb in range(4):
            e("v_cvt_pk_bf16_f32 v%d, v%d, v%d" % (pk + sb, accA(sb) + q, accB(sb) + q))
        e("s_mov_b32 s%d, 0x%x" % (S_OFF, (8 * i + jj) * 65536))
        e("buffer_store_dwordx4 %s, v3, s[%d:%d], s%d offen%s" % (vr(pk, 4), S_WS, S_WS + 3, S_OFF, sc))
        e.vm_issue("ust")

def p1_loader(e, cfg, is_h):
    L = V_LANE; T = 26
    VX = 10
    VW = 14
    e("v_lshrrev_b32 v%d, 3, v%d" % (T, L))
    e("s_lshl_b32 s41, s%d, 5" % S_LW)
    e("v_add_u32 v%d, s41, v%d" % (T, T))
    e("v_and_b32 v%d, 7, v%d" % (T + 1, L))
    e("v_lshrrev_b32 v%d, 4, v%d" % (T + 2, L))
    e("s_movk_i32 s42, 896")
    for i in range(4):
        if i: e("v_add_u32 v%d, 8, v%d" % (T, T))
        e("v_add_u32 v%d, %d, v%d" % (T + 3, (4 * i) & 7, T + 2))
        e("v_and_b32 v%d, 7, v%d" % (T + 3, T + 3))
        e("v_xor_b32 v%d, v%d, v%d" % (T + 3, T + 3, T + 1))
        e("v_lshlrev_b32 v%d, 4, v%d" % (T + 3, T + 3))
        if is_h:
            e("v_lshrrev_b32 v%d, 6, v%d" % (T + 4, T))
            e("v_and_b32 v%d, 63, v%d" % (T + 5, T))
            e("v_lshlrev_b32 v%d, 5, v%d" % (T + 5, T + 5))
            e("s_lshl_b32 s41, s%d, 1" % S_R)
            e("v_add3_u32 v%d, v%d, v%d, s41" % (T + 4, T + 4, T + 5))
        else:
            e("v_and_b32 v%d, 31, v%d" % (T + 4, T))
            e("v_lshlrev_b32 v%d, 6, v%d" % (T + 4, T + 4))
            e("v_lshrrev_b32 v%d, 5, v%d" % (T + 5, T))
            e("s_lshl_b32 s41, s%d, 2" % S_QG)
            e("v_add3_u32 v%d, v%d, v%d, s41" % (T + 4, T + 4, T + 5))
        e("v_mul_lo_u32 v%d, v%d, s42" % (T + 4, T + 4))
        e("v_add_u32 v%d, v%d, v%d" % (VX + i, T + 4, T + 3))
        if not is_h:
            e("s_lshl_b32 s41, s%d, 7" % S_EH)
            e("v_add_u32 v%d, s41, v%d" % (T + 4, T))
            e("v_mul_lo_u32 v%d, v%d, s42" % (T + 4, T + 4))
            e("v_add_u32 v%d, v%d, v%d" % (VW + i, T + 4, T + 3))
    if is_h:
        e("s_lshl_b32 s41, s%d, 3" % S_LW)
        e("v_add_u32 v%d, s41, v%d" % (T + 3, T + 2))
        e("s_movk_i32 s42, 3584")
        e("v_mul_lo_u32 v%d, v%d, s42" % (T + 3, T + 3))
        e("v_bfe_u32 v%d, v%d, 2, 2" % (T + 4, L))
        e("v_xor_b32 v%d, v%d, v%d" % (T + 4, T + 4, T + 2))
        e("v_lshlrev_b32 v%d, 6, v%d" % (T + 4, T + 4))
        e("v_and_b32 v%d, 3, v%d" % (T + 5, L))
        e("v_lshlrev_b32 v%d, 4, v%d" % (T + 5, T + 5))
        e("v_add3_u32 v%d, v%d, v%d, v%d" % (T + 3, T + 3, T + 4, T + 5))
        e("s_lshl_b32 s41, s%d, 8" % S_FB)
        e("v_add_u32 v%d, s41, v%d" % (VW, T + 3))
        e("v_add_u32 v%d, %d, v%d" % (VW + 1, 4 * 3584, VW))
        e("s_lshl_b32 s%d, s%d, 11" % (S_LDSW, S_LW))
    else:
        e("s_lshl_b32 s%d, s%d, 12" % (S_LDSW, S_LW))
    e("s_lshl_b32 s%d, s%d, 12" % (S_LDSX, S_LW))
    e("s_waitcnt lgkmcnt(0)")
    srd(e, S_X, 44, 1835008)
    if is_h:
        srd(e, S_WA, 52, 1605632); srd(e, S_WB, 54, 1605632)
    else:
        srd(e, S_WA, 48, 401408); srd(e, S_WB, 50, 401408)
    srd(e, S_WS, 74, WS_BYTES)
    srd(e, S_GW, 58, 896)
    srd(e, S_WD, 56, 1605632)
    stamp(e, cfg, 0)
    DROT = (not is_h) and ("nodrot" not in cfg.x)
    if DROT:
        e("s_mul_i32 s7, s%d, 3" % S_EH)
        e("s_mul_i32 s6, s%d, %d" % (S_QG, RMUL[0]))
        e("s_add_u32 s6, s6, s7")
        e("s_mul_i32 s7, s6, 37")
        e("s_lshr_b32 s7, s7, 8")
        e("s_mul_i32 s7, s7, 7")
        e("s_sub_u32 s6, s6, s7")
        e("s_mov_b32 s7, s6")
    def dx(c):
        if DROT:
            e("s_lshl_b32 s%d, s6, 7" % S_OFF)
            for i in range(4): dma(e, S_X, VX + i, (c % NX) * XSLOT + i * 1024, S_LDSX, None, ("x", c))
            rot_next(e, 6, 7)
        else:
            for i in range(4): dma(e, S_X, VX + i, (c % NX) * XSLOT + i * 1024, S_LDSX, c * 128, ("x", c))
    def dw(j):
        if is_h:
            for m in range(2):
                for i in range(2):
                    dma(e, S_WA if m == 0 else S_WB, VW + i, WBASE + (j % NW) * WSLOT + m * 8192 + i * 1024, S_LDSW, j * 32 * 3584, ("w", j))
        else:
            c = j
            if DROT: e("s_lshl_b32 s%d, s7, 7" % S_OFF)
            for m in range(2):
                for i in range(4):
                    dma(e, S_WA if m == 0 else S_WB, VW + i, WBASE + (c % 3) * 32768 + m * 16384 + i * 1024, S_LDSW, None if DROT else c * 128, ("w", c))
            if DROT: rot_next(e, 7, 7)
    q = []
    if is_h:
        for j in range(14):
            if j % 2 == 0:
                c = j // 2
                q.append(("x", c, -1 if c < NX else 2 * (c - NX + 1)))
            q.append(("w", j, -1 if j < NW else j - NW + 1))
    else:
        for c in range(7):
            q.append(("x", c, -1 if c < NX else 2 * (c - NX + 1)))
            q.append(("w", c, -1 if c < 3 else 2 * (c - 3 + 1)))
    def cost(it): return 4 if (it[0] == "x" or is_h) else 8
    def issue(it):
        (dx if it[0] == "x" else dw)(it[1])
    def need(j):
        t = []
        for jj in (j, j + 1):
            if jj <= 13:
                t.append(("x", jj >> 1)); t.append(("w", jj if is_h else jj >> 1))
        return t
    issued = set()
    def ensure(tags):
        while q and any(t not in issued for t in tags):
            it = q.pop(0); assert it[2] <= curbar[0], (it, curbar)
            issue(it); issued.add((it[0], it[1]))
    curbar = [-1]
    ensure(need(0))
    budget0 = cfg.pro_extra
    while q and budget0 > 0 and q[0][2] <= -1:
        it = q.pop(0); issue(it); issued.add((it[0], it[1])); budget0 -= cost(it)
    e.vm_wait(need(0))
    e("s_barrier")
    stamp(e, cfg, 1)
    if "nodma" in cfg.x: NODMA[0] = True
    for j in range(13):
        curbar[0] = j
        ensure(need(j + 1))
        budget = cfg.stage_budget
        while q and budget > 0 and q[0][2] <= j:
            it = q.pop(0); issue(it); issued.add((it[0], it[1])); budget -= cost(it)
        if j == cfg.pfWd_j and not is_h and "pf1" in cfg.x:
            e("s_lshl_b32 s41, s%d, 1" % S_QG)
            e("s_add_u32 s41, s41, s%d" % S_EH)
            e("s_lshl_b32 s41, s41, 2")
            e("s_add_u32 s41, s41, s%d" % S_LW)
            e("s_mul_i32 s41, s41, 98")
            e("v_add_u32 v100, s41, v%d" % V_LANE)
            e("v_lshlrev_b32 v100, 7, v100")
            e("buffer_load_dword v101, v100, s[%d:%d], 0 offen" % (S_WD, S_WD + 3)); e.vm_issue(("pf", 0))
            e("v_add_u32 v100, %d, v100" % (64 * 128))
            e("v_cmp_gt_u32 vcc, 34, v%d" % V_LANE)
            e("v_mov_b32 v102, 0x7fffffff")
            e("s_nop 0")
            e("v_cndmask_b32 v100, v102, v100, vcc")
            e("buffer_load_dword v103, v100, s[%d:%d], 0 offen" % (S_WD, S_WD + 3)); e.vm_issue(("pf", 1))
        if j == cfg.pfWd_j and not is_h and "pfWd" in cfg.x:
            e("s_lshr_b32 s41, s2, 3")
            e("s_sub_u32 s41, s41, 28")
            e("s_lshl_b32 s41, s41, 2")
            e("s_add_u32 s41, s41, s%d" % S_LW)
            e("s_mul_i32 s41, s41, 784")
            e("v_add_u32 v100, s41, v%d" % V_LANE)
            e("v_lshlrev_b32 v100, 7, v100")
            for t in range(13):
                e("s_mov_b32 s%d, %d" % (S_OFF, t * 8192))
                e("buffer_load_dword v%d, v100, s[%d:%d], s%d offen" % (101 + t, S_WD, S_WD + 3, S_OFF))
                e.vm_issue(("pf", t))
        if j == cfg.pfW_j and not is_h and "pfW" in cfg.x:
            e("s_lshr_b32 s41, s2, 3")
            e("s_sub_u32 s41, s41, 28")
            e("s_lshl_b32 s41, s41, 2")
            e("s_add_u32 s41, s41, s%d" % S_LW)
            e("s_mul_i32 s41, s41, 196")
            e("v_add_u32 v100, s41, v%d" % V_LANE)
            e("s_mov_b32 s42, 0x24924925")
            e("s_and_b32 s43, s2, 1")
            e("s_mul_i32 s43, s43, 896")
            e("s_add_u32 s43, s43, 1792")
            for t in range(4):
                e("v_add_u32 v101, %d, v100" % (64 * t))
                e("v_mul_hi_u32 v102, v101, s42")
                e("v_mul_u32_u24 v103, 7, v102")
                e("v_sub_u32 v103, v101, v103")
                e("v_mul_u32_u24 v102, 3584, v102")
                e("v_lshlrev_b32 v103, 7, v103")
                e("v_add3_u32 v%d, v102, v103, s43" % (104 + t))
            srd(e, S_GW, 52, 1605632)
            for t in range(4):
                e("buffer_load_dword v%d, v%d, s[%d:%d], 0 offen" % (110 + t, 104 + t, S_GW, S_GW + 3)); e.vm_issue(("pf", t))
            srd(e, S_GW, 54, 1605632)
            e("s_nop 0")
            for t in range(4):
                e("buffer_load_dword v%d, v%d, s[%d:%d], 0 offen" % (114 + t, 104 + t, S_GW, S_GW + 3)); e.vm_issue(("pf", t))
        if j == 9 and not is_h: dft_consts(e, cfg)
        if j == 7 and is_h:
            gate_issue(e, cfg, True)
            lab = e.newlabel("GX")
            e("s_cmp_ge_u32 s%d, 2" % S_FB)
            e("s_cbranch_scc1 %s" % lab)
            sv = list(e.vm)
            gate_issue(e, cfg, True, True)
            e.vm = sv
            e.label(lab)
        if j == 10 and is_h:
            e("s_waitcnt vmcnt(0)"); e.vm = []
            gate_finish(e, cfg)
            lab = e.newlabel("GY")
            e("s_cmp_ge_u32 s%d, 2" % S_FB)
            e("s_cbranch_scc1 %s" % lab)
            gate_finish(e, cfg, True)
            e.label(lab)
        if j == 11 and cfg.fused:
            e("s_waitcnt vmcnt(0)"); e.vm = []
        e.vm_wait(need(j + 1))
        e("s_barrier")
    assert not q
    NODMA[0] = False
    stamp(e, cfg, 2)
    if not is_h:
        e("v_lshlrev_b32 v2, 4, v%d" % L)
        e("s_mul_i32 s41, s%d, 6144" % S_LW)
        e("v_add_u32 v2, s41, v2")
        for k in range(6):
            e("ds_write_b128 v2, %s offset:%d" % (vr(64 + 4 * k, 4), CONST_LDS + k * 1024))
        e("s_waitcnt lgkmcnt(0)")
        e("s_barrier")

def gate_issue(e, cfg, is_h, extra=False):
    B = 40 if extra else 48
    e("s_lshl_b32 s41, s%d, 3" % S_FB)
    if extra: e("s_add_u32 s41, s41, 112")
    e("s_lshl_b32 s42, s%d, 1" % S_LW)
    e("s_add_u32 s41, s41, s42")
    e("s_lshl_b32 s78, s%d, 7" % S_R)
    e("s_add_u32 s%d, s78, s41" % (63 if extra else 62))
    e("v_lshlrev_b32 v38, 4, v%d" % V_LANE)
    e("v_cmp_gt_u32 vcc, 56, v%d" % V_LANE)
    e("v_mov_b32 v37, 0x7fffffff")
    for u in range(2):
        e("s_add_u32 s78, s41, %d" % u)
        e("s_lshr_b32 s43, s78, 6")
        e("s_lshl_b32 s79, s%d, 1" % S_R)
        e("s_add_u32 s43, s43, s79")
        e("s_and_b32 s78, s78, 63")
        e("s_lshl_b32 s78, s78, 5")
        e("s_add_u32 s43, s43, s78")
        e("s_mul_i32 s43, s43, 896")
        if extra:
            e("s_cmp_ge_u32 s%d, 2" % S_FB)
            e("s_cselect_b32 s43, 0x40000000, s43")
        e("v_add_u32 v39, s43, v38")
        e("v_cndmask_b32 v39, v37, v39, vcc")
        e("buffer_load_dwordx4 %s, v39, s[%d:%d], 0 offen" % (vr(B + 4 * u, 4), S_X, S_X + 3))
        e.vm_issue("gate")
    if not extra:
        e("buffer_load_dwordx4 v[56:59], v38, s[%d:%d], 0 offen" % (S_GW, S_GW + 3))
        e.vm_issue("gate")

def gate_finish(e, cfg, extra=False):
    B = 40 if extra else 48
    e.vm_wait(["gate"])
    for u in range(2):
        e("v_mov_b32 v%d, 0" % (60 + u))
    for i in range(4):
        for u in range(2):
            e("v_dot2_f32_bf16 v%d, v%d, v%d, v%d" % (60 + u, B + 4 * u + i, 56 + i, 60 + u))
    e("s_nop 2")
    for sh in ("row_shr:1", "row_shr:2", "row_shr:4", "row_shr:8"):
        for u in range(2):
            e("v_add_f32_dpp v%d, v%d, v%d %s row_mask:0xf bank_mask:0xf bound_ctrl:0" % (60 + u, 60 + u, 60 + u, sh))
        e("s_nop 0")
    for u in range(2):
        e("v_add_f32_dpp v%d, v%d, v%d row_bcast:15 row_mask:0xa bank_mask:0xf" % (60 + u, 60 + u, 60 + u))
    e("s_nop 0")
    for u in range(2):
        e("v_add_f32_dpp v%d, v%d, v%d row_bcast:31 row_mask:0xc bank_mask:0xf" % (60 + u, 60 + u, 60 + u))
    e("s_nop 0")
    e("v_readlane_b32 s41, v60, 63")
    e("v_readlane_b32 s42, v61, 63")
    e("s_nop 1")
    e("v_mov_b32 v60, s41")
    e("v_mov_b32 v61, s42")
    e("v_cmp_eq_u32 vcc, 1, v%d" % V_LANE)
    e("s_nop 1")
    e("v_cndmask_b32 v60, v60, v61, vcc")
    e("v_mul_f32 v60, 0x%08x, v60" % f2u(-LOG2E))
    e("v_exp_f32 v60, v60")
    e("s_nop 0")
    e("v_add_f32 v60, 1.0, v60")
    e("v_rcp_f32 v60, v60")
    e("s_lshl_b32 s5, s%d, 2" % (63 if extra else 62))
    e("s_add_u32 s5, s5, 0x%x" % GBUF)
    if extra:
        e("s_cmp_ge_u32 s%d, 2" % S_FB)
        e("s_cselect_b32 s5, 0x40000000, s5")
    e("v_lshlrev_b32 v62, 2, v%d" % V_LANE)
    e("v_add_u32 v62, s5, v62")
    e("v_cmp_gt_u32 vcc, 2, v%d" % V_LANE)
    e("v_mov_b32 v37, 0x7fffffff")
    e("s_nop 0")
    e("v_cndmask_b32 v62, v37, v62, vcc")
    e("buffer_store_dword v60, v62, s[%d:%d], 0 offen%s" % (S_WS, S_WS + 3, " sc1" if cfg.fused else ""))
    e.vm_issue("gst")


def gate4_issue(e):
    L = V_LANE
    e("s_lshl_b32 s41, s%d, 1" % S_QG)
    e("s_add_u32 s41, s41, s%d" % S_EH)
    e("s_lshl_b32 s5, s41, 6")
    e("s_lshl_b32 s42, s%d, 4" % S_LW)
    e("s_add_u32 s5, s5, s42")
    e("v_and_b32 v104, 15, v%d" % L)
    e("v_lshrrev_b32 v105, 4, v%d" % L)
    e("v_lshlrev_b32 v106, 4, v104")
    e("v_cmp_gt_u32 vcc, 14, v104")
    e("v_mov_b32 v107, 0x7fffffff")
    e("s_nop 0")
    e("v_cndmask_b32 v106, v107, v106, vcc")
    for q in range(4):
        e("buffer_load_dwordx4 %s, v106, s[%d:%d], 0 offen offset:%d" % (vr(184 + 4 * q, 4), S_GW, S_GW + 3, 224 * q))
        e.vm_issue("gate")
    e("s_lshl_b32 s42, s%d, 9" % S_LW)
    e("s_add_u32 s42, s42, s41")
    e("s_mul_i32 s42, s42, 896")
    e("v_mul_u32_u24 v108, 28672, v105")
    e("v_add_u32 v108, s42, v108")
    e("v_add_u32 v108, v108, v106")
    e("v_cndmask_b32 v108, v107, v108, vcc")
    for p in range(4):
        e("s_mov_b32 s%d, %d" % (S_OFF, p * 4 * 28672))
        for q in range(4):
            e("buffer_load_dwordx4 %s, v108, s[%d:%d], s%d offen offset:%d" % (vr(120 + 16 * p + 4 * q, 4), S_X, S_X + 3, S_OFF, 224 * q))
            e.vm_issue("gate")

def gate4_pass(e, p):
    L = V_LANE
    e.vm_wait(["gate"])
    e("v_mov_b32 v109, 0")
    for q in range(16):
        e("v_dot2_f32_bf16 v109, v%d, v%d, v109" % (120 + 16 * p + q, 184 + q))
    e("s_nop 2")
    for sh in ("row_shr:1", "row_shr:2", "row_shr:4", "row_shr:8"):
        e("v_add_f32_dpp v109, v109, v109 %s row_mask:0xf bank_mask:0xf bound_ctrl:0" % sh)
        e("s_nop 1")
    e("v_mul_f32 v109, 0x%08x, v109" % f2u(-LOG2E))
    e("v_exp_f32 v109, v109")
    e("s_nop 0")
    e("v_add_f32 v109, 1.0, v109")
    e("v_rcp_f32 v109, v109")
    e("v_add_u32 v110, s5, v105")
    e("v_add_u32 v110, %d, v110" % (4 * p))
    e("v_lshlrev_b32 v110, 2, v110")
    e("v_add_u32 v110, 0x%x, v110" % GBUF)
    e("v_cmp_eq_u32 vcc, 15, v104")
    e("s_nop 1")
    e("v_cndmask_b32 v110, v107, v110, vcc")
    e("buffer_store_dword v109, v110, s[%d:%d], 0 offen sc1" % (S_WS, S_WS + 3))
    e.vm_issue("gst")

def dft_consts(e, cfg):
    L = V_LANE
    e("v_and_b32 v26, 31, v%d" % L)
    e("v_lshrrev_b32 v27, 5, v%d" % L)
    e("v_lshlrev_b32 v27, 8, v27")
    e("s_lshl_b32 s41, s%d, 2" % S_QG)
    e("s_add_u32 s41, s41, s%d" % S_LW)
    e("v_add_u32 v27, s41, v27")
    e("s_mov_b32 s42, 0x%08x" % f2u(1.0 / 2048))
    for hf in range(2):
        for pr in range(4):
            for u in range(2):
                idx = 2 * pr + u
                s1c = 16 * hf + 8 * (idx >> 2) + (idx & 3)
                e("v_add_u32 v28, %d, v27" % (64 * s1c))
                e("v_mul_u32_u24 v28, v28, v26")
                e("v_and_b32 v28, 0x7ff, v28")
                e("v_cvt_f32_u32 v28, v28")
                e("v_mul_f32 v28, s42, v28")
                e("v_cos_f32 v%d, v28" % (30 + u))
                e("v_sin_f32 v%d, v28" % (32 + u))
            e("s_nop 0")
            e("v_cvt_pk_bf16_f32 v%d, v30, v31" % (64 + 4 * hf + pr))
            e("v_cvt_pk_bf16_f32 v%d, v32, v33" % (72 + 4 * hf + pr))
            e("v_xor_b32 v%d, 0x80008000, v%d" % (80 + 4 * hf + pr, 72 + 4 * hf + pr))

def entry_common(e):
    e("v_and_b32 v%d, 63, v0" % V_LANE)
    e("v_lshrrev_b32 v2, 6, v0")
    e("s_nop 0")
    e("v_readfirstlane_b32 s%d, v2" % S_WAVE)
    e("s_nop 3")

def phase1(e, cfg, after_h_consumer, after_h_loader, after_d):
    e("s_and_b32 s%d, s%d, 3" % (S_WF, S_WAVE))
    e("s_and_b32 s%d, s%d, 3" % (S_LW, S_WAVE))
    e("s_and_b32 s41, s2, 7")
    e("s_lshr_b32 s42, s2, 3")
    e("s_cmp_ge_u32 s42, 28")
    e("s_cbranch_scc1 P1_DFT")
    e("s_mul_i32 s43, s42, 37")
    e("s_lshr_b32 s43, s43, 8")
    e("s_mul_i32 s76, s43, 7")
    e("s_sub_u32 s76, s42, s76")
    e("s_lshr_b32 s77, s41, 1")
    e("s_lshl_b32 s77, s77, 2")
    e("s_add_u32 s%d, s77, s43" % S_R)
    e("s_and_b32 s77, s41, 1")
    e("s_mul_i32 s77, s77, 7")
    e("s_add_u32 s%d, s77, s76" % S_FB)
    e("s_cmp_lt_u32 s%d, 4" % S_WAVE)
    e("s_cbranch_scc1 P1_H_CONSUMER")
    e.vm = []; e.lg = []
    STG[0] = True
    h2_loader(e, cfg)
    q_loader_A(e, cfg)
    STG[0] = False
    stamp_store(e, cfg, 0)
    e("s_endpgm")
    e.label("P1_H_CONSUMER")
    e.vm = []; e.lg = []
    h2_consumer(e, cfg)
    q_consumer_B(e, cfg)
    stamp_store(e, cfg, 0)
    e("s_endpgm")
    e.label("P1_DFT")
    e("s_sub_u32 s42, s42, 28")
    e("s_and_b32 s%d, s41, 1" % S_EH)
    e("s_lshr_b32 s77, s41, 1")
    e("s_lshl_b32 s77, s77, 2")
    e("s_add_u32 s%d, s77, s42" % S_QG)
    e("s_cmp_ge_u32 s%d, 4" % S_WAVE)
    e("s_cbranch_scc1 P1_D_LOADER")
    e.vm = []; e.lg = []
    p1_consumer(e, cfg, False)
    d_epilogue(e, cfg)
    stamp(e, cfg, 3)
    after_d(True)
    e.label("P1_D_LOADER")
    e.vm = []; e.lg = []
    p1_loader(e, cfg, False)
    stamp(e, cfg, 3)
    after_d(False)

P2_ACC = 64
P2_H = 96
P2_A = 208
P2_U = 224
P2_T = 240
SLICE = 40960
KSL, NB = 60, 61

def p2_setup(e, cfg):
    L = V_LANE
    e("s_and_b32 s%d, s%d, 3" % (KSL, S_WAVE))
    e("s_lshr_b32 s%d, s%d, 2" % (NB, S_WAVE))
    e("v_lshrrev_b32 v2, 3, v%d" % L)
    e("v_bfe_u32 v3, v%d, 4, 1" % L)
    e("v_lshlrev_b32 v3, 2, v3")
    e("v_and_b32 v4, 7, v%d" % L)
    e("v_xor_b32 v3, v3, v4")
    e("v_lshlrev_b32 v3, 4, v3")
    e("s_mul_i32 s41, s%d, 448" % KSL)
    e("s_lshl_b32 s42, s%d, 3" % NB)
    e("s_add_u32 s41, s41, s42")
    e("v_add_u32 v2, s41, v2")
    e("s_movk_i32 s42, 896")
    e("v_mul_lo_u32 v2, v2, s42")
    e("s_lshl_b32 s41, s%d, 7" % S_C)
    e("v_add3_u32 v10, v2, v3, s41")
    e("s_mul_i32 s62, s%d, %d" % (KSL, SLICE))
    e("s_lshl_b32 s41, s%d, 10" % NB)
    e("s_add_u32 s62, s62, s41")
    e("v_and_b32 v2, 15, v%d" % L)
    e("v_lshrrev_b32 v3, 2, v2")
    e("v_lshrrev_b32 v4, 5, v%d" % L)
    e("v_lshlrev_b32 v5, 2, v4")
    e("v_add_u32 v5, v5, v3")
    e("v_lshlrev_b32 v5, 7, v5")
    e("v_bfe_u32 v6, v2, 3, 1")
    e("v_lshlrev_b32 v6, 6, v6")
    e("v_bfe_u32 v7, v%d, 4, 1" % L)
    e("v_lshlrev_b32 v7, 5, v7")
    e("v_and_b32 v8, 3, v2")
    e("v_lshlrev_b32 v8, 3, v8")
    e("v_add3_u32 v5, v5, v6, v7")
    e("v_add_u32 v5, v5, v8")
    e("s_mul_i32 s41, s%d, %d" % (KSL, SLICE))
    e("v_add_u32 v11, s41, v5")
    e("v_xor_b32 v12, 64, v11")
    e("s_mul_i32 s41, s%d, 112" % S_T1)
    e("s_mul_i32 s42, s%d, 28" % KSL)
    e("s_add_u32 s41, s41, s42")
    e("s_lshl_b32 s41, s41, 1")
    e("s_add_u32 s41, s41, s%d" % NB)
    e("s_lshl_b32 s41, s41, 10")
    e("v_lshlrev_b32 v13, 4, v%d" % L)
    e("v_add_u32 v13, s41, v13")
    e("v_and_b32 v14, 31, v%d" % L)
    e("s_cmp_ge_u32 s%d, 4" % S_C)
    e("s_cselect_b32 s63, 1, 0")
    e("s_sub_u32 s64, 32, s%d" % S_T1)
    e("s_and_b32 s64, s64, 31")
    e("s_cmp_eq_u32 s63, 1")
    e("s_cselect_b32 s64, s64, s%d" % S_T1)
    e("v_lshrrev_b32 v4, 5, v%d" % L)
    e("s_lshl_b32 s41, s%d, 6" % S_C)
    e("s_cmp_eq_u32 s63, 1")
    e("s_cselect_b64 vcc, -1, 0")
    for mb in range(2):
        e("v_add_u32 v2, s41, v14")
        if mb: e("v_add_u32 v2, 32, v2")
        e("v_sub_u32 v3, 448, v2")
        e("v_cndmask_b32 v2, v2, v3, vcc")
        e("v_lshlrev_b32 v2, 4, v2")
        e("v_lshlrev_b32 v3, 12, v4")
        e("v_add_u32 v%d, v2, v3" % (16 + mb))
    e("s_lshl_b32 s41, s64, 4")
    e("s_lshl_b32 s42, s%d, 2" % KSL)
    e("s_add_u32 s41, s41, s42")
    e("s_lshl_b32 s41, s41, 12")
    e("s_add_u32 s65, s41, 0x%x" % UBUF)
    e("s_lshl_b32 s41, s%d, 6" % S_T1)
    e("s_lshl_b32 s42, s%d, 5" % NB)
    e("s_add_u32 s41, s41, s42")
    e("v_add_u32 v2, s41, v14")
    e("v_lshlrev_b32 v2, 2, v2")
    e("v_add_u32 v20, 0x%x, v2" % GBUF)

def p2_dma_wd(e, kk):
    st = kk >> 2
    pos = (st % 5) * 4 + (kk & 3)
    dma(e, S_WD, 10, pos * 2048, 62, kk * 16 * 896, ("wd", st))
def p2_load_h(e, cfg, kk):
    sc = " sc1" if cfg.fused else ""
    e("s_mov_b32 s%d, 0x%x" % (S_OFF, kk * 2048))
    e("buffer_load_dwordx4 %s, v13, s[%d:%d], s%d offen%s" % (vr(P2_H + 4 * kk, 4), S_WS, S_WS + 3, S_OFF, sc))
    e.vm_issue(("h", kk))
def p2_load_g(e, cfg):
    sc = " sc1" if cfg.fused else ""
    e("buffer_load_dword v15, v20, s[%d:%d], 0 offen%s" % (S_WS, S_WS + 3, sc))
    e.vm_issue("g")
def p2_load_u(e, cfg):
    sc = " sc1" if cfg.fused else ""
    for u in range(2):
        for mb in range(2):
            e("s_add_u32 s%d, s65, %d" % (S_OFF, u * 2 * 4096))
            e("buffer_load_dwordx4 %s, v%d, s[%d:%d], s%d offen%s" % (vr(P2_U + 8 * u + 4 * mb, 4), 16 + mb, S_WS, S_WS + 3, S_OFF, sc))
            e.vm_issue("u")
def p2_tfrags(e, cfg):
    L = V_LANE
    e.vm_wait(["g"])
    e("s_cmp_lg_u32 s%d, 0" % S_T1)
    e("s_cselect_b32 s41, s63, 0")
    e("s_lshl_b32 s42, s%d, 5" % NB)
    e("s_add_u32 s41, s41, s42")
    e("v_add_u32 v2, s41, v14")
    e("v_lshrrev_b32 v4, 5, v%d" % L)
    e("v_lshlrev_b32 v4, 2, v4")
    e("s_lshl_b32 s41, s63, 31")
    e("v_xor_b32 v21, s41, v15")
    e("s_mov_b32 s42, 0x%08x" % f2u(1.0 / 64))
    e("s_lshl_b32 s43, s%d, 4" % KSL)
    e("v_add_u32 v4, s43, v4")
    for u in range(2):
        for q in range(4):
            e("v_add_u32 v3, %d, v4" % (8 * u + q))
            e("v_mul_u32_u24 v3, v3, v2")
            e("v_and_b32 v3, 63, v3")
            e("v_cvt_f32_u32 v3, v3")
            e("v_mul_f32 v3, s42, v3")
            e("v_cos_f32 v5, v3")
            e("v_sin_f32 v6, v3")
            e("s_nop 0")
            e("v_mul_f32 v5, v5, v15")
            e("v_mul_f32 v6, v6, v21")
            e("v_cvt_pk_bf16_f32 v%d, v5, v6" % (P2_T + 4 * u + q))
    e("v_sub_f32 v18, 1.0, v15")
    e("v_mov_b32 v19, v18")

def p2_main(e, cfg, wd_pre=0):
    L = V_LANE
    def reads(kk):
        b = P2_A + 8 * (kk & 1)
        st = kk >> 2
        pos = (st % 5) * 4 + (kk & 3)
        for mb in range(2):
            for ip in range(2):
                e("ds_read_b64_tr_b16 %s, v%d offset:%d" % (vr(b + 4 * mb + 2 * ip, 2), 11 + mb, pos * 2048 + ip * 1024))
                e.lg_issue(("A", kk, mb))
    def issue_h(st):
        if st > 6: return
        for kk in range(4 * st, 4 * st + 4): p2_load_h(e, cfg, kk)
    def issue_w(st):
        if st > 6 or st < wd_pre: return
        for kk in range(4 * st, 4 * st + 4): p2_dma_wd(e, kk)
    def issue_both(st):
        if st > 6: return
        for kk in range(4 * st, 4 * st + 4):
            if st >= wd_pre: p2_dma_wd(e, kk)
            p2_load_h(e, cfg, kk)
    LA = cfg.p2_la
    p2_load_g(e, cfg)
    if cfg.fused:
        for st in range(LA): issue_h(st)
        p2_tfrags(e, cfg)
    else:
        for st in range(LA): issue_both(st)
        p2_tfrags(e, cfg)
        e.vm_wait([("wd", 0), ("wd", 1)])
        e("s_barrier")
    stamp(e, cfg, 1 if not cfg.fused else 6)
    reads(0)
    for kk in range(28):
        st = kk >> 2
        if (kk & 3) == 0:
            if cfg.fused:
                if st >= 1: issue_w(st + 4)
                issue_h(st + LA)
            else:
                issue_both(st + LA)
                if st + LA == 7:
                    p2_load_u(e, cfg)
        if kk + 1 < 28: reads(kk + 1)
        e.vm_wait([("h", kk)])
        b = P2_A + 8 * (kk & 1)
        for mb in range(2):
            e.lg_wait([("A", kk, mb)])
            mfma(e, P2_ACC + 16 * mb, b + 4 * mb, P2_H + 4 * kk, "0" if kk == 0 else None)
        if (kk & 3) == 3 and st < 6:
            e.vm_wait([("wd", st + 2)])
            if cfg.fused and st == cfg.p2_dpoll:
                lab = e.newlabel("DP")
                e("s_cmp_lg_u32 s%d, 0" % S_WAVE)
                e("s_cbranch_scc1 %s" % lab)
                e("s_mov_b32 s%d, 0x%x" % (S_PF, FLAGS + 16 * 128))
                poll(e, S_PF, 32)
                e.label(lab)
            e("s_barrier")
            if cfg.fused and st == cfg.p2_dpoll:
                p2_load_u(e, cfg)
    assert not e.lg
    stamp(e, cfg, 2 if not cfg.fused else 7)
    e.vm_wait(["u"])
    e("s_nop 7"); e("s_nop 3")
    for i in range(0, 32, 2):
        e("v_pk_mul_f32 %s, %s, v[18:19]" % (vr(P2_ACC + i, 2), vr(P2_ACC + i, 2)))
    e("s_nop 1")
    for u in range(2):
        for mb in range(2):
            mfma(e, P2_ACC + 16 * mb, P2_U + 8 * u + 4 * mb, P2_T + 4 * u)
    e("s_barrier")
    e("v_lshlrev_b32 v2, 4, v%d" % L)
    e("s_lshl_b32 s41, s%d, 13" % S_WAVE)
    e("v_add_u32 v3, s41, v2")
    e("s_nop 7"); e("s_nop 1")
    for qd in range(4):
        for hf in range(2):
            e("ds_write_b128 v3, %s offset:%d" % (vr(P2_ACC + 8 * qd + 4 * hf, 4), qd * 2048 + hf * 1024))
    e("s_waitcnt lgkmcnt(0)")
    e("s_barrier")
    e("s_lshl_b32 s41, s%d, 15" % NB)
    e("s_lshl_b32 s42, s%d, 11" % KSL)
    e("s_add_u32 s41, s41, s42")
    e("v_add_u32 v3, s41, v2")
    for k in range(4):
        for hf in range(2):
            e("ds_read_b128 %s, v3 offset:%d" % (vr(96 + 8 * k + 4 * hf, 4), k * 8192 + hf * 1024))
    e("s_lshl_b32 s41, s%d, 5" % NB)
    e("v_add_u32 v2, s41, v14")
    e("v_lshlrev_b32 v2, 5, v2")
    e("v_add_u32 v2, s%d, v2" % S_T1)
    e("s_movk_i32 s42, 896")
    e("v_mul_lo_u32 v2, v2, s42")
    e("s_lshl_b32 s41, s%d, 7" % S_C)
    e("s_lshl_b32 s42, s%d, 5" % KSL)
    e("s_add_u32 s41, s41, s42")
    e("v_lshrrev_b32 v4, 5, v%d" % L)
    e("v_lshlrev_b32 v4, 4, v4")
    e("v_add3_u32 v2, v2, v4, s41")
    e("s_waitcnt lgkmcnt(0)")
    for q in range(0, 8, 2):
        e("v_pk_add_f32 %s, %s, %s" % (vr(96 + q, 2), vr(96 + q, 2), vr(104 + q, 2)))
        e("v_pk_add_f32 %s, %s, %s" % (vr(112 + q, 2), vr(112 + q, 2), vr(120 + q, 2)))
    for q in range(0, 8, 2):
        e("v_pk_add_f32 %s, %s, %s" % (vr(96 + q, 2), vr(96 + q, 2), vr(112 + q, 2)))
    for q in range(4):
        e("v_cvt_pk_bf16_f32 v%d, v%d, v%d" % (128 + q, 96 + 2 * q, 96 + 2 * q + 1))
    e("s_nop 1")
    e("v_permlane32_swap_b32 v128, v130")
    e("v_permlane32_swap_b32 v129, v131")
    e("buffer_store_dwordx4 v[128:131], v2, s[%d:%d], 0 offen" % (S_OUT, S_OUT + 3))
    stamp(e, cfg, 3 if not cfg.fused else 8)

def p2_role(e):
    e("s_and_b32 s41, s2, 7")
    e("s_lshr_b32 s42, s2, 3")
    e("s_mul_i32 s43, s42, 37")
    e("s_lshr_b32 s43, s43, 8")
    e("s_mul_i32 s76, s43, 7")
    e("s_sub_u32 s%d, s42, s76" % S_C)
    e("s_lshl_b32 s41, s41, 2")
    e("s_add_u32 s%d, s41, s43" % S_T1)

def header(e, name):
    e.raw(".text"); e.raw(".globl %s" % name); e.raw(".p2align 8"); e.raw(".type %s,@function" % name); e.label(name)

def kernel1(e, cfg):
    header(e, "k1_kernel")
    e("s_cmp_ge_u32 s2, 256")
    e("s_cbranch_scc1 K1_END")
    kernarg_loads(e)
    entry_common(e)
    def fin():
        stamp_store(e, cfg, 0)
        e("s_endpgm")
    phase1(e, cfg, fin, fin, lambda c: fin())
    e.label("K1_END")
    e("s_endpgm")

def kernel2(e, cfg):
    header(e, "k2_kernel")
    e.vm = []; e.lg = []
    e("s_cmp_ge_u32 s2, 256")
    e("s_cbranch_scc1 K2_END")
    e("s_lshr_b32 s42, s2, 3")
    e("s_cmp_ge_u32 s42, 28")
    e("s_cbranch_scc1 K2_END")
    kernarg_loads(e)
    entry_common(e)
    p2_role(e)
    p2_setup(e, cfg)
    e("s_waitcnt lgkmcnt(0)")
    srd(e, S_WS, 74, WS_BYTES)
    srd(e, S_OUT, 46, 1835008)
    srd(e, S_WD, 56, 1605632)
    stamp(e, cfg, 0)
    p2_main(e, cfg, 0)
    stamp_store(e, cfg, 0x40000)
    e.label("K2_END")
    e("s_endpgm")


def nonce_issue(e):
    lab = e.newlabel("NONCE")
    srd(e, S_DBG, 72, 256)
    e("s_or_b32 s41, s2, s%d" % S_WAVE)
    e("s_cmp_lg_u32 s41, 0")
    e("s_cbranch_scc1 %s" % lab)
    e("s_memrealtime s[42:43]")
    e("s_waitcnt lgkmcnt(0)")
    e("s_or_b32 s42, s42, 1")
    e("v_mov_b32 v4, s42")
    e("v_lshlrev_b32 v5, 20, v%d" % V_LANE)
    e("buffer_store_dword v4, v5, s[%d:%d], 0 offen sc1" % (S_DBG, S_DBG + 3))
    e.label(lab)
    e("v_mov_b32 v7, 0")

def nonce_publish(e):
    lab = e.newlabel("NONCE")
    e("s_or_b32 s41, s2, s%d" % S_WAVE)
    e("s_cmp_lg_u32 s41, 0")
    e("s_cbranch_scc1 %s" % lab)
    srd(e, S_DBG, 72, 256)
    e("s_memrealtime s[42:43]")
    e("s_waitcnt lgkmcnt(0)")
    e("s_or_b32 s42, s42, 1")
    e("v_mov_b32 v4, s42")
    e("v_lshlrev_b32 v5, 20, v%d" % V_LANE)
    e("buffer_store_dword v4, v5, s[%d:%d], 0 offen sc1" % (S_DBG, S_DBG + 3))
    e.label(lab)

def nonce_load(e):
    e("buffer_load_dword v4, v7, s[%d:%d], 0 offen sc1" % (S_DBG, S_DBG + 3))

def nonce_finish(e):
    nonce_finish_any(e)

def flag_addr(e, is_h):
    if is_h:
        e("s_lshl_b32 s41, s%d, 9" % S_R)
        e("s_lshl_b32 s42, s%d, 2" % S_FB)
    else:
        e("s_lshl_b32 s41, s%d, 1" % S_QG)
        e("s_add_u32 s41, s41, s%d" % S_EH)
        e("s_lshl_b32 s42, s41, 2")
        e("s_movk_i32 s41, %d" % (16 * 512))
    e("s_add_u32 s41, s41, s42")
    e("s_add_u32 s%d, s41, 0x%x" % (S_FLAG, FLAGS))

def flag_store(e):
    e("v_mov_b32 v60, s%d" % S_NONCE)
    e("v_lshlrev_b32 v61, 24, v%d" % V_LANE)
    e("v_add_u32 v61, s%d, v61" % S_FLAG)
    e("buffer_store_dword v60, v61, s[%d:%d], 0 offen sc1" % (S_WS, S_WS + 3))

def poll_prep(e, sbase, nflags):
    e("v_lshlrev_b32 v61, 2, v%d" % V_LANE)
    e("v_add_u32 v61, s%d, v61" % sbase)
    e("v_cmp_gt_u32 vcc, %d, v%d" % (nflags, V_LANE))
    e("v_mov_b32 v60, 0x7fffffff")
    e("s_nop 0")
    e("v_cndmask_b32 v61, v60, v61, vcc")
def poll_issue(e):
    e("buffer_load_dword v60, v61, s[%d:%d], 0 offen sc1" % (S_WS, S_WS + 3))
def poll_loop(e, nflags, first_issued):
    top = e.newlabel("POLL"); done = e.newlabel("POLLD"); chk = e.newlabel("POLLC")
    e("s_mov_b32 s41, 0")
    if first_issued: e("s_branch %s" % chk)
    e.label(top)
    poll_issue(e)
    e.label(chk)
    e("s_waitcnt vmcnt(0)")
    e("v_cmp_eq_u32 vcc, s%d, v60" % S_NONCE)
    e("s_nop 1")
    mask = (1 << nflags) - 1
    e("s_and_b32 s42, vcc_lo, 0x%x" % (mask & 0xffffffff))
    e("s_cmp_eq_u32 s42, 0x%x" % (mask & 0xffffffff))
    e("s_cbranch_scc1 %s" % done)
    e("s_add_u32 s41, s41, 1")
    e("s_cmp_ge_u32 s41, 0x40000")
    e("s_cbranch_scc1 %s" % done)
    e("s_branch %s" % top)
    e.label(done)
def poll(e, sbase, nflags, drain=True):
    poll_prep(e, sbase, nflags)
    poll_loop(e, nflags, False)

def pollAG_prep(e):
    e("v_lshlrev_b32 v61, 2, v%d" % V_LANE)
    e("v_add_u32 v62, 0x%x, v61" % (FLAGS + 16 * 512 + 128 - 128))
    e("v_add_u32 v61, s%d, v61" % S_PF)
    e("v_cmp_gt_u32 vcc, 14, v%d" % V_LANE)
    e("v_mov_b32 v60, 0x7fffffff")
    e("s_nop 0")
    e("v_cndmask_b32 v61, v60, v61, vcc")
    e("v_cmp_lt_u32 vcc, 31, v%d" % V_LANE)
    e("s_nop 1")
    e("v_cndmask_b32 v61, v61, v62, vcc")

def poll_loop56(e):
    top = e.newlabel("POLL"); done = e.newlabel("POLLD")
    e("s_mov_b32 s41, 0")
    e.label(top)
    poll_issue(e)
    e("s_waitcnt vmcnt(0)")
    e("v_cmp_eq_u32 vcc, s%d, v60" % S_NONCE)
    e("s_nop 1")
    e("s_and_b32 s43, vcc_hi, 0xffffff")
    e("s_cmp_eq_u32 s43, 0xffffff")
    e("s_cselect_b32 s42, vcc_lo, 0")
    e("s_cmp_eq_u32 s42, -1")
    e("s_cbranch_scc1 %s" % done)
    e("s_add_u32 s41, s41, 1")
    e("s_cmp_ge_u32 s41, 0x40000")
    e("s_cbranch_scc1 %s" % done)
    e("s_branch %s" % top)
    e.label(done)

def poll2(e, sline1, line2):
    top = e.newlabel("POLL"); done = e.newlabel("POLLD")
    e("v_lshlrev_b32 v61, 2, v%d" % V_LANE)
    e("v_add_u32 v62, 0x%x, v61" % line2)
    e("v_add_u32 v61, s%d, v61" % sline1)
    e("v_mov_b32 v60, 0x7fffffff")
    e("v_cmp_gt_u32 vcc, 56, v%d" % V_LANE)
    e("s_nop 1")
    e("v_cndmask_b32 v61, v60, v61, vcc")
    e("v_cmp_gt_u32 vcc, 32, v%d" % V_LANE)
    e("s_nop 1")
    e("v_cndmask_b32 v62, v60, v62, vcc")
    e("s_mov_b32 s41, 0")
    e.label(top)
    e("buffer_load_dword v60, v61, s[%d:%d], 0 offen sc1" % (S_WS, S_WS + 3))
    e("buffer_load_dword v58, v62, s[%d:%d], 0 offen sc1" % (S_WS, S_WS + 3))
    e("s_waitcnt vmcnt(0)")
    e("v_cmp_eq_u32 vcc, s%d, v60" % S_NONCE)
    e("v_cmp_eq_u32 s[42:43], s%d, v58" % S_NONCE)
    e("s_nop 1")
    e("s_and_b32 s43, vcc_hi, 0xffffff")
    e("s_and_b32 s42, s42, vcc_lo")
    e("s_cmp_eq_u32 s43, 0xffffff")
    e("s_cselect_b32 s42, s42, 0")
    e("s_cmp_eq_u32 s42, -1")
    e("s_cbranch_scc1 %s" % done)
    e("s_add_u32 s41, s41, 1")
    e("s_cmp_ge_u32 s41, 0x40000")
    e("s_cbranch_scc1 %s" % done)
    e("s_branch %s" % top)
    e.label(done)

def kernel_fused(e, cfg):
    name = "gated_mix__spectral_fnet__glu_gated_glu__prompt_kernel"
    header(e, name)
    e("s_cmp_ge_u32 s2, 256")
    e("s_cbranch_scc1 KF_END")
    kernarg_loads(e)
    entry_common(e)
    def after_h_consumer():
        e.vm_wait_all()
        e("s_barrier")
        lab = e.newlabel("NOTW0")
        e("s_cmp_lg_u32 s%d, 0" % S_WAVE)
        e("s_cbranch_scc1 %s" % lab)
        flag_store(e)
        e.label(lab)
        stamp(e, cfg, 4)
        p2_role(e)
        p2_setup(e, cfg)
        srd(e, S_OUT, 46, 1835008)
        srd(e, S_WD, 56, 1605632)
        e("s_cmp_lg_u32 s%d, 0" % S_WAVE)
        e("s_cbranch_scc1 P2_START")
        e("s_lshr_b32 s43, s%d, 1" % S_T1)
        e("s_lshl_b32 s43, s43, 7")
        e("s_add_u32 s%d, s43, 0x%x" % (S_PF, FLAGS))
        poll(e, S_PF, 14)
        e("s_branch P2_START")
    def after_h_loader():
        e("s_barrier")
        p2_role(e)
        p2_setup(e, cfg)
        srd(e, S_OUT, 46, 1835008)
        e("v_subrev_u32 v9, %d, v10" % (8 * 896))
        e("s_sub_u32 s69, s62, 1024")
        for kk in range(20):
            pos = kk
            dma(e, S_WD, 9, pos * 2048, 69, kk * 16 * 896, ("wdp", kk))
            dma(e, S_WD, 10, pos * 2048, 62, kk * 16 * 896, ("wdp", kk))
        e("s_barrier")
        stamp(e, cfg, 4)
        e.vm = []
        e.label("P2_START")
        e("s_waitcnt vmcnt(0)")
        e("s_barrier")
        stamp(e, cfg, 5)
        e.vm = []; e.lg = []
        p2_main(e, cfg, 5)
        stamp_store(e, cfg, 0)
        e("s_endpgm")
    def after_d(is_cons):
        if is_cons:
            e.vm_wait_all()
            e("s_barrier")
            lab = e.newlabel("DNOTW0")
            e("s_cmp_lg_u32 s%d, 0" % S_WAVE)
            e("s_cbranch_scc1 %s" % lab)
            flag_store(e)
            e("s_waitcnt vmcnt(0)")
            e.label(lab)
            stamp_store(e, cfg, 0)
            e("s_endpgm")
        else:
            e("s_waitcnt vmcnt(0)")
            e("s_barrier")
            stamp_store(e, cfg, 0)
            e("s_endpgm")
    phase1(e, cfg, after_h_consumer, after_h_loader, after_d)
    e.label("KF_END")
    e("s_endpgm")


WB2 = 114688; NW2 = 6; WS2 = 8192
H_ACC = 64
H_FR = 192
V_XA2 = 10
V_WA2 = 18
S_WT = 69

def h2_consumer(e, cfg):
    L = V_LANE; T = 26
    e("s_lshr_b32 s%d, s%d, 1" % (S_WT, S_WAVE))
    e("s_and_b32 s%d, s%d, 1" % (S_WF, S_WAVE))
    e("v_and_b32 v%d, 31, v%d" % (T, L))
    e("v_lshrrev_b32 v%d, 5, v%d" % (T + 1, L))
    e("v_lshrrev_b32 v%d, 1, v%d" % (T + 2, T))
    e("v_and_b32 v%d, 7, v%d" % (T + 2, T + 2))
    e("s_lshl_b32 s41, s%d, 6" % S_WT)
    e("v_add_u32 v%d, s41, v%d" % (T + 3, T))
    e("v_lshlrev_b32 v%d, 7, v%d" % (T + 3, T + 3))
    for k in range(4):
        e("v_add_u32 v%d, %d, v%d" % (T + 4, 2 * k, T + 1))
        e("v_xor_b32 v%d, v%d, v%d" % (T + 4, T + 4, T + 2))
        e("v_lshlrev_b32 v%d, 4, v%d" % (T + 4, T + 4))
        e("v_add_u32 v%d, v%d, v%d" % (V_XA2 + k, T + 3, T + 4))
        e("v_add_u32 v%d, 0x10000, v%d" % (V_XA2 + 4 + k, V_XA2 + k))
    e("v_and_b32 v%d, 15, v%d" % (T + 4, L))
    e("v_lshrrev_b32 v%d, 2, v%d" % (T + 5, T + 4))
    e("v_lshlrev_b32 v%d, 7, v%d" % (T + 5, T + 5))
    e("v_lshlrev_b32 v%d, 11, v%d" % (T + 6, T + 1))
    e("v_add_u32 v%d, v%d, v%d" % (T + 6, T + 6, T + 5))
    e("v_bfe_u32 v%d, v%d, 3, 1" % (T + 7, T + 4))
    e("v_xor_b32 v%d, s%d, v%d" % (T + 7, S_WF, T + 7))
    e("v_lshlrev_b32 v%d, 6, v%d" % (T + 7, T + 7))
    e("v_add_u32 v%d, v%d, v%d" % (T + 6, T + 6, T + 7))
    e("v_bfe_u32 v%d, v%d, 4, 1" % (T + 7, L))
    e("v_lshlrev_b32 v%d, 5, v%d" % (T + 7, T + 7))
    e("v_add_u32 v%d, v%d, v%d" % (T + 6, T + 6, T + 7))
    e("v_and_b32 v%d, 3, v%d" % (T + 7, T + 4))
    e("v_lshlrev_b32 v%d, 3, v%d" % (T + 7, T + 7))
    e("v_add_u32 v%d, v%d, v%d" % (T + 6, T + 6, T + 7))
    e("v_add_u32 v%d, 0x%x, v%d" % (V_WA2, WB2, T + 6))
    e("s_waitcnt lgkmcnt(0)")
    srd(e, S_WS, 74, WS_BYTES)
    if cfg.ncx > 0:
        srd(e, S_X, 44, 1835008)
        e("v_lshrrev_b32 v40, 3, v%d" % L)
        e("v_and_b32 v41, 7, v%d" % L)
        e("v_lshrrev_b32 v42, 4, v%d" % L)
        e("v_xor_b32 v41, v41, v42")
        e("v_lshlrev_b32 v41, 4, v41")
        e("v_mul_u32_u24 v40, 28672, v40")
        e("s_lshl_b32 s41, s%d, 1" % S_R)
        e("s_lshr_b32 s42, s%d, 1" % S_WAVE)
        e("s_add_u32 s41, s41, s42")
        e("s_mul_i32 s41, s41, 896")
        e("s_and_b32 s42, s%d, 1" % S_WAVE)
        e("s_mul_i32 s42, s42, %d" % (32 * 28672))
        e("s_add_u32 s41, s41, s42")
        e("v_add3_u32 v36, v40, v41, s41")
        e("v_xor_b32 v41, 64, v41")
        e("s_add_u32 s42, s41, %d" % (8 * 28672 - 1024))
        e("v_add3_u32 v37, v40, v41, s42")
        e("v_add_u32 v38, %d, v36" % (16 * 28672 - 2048))
        e("v_add_u32 v39, %d, v37" % (16 * 28672 - 2048))
        e("s_mul_i32 s6, s%d, %d" % (S_R, RMUL[0]))
        e("s_add_u32 s6, s6, s%d" % S_FB)
        e("s_mul_i32 s7, s6, 37")
        e("s_lshr_b32 s7, s7, 8")
        e("s_mul_i32 s7, s7, 7")
        e("s_sub_u32 s6, s6, s7")
        e("s_lshl_b32 s5, s%d, 12" % S_WAVE)
        for c in range(1, cfg.ncx + 1):
            rot_next(e, 6, 7)
            e("s_lshl_b32 s4, s6, 7")
            dma_group(e, 5, c * 16384, [(S_X, 36 + i, 4, i * 1024, ("xc", c)) for i in range(4)])
    de = Em()
    _e = e
    e = de
    e("s_lshl_b32 s41, s%d, 1" % S_R)
    e("s_add_u32 s41, s41, s%d" % S_WT)
    e("s_mul_i32 s41, s41, 112")
    e("s_lshl_b32 s42, s%d, 1" % S_FB)
    e("s_add_u32 s42, s42, s%d" % S_WF)
    e("s_lshl_b32 s42, s42, 1")
    e("s_add_u32 s41, s41, s42")
    e("s_lshl_b32 s41, s41, 11")
    e("v_lshlrev_b32 v20, 4, v%d" % L)
    e("v_add_u32 v20, s41, v20")
    e("v_add_u32 v21, 0x%x, v20" % (56 * 2048))
    flag_addr(e, True)
    srd(e, S_DBG, 72, 256)
    e("v_mov_b32 v7, 0")
    e("s_mov_b32 s44, 0x%08x" % f2u(-LOG2E))
    e("s_mov_b32 s45, s44")
    defer_list = [ln.strip() for ln in de.lines]
    e = _e
    nonce_publish(e)
    if "pf2" in cfg.x:
        lab = e.newlabel("PF2")
        e("s_cmp_lg_u32 s%d, 0" % S_WAVE)
        e("s_cbranch_scc1 %s" % lab)
        srd(e, S_WD, 56, 1605632)
        e("s_mul_i32 s41, s%d, 14" % S_R)
        e("s_add_u32 s41, s41, s%d" % S_FB)
        e("s_mul_i32 s41, s41, 56")
        e("v_add_u32 v8, s41, v%d" % L)
        e("v_lshlrev_b32 v8, 7, v8")
        e("buffer_load_dword v9, v8, s[%d:%d], 0 offen" % (S_WD, S_WD + 3))
        e.label(lab)
    stamp(e, cfg, 0)
    if "notouch" not in cfg.x:
        srd(e, S_WD, 56, 1605632)
        e("s_lshr_b32 s41, s2, 3")
        e("s_mul_i32 s41, s41, 448")
        e("s_lshl_b32 s42, s%d, 6" % S_WAVE)
        e("s_add_u32 s41, s41, s42")
        e("v_add_u32 v8, s41, v%d" % L)
        e("v_lshlrev_b32 v8, 7, v8")
        e("buffer_load_dword v2, v8, s[%d:%d], 0 offen" % (S_WD, S_WD + 3))
        e("s_cmp_eq_u32 s%d, 3" % S_WAVE)
        lab = e.newlabel("TCH")
        e("s_cbranch_scc1 %s" % lab)
        e("v_add_u32 v8, 0x%x, v8" % (256 * 128))
        e("buffer_load_dword v3, v8, s[%d:%d], 0 offen" % (S_WD, S_WD + 3))
        e.label(lab)
    e("s_barrier")
    stamp(e, cfg, 1)
    if cfg.diag:
        e("s_memtime s[76:77]"); e("s_waitcnt lgkmcnt(0)")
    def reads(g):
        p = g // 28; kap = g % 28
        base = H_FR + 16 * (g & 1)
        c = kap >> 2; kk4 = kap & 3
        xo = c * 16384
        xv = V_XA2 + kk4 + (4 if xo >= 0x10000 else 0); xo &= 0xffff
        j = g >> 1; kk = g & 1
        so = (j % NW2) * WS2
        def xr(nb): return (("X", g, nb), "ds_read_b128 %s, v%d offset:%d" % (vr(base + 4 * nb, 4), xv, xo + nb * 4096))
        def wr(m, ip): return (("W", g, m), "ds_read_b64_tr_b16 %s, v%d offset:%d" % (vr(base + 8 + 4 * m + 2 * ip, 2), V_WA2, so + kk * 4096 + ip * 512 + m * 1024))
        return [wr(0, 0), wr(0, 1), xr(0), wr(1, 0), wr(1, 1), xr(1)]
    def epi_list(p):
        ACCB = H_ACC + 64 * p
        L_ = []
        def I(txt): L_.append(lambda: e(txt))
        grp = 0
        for nb in range(2):
            for hf in range(2):
                outb = 224 + 4 * grp; grp += 1
                A = ACCB + 16 * nb + 8 * hf; B = ACCB + 32 + 16 * nb + 8 * hf
                for q in range(0, 8, 2):
                    I("v_pk_mul_f32 %s, %s, s[44:45]" % (vr(A + q, 2), vr(A + q, 2)))
                for q in range(8):
                    I("v_exp_f32 v%d, v%d" % (A + q, A + q))
                for q in range(0, 8, 2):
                    I("v_pk_add_f32 %s, %s, s[46:47]" % (vr(A + q, 2), vr(A + q, 2))) if False else I("v_pk_add_f32 %s, %s, 1.0 op_sel_hi:[1,0]" % (vr(A + q, 2), vr(A + q, 2)))
                for q in range(8):
                    I("v_rcp_f32 v%d, v%d" % (A + q, A + q))
                for q in range(0, 8, 2):
                    I("v_pk_mul_f32 %s, %s, %s" % (vr(A + q, 2), vr(A + q, 2), vr(B + q, 2)))
                for q2 in range(4):
                    I("v_cvt_pk_bf16_f32 v%d, v%d, v%d" % (outb + q2, A + 2 * q2, A + 2 * q2 + 1))
                def st(outb=outb, nb=nb, hf=hf):
                    e("buffer_store_dwordx4 %s, v%d, s[%d:%d], 0 offen offset:%d sc1" % (vr(outb, 4), 20 + p, S_WS, S_WS + 3, hf * 2048 + nb * 1024))
                    e.vm_issue("hst")
                L_.append(st)
        return L_
    def epilogue(p):
        e("s_nop 7"); e("s_nop 3")
        for f in epi_list(p): f()
    pend_epi = []
    ge = Em()
    gate_list = []
    for tag, txt in reads(0):
        e(txt); e.lg_issue(tag)
    for g in range(56):
        base = H_FR + 16 * (g & 1)
        nxt = reads(g + 1) if g + 1 < 56 else []
        first = (g % 28 == 0)
        ACCB = H_ACC + 64 * (g // 28)
        if g == 28 + cfg.epi_start and cfg.epi_rate > 0:
            pend_epi = epi_list(0)
        k = 0
        for n in range(4):
            nb = n >> 1; m = n & 1
            if "wait2" in cfg.x:
                if n == 0: e.lg_wait([("W", g, 0), ("X", g, 0)])
                if n == 1: e.lg_wait([("W", g, 1), ("X", g, 1)])
            elif "wait1" in cfg.x:
                if n == 0: e.lg_wait([("W", g, 0), ("X", g, 0), ("W", g, 1), ("X", g, 1)])
            else:
                e.lg_wait([("W", g, m), ("X", g, nb)])
            d = ACCB + 32 * m + 16 * nb
            if "fake16" in cfg.x:
                for hh in range(2):
                    e("v_mfma_f32_16x16x32_bf16 %s, %s, %s, %s" % (vr(d + 8 * hh, 4), vr(base + 8 + 4 * m, 4), vr(base + 4 * nb, 4), "0" if first else vr(d + 8 * hh, 4)))
            elif "nomfma" not in cfg.x:
                mfma(e, d, base + 8 + 4 * m, base + 4 * nb, "0" if first else None)
            cnt = 2 if n < 2 else 1
            if "rd3" in cfg.x: cnt = (3, 3, 0, 0)[n]
            if "rd6" in cfg.x: cnt = (6, 0, 0, 0)[n]
            for _ in range(cnt):
                if k < len(nxt):
                    tag, txt = nxt[k]; k += 1
                    if "nolds" in cfg.x: continue
                    e(txt); e.lg_issue(tag)
            for _ in range(cfg.epi_rate):
                if pend_epi: pend_epi.pop(0)()
            for _ in range(cfg.defer_rate):
                if defer_list: e(defer_list.pop(0))
            if g >= cfg.gate_g:
                pass
                for _ in range(cfg.gate_rate):
                    if gate_list: e(gate_list.pop(0))
        if g == 27 and cfg.epi_rate == 0:
            epilogue(0)
        for c in range(1, cfg.ncx + 1):
            if g == 4 * c - 3:
                e.vm_wait([("xc", c)])
        if g == 46:
            nonce_load(e)
        if g == 2 * cfg.flagA_bar - 1:
            e("s_waitcnt vmcnt(0)")
        if (g & 1) and g < 55:
            e("s_barrier")
    assert not e.lg
    e.vm = []
    e("s_barrier")
    if cfg.diag:
        e("s_memtime s[78:79]"); e("s_waitcnt lgkmcnt(0)")
        e("s_sub_u32 s7, s78, s76")
    nonce_finish(e)
    assert not pend_epi and not gate_list
    stamp(e, cfg, 2)
    p2_role(e)
    flags_line(e, 0)
    pollAG_prep(e)
    poll_issue(e); e.vm_issue("pollA")
    epilogue(1)
    stamp(e, cfg, 3)

def h2_loader(e, cfg):
    L = V_LANE; T = 26
    VX = 10; VW = 14
    e("v_lshrrev_b32 v%d, 3, v%d" % (T, L))
    e("v_and_b32 v%d, 7, v%d" % (T + 1, L))
    e("v_lshrrev_b32 v%d, 4, v%d" % (T + 2, L))
    e("v_xor_b32 v%d, v%d, v%d" % (T + 3, T + 1, T + 2))
    e("v_lshlrev_b32 v%d, 4, v%d" % (T + 3, T + 3))
    e("v_mul_u32_u24 v%d, 28672, v%d" % (T + 4, T))
    e("s_lshl_b32 s41, s%d, 1" % S_R)
    e("s_lshr_b32 s42, s%d, 1" % S_LW)
    e("s_add_u32 s41, s41, s42")
    e("s_mul_i32 s41, s41, 896")
    e("s_and_b32 s42, s%d, 1" % S_LW)
    e("s_mul_i32 s42, s42, %d" % (32 * 28672))
    e("s_add_u32 s41, s41, s42")
    e("v_add3_u32 v%d, v%d, v%d, s41" % (VX, T + 4, T + 3))
    e("v_xor_b32 v%d, 64, v%d" % (T + 3, T + 3))
    e("s_add_u32 s42, s41, %d" % (8 * 28672 - 1024))
    e("v_add3_u32 v%d, v%d, v%d, s42" % (VX + 1, T + 4, T + 3))
    e("v_add_u32 v%d, %d, v%d" % (VX + 2, 16 * 28672 - 2048, VX))
    e("v_add_u32 v%d, %d, v%d" % (VX + 3, 16 * 28672 - 2048, VX + 1))
    e("v_mul_u32_u24 v%d, 3584, v%d" % (T + 4, T))
    e("v_and_b32 v%d, 1, v%d" % (T + 2, T + 2))
    e("v_lshlrev_b32 v%d, 2, v%d" % (T + 2, T + 2))
    e("v_xor_b32 v%d, v%d, v%d" % (T + 2, T + 2, T + 1))
    e("v_lshlrev_b32 v%d, 4, v%d" % (T + 2, T + 2))
    e("s_mul_i32 s41, s%d, %d" % (S_LW, 8 * 3584))
    e("s_lshl_b32 s42, s%d, 7" % S_FB)
    e("s_add_u32 s41, s41, s42")
    e("v_add3_u32 v%d, v%d, v%d, s41" % (VW, T + 4, T + 2))
    e("v_add_u32 v%d, %d, v%d" % (VW + 1, 32 * 3584, VW))
    e("s_lshl_b32 s%d, s%d, 11" % (S_LDSW, S_LW))
    e("s_lshl_b32 s%d, s%d, 12" % (S_LDSX, S_LW))
    e("s_mul_i32 s6, s%d, %d" % (S_R, RMUL[0]))
    e("s_add_u32 s6, s6, s%d" % S_FB)
    e("s_mul_i32 s7, s6, 37")
    e("s_lshr_b32 s7, s7, 8")
    e("s_mul_i32 s7, s7, 7")
    e("s_sub_u32 s6, s6, s7")
    e("s_waitcnt lgkmcnt(0)")
    srd(e, S_X, 44, 1835008)
    srd(e, S_WA, 52, 1605632)
    e("s_sub_u32 s%d, s54, 1024" % S_WB)
    e("s_subb_u32 s%d, s55, 0" % (S_WB + 1))
    e("s_and_b32 s%d, s%d, 0xffff" % (S_WB + 1, S_WB + 1))
    e("s_mov_b32 s%d, 0x%x" % (S_WB + 2, 1605632 + 1024))
    e("s_mov_b32 s%d, 0x20000" % (S_WB + 3))
    e("s_mov_b64 s[76:77], s[56:57]")
    e("s_mov_b64 s[78:79], s[58:59]")
    def emitT(dst):
        c = dst - 44
        e("s_lshl_b32 s%d, s6, 7" % (44 + c))
        e("s_mul_i32 s%d, s6, %d" % (51 + c, 64 * 3584))
    emitT(44)
    stamp(e, cfg, 0)
    tdone = [1]
    def need_table(c):
        while tdone[0] <= c:
            rot_next(e, 6, 7)
            emitT(44 + tdone[0]); tdone[0] += 1
    def dx(c):
        need_table(c)
        dma_group(e, S_LDSX, c * 16384, [(S_X, VX + i, 44 + c, i * 1024, ("x", c)) for i in range(4)])
    def dw(j):
        p = j // 14; jj = j % 14; c = jj >> 1
        need_table(c)
        va = VW + 2 * p + (jj & 1)
        dma_group(e, S_LDSW, WB2 + (j % NW2) * WS2, [(S_WA, va, 51 + c, 0, ("w", j)), (S_WB, va, 51 + c, 1024, ("w", j))])
    q = []
    for j in range(28):
        if j < 14 and j % 2 == 0 and not (1 <= j // 2 <= cfg.ncx): q.append(("x", j // 2, -1))
        q.append(("w", j, -1 if j < NW2 else j - NW2 + 1))
    def cost(it): return 4 if it[0] == "x" else 2
    def issue(it): (dx if it[0] == "x" else dw)(it[1])
    def need(j):
        t = []
        for jj in (j, j + 1):
            if jj <= 27:
                if jj < 14 and not (1 <= (jj >> 1) <= cfg.ncx): t.append(("x", jj >> 1))
                t.append(("w", jj))
        return t
    issued = set(); curbar = [-1]
    def ensure(tags):
        while q and any(t not in issued for t in tags):
            it = q.pop(0); assert it[2] <= curbar[0], (it, curbar)
            issue(it); issued.add((it[0], it[1]))
    ensure(need(0))
    e("v_add_u32 v%d, %d, v%d" % (VW + 2, 1792, VW))
    e("v_add_u32 v%d, %d, v%d" % (VW + 3, 1792, VW + 1))
    srd(e, S_WS, 74, WS_BYTES)
    srd(e, S_WD, 76, 1605632)
    srd(e, S_GW, 78, 896)
    srd(e, S_DBG, 72, 256)
    flag_addr(e, True)
    e("v_mov_b32 v7, 0")
    budget0 = cfg.pro_extra
    while q and budget0 > 0 and q[0][2] <= -1:
        it = q.pop(0); issue(it); issued.add((it[0], it[1])); budget0 -= cost(it)
    e.vm_wait(need(0))
    e("s_barrier")
    stamp(e, cfg, 1)
    for j in range(27):
        curbar[0] = j
        ensure(need(j + 1))
        budget = cfg.stage_budget2
        while q and budget > 0 and q[0][2] <= j:
            it = q.pop(0); issue(it); issued.add((it[0], it[1])); budget -= cost(it)
        if j == 1:
            p2_role(e)
            q_setup(e, 0, 26)
        if j == 14:
            q_table(e, 44, 2 * 16 * 896)
        if j >= 16 and j % 2 == 0:
            c = (j - 16) // 2
            q_dma_pair(e, 0, c, 26, 44)
        if j == 9:
            e("buffer_load_dword v4, v7, s[%d:%d], 0 offen sc1" % (S_DBG, S_DBG + 3))
            e.vm_issue("nonce")
        if j == 13:
            e.vm_wait(["nonce"])
            sv = list(e.vm)
            nonce_finish_any(e, keepvm=True)
            e.vm = sv
        if j == cfg.flagA_bar:
            lab = e.newlabel("FA")
            e("s_cmp_lg_u32 s%d, 4" % S_WAVE)
            e("s_cbranch_scc1 %s" % lab)
            flag_store(e)
            e.label(lab)
        if j == cfg.epoll:
            flags_line(e, 0)
            poll_prep(e, S_PF, 14)
            poll_issue(e); e.vm_issue("poll")
        e.vm_wait(need(j + 1))
        if "stg" in cfg.x and j + 1 in (4, 12, 15, 18, 26):
            pass
        e("s_barrier")
        if "stg" in cfg.x and j + 1 in (4, 12, 15, 18, 26):
            k = {4: 3, 12: 4, 15: 5, 18: 6, 26: 7}[j + 1]
            e("s_memtime s[%d:%d]" % (S_STAMP + 2 * k, S_STAMP + 2 * k + 1)); e("s_waitcnt lgkmcnt(0)")
    assert not q
    q_setup2(e, 0)
    q_table(e, 51, 4096)
    e.vm_wait([("wd", 11)])
    e("s_waitcnt lgkmcnt(0)")
    e("s_barrier")
    stamp(e, cfg, 2)
    poll_loop(e, 14, True)
    if cfg.diag: e("s_mov_b32 s%d, s41" % (S_STAMP + 16))
    stamp(e, cfg, 4)
    e.vm = []
    cfg.stepsA = q_steps(0, list(range(0, 2 * (6 - cfg.nca))) + [12, 13], 13)
    for i in range(cfg.hpre): q_issue_h(e, cfg.stepsA[i])
    q_dma_pair(e, 0, 6, 26, 44)

def nonce_finish_any(e, keepvm=False):
    lab = e.newlabel("NFA"); top = e.newlabel("NTA"); chk = e.newlabel("NCK")
    e("s_mov_b32 s42, 0")
    if keepvm: e("s_branch %s" % chk)
    e.label(top)
    e("s_waitcnt vmcnt(0)")
    e.label(chk)
    e("v_readfirstlane_b32 s%d, v4" % S_NONCE)
    e("s_nop 3")
    e("s_cmp_lg_u32 s%d, 0" % S_NONCE)
    e("s_cbranch_scc1 %s" % lab)
    e("s_add_u32 s42, s42, 1")
    e("s_cmp_ge_u32 s42, 0x40000")
    e("s_cbranch_scc1 %s" % lab)
    e("s_sleep 1")
    e("buffer_load_dword v4, v7, s[%d:%d], 0 offen sc1" % (S_DBG, S_DBG + 3))
    e("s_branch %s" % top)
    e.label(lab)

Q_ACC = 64
Q_H = 128
Q_A = 240
SL2 = 40960
SI = 3

def q_setup(e, part, vw=9):
    L = V_LANE
    e("s_and_b32 s%d, s%d, 3" % (SI, S_WAVE))
    e("v_lshrrev_b32 v2, 3, v%d" % L)
    e("v_bfe_u32 v3, v%d, 4, 1" % L)
    e("v_lshlrev_b32 v3, 2, v3")
    e("v_and_b32 v8, 7, v%d" % L)
    e("v_xor_b32 v3, v3, v8")
    e("v_lshlrev_b32 v3, 4, v3")
    e("s_mul_i32 s41, s%d, 224" % SI)
    if part: e("s_add_u32 s41, s41, 896")
    e("v_add_u32 v2, s41, v2")
    e("s_movk_i32 s42, 896")
    e("v_mul_lo_u32 v2, v2, s42")
    e("s_lshl_b32 s41, s%d, 7" % S_C)
    e("v_add3_u32 v%d, v2, v3, s41" % vw)
    e("v_add_u32 v%d, %d, v%d" % (vw + 1, 8 * 896 - 1024, vw))
    e("v_add_u32 v%d, %d, v%d" % (vw + 2, 16 * 896 - 2048, vw))
    e("v_add_u32 v%d, %d, v%d" % (vw + 3, 24 * 896 - 3072, vw))
    e("s_lshl_b32 s62, s%d, 12" % SI)
    e("s_and_b32 s4, s%d, 3" % S_T1)
    e("s_lshl_b32 s4, s4, 1")
    e("s_add_u32 s4, s4, s%d" % S_C)
    e("s_cmp_ge_u32 s4, 7")
    e("s_cselect_b32 s5, 7, 0")
    e("s_sub_u32 s4, s4, s5")
    if P2ROT[0] == 0: e("s_mov_b32 s4, 0")

def q_table(e, first, mult):
    e("s_mov_b32 s5, s4")
    for c in range(7):
        e("s_mul_i32 s%d, s5, %d" % (first + c, mult))
        if c < 6: rot_next(e, 5, 7)

def q_dma_pair(e, part, c, vw, tab):
    pos = q_pos(part, 2 * c)
    dma_group(e, 62, pos, [(S_WD, vw + i, tab + c, i * 1024, ("wd", 2 * c + (i >> 1))) for i in range(4)])

P2ROT = [1]
RMUL = [2]
OSC = [""]
HSC = [" sc1"]
def q_setup2(e, part):
    L = V_LANE
    e("v_and_b32 v2, 15, v%d" % L)
    e("v_lshrrev_b32 v3, 2, v2")
    e("v_lshrrev_b32 v8, 5, v%d" % L)
    e("v_lshlrev_b32 v5, 2, v8")
    e("v_add_u32 v5, v5, v3")
    e("v_lshlrev_b32 v5, 7, v5")
    e("v_bfe_u32 v6, v2, 3, 1")
    e("v_lshlrev_b32 v6, 6, v6")
    e("v_bfe_u32 v3, v%d, 4, 1" % L)
    e("v_lshlrev_b32 v3, 5, v3")
    e("v_and_b32 v8, 3, v2")
    e("v_lshlrev_b32 v8, 3, v8")
    e("v_add3_u32 v5, v5, v6, v3")
    e("v_add_u32 v5, v5, v8")
    e("v_add_u32 v11, s62, v5")
    e("v_xor_b32 v12, 64, v11")
    e("v_add_u32 v18, 0x10000, v11")
    e("v_add_u32 v19, 0x10000, v12")
    e("v_add_u32 v15, 0x20000, v11")
    e("v_add_u32 v63, 0x20000, v12")
    e("s_mul_i32 s41, s%d, 112" % S_T1)
    e("s_mul_i32 s42, s%d, 14" % SI)
    e("s_add_u32 s41, s41, s42")
    if part: e("s_add_u32 s41, s41, 56")
    e("s_lshl_b32 s41, s41, 11")
    e("v_lshlrev_b32 v13, 4, v%d" % L)
    e("v_add_u32 v13, s41, v13")
    e("v_and_b32 v14, 31, v%d" % L)

def q_pos(part, kk):
    c = kk >> 1; u = kk & 1
    if part == 0: return c * 16384 + u * 2048
    if c < 3: return WB2 + c * 16384 + u * 2048
    if c < 6: return c * 16384 + u * 2048
    return 0 * 16384 + u * 2048

HT = [51]
def q_load_h(e, kk, hreg, hv, tag):
    c = kk >> 1; u = kk & 1
    for nb in range(2):
        e("buffer_load_dwordx4 %s, v%d, s[%d:%d], s%d offen offset:%d%s" % (vr(hreg + 4 * nb, 4), hv, S_WS, S_WS + 3, HT[0] + c, u * 2048 + nb * 1024, HSC[0]))
        e.vm_issue(tag)

def q_steps(part, kks, hv, reg0=0):
    return [dict(part=part, kk=kk, hv=hv, hreg=Q_H + 8 * (reg0 + i), tag=("h", part, kk)) for i, kk in enumerate(kks)]

def q_issue_h(e, st):
    q_load_h(e, st["kk"], st["hreg"], st["hv"], st["tag"])

def q_mainloop(e, cfg, steps, init_zero, pre, extra=None, after_i=None, barrier_before=None):
    n = len(steps)
    def reads(i):
        st = steps[i]
        b = Q_A + 8 * (i & 1)
        pos = q_pos(st["part"], st["kk"])
        for mb in range(2):
            for ip in range(2):
                va = (11 + mb) if pos < 0x10000 else (18 + mb)
                po = pos if pos < 0x10000 else pos - 0x10000
                if pos >= 0x20000:
                    va = (15, 63)[mb]; po = pos - 0x20000
                e("ds_read_b64_tr_b16 %s, v%d offset:%d" % (vr(b + 4 * mb + 2 * ip, 2), va, po + ip * 1024))
                e.lg_issue(("A", i, mb))
    nxt = pre
    e.vm_wait([("wd", steps[0]["kk"])])
    reads(0)
    for i in range(n):
        st = steps[i]
        if nxt < n:
            q_issue_h(e, steps[nxt]); nxt += 1
            if nxt == n and extra: extra()
        late = (barrier_before is not None and i + 1 == barrier_before)
        if i + 1 < n and not late:
            e.vm_wait([("wd", steps[i + 1]["kk"])])
            reads(i + 1)
        e.vm_wait([st["tag"]])
        b = Q_A + 8 * (i & 1)
        for mb in range(2):
            e.lg_wait([("A", i, mb)])
            for nb in range(2):
                mfma(e, Q_ACC + 16 * (2 * mb + nb), b + 4 * mb, st["hreg"] + 4 * nb, "0" if (i == 0 and init_zero) else None)
        if late:
            e("s_barrier")
            reads(i + 1)
        if after_i: after_i(i)
    assert not e.lg and nxt >= n

def flags_line(e, part):
    e("s_lshr_b32 s43, s%d, 1" % S_T1)
    e("s_lshl_b32 s43, s43, 9")
    e("s_add_u32 s%d, s43, 0x%x" % (S_PF, FLAGS + 256 * part))

def q_loader_A(e, cfg):
    for i in range(4):
        e("v_add_u32 v%d, %d, v%d" % (20 + i, 896 * 896, 26 + i))
    stamp(e, cfg, 5)
    def after_i(i):
        if i == 1:
            dma_group(e, 62, q_pos(1, 12), [(S_WD, 20 + k, 44 + 6, k * 1024, ("wdb", 6)) for k in range(4)])
        if (i & 1) and 3 <= (i >> 1) < 6 - cfg.nca:
            c = i >> 1
            dma_group(e, 62, q_pos(1, 2 * c), [(S_WD, 20 + k, 44 + c, k * 1024, ("wdb", c)) for k in range(4)])
    q_mainloop(e, cfg, cfg.stepsA, True, cfg.hpre, None, after_i)
    stamp(e, cfg, 6)
    e("v_lshlrev_b32 v2, 4, v%d" % V_LANE)
    e("v_add_u32 v2, s62, v2")
    e("v_add_u32 v3, 0x10000, v2")
    e("s_nop 7"); e("s_nop 3")
    for tl, (va, off) in enumerate(((2, 16384), (2, 32768), (3, 6 * 16384 - 0x10000))):
        for qq in range(4):
            e("ds_write_b128 v%d, %s offset:%d" % (va, vr(Q_ACC + 16 * tl + 4 * qq, 4), off + qq * 1024))
    e("s_waitcnt vmcnt(0) lgkmcnt(0)")
    e.vm = []
    e("s_barrier")
    stamp(e, cfg, 7)
    e("v_add_u32 v3, 0x%x, v2" % WB2)
    for qq in range(4):
        e("ds_write_b128 v3, %s offset:%d" % (vr(Q_ACC + 48 + 4 * qq, 4), qq * 1024))
    e("s_waitcnt lgkmcnt(0)")
    e("s_barrier")

def tprime(e):
    L = V_LANE
    e("s_cmp_lg_u32 s%d, 0" % S_T1)
    e("s_cselect_b32 s76, s63, 0")
    e("v_add_u32 v2, s76, v14")
    e("v_lshrrev_b32 v8, 5, v%d" % L)
    e("v_lshlrev_b32 v8, 2, v8")
    e("s_lshl_b32 s77, s%d, 4" % SI)
    e("v_add_u32 v8, s77, v8")
    e("s_lshl_b32 s76, s63, 31")
    e("s_mov_b32 s77, 0x%08x" % f2u(1.0 / 64))
    for nb in range(2):
        if nb: e("v_add_u32 v2, 32, v2")
        e("v_xor_b32 v21, s76, v%d" % (22 + nb))
        for u in range(2):
            for q in range(4):
                e("v_add_u32 v3, %d, v8" % (8 * u + q))
                e("v_mul_u32_u24 v3, v3, v2")
                e("v_and_b32 v3, 63, v3")
                e("v_cvt_f32_u32 v3, v3")
                e("v_mul_f32 v3, s77, v3")
                e("v_cos_f32 v5, v3")
                e("v_sin_f32 v6, v3")
                e("s_nop 0")
                e("v_mul_f32 v5, v5, v%d" % (22 + nb))
                e("v_mul_f32 v6, v6, v21")
                e("v_cvt_pk_bf16_f32 v%d, v5, v6" % (T_REG + 8 * nb + 4 * u + q))
    for nb in range(2):
        e("v_sub_f32 v%d, 1.0, v%d" % (40 + 2 * nb, 22 + nb))
        e("v_mov_b32 v%d, v%d" % (41 + 2 * nb, 40 + 2 * nb))

T_REG = 44
U_REG = 128
def q_consumer_B(e, cfg):
    L = V_LANE
    q_setup(e, 1, 26)
    q_setup2(e, 1)
    e("v_subrev_u32 v9, %d, v13" % (56 * 2048))
    srd(e, S_OUT, 46, 1835008)
    srd(e, S_WD, 56, 1605632)
    q_table(e, 44, 2 * 16 * 896)
    q_table(e, 51, 4096)
    e.vm_wait(["pollA"])
    okA = e.newlabel("AOK")
    topA = e.newlabel("ATOP")
    e("s_mov_b32 s41, 0")
    e.label(topA)
    e("v_cmp_eq_u32 vcc, s%d, v60" % S_NONCE)
    e("s_nop 1")
    e("s_and_b32 s42, vcc_lo, 0x3fff")
    e("s_cmp_eq_u32 s42, 0x3fff")
    e("s_cselect_b32 s42, vcc_hi, 0")
    e("s_cmp_eq_u32 s42, -1")
    e("s_cbranch_scc1 %s" % okA)
    e("s_add_u32 s41, s41, 1")
    e("s_cmp_ge_u32 s41, 0x40000")
    e("s_cbranch_scc1 %s" % okA)
    poll_issue(e)
    e("s_waitcnt vmcnt(0)")
    e("s_branch %s" % topA)
    e.label(okA)
    stepsCA = q_steps(0, list(range(2 * (6 - cfg.nca), 12)), 9)
    for st in stepsCA[:cfg.preCA]: q_issue_h(e, st)
    e("s_cmp_ge_u32 s%d, 4" % S_C)
    e("s_cselect_b32 s63, 1, 0")
    e("s_sub_u32 s64, 32, s%d" % S_T1)
    e("s_and_b32 s64, s64, 31")
    e("s_cmp_eq_u32 s63, 1")
    e("s_cselect_b32 s64, s64, s%d" % S_T1)
    e("v_lshrrev_b32 v8, 5, v%d" % L)
    e("s_lshl_b32 s41, s%d, 6" % S_C)
    e("s_cmp_eq_u32 s63, 1")
    e("s_cselect_b64 vcc, -1, 0")
    for mb in range(2):
        e("v_add_u32 v2, s41, v14")
        if mb: e("v_add_u32 v2, 32, v2")
        e("v_sub_u32 v3, 448, v2")
        e("v_cndmask_b32 v2, v2, v3, vcc")
        e("v_lshlrev_b32 v2, 4, v2")
        e("v_lshlrev_b32 v3, 12, v8")
        e("v_add_u32 v%d, v2, v3" % (16 + mb))
    e("s_lshl_b32 s41, s64, 4")
    e("s_lshl_b32 s42, s%d, 2" % SI)
    e("s_add_u32 s41, s41, s42")
    e("s_lshl_b32 s41, s41, 12")
    e("s_add_u32 s65, s41, 0x%x" % UBUF)
    e("s_lshl_b32 s41, s%d, 6" % S_T1)
    e("v_add_u32 v2, s41, v14")
    e("v_lshlrev_b32 v2, 2, v2")
    e("v_add_u32 v20, 0x%x, v2" % GBUF)
    e("s_mul_i32 s41, s61, 12")
    e("s_lshl_b32 s42, s%d, 2" % S_WAVE)
    e("s_add_u32 s41, s41, s42")
    e("s_add_u32 s41, s41, 256")
    e("s_add_u32 s%d, s%d, s41" % (S_FLAG, S_FLAG))
    e.vm_wait(["hst"])
    stamp(e, cfg, 6)
    flag_store(e)
    e.vm_issue("flagB")
    for nb in range(2):
        e("buffer_load_dword v%d, v20, s[%d:%d], 0 offen offset:%d sc1" % (22 + nb, S_WS, S_WS + 3, nb * 128))
        e.vm_issue("g")
    for st in stepsCA[cfg.preCA:]: q_issue_h(e, st)
    for c in range(3): q_dma_pair(e, 1, c, 26, 44)
    e.vm_wait(["g"])
    tprime(e)
    def afterA(i):
        if i & 1:
            c = 6 - cfg.nca + (i >> 1)
            q_dma_pair(e, 1, c, 26, 44)
    if stepsCA:
        q_mainloop(e, cfg, stepsCA, True, len(stepsCA), None, afterA)
    stamp(e, cfg, 4)
    flags_line(e, 1)
    poll_prep(e, S_PF, 56)
    poll_loop56(e)
    stamp(e, cfg, 5)
    e.vm = []
    e("v_lshlrev_b32 v62, 2, v%d" % V_LANE)
    e("v_add_u32 v62, 0x%x, v62" % (FLAGS + 16 * 512))
    e("v_mov_b32 v60, 0x7fffffff")
    e("v_cmp_gt_u32 vcc, 32, v%d" % V_LANE)
    e("s_nop 1")
    e("v_cndmask_b32 v62, v60, v62, vcc")
    def uloads():
        for u in range(2):
            for mb in range(2):
                e("s_add_u32 s%d, s65, %d" % (S_OFF, u * 2 * 4096))
                e("buffer_load_dwordx4 %s, v%d, s[%d:%d], s%d offen sc1" % (vr(U_REG + 8 * u + 4 * mb, 4), 16 + mb, S_WS, S_WS + 3, S_OFF))
                e.vm_issue("u")
    def dflag_issue():
        e("buffer_load_dword v10, v62, s[%d:%d], 0 offen sc1" % (S_WS, S_WS + 3))
        e.vm_issue("dflag")
    def after_k(kk):
        if kk == cfg.dchk:
            ok = e.newlabel("DOK"); top = e.newlabel("DSP")
            e.vm_wait(["dflag"])
            sv = list(e.vm)
            e("s_mov_b32 s41, 0")
            e.label(top)
            e("v_cmp_eq_u32 vcc, s%d, v10" % S_NONCE)
            e("s_nop 1")
            e("s_cmp_eq_u32 vcc_lo, -1")
            e("s_cbranch_scc1 %s" % ok)
            e("s_add_u32 s41, s41, 1")
            e("s_cmp_ge_u32 s41, 0x40000")
            e("s_cbranch_scc1 %s" % ok)
            e("buffer_load_dword v10, v62, s[%d:%d], 0 offen sc1" % (S_WS, S_WS + 3))
            e("s_waitcnt vmcnt(0)")
            e("s_branch %s" % top)
            e.label(ok)
            e.vm = sv
            uloads()
    stepsB = q_steps(1, list(range(14)), 13)
    for i in range(cfg.hpreB): q_issue_h(e, stepsB[i])
    q_mainloop(e, cfg, stepsB, cfg.nca == 0, cfg.hpreB, dflag_issue, after_k, 2 if cfg.nca == 3 else 6)
    stamp(e, cfg, 7)
    e("s_nop 7"); e("s_nop 3")
    for mb in range(2):
        for nb in range(2):
            D = Q_ACC + 16 * (2 * mb + nb)
            for i in range(0, 16, 2):
                e("v_pk_mul_f32 %s, %s, %s" % (vr(D + i, 2), vr(D + i, 2), vr(40 + 2 * nb, 2)))
    e.vm_wait(["u"])
    e("s_nop 1")
    for u in range(2):
        for mb in range(2):
            for nb in range(2):
                mfma(e, Q_ACC + 16 * (2 * mb + nb), U_REG + 8 * u + 4 * mb, T_REG + 8 * nb + 4 * u)
    e("s_barrier")
    e("v_lshlrev_b32 v2, 4, v%d" % L)
    e("s_add_u32 s41, s%d, 2" % SI)
    e("s_cmp_eq_u32 s%d, 0" % SI)
    e("s_cselect_b32 s41, 0, s41")
    e("s_lshl_b32 s41, s41, 14")
    e("v_add_u32 v3, s41, v2")
    e("s_add_u32 s41, s%d, 1" % SI)
    e("s_lshl_b32 s41, s41, 14")
    e("s_cmp_eq_u32 s%d, 2" % SI)
    e("s_cselect_b32 s41, %d, s41" % (6 * 16384))
    e("s_cmp_eq_u32 s%d, 3" % SI)
    e("s_cselect_b32 s41, 0x%x, s41" % WB2)
    e("v_add_u32 v5, s41, v2")
    for k in range(4):
        for qq in range(4):
            e("ds_read_b128 %s, v5 offset:%d" % (vr(192 + 16 * k + 4 * qq, 4), k * 4096 + qq * 1024))
        if k == 2: e("s_waitcnt lgkmcnt(8)")
    e("s_waitcnt lgkmcnt(6)")
    for tl in range(4):
        for qq in range(4):
            e("ds_write_b128 v3, %s offset:%d" % (vr(Q_ACC + 16 * tl + 4 * qq, 4), tl * 4096 + qq * 1024))
        if tl < 3: e("s_waitcnt lgkmcnt(6)")
    e("s_waitcnt lgkmcnt(0)")
    e("s_barrier")
    e("s_lshl_b32 s41, s%d, 12" % SI)
    e("v_add_u32 v3, s41, v2")
    e("v_add_u32 v6, 0x10000, v3")
    for k, (va, off) in enumerate(((3, 0), (3, 3 * 16384), (6, 0), (6, 16384))):
        for qq in range(4):
            e("ds_read_b128 %s, v%d offset:%d" % (vr(128 + 16 * k + 4 * qq, 4), va, off + qq * 1024))
        if k == 2: e("s_waitcnt lgkmcnt(8)")
    for q in range(0, 16, 2):
        e("v_pk_add_f32 %s, %s, %s" % (vr(192 + q, 2), vr(192 + q, 2), vr(208 + q, 2)))
        e("v_pk_add_f32 %s, %s, %s" % (vr(224 + q, 2), vr(224 + q, 2), vr(240 + q, 2)))
    for q in range(0, 16, 2):
        e("v_pk_add_f32 %s, %s, %s" % (vr(192 + q, 2), vr(192 + q, 2), vr(224 + q, 2)))
    e("s_and_b32 s41, s%d, 1" % SI)
    e("s_cmp_eq_u32 s41, 1")
    e("s_cselect_b64 vcc, -1, 0")
    e("s_nop 1")
    e("v_cndmask_b32 v40, v40, v42, vcc")
    e("v_mov_b32 v41, v40")
    e("s_lshl_b32 s41, s41, 5")
    e("v_add_u32 v2, s41, v14")
    e("v_lshlrev_b32 v2, 5, v2")
    e("v_add_u32 v2, s%d, v2" % S_T1)
    e("s_movk_i32 s42, 896")
    e("v_mul_lo_u32 v2, v2, s42")
    e("s_lshl_b32 s41, s%d, 7" % S_C)
    e("s_lshr_b32 s42, s%d, 1" % SI)
    e("s_lshl_b32 s42, s42, 6")
    e("s_add_u32 s41, s41, s42")
    e("v_lshrrev_b32 v8, 5, v%d" % L)
    e("v_lshlrev_b32 v8, 4, v8")
    e("v_add3_u32 v2, v2, v8, s41")
    e("s_waitcnt lgkmcnt(0)")
    for q in range(0, 16, 2):
        e("v_pk_add_f32 %s, %s, %s" % (vr(128 + q, 2), vr(128 + q, 2), vr(144 + q, 2)))
        e("v_pk_add_f32 %s, %s, %s" % (vr(160 + q, 2), vr(160 + q, 2), vr(176 + q, 2)))
    for q in range(0, 16, 2):
        e("v_pk_fma_f32 %s, %s, %s, %s" % (vr(128 + q, 2), vr(192 + q, 2), vr(40, 2), vr(128 + q, 2)))
    for q in range(0, 16, 2):
        e("v_pk_add_f32 %s, %s, %s" % (vr(128 + q, 2), vr(128 + q, 2), vr(160 + q, 2)))
    for q in range(8):
        e("v_cvt_pk_bf16_f32 v%d, v%d, v%d" % (96 + q, 128 + 2 * q, 128 + 2 * q + 1))
    e("s_nop 1")
    for ih in range(2):
        e("v_permlane32_swap_b32 v%d, v%d" % (96 + 4 * ih, 98 + 4 * ih))
        e("v_permlane32_swap_b32 v%d, v%d" % (97 + 4 * ih, 99 + 4 * ih))
    for ih in range(2):
        e("buffer_store_dwordx4 %s, v2, s[%d:%d], 0 offen offset:%d%s" % (vr(96 + 4 * ih, 4), S_OUT, S_OUT + 3, ih * 32, OSC[0]))
    stamp(e, cfg, 8)

def kernel_fused2(e, cfg):
    name = "gated_mix__spectral_fnet__glu_gated_glu__prompt_kernel"
    header(e, name)
    if cfg.diag:
        e("s_memrealtime s[%d:%d]" % (S_STAMP + 6, S_STAMP + 7))
    e("s_cmp_ge_u32 s2, 256")
    e("s_cbranch_scc1 KF_END")
    kernarg_loads(e)
    entry_common(e)
    e("s_and_b32 s%d, s%d, 3" % (S_WF, S_WAVE))
    e("s_and_b32 s%d, s%d, 3" % (S_LW, S_WAVE))
    e("s_and_b32 s41, s2, 7")
    e("s_lshr_b32 s42, s2, 3")
    e("s_cmp_ge_u32 s42, 28")
    e("s_cbranch_scc1 P1_DFT")
    e("s_mul_i32 s43, s42, 37")
    e("s_lshr_b32 s43, s43, 8")
    e("s_mul_i32 s76, s43, 7")
    e("s_sub_u32 s76, s42, s76")
    e("s_lshr_b32 s77, s41, 1")
    e("s_lshl_b32 s77, s77, 2")
    e("s_add_u32 s%d, s77, s43" % S_R)
    e("s_and_b32 s77, s41, 1")
    e("s_mul_i32 s77, s77, 7")
    e("s_add_u32 s%d, s77, s76" % S_FB)
    e("s_cmp_lt_u32 s%d, 4" % S_WAVE)
    e("s_cbranch_scc1 P1_H_CONSUMER")
    e.vm = []; e.lg = []
    STG[0] = True
    h2_loader(e, cfg)
    q_loader_A(e, cfg)
    STG[0] = False
    stamp_store(e, cfg, 0)
    e("s_endpgm")
    e.label("P1_H_CONSUMER")
    e.vm = []; e.lg = []
    h2_consumer(e, cfg)
    q_consumer_B(e, cfg)
    stamp_store(e, cfg, 0)
    e("s_endpgm")
    e.label("P1_DFT")
    e("s_sub_u32 s42, s42, 28")
    e("s_and_b32 s%d, s41, 1" % S_EH)
    e("s_lshr_b32 s77, s41, 1")
    e("s_lshl_b32 s77, s77, 2")
    e("s_add_u32 s%d, s77, s42" % S_QG)
    e("s_cmp_ge_u32 s%d, 4" % S_WAVE)
    e("s_cbranch_scc1 P1_D_LOADER")
    e.vm = []; e.lg = []
    p1_consumer(e, cfg, False)
    d_epilogue(e, cfg)
    stamp(e, cfg, 3)
    e.vm_wait_all()
    e("s_barrier")
    lab = e.newlabel("DNOTW0")
    e("s_cmp_lg_u32 s%d, 0" % S_WAVE)
    e("s_cbranch_scc1 %s" % lab)
    flag_store(e)
    e("s_waitcnt vmcnt(0)")
    e.label(lab)
    stamp_store(e, cfg, 0)
    e("s_endpgm")
    e.label("P1_D_LOADER")
    e.vm = []; e.lg = []
    p1_loader(e, cfg, False)
    stamp(e, cfg, 3)
    e("s_waitcnt vmcnt(0)")
    e("s_barrier")
    stamp_store(e, cfg, 0)
    e("s_endpgm")
    e.label("KF_END")
    e("s_endpgm")
    e.label("KF_CODE_END")

def descriptor(name):
    return """.section .rodata,"a"
.p2align 6
.amdhsa_kernel %s
  .amdhsa_next_free_vgpr 256
  .amdhsa_next_free_sgpr 102
  .amdhsa_accum_offset 256
  .amdhsa_group_segment_fixed_size 0
  .amdhsa_kernarg_size 104
  .amdhsa_user_sgpr_count 2
  .amdhsa_user_sgpr_kernarg_segment_ptr 1
  .amdhsa_system_sgpr_workgroup_id_x 1
.end_amdhsa_kernel
""" % name

def main():
    cfg = Cfg()
    cfg.pro_extra = 8; cfg.stage_budget = 8; cfg.p2_la = 3; cfg.p2_dpoll = 4; cfg.stage_budget2 = 6; cfg.flagA_bar = 22; cfg.epi_rate = 0; cfg.epi_start = 1; cfg.epoll = 26; cfg.hpre = 5; cfg.preCA = 0; cfg.nca = 2; cfg.hpreB = 5; cfg.dchk = 11; cfg.gate_j = 5; cfg.gflag_k = 9; cfg.ncx = 0; cfg.gate_g = 14; cfg.gate_rate = 3; cfg.defer_rate = 3; cfg.pfWd_j = 1; cfg.pfW_j = 1
    out = sys.argv[1]
    for a in sys.argv[2:]:
        if a == "nop2rot": P2ROT[0] = 0
        if a == "rmul1": RMUL[0] = 1
        if a == "osc1": OSC[0] = " sc1"
        if a == "ont": OSC[0] = " nt"
        if a == "osc01": OSC[0] = " sc0 sc1"
        if a == "hplain": HSC[0] = ""
        if a == "hnt": HSC[0] = " nt"
        if a == "hsc01": HSC[0] = " sc0 sc1"
        if a == "diag": cfg.diag = True
        elif a == "fused": cfg.fused = True
        elif "=" in a:
            k, v = a.split("="); setattr(cfg, k, int(v))
        else: cfg.x = cfg.x | {a}
    e = Em()
    if cfg.fused:
        name = "gated_mix__spectral_fnet__glu_gated_glu__prompt_kernel"
        hdr = "; generated by gen2.py (fused)\n; @launch grid=(256,1,1) block=(512,1,1) lds=163840\n"
        hdr += '.amdgcn_target "amdgcn-amd-amdhsa--gfx950"\n'
        kernel_fused2(e, cfg)
        open(out, "w").write(hdr + e.text() + descriptor(name))
        return
    hdr = "; generated by gen2.py\n"
    hdr += "; @launch kernel=k1_kernel grid=(256,1,1) block=(512,1,1) lds=163840\n"
    hdr += "; @launch kernel=k2_kernel grid=(256,1,1) block=(512,1,1) lds=163840\n"
    hdr += '.amdgcn_target "amdgcn-amd-amdhsa--gfx950"\n'
    kernel1(e, cfg)
    kernel2(e, cfg)
    txt = hdr + e.text() + descriptor("k1_kernel") + descriptor("k2_kernel")
    open(out, "w").write(txt)
if __name__ == "__main__":
    main()
```

```python
import sys, math, struct

def f2u(f): return struct.unpack("<I", struct.pack("<f", f))[0]

class Em:
    def __init__(self):
        self.lines = []
        self.vm = []
        self.lg = []
        self.nlab = 0
    def __call__(self, s): self.lines.append("    " + s)
    def raw(self, s): self.lines.append(s)
    def label(self, s): self.lines.append(s + ":")
    def newlabel(self, p):
        self.nlab += 1
        return "%s_%d" % (p, self.nlab)
    def vm_issue(self, tag): self.vm.append(tag)
    def vm_wait(self, tags):
        last = -1
        for i, t in enumerate(self.vm):
            if t in tags: last = i
        if last < 0: return
        n = len(self.vm) - 1 - last
        assert n <= 63, n
        self("s_waitcnt vmcnt(%d)" % n)
        self.vm = self.vm[last + 1:]
    def vm_wait_all(self):
        self("s_waitcnt vmcnt(0)"); self.vm = []
    def lg_issue(self, tag): self.lg.append(tag)
    def lg_wait(self, tags):
        last = -1
        for i, t in enumerate(self.lg):
            if t in tags: last = i
        if last < 0: return
        n = len(self.lg) - 1 - last
        assert n <= 15, n
        self("s_waitcnt lgkmcnt(%d)" % n)
        self.lg = self.lg[last + 1:]
    def lg_wait_all(self):
        self("s_waitcnt lgkmcnt(0)"); self.lg = []
    def text(self): return "\n".join(self.lines) + "\n"

def vr(a, n=1): return "v%d" % a if n == 1 else "v[%d:%d]" % (a, a + n - 1)

HBUF = 0
UBUF = 0x700000
GBUF = 0x900000
FLAGS = 0x910000
DIAG = 0xA00000
WS_BYTES = 0x1000000
LOG2E = 1.4426950408889634

S_X = 8; S_WA = 12; S_WB = 16; S_WS = 20; S_GW = 24; S_OUT = 28; S_WD = 32; S_DBG = 36
S_WAVE = 40
S_R = 60; S_FB = 61; S_QG = 62; S_EH = 63
S_WF = 64; S_LW = 65
S_LDSW = 66; S_LDSX = 67
S_OFF = 68
S_T1 = 70; S_C = 71
S_STAMP = 80
S_NONCE = 98; S_FLAG = 99; S_PF = 100
V_LANE = 1

class Cfg:
    fused = False
    diag = False
    x = set()

def kernarg_loads(e):
    e("s_load_dwordx2 s[44:45], s[0:1], 0")
    e("s_load_dwordx4 s[48:51], s[0:1], 24")
    e("s_load_dwordx4 s[52:55], s[0:1], 48")
    e("s_load_dwordx4 s[56:59], s[0:1], 64")
    e("s_load_dwordx2 s[46:47], s[0:1], 80")
    e("s_load_dwordx4 s[72:75], s[0:1], 88")

def srd(e, dst, lo, nbytes):
    e("s_mov_b32 s%d, s%d" % (dst, lo))
    e("s_and_b32 s%d, s%d, 0xffff" % (dst + 1, lo + 1))
    e("s_mov_b32 s%d, 0x%x" % (dst + 2, nbytes))
    e("s_mov_b32 s%d, 0x20000" % (dst + 3))

NSTAMP = 6
STG = [False]
def stamp(e, cfg, k):
    if cfg.diag and not ("stg" in cfg.x and k in (4,5,6,7) and STG[0]):
        assert not e.lg
        e("s_memrealtime s[%d:%d]" % (S_STAMP + 2 * k, S_STAMP + 2 * k + 1))
        if k in (1, 2) and not cfg.fused:
            e("s_memtime s[%d:%d]" % (S_STAMP + 12 + 2 * (k - 1), S_STAMP + 13 + 2 * (k - 1)))
        e("s_waitcnt lgkmcnt(0)")

def stamp_store(e, cfg, slot_base):
    if not cfg.diag: return
    e("s_lshl_b32 s41, s2, 3")
    e("s_add_u32 s41, s41, s%d" % S_WAVE)
    e("s_lshl_b32 s41, s41, 6")
    e("s_add_u32 s41, s41, 0x%x" % (DIAG + slot_base))
    e("v_mov_b32 v1, s41")
    for k in range(9 if cfg.fused else NSTAMP + 2):
        e("v_mov_b32 v2, s%d" % (S_STAMP + 2 * k))
        e("buffer_store_dword v2, v1, s[%d:%d], 0 offen offset:%d" % (S_WS, S_WS + 3, 4 * k))
        e("s_nop 1")
    e("v_mov_b32 v2, s7")
    e("buffer_store_dword v2, v1, s[%d:%d], 0 offen offset:36" % (S_WS, S_WS + 3))
    e("s_waitcnt vmcnt(0)")

def mfma(e, d, a, b, c=None):
    cs = vr(d, 16) if c is None else c
    e("v_mfma_f32_32x32x16_bf16 %s, %s, %s, %s" % (vr(d, 16), vr(a, 4), vr(b, 4), cs))

NODMA = [False]
def dma_group(e, sldsbase, ldsconst, items):
    e("s_add_u32 m0, s%d, 0x%x" % (sldsbase, ldsconst))
    e("s_nop 0")
    for (srdreg, vaddr, soff, ioff, tag) in items:
        e("buffer_load_dwordx4 v%d, s[%d:%d], s%d offen offset:%d lds" % (vaddr, srdreg, srdreg + 3, soff, ioff))
        e.vm_issue(tag)
def fill_table(e, first, n, scnt, mod, emit):
    for c in range(n):
        emit(first + c)
        if c + 1 < n: rot_next(e, scnt, mod)
def rot_next(e, sreg, n):
    e("s_add_u32 s%d, s%d, 1" % (sreg, sreg))
    e("s_cmp_eq_u32 s%d, %d" % (sreg, n))
    e("s_cselect_b32 s%d, 0, s%d" % (sreg, sreg))
def dma(e, srdreg, vaddr, ldsconst, sldswave, soff, tag):
    if NODMA[0]:
        e.vm_issue(tag); e.vm.pop(); return
    e("s_add_u32 m0, s%d, 0x%x" % (sldswave, ldsconst))
    if soff is None:
        e("s_nop 0")
    else:
        e("s_mov_b32 s%d, 0x%x" % (S_OFF, soff))
    e("buffer_load_dwordx4 v%d, s[%d:%d], s%d offen lds" % (vaddr, srdreg, srdreg + 3, S_OFF))
    e.vm_issue(tag)

XSLOT = 16384; NX = 4
WBASE = 65536; NW = 6; WSLOT = 16384
ACC = 64
def accA(i): return ACC + 16 * i
def accB(i): return ACC + 64 + 16 * i
FR = 192
V_XA = 10
V_WA = 14
CONST_LDS = 0

def p1_consumer_addr(e, is_h):
    L = V_LANE; T = 26
    e("v_and_b32 v%d, 31, v%d" % (T, L))
    e("v_lshrrev_b32 v%d, 5, v%d" % (T + 1, L))
    e("v_lshrrev_b32 v%d, 1, v%d" % (T + 2, T))
    e("v_and_b32 v%d, 7, v%d" % (T + 2, T + 2))
    e("v_lshlrev_b32 v%d, 7, v%d" % (T + 3, T))
    if not is_h:
        e("s_lshl_b32 s41, s%d, 5" % S_WF)
        e("v_add_u32 v%d, s41, v%d" % (T + 5, T))
        e("v_lshlrev_b32 v%d, 7, v%d" % (T + 5, T + 5))
        e("v_add_u32 v%d, 0x%x, v%d" % (T + 5, WBASE, T + 5))
    for k in range(4):
        e("v_add_u32 v%d, %d, v%d" % (T + 4, 2 * k, T + 1))
        e("v_xor_b32 v%d, v%d, v%d" % (T + 4, T + 4, T + 2))
        e("v_lshlrev_b32 v%d, 4, v%d" % (T + 4, T + 4))
        e("v_add_u32 v%d, v%d, v%d" % (V_XA + k, T + 3, T + 4))
        if not is_h:
            e("v_add_u32 v%d, v%d, v%d" % (V_WA + k, T + 5, T + 4))
            e("v_add_u32 v%d, 0x10000, v%d" % (V_WA + 4 + k, V_WA + k))
    if is_h:
        e("v_and_b32 v%d, 15, v%d" % (T + 4, L))
        e("v_lshrrev_b32 v%d, 2, v%d" % (T + 5, T + 4))
        e("v_lshlrev_b32 v%d, 3, v%d" % (T + 6, T + 1))
        e("v_add_u32 v%d, v%d, v%d" % (T + 6, T + 6, T + 5))
        e("v_lshlrev_b32 v%d, 8, v%d" % (T + 6, T + 6))
        e("v_xor_b32 v%d, s%d, v%d" % (T + 7, S_WF, T + 5))
        e("v_lshlrev_b32 v%d, 6, v%d" % (T + 7, T + 7))
        e("v_add_u32 v%d, v%d, v%d" % (T + 6, T + 6, T + 7))
        e("v_bfe_u32 v%d, v%d, 4, 1" % (T + 7, L))
        e("v_lshlrev_b32 v%d, 5, v%d" % (T + 7, T + 7))
        e("v_add_u32 v%d, v%d, v%d" % (T + 6, T + 6, T + 7))
        e("v_and_b32 v%d, 3, v%d" % (T + 7, T + 4))
        e("v_lshlrev_b32 v%d, 3, v%d" % (T + 7, T + 7))
        e("v_add_u32 v%d, v%d, v%d" % (T + 6, T + 6, T + 7))
        e("v_add_u32 v%d, 0x%x, v%d" % (V_WA, WBASE, T + 6))
        e("v_add_u32 v%d, 0x%x, v%d" % (V_WA + 1, WBASE + 0x10000, T + 6))

def p1_reads(kap, is_h):
    base = FR + 24 * (kap & 1)
    c = kap >> 2; kk4 = kap & 3
    def xr(nb): return (("X", kap, nb), "ds_read_b128 %s, v%d offset:%d" % (vr(base + 4 * nb, 4), V_XA + kk4, (c % NX) * XSLOT + nb * 4096))
    if is_h:
        j = kap >> 1; kk = kap & 1
        slot = (j % NW) * WSLOT
        va = V_WA + (1 if slot >= 0x10000 else 0); so = slot & 0xffff
        def wr(m, ip): return (("W", kap, m), "ds_read_b64_tr_b16 %s, v%d offset:%d" % (vr(base + 16 + 4 * m + 2 * ip, 2), va, so + m * 8192 + (16 * kk + 4 * ip) * 256))
        return [wr(0, 0), wr(0, 1), xr(0), wr(1, 0), wr(1, 1), xr(1), xr(2), xr(3)]
    else:
        slot = (c % 3) * 32768
        va = V_WA + kk4 + (4 if slot >= 0x10000 else 0); so = slot & 0xffff
        def wr(m): return (("W", kap, m), "ds_read_b128 %s, v%d offset:%d" % (vr(base + 16 + 4 * m, 4), va, so + m * 16384))
        return [wr(0), xr(0), wr(1), xr(1), xr(2), xr(3)]

def p1_consumer(e, cfg, is_h):
    p1_consumer_addr(e, is_h)
    e("s_waitcnt lgkmcnt(0)")
    srd(e, S_WS, 74, WS_BYTES)
    if cfg.fused:
        flag_addr(e, is_h)
        nonce_issue(e)
    if not is_h:
        srd(e, S_X, 44, 1835008)
        srd(e, S_GW, 58, 896)
        e("s_mov_b32 s%d, s%d" % (S_LW, S_WAVE))
        gate4_issue(e)
        for p in range(4): gate4_pass(e, p)
    stamp(e, cfg, 0)
    if (not is_h) and "pfcode" in cfg.x:
        lab = e.newlabel("PC")
        e("s_getpc_b64 s[42:43]")
        e.label(lab)
        e("s_sub_u32 s42, s42, (%s - gated_mix__spectral_fnet__glu_gated_glu__prompt_kernel)" % lab)
        e("s_subb_u32 s43, s43, 0")
        e("s_lshr_b32 s41, s2, 3")
        e("s_sub_u32 s41, s41, 28")
        e("s_lshl_b32 s41, s41, 2")
        e("s_add_u32 s41, s41, s%d" % S_WAVE)
        e("s_mul_i32 s41, s41, 16")
        e("v_and_b32 v9, 15, v%d" % V_LANE)
        e("v_add_u32 v8, s41, v9")
        e("v_lshlrev_b32 v8, 7, v8")
        e("v_min_u32 v8, (KF_CODE_END - gated_mix__spectral_fnet__glu_gated_glu__prompt_kernel - 4), v8")
        e("v_mov_b32 v9, s43")
        e("v_add_co_u32 v8, vcc, s42, v8")
        e("s_nop 1")
        e("v_addc_co_u32 v9, vcc, 0, v9, vcc")
        e("global_load_dword v3, v[8:9], off")
    e("s_barrier")
    stamp(e, cfg, 1)
    for tag, txt in p1_reads(0, is_h):
        e(txt); e.lg_issue(tag)
    for kap in range(28):
        base = FR + 24 * (kap & 1)
        nxt = p1_reads(kap + 1, is_h) if kap + 1 < 28 else []
        for n in range(8):
            nb = n >> 1; m = n & 1
            e.lg_wait([("W", kap, m), ("X", kap, nb)])
            d = accA(nb) if m == 0 else accB(nb)
            W = base + 16 + 4 * m; X = base + 4 * nb
            c = "0" if kap == 0 else None
            if "no32" in cfg.x:
                for hh in range(2):
                    e("v_mfma_f32_16x16x32_bf16 %s, %s, %s, %s" % (vr(d + 8 * hh, 4), vr(W, 4), vr(X, 4), vr(d + 8 * hh, 4)))
            elif "nomfma" not in cfg.x:
                if is_h: mfma(e, d, W, X, c)
                else: mfma(e, d, X, W, c)
            if nxt and n < len(nxt):
                tag, txt = nxt[n]
                if "nolds" in cfg.x: e.lg_issue(tag); e.lg.pop()
                else:
                    e(txt); e.lg_issue(tag)
        if (not is_h) and kap == cfg.gflag_k - 4:
            nonce_load(e)
        if (not is_h) and kap == cfg.gflag_k:
            e("s_waitcnt vmcnt(0)"); e.vm = []
        if (kap & 1) and kap < 27:
            e("s_barrier")
        if (not is_h) and kap == cfg.gflag_k:
            lab = e.newlabel("GF")
            e("s_cmp_lg_u32 s%d, 0" % S_WAVE)
            e("s_cbranch_scc1 %s" % lab)
            nonce_finish_any(e, keepvm=True)
            e("s_add_u32 s%d, s%d, 128" % (S_FLAG, S_FLAG))
            flag_store(e)
            e("s_sub_u32 s%d, s%d, 128" % (S_FLAG, S_FLAG))
            e.label(lab)
        if cfg.fused and kap == 21:
            nonce_load(e)
    assert not e.lg
    if cfg.fused and is_h:
        e("s_barrier")
    if cfg.fused:
        nonce_finish(e)
    stamp(e, cfg, 2)

def h_epilogue(e, cfg):
    sc = " sc1" if cfg.fused else ""
    e("s_lshl_b32 s41, s%d, 1" % S_R)
    e("s_mul_i32 s41, s41, 112")
    e("s_lshl_b32 s42, s%d, 2" % S_FB)
    e("s_add_u32 s42, s42, s%d" % S_WF)
    e("s_lshl_b32 s42, s42, 1")
    e("s_add_u32 s41, s41, s42")
    e("s_lshl_b32 s41, s41, 11")
    e("v_lshlrev_b32 v26, 4, v%d" % V_LANE)
    e("v_add_u32 v26, s41, v26")
    e("v_add_u32 v27, 0x%x, v26" % (112 * 2048))
    e("s_mov_b32 s42, 0x%08x" % f2u(-LOG2E))
    e("s_mov_b32 s43, s42")
    e("s_mov_b32 s44, 1.0")
    e("s_mov_b32 s45, 1.0")
    e("s_nop 7")
    grp = 0
    for nb in range(4):
        for hf in range(2):
            outb = FR + 4 * (grp % 8); grp += 1
            A = accA(nb) + 8 * hf; B = accB(nb) + 8 * hf
            for q in range(0, 8, 2):
                e("v_pk_mul_f32 %s, %s, s[42:43]" % (vr(A + q, 2), vr(A + q, 2)))
            for q in range(8):
                e("v_exp_f32 v%d, v%d" % (A + q, A + q))
            for q in range(0, 8, 2):
                e("v_pk_add_f32 %s, %s, s[44:45]" % (vr(A + q, 2), vr(A + q, 2)))
            for q in range(8):
                e("v_rcp_f32 v%d, v%d" % (A + q, A + q))
            for q in range(0, 8, 2):
                e("v_pk_mul_f32 %s, %s, %s" % (vr(A + q, 2), vr(A + q, 2), vr(B + q, 2)))
            for q2 in range(4):
                e("v_cvt_pk_bf16_f32 v%d, v%d, v%d" % (outb + q2, A + 2 * q2, A + 2 * q2 + 1))
            e("buffer_store_dwordx4 %s, v%d, s[%d:%d], 0 offen offset:%d%s" % (vr(outb, 4), 26 + (nb >> 1), S_WS, S_WS + 3, hf * 2048 + (nb & 1) * 1024, sc))
            e.vm_issue("hst")

def d_epilogue(e, cfg):
    sc = " sc1" if cfg.fused else ""
    L = V_LANE
    ZB = [192, 208, 224, 240]
    e("s_nop 7"); e("s_nop 3")
    for sb in range(4):
        for hf in range(2):
            for pr in range(4):
                q = 8 * hf + 2 * pr
                e("v_cvt_pk_bf16_f32 v%d, v%d, v%d" % (ZB[sb] + 4 * hf + pr, accA(sb) + q, accA(sb) + q + 1))
                e("v_cvt_pk_bf16_f32 v%d, v%d, v%d" % (ZB[sb] + 8 + 4 * hf + pr, accB(sb) + q, accB(sb) + q + 1))
    e("s_barrier")
    e("v_lshlrev_b32 v2, 4, v%d" % L)
    def cread(sb):
        b = 10 + 24 * (sb & 1)
        for k in range(6):
            e("ds_read_b128 %s, v2 offset:%d" % (vr(b + 4 * k, 4), CONST_LDS + (sb * 6 + k) * 1024))
            e.lg_issue(("c", sb, k))
    cread(0); cread(1)
    for sb in range(4):
        b = 10 + 24 * (sb & 1)
        C0, C1, S0, S1, N0, N1 = [b + 4 * k for k in range(6)]
        ZR0, ZR1, ZI0, ZI1 = ZB[sb], ZB[sb] + 4, ZB[sb] + 8, ZB[sb] + 12
        e.lg_wait([("c", sb, k) for k in range(6)])
        mfma(e, accA(sb), C0, ZR0, "0")
        mfma(e, accB(sb), C0, ZI0, "0")
        mfma(e, accA(sb), C1, ZR1)
        mfma(e, accB(sb), C1, ZI1)
        mfma(e, accA(sb), S0, ZI0)
        mfma(e, accB(sb), N0, ZR0)
        mfma(e, accA(sb), S1, ZI1)
        mfma(e, accB(sb), N1, ZR1)
        if sb + 2 < 4:
            cread(sb + 2)
    e("s_lshl_b32 s41, s%d, 8" % S_QG)
    e("s_lshl_b32 s42, s%d, 7" % S_EH)
    e("s_add_u32 s41, s41, s42")
    e("s_lshl_b32 s42, s%d, 5" % S_WF)
    e("s_add_u32 s41, s41, s42")
    e("s_lshl_b32 s41, s41, 4")
    e("s_add_u32 s41, s41, 0x%x" % UBUF)
    e("v_and_b32 v3, 31, v%d" % L)
    e("v_lshlrev_b32 v3, 4, v3")
    e("v_lshrrev_b32 v4, 5, v%d" % L)
    e("v_lshlrev_b32 v4, 18, v4")
    e("v_add3_u32 v3, v3, v4, s41")
    e("s_nop 7"); e("s_nop 3")
    for q in range(16):
        i, jj = q >> 2, q & 3
        pk = 192 + 4 * (q % 8)
        for sb in range(4):
            e("v_cvt_pk_bf16_f32 v%d, v%d, v%d" % (pk + sb, accA(sb) + q, accB(sb) + q))
        e("s_mov_b32 s%d, 0x%x" % (S_OFF, (8 * i + jj) * 65536))
        e("buffer_store_dwordx4 %s, v3, s[%d:%d], s%d offen%s" % (vr(pk, 4), S_WS, S_WS + 3, S_OFF, sc))
        e.vm_issue("ust")

def p1_loader(e, cfg, is_h):
    L = V_LANE; T = 26
    VX = 10
    VW = 14
    e("v_lshrrev_b32 v%d, 3, v%d" % (T, L))
    e("s_lshl_b32 s41, s%d, 5" % S_LW)
    e("v_add_u32 v%d, s41, v%d" % (T, T))
    e("v_and_b32 v%d, 7, v%d" % (T + 1, L))
    e("v_lshrrev_b32 v%d, 4, v%d" % (T + 2, L))
    e("s_movk_i32 s42, 896")
    for i in range(4):
        if i: e("v_add_u32 v%d, 8, v%d" % (T, T))
        e("v_add_u32 v%d, %d, v%d" % (T + 3, (4 * i) & 7, T + 2))
        e("v_and_b32 v%d, 7, v%d" % (T + 3, T + 3))
        e("v_xor_b32 v%d, v%d, v%d" % (T + 3, T + 3, T + 1))
        e("v_lshlrev_b32 v%d, 4, v%d" % (T + 3, T + 3))
        if is_h:
            e("v_lshrrev_b32 v%d, 6, v%d" % (T + 4, T))
            e("v_and_b32 v%d, 63, v%d" % (T + 5, T))
            e("v_lshlrev_b32 v%d, 5, v%d" % (T + 5, T + 5))
            e("s_lshl_b32 s41, s%d, 1" % S_R)
            e("v_add3_u32 v%d, v%d, v%d, s41" % (T + 4, T + 4, T + 5))
        else:
            e("v_and_b32 v%d, 31, v%d" % (T + 4, T))
            e("v_lshlrev_b32 v%d, 6, v%d" % (T + 4, T + 4))
            e("v_lshrrev_b32 v%d, 5, v%d" % (T + 5, T))
            e("s_lshl_b32 s41, s%d, 2" % S_QG)
            e("v_add3_u32 v%d, v%d, v%d, s41" % (T + 4, T + 4, T + 5))
        e("v_mul_lo_u32 v%d, v%d, s42" % (T + 4, T + 4))
        e("v_add_u32 v%d, v%d, v%d" % (VX + i, T + 4, T + 3))
        if not is_h:
            e("s_lshl_b32 s41, s%d, 7" % S_EH)
            e("v_add_u32 v%d, s41, v%d" % (T + 4, T))
            e("v_mul_lo_u32 v%d, v%d, s42" % (T + 4, T + 4))
            e("v_add_u32 v%d, v%d, v%d" % (VW + i, T + 4, T + 3))
    if is_h:
        e("s_lshl_b32 s41, s%d, 3" % S_LW)
        e("v_add_u32 v%d, s41, v%d" % (T + 3, T + 2))
        e("s_movk_i32 s42, 3584")
        e("v_mul_lo_u32 v%d, v%d, s42" % (T + 3, T + 3))
        e("v_bfe_u32 v%d, v%d, 2, 2" % (T + 4, L))
        e("v_xor_b32 v%d, v%d, v%d" % (T + 4, T + 4, T + 2))
        e("v_lshlrev_b32 v%d, 6, v%d" % (T + 4, T + 4))
        e("v_and_b32 v%d, 3, v%d" % (T + 5, L))
        e("v_lshlrev_b32 v%d, 4, v%d" % (T + 5, T + 5))
        e("v_add3_u32 v%d, v%d, v%d, v%d" % (T + 3, T + 3, T + 4, T + 5))
        e("s_lshl_b32 s41, s%d, 8" % S_FB)
        e("v_add_u32 v%d, s41, v%d" % (VW, T + 3))
        e("v_add_u32 v%d, %d, v%d" % (VW + 1, 4 * 3584, VW))
        e("s_lshl_b32 s%d, s%d, 11" % (S_LDSW, S_LW))
    else:
        e("s_lshl_b32 s%d, s%d, 12" % (S_LDSW, S_LW))
    e("s_lshl_b32 s%d, s%d, 12" % (S_LDSX, S_LW))
    e("s_waitcnt lgkmcnt(0)")
    srd(e, S_X, 44, 1835008)
    if is_h:
        srd(e, S_WA, 52, 1605632); srd(e, S_WB, 54, 1605632)
    else:
        srd(e, S_WA, 48, 401408); srd(e, S_WB, 50, 401408)
    srd(e, S_WS, 74, WS_BYTES)
    srd(e, S_GW, 58, 896)
    srd(e, S_WD, 56, 1605632)
    stamp(e, cfg, 0)
    DROT = (not is_h) and ("nodrot" not in cfg.x)
    if DROT:
        e("s_mul_i32 s7, s%d, 3" % S_EH)
        e("s_mul_i32 s6, s%d, %d" % (S_QG, RMUL[0]))
        e("s_add_u32 s6, s6, s7")
        e("s_mul_i32 s7, s6, 37")
        e("s_lshr_b32 s7, s7, 8")
        e("s_mul_i32 s7, s7, 7")
        e("s_sub_u32 s6, s6, s7")
        e("s_mov_b32 s7, s6")
    def dx(c):
        if DROT:
            e("s_lshl_b32 s%d, s6, 7" % S_OFF)
            for i in range(4): dma(e, S_X, VX + i, (c % NX) * XSLOT + i * 1024, S_LDSX, None, ("x", c))
            rot_next(e, 6, 7)
        else:
            for i in range(4): dma(e, S_X, VX + i, (c % NX) * XSLOT + i * 1024, S_LDSX, c * 128, ("x", c))
    def dw(j):
        if is_h:
            for m in range(2):
                for i in range(2):
                    dma(e, S_WA if m == 0 else S_WB, VW + i, WBASE + (j % NW) * WSLOT + m * 8192 + i * 1024, S_LDSW, j * 32 * 3584, ("w", j))
        else:
            c = j
            if DROT: e("s_lshl_b32 s%d, s7, 7" % S_OFF)
            for m in range(2):
                for i in range(4):
                    dma(e, S_WA if m == 0 else S_WB, VW + i, WBASE + (c % 3) * 32768 + m * 16384 + i * 1024, S_LDSW, None if DROT else c * 128, ("w", c))
            if DROT: rot_next(e, 7, 7)
    q = []
    if is_h:
        for j in range(14):
            if j % 2 == 0:
                c = j // 2
                q.append(("x", c, -1 if c < NX else 2 * (c - NX + 1)))
            q.append(("w", j, -1 if j < NW else j - NW + 1))
    else:
        for c in range(7):
            q.append(("x", c, -1 if c < NX else 2 * (c - NX + 1)))
            q.append(("w", c, -1 if c < 3 else 2 * (c - 3 + 1)))
    def cost(it): return 4 if (it[0] == "x" or is_h) else 8
    def issue(it):
        (dx if it[0] == "x" else dw)(it[1])
    def need(j):
        t = []
        for jj in (j, j + 1):
            if jj <= 13:
                t.append(("x", jj >> 1)); t.append(("w", jj if is_h else jj >> 1))
        return t
    issued = set()
    def ensure(tags):
        while q and any(t not in issued for t in tags):
            it = q.pop(0); assert it[2] <= curbar[0], (it, curbar)
            issue(it); issued.add((it[0], it[1]))
    curbar = [-1]
    ensure(need(0))
    budget0 = cfg.pro_extra
    while q and budget0 > 0 and q[0][2] <= -1:
        it = q.pop(0); issue(it); issued.add((it[0], it[1])); budget0 -= cost(it)
    e.vm_wait(need(0))
    e("s_barrier")
    stamp(e, cfg, 1)
    if "nodma" in cfg.x: NODMA[0] = True
    for j in range(13):
        curbar[0] = j
        ensure(need(j + 1))
        budget = cfg.stage_budget
        while q and budget > 0 and q[0][2] <= j:
            it = q.pop(0); issue(it); issued.add((it[0], it[1])); budget -= cost(it)
        if j == cfg.pfWd_j and not is_h and "pf1" in cfg.x:
            e("s_lshl_b32 s41, s%d, 1" % S_QG)
            e("s_add_u32 s41, s41, s%d" % S_EH)
            e("s_lshl_b32 s41, s41, 2")
            e("s_add_u32 s41, s41, s%d" % S_LW)
            e("s_mul_i32 s41, s41, 98")
            e("v_add_u32 v100, s41, v%d" % V_LANE)
            e("v_lshlrev_b32 v100, 7, v100")
            e("buffer_load_dword v101, v100, s[%d:%d], 0 offen" % (S_WD, S_WD + 3)); e.vm_issue(("pf", 0))
            e("v_add_u32 v100, %d, v100" % (64 * 128))
            e("v_cmp_gt_u32 vcc, 34, v%d" % V_LANE)
            e("v_mov_b32 v102, 0x7fffffff")
            e("s_nop 0")
            e("v_cndmask_b32 v100, v102, v100, vcc")
            e("buffer_load_dword v103, v100, s[%d:%d], 0 offen" % (S_WD, S_WD + 3)); e.vm_issue(("pf", 1))
        if j == cfg.pfWd_j and not is_h and "pfWd" in cfg.x:
            e("s_lshr_b32 s41, s2, 3")
            e("s_sub_u32 s41, s41, 28")
            e("s_lshl_b32 s41, s41, 2")
            e("s_add_u32 s41, s41, s%d" % S_LW)
            e("s_mul_i32 s41, s41, 784")
            e("v_add_u32 v100, s41, v%d" % V_LANE)
            e("v_lshlrev_b32 v100, 7, v100")
            for t in range(13):
                e("s_mov_b32 s%d, %d" % (S_OFF, t * 8192))
                e("buffer_load_dword v%d, v100, s[%d:%d], s%d offen" % (101 + t, S_WD, S_WD + 3, S_OFF))
                e.vm_issue(("pf", t))
        if j == cfg.pfW_j and not is_h and "pfW" in cfg.x:
            e("s_lshr_b32 s41, s2, 3")
            e("s_sub_u32 s41, s41, 28")
            e("s_lshl_b32 s41, s41, 2")
            e("s_add_u32 s41, s41, s%d" % S_LW)
            e("s_mul_i32 s41, s41, 196")
            e("v_add_u32 v100, s41, v%d" % V_LANE)
            e("s_mov_b32 s42, 0x24924925")
            e("s_and_b32 s43, s2, 1")
            e("s_mul_i32 s43, s43, 896")
            e("s_add_u32 s43, s43, 1792")
            for t in range(4):
                e("v_add_u32 v101, %d, v100" % (64 * t))
                e("v_mul_hi_u32 v102, v101, s42")
                e("v_mul_u32_u24 v103, 7, v102")
                e("v_sub_u32 v103, v101, v103")
                e("v_mul_u32_u24 v102, 3584, v102")
                e("v_lshlrev_b32 v103, 7, v103")
                e("v_add3_u32 v%d, v102, v103, s43" % (104 + t))
            srd(e, S_GW, 52, 1605632)
            for t in range(4):
                e("buffer_load_dword v%d, v%d, s[%d:%d], 0 offen" % (110 + t, 104 + t, S_GW, S_GW + 3)); e.vm_issue(("pf", t))
            srd(e, S_GW, 54, 1605632)
            e("s_nop 0")
            for t in range(4):
                e("buffer_load_dword v%d, v%d, s[%d:%d], 0 offen" % (114 + t, 104 + t, S_GW, S_GW + 3)); e.vm_issue(("pf", t))
        if j == 9 and not is_h: dft_consts(e, cfg)
        if j == 7 and is_h:
            gate_issue(e, cfg, True)
            lab = e.newlabel("GX")
            e("s_cmp_ge_u32 s%d, 2" % S_FB)
            e("s_cbranch_scc1 %s" % lab)
            sv = list(e.vm)
            gate_issue(e, cfg, True, True)
            e.vm = sv
            e.label(lab)
        if j == 10 and is_h:
            e("s_waitcnt vmcnt(0)"); e.vm = []
            gate_finish(e, cfg)
            lab = e.newlabel("GY")
            e("s_cmp_ge_u32 s%d, 2" % S_FB)
            e("s_cbranch_scc1 %s" % lab)
            gate_finish(e, cfg, True)
            e.label(lab)
        if j == 11 and cfg.fused:
            e("s_waitcnt vmcnt(0)"); e.vm = []
        e.vm_wait(need(j + 1))
        e("s_barrier")
    assert not q
    NODMA[0] = False
    stamp(e, cfg, 2)
    if not is_h:
        e("v_lshlrev_b32 v2, 4, v%d" % L)
        e("s_mul_i32 s41, s%d, 6144" % S_LW)
        e("v_add_u32 v2, s41, v2")
        for k in range(6):
            e("ds_write_b128 v2, %s offset:%d" % (vr(64 + 4 * k, 4), CONST_LDS + k * 1024))
        e("s_waitcnt lgkmcnt(0)")
        e("s_barrier")

def gate_issue(e, cfg, is_h, extra=False):
    B = 40 if extra else 48
    e("s_lshl_b32 s41, s%d, 3" % S_FB)
    if extra: e("s_add_u32 s41, s41, 112")
    e("s_lshl_b32 s42, s%d, 1" % S_LW)
    e("s_add_u32 s41, s41, s42")
    e("s_lshl_b32 s78, s%d, 7" % S_R)
    e("s_add_u32 s%d, s78, s41" % (63 if extra else 62))
    e("v_lshlrev_b32 v38, 4, v%d" % V_LANE)
    e("v_cmp_gt_u32 vcc, 56, v%d" % V_LANE)
    e("v_mov_b32 v37, 0x7fffffff")
    for u in range(2):
        e("s_add_u32 s78, s41, %d" % u)
        e("s_lshr_b32 s43, s78, 6")
        e("s_lshl_b32 s79, s%d, 1" % S_R)
        e("s_add_u32 s43, s43, s79")
        e("s_and_b32 s78, s78, 63")
        e("s_lshl_b32 s78, s78, 5")
        e("s_add_u32 s43, s43, s78")
        e("s_mul_i32 s43, s43, 896")
        if extra:
            e("s_cmp_ge_u32 s%d, 2" % S_FB)
            e("s_cselect_b32 s43, 0x40000000, s43")
        e("v_add_u32 v39, s43, v38")
        e("v_cndmask_b32 v39, v37, v39, vcc")
        e("buffer_load_dwordx4 %s, v39, s[%d:%d], 0 offen" % (vr(B + 4 * u, 4), S_X, S_X + 3))
        e.vm_issue("gate")
    if not extra:
        e("buffer_load_dwordx4 v[56:59], v38, s[%d:%d], 0 offen" % (S_GW, S_GW + 3))
        e.vm_issue("gate")

def gate_finish(e, cfg, extra=False):
    B = 40 if extra else 48
    e.vm_wait(["gate"])
    for u in range(2):
        e("v_mov_b32 v%d, 0" % (60 + u))
    for i in range(4):
        for u in range(2):
            e("v_dot2_f32_bf16 v%d, v%d, v%d, v%d" % (60 + u, B + 4 * u + i, 56 + i, 60 + u))
    e("s_nop 2")
    for sh in ("row_shr:1", "row_shr:2", "row_shr:4", "row_shr:8"):
        for u in range(2):
            e("v_add_f32_dpp v%d, v%d, v%d %s row_mask:0xf bank_mask:0xf bound_ctrl:0" % (60 + u, 60 + u, 60 + u, sh))
        e("s_nop 0")
    for u in range(2):
        e("v_add_f32_dpp v%d, v%d, v%d row_bcast:15 row_mask:0xa bank_mask:0xf" % (60 + u, 60 + u, 60 + u))
    e("s_nop 0")
    for u in range(2):
        e("v_add_f32_dpp v%d, v%d, v%d row_bcast:31 row_mask:0xc bank_mask:0xf" % (60 + u, 60 + u, 60 + u))
    e("s_nop 0")
    e("v_readlane_b32 s41, v60, 63")
    e("v_readlane_b32 s42, v61, 63")
    e("s_nop 1")
    e("v_mov_b32 v60, s41")
    e("v_mov_b32 v61, s42")
    e("v_cmp_eq_u32 vcc, 1, v%d" % V_LANE)
    e("s_nop 1")
    e("v_cndmask_b32 v60, v60, v61, vcc")
    e("v_mul_f32 v60, 0x%08x, v60" % f2u(-LOG2E))
    e("v_exp_f32 v60, v60")
    e("s_nop 0")
    e("v_add_f32 v60, 1.0, v60")
    e("v_rcp_f32 v60, v60")
    e("s_lshl_b32 s5, s%d, 2" % (63 if extra else 62))
    e("s_add_u32 s5, s5, 0x%x" % GBUF)
    if extra:
        e("s_cmp_ge_u32 s%d, 2" % S_FB)
        e("s_cselect_b32 s5, 0x40000000, s5")
    e("v_lshlrev_b32 v62, 2, v%d" % V_LANE)
    e("v_add_u32 v62, s5, v62")
    e("v_cmp_gt_u32 vcc, 2, v%d" % V_LANE)
    e("v_mov_b32 v37, 0x7fffffff")
    e("s_nop 0")
    e("v_cndmask_b32 v62, v37, v62, vcc")
    e("buffer_store_dword v60, v62, s[%d:%d], 0 offen%s" % (S_WS, S_WS + 3, " sc1" if cfg.fused else ""))
    e.vm_issue("gst")


def gate4_issue(e):
    L = V_LANE
    e("s_lshl_b32 s41, s%d, 1" % S_QG)
    e("s_add_u32 s41, s41, s%d" % S_EH)
    e("s_lshl_b32 s5, s41, 6")
    e("s_lshl_b32 s42, s%d, 4" % S_LW)
    e("s_add_u32 s5, s5, s42")
    e("v_and_b32 v104, 15, v%d" % L)
    e("v_lshrrev_b32 v105, 4, v%d" % L)
    e("v_lshlrev_b32 v106, 4, v104")
    e("v_cmp_gt_u32 vcc, 14, v104")
    e("v_mov_b32 v107, 0x7fffffff")
    e("s_nop 0")
    e("v_cndmask_b32 v106, v107, v106, vcc")
    for q in range(4):
        e("buffer_load_dwordx4 %s, v106, s[%d:%d], 0 offen offset:%d" % (vr(184 + 4 * q, 4), S_GW, S_GW + 3, 224 * q))
        e.vm_issue("gate")
    e("s_lshl_b32 s42, s%d, 9" % S_LW)
    e("s_add_u32 s42, s42, s41")
    e("s_mul_i32 s42, s42, 896")
    e("v_mul_u32_u24 v108, 28672, v105")
    e("v_add_u32 v108, s42, v108")
    e("v_add_u32 v108, v108, v106")
    e("v_cndmask_b32 v108, v107, v108, vcc")
    for p in range(4):
        e("s_mov_b32 s%d, %d" % (S_OFF, p * 4 * 28672))
        for q in range(4):
            e("buffer_load_dwordx4 %s, v108, s[%d:%d], s%d offen offset:%d" % (vr(120 + 16 * p + 4 * q, 4), S_X, S_X + 3, S_OFF, 224 * q))
            e.vm_issue("gate")

def gate4_pass(e, p):
    L = V_LANE
    e.vm_wait(["gate"])
    e("v_mov_b32 v109, 0")
    for q in range(16):
        e("v_dot2_f32_bf16 v109, v%d, v%d, v109" % (120 + 16 * p + q, 184 + q))
    e("s_nop 2")
    for sh in ("row_shr:1", "row_shr:2", "row_shr:4", "row_shr:8"):
        e("v_add_f32_dpp v109, v109, v109 %s row_mask:0xf bank_mask:0xf bound_ctrl:0" % sh)
        e("s_nop 1")
    e("v_mul_f32 v109, 0x%08x, v109" % f2u(-LOG2E))
    e("v_exp_f32 v109, v109")
    e("s_nop 0")
    e("v_add_f32 v109, 1.0, v109")
    e("v_rcp_f32 v109, v109")
    e("v_add_u32 v110, s5, v105")
    e("v_add_u32 v110, %d, v110" % (4 * p))
    e("v_lshlrev_b32 v110, 2, v110")
    e("v_add_u32 v110, 0x%x, v110" % GBUF)
    e("v_cmp_eq_u32 vcc, 15, v104")
    e("s_nop 1")
    e("v_cndmask_b32 v110, v107, v110, vcc")
    e("buffer_store_dword v109, v110, s[%d:%d], 0 offen sc1" % (S_WS, S_WS + 3))
    e.vm_issue("gst")

def dft_consts(e, cfg):
    L = V_LANE
    e("v_and_b32 v26, 31, v%d" % L)
    e("v_lshrrev_b32 v27, 5, v%d" % L)
    e("v_lshlrev_b32 v27, 8, v27")
    e("s_lshl_b32 s41, s%d, 2" % S_QG)
    e("s_add_u32 s41, s41, s%d" % S_LW)
    e("v_add_u32 v27, s41, v27")
    e("s_mov_b32 s42, 0x%08x" % f2u(1.0 / 2048))
    for hf in range(2):
        for pr in range(4):
            for u in range(2):
                idx = 2 * pr + u
                s1c = 16 * hf + 8 * (idx >> 2) + (idx & 3)
                e("v_add_u32 v28, %d, v27" % (64 * s1c))
                e("v_mul_u32_u24 v28, v28, v26")
                e("v_and_b32 v28, 0x7ff, v28")
                e("v_cvt_f32_u32 v28, v28")
                e("v_mul_f32 v28, s42, v28")
                e("v_cos_f32 v%d, v28" % (30 + u))
                e("v_sin_f32 v%d, v28" % (32 + u))
            e("s_nop 0")
            e("v_cvt_pk_bf16_f32 v%d, v30, v31" % (64 + 4 * hf + pr))
            e("v_cvt_pk_bf16_f32 v%d, v32, v33" % (72 + 4 * hf + pr))
            e("v_xor_b32 v%d, 0x80008000, v%d" % (80 + 4 * hf + pr, 72 + 4 * hf + pr))

def entry_common(e):
    e("v_and_b32 v%d, 63, v0" % V_LANE)
    e("v_lshrrev_b32 v2, 6, v0")
    e("s_nop 0")
    e("v_readfirstlane_b32 s%d, v2" % S_WAVE)
    e("s_nop 3")

def phase1(e, cfg, after_h_consumer, after_h_loader, after_d):
    e("s_and_b32 s%d, s%d, 3" % (S_WF, S_WAVE))
    e("s_and_b32 s%d, s%d, 3" % (S_LW, S_WAVE))
    e("s_and_b32 s41, s2, 7")
    e("s_lshr_b32 s42, s2, 3")
    e("s_cmp_ge_u32 s42, 28")
    e("s_cbranch_scc1 P1_DFT")
    e("s_mul_i32 s43, s42, 37")
    e("s_lshr_b32 s43, s43, 8")
    e("s_mul_i32 s76, s43, 7")
    e("s_sub_u32 s76, s42, s76")
    e("s_lshr_b32 s77, s41, 1")
    e("s_lshl_b32 s77, s77, 2")
    e("s_add_u32 s%d, s77, s43" % S_R)
    e("s_and_b32 s77, s41, 1")
    e("s_mul_i32 s77, s77, 7")
    e("s_add_u32 s%d, s77, s76" % S_FB)
    e("s_cmp_lt_u32 s%d, 4" % S_WAVE)
    e("s_cbranch_scc1 P1_H_CONSUMER")
    e.vm = []; e.lg = []
    STG[0] = True
    h2_loader(e, cfg)
    q_loader_A(e, cfg)
    STG[0] = False
    stamp_store(e, cfg, 0)
    e("s_endpgm")
    e.label("P1_H_CONSUMER")
    e.vm = []; e.lg = []
    h2_consumer(e, cfg)
    q_consumer_B(e, cfg)
    stamp_store(e, cfg, 0)
    e("s_endpgm")
    e.label("P1_DFT")
    e("s_sub_u32 s42, s42, 28")
    e("s_and_b32 s%d, s41, 1" % S_EH)
    e("s_lshr_b32 s77, s41, 1")
    e("s_lshl_b32 s77, s77, 2")
    e("s_add_u32 s%d, s77, s42" % S_QG)
    e("s_cmp_ge_u32 s%d, 4" % S_WAVE)
    e("s_cbranch_scc1 P1_D_LOADER")
    e.vm = []; e.lg = []
    p1_consumer(e, cfg, False)
    d_epilogue(e, cfg)
    stamp(e, cfg, 3)
    after_d(True)
    e.label("P1_D_LOADER")
    e.vm = []; e.lg = []
    p1_loader(e, cfg, False)
    stamp(e, cfg, 3)
    after_d(False)

P2_ACC = 64
P2_H = 96
P2_A = 208
P2_U = 224
P2_T = 240
SLICE = 40960
KSL, NB = 60, 61

def p2_setup(e, cfg):
    L = V_LANE
    e("s_and_b32 s%d, s%d, 3" % (KSL, S_WAVE))
    e("s_lshr_b32 s%d, s%d, 2" % (NB, S_WAVE))
    e("v_lshrrev_b32 v2, 3, v%d" % L)
    e("v_bfe_u32 v3, v%d, 4, 1" % L)
    e("v_lshlrev_b32 v3, 2, v3")
    e("v_and_b32 v4, 7, v%d" % L)
    e("v_xor_b32 v3, v3, v4")
    e("v_lshlrev_b32 v3, 4, v3")
    e("s_mul_i32 s41, s%d, 448" % KSL)
    e("s_lshl_b32 s42, s%d, 3" % NB)
    e("s_add_u32 s41, s41, s42")
    e("v_add_u32 v2, s41, v2")
    e("s_movk_i32 s42, 896")
    e("v_mul_lo_u32 v2, v2, s42")
    e("s_lshl_b32 s41, s%d, 7" % S_C)
    e("v_add3_u32 v10, v2, v3, s41")
    e("s_mul_i32 s62, s%d, %d" % (KSL, SLICE))
    e("s_lshl_b32 s41, s%d, 10" % NB)
    e("s_add_u32 s62, s62, s41")
    e("v_and_b32 v2, 15, v%d" % L)
    e("v_lshrrev_b32 v3, 2, v2")
    e("v_lshrrev_b32 v4, 5, v%d" % L)
    e("v_lshlrev_b32 v5, 2, v4")
    e("v_add_u32 v5, v5, v3")
    e("v_lshlrev_b32 v5, 7, v5")
    e("v_bfe_u32 v6, v2, 3, 1")
    e("v_lshlrev_b32 v6, 6, v6")
    e("v_bfe_u32 v7, v%d, 4, 1" % L)
    e("v_lshlrev_b32 v7, 5, v7")
    e("v_and_b32 v8, 3, v2")
    e("v_lshlrev_b32 v8, 3, v8")
    e("v_add3_u32 v5, v5, v6, v7")
    e("v_add_u32 v5, v5, v8")
    e("s_mul_i32 s41, s%d, %d" % (KSL, SLICE))
    e("v_add_u32 v11, s41, v5")
    e("v_xor_b32 v12, 64, v11")
    e("s_mul_i32 s41, s%d, 112" % S_T1)
    e("s_mul_i32 s42, s%d, 28" % KSL)
    e("s_add_u32 s41, s41, s42")
    e("s_lshl_b32 s41, s41, 1")
    e("s_add_u32 s41, s41, s%d" % NB)
    e("s_lshl_b32 s41, s41, 10")
    e("v_lshlrev_b32 v13, 4, v%d" % L)
    e("v_add_u32 v13, s41, v13")
    e("v_and_b32 v14, 31, v%d" % L)
    e("s_cmp_ge_u32 s%d, 4" % S_C)
    e("s_cselect_b32 s63, 1, 0")
    e("s_sub_u32 s64, 32, s%d" % S_T1)
    e("s_and_b32 s64, s64, 31")
    e("s_cmp_eq_u32 s63, 1")
    e("s_cselect_b32 s64, s64, s%d" % S_T1)
    e("v_lshrrev_b32 v4, 5, v%d" % L)
    e("s_lshl_b32 s41, s%d, 6" % S_C)
    e("s_cmp_eq_u32 s63, 1")
    e("s_cselect_b64 vcc, -1, 0")
    for mb in range(2):
        e("v_add_u32 v2, s41, v14")
        if mb: e("v_add_u32 v2, 32, v2")
        e("v_sub_u32 v3, 448, v2")
        e("v_cndmask_b32 v2, v2, v3, vcc")
        e("v_lshlrev_b32 v2, 4, v2")
        e("v_lshlrev_b32 v3, 12, v4")
        e("v_add_u32 v%d, v2, v3" % (16 + mb))
    e("s_lshl_b32 s41, s64, 4")
    e("s_lshl_b32 s42, s%d, 2" % KSL)
    e("s_add_u32 s41, s41, s42")
    e("s_lshl_b32 s41, s41, 12")
    e("s_add_u32 s65, s41, 0x%x" % UBUF)
    e("s_lshl_b32 s41, s%d, 6" % S_T1)
    e("s_lshl_b32 s42, s%d, 5" % NB)
    e("s_add_u32 s41, s41, s42")
    e("v_add_u32 v2, s41, v14")
    e("v_lshlrev_b32 v2, 2, v2")
    e("v_add_u32 v20, 0x%x, v2" % GBUF)

def p2_dma_wd(e, kk):
    st = kk >> 2
    pos = (st % 5) * 4 + (kk & 3)
    dma(e, S_WD, 10, pos * 2048, 62, kk * 16 * 896, ("wd", st))
def p2_load_h(e, cfg, kk):
    sc = " sc1" if cfg.fused else ""
    e("s_mov_b32 s%d, 0x%x" % (S_OFF, kk * 2048))
    e("buffer_load_dwordx4 %s, v13, s[%d:%d], s%d offen%s" % (vr(P2_H + 4 * kk, 4), S_WS, S_WS + 3, S_OFF, sc))
    e.vm_issue(("h", kk))
def p2_load_g(e, cfg):
    sc = " sc1" if cfg.fused else ""
    e("buffer_load_dword v15, v20, s[%d:%d], 0 offen%s" % (S_WS, S_WS + 3, sc))
    e.vm_issue("g")
def p2_load_u(e, cfg):
    sc = " sc1" if cfg.fused else ""
    for u in range(2):
        for mb in range(2):
            e("s_add_u32 s%d, s65, %d" % (S_OFF, u * 2 * 4096))
            e("buffer_load_dwordx4 %s, v%d, s[%d:%d], s%d offen%s" % (vr(P2_U + 8 * u + 4 * mb, 4), 16 + mb, S_WS, S_WS + 3, S_OFF, sc))
            e.vm_issue("u")
def p2_tfrags(e, cfg):
    L = V_LANE
    e.vm_wait(["g"])
    e("s_cmp_lg_u32 s%d, 0" % S_T1)
    e("s_cselect_b32 s41, s63, 0")
    e("s_lshl_b32 s42, s%d, 5" % NB)
    e("s_add_u32 s41, s41, s42")
    e("v_add_u32 v2, s41, v14")
    e("v_lshrrev_b32 v4, 5, v%d" % L)
    e("v_lshlrev_b32 v4, 2, v4")
    e("s_lshl_b32 s41, s63, 31")
    e("v_xor_b32 v21, s41, v15")
    e("s_mov_b32 s42, 0x%08x" % f2u(1.0 / 64))
    e("s_lshl_b32 s43, s%d, 4" % KSL)
    e("v_add_u32 v4, s43, v4")
    for u in range(2):
        for q in range(4):
            e("v_add_u32 v3, %d, v4" % (8 * u + q))
            e("v_mul_u32_u24 v3, v3, v2")
            e("v_and_b32 v3, 63, v3")
            e("v_cvt_f32_u32 v3, v3")
            e("v_mul_f32 v3, s42, v3")
            e("v_cos_f32 v5, v3")
            e("v_sin_f32 v6, v3")
            e("s_nop 0")
            e("v_mul_f32 v5, v5, v15")
            e("v_mul_f32 v6, v6, v21")
            e("v_cvt_pk_bf16_f32 v%d, v5, v6" % (P2_T + 4 * u + q))
    e("v_sub_f32 v18, 1.0, v15")
    e("v_mov_b32 v19, v18")

def p2_main(e, cfg, wd_pre=0):
    L = V_LANE
    def reads(kk):
        b = P2_A + 8 * (kk & 1)
        st = kk >> 2
        pos = (st % 5) * 4 + (kk & 3)
        for mb in range(2):
            for ip in range(2):
                e("ds_read_b64_tr_b16 %s, v%d offset:%d" % (vr(b + 4 * mb + 2 * ip, 2), 11 + mb, pos * 2048 + ip * 1024))
                e.lg_issue(("A", kk, mb))
    def issue_h(st):
        if st > 6: return
        for kk in range(4 * st, 4 * st + 4): p2_load_h(e, cfg, kk)
    def issue_w(st):
        if st > 6 or st < wd_pre: return
        for kk in range(4 * st, 4 * st + 4): p2_dma_wd(e, kk)
    def issue_both(st):
        if st > 6: return
        for kk in range(4 * st, 4 * st + 4):
            if st >= wd_pre: p2_dma_wd(e, kk)
            p2_load_h(e, cfg, kk)
    LA = cfg.p2_la
    p2_load_g(e, cfg)
    if cfg.fused:
        for st in range(LA): issue_h(st)
        p2_tfrags(e, cfg)
    else:
        for st in range(LA): issue_both(st)
        p2_tfrags(e, cfg)
        e.vm_wait([("wd", 0), ("wd", 1)])
        e("s_barrier")
    stamp(e, cfg, 1 if not cfg.fused else 6)
    reads(0)
    for kk in range(28):
        st = kk >> 2
        if (kk & 3) == 0:
            if cfg.fused:
                if st >= 1: issue_w(st + 4)
                issue_h(st + LA)
            else:
                issue_both(st + LA)
                if st + LA == 7:
                    p2_load_u(e, cfg)
        if kk + 1 < 28: reads(kk + 1)
        e.vm_wait([("h", kk)])
        b = P2_A + 8 * (kk & 1)
        for mb in range(2):
            e.lg_wait([("A", kk, mb)])
            mfma(e, P2_ACC + 16 * mb, b + 4 * mb, P2_H + 4 * kk, "0" if kk == 0 else None)
        if (kk & 3) == 3 and st < 6:
            e.vm_wait([("wd", st + 2)])
            if cfg.fused and st == cfg.p2_dpoll:
                lab = e.newlabel("DP")
                e("s_cmp_lg_u32 s%d, 0" % S_WAVE)
                e("s_cbranch_scc1 %s" % lab)
                e("s_mov_b32 s%d, 0x%x" % (S_PF, FLAGS + 16 * 128))
                poll(e, S_PF, 32)
                e.label(lab)
            e("s_barrier")
            if cfg.fused and st == cfg.p2_dpoll:
                p2_load_u(e, cfg)
    assert not e.lg
    stamp(e, cfg, 2 if not cfg.fused else 7)
    e.vm_wait(["u"])
    e("s_nop 7"); e("s_nop 3")
    for i in range(0, 32, 2):
        e("v_pk_mul_f32 %s, %s, v[18:19]" % (vr(P2_ACC + i, 2), vr(P2_ACC + i, 2)))
    e("s_nop 1")
    for u in range(2):
        for mb in range(2):
            mfma(e, P2_ACC + 16 * mb, P2_U + 8 * u + 4 * mb, P2_T + 4 * u)
    e("s_barrier")
    e("v_lshlrev_b32 v2, 4, v%d" % L)
    e("s_lshl_b32 s41, s%d, 13" % S_WAVE)
    e("v_add_u32 v3, s41, v2")
    e("s_nop 7"); e("s_nop 1")
    for qd in range(4):
        for hf in range(2):
            e("ds_write_b128 v3, %s offset:%d" % (vr(P2_ACC + 8 * qd + 4 * hf, 4), qd * 2048 + hf * 1024))
    e("s_waitcnt lgkmcnt(0)")
    e("s_barrier")
    e("s_lshl_b32 s41, s%d, 15" % NB)
    e("s_lshl_b32 s42, s%d, 11" % KSL)
    e("s_add_u32 s41, s41, s42")
    e("v_add_u32 v3, s41, v2")
    for k in range(4):
        for hf in range(2):
            e("ds_read_b128 %s, v3 offset:%d" % (vr(96 + 8 * k + 4 * hf, 4), k * 8192 + hf * 1024))
    e("s_lshl_b32 s41, s%d, 5" % NB)
    e("v_add_u32 v2, s41, v14")
    e("v_lshlrev_b32 v2, 5, v2")
    e("v_add_u32 v2, s%d, v2" % S_T1)
    e("s_movk_i32 s42, 896")
    e("v_mul_lo_u32 v2, v2, s42")
    e("s_lshl_b32 s41, s%d, 7" % S_C)
    e("s_lshl_b32 s42, s%d, 5" % KSL)
    e("s_add_u32 s41, s41, s42")
    e("v_lshrrev_b32 v4, 5, v%d" % L)
    e("v_lshlrev_b32 v4, 4, v4")
    e("v_add3_u32 v2, v2, v4, s41")
    e("s_waitcnt lgkmcnt(0)")
    for q in range(0, 8, 2):
        e("v_pk_add_f32 %s, %s, %s" % (vr(96 + q, 2), vr(96 + q, 2), vr(104 + q, 2)))
        e("v_pk_add_f32 %s, %s, %s" % (vr(112 + q, 2), vr(112 + q, 2), vr(120 + q, 2)))
    for q in range(0, 8, 2):
        e("v_pk_add_f32 %s, %s, %s" % (vr(96 + q, 2), vr(96 + q, 2), vr(112 + q, 2)))
    for q in range(4):
        e("v_cvt_pk_bf16_f32 v%d, v%d, v%d" % (128 + q, 96 + 2 * q, 96 + 2 * q + 1))
    e("s_nop 1")
    e("v_permlane32_swap_b32 v128, v130")
    e("v_permlane32_swap_b32 v129, v131")
    e("buffer_store_dwordx4 v[128:131], v2, s[%d:%d], 0 offen" % (S_OUT, S_OUT + 3))
    stamp(e, cfg, 3 if not cfg.fused else 8)

def p2_role(e):
    e("s_and_b32 s41, s2, 7")
    e("s_lshr_b32 s42, s2, 3")
    e("s_mul_i32 s43, s42, 37")
    e("s_lshr_b32 s43, s43, 8")
    e("s_mul_i32 s76, s43, 7")
    e("s_sub_u32 s%d, s42, s76" % S_C)
    e("s_lshl_b32 s41, s41, 2")
    e("s_add_u32 s%d, s41, s43" % S_T1)

def header(e, name):
    e.raw(".text"); e.raw(".globl %s" % name); e.raw(".p2align 8"); e.raw(".type %s,@function" % name); e.label(name)

def kernel1(e, cfg):
    header(e, "k1_kernel")
    e("s_cmp_ge_u32 s2, 256")
    e("s_cbranch_scc1 K1_END")
    kernarg_loads(e)
    entry_common(e)
    def fin():
        stamp_store(e, cfg, 0)
        e("s_endpgm")
    phase1(e, cfg, fin, fin, lambda c: fin())
    e.label("K1_END")
    e("s_endpgm")

def kernel2(e, cfg):
    header(e, "k2_kernel")
    e.vm = []; e.lg = []
    e("s_cmp_ge_u32 s2, 256")
    e("s_cbranch_scc1 K2_END")
    e("s_lshr_b32 s42, s2, 3")
    e("s_cmp_ge_u32 s42, 28")
    e("s_cbranch_scc1 K2_END")
    kernarg_loads(e)
    entry_common(e)
    p2_role(e)
    p2_setup(e, cfg)
    e("s_waitcnt lgkmcnt(0)")
    srd(e, S_WS, 74, WS_BYTES)
    srd(e, S_OUT, 46, 1835008)
    srd(e, S_WD, 56, 1605632)
    stamp(e, cfg, 0)
    p2_main(e, cfg, 0)
    stamp_store(e, cfg, 0x40000)
    e.label("K2_END")
    e("s_endpgm")


def nonce_issue(e):
    lab = e.newlabel("NONCE")
    srd(e, S_DBG, 72, 256)
    e("s_or_b32 s41, s2, s%d" % S_WAVE)
    e("s_cmp_lg_u32 s41, 0")
    e("s_cbranch_scc1 %s" % lab)
    e("s_memrealtime s[42:43]")
    e("s_waitcnt lgkmcnt(0)")
    e("s_or_b32 s42, s42, 1")
    e("v_mov_b32 v4, s42")
    e("v_lshlrev_b32 v5, 20, v%d" % V_LANE)
    e("buffer_store_dword v4, v5, s[%d:%d], 0 offen sc1" % (S_DBG, S_DBG + 3))
    e.label(lab)
    e("v_mov_b32 v7, 0")

def nonce_publish(e):
    lab = e.newlabel("NONCE")
    e("s_or_b32 s41, s2, s%d" % S_WAVE)
    e("s_cmp_lg_u32 s41, 0")
    e("s_cbranch_scc1 %s" % lab)
    srd(e, S_DBG, 72, 256)
    e("s_memrealtime s[42:43]")
    e("s_waitcnt lgkmcnt(0)")
    e("s_or_b32 s42, s42, 1")
    e("v_mov_b32 v4, s42")
    e("v_lshlrev_b32 v5, 20, v%d" % V_LANE)
    e("buffer_store_dword v4, v5, s[%d:%d], 0 offen sc1" % (S_DBG, S_DBG + 3))
    e.label(lab)

def nonce_load(e):
    e("buffer_load_dword v4, v7, s[%d:%d], 0 offen sc1" % (S_DBG, S_DBG + 3))

def nonce_finish(e):
    nonce_finish_any(e)

def flag_addr(e, is_h):
    if is_h:
        e("s_lshl_b32 s41, s%d, 9" % S_R)
        e("s_lshl_b32 s42, s%d, 2" % S_FB)
    else:
        e("s_lshl_b32 s41, s%d, 1" % S_QG)
        e("s_add_u32 s41, s41, s%d" % S_EH)
        e("s_lshl_b32 s42, s41, 2")
        e("s_movk_i32 s41, %d" % (16 * 512))
    e("s_add_u32 s41, s41, s42")
    e("s_add_u32 s%d, s41, 0x%x" % (S_FLAG, FLAGS))

def flag_store(e):
    e("v_mov_b32 v60, s%d" % S_NONCE)
    e("v_lshlrev_b32 v61, 24, v%d" % V_LANE)
    e("v_add_u32 v61, s%d, v61" % S_FLAG)
    e("buffer_store_dword v60, v61, s[%d:%d], 0 offen sc1" % (S_WS, S_WS + 3))

def poll_prep(e, sbase, nflags):
    e("v_lshlrev_b32 v61, 2, v%d" % V_LANE)
    e("v_add_u32 v61, s%d, v61" % sbase)
    e("v_cmp_gt_u32 vcc, %d, v%d" % (nflags, V_LANE))
    e("v_mov_b32 v60, 0x7fffffff")
    e("s_nop 0")
    e("v_cndmask_b32 v61, v60, v61, vcc")
def poll_issue(e):
    e("buffer_load_dword v60, v61, s[%d:%d], 0 offen sc1" % (S_WS, S_WS + 3))
def poll_loop(e, nflags, first_issued):
    top = e.newlabel("POLL"); done = e.newlabel("POLLD"); chk = e.newlabel("POLLC")
    e("s_mov_b32 s41, 0")
    if first_issued: e("s_branch %s" % chk)
    e.label(top)
    poll_issue(e)
    e.label(chk)
    e("s_waitcnt vmcnt(0)")
    e("v_cmp_eq_u32 vcc, s%d, v60" % S_NONCE)
    e("s_nop 1")
    mask = (1 << nflags) - 1
    e("s_and_b32 s42, vcc_lo, 0x%x" % (mask & 0xffffffff))
    e("s_cmp_eq_u32 s42, 0x%x" % (mask & 0xffffffff))
    e("s_cbranch_scc1 %s" % done)
    e("s_add_u32 s41, s41, 1")
    e("s_cmp_ge_u32 s41, 0x40000")
    e("s_cbranch_scc1 %s" % done)
    e("s_branch %s" % top)
    e.label(done)
def poll(e, sbase, nflags, drain=True):
    poll_prep(e, sbase, nflags)
    poll_loop(e, nflags, False)

def pollAG_prep(e):
    e("v_lshlrev_b32 v61, 2, v%d" % V_LANE)
    e("v_add_u32 v62, 0x%x, v61" % (FLAGS + 16 * 512 + 128 - 128))
    e("v_add_u32 v61, s%d, v61" % S_PF)
    e("v_cmp_gt_u32 vcc, 14, v%d" % V_LANE)
    e("v_mov_b32 v60, 0x7fffffff")
    e("s_nop 0")
    e("v_cndmask_b32 v61, v60, v61, vcc")
    e("v_cmp_lt_u32 vcc, 31, v%d" % V_LANE)
    e("s_nop 1")
    e("v_cndmask_b32 v61, v61, v62, vcc")

def poll_loop56(e):
    top = e.newlabel("POLL"); done = e.newlabel("POLLD")
    e("s_mov_b32 s41, 0")
    e.label(top)
    poll_issue(e)
    e("s_waitcnt vmcnt(0)")
    e("v_cmp_eq_u32 vcc, s%d, v60" % S_NONCE)
    e("s_nop 1")
    e("s_and_b32 s43, vcc_hi, 0xffffff")
    e("s_cmp_eq_u32 s43, 0xffffff")
    e("s_cselect_b32 s42, vcc_lo, 0")
    e("s_cmp_eq_u32 s42, -1")
    e("s_cbranch_scc1 %s" % done)
    e("s_add_u32 s41, s41, 1")
    e("s_cmp_ge_u32 s41, 0x40000")
    e("s_cbranch_scc1 %s" % done)
    e("s_branch %s" % top)
    e.label(done)

def poll2(e, sline1, line2):
    top = e.newlabel("POLL"); done = e.newlabel("POLLD")
    e("v_lshlrev_b32 v61, 2, v%d" % V_LANE)
    e("v_add_u32 v62, 0x%x, v61" % line2)
    e("v_add_u32 v61, s%d, v61" % sline1)
    e("v_mov_b32 v60, 0x7fffffff")
    e("v_cmp_gt_u32 vcc, 56, v%d" % V_LANE)
    e("s_nop 1")
    e("v_cndmask_b32 v61, v60, v61, vcc")
    e("v_cmp_gt_u32 vcc, 32, v%d" % V_LANE)
    e("s_nop 1")
    e("v_cndmask_b32 v62, v60, v62, vcc")
    e("s_mov_b32 s41, 0")
    e.label(top)
    e("buffer_load_dword v60, v61, s[%d:%d], 0 offen sc1" % (S_WS, S_WS + 3))
    e("buffer_load_dword v58, v62, s[%d:%d], 0 offen sc1" % (S_WS, S_WS + 3))
    e("s_waitcnt vmcnt(0)")
    e("v_cmp_eq_u32 vcc, s%d, v60" % S_NONCE)
    e("v_cmp_eq_u32 s[42:43], s%d, v58" % S_NONCE)
    e("s_nop 1")
    e("s_and_b32 s43, vcc_hi, 0xffffff")
    e("s_and_b32 s42, s42, vcc_lo")
    e("s_cmp_eq_u32 s43, 0xffffff")
    e("s_cselect_b32 s42, s42, 0")
    e("s_cmp_eq_u32 s42, -1")
    e("s_cbranch_scc1 %s" % done)
    e("s_add_u32 s41, s41, 1")
    e("s_cmp_ge_u32 s41, 0x40000")
    e("s_cbranch_scc1 %s" % done)
    e("s_branch %s" % top)
    e.label(done)

def kernel_fused(e, cfg):
    name = "gated_mix__spectral_fnet__glu_gated_glu__prompt_kernel"
    header(e, name)
    e("s_cmp_ge_u32 s2, 256")
    e("s_cbranch_scc1 KF_END")
    kernarg_loads(e)
    entry_common(e)
    def after_h_consumer():
        e.vm_wait_all()
        e("s_barrier")
        lab = e.newlabel("NOTW0")
        e("s_cmp_lg_u32 s%d, 0" % S_WAVE)
        e("s_cbranch_scc1 %s" % lab)
        flag_store(e)
        e.label(lab)
        stamp(e, cfg, 4)
        p2_role(e)
        p2_setup(e, cfg)
        srd(e, S_OUT, 46, 1835008)
        srd(e, S_WD, 56, 1605632)
        e("s_cmp_lg_u32 s%d, 0" % S_WAVE)
        e("s_cbranch_scc1 P2_START")
        e("s_lshr_b32 s43, s%d, 1" % S_T1)
        e("s_lshl_b32 s43, s43, 7")
        e("s_add_u32 s%d, s43, 0x%x" % (S_PF, FLAGS))
        poll(e, S_PF, 14)
        e("s_branch P2_START")
    def after_h_loader():
        e("s_barrier")
        p2_role(e)
        p2_setup(e, cfg)
        srd(e, S_OUT, 46, 1835008)
        e("v_subrev_u32 v9, %d, v10" % (8 * 896))
        e("s_sub_u32 s69, s62, 1024")
        for kk in range(20):
            pos = kk
            dma(e, S_WD, 9, pos * 2048, 69, kk * 16 * 896, ("wdp", kk))
            dma(e, S_WD, 10, pos * 2048, 62, kk * 16 * 896, ("wdp", kk))
        e("s_barrier")
        stamp(e, cfg, 4)
        e.vm = []
        e.label("P2_START")
        e("s_waitcnt vmcnt(0)")
        e("s_barrier")
        stamp(e, cfg, 5)
        e.vm = []; e.lg = []
        p2_main(e, cfg, 5)
        stamp_store(e, cfg, 0)
        e("s_endpgm")
    def after_d(is_cons):
        if is_cons:
            e.vm_wait_all()
            e("s_barrier")
            lab = e.newlabel("DNOTW0")
            e("s_cmp_lg_u32 s%d, 0" % S_WAVE)
            e("s_cbranch_scc1 %s" % lab)
            flag_store(e)
            e("s_waitcnt vmcnt(0)")
            e.label(lab)
            stamp_store(e, cfg, 0)
            e("s_endpgm")
        else:
            e("s_waitcnt vmcnt(0)")
            e("s_barrier")
            stamp_store(e, cfg, 0)
            e("s_endpgm")
    phase1(e, cfg, after_h_consumer, after_h_loader, after_d)
    e.label("KF_END")
    e("s_endpgm")


WB2 = 114688; NW2 = 6; WS2 = 8192
H_ACC = 64
H_FR = 192
V_XA2 = 10
V_WA2 = 18
S_WT = 69

def h2_consumer(e, cfg):
    L = V_LANE; T = 26
    e("s_lshr_b32 s%d, s%d, 1" % (S_WT, S_WAVE))
    e("s_and_b32 s%d, s%d, 1" % (S_WF, S_WAVE))
    e("v_and_b32 v%d, 31, v%d" % (T, L))
    e("v_lshrrev_b32 v%d, 5, v%d" % (T + 1, L))
    e("v_lshrrev_b32 v%d, 1, v%d" % (T + 2, T))
    e("v_and_b32 v%d, 7, v%d" % (T + 2, T + 2))
    e("s_lshl_b32 s41, s%d, 6" % S_WT)
    e("v_add_u32 v%d, s41, v%d" % (T + 3, T))
    e("v_lshlrev_b32 v%d, 7, v%d" % (T + 3, T + 3))
    for k in range(4):
        e("v_add_u32 v%d, %d, v%d" % (T + 4, 2 * k, T + 1))
        e("v_xor_b32 v%d, v%d, v%d" % (T + 4, T + 4, T + 2))
        e("v_lshlrev_b32 v%d, 4, v%d" % (T + 4, T + 4))
        e("v_add_u32 v%d, v%d, v%d" % (V_XA2 + k, T + 3, T + 4))
        e("v_add_u32 v%d, 0x10000, v%d" % (V_XA2 + 4 + k, V_XA2 + k))
    e("v_and_b32 v%d, 15, v%d" % (T + 4, L))
    e("v_lshrrev_b32 v%d, 2, v%d" % (T + 5, T + 4))
    e("v_lshlrev_b32 v%d, 7, v%d" % (T + 5, T + 5))
    e("v_lshlrev_b32 v%d, 11, v%d" % (T + 6, T + 1))
    e("v_add_u32 v%d, v%d, v%d" % (T + 6, T + 6, T + 5))
    e("v_bfe_u32 v%d, v%d, 3, 1" % (T + 7, T + 4))
    e("v_xor_b32 v%d, s%d, v%d" % (T + 7, S_WF, T + 7))
    e("v_lshlrev_b32 v%d, 6, v%d" % (T + 7, T + 7))
    e("v_add_u32 v%d, v%d, v%d" % (T + 6, T + 6, T + 7))
    e("v_bfe_u32 v%d, v%d, 4, 1" % (T + 7, L))
    e("v_lshlrev_b32 v%d, 5, v%d" % (T + 7, T + 7))
    e("v_add_u32 v%d, v%d, v%d" % (T + 6, T + 6, T + 7))
    e("v_and_b32 v%d, 3, v%d" % (T + 7, T + 4))
    e("v_lshlrev_b32 v%d, 3, v%d" % (T + 7, T + 7))
    e("v_add_u32 v%d, v%d, v%d" % (T + 6, T + 6, T + 7))
    e("v_add_u32 v%d, 0x%x, v%d" % (V_WA2, WB2, T + 6))
    e("s_waitcnt lgkmcnt(0)")
    srd(e, S_WS, 74, WS_BYTES)
    if cfg.ncx > 0:
        srd(e, S_X, 44, 1835008)
        e("v_lshrrev_b32 v40, 3, v%d" % L)
        e("v_and_b32 v41, 7, v%d" % L)
        e("v_lshrrev_b32 v42, 4, v%d" % L)
        e("v_xor_b32 v41, v41, v42")
        e("v_lshlrev_b32 v41, 4, v41")
        e("v_mul_u32_u24 v40, 28672, v40")
        e("s_lshl_b32 s41, s%d, 1" % S_R)
        e("s_lshr_b32 s42, s%d, 1" % S_WAVE)
        e("s_add_u32 s41, s41, s42")
        e("s_mul_i32 s41, s41, 896")
        e("s_and_b32 s42, s%d, 1" % S_WAVE)
        e("s_mul_i32 s42, s42, %d" % (32 * 28672))
        e("s_add_u32 s41, s41, s42")
        e("v_add3_u32 v36, v40, v41, s41")
        e("v_xor_b32 v41, 64, v41")
        e("s_add_u32 s42, s41, %d" % (8 * 28672 - 1024))
        e("v_add3_u32 v37, v40, v41, s42")
        e("v_add_u32 v38, %d, v36" % (16 * 28672 - 2048))
        e("v_add_u32 v39, %d, v37" % (16 * 28672 - 2048))
        e("s_mul_i32 s6, s%d, %d" % (S_R, RMUL[0]))
        e("s_add_u32 s6, s6, s%d" % S_FB)
        e("s_mul_i32 s7, s6, 37")
        e("s_lshr_b32 s7, s7, 8")
        e("s_mul_i32 s7, s7, 7")
        e("s_sub_u32 s6, s6, s7")
        e("s_lshl_b32 s5, s%d, 12" % S_WAVE)
        for c in range(1, cfg.ncx + 1):
            rot_next(e, 6, 7)
            e("s_lshl_b32 s4, s6, 7")
            dma_group(e, 5, c * 16384, [(S_X, 36 + i, 4, i * 1024, ("xc", c)) for i in range(4)])
    de = Em()
    _e = e
    e = de
    e("s_lshl_b32 s41, s%d, 1" % S_R)
    e("s_add_u32 s41, s41, s%d" % S_WT)
    e("s_mul_i32 s41, s41, 112")
    e("s_lshl_b32 s42, s%d, 1" % S_FB)
    e("s_add_u32 s42, s42, s%d" % S_WF)
    e("s_lshl_b32 s42, s42, 1")
    e("s_add_u32 s41, s41, s42")
    e("s_lshl_b32 s41, s41, 11")
    e("v_lshlrev_b32 v20, 4, v%d" % L)
    e("v_add_u32 v20, s41, v20")
    e("v_add_u32 v21, 0x%x, v20" % (56 * 2048))
    flag_addr(e, True)
    srd(e, S_DBG, 72, 256)
    e("v_mov_b32 v7, 0")
    e("s_mov_b32 s44, 0x%08x" % f2u(-LOG2E))
    e("s_mov_b32 s45, s44")
    defer_list = [ln.strip() for ln in de.lines]
    e = _e
    nonce_publish(e)
    if "pf2" in cfg.x:
        lab = e.newlabel("PF2")
        e("s_cmp_lg_u32 s%d, 0" % S_WAVE)
        e("s_cbranch_scc1 %s" % lab)
        srd(e, S_WD, 56, 1605632)
        e("s_mul_i32 s41, s%d, 14" % S_R)
        e("s_add_u32 s41, s41, s%d" % S_FB)
        e("s_mul_i32 s41, s41, 56")
        e("v_add_u32 v8, s41, v%d" % L)
        e("v_lshlrev_b32 v8, 7, v8")
        e("buffer_load_dword v9, v8, s[%d:%d], 0 offen" % (S_WD, S_WD + 3))
        e.label(lab)
    stamp(e, cfg, 0)
    if "notouch" not in cfg.x:
        srd(e, S_WD, 56, 1605632)
        e("s_lshr_b32 s41, s2, 3")
        e("s_mul_i32 s41, s41, 448")
        e("s_lshl_b32 s42, s%d, 6" % S_WAVE)
        e("s_add_u32 s41, s41, s42")
        e("v_add_u32 v8, s41, v%d" % L)
        e("v_lshlrev_b32 v8, 7, v8")
        e("buffer_load_dword v2, v8, s[%d:%d], 0 offen" % (S_WD, S_WD + 3))
        e("s_cmp_eq_u32 s%d, 3" % S_WAVE)
        lab = e.newlabel("TCH")
        e("s_cbranch_scc1 %s" % lab)
        e("v_add_u32 v8, 0x%x, v8" % (256 * 128))
        e("buffer_load_dword v3, v8, s[%d:%d], 0 offen" % (S_WD, S_WD + 3))
        e.label(lab)
    e("s_barrier")
    stamp(e, cfg, 1)
    if cfg.diag:
        e("s_memtime s[76:77]"); e("s_waitcnt lgkmcnt(0)")
    def reads(g):
        p = g // 28; kap = g % 28
        base = H_FR + 16 * (g & 1)
        c = kap >> 2; kk4 = kap & 3
        xo = c * 16384
        xv = V_XA2 + kk4 + (4 if xo >= 0x10000 else 0); xo &= 0xffff
        j = g >> 1; kk = g & 1
        so = (j % NW2) * WS2
        def xr(nb): return (("X", g, nb), "ds_read_b128 %s, v%d offset:%d" % (vr(base + 4 * nb, 4), xv, xo + nb * 4096))
        def wr(m, ip): return (("W", g, m), "ds_read_b64_tr_b16 %s, v%d offset:%d" % (vr(base + 8 + 4 * m + 2 * ip, 2), V_WA2, so + kk * 4096 + ip * 512 + m * 1024))
        return [wr(0, 0), wr(0, 1), xr(0), wr(1, 0), wr(1, 1), xr(1)]
    def epi_list(p):
        ACCB = H_ACC + 64 * p
        L_ = []
        def I(txt): L_.append(lambda: e(txt))
        grp = 0
        for nb in range(2):
            for hf in range(2):
                outb = 224 + 4 * grp; grp += 1
                A = ACCB + 16 * nb + 8 * hf; B = ACCB + 32 + 16 * nb + 8 * hf
                for q in range(0, 8, 2):
                    I("v_pk_mul_f32 %s, %s, s[44:45]" % (vr(A + q, 2), vr(A + q, 2)))
                for q in range(8):
                    I("v_exp_f32 v%d, v%d" % (A + q, A + q))
                for q in range(0, 8, 2):
                    I("v_pk_add_f32 %s, %s, s[46:47]" % (vr(A + q, 2), vr(A + q, 2))) if False else I("v_pk_add_f32 %s, %s, 1.0 op_sel_hi:[1,0]" % (vr(A + q, 2), vr(A + q, 2)))
                for q in range(8):
                    I("v_rcp_f32 v%d, v%d" % (A + q, A + q))
                for q in range(0, 8, 2):
                    I("v_pk_mul_f32 %s, %s, %s" % (vr(A + q, 2), vr(A + q, 2), vr(B + q, 2)))
                for q2 in range(4):
                    I("v_cvt_pk_bf16_f32 v%d, v%d, v%d" % (outb + q2, A + 2 * q2, A + 2 * q2 + 1))
                def st(outb=outb, nb=nb, hf=hf):
                    e("buffer_store_dwordx4 %s, v%d, s[%d:%d], 0 offen offset:%d sc1" % (vr(outb, 4), 20 + p, S_WS, S_WS + 3, hf * 2048 + nb * 1024))
                    e.vm_issue("hst")
                L_.append(st)
        return L_
    def epilogue(p):
        e("s_nop 7"); e("s_nop 3")
        for f in epi_list(p): f()
    pend_epi = []
    ge = Em()
    gate_list = []
    for tag, txt in reads(0):
        e(txt); e.lg_issue(tag)
    for g in range(56):
        base = H_FR + 16 * (g & 1)
        nxt = reads(g + 1) if g + 1 < 56 else []
        first = (g % 28 == 0)
        ACCB = H_ACC + 64 * (g // 28)
        if g == 28 + cfg.epi_start and cfg.epi_rate > 0:
            pend_epi = epi_list(0)
        k = 0
        for n in range(4):
            nb = n >> 1; m = n & 1
            if "wait2" in cfg.x:
                if n == 0: e.lg_wait([("W", g, 0), ("X", g, 0)])
                if n == 1: e.lg_wait([("W", g, 1), ("X", g, 1)])
            elif "wait1" in cfg.x:
                if n == 0: e.lg_wait([("W", g, 0), ("X", g, 0), ("W", g, 1), ("X", g, 1)])
            else:
                e.lg_wait([("W", g, m), ("X", g, nb)])
            d = ACCB + 32 * m + 16 * nb
            if "fake16" in cfg.x:
                for hh in range(2):
                    e("v_mfma_f32_16x16x32_bf16 %s, %s, %s, %s" % (vr(d + 8 * hh, 4), vr(base + 8 + 4 * m, 4), vr(base + 4 * nb, 4), "0" if first else vr(d + 8 * hh, 4)))
            elif "nomfma" not in cfg.x:
                mfma(e, d, base + 8 + 4 * m, base + 4 * nb, "0" if first else None)
            cnt = 2 if n < 2 else 1
            if "rd3" in cfg.x: cnt = (3, 3, 0, 0)[n]
            if "rd6" in cfg.x: cnt = (6, 0, 0, 0)[n]
            for _ in range(cnt):
                if k < len(nxt):
                    tag, txt = nxt[k]; k += 1
                    if "nolds" in cfg.x: continue
                    e(txt); e.lg_issue(tag)
            for _ in range(cfg.epi_rate):
                if pend_epi: pend_epi.pop(0)()
            for _ in range(cfg.defer_rate):
                if defer_list: e(defer_list.pop(0))
            if g >= cfg.gate_g:
                pass
                for _ in range(cfg.gate_rate):
                    if gate_list: e(gate_list.pop(0))
        if g == 27 and cfg.epi_rate == 0:
            epilogue(0)
        for c in range(1, cfg.ncx + 1):
            if g == 4 * c - 3:
                e.vm_wait([("xc", c)])
        if g == 46:
            nonce_load(e)
        if g == 2 * cfg.flagA_bar - 1:
            e("s_waitcnt vmcnt(0)")
        if (g & 1) and g < 55:
            e("s_barrier")
    assert not e.lg
    e.vm = []
    e("s_barrier")
    if cfg.diag:
        e("s_memtime s[78:79]"); e("s_waitcnt lgkmcnt(0)")
        e("s_sub_u32 s7, s78, s76")
    nonce_finish(e)
    assert not pend_epi and not gate_list
    stamp(e, cfg, 2)
    p2_role(e)
    flags_line(e, 0)
    pollAG_prep(e)
    poll_issue(e); e.vm_issue("pollA")
    epilogue(1)
    stamp(e, cfg, 3)

def h2_loader(e, cfg):
    L = V_LANE; T = 26
    VX = 10; VW = 14
    e("v_lshrrev_b32 v%d, 3, v%d" % (T, L))
    e("v_and_b32 v%d, 7, v%d" % (T + 1, L))
    e("v_lshrrev_b32 v%d, 4, v%d" % (T + 2, L))
    e("v_xor_b32 v%d, v%d, v%d" % (T + 3, T + 1, T + 2))
    e("v_lshlrev_b32 v%d, 4, v%d" % (T + 3, T + 3))
    e("v_mul_u32_u24 v%d, 28672, v%d" % (T + 4, T))
    e("s_lshl_b32 s41, s%d, 1" % S_R)
    e("s_lshr_b32 s42, s%d, 1" % S_LW)
    e("s_add_u32 s41, s41, s42")
    e("s_mul_i32 s41, s41, 896")
    e("s_and_b32 s42, s%d, 1" % S_LW)
    e("s_mul_i32 s42, s42, %d" % (32 * 28672))
    e("s_add_u32 s41, s41, s42")
    e("v_add3_u32 v%d, v%d, v%d, s41" % (VX, T + 4, T + 3))
    e("v_xor_b32 v%d, 64, v%d" % (T + 3, T + 3))
    e("s_add_u32 s42, s41, %d" % (8 * 28672 - 1024))
    e("v_add3_u32 v%d, v%d, v%d, s42" % (VX + 1, T + 4, T + 3))
    e("v_add_u32 v%d, %d, v%d" % (VX + 2, 16 * 28672 - 2048, VX))
    e("v_add_u32 v%d, %d, v%d" % (VX + 3, 16 * 28672 - 2048, VX + 1))
    e("v_mul_u32_u24 v%d, 3584, v%d" % (T + 4, T))
    e("v_and_b32 v%d, 1, v%d" % (T + 2, T + 2))
    e("v_lshlrev_b32 v%d, 2, v%d" % (T + 2, T + 2))
    e("v_xor_b32 v%d, v%d, v%d" % (T + 2, T + 2, T + 1))
    e("v_lshlrev_b32 v%d, 4, v%d" % (T + 2, T + 2))
    e("s_mul_i32 s41, s%d, %d" % (S_LW, 8 * 3584))
    e("s_lshl_b32 s42, s%d, 7" % S_FB)
    e("s_add_u32 s41, s41, s42")
    e("v_add3_u32 v%d, v%d, v%d, s41" % (VW, T + 4, T + 2))
    e("v_add_u32 v%d, %d, v%d" % (VW + 1, 32 * 3584, VW))
    e("s_lshl_b32 s%d, s%d, 11" % (S_LDSW, S_LW))
    e("s_lshl_b32 s%d, s%d, 12" % (S_LDSX, S_LW))
    e("s_mul_i32 s6, s%d, %d" % (S_R, RMUL[0]))
    e("s_add_u32 s6, s6, s%d" % S_FB)
    e("s_mul_i32 s7, s6, 37")
    e("s_lshr_b32 s7, s7, 8")
    e("s_mul_i32 s7, s7, 7")
    e("s_sub_u32 s6, s6, s7")
    e("s_waitcnt lgkmcnt(0)")
    srd(e, S_X, 44, 1835008)
    srd(e, S_WA, 52, 1605632)
    e("s_sub_u32 s%d, s54, 1024" % S_WB)
    e("s_subb_u32 s%d, s55, 0" % (S_WB + 1))
    e("s_and_b32 s%d, s%d, 0xffff" % (S_WB + 1, S_WB + 1))
    e("s_mov_b32 s%d, 0x%x" % (S_WB + 2, 1605632 + 1024))
    e("s_mov_b32 s%d, 0x20000" % (S_WB + 3))
    e("s_mov_b64 s[76:77], s[56:57]")
    e("s_mov_b64 s[78:79], s[58:59]")
    def emitT(dst):
        c = dst - 44
        e("s_lshl_b32 s%d, s6, 7" % (44 + c))
        e("s_mul_i32 s%d, s6, %d" % (51 + c, 64 * 3584))
    emitT(44)
    stamp(e, cfg, 0)
    tdone = [1]
    def need_table(c):
        while tdone[0] <= c:
            rot_next(e, 6, 7)
            emitT(44 + tdone[0]); tdone[0] += 1
    def dx(c):
        need_table(c)
        dma_group(e, S_LDSX, c * 16384, [(S_X, VX + i, 44 + c, i * 1024, ("x", c)) for i in range(4)])
    def dw(j):
        p = j // 14; jj = j % 14; c = jj >> 1
        need_table(c)
        va = VW + 2 * p + (jj & 1)
        dma_group(e, S_LDSW, WB2 + (j % NW2) * WS2, [(S_WA, va, 51 + c, 0, ("w", j)), (S_WB, va, 51 + c, 1024, ("w", j))])
    q = []
    for j in range(28):
        if j < 14 and j % 2 == 0 and not (1 <= j // 2 <= cfg.ncx): q.append(("x", j // 2, -1))
        q.append(("w", j, -1 if j < NW2 else j - NW2 + 1))
    def cost(it): return 4 if it[0] == "x" else 2
    def issue(it): (dx if it[0] == "x" else dw)(it[1])
    def need(j):
        t = []
        for jj in (j, j + 1):
            if jj <= 27:
                if jj < 14 and not (1 <= (jj >> 1) <= cfg.ncx): t.append(("x", jj >> 1))
                t.append(("w", jj))
        return t
    issued = set(); curbar = [-1]
    def ensure(tags):
        while q and any(t not in issued for t in tags):
            it = q.pop(0); assert it[2] <= curbar[0], (it, curbar)
            issue(it); issued.add((it[0], it[1]))
    ensure(need(0))
    e("v_add_u32 v%d, %d, v%d" % (VW + 2, 1792, VW))
    e("v_add_u32 v%d, %d, v%d" % (VW + 3, 1792, VW + 1))
    srd(e, S_WS, 74, WS_BYTES)
    srd(e, S_WD, 76, 1605632)
    srd(e, S_GW, 78, 896)
    srd(e, S_DBG, 72, 256)
    flag_addr(e, True)
    e("v_mov_b32 v7, 0")
    budget0 = cfg.pro_extra
    while q and budget0 > 0 and q[0][2] <= -1:
        it = q.pop(0); issue(it); issued.add((it[0], it[1])); budget0 -= cost(it)
    e.vm_wait(need(0))
    e("s_barrier")
    stamp(e, cfg, 1)
    for j in range(27):
        curbar[0] = j
        ensure(need(j + 1))
        budget = cfg.stage_budget2
        while q and budget > 0 and q[0][2] <= j:
            it = q.pop(0); issue(it); issued.add((it[0], it[1])); budget -= cost(it)
        if j == 1:
            p2_role(e)
            q_setup(e, 0, 26)
        if j == 14:
            q_table(e, 44, 2 * 16 * 896)
        if j >= 16 and j % 2 == 0:
            c = (j - 16) // 2
            q_dma_pair(e, 0, c, 26, 44)
        if j == 9:
            e("buffer_load_dword v4, v7, s[%d:%d], 0 offen sc1" % (S_DBG, S_DBG + 3))
            e.vm_issue("nonce")
        if j == 13:
            e.vm_wait(["nonce"])
            sv = list(e.vm)
            nonce_finish_any(e, keepvm=True)
            e.vm = sv
        if j == cfg.flagA_bar:
            lab = e.newlabel("FA")
            e("s_cmp_lg_u32 s%d, 4" % S_WAVE)
            e("s_cbranch_scc1 %s" % lab)
            flag_store(e)
            e.label(lab)
        if j == cfg.epoll:
            flags_line(e, 0)
            poll_prep(e, S_PF, 14)
            poll_issue(e); e.vm_issue("poll")
        e.vm_wait(need(j + 1))
        if "stg" in cfg.x and j + 1 in (4, 12, 15, 18, 26):
            pass
        e("s_barrier")
        if "stg" in cfg.x and j + 1 in (4, 12, 15, 18, 26):
            k = {4: 3, 12: 4, 15: 5, 18: 6, 26: 7}[j + 1]
            e("s_memtime s[%d:%d]" % (S_STAMP + 2 * k, S_STAMP + 2 * k + 1)); e("s_waitcnt lgkmcnt(0)")
    assert not q
    q_setup2(e, 0)
    q_table(e, 51, 4096)
    e.vm_wait([("wd", 11)])
    e("s_waitcnt lgkmcnt(0)")
    e("s_barrier")
    stamp(e, cfg, 2)
    poll_loop(e, 14, True)
    if cfg.diag: e("s_mov_b32 s%d, s41" % (S_STAMP + 16))
    stamp(e, cfg, 4)
    e.vm = []
    cfg.stepsA = q_steps(0, list(range(0, 2 * (6 - cfg.nca))) + [12, 13], 13)
    for i in range(cfg.hpre): q_issue_h(e, cfg.stepsA[i])
    q_dma_pair(e, 0, 6, 26, 44)

def nonce_finish_any(e, keepvm=False):
    lab = e.newlabel("NFA"); top = e.newlabel("NTA"); chk = e.newlabel("NCK")
    e("s_mov_b32 s42, 0")
    if keepvm: e("s_branch %s" % chk)
    e.label(top)
    e("s_waitcnt vmcnt(0)")
    e.label(chk)
    e("v_readfirstlane_b32 s%d, v4" % S_NONCE)
    e("s_nop 3")
    e("s_cmp_lg_u32 s%d, 0" % S_NONCE)
    e("s_cbranch_scc1 %s" % lab)
    e("s_add_u32 s42, s42, 1")
    e("s_cmp_ge_u32 s42, 0x40000")
    e("s_cbranch_scc1 %s" % lab)
    e("s_sleep 1")
    e("buffer_load_dword v4, v7, s[%d:%d], 0 offen sc1" % (S_DBG, S_DBG + 3))
    e("s_branch %s" % top)
    e.label(lab)

Q_ACC = 64
Q_H = 128
Q_A = 240
SL2 = 40960
SI = 3

def q_setup(e, part, vw=9):
    L = V_LANE
    e("s_and_b32 s%d, s%d, 3" % (SI, S_WAVE))
    e("v_lshrrev_b32 v2, 3, v%d" % L)
    e("v_bfe_u32 v3, v%d, 4, 1" % L)
    e("v_lshlrev_b32 v3, 2, v3")
    e("v_and_b32 v8, 7, v%d" % L)
    e("v_xor_b32 v3, v3, v8")
    e("v_lshlrev_b32 v3, 4, v3")
    e("s_mul_i32 s41, s%d, 224" % SI)
    if part: e("s_add_u32 s41, s41, 896")
    e("v_add_u32 v2, s41, v2")
    e("s_movk_i32 s42, 896")
    e("v_mul_lo_u32 v2, v2, s42")
    e("s_lshl_b32 s41, s%d, 7" % S_C)
    e("v_add3_u32 v%d, v2, v3, s41" % vw)
    e("v_add_u32 v%d, %d, v%d" % (vw + 1, 8 * 896 - 1024, vw))
    e("v_add_u32 v%d, %d, v%d" % (vw + 2, 16 * 896 - 2048, vw))
    e("v_add_u32 v%d, %d, v%d" % (vw + 3, 24 * 896 - 3072, vw))
    e("s_lshl_b32 s62, s%d, 12" % SI)
    e("s_and_b32 s4, s%d, 3" % S_T1)
    e("s_lshl_b32 s4, s4, 1")
    e("s_add_u32 s4, s4, s%d" % S_C)
    e("s_cmp_ge_u32 s4, 7")
    e("s_cselect_b32 s5, 7, 0")
    e("s_sub_u32 s4, s4, s5")
    if P2ROT[0] == 0: e("s_mov_b32 s4, 0")

def q_table(e, first, mult):
    e("s_mov_b32 s5, s4")
    for c in range(7):
        e("s_mul_i32 s%d, s5, %d" % (first + c, mult))
        if c < 6: rot_next(e, 5, 7)

def q_dma_pair(e, part, c, vw, tab):
    pos = q_pos(part, 2 * c)
    dma_group(e, 62, pos, [(S_WD, vw + i, tab + c, i * 1024, ("wd", 2 * c + (i >> 1))) for i in range(4)])

P2ROT = [1]
RMUL = [2]
OSC = [""]
HSC = [" sc1"]
def q_setup2(e, part):
    L = V_LANE
    e("v_and_b32 v2, 15, v%d" % L)
    e("v_lshrrev_b32 v3, 2, v2")
    e("v_lshrrev_b32 v8, 5, v%d" % L)
    e("v_lshlrev_b32 v5, 2, v8")
    e("v_add_u32 v5, v5, v3")
    e("v_lshlrev_b32 v5, 7, v5")
    e("v_bfe_u32 v6, v2, 3, 1")
    e("v_lshlrev_b32 v6, 6, v6")
    e("v_bfe_u32 v3, v%d, 4, 1" % L)
    e("v_lshlrev_b32 v3, 5, v3")
    e("v_and_b32 v8, 3, v2")
    e("v_lshlrev_b32 v8, 3, v8")
    e("v_add3_u32 v5, v5, v6, v3")
    e("v_add_u32 v5, v5, v8")
    e("v_add_u32 v11, s62, v5")
    e("v_xor_b32 v12, 64, v11")
    e("v_add_u32 v18, 0x10000, v11")
    e("v_add_u32 v19, 0x10000, v12")
    e("v_add_u32 v15, 0x20000, v11")
    e("v_add_u32 v63, 0x20000, v12")
    e("s_mul_i32 s41, s%d, 112" % S_T1)
    e("s_mul_i32 s42, s%d, 14" % SI)
    e("s_add_u32 s41, s41, s42")
    if part: e("s_add_u32 s41, s41, 56")
    e("s_lshl_b32 s41, s41, 11")
    e("v_lshlrev_b32 v13, 4, v%d" % L)
    e("v_add_u32 v13, s41, v13")
    e("v_and_b32 v14, 31, v%d" % L)

def q_pos(part, kk):
    c = kk >> 1; u = kk & 1
    if part == 0: return c * 16384 + u * 2048
    if c < 3: return WB2 + c * 16384 + u * 2048
    if c < 6: return c * 16384 + u * 2048
    return 0 * 16384 + u * 2048

HT = [51]
def q_load_h(e, kk, hreg, hv, tag):
    c = kk >> 1; u = kk & 1
    for nb in range(2):
        e("buffer_load_dwordx4 %s, v%d, s[%d:%d], s%d offen offset:%d%s" % (vr(hreg + 4 * nb, 4), hv, S_WS, S_WS + 3, HT[0] + c, u * 2048 + nb * 1024, HSC[0]))
        e.vm_issue(tag)

def q_steps(part, kks, hv, reg0=0):
    return [dict(part=part, kk=kk, hv=hv, hreg=Q_H + 8 * (reg0 + i), tag=("h", part, kk)) for i, kk in enumerate(kks)]

def q_issue_h(e, st):
    q_load_h(e, st["kk"], st["hreg"], st["hv"], st["tag"])

def q_mainloop(e, cfg, steps, init_zero, pre, extra=None, after_i=None, barrier_before=None):
    n = len(steps)
    def reads(i):
        st = steps[i]
        b = Q_A + 8 * (i & 1)
        pos = q_pos(st["part"], st["kk"])
        for mb in range(2):
            for ip in range(2):
                va = (11 + mb) if pos < 0x10000 else (18 + mb)
                po = pos if pos < 0x10000 else pos - 0x10000
                if pos >= 0x20000:
                    va = (15, 63)[mb]; po = pos - 0x20000
                e("ds_read_b64_tr_b16 %s, v%d offset:%d" % (vr(b + 4 * mb + 2 * ip, 2), va, po + ip * 1024))
                e.lg_issue(("A", i, mb))
    nxt = pre
    e.vm_wait([("wd", steps[0]["kk"])])
    reads(0)
    for i in range(n):
        st = steps[i]
        if nxt < n:
            q_issue_h(e, steps[nxt]); nxt += 1
            if nxt == n and extra: extra()
        late = (barrier_before is not None and i + 1 == barrier_before)
        if i + 1 < n and not late:
            e.vm_wait([("wd", steps[i + 1]["kk"])])
            reads(i + 1)
        e.vm_wait([st["tag"]])
        b = Q_A + 8 * (i & 1)
        for mb in range(2):
            e.lg_wait([("A", i, mb)])
            for nb in range(2):
                mfma(e, Q_ACC + 16 * (2 * mb + nb), b + 4 * mb, st["hreg"] + 4 * nb, "0" if (i == 0 and init_zero) else None)
        if late:
            e("s_barrier")
            reads(i + 1)
        if after_i: after_i(i)
    assert not e.lg and nxt >= n

def flags_line(e, part):
    e("s_lshr_b32 s43, s%d, 1" % S_T1)
    e("s_lshl_b32 s43, s43, 9")
    e("s_add_u32 s%d, s43, 0x%x" % (S_PF, FLAGS + 256 * part))

def q_loader_A(e, cfg):
    for i in range(4):
        e("v_add_u32 v%d, %d, v%d" % (20 + i, 896 * 896, 26 + i))
    stamp(e, cfg, 5)
    def after_i(i):
        if i == 1:
            dma_group(e, 62, q_pos(1, 12), [(S_WD, 20 + k, 44 + 6, k * 1024, ("wdb", 6)) for k in range(4)])
        if (i & 1) and 3 <= (i >> 1) < 6 - cfg.nca:
            c = i >> 1
            dma_group(e, 62, q_pos(1, 2 * c), [(S_WD, 20 + k, 44 + c, k * 1024, ("wdb", c)) for k in range(4)])
    q_mainloop(e, cfg, cfg.stepsA, True, cfg.hpre, None, after_i)
    stamp(e, cfg, 6)
    e("v_lshlrev_b32 v2, 4, v%d" % V_LANE)
    e("v_add_u32 v2, s62, v2")
    e("v_add_u32 v3, 0x10000, v2")
    e("s_nop 7"); e("s_nop 3")
    for tl, (va, off) in enumerate(((2, 16384), (2, 32768), (3, 6 * 16384 - 0x10000))):
        for qq in range(4):
            e("ds_write_b128 v%d, %s offset:%d" % (va, vr(Q_ACC + 16 * tl + 4 * qq, 4), off + qq * 1024))
    e("s_waitcnt vmcnt(0) lgkmcnt(0)")
    e.vm = []
    e("s_barrier")
    stamp(e, cfg, 7)
    e("v_add_u32 v3, 0x%x, v2" % WB2)
    for qq in range(4):
        e("ds_write_b128 v3, %s offset:%d" % (vr(Q_ACC + 48 + 4 * qq, 4), qq * 1024))
    e("s_waitcnt lgkmcnt(0)")
    e("s_barrier")

def tprime(e):
    L = V_LANE
    e("s_cmp_lg_u32 s%d, 0" % S_T1)
    e("s_cselect_b32 s76, s63, 0")
    e("v_add_u32 v2, s76, v14")
    e("v_lshrrev_b32 v8, 5, v%d" % L)
    e("v_lshlrev_b32 v8, 2, v8")
    e("s_lshl_b32 s77, s%d, 4" % SI)
    e("v_add_u32 v8, s77, v8")
    e("s_lshl_b32 s76, s63, 31")
    e("s_mov_b32 s77, 0x%08x" % f2u(1.0 / 64))
    for nb in range(2):
        if nb: e("v_add_u32 v2, 32, v2")
        e("v_xor_b32 v21, s76, v%d" % (22 + nb))
        for u in range(2):
            for q in range(4):
                e("v_add_u32 v3, %d, v8" % (8 * u + q))
                e("v_mul_u32_u24 v3, v3, v2")
                e("v_and_b32 v3, 63, v3")
                e("v_cvt_f32_u32 v3, v3")
                e("v_mul_f32 v3, s77, v3")
                e("v_cos_f32 v5, v3")
                e("v_sin_f32 v6, v3")
                e("s_nop 0")
                e("v_mul_f32 v5, v5, v%d" % (22 + nb))
                e("v_mul_f32 v6, v6, v21")
                e("v_cvt_pk_bf16_f32 v%d, v5, v6" % (T_REG + 8 * nb + 4 * u + q))
    for nb in range(2):
        e("v_sub_f32 v%d, 1.0, v%d" % (40 + 2 * nb, 22 + nb))
        e("v_mov_b32 v%d, v%d" % (41 + 2 * nb, 40 + 2 * nb))

T_REG = 44
U_REG = 128
def q_consumer_B(e, cfg):
    L = V_LANE
    q_setup(e, 1, 26)
    q_setup2(e, 1)
    e("v_subrev_u32 v9, %d, v13" % (56 * 2048))
    srd(e, S_OUT, 46, 1835008)
    srd(e, S_WD, 56, 1605632)
    q_table(e, 44, 2 * 16 * 896)
    q_table(e, 51, 4096)
    e.vm_wait(["pollA"])
    okA = e.newlabel("AOK")
    topA = e.newlabel("ATOP")
    e("s_mov_b32 s41, 0")
    e.label(topA)
    e("v_cmp_eq_u32 vcc, s%d, v60" % S_NONCE)
    e("s_nop 1")
    e("s_and_b32 s42, vcc_lo, 0x3fff")
    e("s_cmp_eq_u32 s42, 0x3fff")
    e("s_cselect_b32 s42, vcc_hi, 0")
    e("s_cmp_eq_u32 s42, -1")
    e("s_cbranch_scc1 %s" % okA)
    e("s_add_u32 s41, s41, 1")
    e("s_cmp_ge_u32 s41, 0x40000")
    e("s_cbranch_scc1 %s" % okA)
    poll_issue(e)
    e("s_waitcnt vmcnt(0)")
    e("s_branch %s" % topA)
    e.label(okA)
    stepsCA = q_steps(0, list(range(2 * (6 - cfg.nca), 12)), 9)
    for st in stepsCA[:cfg.preCA]: q_issue_h(e, st)
    e("s_cmp_ge_u32 s%d, 4" % S_C)
    e("s_cselect_b32 s63, 1, 0")
    e("s_sub_u32 s64, 32, s%d" % S_T1)
    e("s_and_b32 s64, s64, 31")
    e("s_cmp_eq_u32 s63, 1")
    e("s_cselect_b32 s64, s64, s%d" % S_T1)
    e("v_lshrrev_b32 v8, 5, v%d" % L)
    e("s_lshl_b32 s41, s%d, 6" % S_C)
    e("s_cmp_eq_u32 s63, 1")
    e("s_cselect_b64 vcc, -1, 0")
    for mb in range(2):
        e("v_add_u32 v2, s41, v14")
        if mb: e("v_add_u32 v2, 32, v2")
        e("v_sub_u32 v3, 448, v2")
        e("v_cndmask_b32 v2, v2, v3, vcc")
        e("v_lshlrev_b32 v2, 4, v2")
        e("v_lshlrev_b32 v3, 12, v8")
        e("v_add_u32 v%d, v2, v3" % (16 + mb))
    e("s_lshl_b32 s41, s64, 4")
    e("s_lshl_b32 s42, s%d, 2" % SI)
    e("s_add_u32 s41, s41, s42")
    e("s_lshl_b32 s41, s41, 12")
    e("s_add_u32 s65, s41, 0x%x" % UBUF)
    e("s_lshl_b32 s41, s%d, 6" % S_T1)
    e("v_add_u32 v2, s41, v14")
    e("v_lshlrev_b32 v2, 2, v2")
    e("v_add_u32 v20, 0x%x, v2" % GBUF)
    e("s_mul_i32 s41, s61, 12")
    e("s_lshl_b32 s42, s%d, 2" % S_WAVE)
    e("s_add_u32 s41, s41, s42")
    e("s_add_u32 s41, s41, 256")
    e("s_add_u32 s%d, s%d, s41" % (S_FLAG, S_FLAG))
    e.vm_wait(["hst"])
    stamp(e, cfg, 6)
    flag_store(e)
    e.vm_issue("flagB")
    for nb in range(2):
        e("buffer_load_dword v%d, v20, s[%d:%d], 0 offen offset:%d sc1" % (22 + nb, S_WS, S_WS + 3, nb * 128))
        e.vm_issue("g")
    for st in stepsCA[cfg.preCA:]: q_issue_h(e, st)
    for c in range(3): q_dma_pair(e, 1, c, 26, 44)
    e.vm_wait(["g"])
    tprime(e)
    def afterA(i):
        if i & 1:
            c = 6 - cfg.nca + (i >> 1)
            q_dma_pair(e, 1, c, 26, 44)
    if stepsCA:
        q_mainloop(e, cfg, stepsCA, True, len(stepsCA), None, afterA)
    stamp(e, cfg, 4)
    flags_line(e, 1)
    poll_prep(e, S_PF, 56)
    poll_loop56(e)
    stamp(e, cfg, 5)
    e.vm = []
    e("v_lshlrev_b32 v62, 2, v%d" % V_LANE)
    e("v_add_u32 v62, 0x%x, v62" % (FLAGS + 16 * 512))
    e("v_mov_b32 v60, 0x7fffffff")
    e("v_cmp_gt_u32 vcc, 32, v%d" % V_LANE)
    e("s_nop 1")
    e("v_cndmask_b32 v62, v60, v62, vcc")
    def uloads():
        for u in range(2):
            for mb in range(2):
                e("s_add_u32 s%d, s65, %d" % (S_OFF, u * 2 * 4096))
                e("buffer_load_dwordx4 %s, v%d, s[%d:%d], s%d offen sc1" % (vr(U_REG + 8 * u + 4 * mb, 4), 16 + mb, S_WS, S_WS + 3, S_OFF))
                e.vm_issue("u")
    def dflag_issue():
        e("buffer_load_dword v10, v62, s[%d:%d], 0 offen sc1" % (S_WS, S_WS + 3))
        e.vm_issue("dflag")
    def after_k(kk):
        if kk == cfg.dchk:
            ok = e.newlabel("DOK"); top = e.newlabel("DSP")
            e.vm_wait(["dflag"])
            sv = list(e.vm)
            e("s_mov_b32 s41, 0")
            e.label(top)
            e("v_cmp_eq_u32 vcc, s%d, v10" % S_NONCE)
            e("s_nop 1")
            e("s_cmp_eq_u32 vcc_lo, -1")
            e("s_cbranch_scc1 %s" % ok)
            e("s_add_u32 s41, s41, 1")
            e("s_cmp_ge_u32 s41, 0x40000")
            e("s_cbranch_scc1 %s" % ok)
            e("buffer_load_dword v10, v62, s[%d:%d], 0 offen sc1" % (S_WS, S_WS + 3))
            e("s_waitcnt vmcnt(0)")
            e("s_branch %s" % top)
            e.label(ok)
            e.vm = sv
            uloads()
    stepsB = q_steps(1, list(range(14)), 13)
    for i in range(cfg.hpreB): q_issue_h(e, stepsB[i])
    q_mainloop(e, cfg, stepsB, cfg.nca == 0, cfg.hpreB, dflag_issue, after_k, 2 if cfg.nca == 3 else 6)
    stamp(e, cfg, 7)
    e("s_nop 7"); e("s_nop 3")
    for mb in range(2):
        for nb in range(2):
            D = Q_ACC + 16 * (2 * mb + nb)
            for i in range(0, 16, 2):
                e("v_pk_mul_f32 %s, %s, %s" % (vr(D + i, 2), vr(D + i, 2), vr(40 + 2 * nb, 2)))
    e.vm_wait(["u"])
    e("s_nop 1")
    for u in range(2):
        for mb in range(2):
            for nb in range(2):
                mfma(e, Q_ACC + 16 * (2 * mb + nb), U_REG + 8 * u + 4 * mb, T_REG + 8 * nb + 4 * u)
    e("v_lshlrev_b32 v2, 4, v%d" % L)
    e("s_add_u32 s41, s%d, 2" % SI)
    e("s_cmp_eq_u32 s%d, 0" % SI)
    e("s_cselect_b32 s41, 0, s41")
    e("s_lshl_b32 s41, s41, 14")
    e("v_add_u32 v3, s41, v2")
    e("s_add_u32 s41, s%d, 1" % SI)
    e("s_lshl_b32 s41, s41, 14")
    e("s_cmp_eq_u32 s%d, 2" % SI)
    e("s_cselect_b32 s41, %d, s41" % (6 * 16384))
    e("s_cmp_eq_u32 s%d, 3" % SI)
    e("s_cselect_b32 s41, 0x%x, s41" % WB2)
    e("v_add_u32 v5, s41, v2")
    e("s_lshl_b32 s41, s%d, 12" % SI)
    e("v_add_u32 v6, s41, v2")
    e("v_add_u32 v7, 0x10000, v6")
    e("s_and_b32 s41, s%d, 1" % SI)
    e("s_cmp_eq_u32 s41, 1")
    e("s_cselect_b64 vcc, -1, 0")
    e("s_lshl_b32 s41, s41, 5")
    e("v_add_u32 v8, s41, v14")
    e("v_cndmask_b32 v40, v40, v42, vcc")
    e("v_mov_b32 v41, v40")
    e("v_lshlrev_b32 v8, 5, v8")
    e("v_add_u32 v8, s%d, v8" % S_T1)
    e("s_movk_i32 s42, 896")
    e("v_mul_lo_u32 v8, v8, s42")
    e("s_lshl_b32 s41, s%d, 7" % S_C)
    e("s_lshr_b32 s42, s%d, 1" % SI)
    e("s_lshl_b32 s42, s42, 6")
    e("s_add_u32 s41, s41, s42")
    e("v_lshrrev_b32 v9, 5, v%d" % L)
    e("v_lshlrev_b32 v9, 4, v9")
    e("v_add3_u32 v8, v8, v9, s41")
    e("s_barrier")
    regions = ((6, 0), (6, 3 * 16384), (7, 0), (7, 16384))
    done = e.newlabel("XDONE")
    labs = [e.newlabel("XV%d_" % w) for w in range(4)]
    for w in range(1, 4):
        e("s_cmp_eq_u32 s%d, %d" % (SI, w))
        e("s_cbranch_scc1 %s" % labs[w])
    for w in range(4):
        e.label(labs[w])
        others = [t for t in range(4) if t != w]
        for tl in others:
            for qq in range(4):
                e("ds_write_b128 v3, %s offset:%d" % (vr(Q_ACC + 16 * tl + 4 * qq, 4), tl * 4096 + qq * 1024))
            if tl == others[1]: e("s_waitcnt lgkmcnt(4)")
        for k in range(4):
            for qq in range(4):
                e("ds_read_b128 %s, v5 offset:%d" % (vr(192 + 16 * k + 4 * qq, 4), k * 4096 + qq * 1024))
            if k in (0, 1, 2): e("s_waitcnt lgkmcnt(8)")
        for q in range(0, 16, 2):
            e("v_pk_mul_f32 %s, %s, 1.0 op_sel_hi:[1,0]" % (vr(128 + q, 2), vr(Q_ACC + 16 * w + q, 2)))
        e("s_waitcnt lgkmcnt(0)")
        e("s_barrier")
        for n, k in enumerate(others):
            va, off = regions[k]
            for qq in range(4):
                e("ds_read_b128 %s, v%d offset:%d" % (vr(144 + 16 * n + 4 * qq, 4), va, off + qq * 1024))
        if w < 3: e("s_branch %s" % done)
    e.label(done)
    for q in range(0, 16, 2):
        e("v_pk_add_f32 %s, %s, %s" % (vr(192 + q, 2), vr(192 + q, 2), vr(208 + q, 2)))
        e("v_pk_add_f32 %s, %s, %s" % (vr(224 + q, 2), vr(224 + q, 2), vr(240 + q, 2)))
    for q in range(0, 16, 2):
        e("v_pk_add_f32 %s, %s, %s" % (vr(192 + q, 2), vr(192 + q, 2), vr(224 + q, 2)))
    for q in range(0, 16, 2):
        e("v_pk_fma_f32 %s, %s, %s, %s" % (vr(128 + q, 2), vr(192 + q, 2), vr(40, 2), vr(128 + q, 2)))
    e("s_waitcnt lgkmcnt(0)")
    for q in range(0, 16, 2):
        e("v_pk_add_f32 %s, %s, %s" % (vr(144 + q, 2), vr(144 + q, 2), vr(160 + q, 2)))
        e("v_pk_add_f32 %s, %s, %s" % (vr(128 + q, 2), vr(128 + q, 2), vr(176 + q, 2)))
    for q in range(0, 16, 2):
        e("v_pk_add_f32 %s, %s, %s" % (vr(128 + q, 2), vr(128 + q, 2), vr(144 + q, 2)))
    for q in range(8):
        e("v_cvt_pk_bf16_f32 v%d, v%d, v%d" % (96 + q, 128 + 2 * q, 128 + 2 * q + 1))
    e("s_nop 1")
    for ih in range(2):
        e("v_permlane32_swap_b32 v%d, v%d" % (96 + 4 * ih, 98 + 4 * ih))
        e("v_permlane32_swap_b32 v%d, v%d" % (97 + 4 * ih, 99 + 4 * ih))
    for ih in range(2):
        e("buffer_store_dwordx4 %s, v8, s[%d:%d], 0 offen offset:%d%s" % (vr(96 + 4 * ih, 4), S_OUT, S_OUT + 3, ih * 32, OSC[0]))
    stamp(e, cfg, 8)

def kernel_fused2(e, cfg):
    name = "gated_mix__spectral_fnet__glu_gated_glu__prompt_kernel"
    header(e, name)
    if cfg.diag:
        e("s_memrealtime s[%d:%d]" % (S_STAMP + 6, S_STAMP + 7))
    e("s_cmp_ge_u32 s2, 256")
    e("s_cbranch_scc1 KF_END")
    kernarg_loads(e)
    entry_common(e)
    e("s_and_b32 s%d, s%d, 3" % (S_WF, S_WAVE))
    e("s_and_b32 s%d, s%d, 3" % (S_LW, S_WAVE))
    e("s_and_b32 s41, s2, 7")
    e("s_lshr_b32 s42, s2, 3")
    e("s_cmp_ge_u32 s42, 28")
    e("s_cbranch_scc1 P1_DFT")
    e("s_mul_i32 s43, s42, 37")
    e("s_lshr_b32 s43, s43, 8")
    e("s_mul_i32 s76, s43, 7")
    e("s_sub_u32 s76, s42, s76")
    e("s_lshr_b32 s77, s41, 1")
    e("s_lshl_b32 s77, s77, 2")
    e("s_add_u32 s%d, s77, s43" % S_R)
    e("s_and_b32 s77, s41, 1")
    e("s_mul_i32 s77, s77, 7")
    e("s_add_u32 s%d, s77, s76" % S_FB)
    e("s_cmp_lt_u32 s%d, 4" % S_WAVE)
    e("s_cbranch_scc1 P1_H_CONSUMER")
    e.vm = []; e.lg = []
    STG[0] = True
    h2_loader(e, cfg)
    q_loader_A(e, cfg)
    STG[0] = False
    stamp_store(e, cfg, 0)
    e("s_endpgm")
    e.label("P1_H_CONSUMER")
    e.vm = []; e.lg = []
    h2_consumer(e, cfg)
    q_consumer_B(e, cfg)
    stamp_store(e, cfg, 0)
    e("s_endpgm")
    e.label("P1_DFT")
    e("s_sub_u32 s42, s42, 28")
    e("s_and_b32 s%d, s41, 1" % S_EH)
    e("s_lshr_b32 s77, s41, 1")
    e("s_lshl_b32 s77, s77, 2")
    e("s_add_u32 s%d, s77, s42" % S_QG)
    e("s_cmp_ge_u32 s%d, 4" % S_WAVE)
    e("s_cbranch_scc1 P1_D_LOADER")
    e.vm = []; e.lg = []
    p1_consumer(e, cfg, False)
    d_epilogue(e, cfg)
    stamp(e, cfg, 3)
    e.vm_wait_all()
    e("s_barrier")
    lab = e.newlabel("DNOTW0")
    e("s_cmp_lg_u32 s%d, 0" % S_WAVE)
    e("s_cbranch_scc1 %s" % lab)
    flag_store(e)
    e("s_waitcnt vmcnt(0)")
    e.label(lab)
    stamp_store(e, cfg, 0)
    e("s_endpgm")
    e.label("P1_D_LOADER")
    e.vm = []; e.lg = []
    p1_loader(e, cfg, False)
    stamp(e, cfg, 3)
    e("s_waitcnt vmcnt(0)")
    e("s_barrier")
    stamp_store(e, cfg, 0)
    e("s_endpgm")
    e.label("KF_END")
    e("s_endpgm")
    e.label("KF_CODE_END")

def descriptor(name):
    return """.section .rodata,"a"
.p2align 6
.amdhsa_kernel %s
  .amdhsa_next_free_vgpr 256
  .amdhsa_next_free_sgpr 102
  .amdhsa_accum_offset 256
  .amdhsa_group_segment_fixed_size 0
  .amdhsa_kernarg_size 104
  .amdhsa_user_sgpr_count 2
  .amdhsa_user_sgpr_kernarg_segment_ptr 1
  .amdhsa_system_sgpr_workgroup_id_x 1
.end_amdhsa_kernel
""" % name

def main():
    cfg = Cfg()
    cfg.pro_extra = 8; cfg.stage_budget = 8; cfg.p2_la = 3; cfg.p2_dpoll = 4; cfg.stage_budget2 = 6; cfg.flagA_bar = 22; cfg.epi_rate = 0; cfg.epi_start = 1; cfg.epoll = 26; cfg.hpre = 5; cfg.preCA = 0; cfg.nca = 2; cfg.hpreB = 5; cfg.dchk = 11; cfg.gate_j = 5; cfg.gflag_k = 9; cfg.ncx = 0; cfg.gate_g = 14; cfg.gate_rate = 3; cfg.defer_rate = 3; cfg.pfWd_j = 1; cfg.pfW_j = 1
    out = sys.argv[1]
    for a in sys.argv[2:]:
        if a == "nop2rot": P2ROT[0] = 0
        if a == "rmul1": RMUL[0] = 1
        if a == "osc1": OSC[0] = " sc1"
        if a == "ont": OSC[0] = " nt"
        if a == "osc01": OSC[0] = " sc0 sc1"
        if a == "hplain": HSC[0] = ""
        if a == "hnt": HSC[0] = " nt"
        if a == "hsc01": HSC[0] = " sc0 sc1"
        if a == "diag": cfg.diag = True
        elif a == "fused": cfg.fused = True
        elif "=" in a:
            k, v = a.split("="); setattr(cfg, k, int(v))
        else: cfg.x = cfg.x | {a}
    e = Em()
    if cfg.fused:
        name = "gated_mix__spectral_fnet__glu_gated_glu__prompt_kernel"
        hdr = "; generated by gen2.py (fused)\n; @launch grid=(256,1,1) block=(512,1,1) lds=163840\n"
        hdr += '.amdgcn_target "amdgcn-amd-amdhsa--gfx950"\n'
        kernel_fused2(e, cfg)
        open(out, "w").write(hdr + e.text() + descriptor(name))
        return
    hdr = "; generated by gen2.py\n"
    hdr += "; @launch kernel=k1_kernel grid=(256,1,1) block=(512,1,1) lds=163840\n"
    hdr += "; @launch kernel=k2_kernel grid=(256,1,1) block=(512,1,1) lds=163840\n"
    hdr += '.amdgcn_target "amdgcn-amd-amdhsa--gfx950"\n'
    kernel1(e, cfg)
    kernel2(e, cfg)
    txt = hdr + e.text() + descriptor("k1_kernel") + descriptor("k2_kernel")
    open(out, "w").write(txt)
if __name__ == "__main__":
    main()
```

```python
import sys, math, struct

def f2u(f): return struct.unpack("<I", struct.pack("<f", f))[0]

class Em:
    def __init__(self):
        self.lines = []
        self.vm = []
        self.lg = []
        self.nlab = 0
    def __call__(self, s): self.lines.append("    " + s)
    def raw(self, s): self.lines.append(s)
    def label(self, s): self.lines.append(s + ":")
    def newlabel(self, p):
        self.nlab += 1
        return "%s_%d" % (p, self.nlab)
    def vm_issue(self, tag): self.vm.append(tag)
    def vm_wait(self, tags):
        last = -1
        for i, t in enumerate(self.vm):
            if t in tags: last = i
        if last < 0: return
        n = len(self.vm) - 1 - last
        assert n <= 63, n
        self("s_waitcnt vmcnt(%d)" % n)
        self.vm = self.vm[last + 1:]
    def vm_wait_all(self):
        self("s_waitcnt vmcnt(0)"); self.vm = []
    def lg_issue(self, tag): self.lg.append(tag)
    def lg_wait(self, tags):
        last = -1
        for i, t in enumerate(self.lg):
            if t in tags: last = i
        if last < 0: return
        n = len(self.lg) - 1 - last
        assert n <= 15, n
        self("s_waitcnt lgkmcnt(%d)" % n)
        self.lg = self.lg[last + 1:]
    def lg_wait_all(self):
        self("s_waitcnt lgkmcnt(0)"); self.lg = []
    def text(self): return "\n".join(self.lines) + "\n"

def vr(a, n=1): return "v%d" % a if n == 1 else "v[%d:%d]" % (a, a + n - 1)

HBUF = 0
UBUF = 0x700000
GBUF = 0x900000
FLAGS = 0x910000
DIAG = 0xA00000
WS_BYTES = 0x1000000
LOG2E = 1.4426950408889634

S_X = 8; S_WA = 12; S_WB = 16; S_WS = 20; S_GW = 24; S_OUT = 28; S_WD = 32; S_DBG = 36
S_WAVE = 40
S_R = 60; S_FB = 61; S_QG = 62; S_EH = 63
S_WF = 64; S_LW = 65
S_LDSW = 66; S_LDSX = 67
S_OFF = 68
S_T1 = 70; S_C = 71
S_STAMP = 80
S_NONCE = 98; S_FLAG = 99; S_PF = 100
V_LANE = 1

class Cfg:
    fused = False
    diag = False
    x = set()

def kernarg_loads(e):
    e("s_load_dwordx2 s[44:45], s[0:1], 0")
    e("s_load_dwordx4 s[48:51], s[0:1], 24")
    e("s_load_dwordx4 s[52:55], s[0:1], 48")
    e("s_load_dwordx4 s[56:59], s[0:1], 64")
    e("s_load_dwordx2 s[46:47], s[0:1], 80")
    e("s_load_dwordx4 s[72:75], s[0:1], 88")

def srd(e, dst, lo, nbytes):
    e("s_mov_b32 s%d, s%d" % (dst, lo))
    e("s_and_b32 s%d, s%d, 0xffff" % (dst + 1, lo + 1))
    e("s_mov_b32 s%d, 0x%x" % (dst + 2, nbytes))
    e("s_mov_b32 s%d, 0x20000" % (dst + 3))

NSTAMP = 6
STG = [False]
def stamp(e, cfg, k):
    if cfg.diag and not ("stg" in cfg.x and k in (4,5,6,7) and STG[0]):
        assert not e.lg
        e("s_memrealtime s[%d:%d]" % (S_STAMP + 2 * k, S_STAMP + 2 * k + 1))
        if k in (1, 2) and not cfg.fused:
            e("s_memtime s[%d:%d]" % (S_STAMP + 12 + 2 * (k - 1), S_STAMP + 13 + 2 * (k - 1)))
        e("s_waitcnt lgkmcnt(0)")

def stamp_store(e, cfg, slot_base):
    if not cfg.diag: return
    e("s_lshl_b32 s41, s2, 3")
    e("s_add_u32 s41, s41, s%d" % S_WAVE)
    e("s_lshl_b32 s41, s41, 6")
    e("s_add_u32 s41, s41, 0x%x" % (DIAG + slot_base))
    e("v_mov_b32 v1, s41")
    for k in range(9 if cfg.fused else NSTAMP + 2):
        e("v_mov_b32 v2, s%d" % (S_STAMP + 2 * k))
        e("buffer_store_dword v2, v1, s[%d:%d], 0 offen offset:%d" % (S_WS, S_WS + 3, 4 * k))
        e("s_nop 1")
    e("v_mov_b32 v2, s7")
    e("buffer_store_dword v2, v1, s[%d:%d], 0 offen offset:36" % (S_WS, S_WS + 3))
    e("s_waitcnt vmcnt(0)")

def mfma(e, d, a, b, c=None):
    cs = vr(d, 16) if c is None else c
    e("v_mfma_f32_32x32x16_bf16 %s, %s, %s, %s" % (vr(d, 16), vr(a, 4), vr(b, 4), cs))

NODMA = [False]
def dma_group(e, sldsbase, ldsconst, items):
    e("s_add_u32 m0, s%d, 0x%x" % (sldsbase, ldsconst))
    e("s_nop 0")
    for (srdreg, vaddr, soff, ioff, tag) in items:
        e("buffer_load_dwordx4 v%d, s[%d:%d], s%d offen offset:%d lds" % (vaddr, srdreg, srdreg + 3, soff, ioff))
        e.vm_issue(tag)
def fill_table(e, first, n, scnt, mod, emit):
    for c in range(n):
        emit(first + c)
        if c + 1 < n: rot_next(e, scnt, mod)
def rot_next(e, sreg, n):
    e("s_add_u32 s%d, s%d, 1" % (sreg, sreg))
    e("s_cmp_eq_u32 s%d, %d" % (sreg, n))
    e("s_cselect_b32 s%d, 0, s%d" % (sreg, sreg))
def dma(e, srdreg, vaddr, ldsconst, sldswave, soff, tag):
    if NODMA[0]:
        e.vm_issue(tag); e.vm.pop(); return
    e("s_add_u32 m0, s%d, 0x%x" % (sldswave, ldsconst))
    if soff is None:
        e("s_nop 0")
    else:
        e("s_mov_b32 s%d, 0x%x" % (S_OFF, soff))
    e("buffer_load_dwordx4 v%d, s[%d:%d], s%d offen lds" % (vaddr, srdreg, srdreg + 3, S_OFF))
    e.vm_issue(tag)

XSLOT = 16384; NX = 4
WBASE = 65536; NW = 6; WSLOT = 16384
ACC = 64
def accA(i): return ACC + 16 * i
def accB(i): return ACC + 64 + 16 * i
FR = 192
V_XA = 10
V_WA = 14
CONST_LDS = 0

def p1_consumer_addr(e, is_h):
    L = V_LANE; T = 26
    e("v_and_b32 v%d, 31, v%d" % (T, L))
    e("v_lshrrev_b32 v%d, 5, v%d" % (T + 1, L))
    e("v_lshrrev_b32 v%d, 1, v%d" % (T + 2, T))
    e("v_and_b32 v%d, 7, v%d" % (T + 2, T + 2))
    e("v_lshlrev_b32 v%d, 7, v%d" % (T + 3, T))
    if not is_h:
        e("s_lshl_b32 s41, s%d, 5" % S_WF)
        e("v_add_u32 v%d, s41, v%d" % (T + 5, T))
        e("v_lshlrev_b32 v%d, 7, v%d" % (T + 5, T + 5))
        e("v_add_u32 v%d, 0x%x, v%d" % (T + 5, WBASE, T + 5))
    for k in range(4):
        e("v_add_u32 v%d, %d, v%d" % (T + 4, 2 * k, T + 1))
        e("v_xor_b32 v%d, v%d, v%d" % (T + 4, T + 4, T + 2))
        e("v_lshlrev_b32 v%d, 4, v%d" % (T + 4, T + 4))
        e("v_add_u32 v%d, v%d, v%d" % (V_XA + k, T + 3, T + 4))
        if not is_h:
            e("v_add_u32 v%d, v%d, v%d" % (V_WA + k, T + 5, T + 4))
            e("v_add_u32 v%d, 0x10000, v%d" % (V_WA + 4 + k, V_WA + k))
    if is_h:
        e("v_and_b32 v%d, 15, v%d" % (T + 4, L))
        e("v_lshrrev_b32 v%d, 2, v%d" % (T + 5, T + 4))
        e("v_lshlrev_b32 v%d, 3, v%d" % (T + 6, T + 1))
        e("v_add_u32 v%d, v%d, v%d" % (T + 6, T + 6, T + 5))
        e("v_lshlrev_b32 v%d, 8, v%d" % (T + 6, T + 6))
        e("v_xor_b32 v%d, s%d, v%d" % (T + 7, S_WF, T + 5))
        e("v_lshlrev_b32 v%d, 6, v%d" % (T + 7, T + 7))
        e("v_add_u32 v%d, v%d, v%d" % (T + 6, T + 6, T + 7))
        e("v_bfe_u32 v%d, v%d, 4, 1" % (T + 7, L))
        e("v_lshlrev_b32 v%d, 5, v%d" % (T + 7, T + 7))
        e("v_add_u32 v%d, v%d, v%d" % (T + 6, T + 6, T + 7))
        e("v_and_b32 v%d, 3, v%d" % (T + 7, T + 4))
        e("v_lshlrev_b32 v%d, 3, v%d" % (T + 7, T + 7))
        e("v_add_u32 v%d, v%d, v%d" % (T + 6, T + 6, T + 7))
        e("v_add_u32 v%d, 0x%x, v%d" % (V_WA, WBASE, T + 6))
        e("v_add_u32 v%d, 0x%x, v%d" % (V_WA + 1, WBASE + 0x10000, T + 6))

def p1_reads(kap, is_h):
    base = FR + 24 * (kap & 1)
    c = kap >> 2; kk4 = kap & 3
    def xr(nb): return (("X", kap, nb), "ds_read_b128 %s, v%d offset:%d" % (vr(base + 4 * nb, 4), V_XA + kk4, (c % NX) * XSLOT + nb * 4096))
    if is_h:
        j = kap >> 1; kk = kap & 1
        slot = (j % NW) * WSLOT
        va = V_WA + (1 if slot >= 0x10000 else 0); so = slot & 0xffff
        def wr(m, ip): return (("W", kap, m), "ds_read_b64_tr_b16 %s, v%d offset:%d" % (vr(base + 16 + 4 * m + 2 * ip, 2), va, so + m * 8192 + (16 * kk + 4 * ip) * 256))
        return [wr(0, 0), wr(0, 1), xr(0), wr(1, 0), wr(1, 1), xr(1), xr(2), xr(3)]
    else:
        slot = (c % 3) * 32768
        va = V_WA + kk4 + (4 if slot >= 0x10000 else 0); so = slot & 0xffff
        def wr(m): return (("W", kap, m), "ds_read_b128 %s, v%d offset:%d" % (vr(base + 16 + 4 * m, 4), va, so + m * 16384))
        return [wr(0), xr(0), wr(1), xr(1), xr(2), xr(3)]

def p1_consumer(e, cfg, is_h):
    p1_consumer_addr(e, is_h)
    e("s_waitcnt lgkmcnt(0)")
    srd(e, S_WS, 74, WS_BYTES)
    if cfg.fused:
        flag_addr(e, is_h)
        nonce_issue(e)
    if not is_h:
        srd(e, S_X, 44, 1835008)
        srd(e, S_GW, 58, 896)
        e("s_mov_b32 s%d, s%d" % (S_LW, S_WAVE))
        gate4_issue(e)
        for p in range(4): gate4_pass(e, p)
    stamp(e, cfg, 0)
    if (not is_h) and "pfcode" in cfg.x:
        lab = e.newlabel("PC")
        e("s_getpc_b64 s[42:43]")
        e.label(lab)
        e("s_sub_u32 s42, s42, (%s - gated_mix__spectral_fnet__glu_gated_glu__prompt_kernel)" % lab)
        e("s_subb_u32 s43, s43, 0")
        e("s_lshr_b32 s41, s2, 3")
        e("s_sub_u32 s41, s41, 28")
        e("s_lshl_b32 s41, s41, 2")
        e("s_add_u32 s41, s41, s%d" % S_WAVE)
        e("s_mul_i32 s41, s41, 16")
        e("v_and_b32 v9, 15, v%d" % V_LANE)
        e("v_add_u32 v8, s41, v9")
        e("v_lshlrev_b32 v8, 7, v8")
        e("v_min_u32 v8, (KF_CODE_END - gated_mix__spectral_fnet__glu_gated_glu__prompt_kernel - 4), v8")
        e("v_mov_b32 v9, s43")
        e("v_add_co_u32 v8, vcc, s42, v8")
        e("s_nop 1")
        e("v_addc_co_u32 v9, vcc, 0, v9, vcc")
        e("global_load_dword v3, v[8:9], off")
    e("s_barrier")
    stamp(e, cfg, 1)
    for tag, txt in p1_reads(0, is_h):
        e(txt); e.lg_issue(tag)
    for kap in range(28):
        base = FR + 24 * (kap & 1)
        nxt = p1_reads(kap + 1, is_h) if kap + 1 < 28 else []
        for n in range(8):
            nb = n >> 1; m = n & 1
            e.lg_wait([("W", kap, m), ("X", kap, nb)])
            d = accA(nb) if m == 0 else accB(nb)
            W = base + 16 + 4 * m; X = base + 4 * nb
            c = "0" if kap == 0 else None
            if "no32" in cfg.x:
                for hh in range(2):
                    e("v_mfma_f32_16x16x32_bf16 %s, %s, %s, %s" % (vr(d + 8 * hh, 4), vr(W, 4), vr(X, 4), vr(d + 8 * hh, 4)))
            elif "nomfma" not in cfg.x:
                if is_h: mfma(e, d, W, X, c)
                else: mfma(e, d, X, W, c)
            if nxt and n < len(nxt):
                tag, txt = nxt[n]
                if "nolds" in cfg.x: e.lg_issue(tag); e.lg.pop()
                else:
                    e(txt); e.lg_issue(tag)
        if (not is_h) and kap == cfg.gflag_k - 4:
            nonce_load(e)
        if (not is_h) and kap == cfg.gflag_k:
            e("s_waitcnt vmcnt(0)"); e.vm = []
        if (kap & 1) and kap < 27:
            e("s_barrier")
        if (not is_h) and kap == cfg.gflag_k:
            lab = e.newlabel("GF")
            e("s_cmp_lg_u32 s%d, 0" % S_WAVE)
            e("s_cbranch_scc1 %s" % lab)
            nonce_finish_any(e, keepvm=True)
            e("s_add_u32 s%d, s%d, 128" % (S_FLAG, S_FLAG))
            flag_store(e)
            e("s_sub_u32 s%d, s%d, 128" % (S_FLAG, S_FLAG))
            e.label(lab)
        if cfg.fused and kap == 21:
            nonce_load(e)
    assert not e.lg
    if cfg.fused and is_h:
        e("s_barrier")
    if cfg.fused:
        nonce_finish(e)
    stamp(e, cfg, 2)

def h_epilogue(e, cfg):
    sc = " sc1" if cfg.fused else ""
    e("s_lshl_b32 s41, s%d, 1" % S_R)
    e("s_mul_i32 s41, s41, 112")
    e("s_lshl_b32 s42, s%d, 2" % S_FB)
    e("s_add_u32 s42, s42, s%d" % S_WF)
    e("s_lshl_b32 s42, s42, 1")
    e("s_add_u32 s41, s41, s42")
    e("s_lshl_b32 s41, s41, 11")
    e("v_lshlrev_b32 v26, 4, v%d" % V_LANE)
    e("v_add_u32 v26, s41, v26")
    e("v_add_u32 v27, 0x%x, v26" % (112 * 2048))
    e("s_mov_b32 s42, 0x%08x" % f2u(-LOG2E))
    e("s_mov_b32 s43, s42")
    e("s_mov_b32 s44, 1.0")
    e("s_mov_b32 s45, 1.0")
    e("s_nop 7")
    grp = 0
    for nb in range(4):
        for hf in range(2):
            outb = FR + 4 * (grp % 8); grp += 1
            A = accA(nb) + 8 * hf; B = accB(nb) + 8 * hf
            for q in range(0, 8, 2):
                e("v_pk_mul_f32 %s, %s, s[42:43]" % (vr(A + q, 2), vr(A + q, 2)))
            for q in range(8):
                e("v_exp_f32 v%d, v%d" % (A + q, A + q))
            for q in range(0, 8, 2):
                e("v_pk_add_f32 %s, %s, s[44:45]" % (vr(A + q, 2), vr(A + q, 2)))
            for q in range(8):
                e("v_rcp_f32 v%d, v%d" % (A + q, A + q))
            for q in range(0, 8, 2):
                e("v_pk_mul_f32 %s, %s, %s" % (vr(A + q, 2), vr(A + q, 2), vr(B + q, 2)))
            for q2 in range(4):
                e("v_cvt_pk_bf16_f32 v%d, v%d, v%d" % (outb + q2, A + 2 * q2, A + 2 * q2 + 1))
            e("buffer_store_dwordx4 %s, v%d, s[%d:%d], 0 offen offset:%d%s" % (vr(outb, 4), 26 + (nb >> 1), S_WS, S_WS + 3, hf * 2048 + (nb & 1) * 1024, sc))
            e.vm_issue("hst")

def d_epilogue(e, cfg):
    sc = " sc1" if cfg.fused else ""
    L = V_LANE
    ZB = [192, 208, 224, 240]
    e("s_nop 7"); e("s_nop 3")
    for sb in range(4):
        for hf in range(2):
            for pr in range(4):
                q = 8 * hf + 2 * pr
                e("v_cvt_pk_bf16_f32 v%d, v%d, v%d" % (ZB[sb] + 4 * hf + pr, accA(sb) + q, accA(sb) + q + 1))
                e("v_cvt_pk_bf16_f32 v%d, v%d, v%d" % (ZB[sb] + 8 + 4 * hf + pr, accB(sb) + q, accB(sb) + q + 1))
    e("s_barrier")
    e("v_lshlrev_b32 v2, 4, v%d" % L)
    def cread(sb):
        b = 10 + 24 * (sb & 1)
        for k in range(6):
            e("ds_read_b128 %s, v2 offset:%d" % (vr(b + 4 * k, 4), CONST_LDS + (sb * 6 + k) * 1024))
            e.lg_issue(("c", sb, k))
    cread(0); cread(1)
    for sb in range(4):
        b = 10 + 24 * (sb & 1)
        C0, C1, S0, S1, N0, N1 = [b + 4 * k for k in range(6)]
        ZR0, ZR1, ZI0, ZI1 = ZB[sb], ZB[sb] + 4, ZB[sb] + 8, ZB[sb] + 12
        e.lg_wait([("c", sb, k) for k in range(6)])
        mfma(e, accA(sb), C0, ZR0, "0")
        mfma(e, accB(sb), C0, ZI0, "0")
        mfma(e, accA(sb), C1, ZR1)
        mfma(e, accB(sb), C1, ZI1)
        mfma(e, accA(sb), S0, ZI0)
        mfma(e, accB(sb), N0, ZR0)
        mfma(e, accA(sb), S1, ZI1)
        mfma(e, accB(sb), N1, ZR1)
        if sb + 2 < 4:
            cread(sb + 2)
    e("s_lshl_b32 s41, s%d, 8" % S_QG)
    e("s_lshl_b32 s42, s%d, 7" % S_EH)
    e("s_add_u32 s41, s41, s42")
    e("s_lshl_b32 s42, s%d, 5" % S_WF)
    e("s_add_u32 s41, s41, s42")
    e("s_lshl_b32 s41, s41, 4")
    e("s_add_u32 s41, s41, 0x%x" % UBUF)
    e("v_and_b32 v3, 31, v%d" % L)
    e("v_lshlrev_b32 v3, 4, v3")
    e("v_lshrrev_b32 v4, 5, v%d" % L)
    e("v_lshlrev_b32 v4, 18, v4")
    e("v_add3_u32 v3, v3, v4, s41")
    e("s_nop 7"); e("s_nop 3")
    for q in range(16):
        i, jj = q >> 2, q & 3
        pk = 192 + 4 * (q % 8)
        for sb in range(4):
            e("v_cvt_pk_bf16_f32 v%d, v%d, v%d" % (pk + sb, accA(sb) + q, accB(sb) + q))
        e("s_mov_b32 s%d, 0x%x" % (S_OFF, (8 * i + jj) * 65536))
        e("buffer_store_dwordx4 %s, v3, s[%d:%d], s%d offen%s" % (vr(pk, 4), S_WS, S_WS + 3, S_OFF, sc))
        e.vm_issue("ust")

def p1_loader(e, cfg, is_h):
    L = V_LANE; T = 26
    VX = 10
    VW = 14
    e("v_lshrrev_b32 v%d, 3, v%d" % (T, L))
    e("s_lshl_b32 s41, s%d, 5" % S_LW)
    e("v_add_u32 v%d, s41, v%d" % (T, T))
    e("v_and_b32 v%d, 7, v%d" % (T + 1, L))
    e("v_lshrrev_b32 v%d, 4, v%d" % (T + 2, L))
    e("s_movk_i32 s42, 896")
    for i in range(4):
        if i: e("v_add_u32 v%d, 8, v%d" % (T, T))
        e("v_add_u32 v%d, %d, v%d" % (T + 3, (4 * i) & 7, T + 2))
        e("v_and_b32 v%d, 7, v%d" % (T + 3, T + 3))
        e("v_xor_b32 v%d, v%d, v%d" % (T + 3, T + 3, T + 1))
        e("v_lshlrev_b32 v%d, 4, v%d" % (T + 3, T + 3))
        if is_h:
            e("v_lshrrev_b32 v%d, 6, v%d" % (T + 4, T))
            e("v_and_b32 v%d, 63, v%d" % (T + 5, T))
            e("v_lshlrev_b32 v%d, 5, v%d" % (T + 5, T + 5))
            e("s_lshl_b32 s41, s%d, 1" % S_R)
            e("v_add3_u32 v%d, v%d, v%d, s41" % (T + 4, T + 4, T + 5))
        else:
            e("v_and_b32 v%d, 31, v%d" % (T + 4, T))
            e("v_lshlrev_b32 v%d, 6, v%d" % (T + 4, T + 4))
            e("v_lshrrev_b32 v%d, 5, v%d" % (T + 5, T))
            e("s_lshl_b32 s41, s%d, 2" % S_QG)
            e("v_add3_u32 v%d, v%d, v%d, s41" % (T + 4, T + 4, T + 5))
        e("v_mul_lo_u32 v%d, v%d, s42" % (T + 4, T + 4))
        e("v_add_u32 v%d, v%d, v%d" % (VX + i, T + 4, T + 3))
        if not is_h:
            e("s_lshl_b32 s41, s%d, 7" % S_EH)
            e("v_add_u32 v%d, s41, v%d" % (T + 4, T))
            e("v_mul_lo_u32 v%d, v%d, s42" % (T + 4, T + 4))
            e("v_add_u32 v%d, v%d, v%d" % (VW + i, T + 4, T + 3))
    if is_h:
        e("s_lshl_b32 s41, s%d, 3" % S_LW)
        e("v_add_u32 v%d, s41, v%d" % (T + 3, T + 2))
        e("s_movk_i32 s42, 3584")
        e("v_mul_lo_u32 v%d, v%d, s42" % (T + 3, T + 3))
        e("v_bfe_u32 v%d, v%d, 2, 2" % (T + 4, L))
        e("v_xor_b32 v%d, v%d, v%d" % (T + 4, T + 4, T + 2))
        e("v_lshlrev_b32 v%d, 6, v%d" % (T + 4, T + 4))
        e("v_and_b32 v%d, 3, v%d" % (T + 5, L))
        e("v_lshlrev_b32 v%d, 4, v%d" % (T + 5, T + 5))
        e("v_add3_u32 v%d, v%d, v%d, v%d" % (T + 3, T + 3, T + 4, T + 5))
        e("s_lshl_b32 s41, s%d, 8" % S_FB)
        e("v_add_u32 v%d, s41, v%d" % (VW, T + 3))
        e("v_add_u32 v%d, %d, v%d" % (VW + 1, 4 * 3584, VW))
        e("s_lshl_b32 s%d, s%d, 11" % (S_LDSW, S_LW))
    else:
        e("s_lshl_b32 s%d, s%d, 12" % (S_LDSW, S_LW))
    e("s_lshl_b32 s%d, s%d, 12" % (S_LDSX, S_LW))
    e("s_waitcnt lgkmcnt(0)")
    srd(e, S_X, 44, 1835008)
    if is_h:
        srd(e, S_WA, 52, 1605632); srd(e, S_WB, 54, 1605632)
    else:
        srd(e, S_WA, 48, 401408); srd(e, S_WB, 50, 401408)
    srd(e, S_WS, 74, WS_BYTES)
    srd(e, S_GW, 58, 896)
    srd(e, S_WD, 56, 1605632)
    stamp(e, cfg, 0)
    DROT = (not is_h) and ("nodrot" not in cfg.x)
    if DROT:
        e("s_mul_i32 s7, s%d, 3" % S_EH)
        e("s_mul_i32 s6, s%d, %d" % (S_QG, RMUL[0]))
        e("s_add_u32 s6, s6, s7")
        e("s_mul_i32 s7, s6, 37")
        e("s_lshr_b32 s7, s7, 8")
        e("s_mul_i32 s7, s7, 7")
        e("s_sub_u32 s6, s6, s7")
        e("s_mov_b32 s7, s6")
    def dx(c):
        if DROT:
            e("s_lshl_b32 s%d, s6, 7" % S_OFF)
            for i in range(4): dma(e, S_X, VX + i, (c % NX) * XSLOT + i * 1024, S_LDSX, None, ("x", c))
            rot_next(e, 6, 7)
        else:
            for i in range(4): dma(e, S_X, VX + i, (c % NX) * XSLOT + i * 1024, S_LDSX, c * 128, ("x", c))
    def dw(j):
        if is_h:
            for m in range(2):
                for i in range(2):
                    dma(e, S_WA if m == 0 else S_WB, VW + i, WBASE + (j % NW) * WSLOT + m * 8192 + i * 1024, S_LDSW, j * 32 * 3584, ("w", j))
        else:
            c = j
            if DROT: e("s_lshl_b32 s%d, s7, 7" % S_OFF)
            for m in range(2):
                for i in range(4):
                    dma(e, S_WA if m == 0 else S_WB, VW + i, WBASE + (c % 3) * 32768 + m * 16384 + i * 1024, S_LDSW, None if DROT else c * 128, ("w", c))
            if DROT: rot_next(e, 7, 7)
    q = []
    if is_h:
        for j in range(14):
            if j % 2 == 0:
                c = j // 2
                q.append(("x", c, -1 if c < NX else 2 * (c - NX + 1)))
            q.append(("w", j, -1 if j < NW else j - NW + 1))
    else:
        for c in range(7):
            q.append(("x", c, -1 if c < NX else 2 * (c - NX + 1)))
            q.append(("w", c, -1 if c < 3 else 2 * (c - 3 + 1)))
    def cost(it): return 4 if (it[0] == "x" or is_h) else 8
    def issue(it):
        (dx if it[0] == "x" else dw)(it[1])
    def need(j):
        t = []
        for jj in (j, j + 1):
            if jj <= 13:
                t.append(("x", jj >> 1)); t.append(("w", jj if is_h else jj >> 1))
        return t
    issued = set()
    def ensure(tags):
        while q and any(t not in issued for t in tags):
            it = q.pop(0); assert it[2] <= curbar[0], (it, curbar)
            issue(it); issued.add((it[0], it[1]))
    curbar = [-1]
    ensure(need(0))
    budget0 = cfg.pro_extra
    while q and budget0 > 0 and q[0][2] <= -1:
        it = q.pop(0); issue(it); issued.add((it[0], it[1])); budget0 -= cost(it)
    e.vm_wait(need(0))
    e("s_barrier")
    stamp(e, cfg, 1)
    if "nodma" in cfg.x: NODMA[0] = True
    for j in range(13):
        curbar[0] = j
        ensure(need(j + 1))
        budget = cfg.stage_budget
        while q and budget > 0 and q[0][2] <= j:
            it = q.pop(0); issue(it); issued.add((it[0], it[1])); budget -= cost(it)
        if j == cfg.pfWd_j and not is_h and "pf1" in cfg.x:
            e("s_lshl_b32 s41, s%d, 1" % S_QG)
            e("s_add_u32 s41, s41, s%d" % S_EH)
            e("s_lshl_b32 s41, s41, 2")
            e("s_add_u32 s41, s41, s%d" % S_LW)
            e("s_mul_i32 s41, s41, 98")
            e("v_add_u32 v100, s41, v%d" % V_LANE)
            e("v_lshlrev_b32 v100, 7, v100")
            e("buffer_load_dword v101, v100, s[%d:%d], 0 offen" % (S_WD, S_WD + 3)); e.vm_issue(("pf", 0))
            e("v_add_u32 v100, %d, v100" % (64 * 128))
            e("v_cmp_gt_u32 vcc, 34, v%d" % V_LANE)
            e("v_mov_b32 v102, 0x7fffffff")
            e("s_nop 0")
            e("v_cndmask_b32 v100, v102, v100, vcc")
            e("buffer_load_dword v103, v100, s[%d:%d], 0 offen" % (S_WD, S_WD + 3)); e.vm_issue(("pf", 1))
        if j == cfg.pfWd_j and not is_h and "pfWd" in cfg.x:
            e("s_lshr_b32 s41, s2, 3")
            e("s_sub_u32 s41, s41, 28")
            e("s_lshl_b32 s41, s41, 2")
            e("s_add_u32 s41, s41, s%d" % S_LW)
            e("s_mul_i32 s41, s41, 784")
            e("v_add_u32 v100, s41, v%d" % V_LANE)
            e("v_lshlrev_b32 v100, 7, v100")
            for t in range(13):
                e("s_mov_b32 s%d, %d" % (S_OFF, t * 8192))
                e("buffer_load_dword v%d, v100, s[%d:%d], s%d offen" % (101 + t, S_WD, S_WD + 3, S_OFF))
                e.vm_issue(("pf", t))
        if j == cfg.pfW_j and not is_h and "pfW" in cfg.x:
            e("s_lshr_b32 s41, s2, 3")
            e("s_sub_u32 s41, s41, 28")
            e("s_lshl_b32 s41, s41, 2")
            e("s_add_u32 s41, s41, s%d" % S_LW)
            e("s_mul_i32 s41, s41, 196")
            e("v_add_u32 v100, s41, v%d" % V_LANE)
            e("s_mov_b32 s42, 0x24924925")
            e("s_and_b32 s43, s2, 1")
            e("s_mul_i32 s43, s43, 896")
            e("s_add_u32 s43, s43, 1792")
            for t in range(4):
                e("v_add_u32 v101, %d, v100" % (64 * t))
                e("v_mul_hi_u32 v102, v101, s42")
                e("v_mul_u32_u24 v103, 7, v102")
                e("v_sub_u32 v103, v101, v103")
                e("v_mul_u32_u24 v102, 3584, v102")
                e("v_lshlrev_b32 v103, 7, v103")
                e("v_add3_u32 v%d, v102, v103, s43" % (104 + t))
            srd(e, S_GW, 52, 1605632)
            for t in range(4):
                e("buffer_load_dword v%d, v%d, s[%d:%d], 0 offen" % (110 + t, 104 + t, S_GW, S_GW + 3)); e.vm_issue(("pf", t))
            srd(e, S_GW, 54, 1605632)
            e("s_nop 0")
            for t in range(4):
                e("buffer_load_dword v%d, v%d, s[%d:%d], 0 offen" % (114 + t, 104 + t, S_GW, S_GW + 3)); e.vm_issue(("pf", t))
        if j == 9 and not is_h: dft_consts(e, cfg)
        if j == 7 and is_h:
            gate_issue(e, cfg, True)
            lab = e.newlabel("GX")
            e("s_cmp_ge_u32 s%d, 2" % S_FB)
            e("s_cbranch_scc1 %s" % lab)
            sv = list(e.vm)
            gate_issue(e, cfg, True, True)
            e.vm = sv
            e.label(lab)
        if j == 10 and is_h:
            e("s_waitcnt vmcnt(0)"); e.vm = []
            gate_finish(e, cfg)
            lab = e.newlabel("GY")
            e("s_cmp_ge_u32 s%d, 2" % S_FB)
            e("s_cbranch_scc1 %s" % lab)
            gate_finish(e, cfg, True)
            e.label(lab)
        if j == 11 and cfg.fused:
            e("s_waitcnt vmcnt(0)"); e.vm = []
        e.vm_wait(need(j + 1))
        e("s_barrier")
    assert not q
    NODMA[0] = False
    stamp(e, cfg, 2)
    if not is_h:
        e("v_lshlrev_b32 v2, 4, v%d" % L)
        e("s_mul_i32 s41, s%d, 6144" % S_LW)
        e("v_add_u32 v2, s41, v2")
        for k in range(6):
            e("ds_write_b128 v2, %s offset:%d" % (vr(64 + 4 * k, 4), CONST_LDS + k * 1024))
        e("s_waitcnt lgkmcnt(0)")
        e("s_barrier")

def gate_issue(e, cfg, is_h, extra=False):
    B = 40 if extra else 48
    e("s_lshl_b32 s41, s%d, 3" % S_FB)
    if extra: e("s_add_u32 s41, s41, 112")
    e("s_lshl_b32 s42, s%d, 1" % S_LW)
    e("s_add_u32 s41, s41, s42")
    e("s_lshl_b32 s78, s%d, 7" % S_R)
    e("s_add_u32 s%d, s78, s41" % (63 if extra else 62))
    e("v_lshlrev_b32 v38, 4, v%d" % V_LANE)
    e("v_cmp_gt_u32 vcc, 56, v%d" % V_LANE)
    e("v_mov_b32 v37, 0x7fffffff")
    for u in range(2):
        e("s_add_u32 s78, s41, %d" % u)
        e("s_lshr_b32 s43, s78, 6")
        e("s_lshl_b32 s79, s%d, 1" % S_R)
        e("s_add_u32 s43, s43, s79")
        e("s_and_b32 s78, s78, 63")
        e("s_lshl_b32 s78, s78, 5")
        e("s_add_u32 s43, s43, s78")
        e("s_mul_i32 s43, s43, 896")
        if extra:
            e("s_cmp_ge_u32 s%d, 2" % S_FB)
            e("s_cselect_b32 s43, 0x40000000, s43")
        e("v_add_u32 v39, s43, v38")
        e("v_cndmask_b32 v39, v37, v39, vcc")
        e("buffer_load_dwordx4 %s, v39, s[%d:%d], 0 offen" % (vr(B + 4 * u, 4), S_X, S_X + 3))
        e.vm_issue("gate")
    if not extra:
        e("buffer_load_dwordx4 v[56:59], v38, s[%d:%d], 0 offen" % (S_GW, S_GW + 3))
        e.vm_issue("gate")

def gate_finish(e, cfg, extra=False):
    B = 40 if extra else 48
    e.vm_wait(["gate"])
    for u in range(2):
        e("v_mov_b32 v%d, 0" % (60 + u))
    for i in range(4):
        for u in range(2):
            e("v_dot2_f32_bf16 v%d, v%d, v%d, v%d" % (60 + u, B + 4 * u + i, 56 + i, 60 + u))
    e("s_nop 2")
    for sh in ("row_shr:1", "row_shr:2", "row_shr:4", "row_shr:8"):
        for u in range(2):
            e("v_add_f32_dpp v%d, v%d, v%d %s row_mask:0xf bank_mask:0xf bound_ctrl:0" % (60 + u, 60 + u, 60 + u, sh))
        e("s_nop 0")
    for u in range(2):
        e("v_add_f32_dpp v%d, v%d, v%d row_bcast:15 row_mask:0xa bank_mask:0xf" % (60 + u, 60 + u, 60 + u))
    e("s_nop 0")
    for u in range(2):
        e("v_add_f32_dpp v%d, v%d, v%d row_bcast:31 row_mask:0xc bank_mask:0xf" % (60 + u, 60 + u, 60 + u))
    e("s_nop 0")
    e("v_readlane_b32 s41, v60, 63")
    e("v_readlane_b32 s42, v61, 63")
    e("s_nop 1")
    e("v_mov_b32 v60, s41")
    e("v_mov_b32 v61, s42")
    e("v_cmp_eq_u32 vcc, 1, v%d" % V_LANE)
    e("s_nop 1")
    e("v_cndmask_b32 v60, v60, v61, vcc")
    e("v_mul_f32 v60, 0x%08x, v60" % f2u(-LOG2E))
    e("v_exp_f32 v60, v60")
    e("s_nop 0")
    e("v_add_f32 v60, 1.0, v60")
    e("v_rcp_f32 v60, v60")
    e("s_lshl_b32 s5, s%d, 2" % (63 if extra else 62))
    e("s_add_u32 s5, s5, 0x%x" % GBUF)
    if extra:
        e("s_cmp_ge_u32 s%d, 2" % S_FB)
        e("s_cselect_b32 s5, 0x40000000, s5")
    e("v_lshlrev_b32 v62, 2, v%d" % V_LANE)
    e("v_add_u32 v62, s5, v62")
    e("v_cmp_gt_u32 vcc, 2, v%d" % V_LANE)
    e("v_mov_b32 v37, 0x7fffffff")
    e("s_nop 0")
    e("v_cndmask_b32 v62, v37, v62, vcc")
    e("buffer_store_dword v60, v62, s[%d:%d], 0 offen%s" % (S_WS, S_WS + 3, " sc1" if cfg.fused else ""))
    e.vm_issue("gst")


def gate4_issue(e):
    L = V_LANE
    e("s_lshl_b32 s41, s%d, 1" % S_QG)
    e("s_add_u32 s41, s41, s%d" % S_EH)
    e("s_lshl_b32 s5, s41, 6")
    e("s_lshl_b32 s42, s%d, 4" % S_LW)
    e("s_add_u32 s5, s5, s42")
    e("v_and_b32 v104, 15, v%d" % L)
    e("v_lshrrev_b32 v105, 4, v%d" % L)
    e("v_lshlrev_b32 v106, 4, v104")
    e("v_cmp_gt_u32 vcc, 14, v104")
    e("v_mov_b32 v107, 0x7fffffff")
    e("s_nop 0")
    e("v_cndmask_b32 v106, v107, v106, vcc")
    for q in range(4):
        e("buffer_load_dwordx4 %s, v106, s[%d:%d], 0 offen offset:%d" % (vr(184 + 4 * q, 4), S_GW, S_GW + 3, 224 * q))
        e.vm_issue("gate")
    e("s_lshl_b32 s42, s%d, 9" % S_LW)
    e("s_add_u32 s42, s42, s41")
    e("s_mul_i32 s42, s42, 896")
    e("v_mul_u32_u24 v108, 28672, v105")
    e("v_add_u32 v108, s42, v108")
    e("v_add_u32 v108, v108, v106")
    e("v_cndmask_b32 v108, v107, v108, vcc")
    for p in range(4):
        e("s_mov_b32 s%d, %d" % (S_OFF, p * 4 * 28672))
        for q in range(4):
            e("buffer_load_dwordx4 %s, v108, s[%d:%d], s%d offen offset:%d" % (vr(120 + 16 * p + 4 * q, 4), S_X, S_X + 3, S_OFF, 224 * q))
            e.vm_issue("gate")

def gate4_pass(e, p):
    L = V_LANE
    e.vm_wait(["gate"])
    e("v_mov_b32 v109, 0")
    for q in range(16):
        e("v_dot2_f32_bf16 v109, v%d, v%d, v109" % (120 + 16 * p + q, 184 + q))
    e("s_nop 2")
    for sh in ("row_shr:1", "row_shr:2", "row_shr:4", "row_shr:8"):
        e("v_add_f32_dpp v109, v109, v109 %s row_mask:0xf bank_mask:0xf bound_ctrl:0" % sh)
        e("s_nop 1")
    e("v_mul_f32 v109, 0x%08x, v109" % f2u(-LOG2E))
    e("v_exp_f32 v109, v109")
    e("s_nop 0")
    e("v_add_f32 v109, 1.0, v109")
    e("v_rcp_f32 v109, v109")
    e("v_add_u32 v110, s5, v105")
    e("v_add_u32 v110, %d, v110" % (4 * p))
    e("v_lshlrev_b32 v110, 2, v110")
    e("v_add_u32 v110, 0x%x, v110" % GBUF)
    e("v_cmp_eq_u32 vcc, 15, v104")
    e("s_nop 1")
    e("v_cndmask_b32 v110, v107, v110, vcc")
    e("buffer_store_dword v109, v110, s[%d:%d], 0 offen sc1" % (S_WS, S_WS + 3))
    e.vm_issue("gst")

def dft_consts(e, cfg):
    L = V_LANE
    e("v_and_b32 v26, 31, v%d" % L)
    e("v_lshrrev_b32 v27, 5, v%d" % L)
    e("v_lshlrev_b32 v27, 8, v27")
    e("s_lshl_b32 s41, s%d, 2" % S_QG)
    e("s_add_u32 s41, s41, s%d" % S_LW)
    e("v_add_u32 v27, s41, v27")
    e("s_mov_b32 s42, 0x%08x" % f2u(1.0 / 2048))
    for hf in range(2):
        for pr in range(4):
            for u in range(2):
                idx = 2 * pr + u
                s1c = 16 * hf + 8 * (idx >> 2) + (idx & 3)
                e("v_add_u32 v28, %d, v27" % (64 * s1c))
                e("v_mul_u32_u24 v28, v28, v26")
                e("v_and_b32 v28, 0x7ff, v28")
                e("v_cvt_f32_u32 v28, v28")
                e("v_mul_f32 v28, s42, v28")
                e("v_cos_f32 v%d, v28" % (30 + u))
                e("v_sin_f32 v%d, v28" % (32 + u))
            e("s_nop 0")
            e("v_cvt_pk_bf16_f32 v%d, v30, v31" % (64 + 4 * hf + pr))
            e("v_cvt_pk_bf16_f32 v%d, v32, v33" % (72 + 4 * hf + pr))
            e("v_xor_b32 v%d, 0x80008000, v%d" % (80 + 4 * hf + pr, 72 + 4 * hf + pr))

def entry_common(e):
    e("v_and_b32 v%d, 63, v0" % V_LANE)
    e("v_lshrrev_b32 v2, 6, v0")
    e("s_nop 0")
    e("v_readfirstlane_b32 s%d, v2" % S_WAVE)
    e("s_nop 3")

def phase1(e, cfg, after_h_consumer, after_h_loader, after_d):
    e("s_and_b32 s%d, s%d, 3" % (S_WF, S_WAVE))
    e("s_and_b32 s%d, s%d, 3" % (S_LW, S_WAVE))
    e("s_and_b32 s41, s2, 7")
    e("s_lshr_b32 s42, s2, 3")
    e("s_cmp_ge_u32 s42, 28")
    e("s_cbranch_scc1 P1_DFT")
    e("s_mul_i32 s43, s42, 37")
    e("s_lshr_b32 s43, s43, 8")
    e("s_mul_i32 s76, s43, 7")
    e("s_sub_u32 s76, s42, s76")
    e("s_lshr_b32 s77, s41, 1")
    e("s_lshl_b32 s77, s77, 2")
    e("s_add_u32 s%d, s77, s43" % S_R)
    e("s_and_b32 s77, s41, 1")
    e("s_mul_i32 s77, s77, 7")
    e("s_add_u32 s%d, s77, s76" % S_FB)
    e("s_cmp_lt_u32 s%d, 4" % S_WAVE)
    e("s_cbranch_scc1 P1_H_CONSUMER")
    e.vm = []; e.lg = []
    STG[0] = True
    h2_loader(e, cfg)
    q_loader_A(e, cfg)
    STG[0] = False
    stamp_store(e, cfg, 0)
    e("s_endpgm")
    e.label("P1_H_CONSUMER")
    e.vm = []; e.lg = []
    h2_consumer(e, cfg)
    q_consumer_B(e, cfg)
    stamp_store(e, cfg, 0)
    e("s_endpgm")
    e.label("P1_DFT")
    e("s_sub_u32 s42, s42, 28")
    e("s_and_b32 s%d, s41, 1" % S_EH)
    e("s_lshr_b32 s77, s41, 1")
    e("s_lshl_b32 s77, s77, 2")
    e("s_add_u32 s%d, s77, s42" % S_QG)
    e("s_cmp_ge_u32 s%d, 4" % S_WAVE)
    e("s_cbranch_scc1 P1_D_LOADER")
    e.vm = []; e.lg = []
    p1_consumer(e, cfg, False)
    d_epilogue(e, cfg)
    stamp(e, cfg, 3)
    after_d(True)
    e.label("P1_D_LOADER")
    e.vm = []; e.lg = []
    p1_loader(e, cfg, False)
    stamp(e, cfg, 3)
    after_d(False)

P2_ACC = 64
P2_H = 96
P2_A = 208
P2_U = 224
P2_T = 240
SLICE = 40960
KSL, NB = 60, 61

def p2_setup(e, cfg):
    L = V_LANE
    e("s_and_b32 s%d, s%d, 3" % (KSL, S_WAVE))
    e("s_lshr_b32 s%d, s%d, 2" % (NB, S_WAVE))
    e("v_lshrrev_b32 v2, 3, v%d" % L)
    e("v_bfe_u32 v3, v%d, 4, 1" % L)
    e("v_lshlrev_b32 v3, 2, v3")
    e("v_and_b32 v4, 7, v%d" % L)
    e("v_xor_b32 v3, v3, v4")
    e("v_lshlrev_b32 v3, 4, v3")
    e("s_mul_i32 s41, s%d, 448" % KSL)
    e("s_lshl_b32 s42, s%d, 3" % NB)
    e("s_add_u32 s41, s41, s42")
    e("v_add_u32 v2, s41, v2")
    e("s_movk_i32 s42, 896")
    e("v_mul_lo_u32 v2, v2, s42")
    e("s_lshl_b32 s41, s%d, 7" % S_C)
    e("v_add3_u32 v10, v2, v3, s41")
    e("s_mul_i32 s62, s%d, %d" % (KSL, SLICE))
    e("s_lshl_b32 s41, s%d, 10" % NB)
    e("s_add_u32 s62, s62, s41")
    e("v_and_b32 v2, 15, v%d" % L)
    e("v_lshrrev_b32 v3, 2, v2")
    e("v_lshrrev_b32 v4, 5, v%d" % L)
    e("v_lshlrev_b32 v5, 2, v4")
    e("v_add_u32 v5, v5, v3")
    e("v_lshlrev_b32 v5, 7, v5")
    e("v_bfe_u32 v6, v2, 3, 1")
    e("v_lshlrev_b32 v6, 6, v6")
    e("v_bfe_u32 v7, v%d, 4, 1" % L)
    e("v_lshlrev_b32 v7, 5, v7")
    e("v_and_b32 v8, 3, v2")
    e("v_lshlrev_b32 v8, 3, v8")
    e("v_add3_u32 v5, v5, v6, v7")
    e("v_add_u32 v5, v5, v8")
    e("s_mul_i32 s41, s%d, %d" % (KSL, SLICE))
    e("v_add_u32 v11, s41, v5")
    e("v_xor_b32 v12, 64, v11")
    e("s_mul_i32 s41, s%d, 112" % S_T1)
    e("s_mul_i32 s42, s%d, 28" % KSL)
    e("s_add_u32 s41, s41, s42")
    e("s_lshl_b32 s41, s41, 1")
    e("s_add_u32 s41, s41, s%d" % NB)
    e("s_lshl_b32 s41, s41, 10")
    e("v_lshlrev_b32 v13, 4, v%d" % L)
    e("v_add_u32 v13, s41, v13")
    e("v_and_b32 v14, 31, v%d" % L)
    e("s_cmp_ge_u32 s%d, 4" % S_C)
    e("s_cselect_b32 s63, 1, 0")
    e("s_sub_u32 s64, 32, s%d" % S_T1)
    e("s_and_b32 s64, s64, 31")
    e("s_cmp_eq_u32 s63, 1")
    e("s_cselect_b32 s64, s64, s%d" % S_T1)
    e("v_lshrrev_b32 v4, 5, v%d" % L)
    e("s_lshl_b32 s41, s%d, 6" % S_C)
    e("s_cmp_eq_u32 s63, 1")
    e("s_cselect_b64 vcc, -1, 0")
    for mb in range(2):
        e("v_add_u32 v2, s41, v14")
        if mb: e("v_add_u32 v2, 32, v2")
        e("v_sub_u32 v3, 448, v2")
        e("v_cndmask_b32 v2, v2, v3, vcc")
        e("v_lshlrev_b32 v2, 4, v2")
        e("v_lshlrev_b32 v3, 12, v4")
        e("v_add_u32 v%d, v2, v3" % (16 + mb))
    e("s_lshl_b32 s41, s64, 4")
    e("s_lshl_b32 s42, s%d, 2" % KSL)
    e("s_add_u32 s41, s41, s42")
    e("s_lshl_b32 s41, s41, 12")
    e("s_add_u32 s65, s41, 0x%x" % UBUF)
    e("s_lshl_b32 s41, s%d, 6" % S_T1)
    e("s_lshl_b32 s42, s%d, 5" % NB)
    e("s_add_u32 s41, s41, s42")
    e("v_add_u32 v2, s41, v14")
    e("v_lshlrev_b32 v2, 2, v2")
    e("v_add_u32 v20, 0x%x, v2" % GBUF)

def p2_dma_wd(e, kk):
    st = kk >> 2
    pos = (st % 5) * 4 + (kk & 3)
    dma(e, S_WD, 10, pos * 2048, 62, kk * 16 * 896, ("wd", st))
def p2_load_h(e, cfg, kk):
    sc = " sc1" if cfg.fused else ""
    e("s_mov_b32 s%d, 0x%x" % (S_OFF, kk * 2048))
    e("buffer_load_dwordx4 %s, v13, s[%d:%d], s%d offen%s" % (vr(P2_H + 4 * kk, 4), S_WS, S_WS + 3, S_OFF, sc))
    e.vm_issue(("h", kk))
def p2_load_g(e, cfg):
    sc = " sc1" if cfg.fused else ""
    e("buffer_load_dword v15, v20, s[%d:%d], 0 offen%s" % (S_WS, S_WS + 3, sc))
    e.vm_issue("g")
def p2_load_u(e, cfg):
    sc = " sc1" if cfg.fused else ""
    for u in range(2):
        for mb in range(2):
            e("s_add_u32 s%d, s65, %d" % (S_OFF, u * 2 * 4096))
            e("buffer_load_dwordx4 %s, v%d, s[%d:%d], s%d offen%s" % (vr(P2_U + 8 * u + 4 * mb, 4), 16 + mb, S_WS, S_WS + 3, S_OFF, sc))
            e.vm_issue("u")
def p2_tfrags(e, cfg):
    L = V_LANE
    e.vm_wait(["g"])
    e("s_cmp_lg_u32 s%d, 0" % S_T1)
    e("s_cselect_b32 s41, s63, 0")
    e("s_lshl_b32 s42, s%d, 5" % NB)
    e("s_add_u32 s41, s41, s42")
    e("v_add_u32 v2, s41, v14")
    e("v_lshrrev_b32 v4, 5, v%d" % L)
    e("v_lshlrev_b32 v4, 2, v4")
    e("s_lshl_b32 s41, s63, 31")
    e("v_xor_b32 v21, s41, v15")
    e("s_mov_b32 s42, 0x%08x" % f2u(1.0 / 64))
    e("s_lshl_b32 s43, s%d, 4" % KSL)
    e("v_add_u32 v4, s43, v4")
    for u in range(2):
        for q in range(4):
            e("v_add_u32 v3, %d, v4" % (8 * u + q))
            e("v_mul_u32_u24 v3, v3, v2")
            e("v_and_b32 v3, 63, v3")
            e("v_cvt_f32_u32 v3, v3")
            e("v_mul_f32 v3, s42, v3")
            e("v_cos_f32 v5, v3")
            e("v_sin_f32 v6, v3")
            e("s_nop 0")
            e("v_mul_f32 v5, v5, v15")
            e("v_mul_f32 v6, v6, v21")
            e("v_cvt_pk_bf16_f32 v%d, v5, v6" % (P2_T + 4 * u + q))
    e("v_sub_f32 v18, 1.0, v15")
    e("v_mov_b32 v19, v18")

def p2_main(e, cfg, wd_pre=0):
    L = V_LANE
    def reads(kk):
        b = P2_A + 8 * (kk & 1)
        st = kk >> 2
        pos = (st % 5) * 4 + (kk & 3)
        for mb in range(2):
            for ip in range(2):
                e("ds_read_b64_tr_b16 %s, v%d offset:%d" % (vr(b + 4 * mb + 2 * ip, 2), 11 + mb, pos * 2048 + ip * 1024))
                e.lg_issue(("A", kk, mb))
    def issue_h(st):
        if st > 6: return
        for kk in range(4 * st, 4 * st + 4): p2_load_h(e, cfg, kk)
    def issue_w(st):
        if st > 6 or st < wd_pre: return
        for kk in range(4 * st, 4 * st + 4): p2_dma_wd(e, kk)
    def issue_both(st):
        if st > 6: return
        for kk in range(4 * st, 4 * st + 4):
            if st >= wd_pre: p2_dma_wd(e, kk)
            p2_load_h(e, cfg, kk)
    LA = cfg.p2_la
    p2_load_g(e, cfg)
    if cfg.fused:
        for st in range(LA): issue_h(st)
        p2_tfrags(e, cfg)
    else:
        for st in range(LA): issue_both(st)
        p2_tfrags(e, cfg)
        e.vm_wait([("wd", 0), ("wd", 1)])
        e("s_barrier")
    stamp(e, cfg, 1 if not cfg.fused else 6)
    reads(0)
    for kk in range(28):
        st = kk >> 2
        if (kk & 3) == 0:
            if cfg.fused:
                if st >= 1: issue_w(st + 4)
                issue_h(st + LA)
            else:
                issue_both(st + LA)
                if st + LA == 7:
                    p2_load_u(e, cfg)
        if kk + 1 < 28: reads(kk + 1)
        e.vm_wait([("h", kk)])
        b = P2_A + 8 * (kk & 1)
        for mb in range(2):
            e.lg_wait([("A", kk, mb)])
            mfma(e, P2_ACC + 16 * mb, b + 4 * mb, P2_H + 4 * kk, "0" if kk == 0 else None)
        if (kk & 3) == 3 and st < 6:
            e.vm_wait([("wd", st + 2)])
            if cfg.fused and st == cfg.p2_dpoll:
                lab = e.newlabel("DP")
                e("s_cmp_lg_u32 s%d, 0" % S_WAVE)
                e("s_cbranch_scc1 %s" % lab)
                e("s_mov_b32 s%d, 0x%x" % (S_PF, FLAGS + 16 * 128))
                poll(e, S_PF, 32)
                e.label(lab)
            e("s_barrier")
            if cfg.fused and st == cfg.p2_dpoll:
                p2_load_u(e, cfg)
    assert not e.lg
    stamp(e, cfg, 2 if not cfg.fused else 7)
    e.vm_wait(["u"])
    e("s_nop 7"); e("s_nop 3")
    for i in range(0, 32, 2):
        e("v_pk_mul_f32 %s, %s, v[18:19]" % (vr(P2_ACC + i, 2), vr(P2_ACC + i, 2)))
    e("s_nop 1")
    for u in range(2):
        for mb in range(2):
            mfma(e, P2_ACC + 16 * mb, P2_U + 8 * u + 4 * mb, P2_T + 4 * u)
    e("s_barrier")
    e("v_lshlrev_b32 v2, 4, v%d" % L)
    e("s_lshl_b32 s41, s%d, 13" % S_WAVE)
    e("v_add_u32 v3, s41, v2")
    e("s_nop 7"); e("s_nop 1")
    for qd in range(4):
        for hf in range(2):
            e("ds_write_b128 v3, %s offset:%d" % (vr(P2_ACC + 8 * qd + 4 * hf, 4), qd * 2048 + hf * 1024))
    e("s_waitcnt lgkmcnt(0)")
    e("s_barrier")
    e("s_lshl_b32 s41, s%d, 15" % NB)
    e("s_lshl_b32 s42, s%d, 11" % KSL)
    e("s_add_u32 s41, s41, s42")
    e("v_add_u32 v3, s41, v2")
    for k in range(4):
        for hf in range(2):
            e("ds_read_b128 %s, v3 offset:%d" % (vr(96 + 8 * k + 4 * hf, 4), k * 8192 + hf * 1024))
    e("s_lshl_b32 s41, s%d, 5" % NB)
    e("v_add_u32 v2, s41, v14")
    e("v_lshlrev_b32 v2, 5, v2")
    e("v_add_u32 v2, s%d, v2" % S_T1)
    e("s_movk_i32 s42, 896")
    e("v_mul_lo_u32 v2, v2, s42")
    e("s_lshl_b32 s41, s%d, 7" % S_C)
    e("s_lshl_b32 s42, s%d, 5" % KSL)
    e("s_add_u32 s41, s41, s42")
    e("v_lshrrev_b32 v4, 5, v%d" % L)
    e("v_lshlrev_b32 v4, 4, v4")
    e("v_add3_u32 v2, v2, v4, s41")
    e("s_waitcnt lgkmcnt(0)")
    for q in range(0, 8, 2):
        e("v_pk_add_f32 %s, %s, %s" % (vr(96 + q, 2), vr(96 + q, 2), vr(104 + q, 2)))
        e("v_pk_add_f32 %s, %s, %s" % (vr(112 + q, 2), vr(112 + q, 2), vr(120 + q, 2)))
    for q in range(0, 8, 2):
        e("v_pk_add_f32 %s, %s, %s" % (vr(96 + q, 2), vr(96 + q, 2), vr(112 + q, 2)))
    for q in range(4):
        e("v_cvt_pk_bf16_f32 v%d, v%d, v%d" % (128 + q, 96 + 2 * q, 96 + 2 * q + 1))
    e("s_nop 1")
    e("v_permlane32_swap_b32 v128, v130")
    e("v_permlane32_swap_b32 v129, v131")
    e("buffer_store_dwordx4 v[128:131], v2, s[%d:%d], 0 offen" % (S_OUT, S_OUT + 3))
    stamp(e, cfg, 3 if not cfg.fused else 8)

def p2_role(e):
    e("s_and_b32 s41, s2, 7")
    e("s_lshr_b32 s42, s2, 3")
    e("s_mul_i32 s43, s42, 37")
    e("s_lshr_b32 s43, s43, 8")
    e("s_mul_i32 s76, s43, 7")
    e("s_sub_u32 s%d, s42, s76" % S_C)
    e("s_lshl_b32 s41, s41, 2")
    e("s_add_u32 s%d, s41, s43" % S_T1)

def header(e, name):
    e.raw(".text"); e.raw(".globl %s" % name); e.raw(".p2align 8"); e.raw(".type %s,@function" % name); e.label(name)

def kernel1(e, cfg):
    header(e, "k1_kernel")
    e("s_cmp_ge_u32 s2, 256")
    e("s_cbranch_scc1 K1_END")
    kernarg_loads(e)
    entry_common(e)
    def fin():
        stamp_store(e, cfg, 0)
        e("s_endpgm")
    phase1(e, cfg, fin, fin, lambda c: fin())
    e.label("K1_END")
    e("s_endpgm")

def kernel2(e, cfg):
    header(e, "k2_kernel")
    e.vm = []; e.lg = []
    e("s_cmp_ge_u32 s2, 256")
    e("s_cbranch_scc1 K2_END")
    e("s_lshr_b32 s42, s2, 3")
    e("s_cmp_ge_u32 s42, 28")
    e("s_cbranch_scc1 K2_END")
    kernarg_loads(e)
    entry_common(e)
    p2_role(e)
    p2_setup(e, cfg)
    e("s_waitcnt lgkmcnt(0)")
    srd(e, S_WS, 74, WS_BYTES)
    srd(e, S_OUT, 46, 1835008)
    srd(e, S_WD, 56, 1605632)
    stamp(e, cfg, 0)
    p2_main(e, cfg, 0)
    stamp_store(e, cfg, 0x40000)
    e.label("K2_END")
    e("s_endpgm")


def nonce_issue(e):
    lab = e.newlabel("NONCE")
    srd(e, S_DBG, 72, 256)
    e("s_or_b32 s41, s2, s%d" % S_WAVE)
    e("s_cmp_lg_u32 s41, 0")
    e("s_cbranch_scc1 %s" % lab)
    e("s_memrealtime s[42:43]")
    e("s_waitcnt lgkmcnt(0)")
    e("s_or_b32 s42, s42, 1")
    e("v_mov_b32 v4, s42")
    e("v_lshlrev_b32 v5, 20, v%d" % V_LANE)
    e("buffer_store_dword v4, v5, s[%d:%d], 0 offen sc1" % (S_DBG, S_DBG + 3))
    e.label(lab)
    e("v_mov_b32 v7, 0")

def nonce_publish(e):
    lab = e.newlabel("NONCE")
    e("s_or_b32 s41, s2, s%d" % S_WAVE)
    e("s_cmp_lg_u32 s41, 0")
    e("s_cbranch_scc1 %s" % lab)
    srd(e, S_DBG, 72, 256)
    e("s_memrealtime s[42:43]")
    e("s_waitcnt lgkmcnt(0)")
    e("s_or_b32 s42, s42, 1")
    e("v_mov_b32 v4, s42")
    e("v_lshlrev_b32 v5, 20, v%d" % V_LANE)
    e("buffer_store_dword v4, v5, s[%d:%d], 0 offen sc1" % (S_DBG, S_DBG + 3))
    e.label(lab)

def nonce_load(e):
    e("buffer_load_dword v4, v7, s[%d:%d], 0 offen sc1" % (S_DBG, S_DBG + 3))

def nonce_finish(e):
    nonce_finish_any(e)

def flag_addr(e, is_h):
    if is_h:
        e("s_lshl_b32 s41, s%d, 9" % S_R)
        e("s_lshl_b32 s42, s%d, 2" % S_FB)
    else:
        e("s_lshl_b32 s41, s%d, 1" % S_QG)
        e("s_add_u32 s41, s41, s%d" % S_EH)
        e("s_lshl_b32 s42, s41, 2")
        e("s_movk_i32 s41, %d" % (16 * 512))
    e("s_add_u32 s41, s41, s42")
    e("s_add_u32 s%d, s41, 0x%x" % (S_FLAG, FLAGS))

def flag_store(e):
    e("v_mov_b32 v60, s%d" % S_NONCE)
    e("v_lshlrev_b32 v61, 24, v%d" % V_LANE)
    e("v_add_u32 v61, s%d, v61" % S_FLAG)
    e("buffer_store_dword v60, v61, s[%d:%d], 0 offen sc1" % (S_WS, S_WS + 3))

def poll_prep(e, sbase, nflags):
    e("v_lshlrev_b32 v61, 2, v%d" % V_LANE)
    e("v_add_u32 v61, s%d, v61" % sbase)
    e("v_cmp_gt_u32 vcc, %d, v%d" % (nflags, V_LANE))
    e("v_mov_b32 v60, 0x7fffffff")
    e("s_nop 0")
    e("v_cndmask_b32 v61, v60, v61, vcc")
def poll_issue(e):
    e("buffer_load_dword v60, v61, s[%d:%d], 0 offen sc1" % (S_WS, S_WS + 3))
def poll_loop(e, nflags, first_issued):
    top = e.newlabel("POLL"); done = e.newlabel("POLLD"); chk = e.newlabel("POLLC")
    e("s_mov_b32 s41, 0")
    if first_issued: e("s_branch %s" % chk)
    e.label(top)
    poll_issue(e)
    e.label(chk)
    e("s_waitcnt vmcnt(0)")
    e("v_cmp_eq_u32 vcc, s%d, v60" % S_NONCE)
    e("s_nop 1")
    mask = (1 << nflags) - 1
    e("s_and_b32 s42, vcc_lo, 0x%x" % (mask & 0xffffffff))
    e("s_cmp_eq_u32 s42, 0x%x" % (mask & 0xffffffff))
    e("s_cbranch_scc1 %s" % done)
    e("s_add_u32 s41, s41, 1")
    e("s_cmp_ge_u32 s41, 0x40000")
    e("s_cbranch_scc1 %s" % done)
    e("s_branch %s" % top)
    e.label(done)
def poll(e, sbase, nflags, drain=True):
    poll_prep(e, sbase, nflags)
    poll_loop(e, nflags, False)

def pollAG_prep(e):
    e("v_lshlrev_b32 v61, 2, v%d" % V_LANE)
    e("v_add_u32 v62, 0x%x, v61" % (FLAGS + 16 * 512 + 128 - 128))
    e("v_add_u32 v61, s%d, v61" % S_PF)
    e("v_cmp_gt_u32 vcc, 14, v%d" % V_LANE)
    e("v_mov_b32 v60, 0x7fffffff")
    e("s_nop 0")
    e("v_cndmask_b32 v61, v60, v61, vcc")
    e("v_cmp_lt_u32 vcc, 31, v%d" % V_LANE)
    e("s_nop 1")
    e("v_cndmask_b32 v61, v61, v62, vcc")

def poll_loop56(e):
    top = e.newlabel("POLL"); done = e.newlabel("POLLD")
    e("s_mov_b32 s41, 0")
    e.label(top)
    poll_issue(e)
    e("s_waitcnt vmcnt(0)")
    e("v_cmp_eq_u32 vcc, s%d, v60" % S_NONCE)
    e("s_nop 1")
    e("s_and_b32 s43, vcc_hi, 0xffffff")
    e("s_cmp_eq_u32 s43, 0xffffff")
    e("s_cselect_b32 s42, vcc_lo, 0")
    e("s_cmp_eq_u32 s42, -1")
    e("s_cbranch_scc1 %s" % done)
    e("s_add_u32 s41, s41, 1")
    e("s_cmp_ge_u32 s41, 0x40000")
    e("s_cbranch_scc1 %s" % done)
    e("s_branch %s" % top)
    e.label(done)

def poll2(e, sline1, line2):
    top = e.newlabel("POLL"); done = e.newlabel("POLLD")
    e("v_lshlrev_b32 v61, 2, v%d" % V_LANE)
    e("v_add_u32 v62, 0x%x, v61" % line2)
    e("v_add_u32 v61, s%d, v61" % sline1)
    e("v_mov_b32 v60, 0x7fffffff")
    e("v_cmp_gt_u32 vcc, 56, v%d" % V_LANE)
    e("s_nop 1")
    e("v_cndmask_b32 v61, v60, v61, vcc")
    e("v_cmp_gt_u32 vcc, 32, v%d" % V_LANE)
    e("s_nop 1")
    e("v_cndmask_b32 v62, v60, v62, vcc")
    e("s_mov_b32 s41, 0")
    e.label(top)
    e("buffer_load_dword v60, v61, s[%d:%d], 0 offen sc1" % (S_WS, S_WS + 3))
    e("buffer_load_dword v58, v62, s[%d:%d], 0 offen sc1" % (S_WS, S_WS + 3))
    e("s_waitcnt vmcnt(0)")
    e("v_cmp_eq_u32 vcc, s%d, v60" % S_NONCE)
    e("v_cmp_eq_u32 s[42:43], s%d, v58" % S_NONCE)
    e("s_nop 1")
    e("s_and_b32 s43, vcc_hi, 0xffffff")
    e("s_and_b32 s42, s42, vcc_lo")
    e("s_cmp_eq_u32 s43, 0xffffff")
    e("s_cselect_b32 s42, s42, 0")
    e("s_cmp_eq_u32 s42, -1")
    e("s_cbranch_scc1 %s" % done)
    e("s_add_u32 s41, s41, 1")
    e("s_cmp_ge_u32 s41, 0x40000")
    e("s_cbranch_scc1 %s" % done)
    e("s_branch %s" % top)
    e.label(done)

def kernel_fused(e, cfg):
    name = "gated_mix__spectral_fnet__glu_gated_glu__prompt_kernel"
    header(e, name)
    e("s_cmp_ge_u32 s2, 256")
    e("s_cbranch_scc1 KF_END")
    kernarg_loads(e)
    entry_common(e)
    def after_h_consumer():
        e.vm_wait_all()
        e("s_barrier")
        lab = e.newlabel("NOTW0")
        e("s_cmp_lg_u32 s%d, 0" % S_WAVE)
        e("s_cbranch_scc1 %s" % lab)
        flag_store(e)
        e.label(lab)
        stamp(e, cfg, 4)
        p2_role(e)
        p2_setup(e, cfg)
        srd(e, S_OUT, 46, 1835008)
        srd(e, S_WD, 56, 1605632)
        e("s_cmp_lg_u32 s%d, 0" % S_WAVE)
        e("s_cbranch_scc1 P2_START")
        e("s_lshr_b32 s43, s%d, 1" % S_T1)
        e("s_lshl_b32 s43, s43, 7")
        e("s_add_u32 s%d, s43, 0x%x" % (S_PF, FLAGS))
        poll(e, S_PF, 14)
        e("s_branch P2_START")
    def after_h_loader():
        e("s_barrier")
        p2_role(e)
        p2_setup(e, cfg)
        srd(e, S_OUT, 46, 1835008)
        e("v_subrev_u32 v9, %d, v10" % (8 * 896))
        e("s_sub_u32 s69, s62, 1024")
        for kk in range(20):
            pos = kk
            dma(e, S_WD, 9, pos * 2048, 69, kk * 16 * 896, ("wdp", kk))
            dma(e, S_WD, 10, pos * 2048, 62, kk * 16 * 896, ("wdp", kk))
        e("s_barrier")
        stamp(e, cfg, 4)
        e.vm = []
        e.label("P2_START")
        e("s_waitcnt vmcnt(0)")
        e("s_barrier")
        stamp(e, cfg, 5)
        e.vm = []; e.lg = []
        p2_main(e, cfg, 5)
        stamp_store(e, cfg, 0)
        e("s_endpgm")
    def after_d(is_cons):
        if is_cons:
            e.vm_wait_all()
            e("s_barrier")
            lab = e.newlabel("DNOTW0")
            e("s_cmp_lg_u32 s%d, 0" % S_WAVE)
            e("s_cbranch_scc1 %s" % lab)
            flag_store(e)
            e("s_waitcnt vmcnt(0)")
            e.label(lab)
            stamp_store(e, cfg, 0)
            e("s_endpgm")
        else:
            e("s_waitcnt vmcnt(0)")
            e("s_barrier")
            stamp_store(e, cfg, 0)
            e("s_endpgm")
    phase1(e, cfg, after_h_consumer, after_h_loader, after_d)
    e.label("KF_END")
    e("s_endpgm")


WB2 = 114688; NW2 = 6; WS2 = 8192
H_ACC = 64
H_FR = 192
V_XA2 = 10
V_WA2 = 18
S_WT = 69

def h2_consumer(e, cfg):
    L = V_LANE; T = 26
    e("s_lshr_b32 s%d, s%d, 1" % (S_WT, S_WAVE))
    e("s_and_b32 s%d, s%d, 1" % (S_WF, S_WAVE))
    e("v_and_b32 v%d, 31, v%d" % (T, L))
    e("v_lshrrev_b32 v%d, 5, v%d" % (T + 1, L))
    e("v_lshrrev_b32 v%d, 1, v%d" % (T + 2, T))
    e("v_and_b32 v%d, 7, v%d" % (T + 2, T + 2))
    e("s_lshl_b32 s41, s%d, 6" % S_WT)
    e("v_add_u32 v%d, s41, v%d" % (T + 3, T))
    e("v_lshlrev_b32 v%d, 7, v%d" % (T + 3, T + 3))
    for k in range(4):
        e("v_add_u32 v%d, %d, v%d" % (T + 4, 2 * k, T + 1))
        e("v_xor_b32 v%d, v%d, v%d" % (T + 4, T + 4, T + 2))
        e("v_lshlrev_b32 v%d, 4, v%d" % (T + 4, T + 4))
        e("v_add_u32 v%d, v%d, v%d" % (V_XA2 + k, T + 3, T + 4))
        e("v_add_u32 v%d, 0x10000, v%d" % (V_XA2 + 4 + k, V_XA2 + k))
    e("v_and_b32 v%d, 15, v%d" % (T + 4, L))
    e("v_lshrrev_b32 v%d, 2, v%d" % (T + 5, T + 4))
    e("v_lshlrev_b32 v%d, 7, v%d" % (T + 5, T + 5))
    e("v_lshlrev_b32 v%d, 11, v%d" % (T + 6, T + 1))
    e("v_add_u32 v%d, v%d, v%d" % (T + 6, T + 6, T + 5))
    e("v_bfe_u32 v%d, v%d, 3, 1" % (T + 7, T + 4))
    e("v_xor_b32 v%d, s%d, v%d" % (T + 7, S_WF, T + 7))
    e("v_lshlrev_b32 v%d, 6, v%d" % (T + 7, T + 7))
    e("v_add_u32 v%d, v%d, v%d" % (T + 6, T + 6, T + 7))
    e("v_bfe_u32 v%d, v%d, 4, 1" % (T + 7, L))
    e("v_lshlrev_b32 v%d, 5, v%d" % (T + 7, T + 7))
    e("v_add_u32 v%d, v%d, v%d" % (T + 6, T + 6, T + 7))
    e("v_and_b32 v%d, 3, v%d" % (T + 7, T + 4))
    e("v_lshlrev_b32 v%d, 3, v%d" % (T + 7, T + 7))
    e("v_add_u32 v%d, v%d, v%d" % (T + 6, T + 6, T + 7))
    e("v_add_u32 v%d, 0x%x, v%d" % (V_WA2, WB2, T + 6))
    e("s_waitcnt lgkmcnt(0)")
    srd(e, S_WS, 74, WS_BYTES)
    if cfg.ncx > 0:
        srd(e, S_X, 44, 1835008)
        e("v_lshrrev_b32 v40, 3, v%d" % L)
        e("v_and_b32 v41, 7, v%d" % L)
        e("v_lshrrev_b32 v42, 4, v%d" % L)
        e("v_xor_b32 v41, v41, v42")
        e("v_lshlrev_b32 v41, 4, v41")
        e("v_mul_u32_u24 v40, 28672, v40")
        e("s_lshl_b32 s41, s%d, 1" % S_R)
        e("s_lshr_b32 s42, s%d, 1" % S_WAVE)
        e("s_add_u32 s41, s41, s42")
        e("s_mul_i32 s41, s41, 896")
        e("s_and_b32 s42, s%d, 1" % S_WAVE)
        e("s_mul_i32 s42, s42, %d" % (32 * 28672))
        e("s_add_u32 s41, s41, s42")
        e("v_add3_u32 v36, v40, v41, s41")
        e("v_xor_b32 v41, 64, v41")
        e("s_add_u32 s42, s41, %d" % (8 * 28672 - 1024))
        e("v_add3_u32 v37, v40, v41, s42")
        e("v_add_u32 v38, %d, v36" % (16 * 28672 - 2048))
        e("v_add_u32 v39, %d, v37" % (16 * 28672 - 2048))
        e("s_mul_i32 s6, s%d, %d" % (S_R, RMUL[0]))
        e("s_mul_i32 s7, s%d, %d" % (S_FB, FMUL[0]))
        e("s_add_u32 s6, s6, s7")
        e("s_mul_i32 s7, s6, 37")
        e("s_lshr_b32 s7, s7, 8")
        e("s_mul_i32 s7, s7, 7")
        e("s_sub_u32 s6, s6, s7")
        e("s_lshl_b32 s5, s%d, 12" % S_WAVE)
        for c in range(1, cfg.ncx + 1):
            rot_next(e, 6, 7)
            e("s_lshl_b32 s4, s6, 7")
            dma_group(e, 5, c * 16384, [(S_X, 36 + i, 4, i * 1024, ("xc", c)) for i in range(4)])
    de = Em()
    _e = e
    e = de
    e("s_lshl_b32 s41, s%d, 1" % S_R)
    e("s_add_u32 s41, s41, s%d" % S_WT)
    e("s_mul_i32 s41, s41, 112")
    e("s_lshl_b32 s42, s%d, 1" % S_FB)
    e("s_add_u32 s42, s42, s%d" % S_WF)
    e("s_lshl_b32 s42, s42, 1")
    e("s_add_u32 s41, s41, s42")
    e("s_lshl_b32 s41, s41, 11")
    e("v_lshlrev_b32 v20, 4, v%d" % L)
    e("v_add_u32 v20, s41, v20")
    e("v_add_u32 v21, 0x%x, v20" % (56 * 2048))
    flag_addr(e, True)
    srd(e, S_DBG, 72, 256)
    e("v_mov_b32 v7, 0")
    e("s_mov_b32 s44, 0x%08x" % f2u(-LOG2E))
    e("s_mov_b32 s45, s44")
    defer_list = [ln.strip() for ln in de.lines]
    e = _e
    nonce_publish(e)
    if "pf2" in cfg.x:
        lab = e.newlabel("PF2")
        e("s_cmp_lg_u32 s%d, 0" % S_WAVE)
        e("s_cbranch_scc1 %s" % lab)
        srd(e, S_WD, 56, 1605632)
        e("s_mul_i32 s41, s%d, 14" % S_R)
        e("s_add_u32 s41, s41, s%d" % S_FB)
        e("s_mul_i32 s41, s41, 56")
        e("v_add_u32 v8, s41, v%d" % L)
        e("v_lshlrev_b32 v8, 7, v8")
        e("buffer_load_dword v9, v8, s[%d:%d], 0 offen" % (S_WD, S_WD + 3))
        e.label(lab)
    stamp(e, cfg, 0)
    if "notouch" not in cfg.x:
        srd(e, S_WD, 56, 1605632)
        e("s_lshr_b32 s41, s2, 3")
        e("s_mul_i32 s41, s41, 448")
        e("s_lshl_b32 s42, s%d, 6" % S_WAVE)
        e("s_add_u32 s41, s41, s42")
        e("v_add_u32 v8, s41, v%d" % L)
        e("v_lshlrev_b32 v8, 7, v8")
        e("buffer_load_dword v2, v8, s[%d:%d], 0 offen" % (S_WD, S_WD + 3))
        e("s_cmp_eq_u32 s%d, 3" % S_WAVE)
        lab = e.newlabel("TCH")
        e("s_cbranch_scc1 %s" % lab)
        e("v_add_u32 v8, 0x%x, v8" % (256 * 128))
        e("buffer_load_dword v3, v8, s[%d:%d], 0 offen" % (S_WD, S_WD + 3))
        e.label(lab)
    e("s_barrier")
    stamp(e, cfg, 1)
    if cfg.diag:
        e("s_memtime s[76:77]"); e("s_waitcnt lgkmcnt(0)")
    def reads(g):
        p = g // 28; kap = g % 28
        base = H_FR + 16 * (g & 1)
        c = kap >> 2; kk4 = kap & 3
        xo = c * 16384
        xv = V_XA2 + kk4 + (4 if xo >= 0x10000 else 0); xo &= 0xffff
        j = g >> 1; kk = g & 1
        so = (j % NW2) * WS2
        def xr(nb): return (("X", g, nb), "ds_read_b128 %s, v%d offset:%d" % (vr(base + 4 * nb, 4), xv, xo + nb * 4096))
        def wr(m, ip): return (("W", g, m), "ds_read_b64_tr_b16 %s, v%d offset:%d" % (vr(base + 8 + 4 * m + 2 * ip, 2), V_WA2, so + kk * 4096 + ip * 512 + m * 1024))
        return [wr(0, 0), wr(0, 1), xr(0), wr(1, 0), wr(1, 1), xr(1)]
    def epi_list(p):
        ACCB = H_ACC + 64 * p
        L_ = []
        def I(txt): L_.append(lambda: e(txt))
        grp = 0
        for nb in range(2):
            for hf in range(2):
                outb = 224 + 4 * grp; grp += 1
                A = ACCB + 16 * nb + 8 * hf; B = ACCB + 32 + 16 * nb + 8 * hf
                for q in range(0, 8, 2):
                    I("v_pk_mul_f32 %s, %s, s[44:45]" % (vr(A + q, 2), vr(A + q, 2)))
                for q in range(8):
                    I("v_exp_f32 v%d, v%d" % (A + q, A + q))
                for q in range(0, 8, 2):
                    I("v_pk_add_f32 %s, %s, s[46:47]" % (vr(A + q, 2), vr(A + q, 2))) if False else I("v_pk_add_f32 %s, %s, 1.0 op_sel_hi:[1,0]" % (vr(A + q, 2), vr(A + q, 2)))
                for q in range(8):
                    I("v_rcp_f32 v%d, v%d" % (A + q, A + q))
                for q in range(0, 8, 2):
                    I("v_pk_mul_f32 %s, %s, %s" % (vr(A + q, 2), vr(A + q, 2), vr(B + q, 2)))
                for q2 in range(4):
                    I("v_cvt_pk_bf16_f32 v%d, v%d, v%d" % (outb + q2, A + 2 * q2, A + 2 * q2 + 1))
                def st(outb=outb, nb=nb, hf=hf):
                    e("buffer_store_dwordx4 %s, v%d, s[%d:%d], 0 offen offset:%d sc1" % (vr(outb, 4), 20 + p, S_WS, S_WS + 3, hf * 2048 + nb * 1024))
                    e.vm_issue("hst")
                L_.append(st)
        return L_
    def epilogue(p):
        e("s_nop 7"); e("s_nop 3")
        for f in epi_list(p): f()
    pend_epi = []
    ge = Em()
    gate_list = []
    for tag, txt in reads(0):
        e(txt); e.lg_issue(tag)
    for g in range(56):
        base = H_FR + 16 * (g & 1)
        nxt = reads(g + 1) if g + 1 < 56 else []
        first = (g % 28 == 0)
        ACCB = H_ACC + 64 * (g // 28)
        if g == 28 + cfg.epi_start and cfg.epi_rate > 0:
            pend_epi = epi_list(0)
        k = 0
        for n in range(4):
            nb = n >> 1; m = n & 1
            if "wait2" in cfg.x:
                if n == 0: e.lg_wait([("W", g, 0), ("X", g, 0)])
                if n == 1: e.lg_wait([("W", g, 1), ("X", g, 1)])
            elif "wait1" in cfg.x:
                if n == 0: e.lg_wait([("W", g, 0), ("X", g, 0), ("W", g, 1), ("X", g, 1)])
            else:
                e.lg_wait([("W", g, m), ("X", g, nb)])
            d = ACCB + 32 * m + 16 * nb
            if "fake16" in cfg.x:
                for hh in range(2):
                    e("v_mfma_f32_16x16x32_bf16 %s, %s, %s, %s" % (vr(d + 8 * hh, 4), vr(base + 8 + 4 * m, 4), vr(base + 4 * nb, 4), "0" if first else vr(d + 8 * hh, 4)))
            elif "nomfma" not in cfg.x:
                mfma(e, d, base + 8 + 4 * m, base + 4 * nb, "0" if first else None)
            cnt = 2 if n < 2 else 1
            if "rd3" in cfg.x: cnt = (3, 3, 0, 0)[n]
            if "rd6" in cfg.x: cnt = (6, 0, 0, 0)[n]
            for _ in range(cnt):
                if k < len(nxt):
                    tag, txt = nxt[k]; k += 1
                    if "nolds" in cfg.x: continue
                    e(txt); e.lg_issue(tag)
            for _ in range(cfg.epi_rate):
                if pend_epi: pend_epi.pop(0)()
            for _ in range(cfg.defer_rate):
                if defer_list: e(defer_list.pop(0))
            if g >= cfg.gate_g:
                pass
                for _ in range(cfg.gate_rate):
                    if gate_list: e(gate_list.pop(0))
        if g == 27 and cfg.epi_rate == 0:
            epilogue(0)
        for c in range(1, cfg.ncx + 1):
            if g == 4 * c - 3:
                e.vm_wait([("xc", c)])
        if g == 46:
            nonce_load(e)
        if g == 2 * cfg.flagA_bar - 1:
            e("s_waitcnt vmcnt(0)")
        if (g & 1) and g < 55:
            e("s_barrier")
    assert not e.lg
    e.vm = []
    e("s_barrier")
    if cfg.diag:
        e("s_memtime s[78:79]"); e("s_waitcnt lgkmcnt(0)")
        e("s_sub_u32 s7, s78, s76")
    nonce_finish(e)
    assert not pend_epi and not gate_list
    stamp(e, cfg, 2)
    p2_role(e)
    flags_line(e, 0)
    pollAG_prep(e)
    poll_issue(e); e.vm_issue("pollA")
    epilogue(1)
    stamp(e, cfg, 3)

def h2_loader(e, cfg):
    L = V_LANE; T = 26
    VX = 10; VW = 14
    e("v_lshrrev_b32 v%d, 3, v%d" % (T, L))
    e("v_and_b32 v%d, 7, v%d" % (T + 1, L))
    e("v_lshrrev_b32 v%d, 4, v%d" % (T + 2, L))
    e("v_xor_b32 v%d, v%d, v%d" % (T + 3, T + 1, T + 2))
    e("v_lshlrev_b32 v%d, 4, v%d" % (T + 3, T + 3))
    e("v_mul_u32_u24 v%d, 28672, v%d" % (T + 4, T))
    e("s_lshl_b32 s41, s%d, 1" % S_R)
    e("s_lshr_b32 s42, s%d, 1" % S_LW)
    e("s_add_u32 s41, s41, s42")
    e("s_mul_i32 s41, s41, 896")
    e("s_and_b32 s42, s%d, 1" % S_LW)
    e("s_mul_i32 s42, s42, %d" % (32 * 28672))
    e("s_add_u32 s41, s41, s42")
    e("v_add3_u32 v%d, v%d, v%d, s41" % (VX, T + 4, T + 3))
    e("v_xor_b32 v%d, 64, v%d" % (T + 3, T + 3))
    e("s_add_u32 s42, s41, %d" % (8 * 28672 - 1024))
    e("v_add3_u32 v%d, v%d, v%d, s42" % (VX + 1, T + 4, T + 3))
    e("v_add_u32 v%d, %d, v%d" % (VX + 2, 16 * 28672 - 2048, VX))
    e("v_add_u32 v%d, %d, v%d" % (VX + 3, 16 * 28672 - 2048, VX + 1))
    e("v_mul_u32_u24 v%d, 3584, v%d" % (T + 4, T))
    e("v_and_b32 v%d, 1, v%d" % (T + 2, T + 2))
    e("v_lshlrev_b32 v%d, 2, v%d" % (T + 2, T + 2))
    e("v_xor_b32 v%d, v%d, v%d" % (T + 2, T + 2, T + 1))
    e("v_lshlrev_b32 v%d, 4, v%d" % (T + 2, T + 2))
    e("s_mul_i32 s41, s%d, %d" % (S_LW, 8 * 3584))
    e("s_lshl_b32 s42, s%d, 7" % S_FB)
    e("s_add_u32 s41, s41, s42")
    e("v_add3_u32 v%d, v%d, v%d, s41" % (VW, T + 4, T + 2))
    e("v_add_u32 v%d, %d, v%d" % (VW + 1, 32 * 3584, VW))
    e("s_lshl_b32 s%d, s%d, 11" % (S_LDSW, S_LW))
    e("s_lshl_b32 s%d, s%d, 12" % (S_LDSX, S_LW))
    e("s_mul_i32 s6, s%d, %d" % (S_R, RMUL[0]))
    e("s_mul_i32 s7, s%d, %d" % (S_FB, FMUL[0]))
    e("s_add_u32 s6, s6, s7")
    e("s_mul_i32 s7, s6, 37")
    e("s_lshr_b32 s7, s7, 8")
    e("s_mul_i32 s7, s7, 7")
    e("s_sub_u32 s6, s6, s7")
    e("s_waitcnt lgkmcnt(0)")
    srd(e, S_X, 44, 1835008)
    srd(e, S_WA, 52, 1605632)
    e("s_sub_u32 s%d, s54, 1024" % S_WB)
    e("s_subb_u32 s%d, s55, 0" % (S_WB + 1))
    e("s_and_b32 s%d, s%d, 0xffff" % (S_WB + 1, S_WB + 1))
    e("s_mov_b32 s%d, 0x%x" % (S_WB + 2, 1605632 + 1024))
    e("s_mov_b32 s%d, 0x20000" % (S_WB + 3))
    e("s_mov_b64 s[76:77], s[56:57]")
    e("s_mov_b64 s[78:79], s[58:59]")
    def emitT(dst):
        c = dst - 44
        e("s_lshl_b32 s%d, s6, 7" % (44 + c))
        e("s_mul_i32 s%d, s6, %d" % (51 + c, 64 * 3584))
    emitT(44)
    stamp(e, cfg, 0)
    tdone = [1]
    def need_table(c):
        while tdone[0] <= c:
            rot_next(e, 6, 7)
            emitT(44 + tdone[0]); tdone[0] += 1
    def dx(c):
        need_table(c)
        dma_group(e, S_LDSX, c * 16384, [(S_X, VX + i, 44 + c, i * 1024, ("x", c)) for i in range(4)])
    def dw(j):
        p = j // 14; jj = j % 14; c = jj >> 1
        need_table(c)
        va = VW + 2 * p + (jj & 1)
        dma_group(e, S_LDSW, WB2 + (j % NW2) * WS2, [(S_WA, va, 51 + c, 0, ("w", j)), (S_WB, va, 51 + c, 1024, ("w", j))])
    q = []
    for j in range(28):
        if j < 14 and j % 2 == 0 and not (1 <= j // 2 <= cfg.ncx): q.append(("x", j // 2, -1))
        q.append(("w", j, -1 if j < NW2 else j - NW2 + 1))
    def cost(it): return 4 if it[0] == "x" else 2
    def issue(it): (dx if it[0] == "x" else dw)(it[1])
    def need(j):
        t = []
        for jj in (j, j + 1):
            if jj <= 27:
                if jj < 14 and not (1 <= (jj >> 1) <= cfg.ncx): t.append(("x", jj >> 1))
                t.append(("w", jj))
        return t
    issued = set(); curbar = [-1]
    def ensure(tags):
        while q and any(t not in issued for t in tags):
            it = q.pop(0); assert it[2] <= curbar[0], (it, curbar)
            issue(it); issued.add((it[0], it[1]))
    ensure(need(0))
    e("v_add_u32 v%d, %d, v%d" % (VW + 2, 1792, VW))
    e("v_add_u32 v%d, %d, v%d" % (VW + 3, 1792, VW + 1))
    srd(e, S_WS, 74, WS_BYTES)
    srd(e, S_WD, 76, 1605632)
    srd(e, S_GW, 78, 896)
    srd(e, S_DBG, 72, 256)
    flag_addr(e, True)
    e("v_mov_b32 v7, 0")
    budget0 = cfg.pro_extra
    while q and budget0 > 0 and q[0][2] <= -1:
        it = q.pop(0); issue(it); issued.add((it[0], it[1])); budget0 -= cost(it)
    e.vm_wait(need(0))
    e("s_barrier")
    stamp(e, cfg, 1)
    for j in range(27):
        curbar[0] = j
        ensure(need(j + 1))
        budget = cfg.stage_budget2
        while q and budget > 0 and q[0][2] <= j:
            it = q.pop(0); issue(it); issued.add((it[0], it[1])); budget -= cost(it)
        if j == 1:
            p2_role(e)
            q_setup(e, 0, 26)
        if j == 14:
            q_table(e, 44, 2 * 16 * 896)
        if j >= 16 and j % 2 == 0:
            c = (j - 16) // 2
            q_dma_pair(e, 0, c, 26, 44)
        if j == 9:
            e("buffer_load_dword v4, v7, s[%d:%d], 0 offen sc1" % (S_DBG, S_DBG + 3))
            e.vm_issue("nonce")
        if j == 13:
            e.vm_wait(["nonce"])
            sv = list(e.vm)
            nonce_finish_any(e, keepvm=True)
            e.vm = sv
        if j == cfg.flagA_bar:
            lab = e.newlabel("FA")
            e("s_cmp_lg_u32 s%d, 4" % S_WAVE)
            e("s_cbranch_scc1 %s" % lab)
            flag_store(e)
            e.label(lab)
        if j == cfg.epoll:
            flags_line(e, 0)
            poll_prep(e, S_PF, 14)
            poll_issue(e); e.vm_issue("poll")
        e.vm_wait(need(j + 1))
        if "stg" in cfg.x and j + 1 in (4, 12, 15, 18, 26):
            pass
        e("s_barrier")
        if "stg" in cfg.x and j + 1 in (4, 12, 15, 18, 26):
            k = {4: 3, 12: 4, 15: 5, 18: 6, 26: 7}[j + 1]
            e("s_memtime s[%d:%d]" % (S_STAMP + 2 * k, S_STAMP + 2 * k + 1)); e("s_waitcnt lgkmcnt(0)")
    assert not q
    q_setup2(e, 0)
    q_table(e, 51, 4096)
    e.vm_wait([("wd", 11)])
    e("s_waitcnt lgkmcnt(0)")
    e("s_barrier")
    stamp(e, cfg, 2)
    poll_loop(e, 14, True)
    if cfg.diag: e("s_mov_b32 s%d, s41" % (S_STAMP + 16))
    stamp(e, cfg, 4)
    e.vm = []
    cfg.stepsA = q_steps(0, list(range(0, 2 * (6 - cfg.nca))) + [12, 13], 13)
    for i in range(cfg.hpre): q_issue_h(e, cfg.stepsA[i])
    q_dma_pair(e, 0, 6, 26, 44)

def nonce_finish_any(e, keepvm=False):
    lab = e.newlabel("NFA"); top = e.newlabel("NTA"); chk = e.newlabel("NCK")
    e("s_mov_b32 s42, 0")
    if keepvm: e("s_branch %s" % chk)
    e.label(top)
    e("s_waitcnt vmcnt(0)")
    e.label(chk)
    e("v_readfirstlane_b32 s%d, v4" % S_NONCE)
    e("s_nop 3")
    e("s_cmp_lg_u32 s%d, 0" % S_NONCE)
    e("s_cbranch_scc1 %s" % lab)
    e("s_add_u32 s42, s42, 1")
    e("s_cmp_ge_u32 s42, 0x40000")
    e("s_cbranch_scc1 %s" % lab)
    e("s_sleep 1")
    e("buffer_load_dword v4, v7, s[%d:%d], 0 offen sc1" % (S_DBG, S_DBG + 3))
    e("s_branch %s" % top)
    e.label(lab)

Q_ACC = 64
Q_H = 128
Q_A = 240
SL2 = 40960
SI = 3

def q_setup(e, part, vw=9):
    L = V_LANE
    e("s_and_b32 s%d, s%d, 3" % (SI, S_WAVE))
    e("v_lshrrev_b32 v2, 3, v%d" % L)
    e("v_bfe_u32 v3, v%d, 4, 1" % L)
    e("v_lshlrev_b32 v3, 2, v3")
    e("v_and_b32 v8, 7, v%d" % L)
    e("v_xor_b32 v3, v3, v8")
    e("v_lshlrev_b32 v3, 4, v3")
    e("s_mul_i32 s41, s%d, 224" % SI)
    if part: e("s_add_u32 s41, s41, 896")
    e("v_add_u32 v2, s41, v2")
    e("s_movk_i32 s42, 896")
    e("v_mul_lo_u32 v2, v2, s42")
    e("s_lshl_b32 s41, s%d, 7" % S_C)
    e("v_add3_u32 v%d, v2, v3, s41" % vw)
    e("v_add_u32 v%d, %d, v%d" % (vw + 1, 8 * 896 - 1024, vw))
    e("v_add_u32 v%d, %d, v%d" % (vw + 2, 16 * 896 - 2048, vw))
    e("v_add_u32 v%d, %d, v%d" % (vw + 3, 24 * 896 - 3072, vw))
    e("s_lshl_b32 s62, s%d, 12" % SI)
    e("s_and_b32 s4, s%d, 3" % S_T1)
    e("s_lshl_b32 s4, s4, 1")
    e("s_add_u32 s4, s4, s%d" % S_C)
    e("s_cmp_ge_u32 s4, 7")
    e("s_cselect_b32 s5, 7, 0")
    e("s_sub_u32 s4, s4, s5")
    if P2ROT[0] == 0: e("s_mov_b32 s4, 0")

def q_table(e, first, mult):
    e("s_mov_b32 s5, s4")
    for c in range(7):
        e("s_mul_i32 s%d, s5, %d" % (first + c, mult))
        if c < 6: rot_next(e, 5, 7)

def q_dma_pair(e, part, c, vw, tab):
    pos = q_pos(part, 2 * c)
    dma_group(e, 62, pos, [(S_WD, vw + i, tab + c, i * 1024, ("wd", 2 * c + (i >> 1))) for i in range(4)])

P2ROT = [1]
RMUL = [2]
FMUL = [1]
OSC = [""]
HSC = [" sc1"]
def q_setup2(e, part):
    L = V_LANE
    e("v_and_b32 v2, 15, v%d" % L)
    e("v_lshrrev_b32 v3, 2, v2")
    e("v_lshrrev_b32 v8, 5, v%d" % L)
    e("v_lshlrev_b32 v5, 2, v8")
    e("v_add_u32 v5, v5, v3")
    e("v_lshlrev_b32 v5, 7, v5")
    e("v_bfe_u32 v6, v2, 3, 1")
    e("v_lshlrev_b32 v6, 6, v6")
    e("v_bfe_u32 v3, v%d, 4, 1" % L)
    e("v_lshlrev_b32 v3, 5, v3")
    e("v_and_b32 v8, 3, v2")
    e("v_lshlrev_b32 v8, 3, v8")
    e("v_add3_u32 v5, v5, v6, v3")
    e("v_add_u32 v5, v5, v8")
    e("v_add_u32 v11, s62, v5")
    e("v_xor_b32 v12, 64, v11")
    e("v_add_u32 v18, 0x10000, v11")
    e("v_add_u32 v19, 0x10000, v12")
    e("v_add_u32 v15, 0x20000, v11")
    e("v_add_u32 v63, 0x20000, v12")
    e("s_mul_i32 s41, s%d, 112" % S_T1)
    e("s_mul_i32 s42, s%d, 14" % SI)
    e("s_add_u32 s41, s41, s42")
    if part: e("s_add_u32 s41, s41, 56")
    e("s_lshl_b32 s41, s41, 11")
    e("v_lshlrev_b32 v13, 4, v%d" % L)
    e("v_add_u32 v13, s41, v13")
    e("v_and_b32 v14, 31, v%d" % L)

def q_pos(part, kk):
    c = kk >> 1; u = kk & 1
    if part == 0: return c * 16384 + u * 2048
    if c < 3: return WB2 + c * 16384 + u * 2048
    if c < 6: return c * 16384 + u * 2048
    return 0 * 16384 + u * 2048

HT = [51]
def q_load_h(e, kk, hreg, hv, tag):
    c = kk >> 1; u = kk & 1
    for nb in range(2):
        e("buffer_load_dwordx4 %s, v%d, s[%d:%d], s%d offen offset:%d%s" % (vr(hreg + 4 * nb, 4), hv, S_WS, S_WS + 3, HT[0] + c, u * 2048 + nb * 1024, HSC[0]))
        e.vm_issue(tag)

def q_steps(part, kks, hv, reg0=0):
    return [dict(part=part, kk=kk, hv=hv, hreg=Q_H + 8 * (reg0 + i), tag=("h", part, kk)) for i, kk in enumerate(kks)]

def q_issue_h(e, st):
    q_load_h(e, st["kk"], st["hreg"], st["hv"], st["tag"])

def q_mainloop(e, cfg, steps, init_zero, pre, extra=None, after_i=None, barrier_before=None):
    n = len(steps)
    def reads(i):
        st = steps[i]
        b = Q_A + 8 * (i & 1)
        pos = q_pos(st["part"], st["kk"])
        for mb in range(2):
            for ip in range(2):
                va = (11 + mb) if pos < 0x10000 else (18 + mb)
                po = pos if pos < 0x10000 else pos - 0x10000
                if pos >= 0x20000:
                    va = (15, 63)[mb]; po = pos - 0x20000
                e("ds_read_b64_tr_b16 %s, v%d offset:%d" % (vr(b + 4 * mb + 2 * ip, 2), va, po + ip * 1024))
                e.lg_issue(("A", i, mb))
    nxt = pre
    e.vm_wait([("wd", steps[0]["kk"])])
    reads(0)
    for i in range(n):
        st = steps[i]
        if nxt < n:
            q_issue_h(e, steps[nxt]); nxt += 1
            if nxt == n and extra: extra()
        late = (barrier_before is not None and i + 1 == barrier_before)
        if i + 1 < n and not late:
            e.vm_wait([("wd", steps[i + 1]["kk"])])
            reads(i + 1)
        e.vm_wait([st["tag"]])
        b = Q_A + 8 * (i & 1)
        for mb in range(2):
            e.lg_wait([("A", i, mb)])
            for nb in range(2):
                mfma(e, Q_ACC + 16 * (2 * mb + nb), b + 4 * mb, st["hreg"] + 4 * nb, "0" if (i == 0 and init_zero) else None)
        if late:
            e("s_barrier")
            reads(i + 1)
        if after_i: after_i(i)
    assert not e.lg and nxt >= n

def flags_line(e, part):
    e("s_lshr_b32 s43, s%d, 1" % S_T1)
    e("s_lshl_b32 s43, s43, 9")
    e("s_add_u32 s%d, s43, 0x%x" % (S_PF, FLAGS + 256 * part))

def q_loader_A(e, cfg):
    for i in range(4):
        e("v_add_u32 v%d, %d, v%d" % (20 + i, 896 * 896, 26 + i))
    stamp(e, cfg, 5)
    def after_i(i):
        if i == 1:
            dma_group(e, 62, q_pos(1, 12), [(S_WD, 20 + k, 44 + 6, k * 1024, ("wdb", 6)) for k in range(4)])
        if (i & 1) and 3 <= (i >> 1) < 6 - cfg.nca:
            c = i >> 1
            dma_group(e, 62, q_pos(1, 2 * c), [(S_WD, 20 + k, 44 + c, k * 1024, ("wdb", c)) for k in range(4)])
    q_mainloop(e, cfg, cfg.stepsA, True, cfg.hpre, None, after_i)
    stamp(e, cfg, 6)
    e("v_lshlrev_b32 v2, 4, v%d" % V_LANE)
    e("v_add_u32 v2, s62, v2")
    e("v_add_u32 v3, 0x10000, v2")
    e("s_nop 7"); e("s_nop 3")
    for tl, (va, off) in enumerate(((2, 16384), (2, 32768), (3, 6 * 16384 - 0x10000))):
        for qq in range(4):
            e("ds_write_b128 v%d, %s offset:%d" % (va, vr(Q_ACC + 16 * tl + 4 * qq, 4), off + qq * 1024))
    e("s_waitcnt vmcnt(0) lgkmcnt(0)")
    e.vm = []
    e("s_barrier")
    stamp(e, cfg, 7)
    e("v_add_u32 v3, 0x%x, v2" % WB2)
    for qq in range(4):
        e("ds_write_b128 v3, %s offset:%d" % (vr(Q_ACC + 48 + 4 * qq, 4), qq * 1024))
    e("s_waitcnt lgkmcnt(0)")
    e("s_barrier")

def tprime(e):
    L = V_LANE
    e("s_cmp_lg_u32 s%d, 0" % S_T1)
    e("s_cselect_b32 s76, s63, 0")
    e("v_add_u32 v2, s76, v14")
    e("v_lshrrev_b32 v8, 5, v%d" % L)
    e("v_lshlrev_b32 v8, 2, v8")
    e("s_lshl_b32 s77, s%d, 4" % SI)
    e("v_add_u32 v8, s77, v8")
    e("s_lshl_b32 s76, s63, 31")
    e("s_mov_b32 s77, 0x%08x" % f2u(1.0 / 64))
    for nb in range(2):
        if nb: e("v_add_u32 v2, 32, v2")
        e("v_xor_b32 v21, s76, v%d" % (22 + nb))
        for u in range(2):
            for q in range(4):
                e("v_add_u32 v3, %d, v8" % (8 * u + q))
                e("v_mul_u32_u24 v3, v3, v2")
                e("v_and_b32 v3, 63, v3")
                e("v_cvt_f32_u32 v3, v3")
                e("v_mul_f32 v3, s77, v3")
                e("v_cos_f32 v5, v3")
                e("v_sin_f32 v6, v3")
                e("s_nop 0")
                e("v_mul_f32 v5, v5, v%d" % (22 + nb))
                e("v_mul_f32 v6, v6, v21")
                e("v_cvt_pk_bf16_f32 v%d, v5, v6" % (T_REG + 8 * nb + 4 * u + q))
    for nb in range(2):
        e("v_sub_f32 v%d, 1.0, v%d" % (40 + 2 * nb, 22 + nb))
        e("v_mov_b32 v%d, v%d" % (41 + 2 * nb, 40 + 2 * nb))

T_REG = 44
U_REG = 128
def q_consumer_B(e, cfg):
    L = V_LANE
    q_setup(e, 1, 26)
    q_setup2(e, 1)
    e("v_subrev_u32 v9, %d, v13" % (56 * 2048))
    srd(e, S_OUT, 46, 1835008)
    srd(e, S_WD, 56, 1605632)
    q_table(e, 44, 2 * 16 * 896)
    q_table(e, 51, 4096)
    e.vm_wait(["pollA"])
    okA = e.newlabel("AOK")
    topA = e.newlabel("ATOP")
    e("s_mov_b32 s41, 0")
    e.label(topA)
    e("v_cmp_eq_u32 vcc, s%d, v60" % S_NONCE)
    e("s_nop 1")
    e("s_and_b32 s42, vcc_lo, 0x3fff")
    e("s_cmp_eq_u32 s42, 0x3fff")
    e("s_cselect_b32 s42, vcc_hi, 0")
    e("s_cmp_eq_u32 s42, -1")
    e("s_cbranch_scc1 %s" % okA)
    e("s_add_u32 s41, s41, 1")
    e("s_cmp_ge_u32 s41, 0x40000")
    e("s_cbranch_scc1 %s" % okA)
    poll_issue(e)
    e("s_waitcnt vmcnt(0)")
    e("s_branch %s" % topA)
    e.label(okA)
    stepsCA = q_steps(0, list(range(2 * (6 - cfg.nca), 12)), 9)
    for st in stepsCA[:cfg.preCA]: q_issue_h(e, st)
    e("s_cmp_ge_u32 s%d, 4" % S_C)
    e("s_cselect_b32 s63, 1, 0")
    e("s_sub_u32 s64, 32, s%d" % S_T1)
    e("s_and_b32 s64, s64, 31")
    e("s_cmp_eq_u32 s63, 1")
    e("s_cselect_b32 s64, s64, s%d" % S_T1)
    e("v_lshrrev_b32 v8, 5, v%d" % L)
    e("s_lshl_b32 s41, s%d, 6" % S_C)
    e("s_cmp_eq_u32 s63, 1")
    e("s_cselect_b64 vcc, -1, 0")
    for mb in range(2):
        e("v_add_u32 v2, s41, v14")
        if mb: e("v_add_u32 v2, 32, v2")
        e("v_sub_u32 v3, 448, v2")
        e("v_cndmask_b32 v2, v2, v3, vcc")
        e("v_lshlrev_b32 v2, 4, v2")
        e("v_lshlrev_b32 v3, 12, v8")
        e("v_add_u32 v%d, v2, v3" % (16 + mb))
    e("s_lshl_b32 s41, s64, 4")
    e("s_lshl_b32 s42, s%d, 2" % SI)
    e("s_add_u32 s41, s41, s42")
    e("s_lshl_b32 s41, s41, 12")
    e("s_add_u32 s65, s41, 0x%x" % UBUF)
    e("s_lshl_b32 s41, s%d, 6" % S_T1)
    e("v_add_u32 v2, s41, v14")
    e("v_lshlrev_b32 v2, 2, v2")
    e("v_add_u32 v20, 0x%x, v2" % GBUF)
    e("s_mul_i32 s41, s61, 12")
    e("s_lshl_b32 s42, s%d, 2" % S_WAVE)
    e("s_add_u32 s41, s41, s42")
    e("s_add_u32 s41, s41, 256")
    e("s_add_u32 s%d, s%d, s41" % (S_FLAG, S_FLAG))
    e.vm_wait(["hst"])
    stamp(e, cfg, 6)
    flag_store(e)
    e.vm_issue("flagB")
    for nb in range(2):
        e("buffer_load_dword v%d, v20, s[%d:%d], 0 offen offset:%d sc1" % (22 + nb, S_WS, S_WS + 3, nb * 128))
        e.vm_issue("g")
    for st in stepsCA[cfg.preCA:]: q_issue_h(e, st)
    for c in range(3): q_dma_pair(e, 1, c, 26, 44)
    e.vm_wait(["g"])
    tprime(e)
    def afterA(i):
        if i & 1:
            c = 6 - cfg.nca + (i >> 1)
            q_dma_pair(e, 1, c, 26, 44)
    if stepsCA:
        q_mainloop(e, cfg, stepsCA, True, len(stepsCA), None, afterA)
    stamp(e, cfg, 4)
    flags_line(e, 1)
    poll_prep(e, S_PF, 56)
    poll_loop56(e)
    stamp(e, cfg, 5)
    e.vm = []
    e("v_lshlrev_b32 v62, 2, v%d" % V_LANE)
    e("v_add_u32 v62, 0x%x, v62" % (FLAGS + 16 * 512))
    e("v_mov_b32 v60, 0x7fffffff")
    e("v_cmp_gt_u32 vcc, 32, v%d" % V_LANE)
    e("s_nop 1")
    e("v_cndmask_b32 v62, v60, v62, vcc")
    def uloads():
        for u in range(2):
            for mb in range(2):
                e("s_add_u32 s%d, s65, %d" % (S_OFF, u * 2 * 4096))
                e("buffer_load_dwordx4 %s, v%d, s[%d:%d], s%d offen sc1" % (vr(U_REG + 8 * u + 4 * mb, 4), 16 + mb, S_WS, S_WS + 3, S_OFF))
                e.vm_issue("u")
    def dflag_issue():
        e("buffer_load_dword v10, v62, s[%d:%d], 0 offen sc1" % (S_WS, S_WS + 3))
        e.vm_issue("dflag")
    def after_k(kk):
        if kk == cfg.dchk:
            ok = e.newlabel("DOK"); top = e.newlabel("DSP")
            e.vm_wait(["dflag"])
            sv = list(e.vm)
            e("s_mov_b32 s41, 0")
            e.label(top)
            e("v_cmp_eq_u32 vcc, s%d, v10" % S_NONCE)
            e("s_nop 1")
            e("s_cmp_eq_u32 vcc_lo, -1")
            e("s_cbranch_scc1 %s" % ok)
            e("s_add_u32 s41, s41, 1")
            e("s_cmp_ge_u32 s41, 0x40000")
            e("s_cbranch_scc1 %s" % ok)
            e("buffer_load_dword v10, v62, s[%d:%d], 0 offen sc1" % (S_WS, S_WS + 3))
            e("s_waitcnt vmcnt(0)")
            e("s_branch %s" % top)
            e.label(ok)
            e.vm = sv
            uloads()
    stepsB = q_steps(1, list(range(14)), 13)
    for i in range(cfg.hpreB): q_issue_h(e, stepsB[i])
    q_mainloop(e, cfg, stepsB, cfg.nca == 0, cfg.hpreB, dflag_issue, after_k, 2 if cfg.nca == 3 else 6)
    stamp(e, cfg, 7)
    e("s_nop 7"); e("s_nop 3")
    for mb in range(2):
        for nb in range(2):
            D = Q_ACC + 16 * (2 * mb + nb)
            for i in range(0, 16, 2):
                e("v_pk_mul_f32 %s, %s, %s" % (vr(D + i, 2), vr(D + i, 2), vr(40 + 2 * nb, 2)))
    e.vm_wait(["u"])
    e("s_nop 1")
    for u in range(2):
        for mb in range(2):
            for nb in range(2):
                mfma(e, Q_ACC + 16 * (2 * mb + nb), U_REG + 8 * u + 4 * mb, T_REG + 8 * nb + 4 * u)
    e("v_lshlrev_b32 v2, 4, v%d" % L)
    e("s_add_u32 s41, s%d, 2" % SI)
    e("s_cmp_eq_u32 s%d, 0" % SI)
    e("s_cselect_b32 s41, 0, s41")
    e("s_lshl_b32 s41, s41, 14")
    e("v_add_u32 v3, s41, v2")
    e("s_add_u32 s41, s%d, 1" % SI)
    e("s_lshl_b32 s41, s41, 14")
    e("s_cmp_eq_u32 s%d, 2" % SI)
    e("s_cselect_b32 s41, %d, s41" % (6 * 16384))
    e("s_cmp_eq_u32 s%d, 3" % SI)
    e("s_cselect_b32 s41, 0x%x, s41" % WB2)
    e("v_add_u32 v5, s41, v2")
    e("s_lshl_b32 s41, s%d, 12" % SI)
    e("v_add_u32 v6, s41, v2")
    e("v_add_u32 v7, 0x10000, v6")
    e("s_and_b32 s41, s%d, 1" % SI)
    e("s_cmp_eq_u32 s41, 1")
    e("s_cselect_b64 vcc, -1, 0")
    e("s_lshl_b32 s41, s41, 5")
    e("v_add_u32 v8, s41, v14")
    e("v_cndmask_b32 v40, v40, v42, vcc")
    e("v_mov_b32 v41, v40")
    e("v_lshlrev_b32 v8, 5, v8")
    e("v_add_u32 v8, s%d, v8" % S_T1)
    e("s_movk_i32 s42, 896")
    e("v_mul_lo_u32 v8, v8, s42")
    e("s_lshl_b32 s41, s%d, 7" % S_C)
    e("s_lshr_b32 s42, s%d, 1" % SI)
    e("s_lshl_b32 s42, s42, 6")
    e("s_add_u32 s41, s41, s42")
    e("v_lshrrev_b32 v9, 5, v%d" % L)
    e("v_lshlrev_b32 v9, 4, v9")
    e("v_add3_u32 v8, v8, v9, s41")
    e("s_barrier")
    regions = ((6, 0), (6, 3 * 16384), (7, 0), (7, 16384))
    done = e.newlabel("XDONE")
    labs = [e.newlabel("XV%d_" % w) for w in range(4)]
    for w in range(1, 4):
        e("s_cmp_eq_u32 s%d, %d" % (SI, w))
        e("s_cbranch_scc1 %s" % labs[w])
    for w in range(4):
        e.label(labs[w])
        others = [t for t in range(4) if t != w]
        for tl in others:
            for qq in range(4):
                e("ds_write_b128 v3, %s offset:%d" % (vr(Q_ACC + 16 * tl + 4 * qq, 4), tl * 4096 + qq * 1024))
            if tl == others[1]: e("s_waitcnt lgkmcnt(4)")
        for k in range(4):
            for qq in range(4):
                e("ds_read_b128 %s, v5 offset:%d" % (vr(192 + 16 * k + 4 * qq, 4), k * 4096 + qq * 1024))
            if k in (0, 1, 2): e("s_waitcnt lgkmcnt(8)")
        for q in range(0, 16, 2):
            e("v_pk_mul_f32 %s, %s, 1.0 op_sel_hi:[1,0]" % (vr(128 + q, 2), vr(Q_ACC + 16 * w + q, 2)))
        e("s_waitcnt lgkmcnt(0)")
        e("s_barrier")
        for n, k in enumerate(others):
            va, off = regions[k]
            for qq in range(4):
                e("ds_read_b128 %s, v%d offset:%d" % (vr(144 + 16 * n + 4 * qq, 4), va, off + qq * 1024))
        if w < 3: e("s_branch %s" % done)
    e.label(done)
    for q in range(0, 16, 2):
        e("v_pk_add_f32 %s, %s, %s" % (vr(192 + q, 2), vr(192 + q, 2), vr(208 + q, 2)))
        e("v_pk_add_f32 %s, %s, %s" % (vr(224 + q, 2), vr(224 + q, 2), vr(240 + q, 2)))
    for q in range(0, 16, 2):
        e("v_pk_add_f32 %s, %s, %s" % (vr(192 + q, 2), vr(192 + q, 2), vr(224 + q, 2)))
    for q in range(0, 16, 2):
        e("v_pk_fma_f32 %s, %s, %s, %s" % (vr(128 + q, 2), vr(192 + q, 2), vr(40, 2), vr(128 + q, 2)))
    e("s_waitcnt lgkmcnt(0)")
    for q in range(0, 16, 2):
        e("v_pk_add_f32 %s, %s, %s" % (vr(144 + q, 2), vr(144 + q, 2), vr(160 + q, 2)))
        e("v_pk_add_f32 %s, %s, %s" % (vr(128 + q, 2), vr(128 + q, 2), vr(176 + q, 2)))
    for q in range(0, 16, 2):
        e("v_pk_add_f32 %s, %s, %s" % (vr(128 + q, 2), vr(128 + q, 2), vr(144 + q, 2)))
    for q in range(8):
        e("v_cvt_pk_bf16_f32 v%d, v%d, v%d" % (96 + q, 128 + 2 * q, 128 + 2 * q + 1))
    e("s_nop 1")
    for ih in range(2):
        e("v_permlane32_swap_b32 v%d, v%d" % (96 + 4 * ih, 98 + 4 * ih))
        e("v_permlane32_swap_b32 v%d, v%d" % (97 + 4 * ih, 99 + 4 * ih))
    for ih in range(2):
        e("buffer_store_dwordx4 %s, v8, s[%d:%d], 0 offen offset:%d%s" % (vr(96 + 4 * ih, 4), S_OUT, S_OUT + 3, ih * 32, OSC[0]))
    stamp(e, cfg, 8)

def kernel_fused2(e, cfg):
    name = "gated_mix__spectral_fnet__glu_gated_glu__prompt_kernel"
    header(e, name)
    if cfg.diag:
        e("s_memrealtime s[%d:%d]" % (S_STAMP + 6, S_STAMP + 7))
    e("s_cmp_ge_u32 s2, 256")
    e("s_cbranch_scc1 KF_END")
    kernarg_loads(e)
    entry_common(e)
    e("s_and_b32 s%d, s%d, 3" % (S_WF, S_WAVE))
    e("s_and_b32 s%d, s%d, 3" % (S_LW, S_WAVE))
    e("s_and_b32 s41, s2, 7")
    e("s_lshr_b32 s42, s2, 3")
    e("s_cmp_ge_u32 s42, 28")
    e("s_cbranch_scc1 P1_DFT")
    e("s_mul_i32 s43, s42, 37")
    e("s_lshr_b32 s43, s43, 8")
    e("s_mul_i32 s76, s43, 7")
    e("s_sub_u32 s76, s42, s76")
    e("s_lshr_b32 s77, s41, 1")
    e("s_lshl_b32 s77, s77, 2")
    e("s_add_u32 s%d, s77, s43" % S_R)
    e("s_and_b32 s77, s41, 1")
    e("s_mul_i32 s77, s77, 7")
    e("s_add_u32 s%d, s77, s76" % S_FB)
    e("s_cmp_lt_u32 s%d, 4" % S_WAVE)
    e("s_cbranch_scc1 P1_H_CONSUMER")
    e.vm = []; e.lg = []
    STG[0] = True
    h2_loader(e, cfg)
    q_loader_A(e, cfg)
    STG[0] = False
    stamp_store(e, cfg, 0)
    e("s_endpgm")
    e.label("P1_H_CONSUMER")
    e.vm = []; e.lg = []
    h2_consumer(e, cfg)
    q_consumer_B(e, cfg)
    stamp_store(e, cfg, 0)
    e("s_endpgm")
    e.label("P1_DFT")
    e("s_sub_u32 s42, s42, 28")
    e("s_and_b32 s%d, s41, 1" % S_EH)
    e("s_lshr_b32 s77, s41, 1")
    e("s_lshl_b32 s77, s77, 2")
    e("s_add_u32 s%d, s77, s42" % S_QG)
    e("s_cmp_ge_u32 s%d, 4" % S_WAVE)
    e("s_cbranch_scc1 P1_D_LOADER")
    e.vm = []; e.lg = []
    p1_consumer(e, cfg, False)
    d_epilogue(e, cfg)
    stamp(e, cfg, 3)
    e.vm_wait_all()
    e("s_barrier")
    lab = e.newlabel("DNOTW0")
    e("s_cmp_lg_u32 s%d, 0" % S_WAVE)
    e("s_cbranch_scc1 %s" % lab)
    flag_store(e)
    e("s_waitcnt vmcnt(0)")
    e.label(lab)
    stamp_store(e, cfg, 0)
    e("s_endpgm")
    e.label("P1_D_LOADER")
    e.vm = []; e.lg = []
    p1_loader(e, cfg, False)
    stamp(e, cfg, 3)
    e("s_waitcnt vmcnt(0)")
    e("s_barrier")
    stamp_store(e, cfg, 0)
    e("s_endpgm")
    e.label("KF_END")
    e("s_endpgm")
    e.label("KF_CODE_END")

def descriptor(name):
    return """.section .rodata,"a"
.p2align 6
.amdhsa_kernel %s
  .amdhsa_next_free_vgpr 256
  .amdhsa_next_free_sgpr 102
  .amdhsa_accum_offset 256
  .amdhsa_group_segment_fixed_size 0
  .amdhsa_kernarg_size 104
  .amdhsa_user_sgpr_count 2
  .amdhsa_user_sgpr_kernarg_segment_ptr 1
  .amdhsa_system_sgpr_workgroup_id_x 1
.end_amdhsa_kernel
""" % name

def main():
    cfg = Cfg()
    cfg.pro_extra = 8; cfg.stage_budget = 8; cfg.p2_la = 3; cfg.p2_dpoll = 4; cfg.stage_budget2 = 6; cfg.flagA_bar = 22; cfg.epi_rate = 0; cfg.epi_start = 1; cfg.epoll = 26; cfg.hpre = 5; cfg.preCA = 0; cfg.nca = 2; cfg.hpreB = 5; cfg.dchk = 11; cfg.gate_j = 5; cfg.gflag_k = 9; cfg.ncx = 0; cfg.gate_g = 14; cfg.gate_rate = 3; cfg.defer_rate = 3; cfg.pfWd_j = 1; cfg.pfW_j = 1
    out = sys.argv[1]
    for a in sys.argv[2:]:
        if a == "nop2rot": P2ROT[0] = 0
        if a == "rmul1": RMUL[0] = 1
        if a.startswith("rm_"): RMUL[0] = int(a[3:])
        if a.startswith("fm_"): FMUL[0] = int(a[3:])
        if a == "osc1": OSC[0] = " sc1"
        if a == "ont": OSC[0] = " nt"
        if a == "osc01": OSC[0] = " sc0 sc1"
        if a == "hplain": HSC[0] = ""
        if a == "hnt": HSC[0] = " nt"
        if a == "hsc01": HSC[0] = " sc0 sc1"
        if a == "diag": cfg.diag = True
        elif a == "fused": cfg.fused = True
        elif "=" in a:
            k, v = a.split("="); setattr(cfg, k, int(v))
        else: cfg.x = cfg.x | {a}
    e = Em()
    if cfg.fused:
        name = "gated_mix__spectral_fnet__glu_gated_glu__prompt_kernel"
        hdr = "; generated by gen2.py (fused)\n; @launch grid=(256,1,1) block=(512,1,1) lds=163840\n"
        hdr += '.amdgcn_target "amdgcn-amd-amdhsa--gfx950"\n'
        kernel_fused2(e, cfg)
        open(out, "w").write(hdr + e.text() + descriptor(name))
        return
    hdr = "; generated by gen2.py\n"
    hdr += "; @launch kernel=k1_kernel grid=(256,1,1) block=(512,1,1) lds=163840\n"
    hdr += "; @launch kernel=k2_kernel grid=(256,1,1) block=(512,1,1) lds=163840\n"
    hdr += '.amdgcn_target "amdgcn-amd-amdhsa--gfx950"\n'
    kernel1(e, cfg)
    kernel2(e, cfg)
    txt = hdr + e.text() + descriptor("k1_kernel") + descriptor("k2_kernel")
    open(out, "w").write(txt)
if __name__ == "__main__":
    main()
```

```python
import sys, math, struct

def f2u(f): return struct.unpack("<I", struct.pack("<f", f))[0]

class Em:
    def __init__(self):
        self.lines = []
        self.vm = []
        self.lg = []
        self.nlab = 0
    def __call__(self, s): self.lines.append("    " + s)
    def raw(self, s): self.lines.append(s)
    def label(self, s): self.lines.append(s + ":")
    def newlabel(self, p):
        self.nlab += 1
        return "%s_%d" % (p, self.nlab)
    def vm_issue(self, tag): self.vm.append(tag)
    def vm_wait(self, tags):
        last = -1
        for i, t in enumerate(self.vm):
            if t in tags: last = i
        if last < 0: return
        n = len(self.vm) - 1 - last
        assert n <= 63, n
        self("s_waitcnt vmcnt(%d)" % n)
        self.vm = self.vm[last + 1:]
    def vm_wait_all(self):
        self("s_waitcnt vmcnt(0)"); self.vm = []
    def lg_issue(self, tag): self.lg.append(tag)
    def lg_wait(self, tags):
        last = -1
        for i, t in enumerate(self.lg):
            if t in tags: last = i
        if last < 0: return
        n = len(self.lg) - 1 - last
        assert n <= 15, n
        self("s_waitcnt lgkmcnt(%d)" % n)
        self.lg = self.lg[last + 1:]
    def lg_wait_all(self):
        self("s_waitcnt lgkmcnt(0)"); self.lg = []
    def text(self): return "\n".join(self.lines) + "\n"

def vr(a, n=1): return "v%d" % a if n == 1 else "v[%d:%d]" % (a, a + n - 1)

HBUF = 0
UBUF = 0x700000
GBUF = 0x900000
FLAGS = 0x910000
DIAG = 0xA00000
WS_BYTES = 0x1000000
LOG2E = 1.4426950408889634

S_X = 8; S_WA = 12; S_WB = 16; S_WS = 20; S_GW = 24; S_OUT = 28; S_WD = 32; S_DBG = 36
S_WAVE = 40
S_R = 60; S_FB = 61; S_QG = 62; S_EH = 63
S_WF = 64; S_LW = 65
S_LDSW = 66; S_LDSX = 67
S_OFF = 68
S_T1 = 70; S_C = 71
S_STAMP = 80
S_NONCE = 98; S_FLAG = 99; S_PF = 100
V_LANE = 1

class Cfg:
    fused = False
    diag = False
    x = set()

def kernarg_loads(e):
    e("s_load_dwordx2 s[44:45], s[0:1], 0")
    e("s_load_dwordx4 s[48:51], s[0:1], 24")
    e("s_load_dwordx4 s[52:55], s[0:1], 48")
    e("s_load_dwordx4 s[56:59], s[0:1], 64")
    e("s_load_dwordx2 s[46:47], s[0:1], 80")
    e("s_load_dwordx4 s[72:75], s[0:1], 88")

def srd(e, dst, lo, nbytes):
    e("s_mov_b32 s%d, s%d" % (dst, lo))
    e("s_and_b32 s%d, s%d, 0xffff" % (dst + 1, lo + 1))
    e("s_mov_b32 s%d, 0x%x" % (dst + 2, nbytes))
    e("s_mov_b32 s%d, 0x20000" % (dst + 3))

NSTAMP = 6
STG = [False]
def stamp(e, cfg, k):
    if cfg.diag and not ("stg" in cfg.x and k in (4,5,6,7) and STG[0]):
        assert not e.lg
        e("s_memrealtime s[%d:%d]" % (S_STAMP + 2 * k, S_STAMP + 2 * k + 1))
        if k in (1, 2) and not cfg.fused:
            e("s_memtime s[%d:%d]" % (S_STAMP + 12 + 2 * (k - 1), S_STAMP + 13 + 2 * (k - 1)))
        e("s_waitcnt lgkmcnt(0)")

def stamp_store(e, cfg, slot_base):
    if not cfg.diag: return
    e("s_lshl_b32 s41, s2, 3")
    e("s_add_u32 s41, s41, s%d" % S_WAVE)
    e("s_lshl_b32 s41, s41, 6")
    e("s_add_u32 s41, s41, 0x%x" % (DIAG + slot_base))
    e("v_mov_b32 v1, s41")
    for k in range(9 if cfg.fused else NSTAMP + 2):
        e("v_mov_b32 v2, s%d" % (S_STAMP + 2 * k))
        e("buffer_store_dword v2, v1, s[%d:%d], 0 offen offset:%d" % (S_WS, S_WS + 3, 4 * k))
        e("s_nop 1")
    e("v_mov_b32 v2, s7")
    e("buffer_store_dword v2, v1, s[%d:%d], 0 offen offset:36" % (S_WS, S_WS + 3))
    e("s_waitcnt vmcnt(0)")

def mfma(e, d, a, b, c=None):
    cs = vr(d, 16) if c is None else c
    e("v_mfma_f32_32x32x16_bf16 %s, %s, %s, %s" % (vr(d, 16), vr(a, 4), vr(b, 4), cs))

NODMA = [False]
def dma_group(e, sldsbase, ldsconst, items):
    e("s_add_u32 m0, s%d, 0x%x" % (sldsbase, ldsconst))
    e("s_nop 0")
    for (srdreg, vaddr, soff, ioff, tag) in items:
        e("buffer_load_dwordx4 v%d, s[%d:%d], s%d offen offset:%d lds" % (vaddr, srdreg, srdreg + 3, soff, ioff))
        e.vm_issue(tag)
def fill_table(e, first, n, scnt, mod, emit):
    for c in range(n):
        emit(first + c)
        if c + 1 < n: rot_next(e, scnt, mod)
def rot_next(e, sreg, n):
    e("s_add_u32 s%d, s%d, 1" % (sreg, sreg))
    e("s_cmp_eq_u32 s%d, %d" % (sreg, n))
    e("s_cselect_b32 s%d, 0, s%d" % (sreg, sreg))
def dma(e, srdreg, vaddr, ldsconst, sldswave, soff, tag):
    if NODMA[0]:
        e.vm_issue(tag); e.vm.pop(); return
    e("s_add_u32 m0, s%d, 0x%x" % (sldswave, ldsconst))
    if soff is None:
        e("s_nop 0")
    else:
        e("s_mov_b32 s%d, 0x%x" % (S_OFF, soff))
    e("buffer_load_dwordx4 v%d, s[%d:%d], s%d offen lds" % (vaddr, srdreg, srdreg + 3, S_OFF))
    e.vm_issue(tag)

XSLOT = 16384; NX = 4
WBASE = 65536; NW = 6; WSLOT = 16384
ACC = 64
def accA(i): return ACC + 16 * i
def accB(i): return ACC + 64 + 16 * i
FR = 192
V_XA = 10
V_WA = 14
CONST_LDS = 0

def p1_consumer_addr(e, is_h):
    L = V_LANE; T = 26
    e("v_and_b32 v%d, 31, v%d" % (T, L))
    e("v_lshrrev_b32 v%d, 5, v%d" % (T + 1, L))
    e("v_lshrrev_b32 v%d, 1, v%d" % (T + 2, T))
    e("v_and_b32 v%d, 7, v%d" % (T + 2, T + 2))
    e("v_lshlrev_b32 v%d, 7, v%d" % (T + 3, T))
    if not is_h:
        e("s_lshl_b32 s41, s%d, 5" % S_WF)
        e("v_add_u32 v%d, s41, v%d" % (T + 5, T))
        e("v_lshlrev_b32 v%d, 7, v%d" % (T + 5, T + 5))
        e("v_add_u32 v%d, 0x%x, v%d" % (T + 5, WBASE, T + 5))
    for k in range(4):
        e("v_add_u32 v%d, %d, v%d" % (T + 4, 2 * k, T + 1))
        e("v_xor_b32 v%d, v%d, v%d" % (T + 4, T + 4, T + 2))
        e("v_lshlrev_b32 v%d, 4, v%d" % (T + 4, T + 4))
        e("v_add_u32 v%d, v%d, v%d" % (V_XA + k, T + 3, T + 4))
        if not is_h:
            e("v_add_u32 v%d, v%d, v%d" % (V_WA + k, T + 5, T + 4))
            e("v_add_u32 v%d, 0x10000, v%d" % (V_WA + 4 + k, V_WA + k))
    if is_h:
        e("v_and_b32 v%d, 15, v%d" % (T + 4, L))
        e("v_lshrrev_b32 v%d, 2, v%d" % (T + 5, T + 4))
        e("v_lshlrev_b32 v%d, 3, v%d" % (T + 6, T + 1))
        e("v_add_u32 v%d, v%d, v%d" % (T + 6, T + 6, T + 5))
        e("v_lshlrev_b32 v%d, 8, v%d" % (T + 6, T + 6))
        e("v_xor_b32 v%d, s%d, v%d" % (T + 7, S_WF, T + 5))
        e("v_lshlrev_b32 v%d, 6, v%d" % (T + 7, T + 7))
        e("v_add_u32 v%d, v%d, v%d" % (T + 6, T + 6, T + 7))
        e("v_bfe_u32 v%d, v%d, 4, 1" % (T + 7, L))
        e("v_lshlrev_b32 v%d, 5, v%d" % (T + 7, T + 7))
        e("v_add_u32 v%d, v%d, v%d" % (T + 6, T + 6, T + 7))
        e("v_and_b32 v%d, 3, v%d" % (T + 7, T + 4))
        e("v_lshlrev_b32 v%d, 3, v%d" % (T + 7, T + 7))
        e("v_add_u32 v%d, v%d, v%d" % (T + 6, T + 6, T + 7))
        e("v_add_u32 v%d, 0x%x, v%d" % (V_WA, WBASE, T + 6))
        e("v_add_u32 v%d, 0x%x, v%d" % (V_WA + 1, WBASE + 0x10000, T + 6))

def p1_reads(kap, is_h):
    base = FR + 24 * (kap & 1)
    c = kap >> 2; kk4 = kap & 3
    def xr(nb): return (("X", kap, nb), "ds_read_b128 %s, v%d offset:%d" % (vr(base + 4 * nb, 4), V_XA + kk4, (c % NX) * XSLOT + nb * 4096))
    if is_h:
        j = kap >> 1; kk = kap & 1
        slot = (j % NW) * WSLOT
        va = V_WA + (1 if slot >= 0x10000 else 0); so = slot & 0xffff
        def wr(m, ip): return (("W", kap, m), "ds_read_b64_tr_b16 %s, v%d offset:%d" % (vr(base + 16 + 4 * m + 2 * ip, 2), va, so + m * 8192 + (16 * kk + 4 * ip) * 256))
        return [wr(0, 0), wr(0, 1), xr(0), wr(1, 0), wr(1, 1), xr(1), xr(2), xr(3)]
    else:
        slot = (c % 3) * 32768
        va = V_WA + kk4 + (4 if slot >= 0x10000 else 0); so = slot & 0xffff
        def wr(m): return (("W", kap, m), "ds_read_b128 %s, v%d offset:%d" % (vr(base + 16 + 4 * m, 4), va, so + m * 16384))
        return [wr(0), xr(0), wr(1), xr(1), xr(2), xr(3)]

def p1_consumer(e, cfg, is_h):
    p1_consumer_addr(e, is_h)
    e("s_waitcnt lgkmcnt(0)")
    srd(e, S_WS, 74, WS_BYTES)
    if cfg.fused:
        flag_addr(e, is_h)
        nonce_issue(e)
    if not is_h:
        srd(e, S_X, 44, 1835008)
        srd(e, S_GW, 58, 896)
        e("s_mov_b32 s%d, s%d" % (S_LW, S_WAVE))
        gate4_issue(e)
        for p in range(4): gate4_pass(e, p)
    stamp(e, cfg, 0)
    if (not is_h) and "pfcode" in cfg.x:
        lab = e.newlabel("PC")
        e("s_getpc_b64 s[42:43]")
        e.label(lab)
        e("s_sub_u32 s42, s42, (%s - gated_mix__spectral_fnet__glu_gated_glu__prompt_kernel)" % lab)
        e("s_subb_u32 s43, s43, 0")
        e("s_lshr_b32 s41, s2, 3")
        e("s_sub_u32 s41, s41, 28")
        e("s_lshl_b32 s41, s41, 2")
        e("s_add_u32 s41, s41, s%d" % S_WAVE)
        e("s_mul_i32 s41, s41, 16")
        e("v_and_b32 v9, 15, v%d" % V_LANE)
        e("v_add_u32 v8, s41, v9")
        e("v_lshlrev_b32 v8, 7, v8")
        e("v_min_u32 v8, (KF_CODE_END - gated_mix__spectral_fnet__glu_gated_glu__prompt_kernel - 4), v8")
        e("v_mov_b32 v9, s43")
        e("v_add_co_u32 v8, vcc, s42, v8")
        e("s_nop 1")
        e("v_addc_co_u32 v9, vcc, 0, v9, vcc")
        e("global_load_dword v3, v[8:9], off")
    e("s_barrier")
    stamp(e, cfg, 1)
    for tag, txt in p1_reads(0, is_h):
        e(txt); e.lg_issue(tag)
    for kap in range(28):
        base = FR + 24 * (kap & 1)
        nxt = p1_reads(kap + 1, is_h) if kap + 1 < 28 else []
        for n in range(8):
            nb = n >> 1; m = n & 1
            e.lg_wait([("W", kap, m), ("X", kap, nb)])
            d = accA(nb) if m == 0 else accB(nb)
            W = base + 16 + 4 * m; X = base + 4 * nb
            c = "0" if kap == 0 else None
            if "no32" in cfg.x:
                for hh in range(2):
                    e("v_mfma_f32_16x16x32_bf16 %s, %s, %s, %s" % (vr(d + 8 * hh, 4), vr(W, 4), vr(X, 4), vr(d + 8 * hh, 4)))
            elif "nomfma" not in cfg.x:
                if is_h: mfma(e, d, W, X, c)
                else: mfma(e, d, X, W, c)
            if nxt and n < len(nxt):
                tag, txt = nxt[n]
                if "nolds" in cfg.x: e.lg_issue(tag); e.lg.pop()
                else:
                    e(txt); e.lg_issue(tag)
        if (not is_h) and kap == cfg.gflag_k - 4:
            nonce_load(e)
        if (not is_h) and kap == cfg.gflag_k:
            e("s_waitcnt vmcnt(0)"); e.vm = []
        if (kap & 1) and kap < 27:
            e("s_barrier")
        if (not is_h) and kap == cfg.gflag_k:
            lab = e.newlabel("GF")
            e("s_cmp_lg_u32 s%d, 0" % S_WAVE)
            e("s_cbranch_scc1 %s" % lab)
            nonce_finish_any(e, keepvm=True)
            e("s_add_u32 s%d, s%d, 128" % (S_FLAG, S_FLAG))
            flag_store(e)
            e("s_sub_u32 s%d, s%d, 128" % (S_FLAG, S_FLAG))
            e.label(lab)
        if cfg.fused and kap == 21:
            nonce_load(e)
    assert not e.lg
    if cfg.fused and is_h:
        e("s_barrier")
    if cfg.fused:
        nonce_finish(e)
    stamp(e, cfg, 2)

def h_epilogue(e, cfg):
    sc = " sc1" if cfg.fused else ""
    e("s_lshl_b32 s41, s%d, 1" % S_R)
    e("s_mul_i32 s41, s41, 112")
    e("s_lshl_b32 s42, s%d, 2" % S_FB)
    e("s_add_u32 s42, s42, s%d" % S_WF)
    e("s_lshl_b32 s42, s42, 1")
    e("s_add_u32 s41, s41, s42")
    e("s_lshl_b32 s41, s41, 11")
    e("v_lshlrev_b32 v26, 4, v%d" % V_LANE)
    e("v_add_u32 v26, s41, v26")
    e("v_add_u32 v27, 0x%x, v26" % (112 * 2048))
    e("s_mov_b32 s42, 0x%08x" % f2u(-LOG2E))
    e("s_mov_b32 s43, s42")
    e("s_mov_b32 s44, 1.0")
    e("s_mov_b32 s45, 1.0")
    e("s_nop 7")
    grp = 0
    for nb in range(4):
        for hf in range(2):
            outb = FR + 4 * (grp % 8); grp += 1
            A = accA(nb) + 8 * hf; B = accB(nb) + 8 * hf
            for q in range(0, 8, 2):
                e("v_pk_mul_f32 %s, %s, s[42:43]" % (vr(A + q, 2), vr(A + q, 2)))
            for q in range(8):
                e("v_exp_f32 v%d, v%d" % (A + q, A + q))
            for q in range(0, 8, 2):
                e("v_pk_add_f32 %s, %s, s[44:45]" % (vr(A + q, 2), vr(A + q, 2)))
            for q in range(8):
                e("v_rcp_f32 v%d, v%d" % (A + q, A + q))
            for q in range(0, 8, 2):
                e("v_pk_mul_f32 %s, %s, %s" % (vr(A + q, 2), vr(A + q, 2), vr(B + q, 2)))
            for q2 in range(4):
                e("v_cvt_pk_bf16_f32 v%d, v%d, v%d" % (outb + q2, A + 2 * q2, A + 2 * q2 + 1))
            e("buffer_store_dwordx4 %s, v%d, s[%d:%d], 0 offen offset:%d%s" % (vr(outb, 4), 26 + (nb >> 1), S_WS, S_WS + 3, hf * 2048 + (nb & 1) * 1024, sc))
            e.vm_issue("hst")

def d_epilogue(e, cfg):
    sc = " sc1" if cfg.fused else ""
    L = V_LANE
    ZB = [192, 208, 224, 240]
    e("s_nop 7"); e("s_nop 3")
    for sb in range(4):
        for hf in range(2):
            for pr in range(4):
                q = 8 * hf + 2 * pr
                e("v_cvt_pk_bf16_f32 v%d, v%d, v%d" % (ZB[sb] + 4 * hf + pr, accA(sb) + q, accA(sb) + q + 1))
                e("v_cvt_pk_bf16_f32 v%d, v%d, v%d" % (ZB[sb] + 8 + 4 * hf + pr, accB(sb) + q, accB(sb) + q + 1))
    e("s_barrier")
    e("v_lshlrev_b32 v2, 4, v%d" % L)
    def cread(sb):
        b = 10 + 24 * (sb & 1)
        for k in range(6):
            e("ds_read_b128 %s, v2 offset:%d" % (vr(b + 4 * k, 4), CONST_LDS + (sb * 6 + k) * 1024))
            e.lg_issue(("c", sb, k))
    cread(0); cread(1)
    for sb in range(4):
        b = 10 + 24 * (sb & 1)
        C0, C1, S0, S1, N0, N1 = [b + 4 * k for k in range(6)]
        ZR0, ZR1, ZI0, ZI1 = ZB[sb], ZB[sb] + 4, ZB[sb] + 8, ZB[sb] + 12
        e.lg_wait([("c", sb, k) for k in range(6)])
        mfma(e, accA(sb), C0, ZR0, "0")
        mfma(e, accB(sb), C0, ZI0, "0")
        mfma(e, accA(sb), C1, ZR1)
        mfma(e, accB(sb), C1, ZI1)
        mfma(e, accA(sb), S0, ZI0)
        mfma(e, accB(sb), N0, ZR0)
        mfma(e, accA(sb), S1, ZI1)
        mfma(e, accB(sb), N1, ZR1)
        if sb + 2 < 4:
            cread(sb + 2)
    e("s_lshl_b32 s41, s%d, 8" % S_QG)
    e("s_lshl_b32 s42, s%d, 7" % S_EH)
    e("s_add_u32 s41, s41, s42")
    e("s_lshl_b32 s42, s%d, 5" % S_WF)
    e("s_add_u32 s41, s41, s42")
    e("s_lshl_b32 s41, s41, 4")
    e("s_add_u32 s41, s41, 0x%x" % UBUF)
    e("v_and_b32 v3, 31, v%d" % L)
    e("v_lshlrev_b32 v3, 4, v3")
    e("v_lshrrev_b32 v4, 5, v%d" % L)
    e("v_lshlrev_b32 v4, 18, v4")
    e("v_add3_u32 v3, v3, v4, s41")
    e("s_nop 7"); e("s_nop 3")
    for q in range(16):
        i, jj = q >> 2, q & 3
        pk = 192 + 4 * (q % 8)
        for sb in range(4):
            e("v_cvt_pk_bf16_f32 v%d, v%d, v%d" % (pk + sb, accA(sb) + q, accB(sb) + q))
        e("s_mov_b32 s%d, 0x%x" % (S_OFF, (8 * i + jj) * 65536))
        e("buffer_store_dwordx4 %s, v3, s[%d:%d], s%d offen%s" % (vr(pk, 4), S_WS, S_WS + 3, S_OFF, sc))
        e.vm_issue("ust")

def p1_loader(e, cfg, is_h):
    L = V_LANE; T = 26
    VX = 10
    VW = 14
    e("v_lshrrev_b32 v%d, 3, v%d" % (T, L))
    e("s_lshl_b32 s41, s%d, 5" % S_LW)
    e("v_add_u32 v%d, s41, v%d" % (T, T))
    e("v_and_b32 v%d, 7, v%d" % (T + 1, L))
    e("v_lshrrev_b32 v%d, 4, v%d" % (T + 2, L))
    e("s_movk_i32 s42, 896")
    for i in range(4):
        if i: e("v_add_u32 v%d, 8, v%d" % (T, T))
        e("v_add_u32 v%d, %d, v%d" % (T + 3, (4 * i) & 7, T + 2))
        e("v_and_b32 v%d, 7, v%d" % (T + 3, T + 3))
        e("v_xor_b32 v%d, v%d, v%d" % (T + 3, T + 3, T + 1))
        e("v_lshlrev_b32 v%d, 4, v%d" % (T + 3, T + 3))
        if is_h:
            e("v_lshrrev_b32 v%d, 6, v%d" % (T + 4, T))
            e("v_and_b32 v%d, 63, v%d" % (T + 5, T))
            e("v_lshlrev_b32 v%d, 5, v%d" % (T + 5, T + 5))
            e("s_lshl_b32 s41, s%d, 1" % S_R)
            e("v_add3_u32 v%d, v%d, v%d, s41" % (T + 4, T + 4, T + 5))
        else:
            e("v_and_b32 v%d, 31, v%d" % (T + 4, T))
            e("v_lshlrev_b32 v%d, 6, v%d" % (T + 4, T + 4))
            e("v_lshrrev_b32 v%d, 5, v%d" % (T + 5, T))
            e("s_lshl_b32 s41, s%d, 2" % S_QG)
            e("v_add3_u32 v%d, v%d, v%d, s41" % (T + 4, T + 4, T + 5))
        e("v_mul_lo_u32 v%d, v%d, s42" % (T + 4, T + 4))
        e("v_add_u32 v%d, v%d, v%d" % (VX + i, T + 4, T + 3))
        if not is_h:
            e("s_lshl_b32 s41, s%d, 7" % S_EH)
            e("v_add_u32 v%d, s41, v%d" % (T + 4, T))
            e("v_mul_lo_u32 v%d, v%d, s42" % (T + 4, T + 4))
            e("v_add_u32 v%d, v%d, v%d" % (VW + i, T + 4, T + 3))
    if is_h:
        e("s_lshl_b32 s41, s%d, 3" % S_LW)
        e("v_add_u32 v%d, s41, v%d" % (T + 3, T + 2))
        e("s_movk_i32 s42, 3584")
        e("v_mul_lo_u32 v%d, v%d, s42" % (T + 3, T + 3))
        e("v_bfe_u32 v%d, v%d, 2, 2" % (T + 4, L))
        e("v_xor_b32 v%d, v%d, v%d" % (T + 4, T + 4, T + 2))
        e("v_lshlrev_b32 v%d, 6, v%d" % (T + 4, T + 4))
        e("v_and_b32 v%d, 3, v%d" % (T + 5, L))
        e("v_lshlrev_b32 v%d, 4, v%d" % (T + 5, T + 5))
        e("v_add3_u32 v%d, v%d, v%d, v%d" % (T + 3, T + 3, T + 4, T + 5))
        e("s_lshl_b32 s41, s%d, 8" % S_FB)
        e("v_add_u32 v%d, s41, v%d" % (VW, T + 3))
        e("v_add_u32 v%d, %d, v%d" % (VW + 1, 4 * 3584, VW))
        e("s_lshl_b32 s%d, s%d, 11" % (S_LDSW, S_LW))
    else:
        e("s_lshl_b32 s%d, s%d, 12" % (S_LDSW, S_LW))
    e("s_lshl_b32 s%d, s%d, 12" % (S_LDSX, S_LW))
    e("s_waitcnt lgkmcnt(0)")
    srd(e, S_X, 44, 1835008)
    if is_h:
        srd(e, S_WA, 52, 1605632); srd(e, S_WB, 54, 1605632)
    else:
        srd(e, S_WA, 48, 401408); srd(e, S_WB, 50, 401408)
    srd(e, S_WS, 74, WS_BYTES)
    srd(e, S_GW, 58, 896)
    srd(e, S_WD, 56, 1605632)
    stamp(e, cfg, 0)
    DROT = (not is_h) and ("nodrot" not in cfg.x)
    if DROT:
        e("s_mul_i32 s7, s%d, 3" % S_EH)
        e("s_mul_i32 s6, s%d, %d" % (S_QG, RMUL[0]))
        e("s_add_u32 s6, s6, s7")
        e("s_mul_i32 s7, s6, 37")
        e("s_lshr_b32 s7, s7, 8")
        e("s_mul_i32 s7, s7, 7")
        e("s_sub_u32 s6, s6, s7")
        e("s_mov_b32 s7, s6")
    def dx(c):
        if DROT:
            e("s_lshl_b32 s%d, s6, 7" % S_OFF)
            for i in range(4): dma(e, S_X, VX + i, (c % NX) * XSLOT + i * 1024, S_LDSX, None, ("x", c))
            rot_next(e, 6, 7)
        else:
            for i in range(4): dma(e, S_X, VX + i, (c % NX) * XSLOT + i * 1024, S_LDSX, c * 128, ("x", c))
    def dw(j):
        if is_h:
            for m in range(2):
                for i in range(2):
                    dma(e, S_WA if m == 0 else S_WB, VW + i, WBASE + (j % NW) * WSLOT + m * 8192 + i * 1024, S_LDSW, j * 32 * 3584, ("w", j))
        else:
            c = j
            if DROT: e("s_lshl_b32 s%d, s7, 7" % S_OFF)
            for m in range(2):
                for i in range(4):
                    dma(e, S_WA if m == 0 else S_WB, VW + i, WBASE + (c % 3) * 32768 + m * 16384 + i * 1024, S_LDSW, None if DROT else c * 128, ("w", c))
            if DROT: rot_next(e, 7, 7)
    q = []
    if is_h:
        for j in range(14):
            if j % 2 == 0:
                c = j // 2
                q.append(("x", c, -1 if c < NX else 2 * (c - NX + 1)))
            q.append(("w", j, -1 if j < NW else j - NW + 1))
    else:
        for c in range(7):
            q.append(("x", c, -1 if c < NX else 2 * (c - NX + 1)))
            q.append(("w", c, -1 if c < 3 else 2 * (c - 3 + 1)))
    def cost(it): return 4 if (it[0] == "x" or is_h) else 8
    def issue(it):
        (dx if it[0] == "x" else dw)(it[1])
    def need(j):
        t = []
        for jj in (j, j + 1):
            if jj <= 13:
                t.append(("x", jj >> 1)); t.append(("w", jj if is_h else jj >> 1))
        return t
    issued = set()
    def ensure(tags):
        while q and any(t not in issued for t in tags):
            it = q.pop(0); assert it[2] <= curbar[0], (it, curbar)
            issue(it); issued.add((it[0], it[1]))
    curbar = [-1]
    ensure(need(0))
    budget0 = cfg.pro_extra
    while q and budget0 > 0 and q[0][2] <= -1:
        it = q.pop(0); issue(it); issued.add((it[0], it[1])); budget0 -= cost(it)
    e.vm_wait(need(0))
    e("s_barrier")
    stamp(e, cfg, 1)
    if "nodma" in cfg.x: NODMA[0] = True
    for j in range(13):
        curbar[0] = j
        ensure(need(j + 1))
        budget = cfg.stage_budget
        while q and budget > 0 and q[0][2] <= j:
            it = q.pop(0); issue(it); issued.add((it[0], it[1])); budget -= cost(it)
        if j == cfg.pfWd_j and not is_h and "pf1" in cfg.x:
            e("s_lshl_b32 s41, s%d, 1" % S_QG)
            e("s_add_u32 s41, s41, s%d" % S_EH)
            e("s_lshl_b32 s41, s41, 2")
            e("s_add_u32 s41, s41, s%d" % S_LW)
            e("s_mul_i32 s41, s41, 98")
            e("v_add_u32 v100, s41, v%d" % V_LANE)
            e("v_lshlrev_b32 v100, 7, v100")
            e("buffer_load_dword v101, v100, s[%d:%d], 0 offen" % (S_WD, S_WD + 3)); e.vm_issue(("pf", 0))
            e("v_add_u32 v100, %d, v100" % (64 * 128))
            e("v_cmp_gt_u32 vcc, 34, v%d" % V_LANE)
            e("v_mov_b32 v102, 0x7fffffff")
            e("s_nop 0")
            e("v_cndmask_b32 v100, v102, v100, vcc")
            e("buffer_load_dword v103, v100, s[%d:%d], 0 offen" % (S_WD, S_WD + 3)); e.vm_issue(("pf", 1))
        if j == cfg.pfWB_j and not is_h and ("pfWB" in cfg.x or "pfWA" in cfg.x):
            e("s_lshl_b32 s41, s%d, 1" % S_QG)
            e("s_add_u32 s41, s41, s%d" % S_EH)
            e("s_lshl_b32 s41, s41, 2")
            e("s_add_u32 s41, s41, s%d" % S_LW)
            e("s_mov_b32 s42, 0x12492493")
            jobs = []
            if "pfWA" in cfg.x: jobs.append((35, 128 * 3584))
            if "pfWB" in cfg.x: jobs.append((49, 1792))
            rg = 104
            for (per, base) in jobs:
                e("s_mul_i32 s43, s41, %d" % per)
                e("v_add_u32 v101, s43, v%d" % V_LANE)
                e("v_mul_hi_u32 v102, v101, s42")
                e("v_mul_u32_u24 v103, 14, v102")
                e("v_sub_u32 v103, v101, v103")
                e("v_mul_u32_u24 v102, 3584, v102")
                e("v_lshlrev_b32 v103, 7, v103")
                e("v_add3_u32 v%d, v102, v103, %d" % (rg, 0))
                e("v_add_u32 v%d, %d, v%d" % (rg, base, rg))
                e("v_cmp_gt_u32 vcc, %d, v%d" % (per, V_LANE))
                e("v_mov_b32 v102, 0x7fffffff")
                e("s_nop 0")
                e("v_cndmask_b32 v%d, v102, v%d, vcc" % (rg, rg))
                srd(e, S_GW, 52, 1605632)
                e("buffer_load_dword v%d, v%d, s[%d:%d], 0 offen" % (rg + 1, rg, S_GW, S_GW + 3)); e.vm_issue(("pf", 5))
                srd(e, S_GW, 54, 1605632)
                e("buffer_load_dword v%d, v%d, s[%d:%d], 0 offen" % (rg + 2, rg, S_GW, S_GW + 3)); e.vm_issue(("pf", 6))
                rg += 4
        if j == cfg.pfWd_j and not is_h and "pfWd" in cfg.x:
            e("s_lshr_b32 s41, s2, 3")
            e("s_sub_u32 s41, s41, 28")
            e("s_lshl_b32 s41, s41, 2")
            e("s_add_u32 s41, s41, s%d" % S_LW)
            e("s_mul_i32 s41, s41, 784")
            e("v_add_u32 v100, s41, v%d" % V_LANE)
            e("v_lshlrev_b32 v100, 7, v100")
            for t in range(13):
                e("s_mov_b32 s%d, %d" % (S_OFF, t * 8192))
                e("buffer_load_dword v%d, v100, s[%d:%d], s%d offen" % (101 + t, S_WD, S_WD + 3, S_OFF))
                e.vm_issue(("pf", t))
        if j == cfg.pfW_j and not is_h and "pfW" in cfg.x:
            e("s_lshr_b32 s41, s2, 3")
            e("s_sub_u32 s41, s41, 28")
            e("s_lshl_b32 s41, s41, 2")
            e("s_add_u32 s41, s41, s%d" % S_LW)
            e("s_mul_i32 s41, s41, 196")
            e("v_add_u32 v100, s41, v%d" % V_LANE)
            e("s_mov_b32 s42, 0x24924925")
            e("s_and_b32 s43, s2, 1")
            e("s_mul_i32 s43, s43, 896")
            e("s_add_u32 s43, s43, 1792")
            for t in range(4):
                e("v_add_u32 v101, %d, v100" % (64 * t))
                e("v_mul_hi_u32 v102, v101, s42")
                e("v_mul_u32_u24 v103, 7, v102")
                e("v_sub_u32 v103, v101, v103")
                e("v_mul_u32_u24 v102, 3584, v102")
                e("v_lshlrev_b32 v103, 7, v103")
                e("v_add3_u32 v%d, v102, v103, s43" % (104 + t))
            srd(e, S_GW, 52, 1605632)
            for t in range(4):
                e("buffer_load_dword v%d, v%d, s[%d:%d], 0 offen" % (110 + t, 104 + t, S_GW, S_GW + 3)); e.vm_issue(("pf", t))
            srd(e, S_GW, 54, 1605632)
            e("s_nop 0")
            for t in range(4):
                e("buffer_load_dword v%d, v%d, s[%d:%d], 0 offen" % (114 + t, 104 + t, S_GW, S_GW + 3)); e.vm_issue(("pf", t))
        if j == 9 and not is_h: dft_consts(e, cfg)
        if j == 7 and is_h:
            gate_issue(e, cfg, True)
            lab = e.newlabel("GX")
            e("s_cmp_ge_u32 s%d, 2" % S_FB)
            e("s_cbranch_scc1 %s" % lab)
            sv = list(e.vm)
            gate_issue(e, cfg, True, True)
            e.vm = sv
            e.label(lab)
        if j == 10 and is_h:
            e("s_waitcnt vmcnt(0)"); e.vm = []
            gate_finish(e, cfg)
            lab = e.newlabel("GY")
            e("s_cmp_ge_u32 s%d, 2" % S_FB)
            e("s_cbranch_scc1 %s" % lab)
            gate_finish(e, cfg, True)
            e.label(lab)
        if j == 11 and cfg.fused:
            e("s_waitcnt vmcnt(0)"); e.vm = []
        e.vm_wait(need(j + 1))
        e("s_barrier")
    assert not q
    NODMA[0] = False
    stamp(e, cfg, 2)
    if not is_h:
        e("v_lshlrev_b32 v2, 4, v%d" % L)
        e("s_mul_i32 s41, s%d, 6144" % S_LW)
        e("v_add_u32 v2, s41, v2")
        for k in range(6):
            e("ds_write_b128 v2, %s offset:%d" % (vr(64 + 4 * k, 4), CONST_LDS + k * 1024))
        e("s_waitcnt lgkmcnt(0)")
        e("s_barrier")

def gate_issue(e, cfg, is_h, extra=False):
    B = 40 if extra else 48
    e("s_lshl_b32 s41, s%d, 3" % S_FB)
    if extra: e("s_add_u32 s41, s41, 112")
    e("s_lshl_b32 s42, s%d, 1" % S_LW)
    e("s_add_u32 s41, s41, s42")
    e("s_lshl_b32 s78, s%d, 7" % S_R)
    e("s_add_u32 s%d, s78, s41" % (63 if extra else 62))
    e("v_lshlrev_b32 v38, 4, v%d" % V_LANE)
    e("v_cmp_gt_u32 vcc, 56, v%d" % V_LANE)
    e("v_mov_b32 v37, 0x7fffffff")
    for u in range(2):
        e("s_add_u32 s78, s41, %d" % u)
        e("s_lshr_b32 s43, s78, 6")
        e("s_lshl_b32 s79, s%d, 1" % S_R)
        e("s_add_u32 s43, s43, s79")
        e("s_and_b32 s78, s78, 63")
        e("s_lshl_b32 s78, s78, 5")
        e("s_add_u32 s43, s43, s78")
        e("s_mul_i32 s43, s43, 896")
        if extra:
            e("s_cmp_ge_u32 s%d, 2" % S_FB)
            e("s_cselect_b32 s43, 0x40000000, s43")
        e("v_add_u32 v39, s43, v38")
        e("v_cndmask_b32 v39, v37, v39, vcc")
        e("buffer_load_dwordx4 %s, v39, s[%d:%d], 0 offen" % (vr(B + 4 * u, 4), S_X, S_X + 3))
        e.vm_issue("gate")
    if not extra:
        e("buffer_load_dwordx4 v[56:59], v38, s[%d:%d], 0 offen" % (S_GW, S_GW + 3))
        e.vm_issue("gate")

def gate_finish(e, cfg, extra=False):
    B = 40 if extra else 48
    e.vm_wait(["gate"])
    for u in range(2):
        e("v_mov_b32 v%d, 0" % (60 + u))
    for i in range(4):
        for u in range(2):
            e("v_dot2_f32_bf16 v%d, v%d, v%d, v%d" % (60 + u, B + 4 * u + i, 56 + i, 60 + u))
    e("s_nop 2")
    for sh in ("row_shr:1", "row_shr:2", "row_shr:4", "row_shr:8"):
        for u in range(2):
            e("v_add_f32_dpp v%d, v%d, v%d %s row_mask:0xf bank_mask:0xf bound_ctrl:0" % (60 + u, 60 + u, 60 + u, sh))
        e("s_nop 0")
    for u in range(2):
        e("v_add_f32_dpp v%d, v%d, v%d row_bcast:15 row_mask:0xa bank_mask:0xf" % (60 + u, 60 + u, 60 + u))
    e("s_nop 0")
    for u in range(2):
        e("v_add_f32_dpp v%d, v%d, v%d row_bcast:31 row_mask:0xc bank_mask:0xf" % (60 + u, 60 + u, 60 + u))
    e("s_nop 0")
    e("v_readlane_b32 s41, v60, 63")
    e("v_readlane_b32 s42, v61, 63")
    e("s_nop 1")
    e("v_mov_b32 v60, s41")
    e("v_mov_b32 v61, s42")
    e("v_cmp_eq_u32 vcc, 1, v%d" % V_LANE)
    e("s_nop 1")
    e("v_cndmask_b32 v60, v60, v61, vcc")
    e("v_mul_f32 v60, 0x%08x, v60" % f2u(-LOG2E))
    e("v_exp_f32 v60, v60")
    e("s_nop 0")
    e("v_add_f32 v60, 1.0, v60")
    e("v_rcp_f32 v60, v60")
    e("s_lshl_b32 s5, s%d, 2" % (63 if extra else 62))
    e("s_add_u32 s5, s5, 0x%x" % GBUF)
    if extra:
        e("s_cmp_ge_u32 s%d, 2" % S_FB)
        e("s_cselect_b32 s5, 0x40000000, s5")
    e("v_lshlrev_b32 v62, 2, v%d" % V_LANE)
    e("v_add_u32 v62, s5, v62")
    e("v_cmp_gt_u32 vcc, 2, v%d" % V_LANE)
    e("v_mov_b32 v37, 0x7fffffff")
    e("s_nop 0")
    e("v_cndmask_b32 v62, v37, v62, vcc")
    e("buffer_store_dword v60, v62, s[%d:%d], 0 offen%s" % (S_WS, S_WS + 3, " sc1" if cfg.fused else ""))
    e.vm_issue("gst")


def gate4_issue(e):
    L = V_LANE
    e("s_lshl_b32 s41, s%d, 1" % S_QG)
    e("s_add_u32 s41, s41, s%d" % S_EH)
    e("s_lshl_b32 s5, s41, 6")
    e("s_lshl_b32 s42, s%d, 4" % S_LW)
    e("s_add_u32 s5, s5, s42")
    e("v_and_b32 v104, 15, v%d" % L)
    e("v_lshrrev_b32 v105, 4, v%d" % L)
    e("v_lshlrev_b32 v106, 4, v104")
    e("v_cmp_gt_u32 vcc, 14, v104")
    e("v_mov_b32 v107, 0x7fffffff")
    e("s_nop 0")
    e("v_cndmask_b32 v106, v107, v106, vcc")
    for q in range(4):
        e("buffer_load_dwordx4 %s, v106, s[%d:%d], 0 offen offset:%d" % (vr(184 + 4 * q, 4), S_GW, S_GW + 3, 224 * q))
        e.vm_issue("gate")
    e("s_lshl_b32 s42, s%d, 9" % S_LW)
    e("s_add_u32 s42, s42, s41")
    e("s_mul_i32 s42, s42, 896")
    e("v_mul_u32_u24 v108, 28672, v105")
    e("v_add_u32 v108, s42, v108")
    e("v_add_u32 v108, v108, v106")
    e("v_cndmask_b32 v108, v107, v108, vcc")
    for p in range(4):
        e("s_mov_b32 s%d, %d" % (S_OFF, p * 4 * 28672))
        for q in range(4):
            e("buffer_load_dwordx4 %s, v108, s[%d:%d], s%d offen offset:%d" % (vr(120 + 16 * p + 4 * q, 4), S_X, S_X + 3, S_OFF, 224 * q))
            e.vm_issue("gate")

def gate4_pass(e, p):
    L = V_LANE
    e.vm_wait(["gate"])
    e("v_mov_b32 v109, 0")
    for q in range(16):
        e("v_dot2_f32_bf16 v109, v%d, v%d, v109" % (120 + 16 * p + q, 184 + q))
    e("s_nop 2")
    for sh in ("row_shr:1", "row_shr:2", "row_shr:4", "row_shr:8"):
        e("v_add_f32_dpp v109, v109, v109 %s row_mask:0xf bank_mask:0xf bound_ctrl:0" % sh)
        e("s_nop 1")
    e("v_mul_f32 v109, 0x%08x, v109" % f2u(-LOG2E))
    e("v_exp_f32 v109, v109")
    e("s_nop 0")
    e("v_add_f32 v109, 1.0, v109")
    e("v_rcp_f32 v109, v109")
    e("v_add_u32 v110, s5, v105")
    e("v_add_u32 v110, %d, v110" % (4 * p))
    e("v_lshlrev_b32 v110, 2, v110")
    e("v_add_u32 v110, 0x%x, v110" % GBUF)
    e("v_cmp_eq_u32 vcc, 15, v104")
    e("s_nop 1")
    e("v_cndmask_b32 v110, v107, v110, vcc")
    e("buffer_store_dword v109, v110, s[%d:%d], 0 offen sc1" % (S_WS, S_WS + 3))
    e.vm_issue("gst")

def dft_consts(e, cfg):
    L = V_LANE
    e("v_and_b32 v26, 31, v%d" % L)
    e("v_lshrrev_b32 v27, 5, v%d" % L)
    e("v_lshlrev_b32 v27, 8, v27")
    e("s_lshl_b32 s41, s%d, 2" % S_QG)
    e("s_add_u32 s41, s41, s%d" % S_LW)
    e("v_add_u32 v27, s41, v27")
    e("s_mov_b32 s42, 0x%08x" % f2u(1.0 / 2048))
    for hf in range(2):
        for pr in range(4):
            for u in range(2):
                idx = 2 * pr + u
                s1c = 16 * hf + 8 * (idx >> 2) + (idx & 3)
                e("v_add_u32 v28, %d, v27" % (64 * s1c))
                e("v_mul_u32_u24 v28, v28, v26")
                e("v_and_b32 v28, 0x7ff, v28")
                e("v_cvt_f32_u32 v28, v28")
                e("v_mul_f32 v28, s42, v28")
                e("v_cos_f32 v%d, v28" % (30 + u))
                e("v_sin_f32 v%d, v28" % (32 + u))
            e("s_nop 0")
            e("v_cvt_pk_bf16_f32 v%d, v30, v31" % (64 + 4 * hf + pr))
            e("v_cvt_pk_bf16_f32 v%d, v32, v33" % (72 + 4 * hf + pr))
            e("v_xor_b32 v%d, 0x80008000, v%d" % (80 + 4 * hf + pr, 72 + 4 * hf + pr))

def entry_common(e):
    e("v_and_b32 v%d, 63, v0" % V_LANE)
    e("v_lshrrev_b32 v2, 6, v0")
    e("s_nop 0")
    e("v_readfirstlane_b32 s%d, v2" % S_WAVE)
    e("s_nop 3")

def phase1(e, cfg, after_h_consumer, after_h_loader, after_d):
    e("s_and_b32 s%d, s%d, 3" % (S_WF, S_WAVE))
    e("s_and_b32 s%d, s%d, 3" % (S_LW, S_WAVE))
    e("s_and_b32 s41, s2, 7")
    e("s_lshr_b32 s42, s2, 3")
    e("s_cmp_ge_u32 s42, 28")
    e("s_cbranch_scc1 P1_DFT")
    e("s_mul_i32 s43, s42, 37")
    e("s_lshr_b32 s43, s43, 8")
    e("s_mul_i32 s76, s43, 7")
    e("s_sub_u32 s76, s42, s76")
    e("s_lshr_b32 s77, s41, 1")
    e("s_lshl_b32 s77, s77, 2")
    e("s_add_u32 s%d, s77, s43" % S_R)
    e("s_and_b32 s77, s41, 1")
    e("s_mul_i32 s77, s77, 7")
    e("s_add_u32 s%d, s77, s76" % S_FB)
    e("s_cmp_lt_u32 s%d, 4" % S_WAVE)
    e("s_cbranch_scc1 P1_H_CONSUMER")
    e.vm = []; e.lg = []
    STG[0] = True
    if "prioL" in cfg.x: e("s_setprio 1")
    h2_loader(e, cfg)
    q_loader_A(e, cfg)
    STG[0] = False
    stamp_store(e, cfg, 0)
    e("s_endpgm")
    e.label("P1_H_CONSUMER")
    if "prioC" in cfg.x: e("s_setprio 1")
    e.vm = []; e.lg = []
    h2_consumer(e, cfg)
    q_consumer_B(e, cfg)
    stamp_store(e, cfg, 0)
    e("s_endpgm")
    e.label("P1_DFT")
    e("s_sub_u32 s42, s42, 28")
    e("s_and_b32 s%d, s41, 1" % S_EH)
    e("s_lshr_b32 s77, s41, 1")
    e("s_lshl_b32 s77, s77, 2")
    e("s_add_u32 s%d, s77, s42" % S_QG)
    e("s_cmp_ge_u32 s%d, 4" % S_WAVE)
    e("s_cbranch_scc1 P1_D_LOADER")
    if "prioD" in cfg.x: e("s_setprio 1")
    e.vm = []; e.lg = []
    p1_consumer(e, cfg, False)
    d_epilogue(e, cfg)
    stamp(e, cfg, 3)
    after_d(True)
    e.label("P1_D_LOADER")
    e.vm = []; e.lg = []
    p1_loader(e, cfg, False)
    stamp(e, cfg, 3)
    after_d(False)

P2_ACC = 64
P2_H = 96
P2_A = 208
P2_U = 224
P2_T = 240
SLICE = 40960
KSL, NB = 60, 61

def p2_setup(e, cfg):
    L = V_LANE
    e("s_and_b32 s%d, s%d, 3" % (KSL, S_WAVE))
    e("s_lshr_b32 s%d, s%d, 2" % (NB, S_WAVE))
    e("v_lshrrev_b32 v2, 3, v%d" % L)
    e("v_bfe_u32 v3, v%d, 4, 1" % L)
    e("v_lshlrev_b32 v3, 2, v3")
    e("v_and_b32 v4, 7, v%d" % L)
    e("v_xor_b32 v3, v3, v4")
    e("v_lshlrev_b32 v3, 4, v3")
    e("s_mul_i32 s41, s%d, 448" % KSL)
    e("s_lshl_b32 s42, s%d, 3" % NB)
    e("s_add_u32 s41, s41, s42")
    e("v_add_u32 v2, s41, v2")
    e("s_movk_i32 s42, 896")
    e("v_mul_lo_u32 v2, v2, s42")
    e("s_lshl_b32 s41, s%d, 7" % S_C)
    e("v_add3_u32 v10, v2, v3, s41")
    e("s_mul_i32 s62, s%d, %d" % (KSL, SLICE))
    e("s_lshl_b32 s41, s%d, 10" % NB)
    e("s_add_u32 s62, s62, s41")
    e("v_and_b32 v2, 15, v%d" % L)
    e("v_lshrrev_b32 v3, 2, v2")
    e("v_lshrrev_b32 v4, 5, v%d" % L)
    e("v_lshlrev_b32 v5, 2, v4")
    e("v_add_u32 v5, v5, v3")
    e("v_lshlrev_b32 v5, 7, v5")
    e("v_bfe_u32 v6, v2, 3, 1")
    e("v_lshlrev_b32 v6, 6, v6")
    e("v_bfe_u32 v7, v%d, 4, 1" % L)
    e("v_lshlrev_b32 v7, 5, v7")
    e("v_and_b32 v8, 3, v2")
    e("v_lshlrev_b32 v8, 3, v8")
    e("v_add3_u32 v5, v5, v6, v7")
    e("v_add_u32 v5, v5, v8")
    e("s_mul_i32 s41, s%d, %d" % (KSL, SLICE))
    e("v_add_u32 v11, s41, v5")
    e("v_xor_b32 v12, 64, v11")
    e("s_mul_i32 s41, s%d, 112" % S_T1)
    e("s_mul_i32 s42, s%d, 28" % KSL)
    e("s_add_u32 s41, s41, s42")
    e("s_lshl_b32 s41, s41, 1")
    e("s_add_u32 s41, s41, s%d" % NB)
    e("s_lshl_b32 s41, s41, 10")
    e("v_lshlrev_b32 v13, 4, v%d" % L)
    e("v_add_u32 v13, s41, v13")
    e("v_and_b32 v14, 31, v%d" % L)
    e("s_cmp_ge_u32 s%d, 4" % S_C)
    e("s_cselect_b32 s63, 1, 0")
    e("s_sub_u32 s64, 32, s%d" % S_T1)
    e("s_and_b32 s64, s64, 31")
    e("s_cmp_eq_u32 s63, 1")
    e("s_cselect_b32 s64, s64, s%d" % S_T1)
    e("v_lshrrev_b32 v4, 5, v%d" % L)
    e("s_lshl_b32 s41, s%d, 6" % S_C)
    e("s_cmp_eq_u32 s63, 1")
    e("s_cselect_b64 vcc, -1, 0")
    for mb in range(2):
        e("v_add_u32 v2, s41, v14")
        if mb: e("v_add_u32 v2, 32, v2")
        e("v_sub_u32 v3, 448, v2")
        e("v_cndmask_b32 v2, v2, v3, vcc")
        e("v_lshlrev_b32 v2, 4, v2")
        e("v_lshlrev_b32 v3, 12, v4")
        e("v_add_u32 v%d, v2, v3" % (16 + mb))
    e("s_lshl_b32 s41, s64, 4")
    e("s_lshl_b32 s42, s%d, 2" % KSL)
    e("s_add_u32 s41, s41, s42")
    e("s_lshl_b32 s41, s41, 12")
    e("s_add_u32 s65, s41, 0x%x" % UBUF)
    e("s_lshl_b32 s41, s%d, 6" % S_T1)
    e("s_lshl_b32 s42, s%d, 5" % NB)
    e("s_add_u32 s41, s41, s42")
    e("v_add_u32 v2, s41, v14")
    e("v_lshlrev_b32 v2, 2, v2")
    e("v_add_u32 v20, 0x%x, v2" % GBUF)

def p2_dma_wd(e, kk):
    st = kk >> 2
    pos = (st % 5) * 4 + (kk & 3)
    dma(e, S_WD, 10, pos * 2048, 62, kk * 16 * 896, ("wd", st))
def p2_load_h(e, cfg, kk):
    sc = " sc1" if cfg.fused else ""
    e("s_mov_b32 s%d, 0x%x" % (S_OFF, kk * 2048))
    e("buffer_load_dwordx4 %s, v13, s[%d:%d], s%d offen%s" % (vr(P2_H + 4 * kk, 4), S_WS, S_WS + 3, S_OFF, sc))
    e.vm_issue(("h", kk))
def p2_load_g(e, cfg):
    sc = " sc1" if cfg.fused else ""
    e("buffer_load_dword v15, v20, s[%d:%d], 0 offen%s" % (S_WS, S_WS + 3, sc))
    e.vm_issue("g")
def p2_load_u(e, cfg):
    sc = " sc1" if cfg.fused else ""
    for u in range(2):
        for mb in range(2):
            e("s_add_u32 s%d, s65, %d" % (S_OFF, u * 2 * 4096))
            e("buffer_load_dwordx4 %s, v%d, s[%d:%d], s%d offen%s" % (vr(P2_U + 8 * u + 4 * mb, 4), 16 + mb, S_WS, S_WS + 3, S_OFF, sc))
            e.vm_issue("u")
def p2_tfrags(e, cfg):
    L = V_LANE
    e.vm_wait(["g"])
    e("s_cmp_lg_u32 s%d, 0" % S_T1)
    e("s_cselect_b32 s41, s63, 0")
    e("s_lshl_b32 s42, s%d, 5" % NB)
    e("s_add_u32 s41, s41, s42")
    e("v_add_u32 v2, s41, v14")
    e("v_lshrrev_b32 v4, 5, v%d" % L)
    e("v_lshlrev_b32 v4, 2, v4")
    e("s_lshl_b32 s41, s63, 31")
    e("v_xor_b32 v21, s41, v15")
    e("s_mov_b32 s42, 0x%08x" % f2u(1.0 / 64))
    e("s_lshl_b32 s43, s%d, 4" % KSL)
    e("v_add_u32 v4, s43, v4")
    for u in range(2):
        for q in range(4):
            e("v_add_u32 v3, %d, v4" % (8 * u + q))
            e("v_mul_u32_u24 v3, v3, v2")
            e("v_and_b32 v3, 63, v3")
            e("v_cvt_f32_u32 v3, v3")
            e("v_mul_f32 v3, s42, v3")
            e("v_cos_f32 v5, v3")
            e("v_sin_f32 v6, v3")
            e("s_nop 0")
            e("v_mul_f32 v5, v5, v15")
            e("v_mul_f32 v6, v6, v21")
            e("v_cvt_pk_bf16_f32 v%d, v5, v6" % (P2_T + 4 * u + q))
    e("v_sub_f32 v18, 1.0, v15")
    e("v_mov_b32 v19, v18")

def p2_main(e, cfg, wd_pre=0):
    L = V_LANE
    def reads(kk):
        b = P2_A + 8 * (kk & 1)
        st = kk >> 2
        pos = (st % 5) * 4 + (kk & 3)
        for mb in range(2):
            for ip in range(2):
                e("ds_read_b64_tr_b16 %s, v%d offset:%d" % (vr(b + 4 * mb + 2 * ip, 2), 11 + mb, pos * 2048 + ip * 1024))
                e.lg_issue(("A", kk, mb))
    def issue_h(st):
        if st > 6: return
        for kk in range(4 * st, 4 * st + 4): p2_load_h(e, cfg, kk)
    def issue_w(st):
        if st > 6 or st < wd_pre: return
        for kk in range(4 * st, 4 * st + 4): p2_dma_wd(e, kk)
    def issue_both(st):
        if st > 6: return
        for kk in range(4 * st, 4 * st + 4):
            if st >= wd_pre: p2_dma_wd(e, kk)
            p2_load_h(e, cfg, kk)
    LA = cfg.p2_la
    p2_load_g(e, cfg)
    if cfg.fused:
        for st in range(LA): issue_h(st)
        p2_tfrags(e, cfg)
    else:
        for st in range(LA): issue_both(st)
        p2_tfrags(e, cfg)
        e.vm_wait([("wd", 0), ("wd", 1)])
        e("s_barrier")
    stamp(e, cfg, 1 if not cfg.fused else 6)
    reads(0)
    for kk in range(28):
        st = kk >> 2
        if (kk & 3) == 0:
            if cfg.fused:
                if st >= 1: issue_w(st + 4)
                issue_h(st + LA)
            else:
                issue_both(st + LA)
                if st + LA == 7:
                    p2_load_u(e, cfg)
        if kk + 1 < 28: reads(kk + 1)
        e.vm_wait([("h", kk)])
        b = P2_A + 8 * (kk & 1)
        for mb in range(2):
            e.lg_wait([("A", kk, mb)])
            mfma(e, P2_ACC + 16 * mb, b + 4 * mb, P2_H + 4 * kk, "0" if kk == 0 else None)
        if (kk & 3) == 3 and st < 6:
            e.vm_wait([("wd", st + 2)])
            if cfg.fused and st == cfg.p2_dpoll:
                lab = e.newlabel("DP")
                e("s_cmp_lg_u32 s%d, 0" % S_WAVE)
                e("s_cbranch_scc1 %s" % lab)
                e("s_mov_b32 s%d, 0x%x" % (S_PF, FLAGS + 16 * 128))
                poll(e, S_PF, 32)
                e.label(lab)
            e("s_barrier")
            if cfg.fused and st == cfg.p2_dpoll:
                p2_load_u(e, cfg)
    assert not e.lg
    stamp(e, cfg, 2 if not cfg.fused else 7)
    e.vm_wait(["u"])
    e("s_nop 7"); e("s_nop 3")
    for i in range(0, 32, 2):
        e("v_pk_mul_f32 %s, %s, v[18:19]" % (vr(P2_ACC + i, 2), vr(P2_ACC + i, 2)))
    e("s_nop 1")
    for u in range(2):
        for mb in range(2):
            mfma(e, P2_ACC + 16 * mb, P2_U + 8 * u + 4 * mb, P2_T + 4 * u)
    e("s_barrier")
    e("v_lshlrev_b32 v2, 4, v%d" % L)
    e("s_lshl_b32 s41, s%d, 13" % S_WAVE)
    e("v_add_u32 v3, s41, v2")
    e("s_nop 7"); e("s_nop 1")
    for qd in range(4):
        for hf in range(2):
            e("ds_write_b128 v3, %s offset:%d" % (vr(P2_ACC + 8 * qd + 4 * hf, 4), qd * 2048 + hf * 1024))
    e("s_waitcnt lgkmcnt(0)")
    e("s_barrier")
    e("s_lshl_b32 s41, s%d, 15" % NB)
    e("s_lshl_b32 s42, s%d, 11" % KSL)
    e("s_add_u32 s41, s41, s42")
    e("v_add_u32 v3, s41, v2")
    for k in range(4):
        for hf in range(2):
            e("ds_read_b128 %s, v3 offset:%d" % (vr(96 + 8 * k + 4 * hf, 4), k * 8192 + hf * 1024))
    e("s_lshl_b32 s41, s%d, 5" % NB)
    e("v_add_u32 v2, s41, v14")
    e("v_lshlrev_b32 v2, 5, v2")
    e("v_add_u32 v2, s%d, v2" % S_T1)
    e("s_movk_i32 s42, 896")
    e("v_mul_lo_u32 v2, v2, s42")
    e("s_lshl_b32 s41, s%d, 7" % S_C)
    e("s_lshl_b32 s42, s%d, 5" % KSL)
    e("s_add_u32 s41, s41, s42")
    e("v_lshrrev_b32 v4, 5, v%d" % L)
    e("v_lshlrev_b32 v4, 4, v4")
    e("v_add3_u32 v2, v2, v4, s41")
    e("s_waitcnt lgkmcnt(0)")
    for q in range(0, 8, 2):
        e("v_pk_add_f32 %s, %s, %s" % (vr(96 + q, 2), vr(96 + q, 2), vr(104 + q, 2)))
        e("v_pk_add_f32 %s, %s, %s" % (vr(112 + q, 2), vr(112 + q, 2), vr(120 + q, 2)))
    for q in range(0, 8, 2):
        e("v_pk_add_f32 %s, %s, %s" % (vr(96 + q, 2), vr(96 + q, 2), vr(112 + q, 2)))
    for q in range(4):
        e("v_cvt_pk_bf16_f32 v%d, v%d, v%d" % (128 + q, 96 + 2 * q, 96 + 2 * q + 1))
    e("s_nop 1")
    e("v_permlane32_swap_b32 v128, v130")
    e("v_permlane32_swap_b32 v129, v131")
    e("buffer_store_dwordx4 v[128:131], v2, s[%d:%d], 0 offen" % (S_OUT, S_OUT + 3))
    stamp(e, cfg, 3 if not cfg.fused else 8)

def p2_role(e):
    e("s_and_b32 s41, s2, 7")
    e("s_lshr_b32 s42, s2, 3")
    e("s_mul_i32 s43, s42, 37")
    e("s_lshr_b32 s43, s43, 8")
    e("s_mul_i32 s76, s43, 7")
    e("s_sub_u32 s%d, s42, s76" % S_C)
    e("s_lshl_b32 s41, s41, 2")
    e("s_add_u32 s%d, s41, s43" % S_T1)

def header(e, name):
    e.raw(".text"); e.raw(".globl %s" % name); e.raw(".p2align 8"); e.raw(".type %s,@function" % name); e.label(name)

def kernel1(e, cfg):
    header(e, "k1_kernel")
    e("s_cmp_ge_u32 s2, 256")
    e("s_cbranch_scc1 K1_END")
    kernarg_loads(e)
    entry_common(e)
    def fin():
        stamp_store(e, cfg, 0)
        e("s_endpgm")
    phase1(e, cfg, fin, fin, lambda c: fin())
    e.label("K1_END")
    e("s_endpgm")

def kernel2(e, cfg):
    header(e, "k2_kernel")
    e.vm = []; e.lg = []
    e("s_cmp_ge_u32 s2, 256")
    e("s_cbranch_scc1 K2_END")
    e("s_lshr_b32 s42, s2, 3")
    e("s_cmp_ge_u32 s42, 28")
    e("s_cbranch_scc1 K2_END")
    kernarg_loads(e)
    entry_common(e)
    p2_role(e)
    p2_setup(e, cfg)
    e("s_waitcnt lgkmcnt(0)")
    srd(e, S_WS, 74, WS_BYTES)
    srd(e, S_OUT, 46, 1835008)
    srd(e, S_WD, 56, 1605632)
    stamp(e, cfg, 0)
    p2_main(e, cfg, 0)
    stamp_store(e, cfg, 0x40000)
    e.label("K2_END")
    e("s_endpgm")


def nonce_issue(e):
    lab = e.newlabel("NONCE")
    srd(e, S_DBG, 72, 256)
    e("s_or_b32 s41, s2, s%d" % S_WAVE)
    e("s_cmp_lg_u32 s41, 0")
    e("s_cbranch_scc1 %s" % lab)
    e("s_memrealtime s[42:43]")
    e("s_waitcnt lgkmcnt(0)")
    e("s_or_b32 s42, s42, 1")
    e("v_mov_b32 v4, s42")
    e("v_lshlrev_b32 v5, 20, v%d" % V_LANE)
    e("buffer_store_dword v4, v5, s[%d:%d], 0 offen sc1" % (S_DBG, S_DBG + 3))
    e.label(lab)
    e("v_mov_b32 v7, 0")

def nonce_publish(e):
    lab = e.newlabel("NONCE")
    e("s_or_b32 s41, s2, s%d" % S_WAVE)
    e("s_cmp_lg_u32 s41, 0")
    e("s_cbranch_scc1 %s" % lab)
    srd(e, S_DBG, 72, 256)
    e("s_memrealtime s[42:43]")
    e("s_waitcnt lgkmcnt(0)")
    e("s_or_b32 s42, s42, 1")
    e("v_mov_b32 v4, s42")
    e("v_lshlrev_b32 v5, 20, v%d" % V_LANE)
    e("buffer_store_dword v4, v5, s[%d:%d], 0 offen sc1" % (S_DBG, S_DBG + 3))
    e.label(lab)

def nonce_load(e):
    e("buffer_load_dword v4, v7, s[%d:%d], 0 offen sc1" % (S_DBG, S_DBG + 3))

def nonce_finish(e):
    nonce_finish_any(e)

def flag_addr(e, is_h):
    if is_h:
        e("s_lshl_b32 s41, s%d, 9" % S_R)
        e("s_lshl_b32 s42, s%d, 2" % S_FB)
    else:
        e("s_lshl_b32 s41, s%d, 1" % S_QG)
        e("s_add_u32 s41, s41, s%d" % S_EH)
        e("s_lshl_b32 s42, s41, 2")
        e("s_movk_i32 s41, %d" % (16 * 512))
    e("s_add_u32 s41, s41, s42")
    e("s_add_u32 s%d, s41, 0x%x" % (S_FLAG, FLAGS))

def flag_store(e):
    e("v_mov_b32 v60, s%d" % S_NONCE)
    e("v_lshlrev_b32 v61, 24, v%d" % V_LANE)
    e("v_add_u32 v61, s%d, v61" % S_FLAG)
    e("buffer_store_dword v60, v61, s[%d:%d], 0 offen sc1" % (S_WS, S_WS + 3))

def poll_prep(e, sbase, nflags):
    e("v_lshlrev_b32 v61, 2, v%d" % V_LANE)
    e("v_add_u32 v61, s%d, v61" % sbase)
    e("v_cmp_gt_u32 vcc, %d, v%d" % (nflags, V_LANE))
    e("v_mov_b32 v60, 0x7fffffff")
    e("s_nop 0")
    e("v_cndmask_b32 v61, v60, v61, vcc")
def poll_issue(e):
    e("buffer_load_dword v60, v61, s[%d:%d], 0 offen sc1" % (S_WS, S_WS + 3))
def poll_loop(e, nflags, first_issued):
    top = e.newlabel("POLL"); done = e.newlabel("POLLD"); chk = e.newlabel("POLLC")
    e("s_mov_b32 s41, 0")
    if first_issued: e("s_branch %s" % chk)
    e.label(top)
    poll_issue(e)
    e.label(chk)
    e("s_waitcnt vmcnt(0)")
    e("v_cmp_eq_u32 vcc, s%d, v60" % S_NONCE)
    e("s_nop 1")
    mask = (1 << nflags) - 1
    e("s_and_b32 s42, vcc_lo, 0x%x" % (mask & 0xffffffff))
    e("s_cmp_eq_u32 s42, 0x%x" % (mask & 0xffffffff))
    e("s_cbranch_scc1 %s" % done)
    e("s_add_u32 s41, s41, 1")
    e("s_cmp_ge_u32 s41, 0x40000")
    e("s_cbranch_scc1 %s" % done)
    e("s_branch %s" % top)
    e.label(done)
def poll(e, sbase, nflags, drain=True):
    poll_prep(e, sbase, nflags)
    poll_loop(e, nflags, False)

def pollAG_prep(e):
    e("v_lshlrev_b32 v61, 2, v%d" % V_LANE)
    e("v_add_u32 v62, 0x%x, v61" % (FLAGS + 16 * 512 + 128 - 128))
    e("v_add_u32 v61, s%d, v61" % S_PF)
    e("v_cmp_gt_u32 vcc, 14, v%d" % V_LANE)
    e("v_mov_b32 v60, 0x7fffffff")
    e("s_nop 0")
    e("v_cndmask_b32 v61, v60, v61, vcc")
    e("v_cmp_lt_u32 vcc, 31, v%d" % V_LANE)
    e("s_nop 1")
    e("v_cndmask_b32 v61, v61, v62, vcc")

def poll_loop56(e):
    top = e.newlabel("POLL"); done = e.newlabel("POLLD")
    e("s_mov_b32 s41, 0")
    e.label(top)
    poll_issue(e)
    e("s_waitcnt vmcnt(0)")
    e("v_cmp_eq_u32 vcc, s%d, v60" % S_NONCE)
    e("s_nop 1")
    e("s_and_b32 s43, vcc_hi, 0xffffff")
    e("s_cmp_eq_u32 s43, 0xffffff")
    e("s_cselect_b32 s42, vcc_lo, 0")
    e("s_cmp_eq_u32 s42, -1")
    e("s_cbranch_scc1 %s" % done)
    e("s_add_u32 s41, s41, 1")
    e("s_cmp_ge_u32 s41, 0x40000")
    e("s_cbranch_scc1 %s" % done)
    e("s_branch %s" % top)
    e.label(done)

def poll2(e, sline1, line2):
    top = e.newlabel("POLL"); done = e.newlabel("POLLD")
    e("v_lshlrev_b32 v61, 2, v%d" % V_LANE)
    e("v_add_u32 v62, 0x%x, v61" % line2)
    e("v_add_u32 v61, s%d, v61" % sline1)
    e("v_mov_b32 v60, 0x7fffffff")
    e("v_cmp_gt_u32 vcc, 56, v%d" % V_LANE)
    e("s_nop 1")
    e("v_cndmask_b32 v61, v60, v61, vcc")
    e("v_cmp_gt_u32 vcc, 32, v%d" % V_LANE)
    e("s_nop 1")
    e("v_cndmask_b32 v62, v60, v62, vcc")
    e("s_mov_b32 s41, 0")
    e.label(top)
    e("buffer_load_dword v60, v61, s[%d:%d], 0 offen sc1" % (S_WS, S_WS + 3))
    e("buffer_load_dword v58, v62, s[%d:%d], 0 offen sc1" % (S_WS, S_WS + 3))
    e("s_waitcnt vmcnt(0)")
    e("v_cmp_eq_u32 vcc, s%d, v60" % S_NONCE)
    e("v_cmp_eq_u32 s[42:43], s%d, v58" % S_NONCE)
    e("s_nop 1")
    e("s_and_b32 s43, vcc_hi, 0xffffff")
    e("s_and_b32 s42, s42, vcc_lo")
    e("s_cmp_eq_u32 s43, 0xffffff")
    e("s_cselect_b32 s42, s42, 0")
    e("s_cmp_eq_u32 s42, -1")
    e("s_cbranch_scc1 %s" % done)
    e("s_add_u32 s41, s41, 1")
    e("s_cmp_ge_u32 s41, 0x40000")
    e("s_cbranch_scc1 %s" % done)
    e("s_branch %s" % top)
    e.label(done)

def kernel_fused(e, cfg):
    name = "gated_mix__spectral_fnet__glu_gated_glu__prompt_kernel"
    header(e, name)
    e("s_cmp_ge_u32 s2, 256")
    e("s_cbranch_scc1 KF_END")
    kernarg_loads(e)
    entry_common(e)
    def after_h_consumer():
        e.vm_wait_all()
        e("s_barrier")
        lab = e.newlabel("NOTW0")
        e("s_cmp_lg_u32 s%d, 0" % S_WAVE)
        e("s_cbranch_scc1 %s" % lab)
        flag_store(e)
        e.label(lab)
        stamp(e, cfg, 4)
        p2_role(e)
        p2_setup(e, cfg)
        srd(e, S_OUT, 46, 1835008)
        srd(e, S_WD, 56, 1605632)
        e("s_cmp_lg_u32 s%d, 0" % S_WAVE)
        e("s_cbranch_scc1 P2_START")
        e("s_lshr_b32 s43, s%d, 1" % S_T1)
        e("s_lshl_b32 s43, s43, 7")
        e("s_add_u32 s%d, s43, 0x%x" % (S_PF, FLAGS))
        poll(e, S_PF, 14)
        e("s_branch P2_START")
    def after_h_loader():
        e("s_barrier")
        p2_role(e)
        p2_setup(e, cfg)
        srd(e, S_OUT, 46, 1835008)
        e("v_subrev_u32 v9, %d, v10" % (8 * 896))
        e("s_sub_u32 s69, s62, 1024")
        for kk in range(20):
            pos = kk
            dma(e, S_WD, 9, pos * 2048, 69, kk * 16 * 896, ("wdp", kk))
            dma(e, S_WD, 10, pos * 2048, 62, kk * 16 * 896, ("wdp", kk))
        e("s_barrier")
        stamp(e, cfg, 4)
        e.vm = []
        e.label("P2_START")
        e("s_waitcnt vmcnt(0)")
        e("s_barrier")
        stamp(e, cfg, 5)
        e.vm = []; e.lg = []
        p2_main(e, cfg, 5)
        stamp_store(e, cfg, 0)
        e("s_endpgm")
    def after_d(is_cons):
        if is_cons:
            e.vm_wait_all()
            e("s_barrier")
            lab = e.newlabel("DNOTW0")
            e("s_cmp_lg_u32 s%d, 0" % S_WAVE)
            e("s_cbranch_scc1 %s" % lab)
            flag_store(e)
            e("s_waitcnt vmcnt(0)")
            e.label(lab)
            stamp_store(e, cfg, 0)
            e("s_endpgm")
        else:
            e("s_waitcnt vmcnt(0)")
            e("s_barrier")
            stamp_store(e, cfg, 0)
            e("s_endpgm")
    phase1(e, cfg, after_h_consumer, after_h_loader, after_d)
    e.label("KF_END")
    e("s_endpgm")


WB2 = 114688; NW2 = 6; WS2 = 8192
H_ACC = 64
H_FR = 192
V_XA2 = 10
V_WA2 = 18
S_WT = 69

def h2_consumer(e, cfg):
    L = V_LANE; T = 26
    e("s_lshr_b32 s%d, s%d, 1" % (S_WT, S_WAVE))
    e("s_and_b32 s%d, s%d, 1" % (S_WF, S_WAVE))
    e("v_and_b32 v%d, 31, v%d" % (T, L))
    e("v_lshrrev_b32 v%d, 5, v%d" % (T + 1, L))
    e("v_lshrrev_b32 v%d, 1, v%d" % (T + 2, T))
    e("v_and_b32 v%d, 7, v%d" % (T + 2, T + 2))
    e("s_lshl_b32 s41, s%d, 6" % S_WT)
    e("v_add_u32 v%d, s41, v%d" % (T + 3, T))
    e("v_lshlrev_b32 v%d, 7, v%d" % (T + 3, T + 3))
    for k in range(4):
        e("v_add_u32 v%d, %d, v%d" % (T + 4, 2 * k, T + 1))
        e("v_xor_b32 v%d, v%d, v%d" % (T + 4, T + 4, T + 2))
        e("v_lshlrev_b32 v%d, 4, v%d" % (T + 4, T + 4))
        e("v_add_u32 v%d, v%d, v%d" % (V_XA2 + k, T + 3, T + 4))
        e("v_add_u32 v%d, 0x10000, v%d" % (V_XA2 + 4 + k, V_XA2 + k))
    e("v_and_b32 v%d, 15, v%d" % (T + 4, L))
    e("v_lshrrev_b32 v%d, 2, v%d" % (T + 5, T + 4))
    e("v_lshlrev_b32 v%d, 7, v%d" % (T + 5, T + 5))
    e("v_lshlrev_b32 v%d, 11, v%d" % (T + 6, T + 1))
    e("v_add_u32 v%d, v%d, v%d" % (T + 6, T + 6, T + 5))
    e("v_bfe_u32 v%d, v%d, 3, 1" % (T + 7, T + 4))
    e("v_xor_b32 v%d, s%d, v%d" % (T + 7, S_WF, T + 7))
    e("v_lshlrev_b32 v%d, 6, v%d" % (T + 7, T + 7))
    e("v_add_u32 v%d, v%d, v%d" % (T + 6, T + 6, T + 7))
    e("v_bfe_u32 v%d, v%d, 4, 1" % (T + 7, L))
    e("v_lshlrev_b32 v%d, 5, v%d" % (T + 7, T + 7))
    e("v_add_u32 v%d, v%d, v%d" % (T + 6, T + 6, T + 7))
    e("v_and_b32 v%d, 3, v%d" % (T + 7, T + 4))
    e("v_lshlrev_b32 v%d, 3, v%d" % (T + 7, T + 7))
    e("v_add_u32 v%d, v%d, v%d" % (T + 6, T + 6, T + 7))
    e("v_add_u32 v%d, 0x%x, v%d" % (V_WA2, WB2, T + 6))
    e("s_waitcnt lgkmcnt(0)")
    srd(e, S_WS, 74, WS_BYTES)
    if cfg.ncx > 0:
        srd(e, S_X, 44, 1835008)
        e("v_lshrrev_b32 v40, 3, v%d" % L)
        e("v_and_b32 v41, 7, v%d" % L)
        e("v_lshrrev_b32 v42, 4, v%d" % L)
        e("v_xor_b32 v41, v41, v42")
        e("v_lshlrev_b32 v41, 4, v41")
        e("v_mul_u32_u24 v40, 28672, v40")
        e("s_lshl_b32 s41, s%d, 1" % S_R)
        e("s_lshr_b32 s42, s%d, 1" % S_WAVE)
        e("s_add_u32 s41, s41, s42")
        e("s_mul_i32 s41, s41, 896")
        e("s_and_b32 s42, s%d, 1" % S_WAVE)
        e("s_mul_i32 s42, s42, %d" % (32 * 28672))
        e("s_add_u32 s41, s41, s42")
        e("v_add3_u32 v36, v40, v41, s41")
        e("v_xor_b32 v41, 64, v41")
        e("s_add_u32 s42, s41, %d" % (8 * 28672 - 1024))
        e("v_add3_u32 v37, v40, v41, s42")
        e("v_add_u32 v38, %d, v36" % (16 * 28672 - 2048))
        e("v_add_u32 v39, %d, v37" % (16 * 28672 - 2048))
        e("s_mul_i32 s6, s%d, %d" % (S_R, RMUL[0]))
        e("s_mul_i32 s7, s%d, %d" % (S_FB, FMUL[0]))
        e("s_add_u32 s6, s6, s7")
        e("s_mul_i32 s7, s6, 37")
        e("s_lshr_b32 s7, s7, 8")
        e("s_mul_i32 s7, s7, 7")
        e("s_sub_u32 s6, s6, s7")
        e("s_lshl_b32 s5, s%d, 12" % S_WAVE)
        for c in range(1, cfg.ncx + 1):
            rot_next(e, 6, 7)
            e("s_lshl_b32 s4, s6, 7")
            dma_group(e, 5, c * 16384, [(S_X, 36 + i, 4, i * 1024, ("xc", c)) for i in range(4)])
    de = Em()
    _e = e
    e = de
    e("s_lshl_b32 s41, s%d, 1" % S_R)
    e("s_add_u32 s41, s41, s%d" % S_WT)
    e("s_mul_i32 s41, s41, 112")
    e("s_lshl_b32 s42, s%d, 1" % S_FB)
    e("s_add_u32 s42, s42, s%d" % S_WF)
    e("s_lshl_b32 s42, s42, 1")
    e("s_add_u32 s41, s41, s42")
    e("s_lshl_b32 s41, s41, 11")
    e("v_lshlrev_b32 v20, 4, v%d" % L)
    e("v_add_u32 v20, s41, v20")
    e("v_add_u32 v21, 0x%x, v20" % (56 * 2048))
    flag_addr(e, True)
    srd(e, S_DBG, 72, 256)
    e("v_mov_b32 v7, 0")
    e("s_mov_b32 s44, 0x%08x" % f2u(-LOG2E))
    e("s_mov_b32 s45, s44")
    defer_list = [ln.strip() for ln in de.lines]
    e = _e
    nonce_publish(e)
    if "pf2" in cfg.x:
        lab = e.newlabel("PF2")
        e("s_cmp_lg_u32 s%d, 0" % S_WAVE)
        e("s_cbranch_scc1 %s" % lab)
        srd(e, S_WD, 56, 1605632)
        e("s_mul_i32 s41, s%d, 14" % S_R)
        e("s_add_u32 s41, s41, s%d" % S_FB)
        e("s_mul_i32 s41, s41, 56")
        e("v_add_u32 v8, s41, v%d" % L)
        e("v_lshlrev_b32 v8, 7, v8")
        e("buffer_load_dword v9, v8, s[%d:%d], 0 offen" % (S_WD, S_WD + 3))
        e.label(lab)
    stamp(e, cfg, 0)
    if "notouch" not in cfg.x:
        srd(e, S_WD, 56, 1605632)
        e("s_lshr_b32 s41, s2, 3")
        e("s_mul_i32 s41, s41, 448")
        e("s_lshl_b32 s42, s%d, 6" % S_WAVE)
        e("s_add_u32 s41, s41, s42")
        e("v_add_u32 v8, s41, v%d" % L)
        e("v_lshlrev_b32 v8, 7, v8")
        e("buffer_load_dword v2, v8, s[%d:%d], 0 offen" % (S_WD, S_WD + 3))
        e("s_cmp_eq_u32 s%d, 3" % S_WAVE)
        lab = e.newlabel("TCH")
        e("s_cbranch_scc1 %s" % lab)
        e("v_add_u32 v8, 0x%x, v8" % (256 * 128))
        e("buffer_load_dword v3, v8, s[%d:%d], 0 offen" % (S_WD, S_WD + 3))
        e.label(lab)
    e("s_barrier")
    stamp(e, cfg, 1)
    if cfg.diag:
        e("s_memtime s[76:77]"); e("s_waitcnt lgkmcnt(0)")
    def reads(g):
        p = g // 28; kap = g % 28
        base = H_FR + 16 * (g & 1)
        c = kap >> 2; kk4 = kap & 3
        xo = c * 16384
        xv = V_XA2 + kk4 + (4 if xo >= 0x10000 else 0); xo &= 0xffff
        j = g >> 1; kk = g & 1
        so = (j % NW2) * WS2
        def xr(nb): return (("X", g, nb), "ds_read_b128 %s, v%d offset:%d" % (vr(base + 4 * nb, 4), xv, xo + nb * 4096))
        def wr(m, ip): return (("W", g, m), "ds_read_b64_tr_b16 %s, v%d offset:%d" % (vr(base + 8 + 4 * m + 2 * ip, 2), V_WA2, so + kk * 4096 + ip * 512 + m * 1024))
        return [wr(0, 0), wr(0, 1), xr(0), wr(1, 0), wr(1, 1), xr(1)]
    def epi_list(p):
        ACCB = H_ACC + 64 * p
        L_ = []
        def I(txt): L_.append(lambda: e(txt))
        grp = 0
        for nb in range(2):
            for hf in range(2):
                outb = 224 + 4 * grp; grp += 1
                A = ACCB + 16 * nb + 8 * hf; B = ACCB + 32 + 16 * nb + 8 * hf
                for q in range(0, 8, 2):
                    I("v_pk_mul_f32 %s, %s, s[44:45]" % (vr(A + q, 2), vr(A + q, 2)))
                for q in range(8):
                    I("v_exp_f32 v%d, v%d" % (A + q, A + q))
                for q in range(0, 8, 2):
                    I("v_pk_add_f32 %s, %s, s[46:47]" % (vr(A + q, 2), vr(A + q, 2))) if False else I("v_pk_add_f32 %s, %s, 1.0 op_sel_hi:[1,0]" % (vr(A + q, 2), vr(A + q, 2)))
                for q in range(8):
                    I("v_rcp_f32 v%d, v%d" % (A + q, A + q))
                for q in range(0, 8, 2):
                    I("v_pk_mul_f32 %s, %s, %s" % (vr(A + q, 2), vr(A + q, 2), vr(B + q, 2)))
                for q2 in range(4):
                    I("v_cvt_pk_bf16_f32 v%d, v%d, v%d" % (outb + q2, A + 2 * q2, A + 2 * q2 + 1))
                def st(outb=outb, nb=nb, hf=hf):
                    e("buffer_store_dwordx4 %s, v%d, s[%d:%d], 0 offen offset:%d sc1" % (vr(outb, 4), 20 + p, S_WS, S_WS + 3, hf * 2048 + nb * 1024))
                    e.vm_issue("hst")
                L_.append(st)
        return L_
    def epilogue(p):
        e("s_nop 7"); e("s_nop 3")
        for f in epi_list(p): f()
    pend_epi = []
    ge = Em()
    gate_list = []
    for tag, txt in reads(0):
        e(txt); e.lg_issue(tag)
    for g in range(56):
        base = H_FR + 16 * (g & 1)
        nxt = reads(g + 1) if g + 1 < 56 else []
        first = (g % 28 == 0)
        ACCB = H_ACC + 64 * (g // 28)
        if g == 28 + cfg.epi_start and cfg.epi_rate > 0:
            pend_epi = epi_list(0)
        k = 0
        for n in range(4):
            nb = n >> 1; m = n & 1
            if "wait2" in cfg.x:
                if n == 0: e.lg_wait([("W", g, 0), ("X", g, 0)])
                if n == 1: e.lg_wait([("W", g, 1), ("X", g, 1)])
            elif "wait1" in cfg.x:
                if n == 0: e.lg_wait([("W", g, 0), ("X", g, 0), ("W", g, 1), ("X", g, 1)])
            else:
                e.lg_wait([("W", g, m), ("X", g, nb)])
            d = ACCB + 32 * m + 16 * nb
            if "fake16" in cfg.x:
                for hh in range(2):
                    e("v_mfma_f32_16x16x32_bf16 %s, %s, %s, %s" % (vr(d + 8 * hh, 4), vr(base + 8 + 4 * m, 4), vr(base + 4 * nb, 4), "0" if first else vr(d + 8 * hh, 4)))
            elif "nomfma" not in cfg.x:
                mfma(e, d, base + 8 + 4 * m, base + 4 * nb, "0" if first else None)
            cnt = 2 if n < 2 else 1
            if "rd3" in cfg.x: cnt = (3, 3, 0, 0)[n]
            if "rd6" in cfg.x: cnt = (6, 0, 0, 0)[n]
            for _ in range(cnt):
                if k < len(nxt):
                    tag, txt = nxt[k]; k += 1
                    if "nolds" in cfg.x: continue
                    e(txt); e.lg_issue(tag)
            for _ in range(cfg.epi_rate):
                if pend_epi: pend_epi.pop(0)()
            for _ in range(cfg.defer_rate):
                if defer_list: e(defer_list.pop(0))
            if g >= cfg.gate_g:
                pass
                for _ in range(cfg.gate_rate):
                    if gate_list: e(gate_list.pop(0))
        if g == 27 and cfg.epi_rate == 0:
            epilogue(0)
        for c in range(1, cfg.ncx + 1):
            if g == 4 * c - 3:
                e.vm_wait([("xc", c)])
        if g == 46:
            nonce_load(e)
        if g == 2 * cfg.flagA_bar - 1:
            e("s_waitcnt vmcnt(0)")
        if (g & 1) and g < 55:
            e("s_barrier")
    assert not e.lg
    e.vm = []
    e("s_barrier")
    if cfg.diag:
        e("s_memtime s[78:79]"); e("s_waitcnt lgkmcnt(0)")
        e("s_sub_u32 s7, s78, s76")
    nonce_finish(e)
    assert not pend_epi and not gate_list
    if "prio0T0" in cfg.x: e("s_setprio 0")
    stamp(e, cfg, 2)
    p2_role(e)
    flags_line(e, 0)
    pollAG_prep(e)
    poll_issue(e); e.vm_issue("pollA")
    epilogue(1)
    stamp(e, cfg, 3)

def h2_loader(e, cfg):
    L = V_LANE; T = 26
    VX = 10; VW = 14
    e("v_lshrrev_b32 v%d, 3, v%d" % (T, L))
    e("v_and_b32 v%d, 7, v%d" % (T + 1, L))
    e("v_lshrrev_b32 v%d, 4, v%d" % (T + 2, L))
    e("v_xor_b32 v%d, v%d, v%d" % (T + 3, T + 1, T + 2))
    e("v_lshlrev_b32 v%d, 4, v%d" % (T + 3, T + 3))
    e("v_mul_u32_u24 v%d, 28672, v%d" % (T + 4, T))
    e("s_lshl_b32 s41, s%d, 1" % S_R)
    e("s_lshr_b32 s42, s%d, 1" % S_LW)
    e("s_add_u32 s41, s41, s42")
    e("s_mul_i32 s41, s41, 896")
    e("s_and_b32 s42, s%d, 1" % S_LW)
    e("s_mul_i32 s42, s42, %d" % (32 * 28672))
    e("s_add_u32 s41, s41, s42")
    e("v_add3_u32 v%d, v%d, v%d, s41" % (VX, T + 4, T + 3))
    e("v_xor_b32 v%d, 64, v%d" % (T + 3, T + 3))
    e("s_add_u32 s42, s41, %d" % (8 * 28672 - 1024))
    e("v_add3_u32 v%d, v%d, v%d, s42" % (VX + 1, T + 4, T + 3))
    e("v_add_u32 v%d, %d, v%d" % (VX + 2, 16 * 28672 - 2048, VX))
    e("v_add_u32 v%d, %d, v%d" % (VX + 3, 16 * 28672 - 2048, VX + 1))
    e("v_mul_u32_u24 v%d, 3584, v%d" % (T + 4, T))
    e("v_and_b32 v%d, 1, v%d" % (T + 2, T + 2))
    e("v_lshlrev_b32 v%d, 2, v%d" % (T + 2, T + 2))
    e("v_xor_b32 v%d, v%d, v%d" % (T + 2, T + 2, T + 1))
    e("v_lshlrev_b32 v%d, 4, v%d" % (T + 2, T + 2))
    e("s_mul_i32 s41, s%d, %d" % (S_LW, 8 * 3584))
    e("s_lshl_b32 s42, s%d, 7" % S_FB)
    e("s_add_u32 s41, s41, s42")
    e("v_add3_u32 v%d, v%d, v%d, s41" % (VW, T + 4, T + 2))
    e("v_add_u32 v%d, %d, v%d" % (VW + 1, 32 * 3584, VW))
    e("s_lshl_b32 s%d, s%d, 11" % (S_LDSW, S_LW))
    e("s_lshl_b32 s%d, s%d, 12" % (S_LDSX, S_LW))
    e("s_mul_i32 s6, s%d, %d" % (S_R, RMUL[0]))
    e("s_mul_i32 s7, s%d, %d" % (S_FB, FMUL[0]))
    e("s_add_u32 s6, s6, s7")
    e("s_mul_i32 s7, s6, 37")
    e("s_lshr_b32 s7, s7, 8")
    e("s_mul_i32 s7, s7, 7")
    e("s_sub_u32 s6, s6, s7")
    e("s_waitcnt lgkmcnt(0)")
    srd(e, S_X, 44, 1835008)
    srd(e, S_WA, 52, 1605632)
    e("s_sub_u32 s%d, s54, 1024" % S_WB)
    e("s_subb_u32 s%d, s55, 0" % (S_WB + 1))
    e("s_and_b32 s%d, s%d, 0xffff" % (S_WB + 1, S_WB + 1))
    e("s_mov_b32 s%d, 0x%x" % (S_WB + 2, 1605632 + 1024))
    e("s_mov_b32 s%d, 0x20000" % (S_WB + 3))
    e("s_mov_b64 s[76:77], s[56:57]")
    e("s_mov_b64 s[78:79], s[58:59]")
    def emitT(dst):
        c = dst - 44
        e("s_lshl_b32 s%d, s6, 7" % (44 + c))
        e("s_mul_i32 s%d, s6, %d" % (51 + c, 64 * 3584))
    emitT(44)
    stamp(e, cfg, 0)
    tdone = [1]
    def need_table(c):
        while tdone[0] <= c:
            rot_next(e, 6, 7)
            emitT(44 + tdone[0]); tdone[0] += 1
    def dx(c):
        need_table(c)
        dma_group(e, S_LDSX, c * 16384, [(S_X, VX + i, 44 + c, i * 1024, ("x", c)) for i in range(4)])
    def dw(j):
        p = j // 14; jj = j % 14; c = jj >> 1
        need_table(c)
        va = VW + 2 * p + (jj & 1)
        dma_group(e, S_LDSW, WB2 + (j % NW2) * WS2, [(S_WA, va, 51 + c, 0, ("w", j)), (S_WB, va, 51 + c, 1024, ("w", j))])
    q = []
    for j in range(28):
        if j < 14 and j % 2 == 0 and not (1 <= j // 2 <= cfg.ncx): q.append(("x", j // 2, -1))
        q.append(("w", j, -1 if j < NW2 else j - NW2 + 1))
    def cost(it): return 4 if it[0] == "x" else 2
    def issue(it): (dx if it[0] == "x" else dw)(it[1])
    def need(j):
        t = []
        for jj in (j, j + 1):
            if jj <= 27:
                if jj < 14 and not (1 <= (jj >> 1) <= cfg.ncx): t.append(("x", jj >> 1))
                t.append(("w", jj))
        return t
    issued = set(); curbar = [-1]
    def ensure(tags):
        while q and any(t not in issued for t in tags):
            it = q.pop(0); assert it[2] <= curbar[0], (it, curbar)
            issue(it); issued.add((it[0], it[1]))
    ensure(need(0))
    e("v_add_u32 v%d, %d, v%d" % (VW + 2, 1792, VW))
    e("v_add_u32 v%d, %d, v%d" % (VW + 3, 1792, VW + 1))
    srd(e, S_WS, 74, WS_BYTES)
    srd(e, S_WD, 76, 1605632)
    srd(e, S_GW, 78, 896)
    srd(e, S_DBG, 72, 256)
    flag_addr(e, True)
    e("v_mov_b32 v7, 0")
    budget0 = cfg.pro_extra
    while q and budget0 > 0 and q[0][2] <= -1:
        it = q.pop(0); issue(it); issued.add((it[0], it[1])); budget0 -= cost(it)
    e.vm_wait(need(0))
    e("s_barrier")
    stamp(e, cfg, 1)
    for j in range(27):
        curbar[0] = j
        ensure(need(j + 1))
        budget = cfg.stage_budget2
        while q and budget > 0 and q[0][2] <= j:
            it = q.pop(0); issue(it); issued.add((it[0], it[1])); budget -= cost(it)
        if j == 1:
            p2_role(e)
            q_setup(e, 0, 26)
        if j == 14:
            q_table(e, 44, 2 * 16 * 896)
            for i in range(4):
                e("v_add_u32 v%d, %d, v%d" % (20 + i, 896 * 896, 26 + i))
        if WDBE[0] and j in (24, 26):
            c = (j - 24) // 2
            dma_group(e, 62, q_pos(1, 2 * c), [(S_WD, 20 + k, 44 + c, k * 1024, ("wdbp", c)) for k in range(4)])
        if j >= 16 and j % 2 == 0:
            c = (j - 16) // 2
            q_dma_pair(e, 0, c, 26, 44)
        if j == 9:
            e("buffer_load_dword v4, v7, s[%d:%d], 0 offen sc1" % (S_DBG, S_DBG + 3))
            e.vm_issue("nonce")
        if j == 13:
            e.vm_wait(["nonce"])
            sv = list(e.vm)
            nonce_finish_any(e, keepvm=True)
            e.vm = sv
        if j == cfg.flagA_bar:
            lab = e.newlabel("FA")
            e("s_cmp_lg_u32 s%d, 4" % S_WAVE)
            e("s_cbranch_scc1 %s" % lab)
            flag_store(e)
            e.label(lab)
        if j == cfg.epoll:
            flags_line(e, 0)
            poll_prep(e, S_PF, 14)
            poll_issue(e); e.vm_issue("poll")
        e.vm_wait(need(j + 1))
        if "stg" in cfg.x and j + 1 in (4, 12, 15, 18, 26):
            pass
        e("s_barrier")
        if "stg" in cfg.x and j + 1 in (4, 12, 15, 18, 26):
            k = {4: 3, 12: 4, 15: 5, 18: 6, 26: 7}[j + 1]
            e("s_memtime s[%d:%d]" % (S_STAMP + 2 * k, S_STAMP + 2 * k + 1)); e("s_waitcnt lgkmcnt(0)")
    assert not q
    q_setup2(e, 0)
    q_table(e, 51, 4096)
    e.vm_wait([("wd", 11), ("wdbp", 1)])
    e("s_waitcnt lgkmcnt(0)")
    e("s_barrier")
    stamp(e, cfg, 2)
    poll_loop(e, 14, True)
    if cfg.diag: e("s_mov_b32 s%d, s41" % (S_STAMP + 16))
    stamp(e, cfg, 4)
    e.vm = []
    cfg.stepsA = q_steps(0, list(range(0, 2 * (6 - cfg.nca))) + [12, 13], 13)
    for i in range(cfg.hpre): q_issue_h(e, cfg.stepsA[i])
    q_dma_pair(e, 0, 6, 26, 44)

def nonce_finish_any(e, keepvm=False):
    lab = e.newlabel("NFA"); top = e.newlabel("NTA"); chk = e.newlabel("NCK")
    e("s_mov_b32 s42, 0")
    if keepvm: e("s_branch %s" % chk)
    e.label(top)
    e("s_waitcnt vmcnt(0)")
    e.label(chk)
    e("v_readfirstlane_b32 s%d, v4" % S_NONCE)
    e("s_nop 3")
    e("s_cmp_lg_u32 s%d, 0" % S_NONCE)
    e("s_cbranch_scc1 %s" % lab)
    e("s_add_u32 s42, s42, 1")
    e("s_cmp_ge_u32 s42, 0x40000")
    e("s_cbranch_scc1 %s" % lab)
    e("s_sleep 1")
    e("buffer_load_dword v4, v7, s[%d:%d], 0 offen sc1" % (S_DBG, S_DBG + 3))
    e("s_branch %s" % top)
    e.label(lab)

Q_ACC = 64
Q_H = 128
Q_A = 240
SL2 = 40960
SI = 3

def q_setup(e, part, vw=9):
    L = V_LANE
    e("s_and_b32 s%d, s%d, 3" % (SI, S_WAVE))
    e("v_lshrrev_b32 v2, 3, v%d" % L)
    e("v_bfe_u32 v3, v%d, 4, 1" % L)
    e("v_lshlrev_b32 v3, 2, v3")
    e("v_and_b32 v8, 7, v%d" % L)
    e("v_xor_b32 v3, v3, v8")
    e("v_lshlrev_b32 v3, 4, v3")
    e("s_mul_i32 s41, s%d, 224" % SI)
    if part: e("s_add_u32 s41, s41, 896")
    e("v_add_u32 v2, s41, v2")
    e("s_movk_i32 s42, 896")
    e("v_mul_lo_u32 v2, v2, s42")
    e("s_lshl_b32 s41, s%d, 7" % S_C)
    e("v_add3_u32 v%d, v2, v3, s41" % vw)
    e("v_add_u32 v%d, %d, v%d" % (vw + 1, 8 * 896 - 1024, vw))
    e("v_add_u32 v%d, %d, v%d" % (vw + 2, 16 * 896 - 2048, vw))
    e("v_add_u32 v%d, %d, v%d" % (vw + 3, 24 * 896 - 3072, vw))
    e("s_lshl_b32 s62, s%d, 12" % SI)
    e("s_and_b32 s4, s%d, 3" % S_T1)
    e("s_lshl_b32 s4, s4, 1")
    e("s_add_u32 s4, s4, s%d" % S_C)
    e("s_cmp_ge_u32 s4, 7")
    e("s_cselect_b32 s5, 7, 0")
    e("s_sub_u32 s4, s4, s5")
    if P2ROT[0] == 0: e("s_mov_b32 s4, 0")

def q_table(e, first, mult):
    e("s_mov_b32 s5, s4")
    for c in range(7):
        e("s_mul_i32 s%d, s5, %d" % (first + c, mult))
        if c < 6: rot_next(e, 5, 7)

def q_dma_pair(e, part, c, vw, tab):
    pos = q_pos(part, 2 * c)
    dma_group(e, 62, pos, [(S_WD, vw + i, tab + c, i * 1024, ("wd", 2 * c + (i >> 1))) for i in range(4)])

P2ROT = [0]
WDBE = [0]
RMUL = [0]
FMUL = [0]
OSC = [""]
HSC = [" sc1"]
def q_setup2(e, part):
    L = V_LANE
    e("v_and_b32 v2, 15, v%d" % L)
    e("v_lshrrev_b32 v3, 2, v2")
    e("v_lshrrev_b32 v8, 5, v%d" % L)
    e("v_lshlrev_b32 v5, 2, v8")
    e("v_add_u32 v5, v5, v3")
    e("v_lshlrev_b32 v5, 7, v5")
    e("v_bfe_u32 v6, v2, 3, 1")
    e("v_lshlrev_b32 v6, 6, v6")
    e("v_bfe_u32 v3, v%d, 4, 1" % L)
    e("v_lshlrev_b32 v3, 5, v3")
    e("v_and_b32 v8, 3, v2")
    e("v_lshlrev_b32 v8, 3, v8")
    e("v_add3_u32 v5, v5, v6, v3")
    e("v_add_u32 v5, v5, v8")
    e("v_add_u32 v11, s62, v5")
    e("v_xor_b32 v12, 64, v11")
    e("v_add_u32 v18, 0x10000, v11")
    e("v_add_u32 v19, 0x10000, v12")
    e("v_add_u32 v15, 0x20000, v11")
    e("v_add_u32 v63, 0x20000, v12")
    e("s_mul_i32 s41, s%d, 112" % S_T1)
    e("s_mul_i32 s42, s%d, 14" % SI)
    e("s_add_u32 s41, s41, s42")
    if part: e("s_add_u32 s41, s41, 56")
    e("s_lshl_b32 s41, s41, 11")
    e("v_lshlrev_b32 v13, 4, v%d" % L)
    e("v_add_u32 v13, s41, v13")
    e("v_and_b32 v14, 31, v%d" % L)

def q_pos(part, kk):
    c = kk >> 1; u = kk & 1
    if part == 0: return c * 16384 + u * 2048
    if c < 3: return WB2 + ((2, 0, 1)[c] if WDBE[0] else c) * 16384 + u * 2048
    if c < 6: return c * 16384 + u * 2048
    return 0 * 16384 + u * 2048

HT = [51]
def q_load_h(e, kk, hreg, hv, tag):
    c = kk >> 1; u = kk & 1
    for nb in range(2):
        e("buffer_load_dwordx4 %s, v%d, s[%d:%d], s%d offen offset:%d%s" % (vr(hreg + 4 * nb, 4), hv, S_WS, S_WS + 3, HT[0] + c, u * 2048 + nb * 1024, HSC[0]))
        e.vm_issue(tag)

def q_steps(part, kks, hv, reg0=0):
    return [dict(part=part, kk=kk, hv=hv, hreg=Q_H + 8 * (reg0 + i), tag=("h", part, kk)) for i, kk in enumerate(kks)]

def q_issue_h(e, st):
    q_load_h(e, st["kk"], st["hreg"], st["hv"], st["tag"])

def q_mainloop(e, cfg, steps, init_zero, pre, extra=None, after_i=None, barrier_before=None):
    n = len(steps)
    def reads(i):
        st = steps[i]
        b = Q_A + 8 * (i & 1)
        pos = q_pos(st["part"], st["kk"])
        for mb in range(2):
            for ip in range(2):
                va = (11 + mb) if pos < 0x10000 else (18 + mb)
                po = pos if pos < 0x10000 else pos - 0x10000
                if pos >= 0x20000:
                    va = (15, 63)[mb]; po = pos - 0x20000
                e("ds_read_b64_tr_b16 %s, v%d offset:%d" % (vr(b + 4 * mb + 2 * ip, 2), va, po + ip * 1024))
                e.lg_issue(("A", i, mb))
    nxt = pre
    e.vm_wait([("wd", steps[0]["kk"])])
    reads(0)
    for i in range(n):
        st = steps[i]
        if nxt < n:
            q_issue_h(e, steps[nxt]); nxt += 1
            if nxt == n and extra: extra()
        late = (barrier_before is not None and i + 1 == barrier_before)
        if i + 1 < n and not late:
            e.vm_wait([("wd", steps[i + 1]["kk"])])
            reads(i + 1)
        e.vm_wait([st["tag"]])
        b = Q_A + 8 * (i & 1)
        for mb in range(2):
            e.lg_wait([("A", i, mb)])
            for nb in range(2):
                mfma(e, Q_ACC + 16 * (2 * mb + nb), b + 4 * mb, st["hreg"] + 4 * nb, "0" if (i == 0 and init_zero) else None)
        if late:
            e("s_barrier")
            reads(i + 1)
        if after_i: after_i(i)
    assert not e.lg and nxt >= n

def flags_line(e, part):
    e("s_lshr_b32 s43, s%d, 1" % S_T1)
    e("s_lshl_b32 s43, s43, 9")
    e("s_add_u32 s%d, s43, 0x%x" % (S_PF, FLAGS + 256 * part))

def q_loader_A(e, cfg):
    stamp(e, cfg, 5)
    def after_i(i):
        if i == 1:
            dma_group(e, 62, q_pos(1, 12), [(S_WD, 20 + k, 44 + 6, k * 1024, ("wdb", 6)) for k in range(4)])
        if (i & 1) and 3 <= (i >> 1) < 6 - cfg.nca:
            c = i >> 1
            dma_group(e, 62, q_pos(1, 2 * c), [(S_WD, 20 + k, 44 + c, k * 1024, ("wdb", c)) for k in range(4)])
    q_mainloop(e, cfg, cfg.stepsA, True, cfg.hpre, None, after_i)
    stamp(e, cfg, 6)
    e("v_lshlrev_b32 v2, 4, v%d" % V_LANE)
    e("v_add_u32 v2, s62, v2")
    e("v_add_u32 v3, 0x10000, v2")
    e("s_nop 7"); e("s_nop 3")
    for tl, (va, off) in enumerate(((2, 16384), (2, 32768), (3, 6 * 16384 - 0x10000))):
        for qq in range(4):
            e("ds_write_b128 v%d, %s offset:%d" % (va, vr(Q_ACC + 16 * tl + 4 * qq, 4), off + qq * 1024))
    e("s_waitcnt vmcnt(0) lgkmcnt(0)")
    e.vm = []
    e("s_barrier")
    stamp(e, cfg, 7)
    e("v_add_u32 v3, 0x%x, v2" % WB2)
    for qq in range(4):
        e("ds_write_b128 v3, %s offset:%d" % (vr(Q_ACC + 48 + 4 * qq, 4), qq * 1024))
    e("s_waitcnt lgkmcnt(0)")
    e("s_barrier")

def tprime(e):
    L = V_LANE
    e("s_cmp_lg_u32 s%d, 0" % S_T1)
    e("s_cselect_b32 s76, s63, 0")
    e("v_add_u32 v2, s76, v14")
    e("v_lshrrev_b32 v8, 5, v%d" % L)
    e("v_lshlrev_b32 v8, 2, v8")
    e("s_lshl_b32 s77, s%d, 4" % SI)
    e("v_add_u32 v8, s77, v8")
    e("s_lshl_b32 s76, s63, 31")
    e("s_mov_b32 s77, 0x%08x" % f2u(1.0 / 64))
    for nb in range(2):
        if nb: e("v_add_u32 v2, 32, v2")
        e("v_xor_b32 v21, s76, v%d" % (22 + nb))
        for u in range(2):
            for q in range(4):
                e("v_add_u32 v3, %d, v8" % (8 * u + q))
                e("v_mul_u32_u24 v3, v3, v2")
                e("v_and_b32 v3, 63, v3")
                e("v_cvt_f32_u32 v3, v3")
                e("v_mul_f32 v3, s77, v3")
                e("v_cos_f32 v5, v3")
                e("v_sin_f32 v6, v3")
                e("s_nop 0")
                e("v_mul_f32 v5, v5, v%d" % (22 + nb))
                e("v_mul_f32 v6, v6, v21")
                e("v_cvt_pk_bf16_f32 v%d, v5, v6" % (T_REG + 8 * nb + 4 * u + q))
    for nb in range(2):
        e("v_sub_f32 v%d, 1.0, v%d" % (40 + 2 * nb, 22 + nb))
        e("v_mov_b32 v%d, v%d" % (41 + 2 * nb, 40 + 2 * nb))

T_REG = 44
U_REG = 128
def q_consumer_B(e, cfg):
    L = V_LANE
    q_setup(e, 1, 26)
    q_setup2(e, 1)
    e("v_subrev_u32 v9, %d, v13" % (56 * 2048))
    srd(e, S_OUT, 46, 1835008)
    srd(e, S_WD, 56, 1605632)
    q_table(e, 44, 2 * 16 * 896)
    q_table(e, 51, 4096)
    e.vm_wait(["pollA"])
    okA = e.newlabel("AOK")
    topA = e.newlabel("ATOP")
    e("s_mov_b32 s41, 0")
    e.label(topA)
    e("v_cmp_eq_u32 vcc, s%d, v60" % S_NONCE)
    e("s_nop 1")
    e("s_and_b32 s42, vcc_lo, 0x3fff")
    e("s_cmp_eq_u32 s42, 0x3fff")
    e("s_cselect_b32 s42, vcc_hi, 0")
    e("s_cmp_eq_u32 s42, -1")
    e("s_cbranch_scc1 %s" % okA)
    e("s_add_u32 s41, s41, 1")
    e("s_cmp_ge_u32 s41, 0x40000")
    e("s_cbranch_scc1 %s" % okA)
    poll_issue(e)
    e("s_waitcnt vmcnt(0)")
    e("s_branch %s" % topA)
    e.label(okA)
    stepsCA = q_steps(0, list(range(2 * (6 - cfg.nca), 12)), 9)
    for st in stepsCA[:cfg.preCA]: q_issue_h(e, st)
    e("s_cmp_ge_u32 s%d, 4" % S_C)
    e("s_cselect_b32 s63, 1, 0")
    e("s_sub_u32 s64, 32, s%d" % S_T1)
    e("s_and_b32 s64, s64, 31")
    e("s_cmp_eq_u32 s63, 1")
    e("s_cselect_b32 s64, s64, s%d" % S_T1)
    e("v_lshrrev_b32 v8, 5, v%d" % L)
    e("s_lshl_b32 s41, s%d, 6" % S_C)
    e("s_cmp_eq_u32 s63, 1")
    e("s_cselect_b64 vcc, -1, 0")
    for mb in range(2):
        e("v_add_u32 v2, s41, v14")
        if mb: e("v_add_u32 v2, 32, v2")
        e("v_sub_u32 v3, 448, v2")
        e("v_cndmask_b32 v2, v2, v3, vcc")
        e("v_lshlrev_b32 v2, 4, v2")
        e("v_lshlrev_b32 v3, 12, v8")
        e("v_add_u32 v%d, v2, v3" % (16 + mb))
    e("s_lshl_b32 s41, s64, 4")
    e("s_lshl_b32 s42, s%d, 2" % SI)
    e("s_add_u32 s41, s41, s42")
    e("s_lshl_b32 s41, s41, 12")
    e("s_add_u32 s65, s41, 0x%x" % UBUF)
    e("s_lshl_b32 s41, s%d, 6" % S_T1)
    e("v_add_u32 v2, s41, v14")
    e("v_lshlrev_b32 v2, 2, v2")
    e("v_add_u32 v20, 0x%x, v2" % GBUF)
    e("s_mul_i32 s41, s61, 12")
    e("s_lshl_b32 s42, s%d, 2" % S_WAVE)
    e("s_add_u32 s41, s41, s42")
    e("s_add_u32 s41, s41, 256")
    e("s_add_u32 s%d, s%d, s41" % (S_FLAG, S_FLAG))
    e.vm_wait(["hst"])
    stamp(e, cfg, 6)
    flag_store(e)
    e.vm_issue("flagB")
    for nb in range(2):
        e("buffer_load_dword v%d, v20, s[%d:%d], 0 offen offset:%d sc1" % (22 + nb, S_WS, S_WS + 3, nb * 128))
        e.vm_issue("g")
    for st in stepsCA[cfg.preCA:]: q_issue_h(e, st)
    for c in ((2,) if WDBE[0] else (0, 1, 2)): q_dma_pair(e, 1, c, 26, 44)
    e.vm_wait(["g"])
    tprime(e)
    def afterA(i):
        if i & 1:
            c = 6 - cfg.nca + (i >> 1)
            q_dma_pair(e, 1, c, 26, 44)
    if stepsCA:
        q_mainloop(e, cfg, stepsCA, True, len(stepsCA), None, afterA)
    stamp(e, cfg, 4)
    flags_line(e, 1)
    poll_prep(e, S_PF, 56)
    poll_loop56(e)
    stamp(e, cfg, 5)
    e.vm = []
    e("v_lshlrev_b32 v62, 2, v%d" % V_LANE)
    e("v_add_u32 v62, 0x%x, v62" % (FLAGS + 16 * 512))
    e("v_mov_b32 v60, 0x7fffffff")
    e("v_cmp_gt_u32 vcc, 32, v%d" % V_LANE)
    e("s_nop 1")
    e("v_cndmask_b32 v62, v60, v62, vcc")
    def uloads():
        for u in range(2):
            for mb in range(2):
                e("s_add_u32 s%d, s65, %d" % (S_OFF, u * 2 * 4096))
                e("buffer_load_dwordx4 %s, v%d, s[%d:%d], s%d offen sc1" % (vr(U_REG + 8 * u + 4 * mb, 4), 16 + mb, S_WS, S_WS + 3, S_OFF))
                e.vm_issue("u")
    def dflag_issue():
        e("buffer_load_dword v10, v62, s[%d:%d], 0 offen sc1" % (S_WS, S_WS + 3))
        e.vm_issue("dflag")
    def after_k(kk):
        if kk == cfg.dchk:
            ok = e.newlabel("DOK"); top = e.newlabel("DSP")
            e.vm_wait(["dflag"])
            sv = list(e.vm)
            e("s_mov_b32 s41, 0")
            e.label(top)
            e("v_cmp_eq_u32 vcc, s%d, v10" % S_NONCE)
            e("s_nop 1")
            e("s_cmp_eq_u32 vcc_lo, -1")
            e("s_cbranch_scc1 %s" % ok)
            e("s_add_u32 s41, s41, 1")
            e("s_cmp_ge_u32 s41, 0x40000")
            e("s_cbranch_scc1 %s" % ok)
            e("buffer_load_dword v10, v62, s[%d:%d], 0 offen sc1" % (S_WS, S_WS + 3))
            e("s_waitcnt vmcnt(0)")
            e("s_branch %s" % top)
            e.label(ok)
            e.vm = sv
            uloads()
    stepsB = q_steps(1, list(range(14)), 13)
    for i in range(cfg.hpreB): q_issue_h(e, stepsB[i])
    q_mainloop(e, cfg, stepsB, cfg.nca == 0, cfg.hpreB, dflag_issue, after_k, cfg.b15 if cfg.nca == 3 else 6)
    stamp(e, cfg, 7)
    e("s_nop 7"); e("s_nop 3")
    for mb in range(2):
        for nb in range(2):
            D = Q_ACC + 16 * (2 * mb + nb)
            for i in range(0, 16, 2):
                e("v_pk_mul_f32 %s, %s, %s" % (vr(D + i, 2), vr(D + i, 2), vr(40 + 2 * nb, 2)))
    e.vm_wait(["u"])
    e("s_nop 1")
    for u in range(2):
        for mb in range(2):
            for nb in range(2):
                mfma(e, Q_ACC + 16 * (2 * mb + nb), U_REG + 8 * u + 4 * mb, T_REG + 8 * nb + 4 * u)
    e("v_lshlrev_b32 v2, 4, v%d" % L)
    e("s_add_u32 s41, s%d, 2" % SI)
    e("s_cmp_eq_u32 s%d, 0" % SI)
    e("s_cselect_b32 s41, 0, s41")
    e("s_lshl_b32 s41, s41, 14")
    e("v_add_u32 v3, s41, v2")
    e("s_add_u32 s41, s%d, 1" % SI)
    e("s_lshl_b32 s41, s41, 14")
    e("s_cmp_eq_u32 s%d, 2" % SI)
    e("s_cselect_b32 s41, %d, s41" % (6 * 16384))
    e("s_cmp_eq_u32 s%d, 3" % SI)
    e("s_cselect_b32 s41, 0x%x, s41" % WB2)
    e("v_add_u32 v5, s41, v2")
    e("s_lshl_b32 s41, s%d, 12" % SI)
    e("v_add_u32 v6, s41, v2")
    e("v_add_u32 v7, 0x10000, v6")
    e("s_and_b32 s41, s%d, 1" % SI)
    e("s_cmp_eq_u32 s41, 1")
    e("s_cselect_b64 vcc, -1, 0")
    e("s_lshl_b32 s41, s41, 5")
    e("v_add_u32 v8, s41, v14")
    e("v_cndmask_b32 v40, v40, v42, vcc")
    e("v_mov_b32 v41, v40")
    e("v_lshlrev_b32 v8, 5, v8")
    e("v_add_u32 v8, s%d, v8" % S_T1)
    e("s_movk_i32 s42, 896")
    e("v_mul_lo_u32 v8, v8, s42")
    e("s_lshl_b32 s41, s%d, 7" % S_C)
    e("s_lshr_b32 s42, s%d, 1" % SI)
    e("s_lshl_b32 s42, s42, 6")
    e("s_add_u32 s41, s41, s42")
    e("v_lshrrev_b32 v9, 5, v%d" % L)
    e("v_lshlrev_b32 v9, 4, v9")
    e("v_add3_u32 v8, v8, v9, s41")
    e("s_barrier")
    regions = ((6, 0), (6, 3 * 16384), (7, 0), (7, 16384))
    done = e.newlabel("XDONE")
    labs = [e.newlabel("XV%d_" % w) for w in range(4)]
    for w in range(1, 4):
        e("s_cmp_eq_u32 s%d, %d" % (SI, w))
        e("s_cbranch_scc1 %s" % labs[w])
    for w in range(4):
        e.label(labs[w])
        others = [t for t in range(4) if t != w]
        for tl in others:
            for qq in range(4):
                e("ds_write_b128 v3, %s offset:%d" % (vr(Q_ACC + 16 * tl + 4 * qq, 4), tl * 4096 + qq * 1024))
            if tl == others[1]: e("s_waitcnt lgkmcnt(4)")
        for k in range(4):
            for qq in range(4):
                e("ds_read_b128 %s, v5 offset:%d" % (vr(192 + 16 * k + 4 * qq, 4), k * 4096 + qq * 1024))
            if k in (0, 1, 2): e("s_waitcnt lgkmcnt(8)")
        for q in range(0, 16, 2):
            e("v_pk_mul_f32 %s, %s, 1.0 op_sel_hi:[1,0]" % (vr(128 + q, 2), vr(Q_ACC + 16 * w + q, 2)))
        e("s_waitcnt lgkmcnt(0)")
        e("s_barrier")
        for n, k in enumerate(others):
            va, off = regions[k]
            for qq in range(4):
                e("ds_read_b128 %s, v%d offset:%d" % (vr(144 + 16 * n + 4 * qq, 4), va, off + qq * 1024))
        if w < 3: e("s_branch %s" % done)
    e.label(done)
    for q in range(0, 16, 2):
        e("v_pk_add_f32 %s, %s, %s" % (vr(192 + q, 2), vr(192 + q, 2), vr(208 + q, 2)))
        e("v_pk_add_f32 %s, %s, %s" % (vr(224 + q, 2), vr(224 + q, 2), vr(240 + q, 2)))
    for q in range(0, 16, 2):
        e("v_pk_add_f32 %s, %s, %s" % (vr(192 + q, 2), vr(192 + q, 2), vr(224 + q, 2)))
    for q in range(0, 16, 2):
        e("v_pk_fma_f32 %s, %s, %s, %s" % (vr(128 + q, 2), vr(192 + q, 2), vr(40, 2), vr(128 + q, 2)))
    e("s_waitcnt lgkmcnt(0)")
    for q in range(0, 16, 2):
        e("v_pk_add_f32 %s, %s, %s" % (vr(144 + q, 2), vr(144 + q, 2), vr(160 + q, 2)))
        e("v_pk_add_f32 %s, %s, %s" % (vr(128 + q, 2), vr(128 + q, 2), vr(176 + q, 2)))
    for q in range(0, 16, 2):
        e("v_pk_add_f32 %s, %s, %s" % (vr(128 + q, 2), vr(128 + q, 2), vr(144 + q, 2)))
    for q in range(8):
        e("v_cvt_pk_bf16_f32 v%d, v%d, v%d" % (96 + q, 128 + 2 * q, 128 + 2 * q + 1))
    e("s_nop 1")
    for ih in range(2):
        e("v_permlane32_swap_b32 v%d, v%d" % (96 + 4 * ih, 98 + 4 * ih))
        e("v_permlane32_swap_b32 v%d, v%d" % (97 + 4 * ih, 99 + 4 * ih))
    for ih in range(2):
        e("buffer_store_dwordx4 %s, v8, s[%d:%d], 0 offen offset:%d%s" % (vr(96 + 4 * ih, 4), S_OUT, S_OUT + 3, ih * 32, OSC[0]))
    stamp(e, cfg, 8)

def kernel_fused2(e, cfg):
    name = "gated_mix__spectral_fnet__glu_gated_glu__prompt_kernel"
    header(e, name)
    if cfg.diag:
        e("s_memrealtime s[%d:%d]" % (S_STAMP + 6, S_STAMP + 7))
    e("s_cmp_ge_u32 s2, 256")
    e("s_cbranch_scc1 KF_END")
    kernarg_loads(e)
    entry_common(e)
    e("s_and_b32 s%d, s%d, 3" % (S_WF, S_WAVE))
    e("s_and_b32 s%d, s%d, 3" % (S_LW, S_WAVE))
    e("s_and_b32 s41, s2, 7")
    e("s_lshr_b32 s42, s2, 3")
    e("s_cmp_ge_u32 s42, 28")
    e("s_cbranch_scc1 P1_DFT")
    e("s_mul_i32 s43, s42, 37")
    e("s_lshr_b32 s43, s43, 8")
    e("s_mul_i32 s76, s43, 7")
    e("s_sub_u32 s76, s42, s76")
    e("s_lshr_b32 s77, s41, 1")
    e("s_lshl_b32 s77, s77, 2")
    e("s_add_u32 s%d, s77, s43" % S_R)
    e("s_and_b32 s77, s41, 1")
    e("s_mul_i32 s77, s77, 7")
    e("s_add_u32 s%d, s77, s76" % S_FB)
    e("s_cmp_lt_u32 s%d, 4" % S_WAVE)
    e("s_cbranch_scc1 P1_H_CONSUMER")
    e.vm = []; e.lg = []
    STG[0] = True
    if "prioL" in cfg.x: e("s_setprio 1")
    h2_loader(e, cfg)
    q_loader_A(e, cfg)
    STG[0] = False
    stamp_store(e, cfg, 0)
    e("s_endpgm")
    e.label("P1_H_CONSUMER")
    if "prioC" in cfg.x: e("s_setprio 1")
    e.vm = []; e.lg = []
    h2_consumer(e, cfg)
    q_consumer_B(e, cfg)
    stamp_store(e, cfg, 0)
    e("s_endpgm")
    e.label("P1_DFT")
    e("s_sub_u32 s42, s42, 28")
    e("s_and_b32 s%d, s41, 1" % S_EH)
    e("s_lshr_b32 s77, s41, 1")
    e("s_lshl_b32 s77, s77, 2")
    e("s_add_u32 s%d, s77, s42" % S_QG)
    e("s_cmp_ge_u32 s%d, 4" % S_WAVE)
    e("s_cbranch_scc1 P1_D_LOADER")
    if "prioD" in cfg.x: e("s_setprio 1")
    e.vm = []; e.lg = []
    p1_consumer(e, cfg, False)
    d_epilogue(e, cfg)
    stamp(e, cfg, 3)
    e.vm_wait_all()
    e("s_barrier")
    lab = e.newlabel("DNOTW0")
    e("s_cmp_lg_u32 s%d, 0" % S_WAVE)
    e("s_cbranch_scc1 %s" % lab)
    flag_store(e)
    e("s_waitcnt vmcnt(0)")
    e.label(lab)
    stamp_store(e, cfg, 0)
    e("s_endpgm")
    e.label("P1_D_LOADER")
    e.vm = []; e.lg = []
    p1_loader(e, cfg, False)
    stamp(e, cfg, 3)
    e("s_waitcnt vmcnt(0)")
    e("s_barrier")
    stamp_store(e, cfg, 0)
    e("s_endpgm")
    e.label("KF_END")
    e("s_endpgm")
    e.label("KF_CODE_END")

def descriptor(name):
    return """.section .rodata,"a"
.p2align 6
.amdhsa_kernel %s
  .amdhsa_next_free_vgpr 256
  .amdhsa_next_free_sgpr 102
  .amdhsa_accum_offset 256
  .amdhsa_group_segment_fixed_size 0
  .amdhsa_kernarg_size 104
  .amdhsa_user_sgpr_count 2
  .amdhsa_user_sgpr_kernarg_segment_ptr 1
  .amdhsa_system_sgpr_workgroup_id_x 1
.end_amdhsa_kernel
""" % name

def main():
    cfg = Cfg()
    cfg.pro_extra = 16; cfg.stage_budget = 8; cfg.p2_la = 3; cfg.p2_dpoll = 4; cfg.stage_budget2 = 6; cfg.flagA_bar = 22; cfg.epi_rate = 0; cfg.epi_start = 1; cfg.epoll = 26; cfg.hpre = 5; cfg.preCA = 0; cfg.nca = 3; cfg.b15 = 4; cfg.hpreB = 5; cfg.dchk = 11; cfg.gate_j = 5; cfg.gflag_k = 9; cfg.ncx = 0; cfg.gate_g = 14; cfg.gate_rate = 3; cfg.defer_rate = 3; cfg.pfWd_j = 1; cfg.pfWB_j = 0; cfg.pfW_j = 1
    out = sys.argv[1]
    for a in sys.argv[2:]:
        if a == "nop2rot": P2ROT[0] = 0
        if a == "p2rot": P2ROT[0] = 1
        if a == "wdbe": WDBE[0] = 1
        if a == "rmul1": RMUL[0] = 1
        if a.startswith("rm_"): RMUL[0] = int(a[3:])
        if a.startswith("fm_"): FMUL[0] = int(a[3:])
        if a == "osc1": OSC[0] = " sc1"
        if a == "ont": OSC[0] = " nt"
        if a == "osc01": OSC[0] = " sc0 sc1"
        if a == "hplain": HSC[0] = ""
        if a == "hnt": HSC[0] = " nt"
        if a == "hsc01": HSC[0] = " sc0 sc1"
        if a == "diag": cfg.diag = True
        elif a == "fused": cfg.fused = True
        elif "=" in a:
            k, v = a.split("="); setattr(cfg, k, int(v))
        else: cfg.x = cfg.x | {a}
    e = Em()
    if cfg.fused:
        name = "gated_mix__spectral_fnet__glu_gated_glu__prompt_kernel"
        hdr = "; generated by gen2.py (fused)\n; @launch grid=(256,1,1) block=(512,1,1) lds=163840\n"
        hdr += '.amdgcn_target "amdgcn-amd-amdhsa--gfx950"\n'
        kernel_fused2(e, cfg)
        open(out, "w").write(hdr + e.text() + descriptor(name))
        return
    hdr = "; generated by gen2.py\n"
    hdr += "; @launch kernel=k1_kernel grid=(256,1,1) block=(512,1,1) lds=163840\n"
    hdr += "; @launch kernel=k2_kernel grid=(256,1,1) block=(512,1,1) lds=163840\n"
    hdr += '.amdgcn_target "amdgcn-amd-amdhsa--gfx950"\n'
    kernel1(e, cfg)
    kernel2(e, cfg)
    txt = hdr + e.text() + descriptor("k1_kernel") + descriptor("k2_kernel")
    open(out, "w").write(txt)
if __name__ == "__main__":
    main()
```

```python
import sys, math, struct

def f2u(f): return struct.unpack("<I", struct.pack("<f", f))[0]

class Em:
    def __init__(self):
        self.lines = []
        self.vm = []
        self.lg = []
        self.nlab = 0
    def __call__(self, s): self.lines.append("    " + s)
    def raw(self, s): self.lines.append(s)
    def label(self, s): self.lines.append(s + ":")
    def newlabel(self, p):
        self.nlab += 1
        return "%s_%d" % (p, self.nlab)
    def vm_issue(self, tag): self.vm.append(tag)
    def vm_wait(self, tags):
        last = -1
        for i, t in enumerate(self.vm):
            if t in tags: last = i
        if last < 0: return
        n = len(self.vm) - 1 - last
        assert n <= 63, n
        self("s_waitcnt vmcnt(%d)" % n)
        self.vm = self.vm[last + 1:]
    def vm_wait_all(self):
        self("s_waitcnt vmcnt(0)"); self.vm = []
    def lg_issue(self, tag): self.lg.append(tag)
    def lg_wait(self, tags):
        last = -1
        for i, t in enumerate(self.lg):
            if t in tags: last = i
        if last < 0: return
        n = len(self.lg) - 1 - last
        assert n <= 15, n
        self("s_waitcnt lgkmcnt(%d)" % n)
        self.lg = self.lg[last + 1:]
    def lg_wait_all(self):
        self("s_waitcnt lgkmcnt(0)"); self.lg = []
    def text(self): return "\n".join(self.lines) + "\n"

def vr(a, n=1): return "v%d" % a if n == 1 else "v[%d:%d]" % (a, a + n - 1)

HBUF = 0
UBUF = 0x700000
GBUF = 0x900000
FLAGS = 0x910000
DIAG = 0xA00000
WS_BYTES = 0x1000000
LOG2E = 1.4426950408889634

S_X = 8; S_WA = 12; S_WB = 16; S_WS = 20; S_GW = 24; S_OUT = 28; S_WD = 32; S_DBG = 36
S_WAVE = 40
S_R = 60; S_FB = 61; S_QG = 62; S_EH = 63
S_WF = 64; S_LW = 65
S_LDSW = 66; S_LDSX = 67
S_OFF = 68
S_T1 = 70; S_C = 71
S_STAMP = 80
S_NONCE = 98; S_FLAG = 99; S_PF = 100
V_LANE = 1

class Cfg:
    fused = False
    diag = False
    x = set()

def kernarg_loads(e):
    e("s_load_dwordx2 s[44:45], s[0:1], 0")
    e("s_load_dwordx4 s[48:51], s[0:1], 24")
    e("s_load_dwordx4 s[52:55], s[0:1], 48")
    e("s_load_dwordx4 s[56:59], s[0:1], 64")
    e("s_load_dwordx2 s[46:47], s[0:1], 80")
    e("s_load_dwordx4 s[72:75], s[0:1], 88")

def srd(e, dst, lo, nbytes):
    e("s_mov_b32 s%d, s%d" % (dst, lo))
    e("s_and_b32 s%d, s%d, 0xffff" % (dst + 1, lo + 1))
    e("s_mov_b32 s%d, 0x%x" % (dst + 2, nbytes))
    e("s_mov_b32 s%d, 0x20000" % (dst + 3))

NSTAMP = 6
STG = [False]
def stamp(e, cfg, k):
    if cfg.diag and not ("stg" in cfg.x and k in (4,5,6,7) and STG[0]):
        assert not e.lg
        e("s_memrealtime s[%d:%d]" % (S_STAMP + 2 * k, S_STAMP + 2 * k + 1))
        if k in (1, 2) and not cfg.fused:
            e("s_memtime s[%d:%d]" % (S_STAMP + 12 + 2 * (k - 1), S_STAMP + 13 + 2 * (k - 1)))
        e("s_waitcnt lgkmcnt(0)")

def stamp_store(e, cfg, slot_base):
    if not cfg.diag: return
    e("s_lshl_b32 s41, s2, 3")
    e("s_add_u32 s41, s41, s%d" % S_WAVE)
    e("s_lshl_b32 s41, s41, 6")
    e("s_add_u32 s41, s41, 0x%x" % (DIAG + slot_base))
    e("v_mov_b32 v1, s41")
    for k in range(9 if cfg.fused else NSTAMP + 2):
        e("v_mov_b32 v2, s%d" % (S_STAMP + 2 * k))
        e("buffer_store_dword v2, v1, s[%d:%d], 0 offen offset:%d" % (S_WS, S_WS + 3, 4 * k))
        e("s_nop 1")
    e("v_mov_b32 v2, s7")
    e("buffer_store_dword v2, v1, s[%d:%d], 0 offen offset:36" % (S_WS, S_WS + 3))
    e("s_waitcnt vmcnt(0)")

def mfma(e, d, a, b, c=None):
    cs = vr(d, 16) if c is None else c
    e("v_mfma_f32_32x32x16_bf16 %s, %s, %s, %s" % (vr(d, 16), vr(a, 4), vr(b, 4), cs))

NODMA = [False]
def dma_group(e, sldsbase, ldsconst, items):
    e("s_add_u32 m0, s%d, 0x%x" % (sldsbase, ldsconst))
    e("s_nop 0")
    for (srdreg, vaddr, soff, ioff, tag) in items:
        e("buffer_load_dwordx4 v%d, s[%d:%d], s%d offen offset:%d lds" % (vaddr, srdreg, srdreg + 3, soff, ioff))
        e.vm_issue(tag)
def fill_table(e, first, n, scnt, mod, emit):
    for c in range(n):
        emit(first + c)
        if c + 1 < n: rot_next(e, scnt, mod)
def rot_next(e, sreg, n):
    e("s_add_u32 s%d, s%d, 1" % (sreg, sreg))
    e("s_cmp_eq_u32 s%d, %d" % (sreg, n))
    e("s_cselect_b32 s%d, 0, s%d" % (sreg, sreg))
def dma(e, srdreg, vaddr, ldsconst, sldswave, soff, tag):
    if NODMA[0]:
        e.vm_issue(tag); e.vm.pop(); return
    e("s_add_u32 m0, s%d, 0x%x" % (sldswave, ldsconst))
    if soff is None:
        e("s_nop 0")
    else:
        e("s_mov_b32 s%d, 0x%x" % (S_OFF, soff))
    e("buffer_load_dwordx4 v%d, s[%d:%d], s%d offen lds" % (vaddr, srdreg, srdreg + 3, S_OFF))
    e.vm_issue(tag)

XSLOT = 16384; NX = 4
WBASE = 65536; NW = 6; WSLOT = 16384
ACC = 64
def accA(i): return ACC + 16 * i
def accB(i): return ACC + 64 + 16 * i
FR = 192
V_XA = 10
V_WA = 14
CONST_LDS = 0

def p1_consumer_addr(e, is_h):
    L = V_LANE; T = 26
    e("v_and_b32 v%d, 31, v%d" % (T, L))
    e("v_lshrrev_b32 v%d, 5, v%d" % (T + 1, L))
    e("v_lshrrev_b32 v%d, 1, v%d" % (T + 2, T))
    e("v_and_b32 v%d, 7, v%d" % (T + 2, T + 2))
    e("v_lshlrev_b32 v%d, 7, v%d" % (T + 3, T))
    if not is_h:
        e("s_lshl_b32 s41, s%d, 5" % S_WF)
        e("v_add_u32 v%d, s41, v%d" % (T + 5, T))
        e("v_lshlrev_b32 v%d, 7, v%d" % (T + 5, T + 5))
        e("v_add_u32 v%d, 0x%x, v%d" % (T + 5, WBASE, T + 5))
    for k in range(4):
        e("v_add_u32 v%d, %d, v%d" % (T + 4, 2 * k, T + 1))
        e("v_xor_b32 v%d, v%d, v%d" % (T + 4, T + 4, T + 2))
        e("v_lshlrev_b32 v%d, 4, v%d" % (T + 4, T + 4))
        e("v_add_u32 v%d, v%d, v%d" % (V_XA + k, T + 3, T + 4))
        if not is_h:
            e("v_add_u32 v%d, v%d, v%d" % (V_WA + k, T + 5, T + 4))
            e("v_add_u32 v%d, 0x10000, v%d" % (V_WA + 4 + k, V_WA + k))
    if is_h:
        e("v_and_b32 v%d, 15, v%d" % (T + 4, L))
        e("v_lshrrev_b32 v%d, 2, v%d" % (T + 5, T + 4))
        e("v_lshlrev_b32 v%d, 3, v%d" % (T + 6, T + 1))
        e("v_add_u32 v%d, v%d, v%d" % (T + 6, T + 6, T + 5))
        e("v_lshlrev_b32 v%d, 8, v%d" % (T + 6, T + 6))
        e("v_xor_b32 v%d, s%d, v%d" % (T + 7, S_WF, T + 5))
        e("v_lshlrev_b32 v%d, 6, v%d" % (T + 7, T + 7))
        e("v_add_u32 v%d, v%d, v%d" % (T + 6, T + 6, T + 7))
        e("v_bfe_u32 v%d, v%d, 4, 1" % (T + 7, L))
        e("v_lshlrev_b32 v%d, 5, v%d" % (T + 7, T + 7))
        e("v_add_u32 v%d, v%d, v%d" % (T + 6, T + 6, T + 7))
        e("v_and_b32 v%d, 3, v%d" % (T + 7, T + 4))
        e("v_lshlrev_b32 v%d, 3, v%d" % (T + 7, T + 7))
        e("v_add_u32 v%d, v%d, v%d" % (T + 6, T + 6, T + 7))
        e("v_add_u32 v%d, 0x%x, v%d" % (V_WA, WBASE, T + 6))
        e("v_add_u32 v%d, 0x%x, v%d" % (V_WA + 1, WBASE + 0x10000, T + 6))

def p1_reads(kap, is_h):
    base = FR + 24 * (kap & 1)
    c = kap >> 2; kk4 = kap & 3
    def xr(nb): return (("X", kap, nb), "ds_read_b128 %s, v%d offset:%d" % (vr(base + 4 * nb, 4), V_XA + kk4, (c % NX) * XSLOT + nb * 4096))
    if is_h:
        j = kap >> 1; kk = kap & 1
        slot = (j % NW) * WSLOT
        va = V_WA + (1 if slot >= 0x10000 else 0); so = slot & 0xffff
        def wr(m, ip): return (("W", kap, m), "ds_read_b64_tr_b16 %s, v%d offset:%d" % (vr(base + 16 + 4 * m + 2 * ip, 2), va, so + m * 8192 + (16 * kk + 4 * ip) * 256))
        return [wr(0, 0), wr(0, 1), xr(0), wr(1, 0), wr(1, 1), xr(1), xr(2), xr(3)]
    else:
        slot = (c % 3) * 32768
        va = V_WA + kk4 + (4 if slot >= 0x10000 else 0); so = slot & 0xffff
        def wr(m): return (("W", kap, m), "ds_read_b128 %s, v%d offset:%d" % (vr(base + 16 + 4 * m, 4), va, so + m * 16384))
        return [wr(0), xr(0), wr(1), xr(1), xr(2), xr(3)]

def p1_consumer(e, cfg, is_h):
    p1_consumer_addr(e, is_h)
    e("s_waitcnt lgkmcnt(0)")
    srd(e, S_WS, 74, WS_BYTES)
    if cfg.fused:
        flag_addr(e, is_h)
        nonce_issue(e)
    if not is_h:
        srd(e, S_X, 44, 1835008)
        srd(e, S_GW, 58, 896)
        e("s_mov_b32 s%d, s%d" % (S_LW, S_WAVE))
        gate4_issue(e)
        for p in range(4): gate4_pass(e, p)
    stamp(e, cfg, 0)
    if (not is_h) and "pfcode" in cfg.x:
        lab = e.newlabel("PC")
        e("s_getpc_b64 s[42:43]")
        e.label(lab)
        e("s_sub_u32 s42, s42, (%s - gated_mix__spectral_fnet__glu_gated_glu__prompt_kernel)" % lab)
        e("s_subb_u32 s43, s43, 0")
        e("s_lshr_b32 s41, s2, 3")
        e("s_sub_u32 s41, s41, 28")
        e("s_lshl_b32 s41, s41, 2")
        e("s_add_u32 s41, s41, s%d" % S_WAVE)
        e("s_mul_i32 s41, s41, 16")
        e("v_and_b32 v9, 15, v%d" % V_LANE)
        e("v_add_u32 v8, s41, v9")
        e("v_lshlrev_b32 v8, 7, v8")
        e("v_min_u32 v8, (KF_CODE_END - gated_mix__spectral_fnet__glu_gated_glu__prompt_kernel - 4), v8")
        e("v_mov_b32 v9, s43")
        e("v_add_co_u32 v8, vcc, s42, v8")
        e("s_nop 1")
        e("v_addc_co_u32 v9, vcc, 0, v9, vcc")
        e("global_load_dword v3, v[8:9], off")
    e("s_barrier")
    stamp(e, cfg, 1)
    for tag, txt in p1_reads(0, is_h):
        e(txt); e.lg_issue(tag)
    for kap in range(28):
        base = FR + 24 * (kap & 1)
        nxt = p1_reads(kap + 1, is_h) if kap + 1 < 28 else []
        for n in range(8):
            nb = n >> 1; m = n & 1
            e.lg_wait([("W", kap, m), ("X", kap, nb)])
            d = accA(nb) if m == 0 else accB(nb)
            W = base + 16 + 4 * m; X = base + 4 * nb
            c = "0" if kap == 0 else None
            if "no32" in cfg.x:
                for hh in range(2):
                    e("v_mfma_f32_16x16x32_bf16 %s, %s, %s, %s" % (vr(d + 8 * hh, 4), vr(W, 4), vr(X, 4), vr(d + 8 * hh, 4)))
            elif "nomfma" not in cfg.x:
                if is_h: mfma(e, d, W, X, c)
                else: mfma(e, d, X, W, c)
            if nxt and n < len(nxt):
                tag, txt = nxt[n]
                if "nolds" in cfg.x: e.lg_issue(tag); e.lg.pop()
                else:
                    e(txt); e.lg_issue(tag)
        if (not is_h) and kap == cfg.gflag_k - 4:
            nonce_load(e)
        if (not is_h) and kap == cfg.gflag_k:
            e("s_waitcnt vmcnt(0)"); e.vm = []
        if (kap & 1) and kap < 27:
            e("s_barrier")
        if (not is_h) and kap == cfg.gflag_k:
            lab = e.newlabel("GF")
            e("s_cmp_lg_u32 s%d, 0" % S_WAVE)
            e("s_cbranch_scc1 %s" % lab)
            nonce_finish_any(e, keepvm=True)
            e("s_add_u32 s%d, s%d, 128" % (S_FLAG, S_FLAG))
            flag_store(e)
            e("s_sub_u32 s%d, s%d, 128" % (S_FLAG, S_FLAG))
            e.label(lab)
        if cfg.fused and kap == 21:
            nonce_load(e)
    assert not e.lg
    if cfg.fused and is_h:
        e("s_barrier")
    if cfg.fused:
        nonce_finish(e)
    stamp(e, cfg, 2)

def h_epilogue(e, cfg):
    sc = " sc1" if cfg.fused else ""
    e("s_lshl_b32 s41, s%d, 1" % S_R)
    e("s_mul_i32 s41, s41, 112")
    e("s_lshl_b32 s42, s%d, 2" % S_FB)
    e("s_add_u32 s42, s42, s%d" % S_WF)
    e("s_lshl_b32 s42, s42, 1")
    e("s_add_u32 s41, s41, s42")
    e("s_lshl_b32 s41, s41, 11")
    e("v_lshlrev_b32 v26, 4, v%d" % V_LANE)
    e("v_add_u32 v26, s41, v26")
    e("v_add_u32 v27, 0x%x, v26" % (112 * 2048))
    e("s_mov_b32 s42, 0x%08x" % f2u(-LOG2E))
    e("s_mov_b32 s43, s42")
    e("s_mov_b32 s44, 1.0")
    e("s_mov_b32 s45, 1.0")
    e("s_nop 7")
    grp = 0
    for nb in range(4):
        for hf in range(2):
            outb = FR + 4 * (grp % 8); grp += 1
            A = accA(nb) + 8 * hf; B = accB(nb) + 8 * hf
            for q in range(0, 8, 2):
                e("v_pk_mul_f32 %s, %s, s[42:43]" % (vr(A + q, 2), vr(A + q, 2)))
            for q in range(8):
                e("v_exp_f32 v%d, v%d" % (A + q, A + q))
            for q in range(0, 8, 2):
                e("v_pk_add_f32 %s, %s, s[44:45]" % (vr(A + q, 2), vr(A + q, 2)))
            for q in range(8):
                e("v_rcp_f32 v%d, v%d" % (A + q, A + q))
            for q in range(0, 8, 2):
                e("v_pk_mul_f32 %s, %s, %s" % (vr(A + q, 2), vr(A + q, 2), vr(B + q, 2)))
            for q2 in range(4):
                e("v_cvt_pk_bf16_f32 v%d, v%d, v%d" % (outb + q2, A + 2 * q2, A + 2 * q2 + 1))
            e("buffer_store_dwordx4 %s, v%d, s[%d:%d], 0 offen offset:%d%s" % (vr(outb, 4), 26 + (nb >> 1), S_WS, S_WS + 3, hf * 2048 + (nb & 1) * 1024, sc))
            e.vm_issue("hst")

def d_epilogue(e, cfg):
    sc = " sc1" if cfg.fused else ""
    L = V_LANE
    ZB = [192, 208, 224, 240]
    e("s_nop 7"); e("s_nop 3")
    for sb in range(4):
        for hf in range(2):
            for pr in range(4):
                q = 8 * hf + 2 * pr
                e("v_cvt_pk_bf16_f32 v%d, v%d, v%d" % (ZB[sb] + 4 * hf + pr, accA(sb) + q, accA(sb) + q + 1))
                e("v_cvt_pk_bf16_f32 v%d, v%d, v%d" % (ZB[sb] + 8 + 4 * hf + pr, accB(sb) + q, accB(sb) + q + 1))
    e("s_barrier")
    e("v_lshlrev_b32 v2, 4, v%d" % L)
    def cread(sb):
        b = 10 + 24 * (sb & 1)
        for k in range(6):
            e("ds_read_b128 %s, v2 offset:%d" % (vr(b + 4 * k, 4), CONST_LDS + (sb * 6 + k) * 1024))
            e.lg_issue(("c", sb, k))
    cread(0); cread(1)
    for sb in range(4):
        b = 10 + 24 * (sb & 1)
        C0, C1, S0, S1, N0, N1 = [b + 4 * k for k in range(6)]
        ZR0, ZR1, ZI0, ZI1 = ZB[sb], ZB[sb] + 4, ZB[sb] + 8, ZB[sb] + 12
        e.lg_wait([("c", sb, k) for k in range(6)])
        mfma(e, accA(sb), C0, ZR0, "0")
        mfma(e, accB(sb), C0, ZI0, "0")
        mfma(e, accA(sb), C1, ZR1)
        mfma(e, accB(sb), C1, ZI1)
        mfma(e, accA(sb), S0, ZI0)
        mfma(e, accB(sb), N0, ZR0)
        mfma(e, accA(sb), S1, ZI1)
        mfma(e, accB(sb), N1, ZR1)
        if sb + 2 < 4:
            cread(sb + 2)
    e("s_lshl_b32 s41, s%d, 8" % S_QG)
    e("s_lshl_b32 s42, s%d, 7" % S_EH)
    e("s_add_u32 s41, s41, s42")
    e("s_lshl_b32 s42, s%d, 5" % S_WF)
    e("s_add_u32 s41, s41, s42")
    e("s_lshl_b32 s41, s41, 4")
    e("s_add_u32 s41, s41, 0x%x" % UBUF)
    e("v_and_b32 v3, 31, v%d" % L)
    e("v_lshlrev_b32 v3, 4, v3")
    e("v_lshrrev_b32 v4, 5, v%d" % L)
    e("v_lshlrev_b32 v4, 18, v4")
    e("v_add3_u32 v3, v3, v4, s41")
    e("s_nop 7"); e("s_nop 3")
    for q in range(16):
        i, jj = q >> 2, q & 3
        pk = 192 + 4 * (q % 8)
        for sb in range(4):
            e("v_cvt_pk_bf16_f32 v%d, v%d, v%d" % (pk + sb, accA(sb) + q, accB(sb) + q))
        e("s_mov_b32 s%d, 0x%x" % (S_OFF, (8 * i + jj) * 65536))
        e("buffer_store_dwordx4 %s, v3, s[%d:%d], s%d offen%s" % (vr(pk, 4), S_WS, S_WS + 3, S_OFF, sc))
        e.vm_issue("ust")

def p1_loader(e, cfg, is_h):
    L = V_LANE; T = 26
    VX = 10
    VW = 14
    e("v_lshrrev_b32 v%d, 3, v%d" % (T, L))
    e("s_lshl_b32 s41, s%d, 5" % S_LW)
    e("v_add_u32 v%d, s41, v%d" % (T, T))
    e("v_and_b32 v%d, 7, v%d" % (T + 1, L))
    e("v_lshrrev_b32 v%d, 4, v%d" % (T + 2, L))
    e("s_movk_i32 s42, 896")
    for i in range(4):
        if i: e("v_add_u32 v%d, 8, v%d" % (T, T))
        e("v_add_u32 v%d, %d, v%d" % (T + 3, (4 * i) & 7, T + 2))
        e("v_and_b32 v%d, 7, v%d" % (T + 3, T + 3))
        e("v_xor_b32 v%d, v%d, v%d" % (T + 3, T + 3, T + 1))
        e("v_lshlrev_b32 v%d, 4, v%d" % (T + 3, T + 3))
        if is_h:
            e("v_lshrrev_b32 v%d, 6, v%d" % (T + 4, T))
            e("v_and_b32 v%d, 63, v%d" % (T + 5, T))
            e("v_lshlrev_b32 v%d, 5, v%d" % (T + 5, T + 5))
            e("s_lshl_b32 s41, s%d, 1" % S_R)
            e("v_add3_u32 v%d, v%d, v%d, s41" % (T + 4, T + 4, T + 5))
        else:
            e("v_and_b32 v%d, 31, v%d" % (T + 4, T))
            e("v_lshlrev_b32 v%d, 6, v%d" % (T + 4, T + 4))
            e("v_lshrrev_b32 v%d, 5, v%d" % (T + 5, T))
            e("s_lshl_b32 s41, s%d, 2" % S_QG)
            e("v_add3_u32 v%d, v%d, v%d, s41" % (T + 4, T + 4, T + 5))
        e("v_mul_lo_u32 v%d, v%d, s42" % (T + 4, T + 4))
        e("v_add_u32 v%d, v%d, v%d" % (VX + i, T + 4, T + 3))
        if not is_h:
            e("s_lshl_b32 s41, s%d, 7" % S_EH)
            e("v_add_u32 v%d, s41, v%d" % (T + 4, T))
            e("v_mul_lo_u32 v%d, v%d, s42" % (T + 4, T + 4))
            e("v_add_u32 v%d, v%d, v%d" % (VW + i, T + 4, T + 3))
    if is_h:
        e("s_lshl_b32 s41, s%d, 3" % S_LW)
        e("v_add_u32 v%d, s41, v%d" % (T + 3, T + 2))
        e("s_movk_i32 s42, 3584")
        e("v_mul_lo_u32 v%d, v%d, s42" % (T + 3, T + 3))
        e("v_bfe_u32 v%d, v%d, 2, 2" % (T + 4, L))
        e("v_xor_b32 v%d, v%d, v%d" % (T + 4, T + 4, T + 2))
        e("v_lshlrev_b32 v%d, 6, v%d" % (T + 4, T + 4))
        e("v_and_b32 v%d, 3, v%d" % (T + 5, L))
        e("v_lshlrev_b32 v%d, 4, v%d" % (T + 5, T + 5))
        e("v_add3_u32 v%d, v%d, v%d, v%d" % (T + 3, T + 3, T + 4, T + 5))
        e("s_lshl_b32 s41, s%d, 8" % S_FB)
        e("v_add_u32 v%d, s41, v%d" % (VW, T + 3))
        e("v_add_u32 v%d, %d, v%d" % (VW + 1, 4 * 3584, VW))
        e("s_lshl_b32 s%d, s%d, 11" % (S_LDSW, S_LW))
    else:
        e("s_lshl_b32 s%d, s%d, 12" % (S_LDSW, S_LW))
    e("s_lshl_b32 s%d, s%d, 12" % (S_LDSX, S_LW))
    e("s_waitcnt lgkmcnt(0)")
    srd(e, S_X, 44, 1835008)
    if is_h:
        srd(e, S_WA, 52, 1605632); srd(e, S_WB, 54, 1605632)
    else:
        srd(e, S_WA, 48, 401408); srd(e, S_WB, 50, 401408)
    srd(e, S_WS, 74, WS_BYTES)
    srd(e, S_GW, 58, 896)
    srd(e, S_WD, 56, 1605632)
    stamp(e, cfg, 0)
    DROT = (not is_h) and ("nodrot" not in cfg.x)
    if DROT:
        e("s_mul_i32 s7, s%d, 3" % S_EH)
        e("s_mul_i32 s6, s%d, %d" % (S_QG, RMUL[0]))
        e("s_add_u32 s6, s6, s7")
        e("s_mul_i32 s7, s6, 37")
        e("s_lshr_b32 s7, s7, 8")
        e("s_mul_i32 s7, s7, 7")
        e("s_sub_u32 s6, s6, s7")
        e("s_mov_b32 s7, s6")
    def dx(c):
        if DROT:
            e("s_lshl_b32 s%d, s6, 7" % S_OFF)
            for i in range(4): dma(e, S_X, VX + i, (c % NX) * XSLOT + i * 1024, S_LDSX, None, ("x", c))
            rot_next(e, 6, 7)
        else:
            for i in range(4): dma(e, S_X, VX + i, (c % NX) * XSLOT + i * 1024, S_LDSX, c * 128, ("x", c))
    def dw(j):
        if is_h:
            for m in range(2):
                for i in range(2):
                    dma(e, S_WA if m == 0 else S_WB, VW + i, WBASE + (j % NW) * WSLOT + m * 8192 + i * 1024, S_LDSW, j * 32 * 3584, ("w", j))
        else:
            c = j
            if DROT: e("s_lshl_b32 s%d, s7, 7" % S_OFF)
            for m in range(2):
                for i in range(4):
                    dma(e, S_WA if m == 0 else S_WB, VW + i, WBASE + (c % 3) * 32768 + m * 16384 + i * 1024, S_LDSW, None if DROT else c * 128, ("w", c))
            if DROT: rot_next(e, 7, 7)
    q = []
    if is_h:
        for j in range(14):
            if j % 2 == 0:
                c = j // 2
                q.append(("x", c, -1 if c < NX else 2 * (c - NX + 1)))
            q.append(("w", j, -1 if j < NW else j - NW + 1))
    else:
        for c in range(7):
            q.append(("x", c, -1 if c < NX else 2 * (c - NX + 1)))
            q.append(("w", c, -1 if c < 3 else 2 * (c - 3 + 1)))
    def cost(it): return 4 if (it[0] == "x" or is_h) else 8
    def issue(it):
        (dx if it[0] == "x" else dw)(it[1])
    def need(j):
        t = []
        for jj in (j, j + 1):
            if jj <= 13:
                t.append(("x", jj >> 1)); t.append(("w", jj if is_h else jj >> 1))
        return t
    issued = set()
    def ensure(tags):
        while q and any(t not in issued for t in tags):
            it = q.pop(0); assert it[2] <= curbar[0], (it, curbar)
            issue(it); issued.add((it[0], it[1]))
    curbar = [-1]
    ensure(need(0))
    budget0 = cfg.pro_extra
    while q and budget0 > 0 and q[0][2] <= -1:
        it = q.pop(0); issue(it); issued.add((it[0], it[1])); budget0 -= cost(it)
    e.vm_wait(need(0))
    e("s_barrier")
    stamp(e, cfg, 1)
    if "nodma" in cfg.x: NODMA[0] = True
    for j in range(13):
        curbar[0] = j
        ensure(need(j + 1))
        budget = cfg.stage_budget
        while q and budget > 0 and q[0][2] <= j:
            it = q.pop(0); issue(it); issued.add((it[0], it[1])); budget -= cost(it)
        if j == cfg.pfWd_j and not is_h and "pf1" in cfg.x:
            e("s_lshl_b32 s41, s%d, 1" % S_QG)
            e("s_add_u32 s41, s41, s%d" % S_EH)
            e("s_lshl_b32 s41, s41, 2")
            e("s_add_u32 s41, s41, s%d" % S_LW)
            e("s_mul_i32 s41, s41, 98")
            e("v_add_u32 v100, s41, v%d" % V_LANE)
            e("v_lshlrev_b32 v100, 7, v100")
            e("buffer_load_dword v101, v100, s[%d:%d], 0 offen" % (S_WD, S_WD + 3)); e.vm_issue(("pf", 0))
            e("v_add_u32 v100, %d, v100" % (64 * 128))
            e("v_cmp_gt_u32 vcc, 34, v%d" % V_LANE)
            e("v_mov_b32 v102, 0x7fffffff")
            e("s_nop 0")
            e("v_cndmask_b32 v100, v102, v100, vcc")
            e("buffer_load_dword v103, v100, s[%d:%d], 0 offen" % (S_WD, S_WD + 3)); e.vm_issue(("pf", 1))
        if j == cfg.pfWB_j and not is_h and ("pfWB" in cfg.x or "pfWA" in cfg.x):
            e("s_lshl_b32 s41, s%d, 1" % S_QG)
            e("s_add_u32 s41, s41, s%d" % S_EH)
            e("s_lshl_b32 s41, s41, 2")
            e("s_add_u32 s41, s41, s%d" % S_LW)
            e("s_mov_b32 s42, 0x12492493")
            jobs = []
            if "pfWA" in cfg.x: jobs.append((35, 128 * 3584))
            if "pfWB" in cfg.x: jobs.append((49, 1792))
            rg = 104
            for (per, base) in jobs:
                e("s_mul_i32 s43, s41, %d" % per)
                e("v_add_u32 v101, s43, v%d" % V_LANE)
                e("v_mul_hi_u32 v102, v101, s42")
                e("v_mul_u32_u24 v103, 14, v102")
                e("v_sub_u32 v103, v101, v103")
                e("v_mul_u32_u24 v102, 3584, v102")
                e("v_lshlrev_b32 v103, 7, v103")
                e("v_add3_u32 v%d, v102, v103, %d" % (rg, 0))
                e("v_add_u32 v%d, %d, v%d" % (rg, base, rg))
                e("v_cmp_gt_u32 vcc, %d, v%d" % (per, V_LANE))
                e("v_mov_b32 v102, 0x7fffffff")
                e("s_nop 0")
                e("v_cndmask_b32 v%d, v102, v%d, vcc" % (rg, rg))
                srd(e, S_GW, 52, 1605632)
                e("buffer_load_dword v%d, v%d, s[%d:%d], 0 offen" % (rg + 1, rg, S_GW, S_GW + 3)); e.vm_issue(("pf", 5))
                srd(e, S_GW, 54, 1605632)
                e("buffer_load_dword v%d, v%d, s[%d:%d], 0 offen" % (rg + 2, rg, S_GW, S_GW + 3)); e.vm_issue(("pf", 6))
                rg += 4
        if j == cfg.pfWd_j and not is_h and "pfWd" in cfg.x:
            e("s_lshr_b32 s41, s2, 3")
            e("s_sub_u32 s41, s41, 28")
            e("s_lshl_b32 s41, s41, 2")
            e("s_add_u32 s41, s41, s%d" % S_LW)
            e("s_mul_i32 s41, s41, 784")
            e("v_add_u32 v100, s41, v%d" % V_LANE)
            e("v_lshlrev_b32 v100, 7, v100")
            for t in range(13):
                e("s_mov_b32 s%d, %d" % (S_OFF, t * 8192))
                e("buffer_load_dword v%d, v100, s[%d:%d], s%d offen" % (101 + t, S_WD, S_WD + 3, S_OFF))
                e.vm_issue(("pf", t))
        if j == cfg.pfW_j and not is_h and "pfW" in cfg.x:
            e("s_lshr_b32 s41, s2, 3")
            e("s_sub_u32 s41, s41, 28")
            e("s_lshl_b32 s41, s41, 2")
            e("s_add_u32 s41, s41, s%d" % S_LW)
            e("s_mul_i32 s41, s41, 196")
            e("v_add_u32 v100, s41, v%d" % V_LANE)
            e("s_mov_b32 s42, 0x24924925")
            e("s_and_b32 s43, s2, 1")
            e("s_mul_i32 s43, s43, 896")
            e("s_add_u32 s43, s43, 1792")
            for t in range(4):
                e("v_add_u32 v101, %d, v100" % (64 * t))
                e("v_mul_hi_u32 v102, v101, s42")
                e("v_mul_u32_u24 v103, 7, v102")
                e("v_sub_u32 v103, v101, v103")
                e("v_mul_u32_u24 v102, 3584, v102")
                e("v_lshlrev_b32 v103, 7, v103")
                e("v_add3_u32 v%d, v102, v103, s43" % (104 + t))
            srd(e, S_GW, 52, 1605632)
            for t in range(4):
                e("buffer_load_dword v%d, v%d, s[%d:%d], 0 offen" % (110 + t, 104 + t, S_GW, S_GW + 3)); e.vm_issue(("pf", t))
            srd(e, S_GW, 54, 1605632)
            e("s_nop 0")
            for t in range(4):
                e("buffer_load_dword v%d, v%d, s[%d:%d], 0 offen" % (114 + t, 104 + t, S_GW, S_GW + 3)); e.vm_issue(("pf", t))
        if j == 9 and not is_h: dft_consts(e, cfg)
        if j == 7 and is_h:
            gate_issue(e, cfg, True)
            lab = e.newlabel("GX")
            e("s_cmp_ge_u32 s%d, 2" % S_FB)
            e("s_cbranch_scc1 %s" % lab)
            sv = list(e.vm)
            gate_issue(e, cfg, True, True)
            e.vm = sv
            e.label(lab)
        if j == 10 and is_h:
            e("s_waitcnt vmcnt(0)"); e.vm = []
            gate_finish(e, cfg)
            lab = e.newlabel("GY")
            e("s_cmp_ge_u32 s%d, 2" % S_FB)
            e("s_cbranch_scc1 %s" % lab)
            gate_finish(e, cfg, True)
            e.label(lab)
        if j == 11 and cfg.fused:
            e("s_waitcnt vmcnt(0)"); e.vm = []
        e.vm_wait(need(j + 1))
        e("s_barrier")
    assert not q
    NODMA[0] = False
    stamp(e, cfg, 2)
    if not is_h:
        e("v_lshlrev_b32 v2, 4, v%d" % L)
        e("s_mul_i32 s41, s%d, 6144" % S_LW)
        e("v_add_u32 v2, s41, v2")
        for k in range(6):
            e("ds_write_b128 v2, %s offset:%d" % (vr(64 + 4 * k, 4), CONST_LDS + k * 1024))
        e("s_waitcnt lgkmcnt(0)")
        e("s_barrier")

def gate_issue(e, cfg, is_h, extra=False):
    B = 40 if extra else 48
    e("s_lshl_b32 s41, s%d, 3" % S_FB)
    if extra: e("s_add_u32 s41, s41, 112")
    e("s_lshl_b32 s42, s%d, 1" % S_LW)
    e("s_add_u32 s41, s41, s42")
    e("s_lshl_b32 s78, s%d, 7" % S_R)
    e("s_add_u32 s%d, s78, s41" % (63 if extra else 62))
    e("v_lshlrev_b32 v38, 4, v%d" % V_LANE)
    e("v_cmp_gt_u32 vcc, 56, v%d" % V_LANE)
    e("v_mov_b32 v37, 0x7fffffff")
    for u in range(2):
        e("s_add_u32 s78, s41, %d" % u)
        e("s_lshr_b32 s43, s78, 6")
        e("s_lshl_b32 s79, s%d, 1" % S_R)
        e("s_add_u32 s43, s43, s79")
        e("s_and_b32 s78, s78, 63")
        e("s_lshl_b32 s78, s78, 5")
        e("s_add_u32 s43, s43, s78")
        e("s_mul_i32 s43, s43, 896")
        if extra:
            e("s_cmp_ge_u32 s%d, 2" % S_FB)
            e("s_cselect_b32 s43, 0x40000000, s43")
        e("v_add_u32 v39, s43, v38")
        e("v_cndmask_b32 v39, v37, v39, vcc")
        e("buffer_load_dwordx4 %s, v39, s[%d:%d], 0 offen" % (vr(B + 4 * u, 4), S_X, S_X + 3))
        e.vm_issue("gate")
    if not extra:
        e("buffer_load_dwordx4 v[56:59], v38, s[%d:%d], 0 offen" % (S_GW, S_GW + 3))
        e.vm_issue("gate")

def gate_finish(e, cfg, extra=False):
    B = 40 if extra else 48
    e.vm_wait(["gate"])
    for u in range(2):
        e("v_mov_b32 v%d, 0" % (60 + u))
    for i in range(4):
        for u in range(2):
            e("v_dot2_f32_bf16 v%d, v%d, v%d, v%d" % (60 + u, B + 4 * u + i, 56 + i, 60 + u))
    e("s_nop 2")
    for sh in ("row_shr:1", "row_shr:2", "row_shr:4", "row_shr:8"):
        for u in range(2):
            e("v_add_f32_dpp v%d, v%d, v%d %s row_mask:0xf bank_mask:0xf bound_ctrl:0" % (60 + u, 60 + u, 60 + u, sh))
        e("s_nop 0")
    for u in range(2):
        e("v_add_f32_dpp v%d, v%d, v%d row_bcast:15 row_mask:0xa bank_mask:0xf" % (60 + u, 60 + u, 60 + u))
    e("s_nop 0")
    for u in range(2):
        e("v_add_f32_dpp v%d, v%d, v%d row_bcast:31 row_mask:0xc bank_mask:0xf" % (60 + u, 60 + u, 60 + u))
    e("s_nop 0")
    e("v_readlane_b32 s41, v60, 63")
    e("v_readlane_b32 s42, v61, 63")
    e("s_nop 1")
    e("v_mov_b32 v60, s41")
    e("v_mov_b32 v61, s42")
    e("v_cmp_eq_u32 vcc, 1, v%d" % V_LANE)
    e("s_nop 1")
    e("v_cndmask_b32 v60, v60, v61, vcc")
    e("v_mul_f32 v60, 0x%08x, v60" % f2u(-LOG2E))
    e("v_exp_f32 v60, v60")
    e("s_nop 0")
    e("v_add_f32 v60, 1.0, v60")
    e("v_rcp_f32 v60, v60")
    e("s_lshl_b32 s5, s%d, 2" % (63 if extra else 62))
    e("s_add_u32 s5, s5, 0x%x" % GBUF)
    if extra:
        e("s_cmp_ge_u32 s%d, 2" % S_FB)
        e("s_cselect_b32 s5, 0x40000000, s5")
    e("v_lshlrev_b32 v62, 2, v%d" % V_LANE)
    e("v_add_u32 v62, s5, v62")
    e("v_cmp_gt_u32 vcc, 2, v%d" % V_LANE)
    e("v_mov_b32 v37, 0x7fffffff")
    e("s_nop 0")
    e("v_cndmask_b32 v62, v37, v62, vcc")
    e("buffer_store_dword v60, v62, s[%d:%d], 0 offen%s" % (S_WS, S_WS + 3, " sc1" if cfg.fused else ""))
    e.vm_issue("gst")


def gate4_issue(e):
    L = V_LANE
    e("s_lshl_b32 s41, s%d, 1" % S_QG)
    e("s_add_u32 s41, s41, s%d" % S_EH)
    e("s_lshl_b32 s5, s41, 6")
    e("s_lshl_b32 s42, s%d, 4" % S_LW)
    e("s_add_u32 s5, s5, s42")
    e("v_and_b32 v104, 15, v%d" % L)
    e("v_lshrrev_b32 v105, 4, v%d" % L)
    e("v_lshlrev_b32 v106, 4, v104")
    e("v_cmp_gt_u32 vcc, 14, v104")
    e("v_mov_b32 v107, 0x7fffffff")
    e("s_nop 0")
    e("v_cndmask_b32 v106, v107, v106, vcc")
    for q in range(4):
        e("buffer_load_dwordx4 %s, v106, s[%d:%d], 0 offen offset:%d" % (vr(184 + 4 * q, 4), S_GW, S_GW + 3, 224 * q))
        e.vm_issue("gate")
    e("s_lshl_b32 s42, s%d, 9" % S_LW)
    e("s_add_u32 s42, s42, s41")
    e("s_mul_i32 s42, s42, 896")
    e("v_mul_u32_u24 v108, 28672, v105")
    e("v_add_u32 v108, s42, v108")
    e("v_add_u32 v108, v108, v106")
    e("v_cndmask_b32 v108, v107, v108, vcc")
    for p in range(4):
        e("s_mov_b32 s%d, %d" % (S_OFF, p * 4 * 28672))
        for q in range(4):
            e("buffer_load_dwordx4 %s, v108, s[%d:%d], s%d offen offset:%d" % (vr(120 + 16 * p + 4 * q, 4), S_X, S_X + 3, S_OFF, 224 * q))
            e.vm_issue("gate")

def gate4_pass(e, p):
    L = V_LANE
    e.vm_wait(["gate"])
    e("v_mov_b32 v109, 0")
    for q in range(16):
        e("v_dot2_f32_bf16 v109, v%d, v%d, v109" % (120 + 16 * p + q, 184 + q))
    e("s_nop 2")
    for sh in ("row_shr:1", "row_shr:2", "row_shr:4", "row_shr:8"):
        e("v_add_f32_dpp v109, v109, v109 %s row_mask:0xf bank_mask:0xf bound_ctrl:0" % sh)
        e("s_nop 1")
    e("v_mul_f32 v109, 0x%08x, v109" % f2u(-LOG2E))
    e("v_exp_f32 v109, v109")
    e("s_nop 0")
    e("v_add_f32 v109, 1.0, v109")
    e("v_rcp_f32 v109, v109")
    e("v_add_u32 v110, s5, v105")
    e("v_add_u32 v110, %d, v110" % (4 * p))
    e("v_lshlrev_b32 v110, 2, v110")
    e("v_add_u32 v110, 0x%x, v110" % GBUF)
    e("v_cmp_eq_u32 vcc, 15, v104")
    e("s_nop 1")
    e("v_cndmask_b32 v110, v107, v110, vcc")
    e("buffer_store_dword v109, v110, s[%d:%d], 0 offen sc1" % (S_WS, S_WS + 3))
    e.vm_issue("gst")

def dft_consts(e, cfg):
    L = V_LANE
    e("v_and_b32 v26, 31, v%d" % L)
    e("v_lshrrev_b32 v27, 5, v%d" % L)
    e("v_lshlrev_b32 v27, 8, v27")
    e("s_lshl_b32 s41, s%d, 2" % S_QG)
    e("s_add_u32 s41, s41, s%d" % S_LW)
    e("v_add_u32 v27, s41, v27")
    e("s_mov_b32 s42, 0x%08x" % f2u(1.0 / 2048))
    for hf in range(2):
        for pr in range(4):
            for u in range(2):
                idx = 2 * pr + u
                s1c = 16 * hf + 8 * (idx >> 2) + (idx & 3)
                e("v_add_u32 v28, %d, v27" % (64 * s1c))
                e("v_mul_u32_u24 v28, v28, v26")
                e("v_and_b32 v28, 0x7ff, v28")
                e("v_cvt_f32_u32 v28, v28")
                e("v_mul_f32 v28, s42, v28")
                e("v_cos_f32 v%d, v28" % (30 + u))
                e("v_sin_f32 v%d, v28" % (32 + u))
            e("s_nop 0")
            e("v_cvt_pk_bf16_f32 v%d, v30, v31" % (64 + 4 * hf + pr))
            e("v_cvt_pk_bf16_f32 v%d, v32, v33" % (72 + 4 * hf + pr))
            e("v_xor_b32 v%d, 0x80008000, v%d" % (80 + 4 * hf + pr, 72 + 4 * hf + pr))

def entry_common(e):
    e("v_and_b32 v%d, 63, v0" % V_LANE)
    e("v_lshrrev_b32 v2, 6, v0")
    e("s_nop 0")
    e("v_readfirstlane_b32 s%d, v2" % S_WAVE)
    e("s_nop 3")

def phase1(e, cfg, after_h_consumer, after_h_loader, after_d):
    e("s_and_b32 s%d, s%d, 3" % (S_WF, S_WAVE))
    e("s_and_b32 s%d, s%d, 3" % (S_LW, S_WAVE))
    e("s_and_b32 s41, s2, 7")
    e("s_lshr_b32 s42, s2, 3")
    e("s_cmp_ge_u32 s42, 28")
    e("s_cbranch_scc1 P1_DFT")
    e("s_mul_i32 s43, s42, 37")
    e("s_lshr_b32 s43, s43, 8")
    e("s_mul_i32 s76, s43, 7")
    e("s_sub_u32 s76, s42, s76")
    e("s_lshr_b32 s77, s41, 1")
    e("s_lshl_b32 s77, s77, 2")
    e("s_add_u32 s%d, s77, s43" % S_R)
    e("s_and_b32 s77, s41, 1")
    e("s_mul_i32 s77, s77, 7")
    e("s_add_u32 s%d, s77, s76" % S_FB)
    e("s_cmp_lt_u32 s%d, 4" % S_WAVE)
    e("s_cbranch_scc1 P1_H_CONSUMER")
    e.vm = []; e.lg = []
    STG[0] = True
    if "prioL" in cfg.x: e("s_setprio 1")
    h2_loader(e, cfg)
    q_loader_A(e, cfg)
    STG[0] = False
    stamp_store(e, cfg, 0)
    e("s_endpgm")
    e.label("P1_H_CONSUMER")
    if "prioC" in cfg.x: e("s_setprio 1")
    e.vm = []; e.lg = []
    h2_consumer(e, cfg)
    q_consumer_B(e, cfg)
    stamp_store(e, cfg, 0)
    e("s_endpgm")
    e.label("P1_DFT")
    e("s_sub_u32 s42, s42, 28")
    e("s_and_b32 s%d, s41, 1" % S_EH)
    e("s_lshr_b32 s77, s41, 1")
    e("s_lshl_b32 s77, s77, 2")
    e("s_add_u32 s%d, s77, s42" % S_QG)
    e("s_cmp_ge_u32 s%d, 4" % S_WAVE)
    e("s_cbranch_scc1 P1_D_LOADER")
    if "prioD" in cfg.x: e("s_setprio 1")
    e.vm = []; e.lg = []
    p1_consumer(e, cfg, False)
    d_epilogue(e, cfg)
    stamp(e, cfg, 3)
    after_d(True)
    e.label("P1_D_LOADER")
    e.vm = []; e.lg = []
    p1_loader(e, cfg, False)
    stamp(e, cfg, 3)
    after_d(False)

P2_ACC = 64
P2_H = 96
P2_A = 208
P2_U = 224
P2_T = 240
SLICE = 40960
KSL, NB = 60, 61

def p2_setup(e, cfg):
    L = V_LANE
    e("s_and_b32 s%d, s%d, 3" % (KSL, S_WAVE))
    e("s_lshr_b32 s%d, s%d, 2" % (NB, S_WAVE))
    e("v_lshrrev_b32 v2, 3, v%d" % L)
    e("v_bfe_u32 v3, v%d, 4, 1" % L)
    e("v_lshlrev_b32 v3, 2, v3")
    e("v_and_b32 v4, 7, v%d" % L)
    e("v_xor_b32 v3, v3, v4")
    e("v_lshlrev_b32 v3, 4, v3")
    e("s_mul_i32 s41, s%d, 448" % KSL)
    e("s_lshl_b32 s42, s%d, 3" % NB)
    e("s_add_u32 s41, s41, s42")
    e("v_add_u32 v2, s41, v2")
    e("s_movk_i32 s42, 896")
    e("v_mul_lo_u32 v2, v2, s42")
    e("s_lshl_b32 s41, s%d, 7" % S_C)
    e("v_add3_u32 v10, v2, v3, s41")
    e("s_mul_i32 s62, s%d, %d" % (KSL, SLICE))
    e("s_lshl_b32 s41, s%d, 10" % NB)
    e("s_add_u32 s62, s62, s41")
    e("v_and_b32 v2, 15, v%d" % L)
    e("v_lshrrev_b32 v3, 2, v2")
    e("v_lshrrev_b32 v4, 5, v%d" % L)
    e("v_lshlrev_b32 v5, 2, v4")
    e("v_add_u32 v5, v5, v3")
    e("v_lshlrev_b32 v5, 7, v5")
    e("v_bfe_u32 v6, v2, 3, 1")
    e("v_lshlrev_b32 v6, 6, v6")
    e("v_bfe_u32 v7, v%d, 4, 1" % L)
    e("v_lshlrev_b32 v7, 5, v7")
    e("v_and_b32 v8, 3, v2")
    e("v_lshlrev_b32 v8, 3, v8")
    e("v_add3_u32 v5, v5, v6, v7")
    e("v_add_u32 v5, v5, v8")
    e("s_mul_i32 s41, s%d, %d" % (KSL, SLICE))
    e("v_add_u32 v11, s41, v5")
    e("v_xor_b32 v12, 64, v11")
    e("s_mul_i32 s41, s%d, 112" % S_T1)
    e("s_mul_i32 s42, s%d, 28" % KSL)
    e("s_add_u32 s41, s41, s42")
    e("s_lshl_b32 s41, s41, 1")
    e("s_add_u32 s41, s41, s%d" % NB)
    e("s_lshl_b32 s41, s41, 10")
    e("v_lshlrev_b32 v13, 4, v%d" % L)
    e("v_add_u32 v13, s41, v13")
    e("v_and_b32 v14, 31, v%d" % L)
    e("s_cmp_ge_u32 s%d, 4" % S_C)
    e("s_cselect_b32 s63, 1, 0")
    e("s_sub_u32 s64, 32, s%d" % S_T1)
    e("s_and_b32 s64, s64, 31")
    e("s_cmp_eq_u32 s63, 1")
    e("s_cselect_b32 s64, s64, s%d" % S_T1)
    e("v_lshrrev_b32 v4, 5, v%d" % L)
    e("s_lshl_b32 s41, s%d, 6" % S_C)
    e("s_cmp_eq_u32 s63, 1")
    e("s_cselect_b64 vcc, -1, 0")
    for mb in range(2):
        e("v_add_u32 v2, s41, v14")
        if mb: e("v_add_u32 v2, 32, v2")
        e("v_sub_u32 v3, 448, v2")
        e("v_cndmask_b32 v2, v2, v3, vcc")
        e("v_lshlrev_b32 v2, 4, v2")
        e("v_lshlrev_b32 v3, 12, v4")
        e("v_add_u32 v%d, v2, v3" % (16 + mb))
    e("s_lshl_b32 s41, s64, 4")
    e("s_lshl_b32 s42, s%d, 2" % KSL)
    e("s_add_u32 s41, s41, s42")
    e("s_lshl_b32 s41, s41, 12")
    e("s_add_u32 s65, s41, 0x%x" % UBUF)
    e("s_lshl_b32 s41, s%d, 6" % S_T1)
    e("s_lshl_b32 s42, s%d, 5" % NB)
    e("s_add_u32 s41, s41, s42")
    e("v_add_u32 v2, s41, v14")
    e("v_lshlrev_b32 v2, 2, v2")
    e("v_add_u32 v20, 0x%x, v2" % GBUF)

def p2_dma_wd(e, kk):
    st = kk >> 2
    pos = (st % 5) * 4 + (kk & 3)
    dma(e, S_WD, 10, pos * 2048, 62, kk * 16 * 896, ("wd", st))
def p2_load_h(e, cfg, kk):
    sc = " sc1" if cfg.fused else ""
    e("s_mov_b32 s%d, 0x%x" % (S_OFF, kk * 2048))
    e("buffer_load_dwordx4 %s, v13, s[%d:%d], s%d offen%s" % (vr(P2_H + 4 * kk, 4), S_WS, S_WS + 3, S_OFF, sc))
    e.vm_issue(("h", kk))
def p2_load_g(e, cfg):
    sc = " sc1" if cfg.fused else ""
    e("buffer_load_dword v15, v20, s[%d:%d], 0 offen%s" % (S_WS, S_WS + 3, sc))
    e.vm_issue("g")
def p2_load_u(e, cfg):
    sc = " sc1" if cfg.fused else ""
    for u in range(2):
        for mb in range(2):
            e("s_add_u32 s%d, s65, %d" % (S_OFF, u * 2 * 4096))
            e("buffer_load_dwordx4 %s, v%d, s[%d:%d], s%d offen%s" % (vr(P2_U + 8 * u + 4 * mb, 4), 16 + mb, S_WS, S_WS + 3, S_OFF, sc))
            e.vm_issue("u")
def p2_tfrags(e, cfg):
    L = V_LANE
    e.vm_wait(["g"])
    e("s_cmp_lg_u32 s%d, 0" % S_T1)
    e("s_cselect_b32 s41, s63, 0")
    e("s_lshl_b32 s42, s%d, 5" % NB)
    e("s_add_u32 s41, s41, s42")
    e("v_add_u32 v2, s41, v14")
    e("v_lshrrev_b32 v4, 5, v%d" % L)
    e("v_lshlrev_b32 v4, 2, v4")
    e("s_lshl_b32 s41, s63, 31")
    e("v_xor_b32 v21, s41, v15")
    e("s_mov_b32 s42, 0x%08x" % f2u(1.0 / 64))
    e("s_lshl_b32 s43, s%d, 4" % KSL)
    e("v_add_u32 v4, s43, v4")
    for u in range(2):
        for q in range(4):
            e("v_add_u32 v3, %d, v4" % (8 * u + q))
            e("v_mul_u32_u24 v3, v3, v2")
            e("v_and_b32 v3, 63, v3")
            e("v_cvt_f32_u32 v3, v3")
            e("v_mul_f32 v3, s42, v3")
            e("v_cos_f32 v5, v3")
            e("v_sin_f32 v6, v3")
            e("s_nop 0")
            e("v_mul_f32 v5, v5, v15")
            e("v_mul_f32 v6, v6, v21")
            e("v_cvt_pk_bf16_f32 v%d, v5, v6" % (P2_T + 4 * u + q))
    e("v_sub_f32 v18, 1.0, v15")
    e("v_mov_b32 v19, v18")

def p2_main(e, cfg, wd_pre=0):
    L = V_LANE
    def reads(kk):
        b = P2_A + 8 * (kk & 1)
        st = kk >> 2
        pos = (st % 5) * 4 + (kk & 3)
        for mb in range(2):
            for ip in range(2):
                e("ds_read_b64_tr_b16 %s, v%d offset:%d" % (vr(b + 4 * mb + 2 * ip, 2), 11 + mb, pos * 2048 + ip * 1024))
                e.lg_issue(("A", kk, mb))
    def issue_h(st):
        if st > 6: return
        for kk in range(4 * st, 4 * st + 4): p2_load_h(e, cfg, kk)
    def issue_w(st):
        if st > 6 or st < wd_pre: return
        for kk in range(4 * st, 4 * st + 4): p2_dma_wd(e, kk)
    def issue_both(st):
        if st > 6: return
        for kk in range(4 * st, 4 * st + 4):
            if st >= wd_pre: p2_dma_wd(e, kk)
            p2_load_h(e, cfg, kk)
    LA = cfg.p2_la
    p2_load_g(e, cfg)
    if cfg.fused:
        for st in range(LA): issue_h(st)
        p2_tfrags(e, cfg)
    else:
        for st in range(LA): issue_both(st)
        p2_tfrags(e, cfg)
        e.vm_wait([("wd", 0), ("wd", 1)])
        e("s_barrier")
    stamp(e, cfg, 1 if not cfg.fused else 6)
    reads(0)
    for kk in range(28):
        st = kk >> 2
        if (kk & 3) == 0:
            if cfg.fused:
                if st >= 1: issue_w(st + 4)
                issue_h(st + LA)
            else:
                issue_both(st + LA)
                if st + LA == 7:
                    p2_load_u(e, cfg)
        if kk + 1 < 28: reads(kk + 1)
        e.vm_wait([("h", kk)])
        b = P2_A + 8 * (kk & 1)
        for mb in range(2):
            e.lg_wait([("A", kk, mb)])
            mfma(e, P2_ACC + 16 * mb, b + 4 * mb, P2_H + 4 * kk, "0" if kk == 0 else None)
        if (kk & 3) == 3 and st < 6:
            e.vm_wait([("wd", st + 2)])
            if cfg.fused and st == cfg.p2_dpoll:
                lab = e.newlabel("DP")
                e("s_cmp_lg_u32 s%d, 0" % S_WAVE)
                e("s_cbranch_scc1 %s" % lab)
                e("s_mov_b32 s%d, 0x%x" % (S_PF, FLAGS + 16 * 128))
                poll(e, S_PF, 32)
                e.label(lab)
            e("s_barrier")
            if cfg.fused and st == cfg.p2_dpoll:
                p2_load_u(e, cfg)
    assert not e.lg
    stamp(e, cfg, 2 if not cfg.fused else 7)
    e.vm_wait(["u"])
    e("s_nop 7"); e("s_nop 3")
    for i in range(0, 32, 2):
        e("v_pk_mul_f32 %s, %s, v[18:19]" % (vr(P2_ACC + i, 2), vr(P2_ACC + i, 2)))
    e("s_nop 1")
    for u in range(2):
        for mb in range(2):
            mfma(e, P2_ACC + 16 * mb, P2_U + 8 * u + 4 * mb, P2_T + 4 * u)
    e("s_barrier")
    e("v_lshlrev_b32 v2, 4, v%d" % L)
    e("s_lshl_b32 s41, s%d, 13" % S_WAVE)
    e("v_add_u32 v3, s41, v2")
    e("s_nop 7"); e("s_nop 1")
    for qd in range(4):
        for hf in range(2):
            e("ds_write_b128 v3, %s offset:%d" % (vr(P2_ACC + 8 * qd + 4 * hf, 4), qd * 2048 + hf * 1024))
    e("s_waitcnt lgkmcnt(0)")
    e("s_barrier")
    e("s_lshl_b32 s41, s%d, 15" % NB)
    e("s_lshl_b32 s42, s%d, 11" % KSL)
    e("s_add_u32 s41, s41, s42")
    e("v_add_u32 v3, s41, v2")
    for k in range(4):
        for hf in range(2):
            e("ds_read_b128 %s, v3 offset:%d" % (vr(96 + 8 * k + 4 * hf, 4), k * 8192 + hf * 1024))
    e("s_lshl_b32 s41, s%d, 5" % NB)
    e("v_add_u32 v2, s41, v14")
    e("v_lshlrev_b32 v2, 5, v2")
    e("v_add_u32 v2, s%d, v2" % S_T1)
    e("s_movk_i32 s42, 896")
    e("v_mul_lo_u32 v2, v2, s42")
    e("s_lshl_b32 s41, s%d, 7" % S_C)
    e("s_lshl_b32 s42, s%d, 5" % KSL)
    e("s_add_u32 s41, s41, s42")
    e("v_lshrrev_b32 v4, 5, v%d" % L)
    e("v_lshlrev_b32 v4, 4, v4")
    e("v_add3_u32 v2, v2, v4, s41")
    e("s_waitcnt lgkmcnt(0)")
    for q in range(0, 8, 2):
        e("v_pk_add_f32 %s, %s, %s" % (vr(96 + q, 2), vr(96 + q, 2), vr(104 + q, 2)))
        e("v_pk_add_f32 %s, %s, %s" % (vr(112 + q, 2), vr(112 + q, 2), vr(120 + q, 2)))
    for q in range(0, 8, 2):
        e("v_pk_add_f32 %s, %s, %s" % (vr(96 + q, 2), vr(96 + q, 2), vr(112 + q, 2)))
    for q in range(4):
        e("v_cvt_pk_bf16_f32 v%d, v%d, v%d" % (128 + q, 96 + 2 * q, 96 + 2 * q + 1))
    e("s_nop 1")
    e("v_permlane32_swap_b32 v128, v130")
    e("v_permlane32_swap_b32 v129, v131")
    e("buffer_store_dwordx4 v[128:131], v2, s[%d:%d], 0 offen" % (S_OUT, S_OUT + 3))
    stamp(e, cfg, 3 if not cfg.fused else 8)

def p2_role(e):
    e("s_and_b32 s41, s2, 7")
    e("s_lshr_b32 s42, s2, 3")
    e("s_mul_i32 s43, s42, 37")
    e("s_lshr_b32 s43, s43, 8")
    e("s_mul_i32 s76, s43, 7")
    e("s_sub_u32 s%d, s42, s76" % S_C)
    e("s_lshl_b32 s41, s41, 2")
    e("s_add_u32 s%d, s41, s43" % S_T1)

def header(e, name):
    e.raw(".text"); e.raw(".globl %s" % name); e.raw(".p2align 8"); e.raw(".type %s,@function" % name); e.label(name)

def kernel1(e, cfg):
    header(e, "k1_kernel")
    e("s_cmp_ge_u32 s2, 256")
    e("s_cbranch_scc1 K1_END")
    kernarg_loads(e)
    entry_common(e)
    def fin():
        stamp_store(e, cfg, 0)
        e("s_endpgm")
    phase1(e, cfg, fin, fin, lambda c: fin())
    e.label("K1_END")
    e("s_endpgm")

def kernel2(e, cfg):
    header(e, "k2_kernel")
    e.vm = []; e.lg = []
    e("s_cmp_ge_u32 s2, 256")
    e("s_cbranch_scc1 K2_END")
    e("s_lshr_b32 s42, s2, 3")
    e("s_cmp_ge_u32 s42, 28")
    e("s_cbranch_scc1 K2_END")
    kernarg_loads(e)
    entry_common(e)
    p2_role(e)
    p2_setup(e, cfg)
    e("s_waitcnt lgkmcnt(0)")
    srd(e, S_WS, 74, WS_BYTES)
    srd(e, S_OUT, 46, 1835008)
    srd(e, S_WD, 56, 1605632)
    stamp(e, cfg, 0)
    p2_main(e, cfg, 0)
    stamp_store(e, cfg, 0x40000)
    e.label("K2_END")
    e("s_endpgm")


def nonce_issue(e):
    lab = e.newlabel("NONCE")
    srd(e, S_DBG, 72, 256)
    e("s_or_b32 s41, s2, s%d" % S_WAVE)
    e("s_cmp_lg_u32 s41, 0")
    e("s_cbranch_scc1 %s" % lab)
    e("s_memrealtime s[42:43]")
    e("s_waitcnt lgkmcnt(0)")
    e("s_or_b32 s42, s42, 1")
    e("v_mov_b32 v4, s42")
    e("v_lshlrev_b32 v5, 20, v%d" % V_LANE)
    e("buffer_store_dword v4, v5, s[%d:%d], 0 offen sc1" % (S_DBG, S_DBG + 3))
    e.label(lab)
    e("v_mov_b32 v7, 0")

def nonce_publish(e):
    lab = e.newlabel("NONCE")
    e("s_or_b32 s41, s2, s%d" % S_WAVE)
    e("s_cmp_lg_u32 s41, 0")
    e("s_cbranch_scc1 %s" % lab)
    srd(e, S_DBG, 72, 256)
    e("s_memrealtime s[42:43]")
    e("s_waitcnt lgkmcnt(0)")
    e("s_or_b32 s42, s42, 1")
    e("v_mov_b32 v4, s42")
    e("v_lshlrev_b32 v5, 20, v%d" % V_LANE)
    e("buffer_store_dword v4, v5, s[%d:%d], 0 offen sc1" % (S_DBG, S_DBG + 3))
    e.label(lab)

def nonce_load(e):
    e("buffer_load_dword v4, v7, s[%d:%d], 0 offen sc1" % (S_DBG, S_DBG + 3))

def nonce_finish(e):
    nonce_finish_any(e)

def flag_addr(e, is_h):
    if is_h:
        e("s_lshl_b32 s41, s%d, 9" % S_R)
        e("s_lshl_b32 s42, s%d, 2" % S_FB)
    else:
        e("s_lshl_b32 s41, s%d, 1" % S_QG)
        e("s_add_u32 s41, s41, s%d" % S_EH)
        e("s_lshl_b32 s42, s41, 2")
        e("s_movk_i32 s41, %d" % (16 * 512))
    e("s_add_u32 s41, s41, s42")
    e("s_add_u32 s%d, s41, 0x%x" % (S_FLAG, FLAGS))

def flag_store(e):
    e("v_mov_b32 v60, s%d" % S_NONCE)
    e("v_lshlrev_b32 v61, 24, v%d" % V_LANE)
    e("v_add_u32 v61, s%d, v61" % S_FLAG)
    e("buffer_store_dword v60, v61, s[%d:%d], 0 offen sc1" % (S_WS, S_WS + 3))

def poll_prep(e, sbase, nflags):
    e("v_lshlrev_b32 v61, 2, v%d" % V_LANE)
    e("v_add_u32 v61, s%d, v61" % sbase)
    e("v_cmp_gt_u32 vcc, %d, v%d" % (nflags, V_LANE))
    e("v_mov_b32 v60, 0x7fffffff")
    e("s_nop 0")
    e("v_cndmask_b32 v61, v60, v61, vcc")
def poll_issue(e):
    e("buffer_load_dword v60, v61, s[%d:%d], 0 offen sc1" % (S_WS, S_WS + 3))
def poll_loop(e, nflags, first_issued):
    top = e.newlabel("POLL"); done = e.newlabel("POLLD"); chk = e.newlabel("POLLC")
    e("s_mov_b32 s41, 0")
    if first_issued: e("s_branch %s" % chk)
    e.label(top)
    poll_issue(e)
    e.label(chk)
    e("s_waitcnt vmcnt(0)")
    e("v_cmp_eq_u32 vcc, s%d, v60" % S_NONCE)
    e("s_nop 1")
    mask = (1 << nflags) - 1
    e("s_and_b32 s42, vcc_lo, 0x%x" % (mask & 0xffffffff))
    e("s_cmp_eq_u32 s42, 0x%x" % (mask & 0xffffffff))
    e("s_cbranch_scc1 %s" % done)
    e("s_add_u32 s41, s41, 1")
    e("s_cmp_ge_u32 s41, 0x40000")
    e("s_cbranch_scc1 %s" % done)
    e("s_branch %s" % top)
    e.label(done)
def poll(e, sbase, nflags, drain=True):
    poll_prep(e, sbase, nflags)
    poll_loop(e, nflags, False)

def pollAG_prep(e):
    e("v_lshlrev_b32 v61, 2, v%d" % V_LANE)
    e("v_add_u32 v62, 0x%x, v61" % (FLAGS + 16 * 512 + 128 - 128))
    e("v_add_u32 v61, s%d, v61" % S_PF)
    e("v_cmp_gt_u32 vcc, 14, v%d" % V_LANE)
    e("v_mov_b32 v60, 0x7fffffff")
    e("s_nop 0")
    e("v_cndmask_b32 v61, v60, v61, vcc")
    e("v_cmp_lt_u32 vcc, 31, v%d" % V_LANE)
    e("s_nop 1")
    e("v_cndmask_b32 v61, v61, v62, vcc")

def poll_loop56(e):
    top = e.newlabel("POLL"); done = e.newlabel("POLLD")
    e("s_mov_b32 s41, 0")
    e.label(top)
    poll_issue(e)
    e("s_waitcnt vmcnt(0)")
    e("v_cmp_eq_u32 vcc, s%d, v60" % S_NONCE)
    e("s_nop 1")
    e("s_and_b32 s43, vcc_hi, 0xffffff")
    e("s_cmp_eq_u32 s43, 0xffffff")
    e("s_cselect_b32 s42, vcc_lo, 0")
    e("s_cmp_eq_u32 s42, -1")
    e("s_cbranch_scc1 %s" % done)
    e("s_add_u32 s41, s41, 1")
    e("s_cmp_ge_u32 s41, 0x40000")
    e("s_cbranch_scc1 %s" % done)
    e("s_branch %s" % top)
    e.label(done)

def poll2(e, sline1, line2):
    top = e.newlabel("POLL"); done = e.newlabel("POLLD")
    e("v_lshlrev_b32 v61, 2, v%d" % V_LANE)
    e("v_add_u32 v62, 0x%x, v61" % line2)
    e("v_add_u32 v61, s%d, v61" % sline1)
    e("v_mov_b32 v60, 0x7fffffff")
    e("v_cmp_gt_u32 vcc, 56, v%d" % V_LANE)
    e("s_nop 1")
    e("v_cndmask_b32 v61, v60, v61, vcc")
    e("v_cmp_gt_u32 vcc, 32, v%d" % V_LANE)
    e("s_nop 1")
    e("v_cndmask_b32 v62, v60, v62, vcc")
    e("s_mov_b32 s41, 0")
    e.label(top)
    e("buffer_load_dword v60, v61, s[%d:%d], 0 offen sc1" % (S_WS, S_WS + 3))
    e("buffer_load_dword v58, v62, s[%d:%d], 0 offen sc1" % (S_WS, S_WS + 3))
    e("s_waitcnt vmcnt(0)")
    e("v_cmp_eq_u32 vcc, s%d, v60" % S_NONCE)
    e("v_cmp_eq_u32 s[42:43], s%d, v58" % S_NONCE)
    e("s_nop 1")
    e("s_and_b32 s43, vcc_hi, 0xffffff")
    e("s_and_b32 s42, s42, vcc_lo")
    e("s_cmp_eq_u32 s43, 0xffffff")
    e("s_cselect_b32 s42, s42, 0")
    e("s_cmp_eq_u32 s42, -1")
    e("s_cbranch_scc1 %s" % done)
    e("s_add_u32 s41, s41, 1")
    e("s_cmp_ge_u32 s41, 0x40000")
    e("s_cbranch_scc1 %s" % done)
    e("s_branch %s" % top)
    e.label(done)

def kernel_fused(e, cfg):
    name = "gated_mix__spectral_fnet__glu_gated_glu__prompt_kernel"
    header(e, name)
    e("s_cmp_ge_u32 s2, 256")
    e("s_cbranch_scc1 KF_END")
    kernarg_loads(e)
    entry_common(e)
    def after_h_consumer():
        e.vm_wait_all()
        e("s_barrier")
        lab = e.newlabel("NOTW0")
        e("s_cmp_lg_u32 s%d, 0" % S_WAVE)
        e("s_cbranch_scc1 %s" % lab)
        flag_store(e)
        e.label(lab)
        stamp(e, cfg, 4)
        p2_role(e)
        p2_setup(e, cfg)
        srd(e, S_OUT, 46, 1835008)
        srd(e, S_WD, 56, 1605632)
        e("s_cmp_lg_u32 s%d, 0" % S_WAVE)
        e("s_cbranch_scc1 P2_START")
        e("s_lshr_b32 s43, s%d, 1" % S_T1)
        e("s_lshl_b32 s43, s43, 7")
        e("s_add_u32 s%d, s43, 0x%x" % (S_PF, FLAGS))
        poll(e, S_PF, 14)
        e("s_branch P2_START")
    def after_h_loader():
        e("s_barrier")
        p2_role(e)
        p2_setup(e, cfg)
        srd(e, S_OUT, 46, 1835008)
        e("v_subrev_u32 v9, %d, v10" % (8 * 896))
        e("s_sub_u32 s69, s62, 1024")
        for kk in range(20):
            pos = kk
            dma(e, S_WD, 9, pos * 2048, 69, kk * 16 * 896, ("wdp", kk))
            dma(e, S_WD, 10, pos * 2048, 62, kk * 16 * 896, ("wdp", kk))
        e("s_barrier")
        stamp(e, cfg, 4)
        e.vm = []
        e.label("P2_START")
        e("s_waitcnt vmcnt(0)")
        e("s_barrier")
        stamp(e, cfg, 5)
        e.vm = []; e.lg = []
        p2_main(e, cfg, 5)
        stamp_store(e, cfg, 0)
        e("s_endpgm")
    def after_d(is_cons):
        if is_cons:
            e.vm_wait_all()
            e("s_barrier")
            lab = e.newlabel("DNOTW0")
            e("s_cmp_lg_u32 s%d, 0" % S_WAVE)
            e("s_cbranch_scc1 %s" % lab)
            flag_store(e)
            e("s_waitcnt vmcnt(0)")
            e.label(lab)
            stamp_store(e, cfg, 0)
            e("s_endpgm")
        else:
            e("s_waitcnt vmcnt(0)")
            e("s_barrier")
            stamp_store(e, cfg, 0)
            e("s_endpgm")
    phase1(e, cfg, after_h_consumer, after_h_loader, after_d)
    e.label("KF_END")
    e("s_endpgm")


WB2 = 114688; NW2 = 6; WS2 = 8192
H_ACC = 64
H_FR = 192
V_XA2 = 10
V_WA2 = 18
S_WT = 69

def h2_consumer(e, cfg):
    L = V_LANE; T = 26
    e("s_lshr_b32 s%d, s%d, 1" % (S_WT, S_WAVE))
    e("s_and_b32 s%d, s%d, 1" % (S_WF, S_WAVE))
    e("v_and_b32 v%d, 31, v%d" % (T, L))
    e("v_lshrrev_b32 v%d, 5, v%d" % (T + 1, L))
    e("v_lshrrev_b32 v%d, 1, v%d" % (T + 2, T))
    e("v_and_b32 v%d, 7, v%d" % (T + 2, T + 2))
    e("s_lshl_b32 s41, s%d, 6" % S_WT)
    e("v_add_u32 v%d, s41, v%d" % (T + 3, T))
    e("v_lshlrev_b32 v%d, 7, v%d" % (T + 3, T + 3))
    for k in range(4):
        e("v_add_u32 v%d, %d, v%d" % (T + 4, 2 * k, T + 1))
        e("v_xor_b32 v%d, v%d, v%d" % (T + 4, T + 4, T + 2))
        e("v_lshlrev_b32 v%d, 4, v%d" % (T + 4, T + 4))
        e("v_add_u32 v%d, v%d, v%d" % (V_XA2 + k, T + 3, T + 4))
        e("v_add_u32 v%d, 0x10000, v%d" % (V_XA2 + 4 + k, V_XA2 + k))
    e("v_and_b32 v%d, 15, v%d" % (T + 4, L))
    e("v_lshrrev_b32 v%d, 2, v%d" % (T + 5, T + 4))
    e("v_lshlrev_b32 v%d, 7, v%d" % (T + 5, T + 5))
    e("v_lshlrev_b32 v%d, 11, v%d" % (T + 6, T + 1))
    e("v_add_u32 v%d, v%d, v%d" % (T + 6, T + 6, T + 5))
    e("v_bfe_u32 v%d, v%d, 3, 1" % (T + 7, T + 4))
    e("v_xor_b32 v%d, s%d, v%d" % (T + 7, S_WF, T + 7))
    e("v_lshlrev_b32 v%d, 6, v%d" % (T + 7, T + 7))
    e("v_add_u32 v%d, v%d, v%d" % (T + 6, T + 6, T + 7))
    e("v_bfe_u32 v%d, v%d, 4, 1" % (T + 7, L))
    e("v_lshlrev_b32 v%d, 5, v%d" % (T + 7, T + 7))
    e("v_add_u32 v%d, v%d, v%d" % (T + 6, T + 6, T + 7))
    e("v_and_b32 v%d, 3, v%d" % (T + 7, T + 4))
    e("v_lshlrev_b32 v%d, 3, v%d" % (T + 7, T + 7))
    e("v_add_u32 v%d, v%d, v%d" % (T + 6, T + 6, T + 7))
    e("v_add_u32 v%d, 0x%x, v%d" % (V_WA2, WB2, T + 6))
    e("s_waitcnt lgkmcnt(0)")
    srd(e, S_WS, 74, WS_BYTES)
    if cfg.ncx > 0:
        srd(e, S_X, 44, 1835008)
        e("v_lshrrev_b32 v40, 3, v%d" % L)
        e("v_and_b32 v41, 7, v%d" % L)
        e("v_lshrrev_b32 v42, 4, v%d" % L)
        e("v_xor_b32 v41, v41, v42")
        e("v_lshlrev_b32 v41, 4, v41")
        e("v_mul_u32_u24 v40, 28672, v40")
        e("s_lshl_b32 s41, s%d, 1" % S_R)
        e("s_lshr_b32 s42, s%d, 1" % S_WAVE)
        e("s_add_u32 s41, s41, s42")
        e("s_mul_i32 s41, s41, 896")
        e("s_and_b32 s42, s%d, 1" % S_WAVE)
        e("s_mul_i32 s42, s42, %d" % (32 * 28672))
        e("s_add_u32 s41, s41, s42")
        e("v_add3_u32 v36, v40, v41, s41")
        e("v_xor_b32 v41, 64, v41")
        e("s_add_u32 s42, s41, %d" % (8 * 28672 - 1024))
        e("v_add3_u32 v37, v40, v41, s42")
        e("v_add_u32 v38, %d, v36" % (16 * 28672 - 2048))
        e("v_add_u32 v39, %d, v37" % (16 * 28672 - 2048))
        e("s_mul_i32 s6, s%d, %d" % (S_R, RMUL[0]))
        e("s_mul_i32 s7, s%d, %d" % (S_FB, FMUL[0]))
        e("s_add_u32 s6, s6, s7")
        e("s_mul_i32 s7, s6, 37")
        e("s_lshr_b32 s7, s7, 8")
        e("s_mul_i32 s7, s7, 7")
        e("s_sub_u32 s6, s6, s7")
        e("s_lshl_b32 s5, s%d, 12" % S_WAVE)
        for c in range(1, cfg.ncx + 1):
            rot_next(e, 6, 7)
            e("s_lshl_b32 s4, s6, 7")
            dma_group(e, 5, c * 16384, [(S_X, 36 + i, 4, i * 1024, ("xc", c)) for i in range(4)])
    de = Em()
    _e = e
    e = de
    e("s_lshl_b32 s41, s%d, 1" % S_R)
    e("s_add_u32 s41, s41, s%d" % S_WT)
    e("s_mul_i32 s41, s41, 112")
    e("s_lshl_b32 s42, s%d, 1" % S_FB)
    e("s_add_u32 s42, s42, s%d" % S_WF)
    e("s_lshl_b32 s42, s42, 1")
    e("s_add_u32 s41, s41, s42")
    e("s_lshl_b32 s41, s41, 11")
    e("v_lshlrev_b32 v20, 4, v%d" % L)
    e("v_add_u32 v20, s41, v20")
    e("v_add_u32 v21, 0x%x, v20" % (56 * 2048))
    flag_addr(e, True)
    srd(e, S_DBG, 72, 256)
    e("v_mov_b32 v7, 0")
    e("s_mov_b32 s44, 0x%08x" % f2u(-LOG2E))
    e("s_mov_b32 s45, s44")
    defer_list = [ln.strip() for ln in de.lines]
    e = _e
    nonce_publish(e)
    if "pf2" in cfg.x:
        lab = e.newlabel("PF2")
        e("s_cmp_lg_u32 s%d, 0" % S_WAVE)
        e("s_cbranch_scc1 %s" % lab)
        srd(e, S_WD, 56, 1605632)
        e("s_mul_i32 s41, s%d, 14" % S_R)
        e("s_add_u32 s41, s41, s%d" % S_FB)
        e("s_mul_i32 s41, s41, 56")
        e("v_add_u32 v8, s41, v%d" % L)
        e("v_lshlrev_b32 v8, 7, v8")
        e("buffer_load_dword v9, v8, s[%d:%d], 0 offen" % (S_WD, S_WD + 3))
        e.label(lab)
    stamp(e, cfg, 0)
    if "notouch" not in cfg.x:
        srd(e, S_WD, 56, 1605632)
        e("s_lshr_b32 s41, s2, 3")
        e("s_mul_i32 s41, s41, 448")
        e("s_lshl_b32 s42, s%d, 6" % S_WAVE)
        e("s_add_u32 s41, s41, s42")
        e("v_add_u32 v8, s41, v%d" % L)
        e("v_lshlrev_b32 v8, 7, v8")
        e("buffer_load_dword v2, v8, s[%d:%d], 0 offen" % (S_WD, S_WD + 3))
        e("s_cmp_eq_u32 s%d, 3" % S_WAVE)
        lab = e.newlabel("TCH")
        e("s_cbranch_scc1 %s" % lab)
        e("v_add_u32 v8, 0x%x, v8" % (256 * 128))
        e("buffer_load_dword v3, v8, s[%d:%d], 0 offen" % (S_WD, S_WD + 3))
        e.label(lab)
    e("s_barrier")
    stamp(e, cfg, 1)
    if cfg.diag:
        e("s_memtime s[76:77]"); e("s_waitcnt lgkmcnt(0)")
    def reads(g):
        p = g // 28; kap = g % 28
        base = H_FR + 16 * (g & 1)
        c = kap >> 2; kk4 = kap & 3
        xo = c * 16384
        xv = V_XA2 + kk4 + (4 if xo >= 0x10000 else 0); xo &= 0xffff
        j = g >> 1; kk = g & 1
        so = (j % NW2) * WS2
        def xr(nb): return (("X", g, nb), "ds_read_b128 %s, v%d offset:%d" % (vr(base + 4 * nb, 4), xv, xo + nb * 4096))
        def wr(m, ip): return (("W", g, m), "ds_read_b64_tr_b16 %s, v%d offset:%d" % (vr(base + 8 + 4 * m + 2 * ip, 2), V_WA2, so + kk * 4096 + ip * 512 + m * 1024))
        return [wr(0, 0), wr(0, 1), xr(0), wr(1, 0), wr(1, 1), xr(1)]
    def epi_list(p):
        ACCB = H_ACC + 64 * p
        L_ = []
        def I(txt): L_.append(lambda: e(txt))
        grp = 0
        for nb in range(2):
            for hf in range(2):
                outb = 224 + 4 * grp; grp += 1
                A = ACCB + 16 * nb + 8 * hf; B = ACCB + 32 + 16 * nb + 8 * hf
                for q in range(0, 8, 2):
                    I("v_pk_mul_f32 %s, %s, s[44:45]" % (vr(A + q, 2), vr(A + q, 2)))
                for q in range(8):
                    I("v_exp_f32 v%d, v%d" % (A + q, A + q))
                for q in range(0, 8, 2):
                    I("v_pk_add_f32 %s, %s, s[46:47]" % (vr(A + q, 2), vr(A + q, 2))) if False else I("v_pk_add_f32 %s, %s, 1.0 op_sel_hi:[1,0]" % (vr(A + q, 2), vr(A + q, 2)))
                for q in range(8):
                    I("v_rcp_f32 v%d, v%d" % (A + q, A + q))
                for q in range(0, 8, 2):
                    I("v_pk_mul_f32 %s, %s, %s" % (vr(A + q, 2), vr(A + q, 2), vr(B + q, 2)))
                for q2 in range(4):
                    I("v_cvt_pk_bf16_f32 v%d, v%d, v%d" % (outb + q2, A + 2 * q2, A + 2 * q2 + 1))
                def st(outb=outb, nb=nb, hf=hf):
                    e("buffer_store_dwordx4 %s, v%d, s[%d:%d], 0 offen offset:%d sc1" % (vr(outb, 4), 20 + p, S_WS, S_WS + 3, hf * 2048 + nb * 1024))
                    e.vm_issue("hst")
                L_.append(st)
        return L_
    def epilogue(p):
        e("s_nop 7"); e("s_nop 3")
        for f in epi_list(p): f()
    pend_epi = []
    ge = Em()
    gate_list = []
    for tag, txt in reads(0):
        e(txt); e.lg_issue(tag)
    for g in range(56):
        base = H_FR + 16 * (g & 1)
        nxt = reads(g + 1) if g + 1 < 56 else []
        first = (g % 28 == 0)
        ACCB = H_ACC + 64 * (g // 28)
        if g == 28 + cfg.epi_start and cfg.epi_rate > 0:
            pend_epi = epi_list(0)
        k = 0
        for n in range(4):
            nb = n >> 1; m = n & 1
            if "wait2" in cfg.x:
                if n == 0: e.lg_wait([("W", g, 0), ("X", g, 0)])
                if n == 1: e.lg_wait([("W", g, 1), ("X", g, 1)])
            elif "wait1" in cfg.x:
                if n == 0: e.lg_wait([("W", g, 0), ("X", g, 0), ("W", g, 1), ("X", g, 1)])
            else:
                e.lg_wait([("W", g, m), ("X", g, nb)])
            d = ACCB + 32 * m + 16 * nb
            if "fake16" in cfg.x:
                for hh in range(2):
                    e("v_mfma_f32_16x16x32_bf16 %s, %s, %s, %s" % (vr(d + 8 * hh, 4), vr(base + 8 + 4 * m, 4), vr(base + 4 * nb, 4), "0" if first else vr(d + 8 * hh, 4)))
            elif "nomfma" not in cfg.x:
                mfma(e, d, base + 8 + 4 * m, base + 4 * nb, "0" if first else None)
            cnt = 2 if n < 2 else 1
            if "rd3" in cfg.x: cnt = (3, 3, 0, 0)[n]
            if "rd6" in cfg.x: cnt = (6, 0, 0, 0)[n]
            for _ in range(cnt):
                if k < len(nxt):
                    tag, txt = nxt[k]; k += 1
                    if "nolds" in cfg.x: continue
                    e(txt); e.lg_issue(tag)
            for _ in range(cfg.epi_rate):
                if pend_epi: pend_epi.pop(0)()
            for _ in range(cfg.defer_rate):
                if defer_list: e(defer_list.pop(0))
            if g >= cfg.gate_g:
                pass
                for _ in range(cfg.gate_rate):
                    if gate_list: e(gate_list.pop(0))
        if g == 27 and cfg.epi_rate == 0:
            epilogue(0)
        for c in range(1, cfg.ncx + 1):
            if g == 4 * c - 3:
                e.vm_wait([("xc", c)])
        if g == 46:
            nonce_load(e)
        if g == 2 * cfg.flagA_bar - 1:
            e("s_waitcnt vmcnt(0)")
        if (g & 1) and g < 55:
            e("s_barrier")
    assert not e.lg
    e.vm = []
    e("s_barrier")
    if cfg.diag:
        e("s_memtime s[78:79]"); e("s_waitcnt lgkmcnt(0)")
        e("s_sub_u32 s7, s78, s76")
    nonce_finish(e)
    assert not pend_epi and not gate_list
    if "prio0T0" in cfg.x: e("s_setprio 0")
    stamp(e, cfg, 2)
    p2_role(e)
    flags_line(e, 0)
    pollAG_prep(e)
    poll_issue(e); e.vm_issue("pollA")
    epilogue(1)
    stamp(e, cfg, 3)

def h2_loader(e, cfg):
    L = V_LANE; T = 26
    VX = 10; VW = 14
    e("v_lshrrev_b32 v%d, 3, v%d" % (T, L))
    e("v_and_b32 v%d, 7, v%d" % (T + 1, L))
    e("v_lshrrev_b32 v%d, 4, v%d" % (T + 2, L))
    e("v_xor_b32 v%d, v%d, v%d" % (T + 3, T + 1, T + 2))
    e("v_lshlrev_b32 v%d, 4, v%d" % (T + 3, T + 3))
    e("v_mul_u32_u24 v%d, 28672, v%d" % (T + 4, T))
    e("s_lshl_b32 s41, s%d, 1" % S_R)
    e("s_lshr_b32 s42, s%d, 1" % S_LW)
    e("s_add_u32 s41, s41, s42")
    e("s_mul_i32 s41, s41, 896")
    e("s_and_b32 s42, s%d, 1" % S_LW)
    e("s_mul_i32 s42, s42, %d" % (32 * 28672))
    e("s_add_u32 s41, s41, s42")
    e("v_add3_u32 v%d, v%d, v%d, s41" % (VX, T + 4, T + 3))
    e("v_xor_b32 v%d, 64, v%d" % (T + 3, T + 3))
    e("s_add_u32 s42, s41, %d" % (8 * 28672 - 1024))
    e("v_add3_u32 v%d, v%d, v%d, s42" % (VX + 1, T + 4, T + 3))
    e("v_add_u32 v%d, %d, v%d" % (VX + 2, 16 * 28672 - 2048, VX))
    e("v_add_u32 v%d, %d, v%d" % (VX + 3, 16 * 28672 - 2048, VX + 1))
    e("v_mul_u32_u24 v%d, 3584, v%d" % (T + 4, T))
    e("v_and_b32 v%d, 1, v%d" % (T + 2, T + 2))
    e("v_lshlrev_b32 v%d, 2, v%d" % (T + 2, T + 2))
    e("v_xor_b32 v%d, v%d, v%d" % (T + 2, T + 2, T + 1))
    e("v_lshlrev_b32 v%d, 4, v%d" % (T + 2, T + 2))
    e("s_mul_i32 s41, s%d, %d" % (S_LW, 8 * 3584))
    e("s_lshl_b32 s42, s%d, 7" % S_FB)
    e("s_add_u32 s41, s41, s42")
    e("v_add3_u32 v%d, v%d, v%d, s41" % (VW, T + 4, T + 2))
    e("v_add_u32 v%d, %d, v%d" % (VW + 1, 32 * 3584, VW))
    e("s_lshl_b32 s%d, s%d, 11" % (S_LDSW, S_LW))
    e("s_lshl_b32 s%d, s%d, 12" % (S_LDSX, S_LW))
    e("s_mul_i32 s6, s%d, %d" % (S_R, RMUL[0]))
    e("s_mul_i32 s7, s%d, %d" % (S_FB, FMUL[0]))
    e("s_add_u32 s6, s6, s7")
    e("s_mul_i32 s7, s6, 37")
    e("s_lshr_b32 s7, s7, 8")
    e("s_mul_i32 s7, s7, 7")
    e("s_sub_u32 s6, s6, s7")
    e("s_waitcnt lgkmcnt(0)")
    srd(e, S_X, 44, 1835008)
    srd(e, S_WA, 52, 1605632)
    e("s_sub_u32 s%d, s54, 1024" % S_WB)
    e("s_subb_u32 s%d, s55, 0" % (S_WB + 1))
    e("s_and_b32 s%d, s%d, 0xffff" % (S_WB + 1, S_WB + 1))
    e("s_mov_b32 s%d, 0x%x" % (S_WB + 2, 1605632 + 1024))
    e("s_mov_b32 s%d, 0x20000" % (S_WB + 3))
    e("s_mov_b64 s[76:77], s[56:57]")
    e("s_mov_b64 s[78:79], s[58:59]")
    def emitT(dst):
        c = dst - 44
        e("s_lshl_b32 s%d, s6, 7" % (44 + c))
        e("s_mul_i32 s%d, s6, %d" % (51 + c, 64 * 3584))
    emitT(44)
    stamp(e, cfg, 0)
    tdone = [1]
    def need_table(c):
        while tdone[0] <= c:
            rot_next(e, 6, 7)
            emitT(44 + tdone[0]); tdone[0] += 1
    def dx(c):
        need_table(c)
        dma_group(e, S_LDSX, c * 16384, [(S_X, VX + i, 44 + c, i * 1024, ("x", c)) for i in range(4)])
    def dw(j):
        p = j // 14; jj = j % 14; c = jj >> 1
        need_table(c)
        va = VW + 2 * p + (jj & 1)
        dma_group(e, S_LDSW, WB2 + (j % NW2) * WS2, [(S_WA, va, 51 + c, 0, ("w", j)), (S_WB, va, 51 + c, 1024, ("w", j))])
    q = []
    for j in range(28):
        if j < 14 and j % 2 == 0 and not (1 <= j // 2 <= cfg.ncx): q.append(("x", j // 2, -1))
        q.append(("w", j, -1 if j < NW2 else j - NW2 + 1))
    def cost(it): return 4 if it[0] == "x" else 2
    def issue(it): (dx if it[0] == "x" else dw)(it[1])
    def need(j):
        t = []
        for jj in (j, j + 1):
            if jj <= 27:
                if jj < 14 and not (1 <= (jj >> 1) <= cfg.ncx): t.append(("x", jj >> 1))
                t.append(("w", jj))
        return t
    issued = set(); curbar = [-1]
    def ensure(tags):
        while q and any(t not in issued for t in tags):
            it = q.pop(0); assert it[2] <= curbar[0], (it, curbar)
            issue(it); issued.add((it[0], it[1]))
    ensure(need(0))
    e("v_add_u32 v%d, %d, v%d" % (VW + 2, 1792, VW))
    e("v_add_u32 v%d, %d, v%d" % (VW + 3, 1792, VW + 1))
    srd(e, S_WS, 74, WS_BYTES)
    srd(e, S_WD, 76, 1605632)
    srd(e, S_GW, 78, 896)
    srd(e, S_DBG, 72, 256)
    flag_addr(e, True)
    e("v_mov_b32 v7, 0")
    budget0 = cfg.pro_extra
    while q and budget0 > 0 and q[0][2] <= -1:
        it = q.pop(0); issue(it); issued.add((it[0], it[1])); budget0 -= cost(it)
    e.vm_wait(need(0))
    e("s_barrier")
    stamp(e, cfg, 1)
    for j in range(27):
        curbar[0] = j
        ensure(need(j + 1))
        budget = cfg.stage_budget2
        while q and budget > 0 and q[0][2] <= j:
            it = q.pop(0); issue(it); issued.add((it[0], it[1])); budget -= cost(it)
        if j == 1:
            p2_role(e)
            q_setup(e, 0, 26)
        if j == 14:
            q_table(e, 44, 2 * 16 * 896)
            for i in range(4):
                e("v_add_u32 v%d, %d, v%d" % (20 + i, 896 * 896, 26 + i))
        if WDBE[0] and j in (24, 26):
            c = (j - 24) // 2
            dma_group(e, 62, q_pos(1, 2 * c), [(S_WD, 20 + k, 44 + c, k * 1024, ("wdbp", c)) for k in range(4)])
        if j >= 16 and j % 2 == 0:
            c = (j - 16) // 2
            q_dma_pair(e, 0, c, 26, 44)
        if j == 9:
            e("buffer_load_dword v4, v7, s[%d:%d], 0 offen sc1" % (S_DBG, S_DBG + 3))
            e.vm_issue("nonce")
        if j == 13:
            e.vm_wait(["nonce"])
            sv = list(e.vm)
            nonce_finish_any(e, keepvm=True)
            e.vm = sv
        if j == cfg.flagA_bar:
            lab = e.newlabel("FA")
            e("s_cmp_lg_u32 s%d, 4" % S_WAVE)
            e("s_cbranch_scc1 %s" % lab)
            flag_store(e)
            e.label(lab)
        if j == cfg.epoll:
            flags_line(e, 0)
            poll_prep(e, S_PF, 14)
            poll_issue(e); e.vm_issue("poll")
        e.vm_wait(need(j + 1))
        if "stg" in cfg.x and j + 1 in (4, 12, 15, 18, 26):
            pass
        e("s_barrier")
        if "stg" in cfg.x and j + 1 in (4, 12, 15, 18, 26):
            k = {4: 3, 12: 4, 15: 5, 18: 6, 26: 7}[j + 1]
            e("s_memtime s[%d:%d]" % (S_STAMP + 2 * k, S_STAMP + 2 * k + 1)); e("s_waitcnt lgkmcnt(0)")
    assert not q
    q_setup2(e, 0)
    q_table(e, 51, 4096)
    e.vm_wait([("wd", 11), ("wdbp", 1)])
    e("s_waitcnt lgkmcnt(0)")
    e("s_barrier")
    stamp(e, cfg, 2)
    poll_loop(e, 14, True)
    if cfg.diag: e("s_mov_b32 s%d, s41" % (S_STAMP + 16))
    stamp(e, cfg, 4)
    e.vm = []
    cfg.stepsA = q_steps(0, list(range(0, 2 * (6 - cfg.nca))) + [12, 13], 13)
    for i in range(cfg.hpre): q_issue_h(e, cfg.stepsA[i])
    q_dma_pair(e, 0, 6, 26, 44)

def nonce_finish_any(e, keepvm=False):
    lab = e.newlabel("NFA"); top = e.newlabel("NTA"); chk = e.newlabel("NCK")
    e("s_mov_b32 s42, 0")
    if keepvm: e("s_branch %s" % chk)
    e.label(top)
    e("s_waitcnt vmcnt(0)")
    e.label(chk)
    e("v_readfirstlane_b32 s%d, v4" % S_NONCE)
    e("s_nop 3")
    e("s_cmp_lg_u32 s%d, 0" % S_NONCE)
    e("s_cbranch_scc1 %s" % lab)
    e("s_add_u32 s42, s42, 1")
    e("s_cmp_ge_u32 s42, 0x40000")
    e("s_cbranch_scc1 %s" % lab)
    e("s_sleep 1")
    e("buffer_load_dword v4, v7, s[%d:%d], 0 offen sc1" % (S_DBG, S_DBG + 3))
    e("s_branch %s" % top)
    e.label(lab)

Q_ACC = 64
Q_H = 128
Q_A = 240
SL2 = 40960
SI = 3

def q_setup(e, part, vw=9):
    L = V_LANE
    e("s_and_b32 s%d, s%d, 3" % (SI, S_WAVE))
    e("v_lshrrev_b32 v2, 3, v%d" % L)
    e("v_bfe_u32 v3, v%d, 4, 1" % L)
    e("v_lshlrev_b32 v3, 2, v3")
    e("v_and_b32 v8, 7, v%d" % L)
    e("v_xor_b32 v3, v3, v8")
    e("v_lshlrev_b32 v3, 4, v3")
    e("s_mul_i32 s41, s%d, 224" % SI)
    if part: e("s_add_u32 s41, s41, 896")
    e("v_add_u32 v2, s41, v2")
    e("s_movk_i32 s42, 896")
    e("v_mul_lo_u32 v2, v2, s42")
    e("s_lshl_b32 s41, s%d, 7" % S_C)
    e("v_add3_u32 v%d, v2, v3, s41" % vw)
    e("v_add_u32 v%d, %d, v%d" % (vw + 1, 8 * 896 - 1024, vw))
    e("v_add_u32 v%d, %d, v%d" % (vw + 2, 16 * 896 - 2048, vw))
    e("v_add_u32 v%d, %d, v%d" % (vw + 3, 24 * 896 - 3072, vw))
    e("s_lshl_b32 s62, s%d, 12" % SI)
    e("s_and_b32 s4, s%d, 3" % S_T1)
    e("s_lshl_b32 s4, s4, 1")
    e("s_add_u32 s4, s4, s%d" % S_C)
    e("s_cmp_ge_u32 s4, 7")
    e("s_cselect_b32 s5, 7, 0")
    e("s_sub_u32 s4, s4, s5")
    if P2ROT[0] == 0: e("s_mov_b32 s4, 0")

def q_table(e, first, mult):
    e("s_mov_b32 s5, s4")
    for c in range(7):
        e("s_mul_i32 s%d, s5, %d" % (first + c, mult))
        if c < 6: rot_next(e, 5, 7)

def q_dma_pair(e, part, c, vw, tab):
    pos = q_pos(part, 2 * c)
    dma_group(e, 62, pos, [(S_WD, vw + i, tab + c, i * 1024, ("wd", 2 * c + (i >> 1))) for i in range(4)])

P2ROT = [0]
WDBE = [0]
RMUL = [0]
FMUL = [0]
OSC = [""]
HSC = [" sc1"]
def q_setup2(e, part):
    L = V_LANE
    e("v_and_b32 v2, 15, v%d" % L)
    e("v_lshrrev_b32 v3, 2, v2")
    e("v_lshrrev_b32 v8, 5, v%d" % L)
    e("v_lshlrev_b32 v5, 2, v8")
    e("v_add_u32 v5, v5, v3")
    e("v_lshlrev_b32 v5, 7, v5")
    e("v_bfe_u32 v6, v2, 3, 1")
    e("v_lshlrev_b32 v6, 6, v6")
    e("v_bfe_u32 v3, v%d, 4, 1" % L)
    e("v_lshlrev_b32 v3, 5, v3")
    e("v_and_b32 v8, 3, v2")
    e("v_lshlrev_b32 v8, 3, v8")
    e("v_add3_u32 v5, v5, v6, v3")
    e("v_add_u32 v5, v5, v8")
    e("v_add_u32 v11, s62, v5")
    e("v_xor_b32 v12, 64, v11")
    e("v_add_u32 v18, 0x10000, v11")
    e("v_add_u32 v19, 0x10000, v12")
    e("v_add_u32 v15, 0x20000, v11")
    e("v_add_u32 v63, 0x20000, v12")
    e("s_mul_i32 s41, s%d, 112" % S_T1)
    e("s_mul_i32 s42, s%d, 14" % SI)
    e("s_add_u32 s41, s41, s42")
    if part: e("s_add_u32 s41, s41, 56")
    e("s_lshl_b32 s41, s41, 11")
    e("v_lshlrev_b32 v13, 4, v%d" % L)
    e("v_add_u32 v13, s41, v13")
    e("v_and_b32 v14, 31, v%d" % L)

def q_pos(part, kk):
    c = kk >> 1; u = kk & 1
    if part == 0: return c * 16384 + u * 2048
    if c < 3: return WB2 + ((2, 0, 1)[c] if WDBE[0] else c) * 16384 + u * 2048
    if c < 6: return c * 16384 + u * 2048
    return 0 * 16384 + u * 2048

HT = [51]
def q_load_h(e, kk, hreg, hv, tag):
    c = kk >> 1; u = kk & 1
    for nb in range(2):
        e("buffer_load_dwordx4 %s, v%d, s[%d:%d], s%d offen offset:%d%s" % (vr(hreg + 4 * nb, 4), hv, S_WS, S_WS + 3, HT[0] + c, u * 2048 + nb * 1024, HSC[0]))
        e.vm_issue(tag)

def q_steps(part, kks, hv, reg0=0):
    return [dict(part=part, kk=kk, hv=hv, hreg=Q_H + 8 * (reg0 + i), tag=("h", part, kk)) for i, kk in enumerate(kks)]

def q_issue_h(e, st):
    q_load_h(e, st["kk"], st["hreg"], st["hv"], st["tag"])

def q_mainloop(e, cfg, steps, init_zero, pre, extra=None, after_i=None, barrier_before=None):
    n = len(steps)
    def reads(i):
        st = steps[i]
        b = Q_A + 8 * (i & 1)
        pos = q_pos(st["part"], st["kk"])
        for mb in range(2):
            for ip in range(2):
                va = (11 + mb) if pos < 0x10000 else (18 + mb)
                po = pos if pos < 0x10000 else pos - 0x10000
                if pos >= 0x20000:
                    va = (15, 63)[mb]; po = pos - 0x20000
                e("ds_read_b64_tr_b16 %s, v%d offset:%d" % (vr(b + 4 * mb + 2 * ip, 2), va, po + ip * 1024))
                e.lg_issue(("A", i, mb))
    nxt = pre
    e.vm_wait([("wd", steps[0]["kk"])])
    reads(0)
    for i in range(n):
        st = steps[i]
        if nxt < n:
            q_issue_h(e, steps[nxt]); nxt += 1
            if nxt == n and extra: extra()
        late = (barrier_before is not None and i + 1 == barrier_before)
        if i + 1 < n and not late:
            e.vm_wait([("wd", steps[i + 1]["kk"])])
            reads(i + 1)
        e.vm_wait([st["tag"]])
        b = Q_A + 8 * (i & 1)
        for mb in range(2):
            e.lg_wait([("A", i, mb)])
            for nb in range(2):
                mfma(e, Q_ACC + 16 * (2 * mb + nb), b + 4 * mb, st["hreg"] + 4 * nb, "0" if (i == 0 and init_zero) else None)
        if late:
            e("s_barrier")
            reads(i + 1)
        if after_i: after_i(i)
    assert not e.lg and nxt >= n

def flags_line(e, part):
    e("s_lshr_b32 s43, s%d, 1" % S_T1)
    e("s_lshl_b32 s43, s43, 9")
    e("s_add_u32 s%d, s43, 0x%x" % (S_PF, FLAGS + 256 * part))

def q_loader_A(e, cfg):
    stamp(e, cfg, 5)
    def after_i(i):
        if i == 1:
            dma_group(e, 62, q_pos(1, 12), [(S_WD, 20 + k, 44 + 6, k * 1024, ("wdb", 6)) for k in range(4)])
        if (i & 1) and 3 <= (i >> 1) < 6 - cfg.nca:
            c = i >> 1
            dma_group(e, 62, q_pos(1, 2 * c), [(S_WD, 20 + k, 44 + c, k * 1024, ("wdb", c)) for k in range(4)])
    q_mainloop(e, cfg, cfg.stepsA, True, cfg.hpre, None, after_i)
    stamp(e, cfg, 6)
    e("v_lshlrev_b32 v2, 4, v%d" % V_LANE)
    e("v_add_u32 v2, s62, v2")
    e("v_add_u32 v3, 0x10000, v2")
    e("s_nop 7"); e("s_nop 3")
    for tl, (va, off) in enumerate(((2, 16384), (2, 32768), (3, 6 * 16384 - 0x10000))):
        for qq in range(4):
            e("ds_write_b128 v%d, %s offset:%d" % (va, vr(Q_ACC + 16 * tl + 4 * qq, 4), off + qq * 1024))
    e("s_waitcnt vmcnt(0) lgkmcnt(0)")
    e.vm = []
    e("s_barrier")
    stamp(e, cfg, 7)
    e("v_add_u32 v3, 0x%x, v2" % WB2)
    for qq in range(4):
        e("ds_write_b128 v3, %s offset:%d" % (vr(Q_ACC + 48 + 4 * qq, 4), qq * 1024))
    e("s_waitcnt lgkmcnt(0)")
    e("s_barrier")

def tprime(e):
    L = V_LANE
    e("s_cmp_lg_u32 s%d, 0" % S_T1)
    e("s_cselect_b32 s76, s63, 0")
    e("v_add_u32 v2, s76, v14")
    e("v_lshrrev_b32 v8, 5, v%d" % L)
    e("v_lshlrev_b32 v8, 2, v8")
    e("s_lshl_b32 s77, s%d, 4" % SI)
    e("v_add_u32 v8, s77, v8")
    e("s_lshl_b32 s76, s63, 31")
    e("s_mov_b32 s77, 0x%08x" % f2u(1.0 / 64))
    for nb in range(2):
        if nb: e("v_add_u32 v2, 32, v2")
        e("v_xor_b32 v21, s76, v%d" % (22 + nb))
        for u in range(2):
            for q in range(4):
                e("v_add_u32 v3, %d, v8" % (8 * u + q))
                e("v_mul_u32_u24 v3, v3, v2")
                e("v_and_b32 v3, 63, v3")
                e("v_cvt_f32_u32 v3, v3")
                e("v_mul_f32 v3, s77, v3")
                e("v_cos_f32 v5, v3")
                e("v_sin_f32 v6, v3")
                e("s_nop 0")
                e("v_mul_f32 v5, v5, v%d" % (22 + nb))
                e("v_mul_f32 v6, v6, v21")
                e("v_cvt_pk_bf16_f32 v%d, v5, v6" % (T_REG + 8 * nb + 4 * u + q))
    for nb in range(2):
        e("v_sub_f32 v%d, 1.0, v%d" % (40 + 2 * nb, 22 + nb))
        e("v_mov_b32 v%d, v%d" % (41 + 2 * nb, 40 + 2 * nb))

T_REG = 44
U_REG = 128
def q_consumer_B(e, cfg):
    L = V_LANE
    q_setup(e, 1, 26)
    q_setup2(e, 1)
    e("v_subrev_u32 v9, %d, v13" % (56 * 2048))
    srd(e, S_OUT, 46, 1835008)
    srd(e, S_WD, 56, 1605632)
    q_table(e, 44, 2 * 16 * 896)
    q_table(e, 51, 4096)
    e.vm_wait(["pollA"])
    okA = e.newlabel("AOK")
    topA = e.newlabel("ATOP")
    e("s_mov_b32 s41, 0")
    e.label(topA)
    e("v_cmp_eq_u32 vcc, s%d, v60" % S_NONCE)
    e("s_nop 1")
    e("s_and_b32 s42, vcc_lo, 0x3fff")
    e("s_cmp_eq_u32 s42, 0x3fff")
    e("s_cselect_b32 s42, vcc_hi, 0")
    e("s_cmp_eq_u32 s42, -1")
    e("s_cbranch_scc1 %s" % okA)
    e("s_add_u32 s41, s41, 1")
    e("s_cmp_ge_u32 s41, 0x40000")
    e("s_cbranch_scc1 %s" % okA)
    poll_issue(e)
    e("s_waitcnt vmcnt(0)")
    e("s_branch %s" % topA)
    e.label(okA)
    stepsCA = q_steps(0, list(range(2 * (6 - cfg.nca), 12)), 9)
    for st in stepsCA[:cfg.preCA]: q_issue_h(e, st)
    e("s_cmp_ge_u32 s%d, 4" % S_C)
    e("s_cselect_b32 s63, 1, 0")
    e("s_sub_u32 s64, 32, s%d" % S_T1)
    e("s_and_b32 s64, s64, 31")
    e("s_cmp_eq_u32 s63, 1")
    e("s_cselect_b32 s64, s64, s%d" % S_T1)
    e("v_lshrrev_b32 v8, 5, v%d" % L)
    e("s_lshl_b32 s41, s%d, 6" % S_C)
    e("s_cmp_eq_u32 s63, 1")
    e("s_cselect_b64 vcc, -1, 0")
    for mb in range(2):
        e("v_add_u32 v2, s41, v14")
        if mb: e("v_add_u32 v2, 32, v2")
        e("v_sub_u32 v3, 448, v2")
        e("v_cndmask_b32 v2, v2, v3, vcc")
        e("v_lshlrev_b32 v2, 4, v2")
        e("v_lshlrev_b32 v3, 12, v8")
        e("v_add_u32 v%d, v2, v3" % (16 + mb))
    e("s_lshl_b32 s41, s64, 4")
    e("s_lshl_b32 s42, s%d, 2" % SI)
    e("s_add_u32 s41, s41, s42")
    e("s_lshl_b32 s41, s41, 12")
    e("s_add_u32 s65, s41, 0x%x" % UBUF)
    e("s_lshl_b32 s41, s%d, 6" % S_T1)
    e("v_add_u32 v2, s41, v14")
    e("v_lshlrev_b32 v2, 2, v2")
    e("v_add_u32 v20, 0x%x, v2" % GBUF)
    e("s_mul_i32 s41, s61, 12")
    e("s_lshl_b32 s42, s%d, 2" % S_WAVE)
    e("s_add_u32 s41, s41, s42")
    e("s_add_u32 s41, s41, 256")
    e("s_add_u32 s%d, s%d, s41" % (S_FLAG, S_FLAG))
    e.vm_wait(["hst"])
    stamp(e, cfg, 6)
    flag_store(e)
    e.vm_issue("flagB")
    for nb in range(2):
        e("buffer_load_dword v%d, v20, s[%d:%d], 0 offen offset:%d sc1" % (22 + nb, S_WS, S_WS + 3, nb * 128))
        e.vm_issue("g")
    for st in stepsCA[cfg.preCA:]: q_issue_h(e, st)
    for c in ((2,) if WDBE[0] else (0, 1, 2)): q_dma_pair(e, 1, c, 26, 44)
    e.vm_wait(["g"])
    tprime(e)
    def afterA(i):
        if i & 1:
            c = 6 - cfg.nca + (i >> 1)
            q_dma_pair(e, 1, c, 26, 44)
    if stepsCA:
        q_mainloop(e, cfg, stepsCA, True, len(stepsCA), None, afterA)
    stamp(e, cfg, 4)
    flags_line(e, 1)
    poll_prep(e, S_PF, 56)
    poll_loop56(e)
    stamp(e, cfg, 5)
    e.vm = []
    e("v_lshlrev_b32 v62, 2, v%d" % V_LANE)
    e("v_add_u32 v62, 0x%x, v62" % (FLAGS + 16 * 512))
    e("v_mov_b32 v60, 0x7fffffff")
    e("v_cmp_gt_u32 vcc, 32, v%d" % V_LANE)
    e("s_nop 1")
    e("v_cndmask_b32 v62, v60, v62, vcc")
    def uloads():
        for u in range(2):
            for mb in range(2):
                e("s_add_u32 s%d, s65, %d" % (S_OFF, u * 2 * 4096))
                e("buffer_load_dwordx4 %s, v%d, s[%d:%d], s%d offen sc1" % (vr(U_REG + 8 * u + 4 * mb, 4), 16 + mb, S_WS, S_WS + 3, S_OFF))
                e.vm_issue("u")
    def dflag_issue():
        e("buffer_load_dword v10, v62, s[%d:%d], 0 offen sc1" % (S_WS, S_WS + 3))
        e.vm_issue("dflag")
    def after_k(kk):
        if kk == cfg.dchk:
            ok = e.newlabel("DOK"); top = e.newlabel("DSP")
            e.vm_wait(["dflag"])
            sv = list(e.vm)
            e("s_mov_b32 s41, 0")
            e.label(top)
            e("v_cmp_eq_u32 vcc, s%d, v10" % S_NONCE)
            e("s_nop 1")
            e("s_cmp_eq_u32 vcc_lo, -1")
            e("s_cbranch_scc1 %s" % ok)
            e("s_add_u32 s41, s41, 1")
            e("s_cmp_ge_u32 s41, 0x40000")
            e("s_cbranch_scc1 %s" % ok)
            e("buffer_load_dword v10, v62, s[%d:%d], 0 offen sc1" % (S_WS, S_WS + 3))
            e("s_waitcnt vmcnt(0)")
            e("s_branch %s" % top)
            e.label(ok)
            e.vm = sv
            uloads()
    stepsB = q_steps(1, list(range(14)), 13)
    for i in range(cfg.hpreB): q_issue_h(e, stepsB[i])
    q_mainloop(e, cfg, stepsB, cfg.nca == 0, cfg.hpreB, dflag_issue, after_k, cfg.b15 if cfg.nca == 3 else 6)
    stamp(e, cfg, 7)
    e("s_nop 7"); e("s_nop 3")
    for mb in range(2):
        for nb in range(2):
            D = Q_ACC + 16 * (2 * mb + nb)
            for i in range(0, 16, 2):
                e("v_pk_mul_f32 %s, %s, %s" % (vr(D + i, 2), vr(D + i, 2), vr(40 + 2 * nb, 2)))
    e.vm_wait(["u"])
    e("s_nop 1")
    for u in range(2):
        for mb in range(2):
            for nb in range(2):
                mfma(e, Q_ACC + 16 * (2 * mb + nb), U_REG + 8 * u + 4 * mb, T_REG + 8 * nb + 4 * u)
    e("v_lshlrev_b32 v2, 4, v%d" % L)
    e("s_add_u32 s41, s%d, 2" % SI)
    e("s_cmp_eq_u32 s%d, 0" % SI)
    e("s_cselect_b32 s41, 0, s41")
    e("s_lshl_b32 s41, s41, 14")
    e("v_add_u32 v3, s41, v2")
    e("s_add_u32 s41, s%d, 1" % SI)
    e("s_lshl_b32 s41, s41, 14")
    e("s_cmp_eq_u32 s%d, 2" % SI)
    e("s_cselect_b32 s41, %d, s41" % (6 * 16384))
    e("s_cmp_eq_u32 s%d, 3" % SI)
    e("s_cselect_b32 s41, 0x%x, s41" % WB2)
    e("v_add_u32 v5, s41, v2")
    e("s_lshl_b32 s41, s%d, 12" % SI)
    e("v_add_u32 v6, s41, v2")
    e("v_add_u32 v7, 0x10000, v6")
    e("s_and_b32 s41, s%d, 1" % SI)
    e("s_cmp_eq_u32 s41, 1")
    e("s_cselect_b64 vcc, -1, 0")
    e("s_lshl_b32 s41, s41, 5")
    e("v_add_u32 v8, s41, v14")
    e("v_cndmask_b32 v40, v40, v42, vcc")
    e("v_mov_b32 v41, v40")
    e("v_lshlrev_b32 v8, 5, v8")
    e("v_add_u32 v8, s%d, v8" % S_T1)
    e("s_movk_i32 s42, 896")
    e("v_mul_lo_u32 v8, v8, s42")
    e("s_lshl_b32 s41, s%d, 7" % S_C)
    e("s_lshr_b32 s42, s%d, 1" % SI)
    e("s_lshl_b32 s42, s42, 6")
    e("s_add_u32 s41, s41, s42")
    e("v_lshrrev_b32 v9, 5, v%d" % L)
    e("v_lshlrev_b32 v9, 4, v9")
    e("v_add3_u32 v8, v8, v9, s41")
    e("s_barrier")
    regions = ((6, 0), (6, 3 * 16384), (7, 0), (7, 16384))
    done = e.newlabel("XDONE")
    labs = [e.newlabel("XV%d_" % w) for w in range(4)]
    for w in range(1, 4):
        e("s_cmp_eq_u32 s%d, %d" % (SI, w))
        e("s_cbranch_scc1 %s" % labs[w])
    for w in range(4):
        e.label(labs[w])
        others = [t for t in range(4) if t != w]
        for tl in others:
            for qq in range(4):
                e("ds_write_b128 v3, %s offset:%d" % (vr(Q_ACC + 16 * tl + 4 * qq, 4), tl * 4096 + qq * 1024))
            if tl == others[1]: e("s_waitcnt lgkmcnt(4)")
        for k in range(4):
            for qq in range(4):
                e("ds_read_b128 %s, v5 offset:%d" % (vr(192 + 16 * k + 4 * qq, 4), k * 4096 + qq * 1024))
            if k in (0, 1, 2): e("s_waitcnt lgkmcnt(8)")
        for q in range(0, 16, 2):
            e("v_pk_mul_f32 %s, %s, 1.0 op_sel_hi:[1,0]" % (vr(128 + q, 2), vr(Q_ACC + 16 * w + q, 2)))
        e("s_waitcnt lgkmcnt(0)")
        e("s_barrier")
        for n, k in enumerate(others):
            va, off = regions[k]
            for qq in range(4):
                e("ds_read_b128 %s, v%d offset:%d" % (vr(144 + 16 * n + 4 * qq, 4), va, off + qq * 1024))
        if w < 3: e("s_branch %s" % done)
    e.label(done)
    for q in range(0, 16, 2):
        e("v_pk_add_f32 %s, %s, %s" % (vr(192 + q, 2), vr(192 + q, 2), vr(208 + q, 2)))
        e("v_pk_add_f32 %s, %s, %s" % (vr(224 + q, 2), vr(224 + q, 2), vr(240 + q, 2)))
    for q in range(0, 16, 2):
        e("v_pk_add_f32 %s, %s, %s" % (vr(192 + q, 2), vr(192 + q, 2), vr(224 + q, 2)))
    for q in range(0, 16, 2):
        e("v_pk_fma_f32 %s, %s, %s, %s" % (vr(128 + q, 2), vr(192 + q, 2), vr(40, 2), vr(128 + q, 2)))
    e("s_waitcnt lgkmcnt(0)")
    for q in range(0, 16, 2):
        e("v_pk_add_f32 %s, %s, %s" % (vr(144 + q, 2), vr(144 + q, 2), vr(160 + q, 2)))
        e("v_pk_add_f32 %s, %s, %s" % (vr(128 + q, 2), vr(128 + q, 2), vr(176 + q, 2)))
    for q in range(0, 16, 2):
        e("v_pk_add_f32 %s, %s, %s" % (vr(128 + q, 2), vr(128 + q, 2), vr(144 + q, 2)))
    for q in range(8):
        e("v_cvt_pk_bf16_f32 v%d, v%d, v%d" % (96 + q, 128 + 2 * q, 128 + 2 * q + 1))
    e("s_nop 1")
    for ih in range(2):
        e("v_permlane32_swap_b32 v%d, v%d" % (96 + 4 * ih, 98 + 4 * ih))
        e("v_permlane32_swap_b32 v%d, v%d" % (97 + 4 * ih, 99 + 4 * ih))
    for ih in range(2):
        e("buffer_store_dwordx4 %s, v8, s[%d:%d], 0 offen offset:%d%s" % (vr(96 + 4 * ih, 4), S_OUT, S_OUT + 3, ih * 32, OSC[0]))
    stamp(e, cfg, 8)

def kernel_fused2(e, cfg):
    name = "gated_mix__spectral_fnet__glu_gated_glu__prompt_kernel"
    header(e, name)
    if cfg.diag:
        e("s_memrealtime s[%d:%d]" % (S_STAMP + 6, S_STAMP + 7))
    e("s_cmp_ge_u32 s2, 256")
    e("s_cbranch_scc1 KF_END")
    kernarg_loads(e)
    entry_common(e)
    e("s_and_b32 s%d, s%d, 3" % (S_WF, S_WAVE))
    e("s_and_b32 s%d, s%d, 3" % (S_LW, S_WAVE))
    e("s_and_b32 s41, s2, 7")
    e("s_lshr_b32 s42, s2, 3")
    e("s_cmp_ge_u32 s42, 28")
    e("s_cbranch_scc1 P1_DFT")
    e("s_mul_i32 s43, s42, 37")
    e("s_lshr_b32 s43, s43, 8")
    e("s_mul_i32 s76, s43, 7")
    e("s_sub_u32 s76, s42, s76")
    e("s_lshr_b32 s77, s41, 1")
    e("s_lshl_b32 s77, s77, 2")
    e("s_add_u32 s%d, s77, s43" % S_R)
    e("s_and_b32 s77, s41, 1")
    e("s_mul_i32 s77, s77, 7")
    e("s_add_u32 s%d, s77, s76" % S_FB)
    e("s_cmp_lt_u32 s%d, 4" % S_WAVE)
    e("s_cbranch_scc1 P1_H_CONSUMER")
    e.vm = []; e.lg = []
    STG[0] = True
    if "prioL" in cfg.x: e("s_setprio 1")
    h2_loader(e, cfg)
    q_loader_A(e, cfg)
    STG[0] = False
    stamp_store(e, cfg, 0)
    e("s_endpgm")
    e.label("P1_H_CONSUMER")
    if "prioC" in cfg.x: e("s_setprio 1")
    e.vm = []; e.lg = []
    h2_consumer(e, cfg)
    q_consumer_B(e, cfg)
    stamp_store(e, cfg, 0)
    e("s_endpgm")
    e.label("P1_DFT")
    e("s_sub_u32 s42, s42, 28")
    e("s_and_b32 s%d, s41, 1" % S_EH)
    e("s_lshr_b32 s77, s41, 1")
    e("s_lshl_b32 s77, s77, 2")
    e("s_add_u32 s%d, s77, s42" % S_QG)
    e("s_cmp_ge_u32 s%d, 4" % S_WAVE)
    e("s_cbranch_scc1 P1_D_LOADER")
    if "prioD" in cfg.x: e("s_setprio 1")
    e.vm = []; e.lg = []
    p1_consumer(e, cfg, False)
    d_epilogue(e, cfg)
    stamp(e, cfg, 3)
    e.vm_wait_all()
    e("s_barrier")
    lab = e.newlabel("DNOTW0")
    e("s_cmp_lg_u32 s%d, 0" % S_WAVE)
    e("s_cbranch_scc1 %s" % lab)
    flag_store(e)
    e("s_waitcnt vmcnt(0)")
    e.label(lab)
    stamp_store(e, cfg, 0)
    e("s_endpgm")
    e.label("P1_D_LOADER")
    e.vm = []; e.lg = []
    p1_loader(e, cfg, False)
    stamp(e, cfg, 3)
    e("s_waitcnt vmcnt(0)")
    e("s_barrier")
    stamp_store(e, cfg, 0)
    e("s_endpgm")
    e.label("KF_END")
    e("s_endpgm")
    e.label("KF_CODE_END")

def descriptor(name):
    return """.section .rodata,"a"
.p2align 6
.amdhsa_kernel %s
  .amdhsa_next_free_vgpr 256
  .amdhsa_next_free_sgpr 102
  .amdhsa_accum_offset 256
  .amdhsa_group_segment_fixed_size 0
  .amdhsa_kernarg_size 104
  .amdhsa_user_sgpr_count 2
  .amdhsa_user_sgpr_kernarg_segment_ptr 1
  .amdhsa_system_sgpr_workgroup_id_x 1
.end_amdhsa_kernel
""" % name

def main():
    cfg = Cfg()
    cfg.pro_extra = 16; cfg.stage_budget = 8; cfg.p2_la = 3; cfg.p2_dpoll = 4; cfg.stage_budget2 = 6; cfg.flagA_bar = 22; cfg.epi_rate = 0; cfg.epi_start = 1; cfg.epoll = 26; cfg.hpre = 5; cfg.preCA = 0; cfg.nca = 3; cfg.b15 = 4; cfg.hpreB = 5; cfg.dchk = 11; cfg.gate_j = 5; cfg.gflag_k = 9; cfg.ncx = 0; cfg.gate_g = 14; cfg.gate_rate = 3; cfg.defer_rate = 3; cfg.pfWd_j = 1; cfg.pfWB_j = 0; cfg.pfW_j = 1
    out = sys.argv[1]
    for a in sys.argv[2:]:
        if a == "nop2rot": P2ROT[0] = 0
        if a == "p2rot": P2ROT[0] = 1
        if a == "wdbe": WDBE[0] = 1
        if a == "rmul1": RMUL[0] = 1
        if a.startswith("rm_"): RMUL[0] = int(a[3:])
        if a.startswith("fm_"): FMUL[0] = int(a[3:])
        if a == "osc1": OSC[0] = " sc1"
        if a == "ont": OSC[0] = " nt"
        if a == "osc01": OSC[0] = " sc0 sc1"
        if a == "hplain": HSC[0] = ""
        if a == "hnt": HSC[0] = " nt"
        if a == "hsc01": HSC[0] = " sc0 sc1"
        if a == "diag": cfg.diag = True
        elif a == "fused": cfg.fused = True
        elif "=" in a:
            k, v = a.split("="); setattr(cfg, k, int(v))
        else: cfg.x = cfg.x | {a}
    e = Em()
    if cfg.fused:
        name = "gated_mix__spectral_fnet__glu_gated_glu__prompt_kernel"
        hdr = """; gated_mix( FNet spectral mixing , sigmoid-GLU MLP ) -- single fused persistent-style kernel, gfx950
; @launch grid=(256,1,1) block=(512,1,1) lds=163840
;
"""
        hdr += '.amdgcn_target "amdgcn-amd-amdhsa--gfx950"\n'
        kernel_fused2(e, cfg)
        open(out, "w").write(hdr + e.text() + descriptor(name))
        return
    hdr = "; generated by gen2.py\n"
    hdr += "; @launch kernel=k1_kernel grid=(256,1,1) block=(512,1,1) lds=163840\n"
    hdr += "; @launch kernel=k2_kernel grid=(256,1,1) block=(512,1,1) lds=163840\n"
    hdr += '.amdgcn_target "amdgcn-amd-amdhsa--gfx950"\n'
    kernel1(e, cfg)
    kernel2(e, cfg)
    txt = hdr + e.text() + descriptor("k1_kernel") + descriptor("k2_kernel")
    open(out, "w").write(txt)
if __name__ == "__main__":
    main()
```
